```python
import torch

def _softmax(x, axis=-1):
    return torch.softmax(x, dim=axis)

def _gelu(x):
    return torch.nn.functional.gelu(x, approximate='tanh')

def _silu(x):
    return torch.nn.functional.silu(x)

def _sigmoid(x):
    return torch.sigmoid(x)

def _layernorm(x, axis=-1, eps=1e-05):
    m = x.mean(dim=axis, keepdim=True)
    v = x.var(dim=axis, keepdim=True, unbiased=False)
    return (x - m) / torch.sqrt(v + eps)

def _scatter_add(tgt, idx, src, axis=0):
    return tgt.clone().index_add_(axis, idx, src)

def _segment_sum(src, seg, n):
    out = torch.zeros((n,) + src.shape[1:], dtype=src.dtype)
    return out.index_add_(0, seg, src)

def _pad(x, pw):
    flat = tuple((v for pair in reversed(pw) for v in pair))
    return torch.nn.functional.pad(x, flat)
kernel_name = 'recurrent_scan__memory_aug_recurrent_mem_tr__glu_gated_glu__prompt'

def setup_inputs():

    _w = lambda a: (lambda t: t.to(torch.bfloat16) if t.is_floating_point() else t)(torch.as_tensor(a))

    def _A_setup():
        B, S, Dm = (1, 2048, 1024)
        H, Dh = (32, 128)
        M, seg = (8, 32)
        seg = min(seg, S)
        S = S // seg * seg
        return {'x': _w((lambda *s: torch.randn(*s, dtype=torch.bfloat16) * 0.05)(B, S, Dm)), 'mem0': _w((lambda *s: torch.randn(*s, dtype=torch.bfloat16) * 0.2)(B, M, Dm)), 'Wq': _w((lambda *s: torch.randn(*s, dtype=torch.bfloat16) * 0.8)(Dm, H, Dh) * Dm ** (-0.5)), 'Wk': _w((lambda *s: torch.randn(*s, dtype=torch.bfloat16) * 0.8)(Dm, H, Dh) * Dm ** (-0.5)), 'Wv': _w((lambda *s: torch.randn(*s, dtype=torch.bfloat16) * 0.2)(Dm, H, Dh) * Dm ** (-0.5)), 'Wo': _w((lambda *s: torch.randn(*s, dtype=torch.bfloat16) * 0.2)(H, Dh, Dm) * (H * Dh) ** (-0.5)), 'seg_len': seg}
    _A_in = _A_setup()

    def _B_setup():
        B, S, D, F = (1, 2048, 1024, 3584)
        return {'x': _w((lambda *s: torch.randn(*s, dtype=torch.bfloat16) * 0.05)(B, S, D)), 'w_gate': _w((lambda *s: torch.randn(*s, dtype=torch.bfloat16) * 0.2)(D, F)), 'w_up': _w((lambda *s: torch.randn(*s, dtype=torch.bfloat16) * 0.1)(D, F)), 'w_down': _w((lambda *s: torch.randn(*s, dtype=torch.bfloat16) * 0.1)(F, D))}
    _B_in = _B_setup()
    return {'A_x': _A_in['x'], 'A_mem0': _A_in['mem0'], 'A_Wq': _A_in['Wq'], 'A_Wk': _A_in['Wk'], 'A_Wv': _A_in['Wv'], 'A_Wo': _A_in['Wo'], 'A_seg_len': _A_in['seg_len'], 'B_x': _B_in['x'], 'B_w_gate': _B_in['w_gate'], 'B_w_up': _B_in['w_up'], 'B_w_down': _B_in['w_down']}

def reference(A_x, A_mem0, A_Wq, A_Wk, A_Wv, A_Wo, A_seg_len, B_x, B_w_gate, B_w_up, B_w_down):

    def _A_ref(x, mem0, Wq, Wk, Wv, Wo, seg_len):
        B, S, Dm = x.shape
        H, Dh = (Wq.shape[1], Wq.shape[2])
        M = mem0.shape[1]
        scale = Dh ** (-0.5)
        n_seg = S // seg_len
        L = M + seg_len
        idx = torch.arange(L)
        mask = (idx[:, None] < M) | (idx[:, None] >= idx[None, :])
        mem = mem0
        outs = []
        for s in range(n_seg):
            xs = x[:, s * seg_len:(s + 1) * seg_len, :].clone()
            h = torch.concatenate([mem, xs], axis=1)
            q = torch.einsum('btd,dhe->bhte', h, Wq)
            k = torch.einsum('btd,dhe->bhte', h, Wk)
            v = torch.einsum('btd,dhe->bhte', h, Wv)
            scores = torch.einsum('bhqe,bhke->bhqk', q, k) * scale
            scores = torch.where(mask[None, None], scores, -1000000000.0)
            p = _softmax(scores, axis=-1)
            o = torch.einsum('bhqk,bhke->bhqe', p, v)
            o = torch.einsum('bhte,hed->btd', o, Wo)
            mem = o[:, :M, :].clone()
            outs.append(o[:, M:, :])
        return torch.concatenate(outs, axis=1)

    def _B_ref(x, w_gate, w_up, w_down):
        g = torch.einsum('bsd,df->bsf', x, w_gate)
        u = torch.einsum('bsd,df->bsf', x, w_up)
        h = _sigmoid(g) * u
        return torch.einsum('bsf,fd->bsd', h, w_down)
    x = A_x
    xn = _layernorm(x, axis=-1)
    s = _A_ref(xn, A_mem0, A_Wq, A_Wk, A_Wv, A_Wo, A_seg_len)
    g = _silu(_B_ref(xn, B_w_gate, B_w_up, B_w_down))
    return x + s * g
```

```python
class Asm:
    def __init__(self):
        self.lines = []
        self._uid = 0
    def __call__(self, s):
        for ln in s.split('\n'):
            ln = ln.strip()
            if ln:
                self.lines.append('    ' + ln)
    def label(self, l):
        self.lines.append(l + ':')
    def raw(self, s):
        self.lines.append(s)
    def uid(self, p='L'):
        self._uid += 1
        return f'{p}_{self._uid}'
    def text(self):
        return '\n'.join(self.lines) + '\n'

def v(i, n=1):
    return f'v{i}' if n == 1 else f'v[{i}:{i+n-1}]'
def s(i, n=1):
    return f's{i}' if n == 1 else f's[{i}:{i+n-1}]'

def interleave(main, fill, start=0, per=1, every=1):
    out = []
    fi = 0
    for i, m in enumerate(main):
        out.append(m)
        if i >= start and (i - start) % every == 0:
            for _ in range(per):
                if fi < len(fill):
                    out.extend(fill[fi]); fi += 1
    while fi < len(fill):
        out.extend(fill[fi]); fi += 1
    return out

def kernel_desc(name, vgpr=256, sgpr=102):
    acc = (vgpr + 3) // 4 * 4
    return f'''.amdhsa_kernel {name}
  .amdhsa_next_free_vgpr {vgpr}
  .amdhsa_next_free_sgpr {sgpr}
  .amdhsa_accum_offset {acc}
  .amdhsa_group_segment_fixed_size 0
  .amdhsa_kernarg_size 112
  .amdhsa_user_sgpr_count 2
  .amdhsa_user_sgpr_kernarg_segment_ptr 1
  .amdhsa_system_sgpr_workgroup_id_x 1
  .amdhsa_float_denorm_mode_32 3
.end_amdhsa_kernel
'''


def code_touch(a, label, nlines, sp, sd, stride=128, sadd=None):
    a(f's_getpc_b64 s[{sp}:{sp+1}]')
    a(f's_add_u32 s{sp}, s{sp}, {label}@rel32@lo+4')
    a(f's_addc_u32 s{sp+1}, s{sp+1}, {label}@rel32@hi+12')
    if sadd is not None:
        a(f's_add_u32 s{sp}, s{sp}, s{sadd}')
        a(f's_addc_u32 s{sp+1}, s{sp+1}, 0')
    for i in range(nlines):
        a(f's_load_dword s{sd}, s[{sp}:{sp+1}], {i*stride}')
```

```python
from asmlib import *
from layout4 import *
SRD_WS = 4
V_L16 = 1
MX, T, NI, RC0, RC1, TRV, TRM = 20, 21, 22, 23, 24, 25, 26
ONE = 28
SA, SB = 32, 44
SETS = [(56, 88, 120), (140, 172, 204)]
PK = 224
S_M0, S_CST, S_X, S_KM, S_L, S_N, S_A, S_B = 72, 80, 81, 82, 83, 84, 85, 86

def exp_seq(r):
    seq = [f'v_max3_f32 {v(MX)}, {v(r[0])}, {v(r[1])}, {v(r[2])}', f'v_max3_f32 {v(T)}, {v(r[3])}, {v(r[4])}, {v(r[5])}']
    rr = r[6:]; k = 0
    while len(rr) >= 2:
        d = (MX, T)[k & 1]; k += 1
        seq.append(f'v_max3_f32 {v(d)}, {v(d)}, {v(rr[0])}, {v(rr[1])}'); rr = rr[2:]
    seq.append(f'v_max_f32 {v(MX)}, {v(MX)}, {v(T)}')
    for sw in ('v_permlane16_swap_b32', 'v_permlane32_swap_b32'):
        seq += [f'v_mov_b32 {v(T)}, {v(MX)}', 's_nop 1', f'{sw} {v(T)}, {v(MX)}', f'v_max_f32 {v(MX)}, {v(MX)}, {v(T)}']
    seq.append(f'v_mul_f32 {v(MX)}, {s(S_CST)}, {v(MX)}')
    seq += [f'v_fma_f32 {v(x)}, {v(x)}, {s(S_CST)}, -{v(MX)}' for x in r]
    seq += [f'v_exp_f32 {v(x)}, {v(x)}' for x in r]
    seq.append('s_nop 0')
    return seq

def pack(S, t1zero):
    o = [f'v_cvt_pk_bf16_f32 {v(S)}, {v(S)}, {v(S+1)}', f'v_cvt_pk_bf16_f32 {v(S+1)}, {v(S+2)}, {v(S+3)}']
    if t1zero: o += [f'v_mov_b32 {v(S+2)}, 0', f'v_mov_b32 {v(S+3)}, 0']
    else: o += [f'v_cvt_pk_bf16_f32 {v(S+2)}, {v(S+4)}, {v(S+5)}', f'v_cvt_pk_bf16_f32 {v(S+3)}, {v(S+6)}, {v(S+7)}']
    o += [f'v_cvt_pk_bf16_f32 {v(S+8)}, {v(S+8)}, {v(S+9)}'] + [f'v_mov_b32 {v(S+8+i)}, 0' for i in (1, 2, 3)] + ['s_nop 1']
    return o

def emit_att(a, s_seg0, s_head0, s_w):
    a(f'''
    v_lshrrev_b32 v20, 4, {v(V_L16)}          ; lane
    v_lshrrev_b32 v21, 4, v20                 ; g
    v_and_b32 v22, 15, v20
    v_lshlrev_b32 v23, 2, v21
    ''')
    for i in range(4):
        a(f'v_add_u32 v24, {i}, v23')
        a(f'v_cmp_gt_u32 {s(S_M0+2*i,2)}, v24, v22')
    a(f'''
    s_mul_i32 {s(S_L)}, {s(s_w)}, 10240
    v_and_b32 v22, 3, v20                     ; cc
    v_bfe_u32 v24, v20, 2, 2                  ; r
    v_add_u32 v23, v23, v24                   ; 4g + r
    v_lshl_add_u32 v23, v22, 4, v23
    v_lshlrev_b32 v23, 4, v23
    v_add_u32 {v(TRV)}, {s(S_L)}, v23
    v_and_b32 v24, 1, v24
    v_lshl_add_u32 v24, v21, 1, v24           ; token 2g + (r&1)
    v_lshl_add_u32 v24, v22, 3, v24
    v_lshlrev_b32 v24, 4, v24
    v_add_u32 {v(TRM)}, {s(S_L)}, v24
    v_mov_b32 {v(NI)}, 0xff61b1e6
    v_mov_b32 v136, 0
    v_mov_b32 v137, 0
    v_mov_b32 v220, 0
    v_mov_b32 v221, 0
    s_mov_b32 {s(S_CST)}, 0x3e0293ee
    s_lshr_b32 {s(S_A)}, {s(s_w)}, 2
    s_add_u32 {s(S_A)}, {s(S_A)}, {s(s_seg0)}
    s_lshl_b32 {s(S_X)}, {s(S_A)}, 18
    s_and_b32 {s(S_A)}, {s(s_w)}, 3
    s_add_u32 {s(S_A)}, {s(S_A)}, {s(s_head0)}
    s_lshl_b32 {s(S_KM)}, {s(S_A)}, 13
    s_add_u32 {s(S_KM)}, {s(S_KM)}, {s(S_X)}
    s_add_u32 {s(S_KM)}, {s(S_KM)}, {WS_KM}
    s_lshl_b32 {s(S_A)}, {s(S_A)}, 12
    s_add_u32 {s(S_X)}, {s(S_X)}, {s(S_A)}
    ''')
    for i in range(4): a(f'v_mov_b32 {v(ONE+i)}, 0x3f803f80')
    ld = lambda reg, sb, off: f'buffer_load_dwordx4 {v(reg,4)}, {v(V_L16)}, {s(SRD_WS,4)}, {s(sb)} offen offset:{off} sc1'
    def loads(n):
        q, k, z = SETS[n]
        a(f's_add_u32 {s(S_B)}, {s(S_KM)}, {n*2*262144}')
        for u in range(4): a(ld(z + 4 * u, S_B, 1024 * u))
        for base, reg in ((WS_QS, q), (WS_KS, k)):
            for kt in range(2):
                a(f's_add_u32 {s(S_A)}, {s(S_X)}, {base + 131072*kt + n*2*262144}')
                for u in range(4): a(ld(reg + (kt * 4 + u) * 4, S_A, 1024 * u))
    def vloads(n):
        for kt in range(2):
            a(f's_add_u32 m0, {s(S_L)}, {4096*kt + n*81920}')
            a(f's_add_u32 {s(S_A)}, {s(S_X)}, {WS_VS + 131072*kt + n*2*262144}')
            for u in range(4): a(f'buffer_load_dwordx4 {v(V_L16)}, {s(SRD_WS,4)}, {s(S_A)} offen offset:{1024*u} sc1 lds')
        a(f's_add_u32 m0, {s(S_L)}, {8192 + n*81920}')
        a(f's_add_u32 {s(S_A)}, {s(S_KM)}, {4096 + n*2*262144}')
        for u in range(2): a(f'buffer_load_dwordx4 {v(V_L16)}, {s(SRD_WS,4)}, {s(S_A)} offen offset:{1024*u} sc1 lds')
    loads(0); vloads(0); loads(1); vloads(1)
    for n in range(2):
        Q, K, Z = SETS[n]
        a(f's_waitcnt vmcnt({40 if n == 0 else 18})')
        for qt, S in ((0, SA), (1, SB)):
            for u in range(4):
                q = v(Q + (qt * 4 + u) * 4, 4)
                for kt in range(qt + 1):
                    d = S + 4 * kt
                    a(f'v_mfma_f32_16x16x32_bf16 {v(d,4)}, {v(K+(kt*4+u)*4,4)}, {q}, {"0" if u==0 else v(d,4)}')
                a(f'v_mfma_f32_16x16x32_bf16 {v(S+8,4)}, {v(Z+4*u,4)}, {q}, {"0" if u==0 else v(S+8,4)}')
        for i in range(4): a(f'v_cndmask_b32 {v(SA+i)}, {v(SA+i)}, {v(NI)}, {s(S_M0+2*i,2)}')
        for x in exp_seq([SA + i for i in range(4)] + [SA + 8, SA + 9]) + pack(SA, True): a(x)
        a(f's_waitcnt vmcnt({30 if n == 0 else 8})')
        VT, VM, O = Q, Z, K
        if n: a(f'v_add_u32 {v(TRV)}, 81920, {v(TRV)}'); a(f'v_add_u32 {v(TRM)}, 81920, {v(TRM)}')
        for p in range(4):
            for Tt in range(2):
                t = 2 * p + Tt
                for kt in range(2):
                    a(f'ds_read_b64_tr_b16 {v(VT+4*t+2*kt,2)}, {v(TRV)} offset:{4096*kt + 1024*p + 8*Tt}')
                a(f'ds_read_b64_tr_b16 {v(VM+2*t,2)}, {v(TRM)} offset:{8192 + 512*p + 8*Tt}')
        for i in range(4): a(f'v_cndmask_b32 {v(SB+4+i)}, {v(SB+4+i)}, {v(NI)}, {s(S_M0+2*i,2)}')
        for x in exp_seq(list(range(SB, SB + 10))) + pack(SB, False): a(x)
        a('s_waitcnt lgkmcnt(0)')
        for qt, S in ((0, SA), (1, SB)):
            SM = S + 4
            a(f'v_mfma_f32_16x16x32_bf16 {v(SM,4)}, {v(ONE,4)}, {v(S,4)}, 0')
            a(f'v_mfma_f32_16x16x32_bf16 {v(SM,4)}, {v(ONE,4)}, {v(S+8,4)}, {v(SM,4)}')
            for t in range(8):
                a(f'v_mfma_f32_16x16x32_bf16 {v(O+4*t,4)}, {v(VT+4*t,4)}, {v(S,4)}, 0')
                a(f'v_mfma_f32_16x16x32_bf16 {v(O+4*t,4)}, {v(VM+2*t,4)}, {v(S+8,4)}, {v(O+4*t,4)}')
            a(f'v_rcp_f32 {v(RC0)}, {v(SM)}')
            a(f's_add_u32 {s(S_A)}, {s(S_X)}, {WS_OO + 131072*qt + n*2*262144}')
            for p in range(4):
                for i in range(8): a(f'v_mul_f32 {v(O+8*p+i)}, {v(O+8*p+i)}, {v(RC0)}')
                for d in range(4): a(f'v_cvt_pk_bf16_f32 {v(PK+4*p+d)}, {v(O+8*p+2*d)}, {v(O+8*p+2*d+1)}')
                a(f'buffer_store_dwordx4 {v(PK+4*p,4)}, {v(V_L16)}, {s(SRD_WS,4)}, {s(S_A)} offen offset:{1024*p} sc1')
```

```python
from asmlib import *
from layout4 import *
import k_fin5 as F

SRD_WS = 4
SRD_T = 8
S_W = 3
S_X, S_I, S_G, S_H, S_S = 12, 13, 14, 15, 16
S_T0, S_T1, S_T2, S_T3, S_T4 = 17, 18, 19, 20, 21
S_TO = 22
S_MLD, S_MST, S_MRS, S_QST, S_QRS, S_PLD, S_OK, S_SP, S_TCH, S_RDG, S_RDY, S_C, S_CQG = range(23, 36)
S_MO, S_MSO, S_QO, S_PO, S_X1, S_KG, S_KL = range(36, 43)
S_QLD, S_QLD2, S_PSTC, S_PRS, S_PRG, S_CS, S_CST, S_PSTF = range(23, 31)
S_M0 = 44
S_ID = 52
S_J = 53
S_SP0 = 54
S_KMX = 55
S_RTG = 58
S_MEX = 56
S_PROF = 70
LDS_RED1 = 0
LDS_FLG = 15872
LDS_PUB = 15968
LDS_RED2 = 16384
LDS_SEG = 32768
LDS_BULK = 65536
PSLOT = 18
CHAIN_LDS = 163840
CQ_TAB = WS_CNT + 512
TIMEOUT = 1 << 17

def red_gq(vs, vt, op):
    return [f'v_mov_b32 {v(vt)}, {v(vs)}', 's_nop 1', f'v_permlane16_swap_b32 {v(vt)}, {v(vs)}', f'{op} {v(vs)}, {v(vs)}, {v(vt)}',
            f'v_mov_b32 {v(vt)}, {v(vs)}', 's_nop 1', f'v_permlane32_swap_b32 {v(vt)}, {v(vs)}', f'{op} {v(vs)}, {v(vs)}, {v(vt)}']

def chk(regs, vt, target):
    r = list(regs); o = []
    if len(r) == 1:
        return [f'v_cmp_eq_u32 vcc, -1, {v(r[0])}', f's_cbranch_vccnz {target}']
    if len(r) == 2:
        o.append(f'v_max_u32 {v(vt)}, {v(r[0])}, {v(r[1])}'); r = []
    else:
        o.append(f'v_max3_u32 {v(vt)}, {v(r[0])}, {v(r[1])}, {v(r[2])}'); r = r[3:]
    while len(r) >= 2:
        o.append(f'v_max3_u32 {v(vt)}, {v(vt)}, {v(r[0])}, {v(r[1])}'); r = r[2:]
    if r: o.append(f'v_max_u32 {v(vt)}, {v(vt)}, {v(r[0])}')
    o.append(f'v_cmp_eq_u32 vcc, -1, {v(vt)}')
    o.append(f's_cbranch_vccnz {target}')
    return o

def retry_block(a, label, again, giveup):
    a.label(label)
    a('s_waitcnt vmcnt(0)')
    if a.rsleep: a(f's_sleep {a.rsleep}')
    a(f's_sub_u32 {s(S_TO)}, {s(S_TO)}, 1')
    a(f's_cbranch_scc0 {again}')
    a(f's_mov_b32 {s(S_TO)}, 0')
    a(f's_branch {giveup}')

def spin_block(a, label, loads, regs, vt, ok, giveup):
    a.label(label)
    a(f's_sub_u32 {s(S_TO)}, {s(S_TO)}, 1')
    a(f's_cbranch_scc1 {label}_g')
    for x in loads: a(x)
    a(f's_waitcnt vmcnt({len(loads)-1})')
    for x in chk(regs, vt, label): a(x)
    a(f's_branch {ok}')
    a.label(label + '_g')
    a(f's_mov_b32 {s(S_TO)}, 0')
    a('s_waitcnt vmcnt(0)')
    a(f's_branch {giveup}')

class Prof:
    def __init__(self, on): self.on = on; self.n = 0; self.names = []
    def stamp(self, a, name, lvl=0):
        if self.on and (lvl == 0 or lvl == a.fine or (lvl < 0 and -lvl != a.fine)):
            a(f's_memtime {s(S_PROF + 2*self.n, 2)}'); self.n += 1; self.names.append(name)
    def flush(self, a, vtmp, tag):
        if not self.on: return
        a(f's_memrealtime {s(S_PROF + 2*self.n, 2)}'); self.n += 1; self.names.append('rt')
        a(f's_sub_u32 {s(S_PROF + 2*self.n)}, s100, {s(S_TO)}'); self.n += 1; self.names.append('retries')
        a(f's_mov_b32 s100, {s(S_TO)}')
        assert self.n <= 15
        a('s_waitcnt lgkmcnt(0)')
        a(f's_lshl_b32 {s(S_T0)}, {s(S_ID)}, 3')
        a(f's_add_u32 {s(S_T0)}, {s(S_T0)}, {s(S_W)}')
        a(f's_lshl_b32 {s(S_T0)}, {s(S_T0)}, 6')
        a(f's_add_u32 {s(S_T0)}, {s(S_T0)}, {s(S_S)}')
        a(f's_lshl_b32 {s(S_T0)}, {s(S_T0)}, 6')
        a(f's_add_u32 {s(S_T0)}, {s(S_T0)}, {WS_YP}')
        for i in range(self.n):
            a(f'v_writelane_b32 {v(vtmp)}, {s(S_PROF+2*i)}, {i}')
        a(f's_mov_b64 exec, {(1<<self.n)-1}')
        a(f'v_mbcnt_lo_u32_b32 {v(vtmp+1)}, -1, 0')
        a(f'v_lshlrev_b32 {v(vtmp+1)}, 2, {v(vtmp+1)}')
        a(f'buffer_store_dword {v(vtmp)}, {v(vtmp+1)}, {s(SRD_WS,4)}, {s(S_T0)} offen')
        a('s_mov_b64 exec, -1')
        a.raw(f'; PROF {tag} ' + ' '.join(self.names))
        self.n = 0; self.names = []

def merge_fill(seq, fill, every=2, start=1):
    out = []; fi = 0
    for k, x in enumerate(seq):
        out.append(x)
        if k >= start and (k - start) % every == 0 and fi < len(fill):
            out.append(fill[fi]); fi += 1
    out += fill[fi:]
    return out

def flag_wait(a, tag, vaddr, off, vt, st, sl=1, one=False):
    a.label(tag)
    if one:
        a(f'ds_read_b32 {v(vt)}, {v(vaddr)} offset:{off}')
        a('s_waitcnt lgkmcnt(0)')
    else:
        a(f'ds_read_b128 {v(vt,4)}, {v(vaddr)} offset:{off}')
        a('s_waitcnt lgkmcnt(0)')
        a(f'v_min3_i32 {v(vt)}, {v(vt)}, {v(vt+1)}, {v(vt+2)}')
        a(f'v_min_i32 {v(vt)}, {v(vt)}, {v(vt+3)}')
        a('s_nop 0')
    a(f'v_readfirstlane_b32 {s(st)}, {v(vt)}')
    a(f's_cmp_ge_i32 {s(st)}, {s(S_S)}')
    a(f's_cbranch_scc1 {tag}ok')
    a(f's_sleep {sl}')
    a(f's_branch {tag}')
    a.label(tag + 'ok')

def ring(a, d, add, sh, base):
    if add: a(f's_add_u32 {s(d)}, {s(S_S)}, {add}')
    a(f's_and_b32 {s(d)}, {s(d if add else S_S)}, 3')
    a(f's_lshl_b32 {s(d)}, {s(d)}, {sh}')
    a(f's_add_u32 {s(d)}, {s(d)}, {s(base)}')

def sel_init(a, sel, vl, t1, t2):
    a(f'v_and_b32 {v(t1)}, 15, {v(vl)}')
    a(f'v_and_b32 {v(t2)}, 1, {v(t1)}')
    a(f'v_lshlrev_b32 {v(t2)}, 4, {v(t2)}')
    a(f'v_lshlrev_b32 {v(t2)}, {v(t2)}, 0x3f80' if False else f'v_mov_b32 {v(sel)}, 0x3f80')
    a(f'v_lshlrev_b32 {v(t2)}, {v(t2)}, {v(sel)}')
    a(f'v_lshrrev_b32 {v(t1)}, 1, {v(t1)}')
    for d in range(4):
        a(f'v_cmp_eq_u32 vcc, {d}, {v(t1)}')
        a('s_nop 1')
        a(f'v_cndmask_b32 {v(sel+d)}, 0, {v(t2)}, vcc')

PV_L16, PV_QST, PV_R1W, PV_R1R, PV_MST, PV_SGR, PV_SPS, PV_IDX = 1, 2, 3, 4, 5, 6, 7, 8
PV_PFA, PV_PFD, PV_FLGR = 0, 9, 58
PV_T, PV_NEG, PV_SEL = 9, 10, 12
PV_M, PV_ACC, PV_W = 16, 32, 64
PV_FV, PV_RDY, PV_R1W1, PV_R1W2, PV_FLGW = 59, 60, 61, 62, 63
def pw(b, t): return PV_W + (b * 6 + t) * 8

def mem0_issue(a):
    a(f'''
    s_load_dwordx2 {s(SRD_T,2)}, s[0:1], {KA_MEM0}
    s_mov_b32 {s(SRD_T+2)}, 16384
    v_bfe_u32 v57, v20, 2, 2
    v_and_b32 v58, 1, v20
    v_lshl_add_u32 v57, v57, 1, v58           ; token
    v_lshlrev_b32 v57, 11, v57
    v_lshrrev_b32 v58, 4, v20
    v_lshl_add_u32 v57, v58, 5, v57           ; + 32 g
    v_bfe_u32 v58, v20, 1, 1                  ; p
    v_lshl_add_u32 v57, v58, 4, v57
    v_lshl_add_u32 v59, v58, 3, v57
    v_xor_b32 v60, 8, v59
    s_lshl_b32 {s(S_T3)}, {s(S_W)}, 9
    s_waitcnt lgkmcnt(0)
    ''')
    for b in range(4):
        a(f'buffer_load_dwordx2 {v(32+4*b,2)}, v59, {s(SRD_T,4)}, {s(S_T3)} offen offset:{128*b}')
        a(f'buffer_load_dwordx2 {v(34+4*b,2)}, v60, {s(SRD_T,4)}, {s(S_T3)} offen offset:{128*b}')

def p_prologue(a):
    a(f'''
    v_and_b32 v20, 63, v0
    v_lshlrev_b32 {v(PV_L16)}, 4, v20
    v_mov_b32 {v(PV_NEG)}, -1
    v_mov_b32 {v(PV_NEG+1)}, -1
    v_lshrrev_b32 v21, 2, v20
    v_and_b32 v22, 3, v20
    v_lshlrev_b32 v21, 13, v21
    v_lshl_add_u32 v21, v22, 4, v21
    s_lshl_b32 {s(S_T0)}, {s(S_W)}, 21
    s_lshl_b32 {s(S_T1)}, {s(S_ID)}, 6
    s_add_u32 {s(S_T0)}, {s(S_T0)}, {s(S_T1)}
    s_lshl_b32 {s(S_T2)}, {s(S_W)}, 15
    s_mov_b32 {s(SRD_T+2)}, {8*MB}
    s_mov_b32 {s(SRD_T+3)}, {SRD3}
    v_lshrrev_b32 v24, 5, v20                 ; gB>>1
    v_bfe_u32 v25, v20, 3, 1                  ; r>>1
    v_lshl_add_u32 v24, v24, 1, v25           ; 2(gB>>1) + (r>>1)
    v_bfe_u32 v26, v20, 4, 1                  ; gB&1
    v_xor_b32 v26, v26, v25
    v_lshl_add_u32 v24, v24, 1, v26
    v_bfe_u32 v25, v20, 2, 1                  ; r&1
    v_lshl_add_u32 v24, v24, 2, v25           ; row
    v_lshlrev_b32 v24, 6, v24
    v_lshl_add_u32 v24, v22, 3, v24           ; + cc*8
    v_add_u32 v24, {s(S_T2)}, v24
    ''')
    def src(p):
        a(f's_load_dwordx2 {s(SRD_T,2)}, s[0:1], {KA_WQ + 8*p}')
        a(f's_mov_b32 {s(S_T3)}, {s(S_T0)}')
        a('s_waitcnt lgkmcnt(0)')
    def issue(p, half):
        src(p)
        for n in range(16):
            a(f's_add_u32 m0, {s(S_T2)}, {half*16384 + n*1024}')
            a('s_nop 0')
            a(f'buffer_load_dwordx4 v21, {s(SRD_T,4)}, {s(S_T3)} offen lds')
            a(f's_add_u32 {s(S_T3)}, {s(S_T3)}, {16*8192}')
    def fetch(p, half):
        for b in range(4):
            for T in range(2):
                for t4 in range(4):
                    a(f'ds_read_b64_tr_b16 {v(pw(b, 2*p+T)+2*t4, 2)}, v24 offset:{half*16384 + b*4096 + (32*(t4>>1) + 2*(t4&1))*64 + T*32}')
            a('s_waitcnt lgkmcnt(0)')
    issue(0, 0); issue(1, 1)
    src(2)
    land = [pw(n // 4, 4) + 4 * (n & 3) for n in range(16)]
    for n in range(16):
        a(f'buffer_load_dwordx4 {v(land[n],4)}, v21, {s(SRD_T,4)}, {s(S_T3)} offen')
        a(f's_add_u32 {s(S_T3)}, {s(S_T3)}, {16*8192}')
    mem0_issue(a)
    a('s_barrier')
    a(f'v_add_u32 v56, {s(S_T2)}, {v(PV_L16)}')
    a('s_waitcnt vmcnt(40)'); fetch(0, 0)
    a('s_waitcnt vmcnt(24)'); fetch(1, 1)
    a('s_waitcnt vmcnt(8)')
    for n in range(16):
        a(f'ds_write_b128 v56, {v(land[n],4)} offset:{n*1024}')
    a('s_waitcnt lgkmcnt(0)')
    fetch(2, 0)
    a(f'''
    v_mov_b32 v21, 0x44444444
    v_mov_b32 v22, 0xeeeeeeee
    v_and_b32 v23, 2, v20
    v_cmp_eq_u32 vcc, 0, v23
    s_nop 1
    v_cndmask_b32 {v(PV_IDX)}, v22, v21, vcc
    ''')
    a(f'''
    v_bfe_u32 v21, v20, 2, 3                  ; t
    v_lshrrev_b32 v22, 5, v20                 ; isk
    v_mul_u32_u24 v23, 160, v21
    v_mul_u32_u24 v24, 1280, v22
    v_add_u32 v23, v23, v24
    v_and_b32 v24, 3, v20
    v_lshl_add_u32 v27, v24, 4, v23
    v_lshrrev_b32 v23, 1, v21
    v_and_b32 v21, 1, v21
    v_lshl_add_u32 v21, v23, 2, v21           ; row0
    v_xor_b32 v22, 1, v22
    v_lshl_add_u32 v21, v22, 1, v21           ; row
    v_bfe_u32 v22, v20, 1, 1                  ; gq&1
    v_lshl_add_u32 v21, v22, 4, v21
    v_xor_b32 v22, v20, v22
    v_and_b32 v22, 1, v22                     ; hs
    v_lshlrev_b32 v21, 4, v21
    v_lshl_add_u32 v25, v22, 3, v21
    v_lshrrev_b32 v21, 3, v20                 ; t
    v_mul_u32_u24 v23, 160, v21
    v_and_b32 v24, 7, v20
    v_lshl_add_u32 v28, v24, 4, v23
    v_lshrrev_b32 v23, 1, v21
    v_and_b32 v21, 1, v21
    v_lshl_add_u32 v21, v23, 2, v21
    v_and_b32 v22, 1, v20                     ; p
    v_lshl_add_u32 v21, v22, 1, v21
    v_bfe_u32 v22, v20, 2, 1                  ; gq>>1
    v_lshl_add_u32 v21, v22, 4, v21
    v_bfe_u32 v22, v20, 1, 1                  ; gq&1
    v_lshlrev_b32 v21, 4, v21
    v_lshl_add_u32 v26, v22, 3, v21
    s_lshl_b32 {s(S_T0)}, {s(S_J)}, 10
    s_lshl_b32 {s(S_T1)}, {s(S_W)}, 9
    s_add_u32 {s(S_T0)}, {s(S_T0)}, {s(S_T1)}
    s_lshl_b32 {s(S_T1)}, {s(S_W)}, 6
    s_lshl_b32 {s(S_T2)}, {s(S_J)}, 9
    s_add_u32 {s(S_T2)}, {s(S_T2)}, 4096
    s_cmp_ge_u32 {s(S_W)}, 2
    s_cselect_b32 {s(S_T0)}, {s(S_T2)}, {s(S_T0)}
    s_cselect_b32 {s(S_T1)}, 2560, {s(S_T1)}
    s_cselect_b64 vcc, -1, 0
    v_cndmask_b32 v22, v25, v26, vcc
    v_cndmask_b32 v23, v27, v28, vcc
    v_add_u32 {v(PV_QST)}, {s(S_T0)}, v22
    v_add_u32 {v(PV_R1R)}, {s(S_T1)}, v23
    v_lshrrev_b32 v21, 4, v20                 ; g
    v_and_b32 v22, 15, v20                    ; n
    v_mul_u32_u24 v23, 320, v21
    v_lshl_add_u32 v23, v22, 2, v23
    s_mul_i32 {s(S_T0)}, {s(S_W)}, 3840
    v_add_u32 {v(PV_R1W)}, {s(S_T0)}, v23
    v_add_u32 {v(PV_R1W1)}, 1280, {v(PV_R1W)}
    v_bfe_u32 v24, v20, 3, 1
    v_bfe_u32 v25, v20, 2, 1
    v_xor_b32 v25, v25, v24                   ; hs
    v_bfe_u32 v26, v20, 1, 1                  ; p
    v_lshl_add_u32 v25, v26, 1, v25
    v_lshl_add_u32 v25, v24, 2, v25
    v_and_b32 v26, 1, v20
    v_lshl_add_u32 v25, v25, 1, v26           ; pos(n)
    v_sub_u32 v25, v25, v22
    v_lshl_add_u32 v25, v25, 2, {v(PV_R1W)}
    v_add_u32 {v(PV_R1W2)}, 2560, v25
    v_lshlrev_b32 v23, 4, v22
    v_lshl_add_u32 {v(PV_SGR)}, v21, 12, v23
    s_lshl_b32 {s(S_T0)}, {s(S_W)}, 10
    s_add_u32 {s(S_T0)}, {s(S_T0)}, {LDS_SEG}
    v_add_u32 {v(PV_SGR)}, {s(S_T0)}, {v(PV_SGR)}
    v_lshrrev_b32 v24, 1, v21
    v_lshl_add_u32 v23, v24, 15, v23
    v_and_b32 v24, 1, v21
    v_lshl_add_u32 {v(PV_SPS)}, v24, 8, v23
    v_mov_b32 {v(PV_FLGR)}, {LDS_FLG}
    v_bfe_u32 v23, v20, 1, 2                  ; t>>1
    v_lshlrev_b32 v23, 6, v23
    v_and_b32 v25, 1, v20
    v_lshl_add_u32 v23, v25, 4, v23
    v_lshrrev_b32 v24, 5, v20
    v_lshl_add_u32 {v(PV_MST)}, v24, 5, v23
    v_and_b32 v23, 7, v20
    v_lshlrev_b32 v23, 7, v23
    v_bfe_u32 v24, v20, 3, 1
    v_lshl_add_u32 v23, v24, 17, v23
    v_lshrrev_b32 v24, 4, v20
    v_add_u32 v24, 1, v24
    v_cmp_le_u32 vcc, 3, v24
    s_nop 1
    v_cndmask_b32 v24, v24, 0, vcc
    v_lshl_add_u32 v23, v24, 24, v23
    s_lshl_b32 {s(S_T0)}, {s(S_G)}, 14
    s_lshl_b32 {s(S_T1)}, {s(S_C)}, 10
    s_add_u32 {s(S_T0)}, {s(S_T0)}, {s(S_T1)}
    s_add_u32 {s(S_T0)}, {s(S_T0)}, {WS_QS}
    v_add_u32 {v(PV_PFA)}, {s(S_T0)}, v23
    s_lshl_b32 {s(S_T0)}, {s(S_W)}, 2
    s_add_u32 {s(S_T0)}, {s(S_T0)}, {LDS_FLG}
    v_mov_b32 {v(PV_FLGW)}, {s(S_T0)}
    ''')
    sel_init(a, PV_SEL, 20, 21, 22)
    a('s_waitcnt vmcnt(0)')
    for i in range(16): a(f'v_mov_b32 {v(PV_M+i)}, {v(32+i)}')

def gate_addr(a, d, add, tg):
    a(f's_add_u32 {s(S_T4)}, {s(S_S)}, {add}')
    a(f's_min_u32 {s(S_T4)}, {s(S_T4)}, 63')
    a(f's_cmp_ge_u32 {s(S_T4)}, {a.s1}')
    a(f's_cselect_b32 {s(tg)}, 12, 8')
    a(f's_and_b32 {s(d)}, {s(S_T4)}, 4')
    a(f's_lshr_b32 {s(S_T4)}, {s(S_T4)}, 3')
    a(f's_lshl_b32 {s(S_T4)}, {s(S_T4)}, 8')
    a(f's_add_u32 {s(d)}, {s(d)}, {s(S_T4)}')
    a(f's_add_u32 {s(d)}, {s(d)}, {s(S_CQG)}')

def p_gate(a, k):
    l = a.uid('gate')
    a(f's_bitcmp1_b32 {s(S_OK)}, {k}')
    a(f's_cbranch_scc1 {l}_ok')
    gate_addr(a, S_RDG, 1 + k, S_T2)
    a.label(l)
    a(f'buffer_load_dword {v(PV_T)}, off, {s(SRD_WS,4)}, {s(S_RDG)} sc1')
    a('s_waitcnt vmcnt(0)')
    a(f'v_readfirstlane_b32 {s(S_T4)}, {v(PV_T)}')
    a(f's_cmp_ge_u32 {s(S_T4)}, {s(S_T2)}')
    a(f's_cbranch_scc1 {l}_set')
    a('s_sleep 8')
    a(f's_sub_u32 {s(S_TO)}, {s(S_TO)}, 1')
    a(f's_cbranch_scc0 {l}')
    a(f's_mov_b32 {s(S_TO)}, 0')
    a.label(l + '_set')
    a(f's_bitset1_b32 {s(S_OK)}, {k}')
    a.label(l + '_ok')

def dma_list(a, m, vl16, st, S_KG=S_KG, S_KL=S_KL, hd=0):
    base = (WS_KS, WS_VS, WS_QS)[m] + 4096 * hd
    o = []
    for kt in range(2):
        for u in range(4):
            pre = f's_add_u32 m0, {s(S_KL)}, {8192*m + 4096*kt + 24576*hd}\ns_add_u32 {s(st)}, {s(S_KG)}, {base + 131072*kt}\n' if u == 0 else ''
            o.append(pre + f'buffer_load_dwordx4 {v(vl16)}, {s(SRD_WS,4)}, {s(st)} offen offset:{1024*u} sc1{a.bnt} lds')
    return o

def reg_list(a, m, reg, st):
    base = (WS_KS, WS_VS, WS_QS)[m]
    o = []
    for kt in range(2):
        for u in range(4):
            pre = f's_add_u32 {s(st+kt)}, {s(S_KG)}, {base + 131072*kt}\n' if u == 0 else ''
            o.append(pre + f'buffer_load_dwordx4 {v(reg+(kt*4+u)*4,4)}, {v(AV_L16)}, {s(SRD_WS,4)}, {s(st+kt)} offen offset:{1024*u} sc1{a.bnt}')
    return o

def p_segreduce(a, part=3):
    if part & 1: p_segcalc(a)
    if part & 2: p_segstore(a)

def p_segcalc(a):
    S1 = 48
    for ul in range(2):
        for rt in range(2):
            a(f'ds_read_b128 {v(PV_M+4*(2*ul+rt),4)}, {v(PV_SGR)} offset:{512*ul+256*rt}')
    a(f'v_xor_b32 {v(PV_SGR)}, 0x4000, {v(PV_SGR)}')
    for ul in range(2):
        D = 40 + 4 * ul
        a(f's_waitcnt lgkmcnt({2-2*ul})')
        a(f'v_mfma_f32_16x16x32_bf16 {v(D,4)}, {v(PV_SEL,4)}, {v(PV_M+8*ul,4)}, 0')
        a(f'v_mfma_f32_16x16x32_bf16 {v(D,4)}, {v(S1,4)}, {v(PV_M+8*ul+4,4)}, {v(D,4)}')
    a('s_nop 7')
    a('v_cvt_pk_bf16_f32 v40, v40, v41')
    a('v_cvt_pk_bf16_f32 v41, v42, v43')
    a('v_cvt_pk_bf16_f32 v42, v44, v45')
    a('v_cvt_pk_bf16_f32 v43, v46, v47')
    a('s_nop 1')
    a('v_permlane16_swap_b32 v40, v42')
    a('v_permlane16_swap_b32 v41, v43')
    a('s_nop 1')
    a('v_min_u32 v40, -2, v40')

def p_segstore(a):
    a(f'buffer_store_dwordx4 v[40:43], {v(PV_SPS)}, {s(SRD_WS,4)}, {s(S_SP)} offen sc1{a.spnt}')
    a(f's_add_u32 {s(S_SP)}, {s(S_SP)}, 65536')

def p_loop(a, loc, prof, done):
    LH = a.uid('ploopH')
    for i in range(24): a(f'v_mov_b32 {v(PV_ACC+i)}, 0')
    a(f'v_mov_b32 {v(PV_FV)}, 0')
    a('s_nop 1')
    if a.s1:
        LL = a.uid('ploopL')
        a(f's_branch {LL}_nc')
        p_body(a, loc, Prof(prof), done, LL, True, LH, True)
    else: a(f's_branch {LH}_nc')
    p_body(a, loc, Prof(prof), done, LH, False, None, not a.s1)

def p_body(a, loc, pf, done, L, light, nxt, entry):
    Lrm = L + '_rm'; Lrp = L + '_rp'
    mld = [f'buffer_load_dwordx4 {v(PV_M+4*j,4)}, {v(PV_L16)}, {s(SRD_WS,4)}, {s(S_MLD)} offen offset:{1024*j} sc1' for j in range(4)]
    mreg = lambda b: [PV_M + 4 * b]
    def mm(check):
        if check:
            a('s_waitcnt vmcnt(3)')
            for x in chk(mreg(0), PV_T, f'{Lrm}_0'): a(x)
            a.label(f'{Lrm}_0ok')
            pf.stamp(a, 'b0ok')
        for b in range(4):
            ms = [f'v_smfmac_f32_16x16x64_bf16 {v(PV_ACC+4*t,4)}, {v(PV_M+4*b,4)}, {v(pw(b,t),8)}, {v(PV_IDX)}' for t in range(6)]
            if check and b < 3:
                c = chk(mreg(b + 1), PV_T, f'{Lrm}_{b+1}')
                ms = ms[:a.mck] + [f's_waitcnt vmcnt({2-b})'] + c[:-1] + ms[a.mck:] + c[-1:]
            if b == 3:
                ms = ms[:1] + [f'ds_write_b32 {v(PV_FLGW)}, {v(PV_FV)} offset:32'] + ms[1:]
            for x in ms: a(x)
            if check and b < 3: a.label(f'{Lrm}_{b+1}ok')
    if a.al: a.raw(f'.p2align {a.al}')
    for i in range(a.alo): a('s_nop 0')
    a.label(L)
    pf.stamp(a, 'top')
    for i in range(24): a(f'v_mov_b32 {v(PV_ACC+i)}, 0')
    if a.md: a(f's_sleep {a.md}')
    for x in mld: a(x)
    mm(True)
    if entry:
        a(f's_branch {L}_mmd')
        a.label(L + '_nc')
        if pf.on:
            a(f's_memtime {s(S_PROF, 2)}'); a(f's_memtime {s(S_PROF+2, 2)}')
        mm(False)
        a.label(L + '_mmd')
    pf.stamp(a, 'mmdone')
    a(f's_cmp_eq_u32 {s(S_W)}, 3')
    a('s_nop 1')
    for t in range(6):
        A = PV_ACC + 4 * t
        a(f'v_add_f32 {v(A)}, {v(A)}, {v(A+2)}'); a(f'v_add_f32 {v(A+1)}, {v(A+1)}, {v(A+3)}')
        a(f'ds_write2_b32 {v((PV_R1W, PV_R1W1, PV_R1W2)[t>>1])}, {v(A)}, {v(A+1)} offset0:{16*(t&1)} offset1:{16*(t&1)+40}')
    a('s_waitcnt lgkmcnt(0)')
    pf.stamp(a, 'b1rdy', -2)
    a('s_barrier')
    pf.stamp(a, 'b1')
    a(f's_cbranch_scc1 {L}_sk1')
    R = 32
    for h in range(4):
        a(f'ds_read_b128 {v(R+4*h,4)}, {v(PV_R1R)} offset:{LDS_RED1+3840*h}')
    a('s_waitcnt lgkmcnt(2)')
    def add4(d, x):
        for e in range(4): a(f'v_add_f32 {v(d+e)}, {v(d+e)}, {v(x+e)}')
    add4(R, R + 4)
    a('s_waitcnt lgkmcnt(0)')
    add4(R + 8, R + 12)
    add4(R, R + 8)
    a(f'v_cvt_pk_bf16_f32 v56, {v(R)}, {v(R+1)}')
    a(f'v_cvt_pk_bf16_f32 v57, {v(R+2)}, {v(R+3)}')
    a('v_min_u32 v56, -2, v56')
    a(f'buffer_store_dwordx2 v[56:57], {v(PV_QST)}, {s(SRD_WS,4)}, {s(S_QST)} offen{loc}')
    ring(a, S_QRS, 2, 18, S_QO)
    a(f'buffer_store_dwordx2 {v(PV_NEG,2)}, {v(PV_QST)}, {s(SRD_WS,4)}, {s(S_QRS)} offen{loc}')
    a.label(L + '_sk1')
    pf.stamp(a, 'qpub', -2)
    a('s_setprio 0')
    ring(a, S_MRS, 3, a.msh, S_MSO)
    mex = f's_mov_b64 exec, {s(S_MEX,2)}'
    for d in range(4): a(f'v_mov_b32 {v(44+d)}, -1')
    a(mex)
    a(f'buffer_store_dwordx4 v[44:47], {v(PV_MST)}, {s(SRD_WS,4)}, {s(S_MRS)} offen{loc}')
    a('s_mov_b64 exec, -1')
    for d in range(4): a(f'v_mov_b32_dpp {v(48+d)}, {v(PV_SEL+d)} row_ror:8 row_mask:0xf bank_mask:0xf')
    ring(a, S_PLD, 0, PSLOT, S_PO)
    ring(a, S_MST, 1, a.msh, S_MSO)
    ring(a, S_MLD, 1, a.msh, S_MO)
    ring(a, S_QST, 1, 18, S_QO)
    def seg(part):
        if 's' in a.abl: return
        Lh = a.uid('pnoseg')
        a(f's_cmp_eq_u32 {s(S_SP)}, {s(S_SP0)}')
        a(f's_cbranch_scc1 {Lh}')
        p_segreduce(a, part)
        a.label(Lh)
    if light:
        a(f"""
        v_mov_b32 v40, {v(PV_QST)}
        v_mov_b32 v42, v56
        v_mov_b32 v43, v57
        s_cmp_lg_u32 {s(S_W)}, 2
        s_cbranch_scc1 {L}_nx
        v_and_b32 v40, 0x60, {v(PV_L16)}
        v_lshlrev_b32 v40, 2, v40
        v_lshrrev_b32 v41, 3, {v(PV_L16)}
        v_and_b32 v41, 0x70, v41
        v_or_b32 v40, v40, v41
        v_bfe_u32 v41, {v(PV_L16)}, 4, 1
        v_lshl_or_b32 v40, v41, 3, v40
        s_lshl_b32 {s(S_T0)}, {s(S_J)}, 9
        s_add_u32 {s(S_T0)}, {s(S_T0)}, 4096
        v_add_u32 v40, {s(S_T0)}, v40
        s_mov_b32 vcc_lo, 0x55555555
        s_mov_b32 vcc_hi, 0x55555555
        v_cndmask_b32_dpp v42, v57, v56, vcc quad_perm:[1,0,3,2] row_mask:0xf bank_mask:0xf
        s_not_b64 vcc, vcc
        v_cndmask_b32_dpp v43, v56, v57, vcc quad_perm:[1,0,3,2] row_mask:0xf bank_mask:0xf
        """)
        a.label(L + '_nx')
    else:
        a(f's_cmp_eq_u32 {s(S_S)}, {a.last}')
        a(f's_cbranch_scc1 {L}_tail')
        seg(1)
    p_gate(a, 1 if light else 0)
    a(f'v_readfirstlane_b32 {s(S_T4)}, {v(PV_RDY)}')
    a(f's_lshr_b32 {s(S_OK)}, {s(S_OK)}, 1')
    a(f's_cmp_ge_u32 {s(S_T4)}, {s(S_RTG)}')
    a(f's_cselect_b32 {s(S_T4)}, 2, 0')
    a(f's_or_b32 {s(S_OK)}, {s(S_OK)}, {s(S_T4)}')
    a(f's_cmp_eq_u32 {s(S_W)}, 3')
    a(f's_cselect_b32 {s(S_T3)}, {s(S_T4)}, 0')
    gate_addr(a, S_RDY, 4, S_RTG)
    dl = []
    for m, ch in ((0, 'k'), (1, 'v'))[:1 if light else 2]:
        if ch not in a.abl and not (light and a.lr & 2): dl += dma_list(a, m, PV_L16, S_T0)
    nd1 = a.ndl if light else a.nd1
    a(f's_setprio {a.fprio}')
    flag_wait(a, L + '_fs', PV_FLGR, 0, 32, S_T1, sl=a.fsl)
    pf.stamp(a, 'flag')
    a(f's_setprio {a.dprio}')
    for x in dl[:nd1]: a(x)
    if 't' not in a.abl:
        a(f's_cmp_eq_u32 {s(S_T3)}, 0')
        a(f's_cbranch_scc1 {L}_nt')
        if light:
            a(f's_cmp_ge_u32 {s(S_S)}, {max(a.s1 - 3, 0)}')
            a('s_cselect_b32 exec_hi, 0xffff, 0')
        else: a('s_mov_b32 exec_hi, 0xffff')
        a(f'buffer_load_dword {v(PV_RDY)}, {v(PV_PFA)}, {s(SRD_WS,4)}, {s(S_TCH)} offen sc1')
        a('s_mov_b32 exec_hi, -1')
        a.label(L + '_nt')
    if light:
        a(f's_cmp_eq_u32 {s(S_W)}, 3')
        a(f's_cbranch_scc1 {L}_nx2')
        if 'x' not in a.abl: a(f'buffer_store_dwordx2 v[42:43], v40, {s(SRD_WS,4)}, {s(S_KMX)} offen sc1')
        a.label(L + '_nx2')
        a(f's_add_u32 {s(S_KMX)}, {s(S_KMX)}, 262144')
    else: seg(2)
    pf.stamp(a, 'b2rdy')
    a('s_barrier')
    pf.stamp(a, 'b2')
    a(f'buffer_load_dword {v(PV_RDY)}, off, {s(SRD_WS,4)}, {s(S_RDY)} sc1')
    if dl[nd1:]:
        if a.d2: a(f's_sleep {a.d2}')
        for x in dl[nd1:]: a(x)
    a(f's_add_u32 {s(S_S)}, {s(S_S)}, 1')
    a(f'v_mov_b32 {v(PV_FV)}, {s(S_S)}')
    a(f's_add_u32 {s(S_KG)}, {s(S_KG)}, 262144')
    a(f's_add_u32 {s(S_TCH)}, {s(S_TCH)}, 262144')
    if not light: a(f's_mov_b32 {s(S_SP0)}, 0')
    a('s_setprio 3')
    cd = a.cdl if light else a.cd
    if cd: a(f's_sleep {cd}')
    pf.stamp(a, 'poll')
    a.label(L + '_pagain')
    for i in range(2): a(f'buffer_load_dwordx4 {v(PV_M+4*i,4)}, {v(PV_L16)}, {s(SRD_WS,4)}, {s(S_PLD)} offen offset:{1024*i} sc1')
    D = 32
    a('s_waitcnt vmcnt(1)')
    a(f'v_mfma_f32_16x16x32_bf16 {v(D,4)}, {v(PV_SEL,4)}, {v(PV_M,4)}, 0')
    a('s_waitcnt vmcnt(0)')
    pf.stamp(a, 'p1')
    a(f'v_mfma_f32_16x16x32_bf16 {v(D,4)}, v[48:51], {v(PV_M+4,4)}, {v(D,4)}')
    for x in chk([PV_M, PV_M + 4], PV_T, Lrp): a(x)
    a.label(L + '_pgo')
    if light: a(f's_cmp_lt_u32 {s(S_S)}, {a.s1}')
    a(f's_nop {3 if light else 4}')
    for e in range(4): a(f'v_add_f32_dpp {v(D+4+e)}, {v(D+e)}, {v(D+e)} row_ror:8 row_mask:0xf bank_mask:0xf')
    a(f'v_cvt_pk_bf16_f32 v52, {v(D+4)}, {v(D+5)}')
    a(f'v_cvt_pk_bf16_f32 v53, {v(D+6)}, {v(D+7)}')
    a('s_nop 0')
    a('v_permlane16_swap_b32 v52, v54')
    a('v_permlane16_swap_b32 v53, v55')
    a(mex)
    a('v_min_u32 v52, -2, v52')
    a(f'buffer_store_dwordx4 v[52:55], {v(PV_MST)}, {s(SRD_WS,4)}, {s(S_MST)} offen{loc}')
    a('s_mov_b64 exec, -1')
    a(f'ds_write_b32 {v(PV_FLGW)}, {v(PV_FV)} offset:16')
    pf.stamp(a, 'mpub')
    if pf.on:
        a(f's_sub_u32 {s(S_S)}, {s(S_S)}, 1')
        pf.flush(a, 56, 'P')
        a(f's_add_u32 {s(S_S)}, {s(S_S)}, 1')
        if light: a(f's_cmp_lt_u32 {s(S_S)}, {a.s1}')
    if light:
        a(f's_cbranch_scc1 {L}')
        a(f's_branch {nxt}')
    else: a(f's_branch {L}')
    for b in range(4):
        spin_block(a, f'{Lrm}_{b}', mld[b:], mreg(b), PV_T, f'{Lrm}_{b}ok', f'{Lrm}_{b}ok')
    a.label(Lrp)
    if a.rsleep: a(f's_sleep {a.rsleep}')
    a(f's_sub_u32 {s(S_TO)}, {s(S_TO)}, 1')
    a(f's_cbranch_scc0 {L}_pagain')
    a(f's_mov_b32 {s(S_TO)}, 0')
    a(f's_branch {L}_pgo')
    if not light:
        a.label(L + '_tail')
        p_segreduce(a)
        a('s_barrier')
        p_segreduce(a)
        a(f's_branch {done}')

AV_L16, AV_PST, AV_MX, AV_T = 0, 1, 2, 3
AV_ONE = 4
AV_HALF = 8
AV_IDX = 166
AV_FLGR = 167
S_QM = 56
AV_S = 12
AV_O = 24
AV_VWM = 40
AV_Y, AV_X = 48, 64
AV_VWS = 80
AV_KS, AV_TB = 96, 128
AV_NEG, AV_R2W, AV_R2R, AV_SGW, AV_LB, AV_FLGW, AV_FV = 176, 160, 161, 162, 163, 164, 165
AV_PK = 168
AV_SEL = 184
AV_FT = 188
AV_WO = 192
def wo(u, ct): return AV_WO + (ct * 4 + u) * 4
def xk(u): return AV_Y + 4 * u

def tr_addr(a, vd, vl, rowbytes, T, hh, t1, t2):
    sh = rowbytes.bit_length() - 1
    a(f'''
    v_lshrrev_b32 {v(t1)}, 4, {v(vl)}
    v_and_b32 {v(t2)}, 1, {v(t1)}
    v_xor_b32 {v(t2)}, {hh}, {v(t2)}
    v_lshlrev_b32 {v(t2)}, 2, {v(t2)}
    v_lshl_add_u32 {v(t2)}, {v(t1)}, 3, {v(t2)}
    v_bfe_u32 {v(t1)}, {v(vl)}, 2, 2
    v_add_u32 {v(t2)}, {v(t2)}, {v(t1)}
    v_lshlrev_b32 {v(t2)}, {sh}, {v(t2)}
    v_and_b32 {v(t1)}, 3, {v(vl)}
    v_lshl_add_u32 {v(t2)}, {v(t1)}, 4, {v(t2)}
    v_and_b32 {v(t1)}, 1, {v(t1)}
    v_xor_b32 {v(t1)}, {T}, {v(t1)}
    v_lshl_add_u32 {v(vd)}, {v(t1)}, 3, {v(t2)}
    ''')

def vw_list():
    m = []
    for u in range(4):
        for kt in range(2):
            for ct in range(4):
                d = AV_Y + (kt * 4 + ct) * 4
                m.append(f'v_mfma_f32_16x16x32_bf16 {v(d,4)}, {v(AV_TB+(kt*4+u)*4,4)}, {v(wo(u,ct),4)}, {"0" if u==0 else v(d,4)}')
    return m
def vw_pack():
    o = []
    for ct in range(4):
        for kt in range(2):
            d = AV_Y + (kt * 4 + ct) * 4
            o.append(f'v_cvt_pk_bf16_f32 {v(AV_VWS+4*ct+2*kt)}, {v(d)}, {v(d+1)}')
            o.append(f'v_cvt_pk_bf16_f32 {v(AV_VWS+4*ct+2*kt+1)}, {v(d+2)}, {v(d+3)}')
    return o

def a_prologue(a):
    a(f'''
    v_and_b32 v20, 63, v0
    v_lshlrev_b32 {v(AV_L16)}, 4, v20
    s_lshl_b32 {s(S_T0)}, {s(S_H)}, 18
    s_lshl_b32 {s(S_T1)}, {s(S_C)}, 7
    s_add_u32 {s(S_T0)}, {s(S_T0)}, {s(S_T1)}
    s_lshl_b32 {s(S_T2)}, {s(S_T4)}, 13
    s_add_u32 {s(S_T2)}, {s(S_T2)}, 131072
    s_load_dwordx2 {s(SRD_T,2)}, s[0:1], {KA_WO}
    s_mov_b32 {s(SRD_T+2)}, {8*MB}
    s_mov_b32 {s(SRD_T+3)}, {SRD3}
    v_lshrrev_b32 v21, 3, v20
    v_and_b32 v22, 7, v20
    v_lshlrev_b32 v21, 11, v21
    v_lshl_add_u32 v21, v22, 4, v21
    ''')
    for T in range(2):
        for hh in range(2):
            tr_addr(a, 24 + T * 2 + hh, 20, 128, T, hh, 28, 29)
            a(f'v_add_u32 {v(24+T*2+hh)}, {s(S_T2)}, {v(24+T*2+hh)}')
    a('s_waitcnt lgkmcnt(0)')
    for n in range(8):
        a(f's_add_u32 m0, {s(S_T2)}, {n*1024}')
        a('s_nop 0')
        a(f'buffer_load_dwordx4 v21, {s(SRD_T,4)}, {s(S_T0)} offen lds')
        a(f's_add_u32 {s(S_T0)}, {s(S_T0)}, {8*2048}')
    for n in range(8):
        a(f'buffer_load_dwordx4 {v(AV_KS+4*n,4)}, v21, {s(SRD_T,4)}, {s(S_T0)} offen')
        a(f's_add_u32 {s(S_T0)}, {s(S_T0)}, {8*2048}')

def a_prologue2(a):
    a(f's_lshl_b32 {s(S_T2)}, {s(S_T4)}, 13')
    a(f's_add_u32 {s(S_T2)}, {s(S_T2)}, 131072')
    a(f'v_add_u32 v30, {s(S_T2)}, {v(AV_L16)}')
    for half in range(2):
        a(f's_waitcnt vmcnt({8 - 8*half})')
        if half:
            for n in range(8): a(f'ds_write_b128 v30, {v(AV_KS+4*n,4)} offset:{n*1024}')
            a('s_waitcnt lgkmcnt(0)')
        for uu in range(2):
            for p in range(2):
                for T in range(2):
                    for hh in range(2):
                        a(f'ds_read_b64_tr_b16 {v(wo(2*half+uu, 2*p+T)+2*hh,2)}, {v(24+T*2+hh)} offset:{uu*4096+p*64}')
            a('s_waitcnt lgkmcnt(0)')
    a(f'''
    v_lshrrev_b32 v21, 4, v20
    v_and_b32 v22, 2, v20
    v_cmp_eq_u32 {s(S_QM,2)}, 2, v22
    v_and_b32 v23, 15, v20
    v_lshlrev_b32 v21, 2, v21
    v_mov_b32 v8, 0x44444444
    v_mov_b32 v9, 0xeeeeeeee
    v_cndmask_b32 {v(AV_IDX)}, v8, v9, {s(S_QM,2)}
    v_mov_b32 v8, 0x3f803f80
    v_mov_b32 v9, 0
    v_mov_b32 v10, 0
    v_mov_b32 v11, 0
    v_mov_b32 v4, 0x3f803f80
    v_mov_b32 v5, 0x3f803f80
    v_mov_b32 v6, 0x3f803f80
    v_mov_b32 v7, 0x3f803f80
    s_mov_b32 {s(S_CST)}, 0x3e0293ee
    s_lshl_b32 {s(S_PRG)}, {s(S_I)}, 2
    s_add_u32 {s(S_PRG)}, {s(S_PRG)}, {s(S_T4)}
    s_lshl_b32 {s(S_CS)}, {s(S_X)}, 7
    s_add_u32 {s(S_CS)}, {s(S_CS)}, {F.CS_TAB}
    v_add_u32 {v(AV_LB)}, {s(S_KL)}, {v(AV_L16)}
    s_lshl_b32 {s(S_T0)}, {s(S_T4)}, 2
    s_add_u32 {s(S_T0)}, {s(S_T0)}, {LDS_FLG}
    v_mov_b32 {v(AV_FLGW)}, {s(S_T0)}
    v_mov_b32 {v(AV_FLGR)}, {LDS_FLG}
    ''')
    sel_init(a, AV_SEL, 20, 24, 25)
    for i in range(4):
        a(f'v_add_u32 v24, {i}, v21')
        a(f'v_cmp_gt_u32 {s(S_M0+2*i,2)}, v24, v23')

def a_static(a):
    a(f"""
    v_and_b32 v20, 63, v0
    v_lshrrev_b32 v21, 4, v20                 ; g
    v_bfe_u32 v22, v20, 1, 1
    v_xor_b32 v22, 1, v22                     ; p = !(n&2)
    v_lshl_add_u32 v23, v22, 2, v21           ; uu
    v_bfe_u32 v22, v20, 2, 2
    v_and_b32 v24, 1, v20
    v_lshl_add_u32 v22, v22, 1, v24           ; t
    v_lshl_add_u32 v23, v23, 3, v22
    v_and_b32 v22, 7, v20
    v_lshlrev_b32 v23, 4, v23
    s_lshl_b32 {s(S_T0)}, {s(S_T4)}, 10
    s_add_u32 {s(S_T0)}, {s(S_T0)}, {LDS_RED2}
    v_add_u32 {v(AV_R2W)}, {s(S_T0)}, v23
    v_and_b32 v24, 15, v20
    v_lshlrev_b32 v24, 4, v24                 ; n*16
    v_lshl_add_u32 v23, v21, 10, v24
    s_lshl_b32 {s(S_T0)}, {s(S_T4)}, 8
    s_add_u32 {s(S_T0)}, {s(S_T0)}, {LDS_RED2}
    v_add_u32 {v(AV_R2R)}, {s(S_T0)}, v23
    v_lshl_add_u32 v23, v21, 9, v24
    s_lshl_b32 {s(S_T0)}, {s(S_T4)}, 12
    s_add_u32 {s(S_T0)}, {s(S_T0)}, {LDS_SEG}
    v_add_u32 {v(AV_SGW)}, {s(S_T0)}, v23
    v_bfe_u32 v23, v20, 3, 1
    v_lshlrev_b32 v23, 10, v23
    v_lshl_add_u32 v23, v22, 4, v23
    v_mov_b32 {v(AV_PST)}, v23
    s_lshl_b32 {s(S_PO)}, {s(S_C)}, 14
    s_lshl_b32 {s(S_T0)}, {s(S_T4)}, 11
    s_add_u32 {s(S_PO)}, {s(S_PO)}, {s(S_T0)}
    s_lshl_b32 {s(S_T0)}, {s(S_G)}, 7
    s_add_u32 {s(S_PO)}, {s(S_PO)}, {s(S_T0)}
    s_add_u32 {s(S_PO)}, {s(S_PO)}, {WS_PART}
    """)
    for i in range(4): a(f'v_mov_b32 {v(AV_NEG+i)}, -1')

def exp_seq(r):
    seq = []
    n = len(r)
    seq.append(f'v_max3_f32 {v(AV_MX)}, {v(r[0])}, {v(r[1])}, {v(r[2])}')
    seq.append(f'v_max3_f32 {v(AV_T)}, {v(r[3])}, {v(r[4])}, {v(r[5])}')
    rr = r[6:]; k = 0
    while len(rr) >= 2:
        d = (AV_MX, AV_T)[k & 1]; k += 1
        seq.append(f'v_max3_f32 {v(d)}, {v(d)}, {v(rr[0])}, {v(rr[1])}'); rr = rr[2:]
    seq.append(f'v_max_f32 {v(AV_MX)}, {v(AV_MX)}, {v(AV_T)}')
    seq += red_gq(AV_MX, AV_T, 'v_max_f32')
    seq.append(f'v_mul_f32 {v(AV_MX)}, {s(S_CST)}, {v(AV_MX)}')
    fm = [f'v_fma_f32 {v(x)}, {v(x)}, {s(S_CST)}, -{v(AV_MX)}' for x in r]
    ex = [f'v_exp_f32 {v(x)}, {v(x)}' for x in r]
    seq += fm[:2]
    for i in range(n):
        if i + 2 < n: seq.append(fm[i + 2])
        seq.append(ex[i])
    return seq

def packP(S, t1zero=False):
    T0, T1, TM = S, S + 4, S + 8
    o = [f'v_cvt_pk_bf16_f32 {v(T0)}, {v(T0)}, {v(T0+1)}', f'v_cvt_pk_bf16_f32 {v(T0+1)}, {v(T0+2)}, {v(T0+3)}']
    if t1zero: o += [f'v_mov_b32 {v(T0+2)}, 0', f'v_mov_b32 {v(T0+3)}, 0']
    else: o += [f'v_cvt_pk_bf16_f32 {v(T0+2)}, {v(T1)}, {v(T1+1)}', f'v_cvt_pk_bf16_f32 {v(T0+3)}, {v(T1+2)}, {v(T1+3)}']
    o += [f'v_cvt_pk_bf16_f32 {v(TM)}, {v(TM)}, {v(TM+1)}', f'v_mov_b32 {v(TM+2)}, 0',
          f'v_mov_b32 {v(TM+1)}, {v(TM)}', f'v_mov_b32 {v(TM+3)}, 0']
    return o

def pv_seq(S, qt, rc):
    SM = S + 4
    o = [f'v_mfma_f32_16x16x32_bf16 {v(SM,4)}, {v(AV_ONE,4)}, {v(S,4)}, 0',
         f'v_mfma_f32_16x16x32_bf16 {v(SM,4)}, {v(AV_HALF,4)}, {v(S+8,4)}, {v(SM,4)}']
    for ct in range(4):
        o.append(f'v_mfma_f32_16x16x32_bf16 {v(AV_O+4*ct,4)}, {v(AV_VWS+4*ct,4)}, {v(S,4)}, 0')
        o.append(f'v_mfma_f32_16x16x32_bf16 {v(AV_O+4*ct,4)}, {v(AV_VWM+2*ct,4)}, {v(S+8,4)}, {v(AV_O+4*ct,4)}')
    o.append(f'v_rcp_f32 {v(rc)}, {v(SM)}')
    o.append('s_nop 0')
    P = AV_PK
    for ct in range(4):
        for i in range(4): o.append(f'v_mul_f32 {v(AV_O+4*ct+i)}, {v(AV_O+4*ct+i)}, {v(rc)}')
        o.append(f'v_cvt_pk_bf16_f32 {v(P+2*ct)}, {v(AV_O+4*ct)}, {v(AV_O+4*ct+1)}')
        o.append(f'v_cvt_pk_bf16_f32 {v(P+2*ct+1)}, {v(AV_O+4*ct+2)}, {v(AV_O+4*ct+3)}')
    for p in range(2): o.append(f'ds_write_b128 {v(AV_SGW)}, {v(P+4*p,4)} offset:{2048*p+256*qt}')
    return o

def a_loop(a, prof, done):
    LH = a.uid('aloopH')
    if a.s1: a_body(a, Prof(prof), done, a.uid('aloopL'), True, LH)
    a_body(a, Prof(prof), done, LH, False, None)

def a_body(a, pf, done, L, light, nxt):
    Lr = L + '_rq'
    SA = AV_S; SB = AV_X + 4
    if a.al: a.raw(f'.p2align {a.al}')
    for i in range(a.aloa): a('s_nop 0')
    a.label(L)
    pf.stamp(a, 'top')
    ring(a, S_QLD, 0, 18, S_QO)
    a(f's_add_u32 {s(S_QLD2)}, {s(S_QLD)}, 4096')
    ring(a, S_PSTC, 0, PSLOT, S_PO)
    ring(a, S_PRS, 2, PSLOT, S_PO)
    a(f'v_mov_b32 {v(AV_FV)}, {s(S_S)}')
    vw = vw_list()
    kr = [f'ds_read_b128 {v(AV_KS+4*i,4)}, {v(AV_LB)} offset:{1024*i}' for i in range(8)]
    vr = [f'ds_read_b128 {v(AV_TB+4*(kt*4+u),4)}, {v(AV_LB)} offset:{8192+1024*(kt*4+u)}' for u in range(4) for kt in range(2)]
    zo = [f'v_mov_b32 {v(AV_O+i)}, 0' for i in range(16)]
    if light:
        if not a.lr & 1:
            for x in vr: a(x)
            for u in range(4): vw[8*u] = f's_waitcnt lgkmcnt({6 - 2*u})\n' + vw[8*u]
        for x in vw: a(x)
        for x in zo: a(x)
        for x in vw_pack(): a(x)
        if not a.lr & 2:
            flag_wait(a, L + '_wkv', AV_FLGW, 16, AV_FT, S_T2, sl=a.kvsl, one=True)
            for x in kr: a(x)
        pf.stamp(a, 'kv', -3)
    else:
        flag_wait(a, L + '_wkv', AV_FLGW, 16, AV_FT, S_T2, sl=a.kvsl, one=True)
        pf.stamp(a, 'kv', -3)
        for x in vr + kr: a(x)
        for u in range(4): vw[8*u] = f's_waitcnt lgkmcnt({14 - 2*u})\n' + vw[8*u]
        for x in vw[:a.vwp]: a(x)
    a('s_setprio 2')
    flag_wait(a, L + '_wm', AV_FLGW, 32, AV_FT, S_T2, sl=a.kvsl, one=True)
    pf.stamp(a, 'fm', -3)
    if light: a(f's_add_u32 {s(S_KG)}, {s(S_KG)}, 262144')
    if ('v' if light else 'q') not in a.abl:
        for x in (reg_list(a, 1, AV_TB, S_T0) if light and a.lr & 1 else dma_list(a, 1 if light else 2, AV_L16, S_T0)): a(x)
    if not light: a(f's_add_u32 {s(S_KG)}, {s(S_KG)}, 262144')
    pf.stamp(a, 'b1rdy', -3)
    a('s_barrier')
    pf.stamp(a, 'b1')
    qr = [f'ds_read_b128 {v(AV_TB+4*i,4)}, {v(AV_LB)} offset:{16384+1024*i}' for i in range(8)]
    if not light:
        for x in vw[a.vwp:]: a(x)
        a('s_nop 2')
        for x in vw_pack(): a(x)
        for x in zo: a(x)
    qd = a.qdl if light else a.qd
    if qd: a(f's_sleep {qd}')
    a('s_waitcnt lgkmcnt(0)')
    pf.stamp(a, 'poll')
    qm = [f'buffer_load_dwordx4 {v(AV_Y+4*u,4)}, {v(AV_L16)}, {s(SRD_WS,4)}, {s(S_QLD)} offen offset:{1024*u} sc1' for u in range(4)]
    qm += [f'buffer_load_dwordx4 {v(AV_X+4*u2,4)}, {v(AV_L16)}, {s(SRD_WS,4)}, {s(S_QLD2)} offen offset:{1024*u2} sc1' for u2 in range(2)]
    qreg = [[AV_Y + 4 * u + i for i in (0, 2)] for u in range(4)]
    vreg = [AV_X + i for i in range(0, 8, 2)]
    for x in qm[:4]: a(x)
    if a.vdel: a(f's_sleep {a.vdel}' if a.vdel > 0 else f's_nop {-a.vdel}')
    for x in qm[4:]: a(x)
    def crit_s(check, first=False):
        for u in range(4):
            if check: a(f's_waitcnt vmcnt({5-u})')
            if first and u == 0: pf.stamp(a, 'z0')
            z = v(AV_Y + 4 * u, 4)
            for kt in range(2):
                d = SA + 4 * kt
                a(f'v_mfma_f32_16x16x32_bf16 {v(d,4)}, {v(AV_KS+(kt*4+u)*4,4)}, {z}, {"0" if u==0 else v(d,4)}')
            if check:
                c = chk(qreg[u], AV_T, f'{Lr}_{u}')
                for x in c[:-1]: a(x)
            a(f'v_mfma_f32_16x16x32_bf16 {v(SA+8,4)}, {z}, {z}, {"0" if u==0 else v(SA+8,4)}')
            if check: a(c[-1])
    crit_s(True, True)
    a.label(L + '_sdone')
    pf.stamp(a, 'sdone')
    if light: a('s_nop 1')
    else:
        a(f's_cmp_eq_u32 {s(S_S)}, {a.last}')
        a(f's_cbranch_scc1 {L}_lsk')
    vwm = [f'v_smfmac_f32_16x16x64_bf16 {v(AV_O+4*ct,4)}, {v(AV_X+4*c2,4)}, {v(wo(2*c2,ct),8)}, {v(AV_IDX)}' for c2 in range(2) for ct in (0, 2, 1, 3)]
    vc = chk(vreg, AV_FT, f'{Lr}_v')
    M, T = v(AV_MX), v(AV_T)
    a(f"""
    ds_write_b32 {v(AV_FLGW)}, {v(AV_FV)}
    s_nop 0
    v_max3_f32 {M}, {v(SA)}, {v(SA+1)}, {v(SA+2)}
    v_max3_f32 {T}, {v(SA+3)}, {v(SA+4)}, {v(SA+5)}
    v_max3_f32 {M}, {M}, {v(SA+6)}, {v(SA+7)}
    v_max3_f32 {T}, {T}, {v(SA+8)}, {v(SA+9)}
    v_max_f32 {M}, {M}, {T}
    v_mov_b32 {T}, {M}
    s_nop 1
    v_permlane16_swap_b32 {T}, {M}
    v_max_f32 {M}, {M}, {T}
    v_mov_b32 {T}, {M}
    s_waitcnt vmcnt(0)
    {vc[0]}
    v_permlane32_swap_b32 {T}, {M}
    v_max_f32 {M}, {M}, {T}
    {vc[1]}
    v_mul_f32 {M}, {s(S_CST)}, {M}
    {vc[2]}
    """)
    r = list(range(SA, SA + 10))
    fm = [f'v_fma_f32 {v(x)}, {v(x)}, {s(S_CST)}, -{M}' for x in r]
    ex = [f'v_exp_f32 {v(x)}, {v(x)}' for x in r]
    a(fm[0]); a(fm[1])
    a(vc[3])
    a.label(L + '_vok')
    pf.stamp(a, 'max', 3)
    a(vwm[0])
    for i in range(10):
        if i + 2 < 10: a(fm[i + 2])
        a(ex[i])
        if i + 1 < 8: a(vwm[i + 1])
    vwc = []
    for ct in range(4):
        d = AV_O + 4 * ct
        vwc += [f'v_cvt_pk_bf16_f32 {v(AV_VWM+2*ct)}, {v(d)}, {v(d+1)}', f'v_cvt_pk_bf16_f32 {v(AV_VWM+2*ct+1)}, {v(d+2)}, {v(d+3)}']
    pf.stamp(a, 'exp', 3)
    pk = packP(SA)
    for x in pk[:4]: a(x)
    SM = SA + 4
    mA = f'v_mfma_f32_16x16x32_bf16 {v(SM,4)}, {v(AV_ONE,4)}, {v(SA,4)}, 0'
    mB = f'v_mfma_f32_16x16x32_bf16 {v(SM,4)}, {v(AV_HALF,4)}, {v(SA+8,4)}, {v(SM,4)}'
    for x in pk[4:6]: a(x)
    a(mA)
    for x in pk[6:]: a(x)
    for n, ct in enumerate((0, 2, 1, 3)):
        a(vwc[2*ct]); a(vwc[2*ct+1])
        if n == 0: a(mB)
        a(f'v_mfma_f32_16x16x32_bf16 {v(AV_O+4*ct,4)}, {v(AV_VWS+4*ct,4)}, {v(SA,4)}, 0')
    a(f's_mov_b64 vcc, {s(S_QM,2)}')
    a(f'v_rcp_f32 {T}, {v(SM)}')
    for ct in (0, 2, 1, 3):
        a(f'v_mfma_f32_16x16x32_bf16 {v(AV_O+4*ct,4)}, {v(AV_VWM+2*ct,4)}, {v(SA+8,4)}, {v(AV_O+4*ct,4)}')
    pf.stamp(a, 'pv', 3)
    qp = 'quad_perm:[2,3,2,3] row_mask:0xf bank_mask:0xf'
    a(f'v_mov_b32_dpp {T}, {T} {qp}')
    a('s_nop 4')
    for h in range(2):
        for i in range(4*h, 4*h+4): a(f'v_cndmask_b32_dpp {v(AV_O+i)}, {v(AV_O+8+i)}, {v(AV_O+i)}, vcc {qp}')
    for i in range(8): a(f'v_mul_f32 {v(AV_O+i)}, {v(AV_O+i)}, {T}')
    for d in range(4): a(f'v_cvt_pk_bf16_f32 {v(AV_PK+d)}, {v(AV_O+2*d)}, {v(AV_O+2*d+1)}')
    a(f'ds_write_b128 {v(AV_R2W)}, {v(AV_PK,4)}')
    a('s_waitcnt lgkmcnt(0)')
    pf.stamp(a, 'b2rdy')
    a('s_barrier')
    pf.stamp(a, 'b2')
    a(f'ds_read_b128 {v(AV_PK+4,4)}, {v(AV_R2R)}')
    a('s_waitcnt lgkmcnt(0)')
    a(f'v_mfma_f32_16x16x32_bf16 {v(AV_O,4)}, {v(AV_SEL,4)}, {v(AV_PK+4,4)}, 0')
    a('s_nop 7')
    a(f'v_cvt_pk_bf16_f32 {v(AV_PK)}, {v(AV_O)}, {v(AV_O+1)}')
    a(f'v_cvt_pk_bf16_f32 {v(AV_PK+1)}, {v(AV_O+2)}, {v(AV_O+3)}')
    a('s_nop 0')
    a(f'v_permlane16_swap_b32 {v(AV_PK)}, {v(AV_PK+2)}')
    a(f'v_permlane16_swap_b32 {v(AV_PK+1)}, {v(AV_PK+3)}')
    a('s_mov_b64 exec, 0xffff')
    a(f'v_min_u32 {v(AV_PK)}, -2, {v(AV_PK)}')
    a(f'buffer_store_dwordx4 {v(AV_PK,4)}, {v(AV_PST)}, {s(SRD_WS,4)}, {s(S_PSTC)} offen sc1')
    a('s_setprio 0')
    pf.stamp(a, 'ppub')
    a(f'buffer_store_dwordx4 {v(AV_NEG,4)}, {v(AV_PST)}, {s(SRD_WS,4)}, {s(S_PRS)} offen sc1')
    a('s_mov_b64 exec, -1')
    l = a.uid('pg')
    a(f's_cmp_lg_u32 {s(S_PRG)}, 0')
    a(f's_cbranch_scc1 {l}')
    a(f's_sub_u32 {s(S_T4)}, {s(S_S)}, 1')
    a(f's_cbranch_scc1 {l}')
    a(f's_and_b32 {s(S_T0)}, {s(S_S)}, 3')
    a(f's_cmp_ge_u32 {s(S_S)}, 58')
    a(f's_cselect_b32 {s(S_T0)}, 0, {s(S_T0)}')
    a(f's_cmp_lg_u32 {s(S_T0)}, 0')
    a(f's_cbranch_scc1 {l}')
    a(f'v_mov_b32 {v(AV_T)}, {s(S_T4)}')
    a('s_mov_b64 exec, 1')
    a(f'buffer_store_dword {v(AV_T)}, off, {s(SRD_WS,4)}, {s(S_CS)} sc1')
    a('s_mov_b64 exec, -1')
    a.label(l)
    if light:
        if a.lr & 2 and 'k' not in a.abl:
            if a.kdl: a(f's_sleep {a.kdl}')
            for x in reg_list(a, 0, AV_KS, S_T0): a(x)
        pf.stamp(a, 'bg')
        pf.flush(a, AV_MX, 'A')
        a(f's_add_u32 {s(S_S)}, {s(S_S)}, 1')
        a(f's_cmp_lt_u32 {s(S_S)}, {a.s1}')
        a(f's_cbranch_scc1 {L}')
        a('s_waitcnt vmcnt(0)')
        for i in range(8):
            if a.lr & 1: a(f'ds_write_b128 {v(AV_LB)}, {v(AV_TB+4*i,4)} offset:{8192+1024*i}')
            if a.lr & 2: a(f'ds_write_b128 {v(AV_LB)}, {v(AV_KS+4*i,4)} offset:{1024*i}')
        a('s_waitcnt lgkmcnt(0)')
        a(f's_branch {nxt}')
    else:
        a.label(L + '_lskb')
        a(f'v_mov_b32 {v(AV_X)}, 0xff61b1e6')
        def s_mf(qt, S):
            m = []
            for u in range(4):
                q = v(AV_TB + (qt * 4 + u) * 4, 4)
                for kt in range(qt + 1):
                    d = S + 4 * kt
                    m.append(f'v_mfma_f32_16x16x32_bf16 {v(d,4)}, {v(AV_KS+(kt*4+u)*4,4)}, {q}, {"0" if u==0 else v(d,4)}')
                m.append(f'v_mfma_f32_16x16x32_bf16 {v(S+8,4)}, {v(xk(u),4)}, {q}, {"0" if u==0 else v(S+8,4)}')
            return m
        bg = qr + ['s_waitcnt lgkmcnt(4)'] + s_mf(0, SA) + ['s_waitcnt lgkmcnt(0)'] + s_mf(1, SB)
        seq = [f'v_cndmask_b32 {v(SA+i)}, {v(SA+i)}, {v(AV_X)}, {s(S_M0+2*i,2)}' for i in range(4)]
        seq += exp_seq([SA + i for i in range(4)] + [SA + 8, SA + 9]) + packP(SA, True)
        bg += seq + ['s_nop 1']
        pv0 = pv_seq(SA, 0, AV_X + 2)
        seq = [f'v_cndmask_b32 {v(SB+4+i)}, {v(SB+4+i)}, {v(AV_X)}, {s(S_M0+2*i,2)}' for i in range(4)]
        seq += exp_seq(list(range(SB, SB + 10))) + packP(SB)
        seq = merge_fill(seq, pv0[:10], every=2, start=0)
        bg += seq + pv0[10:] + pv_seq(SB, 1, AV_T)
        if 'b' in a.abl: bg = []
        for x in bg: a(x)
        a(f'v_xor_b32 {v(AV_SGW)}, 0x4000, {v(AV_SGW)}')
        pf.stamp(a, 'bg')
        pf.flush(a, AV_MX, 'A')
        a(f's_add_u32 {s(S_S)}, {s(S_S)}, 1')
        a(f's_cmp_le_u32 {s(S_S)}, {a.last}')
        a(f's_cbranch_scc1 {L}')
        a('s_waitcnt lgkmcnt(0)')
        a('s_barrier')
        a('s_waitcnt vmcnt(0)')
        a(f's_branch {done}')
    for i in range(4):
        spin_block(a, f'{Lr}_{i}', qm[i:], qreg[i], AV_T, L + '_again', L + '_nochk')
    a.label(L + '_again')
    crit_s(True)
    a(f's_branch {L}_sdone')
    def vretry(lab, ok):
        a.label(lab)
        a(f's_sub_u32 {s(S_TO)}, {s(S_TO)}, 1')
        a(f's_cbranch_scc1 {lab}g')
        for x in qm[4:]: a(x)
        a('s_waitcnt vmcnt(0)')
        for x in chk(vreg, AV_FT, lab): a(x)
        a(f's_branch {ok}')
        a.label(lab + 'g')
        a(f's_mov_b32 {s(S_TO)}, 0')
        a(f's_branch {ok}')
    vretry(f'{Lr}_v', L + '_vok')
    a.label(L + '_nochk')
    crit_s(False)
    a('s_nop 1')
    a(f's_branch {L}_sdone')
    if light: return
    vretry(f'{Lr}_v2', L + '_lsk3')
    a.label(f'{L}_lsk')
    a(f's_cmp_lg_u32 {s(S_PRG)}, 0')
    a(f's_cbranch_scc1 {L}_lsk2')
    a(f'v_mov_b32 {v(AV_T)}, {a.last - 1}')
    a('s_mov_b64 exec, 1')
    a(f'buffer_store_dword {v(AV_T)}, off, {s(SRD_WS,4)}, {s(S_CS)} sc1')
    a('s_mov_b64 exec, -1')
    a.label(f'{L}_lsk2')
    a('s_waitcnt vmcnt(0)')
    for x in chk(vreg, AV_FT, f'{Lr}_v2'): a(x)
    a.label(f'{L}_lsk3')
    for x in vwm: a(x)
    a('s_nop 7')
    a('s_nop 1')
    for x in vwc: a(x)
    a('s_waitcnt lgkmcnt(0)')
    a(f's_branch {L}_lskb')

def emit_chain(a, done, prof=False):
    if prof: a('s_memrealtime s[94:95]')
    a(f"""
    s_lshl_b32 {s(S_ID)}, {s(S_X)}, 5
    s_add_u32 {s(S_ID)}, {s(S_ID)}, {s(S_I)}
    s_lshr_b32 {s(S_H)}, {s(S_ID)}, 2
    s_lshr_b32 {s(S_G)}, {s(S_ID)}, 4
    s_and_b32 {s(S_C)}, {s(S_I)}, 15
    s_and_b32 {s(S_J)}, {s(S_I)}, 3
    s_mov_b32 {s(S_S)}, 0
    s_mov_b32 {s(S_TO)}, {TIMEOUT}
    s_mov_b32 s100, {TIMEOUT}
    s_getreg_b32 {s(S_X1)}, hwreg(HW_REG_XCC_ID)
    s_and_b32 {s(S_X1)}, {s(S_X1)}, 15
    s_mul_i32 {s(S_T2)}, {s(S_X1)}, {s(S_X1)}
    s_lshl_b32 {s(S_T2)}, {s(S_T2)}, 18
    s_lshl_b32 {s(S_X1)}, {s(S_X1)}, 8
    s_add_u32 {s(S_X1)}, {s(S_X1)}, {s(S_T2)}
    s_add_u32 {s(S_X1)}, {s(S_X1)}, 1
    s_lshl_b32 {s(S_CQG)}, {s(S_G)}, 4
    s_add_u32 {s(S_CQG)}, {s(S_CQG)}, {CQ_TAB}
    s_and_b32 {s(S_T4)}, {s(S_W)}, 3
    s_mul_i32 {s(S_KL)}, {s(S_T4)}, 24576
    s_add_u32 {s(S_KL)}, {s(S_KL)}, {LDS_BULK}
    s_lshl_b32 {s(S_KG)}, {s(S_G)}, 2
    s_add_u32 {s(S_KG)}, {s(S_KG)}, {s(S_T4)}
    s_lshl_b32 {s(S_KG)}, {s(S_KG)}, 12
    s_cmp_ge_u32 {s(S_W)}, 4
    s_cbranch_scc1 ch_a_pro
    s_add_u32 {s(S_KG)}, {s(S_KG)}, 262144
    s_lshl_b32 {s(S_QO)}, {s(S_H)}, 13
    s_add_u32 {s(S_QO)}, {s(S_QO)}, {WS_QKV}
    s_lshl_b32 {s(S_T0)}, {s(S_I)}, 1
    s_and_b32 {s(S_T1)}, {s(S_W)}, 1
    s_add_u32 {s(S_T0)}, {s(S_T0)}, {s(S_T1)}
    s_lshl_b32 {s(S_T0)}, {s(S_T0)}, 1       ; first u
    s_cmp_lt_u32 {s(S_W)}, 2
    s_cselect_b32 {s(S_MEX)}, 0xff, 0
    s_mov_b32 {s(S_MEX+1)}, {s(S_MEX)}
    s_lshr_b32 {s(S_T1)}, {s(S_T0)}, 1
    s_and_b32 {s(S_T2)}, {s(S_T0)}, 1
    s_lshl_b32 {s(S_T3)}, {s(S_X)}, 14
    s_add_u32 {s(S_T3)}, {s(S_T3)}, {WS_MEM}
    s_lshl_b32 {s(S_MO)}, {s(S_W)}, 12
    s_add_u32 {s(S_MO)}, {s(S_MO)}, {s(S_T3)}
    s_lshl_b32 {s(S_MSO)}, {s(S_T1)}, 8
    s_add_u32 {s(S_MSO)}, {s(S_MSO)}, {s(S_T3)}
    s_lshl_b32 {s(S_T3)}, {s(S_T2)}, 5
    s_add_u32 {s(S_MSO)}, {s(S_MSO)}, {s(S_T3)}
    s_lshr_b32 {s(S_PO)}, {s(S_T0)}, 3
    s_lshl_b32 {s(S_PO)}, {s(S_PO)}, 14
    s_and_b32 {s(S_T3)}, {s(S_T0)}, 7
    s_lshl_b32 {s(S_T3)}, {s(S_T3)}, 10
    s_add_u32 {s(S_PO)}, {s(S_PO)}, {s(S_T3)}
    s_add_u32 {s(S_PO)}, {s(S_PO)}, {WS_PART}
    s_lshl_b32 {s(S_SP)}, {s(S_G)}, 22
    s_lshl_b32 {s(S_T3)}, {s(S_C)}, 11
    s_add_u32 {s(S_SP)}, {s(S_SP)}, {s(S_T3)}
    s_lshl_b32 {s(S_T3)}, {s(S_W)}, 9
    s_add_u32 {s(S_SP)}, {s(S_SP)}, {s(S_T3)}
    s_add_u32 {s(S_SP)}, {s(S_SP)}, {WS_SP + a.s1 * 65536}
    s_lshl_b32 {s(S_KMX)}, {s(S_H)}, 13
    s_add_u32 {s(S_KMX)}, {s(S_KMX)}, {WS_KM}
    s_mov_b32 {s(S_QST)}, {s(S_QO)}
    s_mov_b32 {s(S_SP0)}, {s(S_SP)}
    s_mov_b32 {s(S_OK)}, 2
    s_mov_b32 {s(S_RTG)}, 0
    s_mov_b32 {s(S_TCH)}, {3 * 262144}
    """)
    p_prologue(a)
    for i in range(4): a(f'v_mov_b32 {v(52+i)}, -1')
    for sg in range(64 - NTAIL, 64):
        a(f's_add_u32 {s(S_T0)}, {s(S_SP)}, {(sg - a.s1)*65536}')
        a(f'buffer_store_dwordx4 v[52:55], {v(PV_SPS)}, {s(SRD_WS,4)}, {s(S_T0)} offen sc1')
    if prof: a('s_memrealtime s[96:97]')
    a(f's_lshl_b32 {s(S_X1)}, {s(S_X1)}, 5')
    a('s_barrier')
    a(f'ds_write_b32 {v(PV_FLGW)}, {v(PV_NEG)}')
    a(f'ds_write_b32 {v(PV_FLGW)}, {v(PV_NEG)} offset:16')
    a(f'ds_write_b32 {v(PV_FLGW)}, {v(PV_NEG)} offset:32')
    a(f'ds_write_b32 {v(PV_FLGW)}, {v(PV_NEG)} offset:48')
    a(f'v_mov_b32 {v(PV_RDY)}, 12')
    a(f"""
    v_mov_b32 v56, {LDS_PUB}
    s_waitcnt lgkmcnt(0)
    s_barrier
    ds_read_b64 v[32:33], v56
    s_waitcnt lgkmcnt(0)
    v_cmp_ne_u32 vcc, {s(S_X1)}, v32
    s_setprio 3
    v_readfirstlane_b32 {s(S_T0)}, v33
    s_add_u32 {s(S_PO)}, {s(S_PO)}, {s(S_T0)}
    s_cbranch_vccnz ch_p_slow
    """)
    if prof:
        a(f"""
        v_mov_b32 v33, {s(S_T0)}
        s_memrealtime s[98:99]
        s_waitcnt lgkmcnt(0)
        s_lshl_b32 {s(S_T0)}, {s(S_ID)}, 3
        s_add_u32 {s(S_T0)}, {s(S_T0)}, {s(S_W)}
        s_lshl_b32 {s(S_T0)}, {s(S_T0)}, 12
        s_add_u32 {s(S_T0)}, {s(S_T0)}, {WS_YP + 63*64}
        v_mov_b32 v56, s94
        v_mov_b32 v57, s96
        v_mov_b32 v32, s98
        s_mov_b64 exec, 1
        buffer_store_dwordx2 v[56:57], off, {s(SRD_WS,4)}, {s(S_T0)}
        buffer_store_dwordx2 v[32:33], off, {s(SRD_WS,4)}, {s(S_T0)} offset:8
        s_mov_b64 exec, -1
        s_nop 1
        """)
    if a.force_slow: a('s_branch ch_p_slow')
    p_loop(a, '', prof, done)
    a.label('ch_p_slow')
    p_loop(a, ' sc1', prof, done)
    a.label('ch_a_pro')
    a(f"""
    s_sub_u32 {s(S_T4)}, {s(S_W)}, 4
    s_lshl_b32 {s(S_H)}, {s(S_G)}, 2
    s_add_u32 {s(S_H)}, {s(S_H)}, {s(S_T4)}
    s_lshl_b32 {s(S_QO)}, {s(S_H)}, 13
    s_add_u32 {s(S_QO)}, {s(S_QO)}, {WS_QKV}
    """)
    if a.stouch:
        a(f"""
        s_min_u32 {s(S_T3)}, {s(S_T4)}, 2
        s_lshl_b32 {s(S_T1)}, {s(S_T3)}, 3
        s_add_u32 {s(S_T1)}, {s(S_T1)}, {KA_WQ}
        s_load_dwordx2 {s(SRD_T,2)}, s[0:1], {s(S_T1)}
        s_mov_b32 {s(SRD_T+2)}, {8*MB}
        s_mov_b32 {s(SRD_T+3)}, {SRD3}
        v_and_b32 v20, 63, v0
        v_lshlrev_b32 v21, 13, v20
        s_lshl_b32 {s(S_T0)}, {s(S_C)}, 19
        s_lshl_b32 {s(S_T1)}, {s(S_G)}, 10
        s_add_u32 {s(S_T0)}, {s(S_T0)}, {s(S_T1)}
        s_waitcnt lgkmcnt(0)
        buffer_load_dword v26, v21, {s(SRD_T,4)}, {s(S_T0)} offen offset:384
        """)
    a_static(a)
    a(f"""
    v_lshlrev_b32 v24, 4, v0
    s_lshl_b32 {s(S_T0)}, {s(S_ID)}, 13
    s_add_u32 {s(S_T2)}, {s(S_T0)}, {WS_PART - 4096}
    s_add_u32 {s(S_T0)}, {s(S_T0)}, {WS_QKV - 4096}
    s_lshl_b32 {s(S_T1)}, {s(S_ID)}, 12
    s_add_u32 {s(S_T1)}, {s(S_T1)}, {WS_MEM - 4096}
    buffer_store_dwordx4 {v(AV_NEG,4)}, v24, {s(SRD_WS,4)}, {s(S_T2)} offen sc1
    s_add_u32 {s(S_T2)}, {s(S_T2)}, 4096
    buffer_store_dwordx4 {v(AV_NEG,4)}, v24, {s(SRD_WS,4)}, {s(S_T2)} offen sc1
    buffer_store_dwordx4 {v(AV_NEG,4)}, v24, {s(SRD_WS,4)}, {s(S_T0)} offen sc1
    s_add_u32 {s(S_T0)}, {s(S_T0)}, 4096
    buffer_store_dwordx4 {v(AV_NEG,4)}, v24, {s(SRD_WS,4)}, {s(S_T0)} offen sc1
    buffer_store_dwordx4 {v(AV_NEG,4)}, v24, {s(SRD_WS,4)}, {s(S_T1)} offen sc1
    """)
    a(f"""
    s_and_b32 {s(S_T0)}, {s(S_I)}, 7
    s_sub_u32 {s(S_T1)}, {s(S_T4)}, 1
    s_cmp_lt_u32 {s(S_T1)}, 2
    s_cselect_b32 s54, {s(S_T0)}, 1
    s_lshr_b32 {s(S_T2)}, {s(S_ID)}, 3
    s_lshl_b32 {s(S_T2)}, {s(S_T2)}, 8
    s_lshl_b32 {s(S_T1)}, {s(S_T1)}, 7
    s_add_u32 {s(S_T2)}, {s(S_T2)}, {s(S_T1)}
    s_add_u32 s55, {s(S_T2)}, {WS_PART + MB}
    s_cmp_lg_u32 s54, 0
    s_cbranch_scc1 ch_nv0
    v_lshlrev_b32 v24, 13, v20
    s_mov_b64 exec, 0xffff
    buffer_store_dword {v(AV_NEG)}, v24, {s(SRD_WS,4)}, s55 offen sc1
    s_mov_b64 exec, -1
    """)
    a.label('ch_nv0')
    a(f"""
    v_mov_b32 v2, {s(S_X1)}
    s_lshl_b32 {s(S_T0)}, {s(S_X)}, 2
    s_add_u32 {s(S_T0)}, {s(S_T0)}, {F.DBG_XCC}
    s_waitcnt vmcnt(0)
    s_barrier
    s_cmp_lg_u32 {s(S_W)}, 4
    s_cbranch_scc1 ch_nox
    s_mov_b64 exec, 1
    buffer_atomic_add v2, off, {s(F.SRD_DBG,4)}, {s(S_T0)} sc1
    s_mov_b64 exec, -1
    """)
    a.label('ch_nox')
    a_prologue(a)
    a('s_cmp_lg_u32 s54, 0')
    a('s_cbranch_scc1 ch_nv1')
    a('s_mov_b32 s58, -1')
    a('s_mov_b32 s59, -1')
    for k in range(8):
        for ph in range(2):
            a('s_memtime s[60:61]')
            a(f's_add_u32 s56, s55, {k*16384 + ph*8192}')
            a('s_waitcnt lgkmcnt(0)')
            a('s_load_dword s57, s[4:5], s56 glc')
            a('s_waitcnt lgkmcnt(0)')
            a('s_memtime s[62:63]')
            a('s_waitcnt lgkmcnt(0)')
            a('s_sub_u32 s57, s62, s60')
            a(f's_min_u32 s{58+ph}, s{58+ph}, s57')
    a(f"""
    s_sub_i32 s57, s58, s59
    s_min_i32 s57, s57, {a.vote}
    s_max_i32 s57, s57, {-a.vote}
    s_add_u32 s57, s57, {a.vote + (1 << 24)}
    s_getreg_b32 s56, hwreg(HW_REG_XCC_ID)
    s_and_b32 s56, s56, 0
    v_mov_b32 v2, s57
    s_mov_b64 exec, 1
    buffer_atomic_add v2, off, {s(F.SRD_DBG,4)}, s56 offset:{F.DBG_VOTE} sc1
    s_mov_b64 exec, -1
    """)
    a('s_waitcnt vmcnt(0)')
    a.label('ch_nv1')
    a_prologue2(a)
    a(f"""
    s_cmp_lg_u32 {s(S_W)}, 4
    s_cbranch_scc1 ch_xcc_skip
    v_lshrrev_b32 v56, 2, {v(AV_L16)}
    v_add_u32 v56, {F.DBG_XCC}, v56
    v_writelane_b32 v56, 0, 10
    v_mov_b32 v59, 63
    v_mov_b32 v60, 32
    v_writelane_b32 v59, 0, 8
    v_writelane_b32 v60, 0, 8
    v_writelane_b32 v59, 0, 9
    v_writelane_b32 v60, 0, 9
    v_writelane_b32 v59, -1, 10
    s_movk_i32 {s(S_T0)}, 128
    v_writelane_b32 v60, {s(S_T0)}, 10
    s_mov_b64 exec, 0x70f
    """)
    a.label('ch_xcc')
    a(f"""
    buffer_load_dword v57, v56, {s(F.SRD_DBG,4)}, 0 offen sc1
    s_waitcnt vmcnt(0)
    v_and_b32 v62, v59, v57
    v_cmp_ne_u32 vcc, v62, v60
    v_readlane_b32 {s(S_T1)}, v57, 8
    v_readlane_b32 {s(S_T2)}, v57, 9
    s_add_u32 {s(S_T0)}, {s(S_T1)}, {s(S_T2)}
    s_lshr_b32 {s(S_T0)}, {s(S_T0)}, 24
    s_cmp_lg_u32 {s(S_T0)}, 32
    s_cbranch_scc1 ch_xcc_w
    s_cbranch_vccz ch_xcc_ok
    """)
    a.label('ch_xcc_w')
    a(f"""
    s_sleep 16
    s_sub_u32 {s(S_TO)}, {s(S_TO)}, 1
    s_cbranch_scc0 ch_xcc
    s_mov_b32 {s(S_TO)}, 0
    """)
    a.label('ch_xcc_ok')
    a(f"""
    s_getreg_b32 {s(S_T0)}, hwreg(HW_REG_XCC_ID)
    s_bitcmp1_b32 {s(S_T0)}, 2
    s_cselect_b32 {s(S_T1)}, {s(S_T1)}, {s(S_T1)}
    v_readlane_b32 {s(S_T0)}, v57, {s(S_X)}
    s_mov_b64 exec, -1
    s_lshr_b32 {s(S_T2)}, {s(S_T1)}, 24
    s_mul_i32 {s(S_T2)}, {s(S_T2)}, {a.vote}
    s_and_b32 {s(S_T1)}, {s(S_T1)}, 0xffffff
    s_cmp_gt_u32 {s(S_T1)}, {s(S_T2)}
    s_cselect_b32 {s(S_T1)}, {0 if a.pgf else 0x2000}, {0x2000 if a.pgf else 0}
    v_mov_b32 v58, {LDS_PUB}
    v_mov_b32 v60, {s(S_T0)}
    v_mov_b32 v61, {s(S_T1)}
    s_barrier
    ds_write_b64 v58, v[60:61]
    s_waitcnt lgkmcnt(0)
    s_branch ch_xcc_b3
    """)
    a.label('ch_xcc_skip')
    a('s_barrier')
    a.label('ch_xcc_b3')
    a(f"""
    s_barrier
    v_mov_b32 v58, {LDS_PUB}
    ds_read_b64 v[60:61], v58
    v_and_b32 v23, 7, v20
    v_lshlrev_b32 v23, 7, v23
    v_bfe_u32 v24, v20, 3, 1
    v_lshl_add_u32 v23, v24, 17, v23
    v_lshrrev_b32 v24, 4, v20
    v_lshl_add_u32 v23, v24, 24, v23
    s_lshl_b32 {s(S_T2)}, {s(S_G)}, 14
    s_lshl_b32 {s(S_T1)}, {s(S_C)}, 10
    s_add_u32 {s(S_T2)}, {s(S_T2)}, {s(S_T1)}
    s_and_b32 {s(S_T1)}, {s(S_T4)}, 1
    s_lshl_b32 {s(S_T1)}, {s(S_T1)}, 18
    s_add_u32 {s(S_T2)}, {s(S_T2)}, {s(S_T1)}
    s_add_u32 {s(S_T2)}, {s(S_T2)}, {WS_QS + 262144}
    s_waitcnt lgkmcnt(0)
    v_readfirstlane_b32 {s(S_T0)}, v61
    s_add_u32 {s(S_PO)}, {s(S_PO)}, {s(S_T0)}
    """)
    a.label('ch_g0')
    a(f"""
    buffer_load_dword v57, off, {s(SRD_WS,4)}, {s(S_CQG)} sc1
    s_waitcnt vmcnt(0)
    v_readfirstlane_b32 {s(S_T0)}, v57
    s_cmp_ge_u32 {s(S_T0)}, {8 if a.s1 else 12}
    s_cbranch_scc1 ch_g0b
    s_sleep 12
    s_sub_u32 {s(S_TO)}, {s(S_TO)}, 1
    s_cbranch_scc0 ch_g0
    s_mov_b32 {s(S_TO)}, 0
    """)
    a.label('ch_g0b')
    for m in (1, 0):
        for x in (reg_list(a, m, AV_TB if m else AV_KS, S_QLD) if a.s1 and a.lr & (1 if m else 2) else dma_list(a, m, AV_L16, S_T1)): a(x)
    a('s_mov_b32 exec_hi, 0xffff')
    a(f'buffer_load_dword {v(AV_PK+7)}, v23, {s(SRD_WS,4)}, {s(S_T2)} offen sc1')
    a('s_mov_b32 exec_hi, -1')
    a(f'v_mov_b32 {v(AV_FV)}, 0')
    a('s_waitcnt vmcnt(1)')
    a(f'ds_write_b32 {v(AV_FLGW)}, {v(AV_FV)} offset:16')
    a_loop(a, prof, done)
```

```python
from asmlib import *
from layout4 import *
from k_prep import red_gq, rnd_bf16

SRD_WS = 4
SRD_DBG = 64
CS_TAB = WS_CNT + 8192
CD_TAB = WS_CNT + 2560
DBG_INIT = 0
DBG_INIT2 = 64
DBG_XCC = 128
DBG_INITA = 192
DBG_VOTE = 160
S_EARLY = 70
TIMEOUT = 1 << 16

def emit_ln_init(a, swk, touch):
    a(f'''
    s_cmp_ge_u32 s3, 4
    s_cbranch_scc1 ln_touch
    s_load_dwordx2 s[8:9], s[0:1], {KA_X}
    v_and_b32 v1, 63, v0
    s_mov_b32 s10, {4*MB}
    s_mov_b32 s11, {SRD3}
    v_and_b32 v3, 15, v1
    v_lshrrev_b32 v4, 4, v1
    v_lshlrev_b32 v5, 11, v3
    v_lshl_add_u32 v5, v4, 4, v5
    s_lshl_b32 s12, {s(swk)}, 15
    s_lshl_b32 s13, s3, 9
    s_add_u32 s12, s12, s13
    s_waitcnt lgkmcnt(0)
    ''')
    NB = 8; ND = NB * 4; NF = ND * 2
    P = 16; F = 48; T = 112; C = 176
    for j in range(NB):
        a(f'buffer_load_dwordx4 {v(P+4*j,4)}, v5, s[8:11], s12 offen offset:{64*j}')
    a(f'''
    v_mov_b32 v14, 0
    s_lshl_b32 s13, {s(swk)}, 7
    s_add_u32 s13, s13, {WS_CNT}
    v_lshlrev_b32 v13, 2, v0
    v_cmp_gt_u32 vcc, 32, v0
    s_and_saveexec_b64 s[22:23], vcc
    s_cbranch_execz ln_nz
    buffer_store_dword v14, v13, s[4:7], s13 offen sc1
    ''')
    a.label('ln_nz')
    a(f'''
    s_mov_b64 exec, -1
    v_lshlrev_b32 v6, 4, v3
    s_lshl_b32 s14, s3, 2
    v_add_u32 v7, s14, v6
    v_lshlrev_b32 v8, 4, v1
    s_lshl_b32 s15, {s(swk)}, 15
    s_lshl_b32 s16, s3, 13
    s_add_u32 s15, s15, s16
    s_add_u32 s16, s15, 4096
    v_and_b32 v9, 1, v4
    v_cmp_eq_u32 s[20:21], 1, v9
    s_waitcnt vmcnt(1)
    ''')
    for d in range(ND):
        a(f'v_lshlrev_b32 {v(F+2*d)}, 16, {v(P+d)}')
        a(f'v_and_b32 {v(F+2*d+1)}, 0xffff0000, {v(P+d)}')
    def tree(n):
        while n > 1:
            n //= 2
            for i in range(n): a(f'v_add_f32 {v(T+i)}, {v(T+i)}, {v(T+n+i)}')
    for i in range(ND): a(f'v_add_f32 {v(T+i)}, {v(F+i)}, {v(F+ND+i)}')
    tree(ND); red_gq(a, T, T+1)
    a(f'''
    ds_write_b32 v7, {v(T)}
    s_waitcnt lgkmcnt(0)
    s_barrier
    ds_read_b128 {v(T,4)}, v6
    s_waitcnt lgkmcnt(0)
    ''')
    tree(4)
    a(f'v_mul_f32 v10, 0x3a800000, {v(T)}')
    for i in range(NF): a(f'v_sub_f32 {v(C+i)}, {v(F+i)}, v10')
    for i in range(ND):
        a(f'v_mul_f32 {v(T+i)}, {v(C+i)}, {v(C+i)}')
        a(f'v_fmac_f32 {v(T+i)}, {v(C+ND+i)}, {v(C+ND+i)}')
    tree(ND); red_gq(a, T, T+1)
    a(f'''
    ds_write_b32 v7, {v(T)} offset:512
    s_waitcnt lgkmcnt(0)
    s_barrier
    ds_read_b128 {v(T,4)}, v6 offset:512
    s_waitcnt lgkmcnt(0)
    ''')
    tree(4)
    a(f'v_mul_f32 v11, 0x3a800000, {v(T)}')
    rnd_bf16(a, 10, 10); rnd_bf16(a, 11, 11)
    a('v_add_f32 v11, 0x3727c5ac, v11')
    rnd_bf16(a, 11, 11)
    a('v_sqrt_f32 v11, v11'); a('s_nop 0')
    rnd_bf16(a, 11, 11)
    a('v_rcp_f32 v11, v11'); a('s_nop 0')
    for j in range(NB):
        for d in range(4*j, 4*j+4):
            a(f'v_sub_f32 {v(F+2*d)}, {v(F+2*d)}, v10')
            a(f'v_sub_f32 {v(F+2*d+1)}, {v(F+2*d+1)}, v10')
            a(f'v_cvt_pk_bf16_f32 {v(P+d)}, {v(F+2*d)}, {v(F+2*d+1)}')
            a(f'v_lshlrev_b32 {v(F+2*d)}, 16, {v(P+d)}')
            a(f'v_and_b32 {v(F+2*d+1)}, 0xffff0000, {v(P+d)}')
            a(f'v_mul_f32 {v(F+2*d)}, {v(F+2*d)}, v11')
            a(f'v_mul_f32 {v(F+2*d+1)}, {v(F+2*d+1)}, v11')
            a(f'v_cvt_pk_bf16_f32 {v(P+d)}, {v(F+2*d)}, {v(F+2*d+1)}')
        b = P + 4 * j; o = T + 4 * j
        a(f'v_cndmask_b32 {v(o)}, {v(b)}, {v(b+2)}, s[20:21]')
        a(f'v_cndmask_b32 {v(o+1)}, {v(b+1)}, {v(b+3)}, s[20:21]')
        a(f'v_cndmask_b32 {v(o+2)}, {v(b+2)}, {v(b)}, s[20:21]')
        a(f'v_cndmask_b32 {v(o+3)}, {v(b+3)}, {v(b+1)}, s[20:21]')
        a(f'buffer_store_dwordx4 {v(o,4)}, v8, s[4:7], s{15 + j//4} offen offset:{1024*(j&3)} sc1')
    a(f'''
    s_waitcnt vmcnt(0)
    s_barrier
    s_cmp_lg_u32 s3, 0
    s_cbranch_scc1 ln_sig
    v_mov_b32 v2, 1
    s_mov_b64 exec, 1
    s_cmp_ge_u32 {s(swk)}, 8
    s_cbranch_scc1 ln_sb
    buffer_atomic_add v2, off, {s(SRD_DBG,4)}, 0 offset:{DBG_INITA} sc1
    ''')
    a.label('ln_sb')
    a(f'''
    buffer_atomic_add v2, off, {s(SRD_DBG,4)}, 0 offset:{DBG_INIT} sc1
    s_mov_b64 exec, -1
    s_branch ln_sig
    ''')
    a.label('ln_touch')
    touch()
    a('s_barrier'); a('s_barrier'); a('s_barrier')
    a.label('ln_sig')

def emit_ln_wait(a, s_type, s_aoff, t_fh, x=''):
    a(f's_cmp_eq_u32 {s(s_type)}, {t_fh}')
    a(f's_cselect_b32 {s(S_EARLY)}, {1 if a.early else 0}, 0')
    a(f's_cmp_eq_u32 {s(s_aoff)}, {WS_XN}')
    a(f's_cselect_b32 {s(S_EARLY)}, {s(S_EARLY)}, 0')
    a('s_cmp_lg_u32 s3, 0')
    a(f's_cbranch_scc1 lnw{x}_ok')
    a(f's_cmp_eq_u32 {s(S_EARLY)}, 0')
    a(f's_cbranch_scc1 lnw{x}_full')
    emit_wait_init(a, f'lnwa{x}', 20, 68, 69, DBG_INITA, 8)
    a(f's_branch lnw{x}_ok')
    a.label(f'lnw{x}_full')
    emit_wait_init(a, f'lnw{x}', 20, 68, 69)
    a('s_barrier')

def emit_drain_hook(a):
    a(f's_cmp_eq_u32 {s(S_EARLY)}, 0')
    a('s_cbranch_scc1 drw_ok')
    a(f's_mov_b32 {s(S_EARLY)}, 0')
    a('s_cmp_lg_u32 s3, 0')
    a('s_cbranch_scc1 drw_ok')
    a('v_readfirstlane_b32 s68, v22')
    a('s_cmp_ge_u32 s68, 128')
    a('s_cbranch_scc1 drw_ok')
    emit_wait_init(a, 'drw', 20, 68, 69)

def emit_wait_init(a, tag, vt, st, sto, off=DBG_INIT, tgt=128):
    a(f's_mov_b32 {s(sto)}, {TIMEOUT}')
    a.label(tag)
    a(f'''
    buffer_load_dword {v(vt)}, off, {s(SRD_DBG,4)}, 0 offset:{off} sc1
    s_waitcnt vmcnt(0)
    v_readfirstlane_b32 {s(st)}, {v(vt)}
    s_cmp_ge_u32 {s(st)}, {tgt}
    s_cbranch_scc1 {tag}_ok
    s_sleep 8
    s_sub_u32 {s(sto)}, {s(sto)}, 1
    s_cbranch_scc0 {tag}
    ''')
    a.label(tag + '_ok')


def silu8(a, gs, n, T):
    g0, g1 = gs[0], gs[1]
    for d in range(n):
        a(f'v_lshlrev_b32 {v(T+2*d)}, 16, {v(g0+d)}')
        a(f'v_and_b32 {v(T+2*d+1)}, 0xffff0000, {v(g0+d)}')
        for g in gs[1:]:
            a(f'v_lshlrev_b32 {v(g0+d)}, 16, {v(g+d)}')
            a(f'v_and_b32 {v(g+d)}, 0xffff0000, {v(g+d)}')
            a(f'v_add_f32 {v(T+2*d)}, {v(T+2*d)}, {v(g0+d)}')
            a(f'v_add_f32 {v(T+2*d+1)}, {v(T+2*d+1)}, {v(g+d)}')
        a(f'v_cvt_pk_bf16_f32 {v(g0+d)}, {v(T+2*d)}, {v(T+2*d+1)}')
        a(f'v_lshlrev_b32 {v(T+2*d)}, 16, {v(g0+d)}')
        a(f'v_and_b32 {v(T+2*d+1)}, 0xffff0000, {v(g0+d)}')
        a(f'v_mul_f32 {v(g0+d)}, s89, {v(T+2*d)}')
        a(f'v_mul_f32 {v(g1+d)}, s89, {v(T+2*d+1)}')
    for d in range(n):
        a(f'v_exp_f32 {v(g0+d)}, {v(g0+d)}')
        a(f'v_exp_f32 {v(g1+d)}, {v(g1+d)}')
    a('s_nop 0')
    for d in range(n):
        a(f'v_add_f32 {v(g0+d)}, 1.0, {v(g0+d)}')
        a(f'v_add_f32 {v(g1+d)}, 1.0, {v(g1+d)}')
    for d in range(n):
        a(f'v_rcp_f32 {v(g0+d)}, {v(g0+d)}')
        a(f'v_rcp_f32 {v(g1+d)}, {v(g1+d)}')
    a('s_nop 0')
    for d in range(n):
        a(f'v_mul_f32 {v(T+2*d)}, {v(T+2*d)}, {v(g0+d)}')
        a(f'v_mul_f32 {v(T+2*d+1)}, {v(T+2*d+1)}, {v(g1+d)}')
        a(f'v_cvt_pk_bf16_f32 {v(g0+d)}, {v(T+2*d)}, {v(T+2*d+1)}')

def finish(a, A, G, X, O, n, t):
    for d in range(n):
        a(f'v_cvt_pk_bf16_f32 {v(t)}, {v(A+2*d)}, {v(A+2*d+1)}')
        a(f'v_lshlrev_b32 {v(A+2*d)}, 16, {v(t)}')
        a(f'v_and_b32 {v(A+2*d+1)}, 0xffff0000, {v(t)}')
        a(f'v_lshlrev_b32 {v(t)}, 16, {v(G+d)}')
        a(f'v_and_b32 {v(t+1)}, 0xffff0000, {v(G+d)}')
        a(f'v_mul_f32 {v(A+2*d)}, {v(A+2*d)}, {v(t)}')
        a(f'v_mul_f32 {v(A+2*d+1)}, {v(A+2*d+1)}, {v(t+1)}')
        a(f'v_cvt_pk_bf16_f32 {v(t)}, {v(A+2*d)}, {v(A+2*d+1)}')
        a(f'v_lshlrev_b32 {v(A+2*d)}, 16, {v(t)}')
        a(f'v_and_b32 {v(A+2*d+1)}, 0xffff0000, {v(t)}')
        a(f'v_lshlrev_b32 {v(t)}, 16, {v(X+d)}')
        a(f'v_and_b32 {v(t+1)}, 0xffff0000, {v(X+d)}')
        a(f'v_add_f32 {v(A+2*d)}, {v(A+2*d)}, {v(t)}')
        a(f'v_add_f32 {v(A+2*d+1)}, {v(A+2*d+1)}, {v(t+1)}')
        a(f'v_cvt_pk_bf16_f32 {v(O+d)}, {v(A+2*d)}, {v(A+2*d+1)}')

def emit_fin(a, s_type, s_a, s_b, t_tail, done):
    a(f"""
    s_load_dwordx2 s[8:9], s[0:1], {KA_X}
    s_load_dwordx2 s[12:13], s[0:1], {KA_OUT}
    v_mbcnt_lo_u32_b32 v1, -1, 0
    v_mbcnt_hi_u32_b32 v1, -1, v1
    s_mov_b32 s10, {4*MB}
    s_mov_b32 s11, {SRD3}
    s_mov_b32 s14, {4*MB}
    s_mov_b32 s15, {SRD3}
    s_mov_b32 s89, 0xbfb8aa3b
    v_lshlrev_b32 v3, 4, v1
    v_and_b32 v4, 15, v1
    v_lshrrev_b32 v5, 4, v1
    v_lshlrev_b32 v4, 11, v4
    v_lshl_add_u32 v4, v5, 4, v4
    v_and_b32 v5, 1, v5
    v_cmp_eq_u32 s[76:77], 1, v5
    v_and_b32 v6, 3, v1
    v_lshlrev_b32 v6, 7, v6
    s_mov_b32 s80, {s(s_a)}
    s_lshl_b32 s81, {s(s_b)}, 2
    s_and_b32 s82, s3, 3
    s_add_u32 s81, s81, s82
    s_lshr_b32 s82, s3, 2               ; rb & 1
    s_mov_b32 s84, {TIMEOUT}
    s_mov_b32 s85, {CS_TAB}
    s_waitcnt lgkmcnt(0)
    s_cmp_eq_u32 {s(s_type)}, {t_tail}
    s_cbranch_scc1 fin_tail
    """)
    a.label('fin_job')
    a(f"""
    s_lshl_b32 s72, s80, 1
    s_add_u32 s72, s72, s82             ; rb
    s_lshl_b32 s74, s72, 15
    s_lshl_b32 s73, s81, 11
    s_add_u32 s73, s73, s74             ; F offset
    s_lshl_b32 s75, s81, 7
    s_add_u32 s74, s74, s75
    s_add_u32 s78, s73, {WS_GG}
    s_add_u32 s79, s73, {WS_SP}
    s_lshr_b32 s83, s80, 3
    s_lshl_b32 s83, s83, 6
    s_add_u32 s83, s83, {CD_TAB}
    s_add_u32 s87, s80, 1
    """)
    for b in range(2):
        a(f'buffer_load_dwordx4 {v(88+4*b,4)}, v4, s[8:11], s74 offen offset:{64*b}')
    a('s_cmp_lg_u32 s3, 0')
    a('s_cbranch_scc1 fin_ws_ok')
    a.label('fin_wd')
    a(f"""
    buffer_load_dwordx2 v[8:9], off, s[4:7], s83 sc1
    s_waitcnt vmcnt(0)
    v_readfirstlane_b32 s86, v8
    v_readfirstlane_b32 s88, v9
    s_cmp_ge_u32 s80, {a.s1}
    s_cselect_b32 s88, 16, s88
    s_min_u32 s86, s86, s88
    s_cmp_ge_u32 s86, 16
    s_cbranch_scc1 fin_wd2
    s_sleep 64
    s_sub_u32 s84, s84, 1
    s_cbranch_scc0 fin_wd
    s_mov_b32 s84, 0
    """)
    a.label('fin_wd2')
    a(f's_cmp_lt_u32 s80, {a.s1}')
    a('s_cbranch_scc1 fin_ws_ok')
    a.label('fin_ws')
    a(f"""
    buffer_load_dword v7, v6, s[4:7], s85 offen sc1
    s_waitcnt vmcnt(0)
    v_cmp_gt_u32 vcc, s87, v7
    s_cbranch_vccz fin_ws_ok
    s_sleep {a.fin_sleep}
    s_sub_u32 s86, s87, 2
    v_cmp_gt_i32 vcc, s86, v7
    s_cbranch_vccz fin_ws_f
    s_sleep 64
    s_sub_u32 s86, s87, 6
    v_cmp_gt_i32 vcc, s86, v7
    s_cbranch_vccz fin_ws_f
    s_sleep 127
    s_sleep 127
    """)
    a.label('fin_ws_f')
    a(f"""
    s_sub_u32 s84, s84, 1
    s_cbranch_scc0 fin_ws
    s_mov_b32 s84, 0
    """)
    a.label('fin_ws_ok')
    a('s_barrier')
    for k in range(4):
        for b in range(2):
            a(f'buffer_load_dwordx4 {v(136+8*k+4*b,4)}, v3, s[4:7], s78 offen offset:{1024*b} sc1')
        a(f's_add_u32 s78, s78, {4*MB}')
    for g in range(8):
        if g == 4:
            a(f's_cmp_lt_u32 s80, {a.s1}')
            a('s_cbranch_scc1 fin_4p')
        for b in range(2):
            a(f'buffer_load_dwordx4 {v(16+(b*8+g)*4,4)}, v3, s[4:7], s79 offen offset:{1024*b} sc1')
        a(f's_add_u32 s79, s79, {4*MB}')
    a('s_waitcnt vmcnt(16)')
    a('s_branch fin_8p')
    a.label('fin_4p')
    for b in range(2):
        for i in range(16): a(f'v_mov_b32 {v(16+(b*8+4)*4+i)}, 0')
    a('s_waitcnt vmcnt(8)')
    a.label('fin_8p')
    for b in range(2): silu8(a, [136 + 8 * k + 4 * b for k in range(4)], 4, 120)
    a('s_waitcnt vmcnt(0)')
    def combine(b):
        A = 96
        for d in range(4):
            r = 16 + b * 32 + d
            a(f'v_lshlrev_b32 {v(A+2*d)}, 16, {v(r)}')
            a(f'v_and_b32 {v(A+2*d+1)}, 0xffff0000, {v(r)}')
        for g in range(1, 8):
            for d in range(4):
                r = 16 + (b * 8 + g) * 4 + d
                a(f'v_lshlrev_b32 {v(120+2*d)}, 16, {v(r)}')
                a(f'v_and_b32 {v(121+2*d)}, 0xffff0000, {v(r)}')
            for e in range(8):
                a(f'v_add_f32 {v(A+e)}, {v(A+e)}, {v(120+e)}')
        X = 88 + 4 * b
        a(f'v_cndmask_b32 v108, {v(X)}, {v(X+2)}, s[76:77]')
        a(f'v_cndmask_b32 v109, {v(X+1)}, {v(X+3)}, s[76:77]')
        a(f'v_cndmask_b32 v110, {v(X+2)}, {v(X)}, s[76:77]')
        a(f'v_cndmask_b32 v111, {v(X+3)}, {v(X+1)}, s[76:77]')
        finish(a, A, 136 + 4 * b, 108, 112, 4, 104)
        O = 128 + 4 * b
        a(f'v_cndmask_b32 {v(O)}, v112, v114, s[76:77]')
        a(f'v_cndmask_b32 {v(O+1)}, v113, v115, s[76:77]')
        a(f'v_cndmask_b32 {v(O+2)}, v114, v112, s[76:77]')
        a(f'v_cndmask_b32 {v(O+3)}, v115, v113, s[76:77]')
        a(f'buffer_store_dwordx4 {v(O,4)}, v4, s[12:15], s74 offen offset:{64*b}')
    for b in range(2): combine(b)
    if a.wprof:
        import k_gemm5
        a('s_waitcnt vmcnt(0)')
        k_gemm5.prof_stamp(a, 1)
    a(f's_branch {done}')
    a.label('fin_tail')
    a(f"""
    s_mov_b32 s81, {s(s_b)}
    s_lshl_b32 s81, s81, 2
    s_and_b32 s82, s3, 3
    s_add_u32 s81, s81, s82             ; blk 0..63
    s_lshr_b32 s82, s81, 5
    s_and_b32 s81, s81, 31              ; cb
    s_lshl_b32 s72, s80, 1
    s_add_u32 s72, s72, s82             ; rb
    s_lshl_b32 s74, s72, 15
    s_lshl_b32 s73, s81, 10
    s_add_u32 s73, s73, s74
    s_lshl_b32 s75, s81, 6
    s_add_u32 s74, s74, s75
    s_add_u32 s78, s73, {WS_GG}
    s_add_u32 s79, s73, {WS_SP}
    s_mov_b32 s83, {CD_TAB + 7 * 64}
    s_mov_b32 s84, {TIMEOUT}
    s_min_u32 s87, s80, 62
    v_and_b32 v8, 7, v1
    v_lshlrev_b32 v8, 22, v8
    s_cmp_lg_u32 s3, 0
    s_cbranch_scc1 ft_ok
    """)
    a.label('ft_wd')
    a(f"""
    buffer_load_dword v7, off, s[4:7], s83 sc1
    s_waitcnt vmcnt(0)
    v_readfirstlane_b32 s86, v7
    s_cmp_ge_u32 s86, 16
    s_cbranch_scc1 ft_wdok
    s_sleep 32
    s_sub_u32 s84, s84, 1
    s_cbranch_scc0 ft_wd
    s_mov_b32 s84, 0
    """)
    a.label('ft_wdok')
    a.label('ft_ok')
    a(f"""
    s_barrier
    s_cmp_ge_u32 s3, 4
    s_cbranch_scc1 {done}
    buffer_load_dwordx4 v[88:91], v4, s[8:11], s74 offen
    """)
    for k in range(4):
        a(f'buffer_load_dwordx4 {v(136+8*k,4)}, v3, s[4:7], s78 offen sc1')
        a(f's_add_u32 s78, s78, {4*MB}')
    a('s_waitcnt vmcnt(0)')
    silu8(a, [136 + 8 * k for k in range(4)], 4, 120)
    a.label('ft_ws')
    a(f"""
    buffer_load_dword v7, v6, s[4:7], s85 offen sc1
    s_waitcnt vmcnt(0)
    v_cmp_gt_u32 vcc, s87, v7
    s_cbranch_vccz ft_p
    s_sleep {a.fin_sleep}
    v_cmp_gt_u32 vcc, 59, v7
    s_cbranch_vccz ft_wsf
    s_sleep 64
    v_cmp_gt_u32 vcc, 56, v7
    s_cbranch_vccz ft_wsf
    s_sleep 127
    s_sleep 127
    """)
    a.label('ft_wsf')
    a(f"""
    s_sub_u32 s84, s84, 1
    s_cbranch_scc0 ft_ws
    s_mov_b32 s84, 0
    """)
    a.label('ft_p')
    a(f"""
    buffer_load_dword v7, v8, s[4:7], s79 offen offset:1008 sc1
    s_waitcnt vmcnt(0)
    v_cmp_eq_u32 vcc, -1, v7
    s_cbranch_vccz ft_l
    s_sleep {a.ft_sleep}
    s_sub_u32 s84, s84, 1
    s_cbranch_scc0 ft_p
    s_mov_b32 s84, 0
    """)
    a.label('ft_l')
    a('s_mov_b32 s86, s79')
    for g in range(8):
        a(f'buffer_load_dwordx4 {v(16+g*4,4)}, v3, s[4:7], s86 offen sc1')
        if g < 7: a(f's_add_u32 s86, s86, {4*MB}')
    a('s_waitcnt vmcnt(0)')
    a('v_max3_u32 v7, v16, v20, v24')
    a('v_max3_u32 v7, v7, v28, v32')
    a('v_max3_u32 v7, v7, v36, v40')
    a('v_max_u32 v7, v7, v44')
    a(f"""
    v_cmp_eq_u32 vcc, -1, v7
    s_cbranch_vccz ft_go
    s_sub_u32 s84, s84, 1
    s_cbranch_scc0 ft_l
    """)
    a.label('ft_go')
    combine(0)
    if a.wprof:
        import k_gemm5
        a('s_waitcnt vmcnt(0)')
        k_gemm5.prof_stamp(a, 1)
    a(f's_branch {done}')
```

```python
from asmlib import *
from layout4 import *

S_W = 3
SRD_WS = 4
SRD_B0 = 8
SRD_B1 = 12
S_A0, S_A1, S_B0, S_B1, S_BSTEP = 16, 17, 18, 19, 20
S_MA, S_MB = 21, 22
S_LEFT = 23
S_TAB = 24
S_WM, S_WN = 26, 27
S_PEND = 28
S_T0, S_T1, S_T2, S_T3 = 29, 30, 31, 56
S_ND = 32
S_CT, S_COUT, S_CSTR, S_CSIG = 48, 49, 50, 51
S_RDY = 52
S_K0, S_K1 = 54, 55
S_PF = 58
D_TYPE, D_KB0, D_KB1, D_LDB, D_B0, D_B1, D_BSZ, D_A, D_ASTR, D_NB, D_OUT, D_OSTR, D_WAIT, D_WTGT, D_SIG, D_X = range(16)
T_END, T_F, T_GLU, T_SILU, T_FH, T_ATT, T_FIN, T_FINT = 0, 1, 2, 3, 4, 5, 6, 7
S_ASTEP = 62
V_L16, V_OFFB, V_SWZ, V_GQ, V_AA, V_AAH = 1, 2, 3, 4, 5, 6
V_AW = 8
V_POLL, V_ZERO, V_ONE, V_L16B, V_FLAG = 16, 17, 18, 19, 7
V_TMP = 20
SETS = [(32, 64), (80, 112)]
ACC = 128
LDS_FLAG = 131072
GEMM_LDS = 131072 + 256

NTA = ''
NTB = ''
def acc(i, t):
    return ACC + (i * 4 + t) * 4

def emit_worker_init(a):
    a(f'''
    v_and_b32 v20, 63, v0
    v_lshlrev_b32 {v(V_L16)}, 4, v20
    v_add_u32 {v(V_L16B)}, 0x1000, {v(V_L16)}
    v_lshrrev_b32 {v(V_GQ)}, 4, v20
    v_mov_b32 {v(V_ZERO)}, 0
    v_mov_b32 {v(V_ONE)}, 1
    s_lshr_b32 {s(S_WM)}, {s(S_W)}, 2
    s_and_b32 {s(S_WN)}, {s(S_W)}, 3
    s_lshl_b32 {s(S_MA)}, {s(S_W)}, 11
    s_lshl_b32 {s(S_MB)}, {s(S_W)}, 10
    s_add_u32 {s(S_MB)}, {s(S_MB)}, 16384
    s_mov_b32 {s(SRD_B0+3)}, {SRD3}
    s_mov_b32 {s(SRD_B1+3)}, {SRD3}
    s_mov_b32 {s(S_PEND)}, 0
    ''')
    a(f'''
    v_and_b32 v21, 15, v20
    v_lshlrev_b32 v22, 2, {v(V_GQ)}
    v_xor_b32 v21, v21, v22
    s_lshr_b32 {s(S_T1)}, {s(S_W)}, 1
    s_and_b32 {s(S_T1)}, {s(S_T1)}, 1
    v_xor_b32 v21, {s(S_T1)}, v21
    v_lshlrev_b32 {v(V_SWZ)}, 4, v21
    ''')
    a(f'''
    s_lshl_b32 {s(S_T1)}, {s(S_WM)}, 13
    v_add_u32 {v(V_AA)}, {s(S_T1)}, {v(V_L16)}
    v_add_u32 {v(V_AAH)}, 0x10000, {v(V_AA)}
    ''')
    a(f'''
    v_bfe_u32 v21, v20, 2, 2          ; r
    v_and_b32 v22, 3, v20             ; c
    v_and_b32 v23, 1, {v(V_GQ)}       ; gq&1
    v_xor_b32 v24, {s(S_WN)}, v21     ; p^r
    v_xor_b32 v25, v22, v23           ; c^(gq&1)
    v_lshl_add_u32 v24, v24, 2, v25   ; unit
    v_lshlrev_b32 v24, 4, v24         ; unit*16
    v_lshl_add_u32 v25, {v(V_GQ)}, 3, v21   ; 8gq + r
    v_lshl_add_u32 v24, v25, 8, v24
    v_and_b32 v22, 1, v22             ; c&1
    ''')
    for T in range(2):
        for hh in range(2):
            d = V_AW + T * 2 + hh
            a(f'v_xor_b32 v25, {hh}, v23')
            a(f'v_lshl_add_u32 {v(d)}, v25, 10, v24')
            a(f'v_xor_b32 v25, {T}, v22')
            a(f'v_lshl_add_u32 {v(d)}, v25, 3, {v(d)}')
            a(f'v_add_u32 {v(d+4)}, 0x10000, {v(d)}')
    a(f'''
    s_lshl_b32 {s(S_T1)}, {s(S_W)}, 2
    s_add_u32 {s(S_T1)}, {s(S_T1)}, {LDS_FLAG}
    v_mov_b32 {v(V_FLAG)}, {s(S_T1)}
    ''')

def dma_group(slot):
    base = slot * 32768
    items = []
    items.append([f's_add_u32 m0, {s(S_MA)}, {base}', 's_nop 0',
                  f'buffer_load_dwordx4 {v(V_L16)}, {s(SRD_WS,4)}, {s(S_A0)} offen sc1{NTA} lds',
                  f's_add_u32 {s(S_A0)}, {s(S_A0)}, {s(S_ASTEP)}'])
    items.append([f's_add_u32 m0, {s(S_MA)}, {base+1024}', 's_nop 0',
                  f'buffer_load_dwordx4 {v(V_L16)}, {s(SRD_WS,4)}, {s(S_A1)} offen sc1{NTA} lds',
                  f's_add_u32 {s(S_A1)}, {s(S_A1)}, {s(S_ASTEP)}'])
    items.append([f's_add_u32 m0, {s(S_MB)}, {base}', 's_nop 0',
                  f'buffer_load_dwordx4 {v(V_OFFB)}, {s(SRD_B0,4)}, {s(S_B0)} offen{NTB} lds',
                  f's_add_u32 {s(S_B0)}, {s(S_B0)}, {s(S_BSTEP)}'])
    items.append([f's_add_u32 m0, {s(S_MB)}, {base+8192}', 's_nop 0',
                  f'buffer_load_dwordx4 {v(V_OFFB)}, {s(SRD_B1,4)}, {s(S_B1)} offen{NTB} lds',
                  f's_add_u32 {s(S_B1)}, {s(S_B1)}, {s(S_BSTEP)}'])
    return items

def frag_reads(slot, fset):
    av, wv = SETS[fset]
    hi = slot >> 1
    base = (slot & 1) * 32768
    items = []
    for hf in range(2):
        for T in range(2):
            t = hf * 2 + T
            for hh in range(2):
                ad = V_AW + hi * 4 + T * 2 + hh
                items.append([f'ds_read_b64_tr_b16 {v(wv+4*t+2*hh,2)}, {v(ad)} offset:{base+16384+hf*8192}'])
    for i in range(8):
        items.append([f'ds_read_b128 {v(av+4*i,4)}, {v(V_AAH if hi else V_AA)} offset:{base+i*1024}'])
    return items

def iteration(a, q, vm, zero_c=False, extra_after_barrier=None, poll=False, mt=8, full_reads=False):
    cur = q & 1
    av, wv = SETS[cur]
    a(f's_waitcnt vmcnt({vm})')
    a('s_barrier')
    if extra_after_barrier:
        extra_after_barrier()
    mf = []
    if mt == 8:
        for i in range(8):
            for t in range(4):
                c = '0' if zero_c else v(acc(i, t), 4)
                mf.append(f'v_mfma_f32_16x16x32_bf16 {v(acc(i,t),4)}, {v(wv+4*t,4)}, {v(av+4*i,4)}, {c}')
    else:
        for kc in range(2):
            for i in range(4):
                for T in range(2):
                    c = '0' if (zero_c and kc == 0) else v(acc(i, T), 4)
                    mf.append(f'v_mfma_f32_16x16x32_bf16 {v(acc(i,T),4)}, {v(wv+4*(2*kc+T),4)}, {v(av+4*(2*i+kc),4)}, {c}')
    reads = frag_reads((q + 1) & 3, cur ^ 1)
    dmas = dma_group(q)
    if poll:
        dmas = dmas + [[f'buffer_load_dword {v(V_POLL)}, {v(V_ZERO)}, {s(SRD_WS,4)}, {s(S_ND+D_WAIT)} offen sc1']]
    seq = []
    ri = 0; di = 0
    if mt == 4:
        for d in dmas[:4]: seq.extend(d)
        di = 4
    for k, m in enumerate(mf):
        seq.append(m)
        if ri < len(reads):
            seq.extend(reads[ri]); ri += 1
        elif k >= 17 and (k - 17) % 3 == 0 and di < len(dmas):
            seq.extend(dmas[di]); di += 1

    while di < len(dmas):
        seq.extend(dmas[di]); di += 1
    for ln in seq:
        a(ln)
    a('s_waitcnt lgkmcnt(0)')

def emit_loader_setup(a):
    a(f'''
    s_load_dwordx2 {s(SRD_B0,2)}, s[0:1], {s(S_ND+D_KB0)}
    s_load_dwordx2 {s(SRD_B1,2)}, s[0:1], {s(S_ND+D_KB1)}
    s_mov_b32 {s(SRD_B0+2)}, {s(S_ND+D_BSZ)}
    s_mov_b32 {s(SRD_B1+2)}, {s(S_ND+D_BSZ)}
    s_cmp_eq_u32 {s(S_ND+D_TYPE)}, {T_FH}
    s_cselect_b32 {s(S_T2)}, 0, 1
    s_lshl_b32 {s(S_T1)}, {s(S_W)}, {s(S_T2)}
    s_mul_i32 {s(S_T1)}, {s(S_T1)}, {s(S_ND+D_ASTR)}
    s_add_u32 {s(S_A0)}, {s(S_ND+D_A)}, {s(S_T1)}
    s_cmp_eq_u32 {s(S_ND+D_TYPE)}, {T_FH}
    s_cselect_b32 {s(S_T1)}, 1024, {s(S_ND+D_ASTR)}
    s_cselect_b32 {s(S_T2)}, 6, 5
    s_lshl_b32 {s(S_ASTEP)}, 32, {s(S_T2)}
    s_add_u32 {s(S_A1)}, {s(S_A0)}, {s(S_T1)}
    s_lshl_b32 {s(S_T1)}, {s(S_W)}, 2
    s_mul_i32 {s(S_T1)}, {s(S_T1)}, {s(S_ND+D_LDB)}
    s_add_u32 {s(S_B0)}, {s(S_ND+D_B0)}, {s(S_T1)}
    s_add_u32 {s(S_B1)}, {s(S_ND+D_B1)}, {s(S_T1)}
    s_lshl_b32 {s(S_BSTEP)}, {s(S_ND+D_LDB)}, {s(S_T2)}
    v_mul_u32_u24 {v(V_OFFB)}, {s(S_ND+D_LDB)}, {v(V_GQ)}
    v_add_u32 {v(V_OFFB)}, {v(V_OFFB)}, {v(V_SWZ)}
    s_waitcnt lgkmcnt(0)
    ''')

def prof_stamp(a, mark=0):
    if not getattr(a, 'wprof', False): return
    a(f'''
    s_memrealtime s[60:61]
    s_memtime s[92:93]
    s_waitcnt lgkmcnt(0)
    s_andn2_b32 s60, s60, 1
    s_or_b32 s60, s60, {mark}
    v_mov_b32 v21, s60
    v_mov_b32 v22, s92
    s_add_u32 s92, {s(S_PF)}, {MB}
    s_mov_b64 exec, 1
    buffer_store_dword v21, off, {s(SRD_WS,4)}, {s(S_PF)}
    buffer_store_dword v22, off, {s(SRD_WS,4)}, s92
    s_mov_b64 exec, -1
    s_add_u32 {s(S_PF)}, {s(S_PF)}, 4
    ''')

def emit_adopt(a, with_load=True):
    prof_stamp(a)
    a(f'''
    s_mov_b32 {s(S_CT)}, {s(S_ND+D_TYPE)}
    s_cmp_eq_u32 {s(S_ND+D_TYPE)}, {T_FH}
    s_cselect_b32 {s(S_T1)}, 2, 3
    s_lshl_b32 {s(S_T1)}, {s(S_WM)}, {s(S_T1)}
    s_mul_i32 {s(S_T1)}, {s(S_T1)}, {s(S_ND+D_OSTR)}
    s_add_u32 {s(S_COUT)}, {s(S_ND+D_OUT)}, {s(S_T1)}
    s_mov_b32 {s(S_CSTR)}, {s(S_ND+D_OSTR)}
    s_mov_b32 {s(S_CSIG)}, {s(S_ND+D_SIG)}
    s_mov_b32 {s(S_LEFT)}, {s(S_ND+D_NB)}
    s_mov_b32 s53, {s(S_ND+D_X)}
    s_nop 0
    s_load_dwordx16 {s(S_ND,16)}, {s(S_TAB,2)}, 0
    s_add_u32 {s(S_TAB)}, {s(S_TAB)}, 64
    s_addc_u32 {s(S_TAB+1)}, {s(S_TAB+1)}, 0
    ''')

def emit_signal(a, sreg):
    l = a.uid('sig')
    a(f'''
    s_cmp_eq_u32 {s(sreg)}, 0
    s_cbranch_scc1 {l}
    s_cmp_lg_u32 {s(S_W)}, 0
    s_cbranch_scc1 {l}
    s_and_b32 s57, {s(sreg)}, 3
    v_mov_b32 v24, s57
    s_bfe_u32 s57, {s(sreg)}, 0x20002
    v_mov_b32 v25, s57
    s_andn2_b32 {s(sreg)}, {s(sreg)}, 15
    s_mov_b64 exec, 1
    buffer_atomic_add_x2 v[24:25], {v(V_ZERO)}, {s(SRD_WS,4)}, {s(sreg)} offen sc1
    s_mov_b64 exec, -1
    ''')
    a.label(l)
    a(f's_mov_b32 {s(sreg)}, 0')

def first_body(a, nst, mt=8, sq=3):
    for q in range(4):
        vm = min(8 + nst, 63) if q < sq else (4 * q if q == sq and q < 2 else 8)
        iteration(a, q, vm, zero_c=(q == 0), mt=mt,
                  extra_after_barrier=(lambda: emit_signal(a, S_PEND)) if q == sq else None)

EPI_TMP = 80

def epi_F(a, silu=False, mt=8):
    a(f's_lshl_b32 {s(S_T1)}, {s(S_WN)}, 10')
    a(f's_add_u32 {s(S_T1)}, {s(S_T1)}, {s(S_COUT)}')
    if silu:
        a(f's_mov_b32 {s(S_K0)}, 0xbfb8aa3b')
    a('s_nop 7')
    n = 0
    for i in range(mt):
        for hf in range(2 if mt == 8 else 1):
            tq = EPI_TMP + 4 * (n % 4); n += 1
            src = acc(i, 2 * hf)
            if silu:
                w = EPI_TMP + 16 + 8 * (n % 2)
                for d in range(4):
                    a(f'v_cvt_pk_bf16_f32 {v(tq+d)}, {v(src+2*d)}, {v(src+2*d+1)}')
                for d in range(4):
                    a(f'v_lshlrev_b32 {v(src+2*d)}, 16, {v(tq+d)}')
                    a(f'v_and_b32 {v(src+2*d+1)}, 0xffff0000, {v(tq+d)}')
                for e in range(8):
                    a(f'v_mul_f32 {v(w+e)}, {s(S_K0)}, {v(src+e)}')
                for e in range(8):
                    a(f'v_exp_f32 {v(w+e)}, {v(w+e)}')
                for e in range(8):
                    a(f'v_add_f32 {v(w+e)}, 1.0, {v(w+e)}')
                for e in range(8):
                    a(f'v_rcp_f32 {v(w+e)}, {v(w+e)}')
                for e in range(8):
                    a(f'v_mul_f32 {v(src+e)}, {v(src+e)}, {v(w+e)}')
            for d in range(4):
                a(f'v_cvt_pk_bf16_f32 {v(tq+d)}, {v(src+2*d)}, {v(src+2*d+1)}')
            a(f'buffer_store_dwordx4 {v(tq,4)}, {v(V_L16B if hf else V_L16)}, {s(SRD_WS,4)}, {s(S_T1)} offen sc1')
        if i < 7:
            a(f's_add_u32 {s(S_T1)}, {s(S_T1)}, {s(S_CSTR)}')
    return 16 if mt == 8 else 4

def epi_GLU(a):
    a(f's_lshl_b32 {s(S_T1)}, {s(S_WN)}, 10')
    a(f's_add_u32 {s(S_T1)}, {s(S_T1)}, {s(S_COUT)}')
    a(f's_mov_b32 {s(S_K0)}, 0xbfb8aa3b')
    a('s_nop 7')
    for i in range(8):
        tq = EPI_TMP + 4 * (i % 4)
        w = EPI_TMP + 16 + 8 * (i % 2)
        g = acc(i, 0); u = acc(i, 2)
        for d in range(4):
            a(f'v_cvt_pk_bf16_f32 {v(tq+d)}, {v(g+2*d)}, {v(g+2*d+1)}')
        for d in range(4):
            a(f'v_lshlrev_b32 {v(w+2*d)}, 16, {v(tq+d)}')
            a(f'v_and_b32 {v(w+2*d+1)}, 0xffff0000, {v(tq+d)}')
        for e in range(8):
            a(f'v_mul_f32 {v(w+e)}, {s(S_K0)}, {v(w+e)}')
        for e in range(8):
            a(f'v_exp_f32 {v(w+e)}, {v(w+e)}')
        for e in range(8):
            a(f'v_add_f32 {v(w+e)}, 1.0, {v(w+e)}')
        for e in range(8):
            a(f'v_rcp_f32 {v(w+e)}, {v(w+e)}')
        for e in range(8):
            a(f'v_mul_f32 {v(w+e)}, {v(w+e)}, {v(u+e)}')
        for d in range(4):
            a(f'v_cvt_pk_bf16_f32 {v(tq+d)}, {v(w+2*d)}, {v(w+2*d+1)}')
        a(f'buffer_store_dwordx4 {v(tq,4)}, {v(V_L16)}, {s(SRD_WS,4)}, {s(S_T1)} offen sc1')
        if i < 7:
            a(f's_add_u32 {s(S_T1)}, {s(S_T1)}, {s(S_CSTR)}')
    return 8

def emit_worker(a, table_label, jobs_per_worker, done_label):
    emit_worker_init(a)
    if getattr(a, 'wprof', False):
        a(f's_lshl_b32 {s(S_PF)}, {s(S_T0)}, 3')
        a(f's_add_u32 {s(S_PF)}, {s(S_PF)}, {s(S_W)}')
        a(f's_lshl_b32 {s(S_PF)}, {s(S_PF)}, 7')
        a(f's_add_u32 {s(S_PF)}, {s(S_PF)}, {WS_YP + 8*MB}')
        prof_stamp(a)
    a(f'''
    s_getpc_b64 {s(S_TAB,2)}
    s_add_u32 {s(S_TAB)}, {s(S_TAB)}, {table_label}@rel32@lo+4
    s_addc_u32 {s(S_TAB+1)}, {s(S_TAB+1)}, {table_label}@rel32@hi+12
    s_mul_i32 {s(S_T1)}, {s(S_T0)}, {jobs_per_worker*64}
    s_add_u32 {s(S_TAB)}, {s(S_TAB)}, {s(S_T1)}
    s_addc_u32 {s(S_TAB+1)}, {s(S_TAB+1)}, 0
    s_load_dwordx16 {s(S_ND,16)}, {s(S_TAB,2)}, 0
    s_add_u32 {s(S_TAB)}, {s(S_TAB)}, 64
    s_addc_u32 {s(S_TAB+1)}, {s(S_TAB+1)}, 0
    s_waitcnt lgkmcnt(0)
    ''')
    bpre = getattr(a, 'bpre', 0)
    if bpre:
        a(f's_cmp_lg_u32 {s(S_ND+D_TYPE)}, {T_FH}')
        a('s_cbranch_scc1 w_nopre')
        emit_loader_setup(a)
        for q in range(bpre):
            for it in dma_group(q)[2:]:
                for ln in it: a(ln)
        a.pre_cold('p')
        for q in range(4):
            for it in (dma_group(q)[:2] if q < bpre else dma_group(q)):
                for ln in it: a(ln)
        a('s_branch w_adopt')
        a.label('w_nopre')
    if getattr(a, 'pre_cold', None): a.pre_cold()
    a.label('w_cold')
    a(f'''
    s_cmp_eq_u32 {s(S_ND+D_TYPE)}, {T_END}
    s_cbranch_scc1 {done_label}
    s_cmp_ge_u32 {s(S_ND+D_TYPE)}, {T_FIN}
    s_cbranch_scc1 w_fin
    ''')
    a(f's_cmp_lg_u32 {s(S_W)}, 0')
    a('s_cbranch_scc1 w_depok')
    if getattr(a, 'nodep', 0):
        a(f's_cmp_eq_u32 {s(S_ND+D_WTGT)}, 0')
        a('s_cbranch_scc1 w_depok')
    a(f's_mov_b32 {s(S_T2)}, 0x40000')
    a.label('w_waitdep')
    a(f'''
    buffer_load_dword {v(V_POLL)}, {v(V_ZERO)}, {s(SRD_WS,4)}, {s(S_ND+D_WAIT)} offen sc1
    s_waitcnt vmcnt(0)
    v_readfirstlane_b32 {s(S_T1)}, {v(V_POLL)}
    s_cmp_ge_u32 {s(S_T1)}, {s(S_ND+D_WTGT)}
    s_cbranch_scc1 w_depok
    s_sleep 16
    s_sub_u32 {s(S_T2)}, {s(S_T2)}, 1
    s_cbranch_scc0 w_waitdep
    ''')
    a.label('w_depok')
    if getattr(a, 'dbgt', False):
        a('s_mov_b32 s96, s94')
        a('s_memrealtime s[94:95]')
    a(f's_cmp_eq_u32 {s(S_ND+D_TYPE)}, {T_ATT}')
    a('s_cbranch_scc1 w_att')
    emit_loader_setup(a)
    a('s_barrier')
    for q in range(4):
        for it in dma_group(q):
            for ln in it:
                a(ln)
    a.label('w_adopt')
    emit_adopt(a)
    a('s_waitcnt vmcnt(0)')
    a('s_barrier')
    for it in frag_reads(0, 0):
        for ln in it:
            a(ln)
    a('s_waitcnt lgkmcnt(0)')
    a(f's_cmp_eq_u32 {s(S_CT)}, {T_FH}')
    a('s_cbranch_scc1 w_firstH')
    a('s_branch w_first16')
    for nst in (4, 8, 16):
        a.label(f'w_first{nst}')
        first_body(a, nst, sq=getattr(a, 'fsq', 3))
        if nst != 16:
            a('s_branch w_loop_chk')
    def loop(sfx, mt):
        a.label('w_loop_chk' + sfx)
        a(f's_sub_u32 {s(S_LEFT)}, {s(S_LEFT)}, 1')
        a.label('w_loop' + sfx)
        a(f'''
        s_cmp_lg_u32 {s(S_LEFT)}, 1
        s_cbranch_scc1 w_body{sfx}
        ''')
        hh = sfx == 'H' and getattr(a, 'hh', 0)
        if hh:
            a('v_readfirstlane_b32 s68, v22')
            a('s_cmp_ge_u32 s68, 128')
            a('s_cselect_b32 s70, 0, s70')
        a(f'''
        {'buffer_load_dword v22, off, s[64:67], 0 sc1' if sfx == 'H' and not hh else ''}
        v_readfirstlane_b32 {s(S_T1)}, {v(V_POLL)}
        s_cmp_ge_u32 {s(S_T1)}, {s(S_ND+D_WTGT)}
        s_cselect_b32 {s(S_T1)}, 0, 1
        s_or_b32 {s(S_T1)}, {s(S_T1)}, s70
        s_cmp_eq_u32 {s(S_ND+D_TYPE)}, {T_END if hh else T_FH}
        s_cselect_b32 {s(S_T1)}, 1, {s(S_T1)}
        s_sub_u32 s57, {s(S_ND+D_TYPE)}, 1
        s_cmp_ge_u32 s57, 4
        s_cselect_b32 {s(S_T1)}, 1, {s(S_T1)}
        v_mov_b32 v20, {s(S_T1)}
        ds_write_b32 {v(V_FLAG)}, v20
        s_cbranch_scc1 w_body{sfx}
        ''')
        emit_loader_setup(a)
        a.label('w_body' + sfx)
        if hh: a('buffer_load_dword v22, off, s[64:67], 0 sc1')
        for q in range(4):
            iteration(a, q, 8, poll=(q == 0), mt=mt, full_reads=(q == 3))
        a(f'''
        s_sub_u32 {s(S_LEFT)}, {s(S_LEFT)}, 1
        s_cmp_lg_u32 {s(S_LEFT)}, 0
        s_cbranch_scc1 w_loop{sfx}
        ''')
    loop('', 8)
    a(f'''
    v_mov_b32 v20, {LDS_FLAG}
    ds_read_b128 v[24:27], v20
    ds_read_b128 v[28:31], v20 offset:16
    s_cmp_eq_u32 {s(S_CT)}, {T_GLU}
    s_cbranch_scc1 w_epi_glu
    ''')
    def tail(nst, h=False):
        a(f'''
        s_waitcnt lgkmcnt(0)
        v_or3_b32 v24, v24, v25, v26
        v_or3_b32 v28, v28, v29, v30
        v_or3_b32 v24, v24, v27, v31
        v_or_b32 v24, v24, v28
        s_mov_b32 {s(S_PEND)}, {s(S_CSIG)}
        v_readfirstlane_b32 {s(S_T1)}, v24
        s_cmp_lg_u32 {s(S_T1)}, 0
        s_cbranch_scc1 w_drain
        ''')
        emit_adopt(a)
        if h and getattr(a, 'hh', 0):
            a(f's_cmp_eq_u32 {s(S_CT)}, {T_FH}')
            a('s_cbranch_scc1 w_firstH4')
        a(f's_branch w_first{nst}')
    tail(epi_F(a))
    a.label('w_epi_glu')
    tail(epi_GLU(a))
    if getattr(a, 'hh', 0):
        a.label('w_firstH4')
        first_body(a, 4, mt=4, sq=a.hh)
        a('s_branch w_loop_chkH')
    a.label('w_firstH')
    for q in range(4):
        iteration(a, q, 8, zero_c=(q == 0), mt=4)
    loop('H', 4)
    a(f'''
    v_mov_b32 v20, {LDS_FLAG}
    ds_read_b128 v[24:27], v20
    ds_read_b128 v[28:31], v20 offset:16
    ''')
    tail(epi_F(a, mt=4), True)
    a.label('w_drain')
    a('s_waitcnt vmcnt(0)')
    a('s_barrier')
    if getattr(a, 'drain_hook', None): a.drain_hook()
    emit_signal(a, S_PEND)
    prof_stamp(a, 1)
    a('s_branch w_cold')
    a.label('w_att')
    a(f's_cmp_lg_u32 {s(S_W)}, 0')
    a('s_cbranch_scc1 w_att_go')
    a(f's_mov_b32 {s(S_T2)}, 0x40000')
    a.label('w_att_w')
    a(f'''
    buffer_load_dwordx2 v[20:21], off, {s(SRD_WS,4)}, {s(S_ND+D_KB0)} sc1
    s_waitcnt vmcnt(0)
    v_add_u32 v20, v20, v21
    s_nop 0
    v_readfirstlane_b32 {s(S_T1)}, v20
    s_cmp_ge_u32 {s(S_T1)}, 8
    s_cbranch_scc1 w_att_go
    s_sleep 16
    s_sub_u32 {s(S_T2)}, {s(S_T2)}, 1
    s_cbranch_scc0 w_att_w
    ''')
    a.label('w_att_go')
    a('s_barrier')
    prof_stamp(a)
    import k_att
    k_att.emit_att(a, S_ND + D_A, S_ND + D_B0, S_W)
    a(f'''
    s_mov_b32 {s(S_PEND)}, {s(S_ND+D_SIG)}
    s_nop 0
    s_load_dwordx16 {s(S_ND,16)}, {s(S_TAB,2)}, 0
    s_add_u32 {s(S_TAB)}, {s(S_TAB)}, 64
    s_addc_u32 {s(S_TAB+1)}, {s(S_TAB+1)}, 0
    s_waitcnt lgkmcnt(0)
    s_branch w_drain
    ''')
    a.label('w_fin')
    prof_stamp(a)
    a.fin_hook(S_ND + D_TYPE, S_ND + D_A, S_ND + D_B0, T_FINT, 'w_fin_done')
    a.label('w_fin_done')
    a(f'''
    s_load_dwordx16 {s(S_ND,16)}, {s(S_TAB,2)}, 0
    s_add_u32 {s(S_TAB)}, {s(S_TAB)}, 64
    s_addc_u32 {s(S_TAB+1)}, {s(S_TAB+1)}, 0
    s_waitcnt lgkmcnt(0)
    s_sub_u32 s57, {s(S_ND+D_TYPE)}, 1
    s_cmp_ge_u32 s57, 5
    s_cbranch_scc1 w_cold
    ''')
    emit_worker_init(a)
    a('s_branch w_cold')

def job(type, kb0, kb1, ldb, b0, b1, bsz, aoff, astr, nb, out, ostr, wait=0, wtgt=0, sig=0):
    return [type, kb0, kb1, ldb, b0, b1, bsz, aoff, astr, nb, out, ostr, wait, wtgt, sig, 0]

def job_qkv(mat, mb, nt, sig=0):
    ka = [KA_WQ, KA_WK, KA_WV][mat]; o = [WS_QS, WS_KS, WS_VS][mat]
    return job(T_F, ka, ka, 8192, nt * 512, nt * 512 + 256, 8 * MB, WS_XN + mb * 16 * 32 * 1024, 32 * 1024, 8,
               o + (mb * 16 * 128 + nt * 8) * 1024, 128 * 1024, sig=sig)

def job_qkv_half(mat, hb, nt, sig=0):
    ka = [KA_WQ, KA_WK, KA_WV][mat]; o = [WS_QS, WS_KS, WS_VS][mat]
    return job(T_FH, ka, ka, 8192, nt * 256, nt * 256 + 32 * 8192, 8 * MB, WS_XN + hb * 8 * 32 * 1024, 32 * 1024, 4,
               o + (hb * 8 * 128 + nt * 4) * 1024, 128 * 1024, sig=sig)

def job_glu(mb, ft, sig=0):
    return job(T_GLU, KA_WG, KA_WU, 7168, ft * 256, ft * 256, 7 * MB, WS_XN + mb * 16 * 32 * 1024, 32 * 1024, 8,
               WS_HH + (mb * 16 * 112 + ft * 4) * 1024, 112 * 1024, sig=sig)

def job_down_h(mb, nt, kh, wait=0, wtgt=0, sig=0):
    return job(T_F, KA_WD, KA_WD, 2048, nt * 512 + kh * 896 * 2048, nt * 512 + 256 + kh * 896 * 2048, 7 * MB,
               WS_HH + (mb * 16 * 112 + kh * 28) * 1024, 112 * 1024, 7,
               WS_GG + kh * 4 * MB + (mb * 16 * 32 + nt * 8) * 1024, 32 * 1024, wait=wait, wtgt=wtgt, sig=sig)

def job_att(hb, hg, wait, wtgt, sig, wq):
    return job(T_ATT, wq, 0, 0, 4 * hg, 0, 0, 4 * hb, 0, 0, 0, 0, wait=wait, wtgt=wtgt, sig=sig)

def job_wo(mb, nt, kq, wait=0, wtgt=0, sig=0):
    return job(T_F, KA_WO, KA_WO, 2048, nt * 512 + kq * 1024 * 2048, nt * 512 + 256 + kq * 1024 * 2048, 8 * MB,
               WS_OO + (mb * 16 * 128 + kq * 32) * 1024, 128 * 1024, 8,
               WS_SP + kq * 4 * MB + (mb * 16 * 32 + nt * 8) * 1024, 32 * 1024, wait=wait, wtgt=wtgt, sig=sig)

def job_fin(seg, quarter, tail=False):
    return job(T_FINT if tail else T_FIN, 0, 0, 0, quarter, 0, 0, seg, 0, 0, 0, 0)

END_JOB = [0] * 16

def emit_table(a, label, lists, per):
    a.raw('.p2align 6')
    a.label(label)
    for l in lists:
        assert len(l) < per
        l = l + [END_JOB] * (per - len(l))
        for j in l:
            a.raw('    .long ' + ', '.join(str(x) for x in j))

def emit_touch_first(a, table_label, jobs_per_worker, swk):
    l = a.uid('tch')
    a(f'''
    s_getpc_b64 {s(S_TAB,2)}
    s_add_u32 {s(S_TAB)}, {s(S_TAB)}, {table_label}@rel32@lo+4
    s_addc_u32 {s(S_TAB+1)}, {s(S_TAB+1)}, {table_label}@rel32@hi+12
    s_mul_i32 {s(S_T1)}, {s(swk)}, {jobs_per_worker*64}
    s_add_u32 {s(S_TAB)}, {s(S_TAB)}, {s(S_T1)}
    s_addc_u32 {s(S_TAB+1)}, {s(S_TAB+1)}, 0
    s_load_dwordx16 {s(S_ND,16)}, {s(S_TAB,2)}, 0
    s_mov_b32 {s(SRD_B0+3)}, {SRD3}
    s_waitcnt lgkmcnt(0)
    s_cmp_eq_u32 {s(S_ND+D_TYPE)}, {T_END}
    s_cbranch_scc1 {l}
    s_load_dwordx2 {s(SRD_B0,2)}, s[0:1], {s(S_ND+D_KB0)}
    s_mov_b32 {s(SRD_B0+2)}, {s(S_ND+D_BSZ)}
    v_bfe_u32 v20, v0, 2, 6
    v_mul_u32_u24 v20, {s(S_ND+D_LDB)}, v20
    v_and_b32 v21, 3, v0
    v_lshl_add_u32 v20, v21, 6, v20
    s_lshl_b32 {s(S_T1)}, {s(S_ND+D_LDB)}, 6
    s_mov_b32 {s(S_T2)}, {s(S_ND+D_B0)}
    s_waitcnt lgkmcnt(0)
    ''')
    for j in range(16):
        a(f'buffer_load_dword v22, v20, {s(SRD_B0,4)}, {s(S_T2)} offen')
        a(f's_add_u32 {s(S_T2)}, {s(S_T2)}, {s(S_T1)}')
    a.label(l)

def emit_tlb_touch(a, table_label, jobs_per_worker, swk):
    l = a.uid('tlb')
    a(f'''
    s_getpc_b64 {s(S_TAB,2)}
    s_add_u32 {s(S_TAB)}, {s(S_TAB)}, {table_label}@rel32@lo+4
    s_addc_u32 {s(S_TAB+1)}, {s(S_TAB+1)}, {table_label}@rel32@hi+12
    s_mul_i32 {s(S_T1)}, {s(swk)}, {jobs_per_worker*64}
    s_add_u32 {s(S_TAB)}, {s(S_TAB)}, {s(S_T1)}
    s_addc_u32 {s(S_TAB+1)}, {s(S_TAB+1)}, 0
    s_load_dwordx16 {s(S_ND,16)}, {s(S_TAB,2)}, 0
    s_mov_b32 {s(SRD_B0+3)}, {SRD3}
    v_and_b32 v20, 63, v0
    s_waitcnt lgkmcnt(0)
    s_load_dwordx2 {s(SRD_B0,2)}, s[0:1], {s(S_ND+D_KB0)}
    s_mov_b32 {s(SRD_B0+2)}, {s(S_ND+D_BSZ)}
    s_lshl_b32 {s(S_T1)}, {s(S_ND+D_LDB)}, 4
    v_mul_lo_u32 v21, {s(S_T1)}, v20
    v_and_b32 v22, 15, v20
    v_mul_lo_u32 v22, {s(S_ND+D_OSTR)}, v22
    s_waitcnt lgkmcnt(0)
    s_cmp_eq_u32 s3, 4
    s_cbranch_scc0 {l}_1
    buffer_load_dword v23, v21, {s(SRD_B0,4)}, {s(S_ND+D_B0)} offen
    s_branch {l}
    ''')
    a.label(l + '_1')
    a(f'''
    s_cmp_eq_u32 s3, 5
    s_cbranch_scc0 {l}
    buffer_load_dword v23, v22, {s(SRD_WS,4)}, {s(S_ND+D_OUT)} offen
    buffer_load_dword v23, off, {s(SRD_WS,4)}, {s(S_ND+D_SIG)}
    ''')
    a.label(l)
    if getattr(a, 'ctouch', 0) >= 2:
        a('s_cmp_eq_u32 s3, 6')
        a(f's_cbranch_scc0 {l}_7')
        code_touch(a, 'ln_sig', 18, 68, 70)
        code_touch(a, 'w_firstH', 30, 68, 70)
        a.label(l + '_7')
        a('s_cmp_eq_u32 s3, 7')
        a(f's_cbranch_scc0 {l}_8')
        code_touch(a, 'w_first16', 60, 68, 70)
        a.label(l + '_8')
        a('s_waitcnt lgkmcnt(0)')
```

```python
from asmlib import *
from layout import *

def red_gq(a, vs, vt, op='v_add_f32'):
    a(f'v_mov_b32 {v(vt)}, {v(vs)}')
    a('s_nop 1')
    a(f'v_permlane16_swap_b32 {v(vt)}, {v(vs)}')
    a(f'{op} {v(vs)}, {v(vs)}, {v(vt)}')
    a(f'v_mov_b32 {v(vt)}, {v(vs)}')
    a('s_nop 1')
    a(f'v_permlane32_swap_b32 {v(vt)}, {v(vs)}')
    a(f'{op} {v(vs)}, {v(vs)}, {v(vt)}')

def rnd_bf16(a, vd, vs):
    a(f'v_cvt_pk_bf16_f32 {v(vd)}, {v(vs)}, {v(vs)}')
    a(f'v_lshlrev_b32 {v(vd)}, 16, {v(vd)}')

def emit_warm(a, mats):
    a('v_lshlrev_b32 v132, 4, v0')
    a('s_lshl_b32 s28, s2, 15')
    a(f's_mov_b32 s27, {SRD3}')
    for ka, size in mats:
        a(f's_load_dwordx2 s[24:25], s[0:1], {ka}')
        a(f's_mov_b32 s26, {size}')
        a('s_mov_b32 s29, s28')
        a('s_waitcnt lgkmcnt(0)')
        for j in range(4):
            a(f'buffer_load_dwordx4 v[128:131], v132, s[24:27], s29 offen')
            a('s_add_u32 s29, s29, 8192')

def emit_prep(a, name, fill_bytes, warm=()):
    a.raw(f'.p2align 8\n.type {name},@function')
    a.label(name)
    a(f'''
    s_cmp_ge_u32 s2, 256
    s_cbranch_scc1 {name}_end
    s_load_dwordx2 s[4:5], s[0:1], {KA_WS}
    s_load_dwordx2 s[8:9], s[0:1], {KA_X}
    v_and_b32 v1, 63, v0
    v_lshrrev_b32 v2, 6, v0
    s_mov_b32 s6, {WS_SIZE}
    s_mov_b32 s7, {SRD3}
    v_readfirstlane_b32 s3, v2
    s_mov_b32 s10, {4*MB}
    s_mov_b32 s11, {SRD3}
    s_waitcnt lgkmcnt(0)
    s_cmp_ge_u32 s2, 128
    s_cbranch_scc1 {name}_fill
    v_and_b32 v3, 15, v1
    v_lshrrev_b32 v4, 4, v1
    v_lshlrev_b32 v5, 11, v3
    v_lshl_add_u32 v5, v4, 4, v5
    s_lshl_b32 s12, s2, 15
    s_lshl_b32 s13, s3, 8
    s_add_u32 s12, s12, s13
    ''')
    for j in range(4):
        a(f'buffer_load_dwordx4 {v(16+4*j,4)}, v5, s[8:11], s12 offen offset:{64*j}')
    emit_warm(a, warm)
    a(f'''
    v_lshlrev_b32 v6, 5, v3
    s_lshl_b32 s14, s3, 2
    v_add_u32 v7, s14, v6
    v_lshlrev_b32 v8, 4, v1
    s_lshl_b32 s15, s2, 15
    s_lshl_b32 s16, s3, 12
    s_add_u32 s15, s15, s16
    v_and_b32 v9, 1, v4
    v_cmp_eq_u32 s[20:21], 1, v9
    s_waitcnt vmcnt({4*len(warm)})
    ''')
    F = 32
    for d in range(16):
        a(f'v_lshlrev_b32 {v(F+2*d)}, 16, {v(16+d)}')
        a(f'v_and_b32 {v(F+2*d+1)}, 0xffff0000, {v(16+d)}')
    for i in range(16):
        a(f'v_add_f32 {v(64+i)}, {v(F+i)}, {v(F+16+i)}')
    n = 16
    while n > 1:
        n //= 2
        for i in range(n):
            a(f'v_add_f32 {v(64+i)}, {v(64+i)}, {v(64+n+i)}')
    red_gq(a, 64, 65)
    a('''
    ds_write_b32 v7, v64
    s_waitcnt lgkmcnt(0)
    s_barrier
    ds_read_b128 v[64:67], v6
    ds_read_b128 v[68:71], v6 offset:16
    s_waitcnt lgkmcnt(0)
    ''')
    n = 8
    while n > 1:
        n //= 2
        for i in range(n):
            a(f'v_add_f32 {v(64+i)}, {v(64+i)}, {v(64+n+i)}')
    a('v_mul_f32 v10, 0x3a800000, v64')
    for i in range(16):
        a(f'v_sub_f32 {v(96+i)}, {v(F+i)}, v10')
        a(f'v_sub_f32 {v(112+i)}, {v(F+16+i)}, v10')
    for i in range(16):
        a(f'v_mul_f32 {v(64+i)}, {v(96+i)}, {v(96+i)}')
        a(f'v_fmac_f32 {v(64+i)}, {v(112+i)}, {v(112+i)}')
    n = 16
    while n > 1:
        n //= 2
        for i in range(n):
            a(f'v_add_f32 {v(64+i)}, {v(64+i)}, {v(64+n+i)}')
    red_gq(a, 64, 65)
    a('''
    ds_write_b32 v7, v64 offset:512
    s_waitcnt lgkmcnt(0)
    s_barrier
    ds_read_b128 v[64:67], v6 offset:512
    ds_read_b128 v[68:71], v6 offset:528
    s_waitcnt lgkmcnt(0)
    ''')
    n = 8
    while n > 1:
        n //= 2
        for i in range(n):
            a(f'v_add_f32 {v(64+i)}, {v(64+i)}, {v(64+n+i)}')
    a('v_mul_f32 v11, 0x3a800000, v64')
    rnd_bf16(a, 10, 10)
    rnd_bf16(a, 11, 11)
    a('v_add_f32 v11, 0x3727c5ac, v11')
    rnd_bf16(a, 11, 11)
    a('v_sqrt_f32 v11, v11')
    a('s_nop 0')
    rnd_bf16(a, 11, 11)
    a('v_rcp_f32 v11, v11')
    a('s_nop 0')
    for d in range(16):
        a(f'v_sub_f32 {v(F+2*d)}, {v(F+2*d)}, v10')
        a(f'v_sub_f32 {v(F+2*d+1)}, {v(F+2*d+1)}, v10')
        a(f'v_cvt_pk_bf16_f32 {v(16+d)}, {v(F+2*d)}, {v(F+2*d+1)}')
        a(f'v_lshlrev_b32 {v(F+2*d)}, 16, {v(16+d)}')
        a(f'v_and_b32 {v(F+2*d+1)}, 0xffff0000, {v(16+d)}')
        a(f'v_mul_f32 {v(F+2*d)}, {v(F+2*d)}, v11')
        a(f'v_mul_f32 {v(F+2*d+1)}, {v(F+2*d+1)}, v11')
        a(f'v_cvt_pk_bf16_f32 {v(16+d)}, {v(F+2*d)}, {v(F+2*d+1)}')
    for j in range(4):
        b = 16 + 4 * j
        o = 64 + 4 * j
        a(f'v_cndmask_b32 {v(o)}, {v(b)}, {v(b+2)}, s[20:21]')
        a(f'v_cndmask_b32 {v(o+1)}, {v(b+1)}, {v(b+3)}, s[20:21]')
        a(f'v_cndmask_b32 {v(o+2)}, {v(b+2)}, {v(b)}, s[20:21]')
        a(f'v_cndmask_b32 {v(o+3)}, {v(b+3)}, {v(b+1)}, s[20:21]')
        a(f'buffer_store_dwordx4 {v(o,4)}, v8, s[4:7], s15 offen offset:{1024*j}')
    a('s_waitcnt vmcnt(0)')
    a('s_endpgm')
    a.label(f'{name}_fill')
    per = fill_bytes // 128
    assert per % 8192 == 0
    a(f'''
    s_sub_u32 s12, s2, 128
    s_mul_i32 s13, s12, {per}
    s_add_u32 s13, s13, {WS_EX}
    v_lshlrev_b32 v5, 4, v0
    v_mov_b32 v8, -1
    v_mov_b32 v9, -1
    v_mov_b32 v10, -1
    v_mov_b32 v11, -1
    v_mov_b32 v12, 0
    v_mov_b32 v13, 0
    v_mov_b32 v14, 0
    v_mov_b32 v15, 0
    ''')
    for j in range(per // 8192):
        a(f'buffer_store_dwordx4 v[8:11], v5, s[4:7], s13 offen')
        a(f's_add_u32 s13, s13, 8192')
    emit_warm(a, warm)
    a(f'''
    s_waitcnt vmcnt(0)
    s_cmp_lg_u32 s12, 0
    s_cbranch_scc1 {name}_end
    s_mov_b32 s13, {WS_CNT}
    buffer_store_dwordx4 v[12:15], v5, s[4:7], s13 offen
    ''')
    a.label(f'{name}_end')
    a('s_endpgm')
```

```python
MB = 1 << 20
NAME = 'recurrent_scan__memory_aug_recurrent_mem_tr__glu_gated_glu__prompt'
KA_X, KA_MEM0, KA_WQ, KA_WK, KA_WV, KA_WO, KA_SEG, KA_BX, KA_WG, KA_WU, KA_WD, KA_OUT, KA_DBG, KA_WS = [8 * i for i in range(14)]
WS_XN = 0
WS_QS = 4 * MB
WS_KS = 20 * MB
WS_VS = 36 * MB
WS_HH = 52 * MB
WS_GG = 68 * MB
WS_SP = 72 * MB
WS_YP = 136 * MB
WS_EX = 200 * MB
import os
NPG = int(os.environ.get('NPG', '2'))
EX_SLOT = 128 * 1024 * NPG
EX_PART = 0
EX_MEM = 4 * EX_SLOT
EX_QKV = 8 * EX_SLOT
EX_TOTAL = 12 * EX_SLOT
WS_CNT = 208 * MB
WS_SIZE = 256 * MB
SRD3 = 0x00020000
```

```python
MB = 1 << 20
NAME = 'recurrent_scan__memory_aug_recurrent_mem_tr__glu_gated_glu__prompt'
KA_X, KA_MEM0, KA_WQ, KA_WK, KA_WV, KA_WO, KA_SEG, KA_BX, KA_WG, KA_WU, KA_WD, KA_OUT, KA_DBG, KA_WS = [8 * i for i in range(14)]
WS_XN = 0
WS_QS = 4 * MB
WS_KS = 20 * MB
WS_VS = 36 * MB
WS_HH = 52 * MB
WS_GG = 112 * MB
WS_SP = 72 * MB
WS_HP = 96 * MB
WS_HPT = WS_HP + 8 * MB
WS_YP = 136 * MB
WS_PART = 200 * MB
WS_MEM = 204 * MB
WS_QKV = 205 * MB
WS_CNT = 208 * MB
WS_SIZE = 256 * MB
SRD3 = 0x00020000
import os
NTAIL = int(os.environ.get("NTAIL", "4"))
WS_OO = 168 * MB
WS_KM = 184 * MB
WS_XN2 = 128 * MB
```

```python
import heapq, random, json, os, math
from layout4 import *
import k_gemm5 as G
import k_fin5 as F
CQ_TAB = WS_CNT + 512
CA_TAB = WS_CNT + 3072
CQ2_TAB = WS_CNT + 4096
NW = 32
DEF = dict(T0=21.0, P=2.5, PH=2.9, ts=9.7, dh0=10.0, dh=8.2, nhb=1, lw=0.5, dq=22.2, dg=23.3, cold=dict(g=5.0, d=5.0, o=1.0), dd=20.2, do=21.6, da=11.3, df=3.2, gap=0.8, margin=3.0, rm=1.0, tgt=172.0)

def make_jobs(nlb, p):
    T0, P = p['T0'], p['P']
    ct = lambda st: T0 + min(st, 8 * nlb) * P + max(0, st - 8 * nlb) * p['PH']
    jobs = []
    def add(**k): k['id'] = len(jobs); k.setdefault('rel', 0); k.setdefault('dl', None); k.setdefault('deps', []); jobs.append(k); return k['id']
    dl = lambda seg: ct(seg - 2) - p['margin'] if seg else T0
    Q = {}; Gj = {}; A = {}; DO = {}
    for b in range(8):
        for mat in (1, 2, 0):
            lq = mat == 0 and b < nlb
            if b < p['nhb'] and not lq:
                for hb in (2 * b, 2 * b + 1):
                    for i in range(8): add(kind='h', mb=hb, mat=mat, i=i, dur=p['dh'], dl=dl(4 * hb))
            else:
                for i in range(4):
                    n = add(kind='q', mb=b, mat=mat, i=i, dur=p['dq'], dl=None if lq else dl(8 * b) + (p['margin'] if b == 1 else 0))
                    if lq: Q.setdefault((b, i // 2), []).append(n)
    for mb in range(8):
        for i in range(7): Gj.setdefault(mb, []).append(add(kind='g', mb=mb, i=i, dur=p['dg']))
        for i in range(4): DO.setdefault(mb, []).append(add(kind='d', mb=mb, i=i, dur=p['dd'], deps=Gj[mb]))
    for b in range(nlb):
        for hf in range(2):
            for i in range(2): A.setdefault(b, []).append(add(kind='a', mb=b, i=i, hf=hf, dur=p['da'], rel=ct(8 * b + 4 * hf + 4.6) + p['rm'], deps=Q[(b, i)]))
        for i in range(4): DO[b].append(add(kind='o', mb=b, i=i, dur=p['do'], deps=A[b]))
    for seg in range(64 - NTAIL):
        rel = ct(seg + 2.6 + (3 - (seg + 2) % 4 if seg < 56 else 0)) if seg >= 8 * nlb else 0
        add(kind='f', mb=seg >> 3, i=seg, dur=p['df'], rel=rel, deps=DO[seg >> 3])
    for sg in range(NTAIL):
        for i in range(4): add(kind='t', mb=7, seg=64 - NTAIL + sg, i=i, dur=1.5, rel=ct(64 - NTAIL + sg + 1.4) + (0.3 if sg == NTAIL - 1 else 2.0), deps=DO[7])
    for j in jobs: j['pan'] = panels(j)
    return jobs, ct

def simulate(jobs, lists, p, sc=None, detail=False):
    n = len(jobs); end = [None] * n; start = [0] * n
    pos = [0] * NW
    durs, rs = sc if sc else ([j['dur'] for j in jobs], 1.0)
    T0 = p['T0']; gap = p['gap']; tgt = p['tgt']
    waiting = {}; heap = [(p['ts'], w, p['ts']) for w in range(NW)]; ndone = 0; pen = 0.0
    first = {}
    while heap:
        t, w, fr = heapq.heappop(heap); l = lists[w]
        if pos[w] >= len(l): continue
        i = l[pos[w]]; j = jobs[i]
        blk = None; rt = fr
        for d in j['deps']:
            e = end[d]
            if e is None: blk = d; break
            if e > rt: rt = e
        if blk is not None:
            waiting.setdefault(blk, []).append((w, fr)); continue
        rel = T0 + (j['rel'] - T0) * rs if j['rel'] else 0
        if rel > rt: rt = rel
        if rt > t + 1e-9:
            heapq.heappush(heap, (rt, w, fr)); continue
        k = j['kind']; dur = durs[i]
        if pos[w] == 0: dur += p['dh0'] - p['dh'] + (1.0 if k == 'q' else 0)
        if k in 'gdo':
            f = first.setdefault(k, rt)
            if rt < f + 12: dur += p['cold'][k]
        if not (rt == fr and k in 'qgdo' and pos[w] and jobs[l[pos[w] - 1]]['kind'] in 'qgdo'): rt += gap
        e = rt + dur
        x = e - max(tgt, rel + gap + dur)
        if x > 0: pen += x * x
        start[i] = rt; end[i] = e; pos[w] += 1; ndone += 1
        heapq.heappush(heap, (e, w, e))
        for w2, f2 in waiting.pop(i, ()): heapq.heappush(heap, (rt, w2, f2))
    if ndone < n: return None
    if detail: return start, end
    late = {}
    for j in jobs:
        if j['dl'] is not None:
            x = end[j['id']] - (T0 + (j['dl'] - T0) * rs)
            if x > late.get(j['dl'], 0): late[j['dl']] = x
    return max(end), sum(late.values()), pen, start

def scenarios(jobs, seed=5):
    r = random.Random(seed); out = [None]
    for g, rs in ((1.06, 0.98), (0.97, 1.04), (1.03, 1.0)):
        ks = {k: r.uniform(0.97, 1.05) for k in 'hqgdaoft'}
        out.append(([j['dur'] * g * ks[j['kind']] * r.uniform(0.96, 1.06) for j in jobs], rs))
    return out

def panels(j):
    k = j['kind']
    if k == 'q': return (('X', j['mb']), ('W', j['mat'], j['i']))
    if k == 'g': return (('X', j['mb']), ('G', j['i']))
    if k == 'd': return (('H', j['mb']), ('D', j['i']))
    if k == 'o': return (('O', j['mb']), ('Wo', j['i']))
    return ()

def unshared(jobs, start, win):
    by = {}
    for j in jobs:
        for pn in j['pan']: by.setdefault(pn, []).append(start[j['id']])
    n = 0
    for l in by.values():
        l.sort(); last = -1e9
        for t in l:
            if t - last > win: n += 1; last = t
    return n

def score(jobs, lists, p, scs):
    tot = 0.0
    for sc in scs:
        r = simulate(jobs, lists, p, sc)
        if r is None: return 1e9
        tot += r[0] + 3 * r[1] + 0.004 * r[2]
        if sc is None: tot += p['lw'] * len(scs) / 2 * unshared(jobs, r[3], 2.5)
    return tot / len(scs) * 2

def initial(jobs, nlb):
    lists = [[] for _ in range(NW)]
    h = {(j['mb'], j['mat'], j['i']): j['id'] for j in jobs if j['kind'] == 'h'}
    pre = set()
    for k in range(NW):
        mat, i = 1 + ((k >> 3) & 1), k & 7
        if (2, 1, 0) in h: lists[k] = [h[(k >> 4, mat, i)], h[(2 + (k >> 4), mat, i)]]
        elif k < 16: lists[k] = [h[(0, mat, i)], h[(1, mat, i)]]
        else:
            lists[k] = [[j['id'] for j in jobs if j['kind'] == 'q' and j['mb'] == 1 + ((k >> 3) & 1) and j['mat'] == 1 + ((k >> 2) & 1) and j['i'] == k & 3][0]]
            pre.add(lists[k][0])
    def key(j):
        k, b = j['kind'], j['mb']
        if k == 'q': return j['dl'] - 45 if j['dl'] is not None else 20 * b + 5
        return {'g': 30 + 12 * b, 'd': 120 + 5 * b, 'a': j['rel'] + 8, 'o': 75 + 20 * b, 'f': max(170 + b, j['rel']), 't': 300}[k]
    rest = sorted((j for j in jobs if j['kind'] not in 'ht' and j['id'] not in pre), key=key)
    load = [(0.0 if len(lists[w]) == 2 else 5.0, w) for w in range(NW)]
    for j in rest:
        t, w = heapq.heappop(load); lists[w].append(j['id']); heapq.heappush(load, (t + j['dur'], w))
    for n, j in enumerate(j for j in jobs if j['kind'] == 't'): lists[(n * 5) % NW].append(j['id'])
    return lists

def optimise(jobs, lists, p, iters, seed=1, t0=3.0):
    rnd = random.Random(seed); scs = scenarios(jobs); cur = score(jobs, lists, p, scs); best = (cur, [list(l) for l in lists])
    for it in range(iters):
        temp = t0 * (1 - it / iters) ** 2 + 0.01
        w1 = rnd.randrange(NW); w2 = rnd.randrange(NW)
        l1, l2 = lists[w1], lists[w2]
        n1 = len(l1) - (jobs[l1[-1]]['kind'] == 't'); n2 = len(l2) - (jobs[l2[-1]]['kind'] == 't')
        f1 = 2 if jobs[l1[0]]['kind'] == 'h' else 1; f2 = 2 if jobs[l2[0]]['kind'] == 'h' else 1
        if n1 <= f1: continue
        i1 = rnd.randrange(f1, n1); o1, o2 = list(l1), list(l2)
        m = rnd.random()
        if m < 0.4 and n2 > f2:
            i2 = min(max(f2, i1 + rnd.randint(-2, 2)), n2 - 1)
            if w1 == w2 and i1 == i2: continue
            l1[i1], l2[i2] = l2[i2], l1[i1]
        elif m < 0.8:
            j = l1.pop(i1)
            if w1 == w2: n2 -= 1
            l2.insert(min(max(f2, i1 + rnd.randint(-2, 2)), n2), j)
        else:
            if w1 == w2: continue
            i2 = min(max(f2, i1 + rnd.randint(-1, 1)), n2)
            l1[:], l2[:] = o1[:i1] + o2[i2:], o2[:i2] + o1[i1:]
        sc = score(jobs, lists, p, scs)
        if sc <= cur or rnd.random() < math.exp((cur - sc) / temp):
            cur = sc
            if sc < best[0]: best = (sc, [list(l) for l in lists])
        else:
            l1[:] = o1; l2[:] = o2
        if it % 20000 == 0: r = simulate(jobs, lists, p); print(it, round(cur, 2), r[:3], unshared(jobs, r[3], 2.5), flush=True)
    return best[1]

def report(jobs, lists, p, ct):
    st, en = simulate(jobs, lists, p, detail=True)
    print('fetches', unshared(jobs, st, 2.5), 'scen', [[round(x, 1) for x in simulate(jobs, lists, p, sc)[:2]] for sc in scenarios(jobs) + scenarios(jobs, 77)[1:]], 'chain end', ct(64))
    for k in 'hqgdaoft': print(k, [round(max(en[j['id']] for j in jobs if j['kind'] == k and j['mb'] == mb)) for mb in range(8) if any(j['kind'] == k and j['mb'] == mb for j in jobs)])
    for w in range(NW): print(w, ' '.join(f"{jobs[i]['kind']}{jobs[i]['mb']}@{st[i]:.0f}" for i in lists[w]))

def path(nlb, tag): return os.path.join(os.path.dirname(os.path.abspath(__file__)), f'plan_{nlb}{tag}.json')

def build(nlb=6, tag=''):
    global PLAN
    d = json.load(open(path(nlb, tag))); p = d['p']; lists = d['lists']
    jobs, ct = make_jobs(nlb, p)
    assert sorted(i for l in lists for i in l) == list(range(len(jobs)))
    st, en = simulate(jobs, lists, p, detail=True)
    out = []; PLAN = []
    for wk in range(128):
        x = wk & 3; o = []
        PLAN.append([(jobs[i]['kind'], jobs[i]['mb'], round(st[i], 1)) for i in lists[wk >> 2]])
        for n in lists[wk >> 2]:
            j = jobs[n]; k, mb, i = j['kind'], j['mb'], j['i']
            q2 = lambda base: (base + 16 * (x >> 1), 4 if x & 1 else 1)
            if k == 'q':
                t = 4 * x + i
                o.append(G.job_qkv(j['mat'], mb, t, sig=((CQ2_TAB if j['mat'] == 0 and mb < nlb else CQ_TAB) + mb * 256 + (t // 2) * 16) | 10))
            elif k == 'h':
                t = 8 * x + i
                o.append(G.job_qkv_half(j['mat'], mb, t, sig=(CQ_TAB + (mb >> 1) * 256 + (t // 4) * 16) | (4 if mb & 1 else 1)))
            elif k == 'g': ad, inc = q2(WS_CNT + 64 * mb); o.append(G.job_glu(mb, 7 * x + i, sig=ad | inc))
            elif k == 'd': ad, inc = q2(WS_CNT + 64 * mb); o.append(G.job_down_h(mb, i, x, wait=ad + 4 * (x & 1), wtgt=7, sig=(F.CD_TAB + 64 * mb) | 1))
            elif k == 'f': o.append(G.job_fin(i, x))
            elif k == 't': o.append(G.job_fin(j['seg'], 4 * x + i, True))
            elif k == 'a':
                ad, inc = q2(CA_TAB + 64 * mb); hg = 2 * x + i
                o.append(G.job_att(2 * mb + j['hf'], hg, wait=F.CS_TAB + 128 * x, wtgt=8 * mb + 4 * j['hf'] + 3, sig=ad | inc, wq=CQ2_TAB + mb * 256 + hg * 16))
            else: ad, inc = q2(CA_TAB + 64 * mb); o.append(G.job_wo(mb, i, x, wait=ad + 4 * (x & 1), wtgt=4, sig=(F.CD_TAB + 64 * mb) | 4))
        out.append(o)
    return out

if __name__ == '__main__':
    import sys
    nlb = int(sys.argv[1]); iters = int(sys.argv[2]); tag = sys.argv[3] if len(sys.argv) > 3 else ''
    p = dict(DEF); p.update(eval(sys.argv[4]) if len(sys.argv) > 4 else {})
    jobs, ct = make_jobs(nlb, p)
    lists = optimise(jobs, initial(jobs, nlb), p, iters)
    report(jobs, lists, p, ct)
    json.dump(dict(p=p, lists=lists), open(path(nlb, tag), 'w'))
```

```python
import sys, argparse, os
from asmlib import *
from layout4 import *
import k_gemm5 as G
import k_chain5 as C
import k_fin5 as F
import sched6 as sched5

ap = argparse.ArgumentParser()
ap.add_argument('out')
ap.add_argument('--prof', action='store_true')
ap.add_argument('--wprof', action='store_true')
ap.add_argument('--slow', action='store_true')
ap.add_argument('--tim', action='store_true')
ap.add_argument('--list', action='store_true', help='emit as launch list (dev harness)')
OPTS = dict(lr=3, kdl=0, s1=48, cd=1, cdl=13, qd=0, qdl=9, md=1, last=63, vwp=8, fine=0, finsleep=12, touch=2, ntb=0, nta=0, ftsleep=4, nodep=1, bpre=4, vote=400,
            al=6, alo=11, aloa=0, hh=0, fsq=3, pgf=0, early=1, stouch=1, mck=2, dprio=1, nd1=8, ndl=8, d2=6, fprio=3, fsl=1, kvsl=1, rsleep=0,
            bnt=0, xflip=0, vdel=2, spnt=0)
for n, d in OPTS.items():
    ap.add_argument('--' + n, type=int, default=d)
ap.add_argument('--sp', default='best')
ap.add_argument('--abl', default='')
args = ap.parse_args()

a = Asm()
G.NTA = ' nt' if args.nta else ''; G.NTB = ' nt' if args.ntb else ''
for n in OPTS: setattr(a, n, getattr(args, n))
a.force_slow = args.slow; a.abl = args.abl; a.wprof = args.prof or args.wprof; a.fin_sleep = args.finsleep; a.ft_sleep = args.ftsleep
a.msh = 16
a.spnt = ' nt' if args.spnt else ''
a.bnt = ' nt' if args.bnt else ''
name = NAME + '_kernel'
hdr = open(os.path.join(os.path.dirname(os.path.abspath(__file__)), '..', NAME + '.s.ref')).read().split('; Override launch')[0]
a.raw(hdr.rstrip())
if args.list:
    a.raw(f'; @launch kernel={name} grid=(256,1,1) block=(512,1,1) lds={C.CHAIN_LDS}')
else:
    a.raw(f'; @launch grid=(256,1,1) block=(512,1,1) lds={C.CHAIN_LDS}')
a.raw('.amdgcn_target "amdgcn-amd-amdhsa--gfx950"\n.text')
lists = sched5.build(nlb=args.s1 // 8, tag=args.sp)
per = max(len(l) for l in lists) + 2
a.raw(f'.globl {name}\n.p2align 8\n.type {name},@function')
a.label(name)
S_WK = 63
a(f'''
s_cmp_ge_u32 s2, 256
s_cbranch_scc1 k_exit
{'s_memrealtime s[90:91]' if args.tim else ''}
s_mov_b32 s99, s2
s_load_dwordx2 s[4:5], s[0:1], {KA_WS}
s_load_dwordx2 {s(F.SRD_DBG,2)}, s[0:1], {KA_DBG}
v_lshrrev_b32 v2, 6, v0
s_mov_b32 s6, {WS_SIZE}
s_mov_b32 s7, {SRD3}
s_mov_b32 {s(F.SRD_DBG+2)}, 256
s_mov_b32 {s(F.SRD_DBG+3)}, {SRD3}
v_readfirstlane_b32 s3, v2
s_lshr_b32 {s(C.S_I)}, s2, 3
s_and_b32 {s(C.S_X)}, s2, 3
s_waitcnt lgkmcnt(0)
s_bitcmp{args.xflip}_b32 s2, 2
s_cbranch_scc1 chain_map
s_lshl_b32 {s(S_WK)}, {s(C.S_I)}, 2
s_add_u32 {s(S_WK)}, {s(S_WK)}, {s(C.S_X)}
''')
F.emit_ln_init(a, S_WK, [(lambda: None), (lambda: G.emit_touch_first(a, 'jobtab', per, S_WK)), (lambda: G.emit_tlb_touch(a, 'jobtab', per, S_WK))][args.touch])
a(f's_mov_b32 {s(G.S_T0)}, {s(S_WK)}')
def pre_cold(x=''):
    F.emit_ln_wait(a, G.S_ND + G.D_TYPE, G.S_ND + G.D_A, G.T_FH, x)
a.pre_cold = pre_cold
a.drain_hook = lambda: F.emit_drain_hook(a)
a.fin_hook = lambda *x: F.emit_fin(a, *x)
G.emit_worker(a, 'jobtab', per, 'k_end')
a.label('chain_map')
C.emit_chain(a, 'k_end', prof=args.prof)
a.label('k_end')
if args.tim:
    a(f'''
    s_waitcnt vmcnt(0)
    s_memrealtime s[96:97]
    s_lshl_b32 s98, s99, 3
    s_add_u32 s98, s98, s3
    s_lshl_b32 s98, s98, 3
    s_add_u32 s98, s98, {WS_YP + 13*MB}
    s_waitcnt lgkmcnt(0)
    v_mov_b32 v2, s90
    v_mov_b32 v3, s96
    s_mov_b64 exec, 1
    buffer_store_dwordx2 v[2:3], off, s[4:7], s98
    ''')
a.label('k_exit')
a('s_endpgm')
a.raw('.section .rodata,"a"')
G.emit_table(a, 'jobtab', lists, per)
a.raw('.p2align 6')
a.raw(kernel_desc(name, 256, 102))
a.raw('; PLAN ' + repr(sched5.PLAN))
open(args.out, 'w').write(a.text())
```

```python
from asmlib import *
from layout4 import *
import k_fin5 as F

SRD_WS = 4
SRD_T = 8
S_W = 3
S_X, S_I, S_G, S_H, S_S = 12, 13, 14, 15, 16
S_T0, S_T1, S_T2, S_T3, S_T4 = 17, 18, 19, 20, 21
S_TO = 22
S_MLD, S_MST, S_MRS, S_QST, S_QRS, S_PLD, S_OK, S_SP, S_TCH, S_RDG, S_RDY, S_C, S_CQG = range(23, 36)
S_MO, S_MSO, S_QO, S_PO, S_X1, S_KG, S_KL = range(36, 43)
S_QLD, S_QLD2, S_PSTC, S_PRS, S_PRG, S_CS, S_CST, S_DW, S_DU, S_U2, S_QT = range(23, 34)
S_M0 = 44
S_ID = 52
S_J = 53
S_SP0 = 54
S_KMX = 55
S_RTG = 58
S_OF, S_OB = 59, 60
S_MEX = 56
S_PROF = 70
LDS_RED1 = 0
LDS_FLG = 15872
LDS_PUB = 15968
LDS_RED2 = 16384
LDS_SEG = 32768
LDS_BULK = 65536
PSLOT = 18
CHAIN_LDS = 163840
CQ_TAB = WS_CNT + 512
TIMEOUT = 1 << 17

def red_gq(vs, vt, op):
    return [f'v_mov_b32 {v(vt)}, {v(vs)}', 's_nop 1', f'v_permlane16_swap_b32 {v(vt)}, {v(vs)}', f'{op} {v(vs)}, {v(vs)}, {v(vt)}',
            f'v_mov_b32 {v(vt)}, {v(vs)}', 's_nop 1', f'v_permlane32_swap_b32 {v(vt)}, {v(vs)}', f'{op} {v(vs)}, {v(vs)}, {v(vt)}']

def chk(regs, vt, target):
    r = list(regs); o = []
    if len(r) == 1:
        return [f'v_cmp_eq_u32 vcc, -1, {v(r[0])}', f's_cbranch_vccnz {target}']
    if len(r) == 2:
        o.append(f'v_max_u32 {v(vt)}, {v(r[0])}, {v(r[1])}'); r = []
    else:
        o.append(f'v_max3_u32 {v(vt)}, {v(r[0])}, {v(r[1])}, {v(r[2])}'); r = r[3:]
    while len(r) >= 2:
        o.append(f'v_max3_u32 {v(vt)}, {v(vt)}, {v(r[0])}, {v(r[1])}'); r = r[2:]
    if r: o.append(f'v_max_u32 {v(vt)}, {v(vt)}, {v(r[0])}')
    o.append(f'v_cmp_eq_u32 vcc, -1, {v(vt)}')
    o.append(f's_cbranch_vccnz {target}')
    return o

def retry_block(a, label, again, giveup):
    a.label(label)
    a('s_waitcnt vmcnt(0)')
    if a.rsleep: a(f's_sleep {a.rsleep}')
    a(f's_sub_u32 {s(S_TO)}, {s(S_TO)}, 1')
    a(f's_cbranch_scc0 {again}')
    a(f's_mov_b32 {s(S_TO)}, 0')
    a(f's_branch {giveup}')

def spin_block(a, label, loads, regs, vt, ok, giveup):
    a.label(label)
    a(f's_sub_u32 {s(S_TO)}, {s(S_TO)}, 1')
    a(f's_cbranch_scc1 {label}_g')
    for x in loads: a(x)
    a(f's_waitcnt vmcnt({len(loads)-1})')
    for x in chk(regs, vt, label): a(x)
    a(f's_branch {ok}')
    a.label(label + '_g')
    a(f's_mov_b32 {s(S_TO)}, 0')
    a('s_waitcnt vmcnt(0)')
    a(f's_branch {giveup}')

class Prof:
    def __init__(self, on): self.on = on; self.n = 0; self.names = []
    def stamp(self, a, name, lvl=0):
        if self.on and (lvl == 0 or lvl == a.fine or (lvl < 0 and -lvl != a.fine)):
            a(f's_memtime {s(S_PROF + 2*self.n, 2)}'); self.n += 1; self.names.append(name)
    def flush(self, a, vtmp, tag):
        if not self.on: return
        a(f's_memrealtime {s(S_PROF + 2*self.n, 2)}'); self.n += 1; self.names.append('rt')
        a(f's_sub_u32 {s(S_PROF + 2*self.n)}, s100, {s(S_TO)}'); self.n += 1; self.names.append('retries')
        a(f's_mov_b32 s100, {s(S_TO)}')
        assert self.n <= 15
        a('s_waitcnt lgkmcnt(0)')
        a(f's_lshl_b32 {s(S_T0)}, {s(S_ID)}, 3')
        a(f's_add_u32 {s(S_T0)}, {s(S_T0)}, {s(S_W)}')
        a(f's_lshl_b32 {s(S_T0)}, {s(S_T0)}, 6')
        a(f's_add_u32 {s(S_T0)}, {s(S_T0)}, {s(S_S)}')
        a(f's_lshl_b32 {s(S_T0)}, {s(S_T0)}, 6')
        a(f's_add_u32 {s(S_T0)}, {s(S_T0)}, {WS_YP}')
        for i in range(self.n):
            a(f'v_writelane_b32 {v(vtmp)}, {s(S_PROF+2*i)}, {i}')
        a(f's_mov_b64 exec, {(1<<self.n)-1}')
        a(f'v_mbcnt_lo_u32_b32 {v(vtmp+1)}, -1, 0')
        a(f'v_lshlrev_b32 {v(vtmp+1)}, 2, {v(vtmp+1)}')
        a(f'buffer_store_dword {v(vtmp)}, {v(vtmp+1)}, {s(SRD_WS,4)}, {s(S_T0)} offen')
        a('s_mov_b64 exec, -1')
        a.raw(f'; PROF {tag} ' + ' '.join(self.names))
        self.n = 0; self.names = []

def merge_fill(seq, fill, every=2, start=1):
    out = []; fi = 0
    for k, x in enumerate(seq):
        out.append(x)
        if k >= start and (k - start) % every == 0 and fi < len(fill):
            out.append(fill[fi]); fi += 1
    out += fill[fi:]
    return out

def flag_wait(a, tag, vaddr, off, vt, st, sl=1, one=False):
    a.label(tag)
    if one:
        a(f'ds_read_b32 {v(vt)}, {v(vaddr)} offset:{off}')
        a('s_waitcnt lgkmcnt(0)')
    else:
        a(f'ds_read_b128 {v(vt,4)}, {v(vaddr)} offset:{off}')
        a('s_waitcnt lgkmcnt(0)')
        a(f'v_min3_i32 {v(vt)}, {v(vt)}, {v(vt+1)}, {v(vt+2)}')
        a(f'v_min_i32 {v(vt)}, {v(vt)}, {v(vt+3)}')
        a('s_nop 0')
    a(f'v_readfirstlane_b32 {s(st)}, {v(vt)}')
    a(f's_cmp_ge_i32 {s(st)}, {s(S_S)}')
    a(f's_cbranch_scc1 {tag}ok')
    a(f's_sleep {sl}')
    a(f's_branch {tag}')
    a.label(tag + 'ok')

def ring(a, d, add, sh, base):
    if add: a(f's_add_u32 {s(d)}, {s(S_S)}, {add}')
    a(f's_and_b32 {s(d)}, {s(d if add else S_S)}, 3')
    a(f's_lshl_b32 {s(d)}, {s(d)}, {sh}')
    a(f's_add_u32 {s(d)}, {s(d)}, {s(base)}')

def sel_init(a, sel, vl, t1, t2):
    a(f'v_and_b32 {v(t1)}, 15, {v(vl)}')
    a(f'v_and_b32 {v(t2)}, 1, {v(t1)}')
    a(f'v_lshlrev_b32 {v(t2)}, 4, {v(t2)}')
    a(f'v_lshlrev_b32 {v(t2)}, {v(t2)}, 0x3f80' if False else f'v_mov_b32 {v(sel)}, 0x3f80')
    a(f'v_lshlrev_b32 {v(t2)}, {v(t2)}, {v(sel)}')
    a(f'v_lshrrev_b32 {v(t1)}, 1, {v(t1)}')
    for d in range(4):
        a(f'v_cmp_eq_u32 vcc, {d}, {v(t1)}')
        a('s_nop 1')
        a(f'v_cndmask_b32 {v(sel+d)}, 0, {v(t2)}, vcc')

PV_L16, PV_QST, PV_R1W, PV_R1R, PV_MST, PV_SGR, PV_SPS, PV_IDX = 1, 2, 3, 4, 5, 6, 7, 8
PV_PFA, PV_PFD, PV_FLGR = 0, 9, 58
PV_T, PV_NEG, PV_SEL = 9, 10, 12
PV_M, PV_ACC, PV_W = 16, 32, 64
PV_FV, PV_RDY, PV_R1W1, PV_R1W2, PV_FLGW = 59, 60, 61, 62, 63
def pw(b, t): return PV_W + (b * 6 + t) * 8

def mem0_issue(a):
    a(f'''
    s_load_dwordx2 {s(SRD_T,2)}, s[0:1], {KA_MEM0}
    s_mov_b32 {s(SRD_T+2)}, 16384
    v_bfe_u32 v57, v20, 2, 2
    v_and_b32 v58, 1, v20
    v_lshl_add_u32 v57, v57, 1, v58           ; token
    v_lshlrev_b32 v57, 11, v57
    v_lshrrev_b32 v58, 4, v20
    v_lshl_add_u32 v57, v58, 5, v57           ; + 32 g
    v_bfe_u32 v58, v20, 1, 1                  ; p
    v_lshl_add_u32 v57, v58, 4, v57
    v_lshl_add_u32 v59, v58, 3, v57
    v_xor_b32 v60, 8, v59
    s_lshl_b32 {s(S_T3)}, {s(S_W)}, 9
    s_waitcnt lgkmcnt(0)
    ''')
    for b in range(4):
        a(f'buffer_load_dwordx2 {v(32+4*b,2)}, v59, {s(SRD_T,4)}, {s(S_T3)} offen offset:{128*b}')
        a(f'buffer_load_dwordx2 {v(34+4*b,2)}, v60, {s(SRD_T,4)}, {s(S_T3)} offen offset:{128*b}')

def p_prologue(a):
    a(f'''
    v_and_b32 v20, 63, v0
    v_lshlrev_b32 {v(PV_L16)}, 4, v20
    v_mov_b32 {v(PV_NEG)}, -1
    v_mov_b32 {v(PV_NEG+1)}, -1
    v_lshrrev_b32 v21, 2, v20
    v_and_b32 v22, 3, v20
    v_lshlrev_b32 v21, 13, v21
    v_lshl_add_u32 v21, v22, 4, v21
    s_lshl_b32 {s(S_T0)}, {s(S_W)}, 21
    s_lshl_b32 {s(S_T1)}, {s(S_ID)}, 6
    s_add_u32 {s(S_T0)}, {s(S_T0)}, {s(S_T1)}
    s_lshl_b32 {s(S_T2)}, {s(S_W)}, 15
    s_mov_b32 {s(SRD_T+2)}, {8*MB}
    s_mov_b32 {s(SRD_T+3)}, {SRD3}
    v_lshrrev_b32 v24, 5, v20                 ; gB>>1
    v_bfe_u32 v25, v20, 3, 1                  ; r>>1
    v_lshl_add_u32 v24, v24, 1, v25           ; 2(gB>>1) + (r>>1)
    v_bfe_u32 v26, v20, 4, 1                  ; gB&1
    v_xor_b32 v26, v26, v25
    v_lshl_add_u32 v24, v24, 1, v26
    v_bfe_u32 v25, v20, 2, 1                  ; r&1
    v_lshl_add_u32 v24, v24, 2, v25           ; row
    v_lshlrev_b32 v24, 6, v24
    v_lshl_add_u32 v24, v22, 3, v24           ; + cc*8
    v_add_u32 v24, {s(S_T2)}, v24
    ''')
    def src(p):
        a(f's_load_dwordx2 {s(SRD_T,2)}, s[0:1], {KA_WQ + 8*p}')
        a(f's_add_u32 {s(S_T3)}, {s(S_T0)}, s72')
        a('s_waitcnt lgkmcnt(0)')
    a(f's_and_b32 s70, {s(S_I)}, {1 if a.stag else 0}')
    a('s_lshl_b32 s72, s70, 20')
    a('s_lshl_b32 s73, s70, 21')
    a('s_lshl_b32 s70, s70, 13')
    a(f's_sub_u32 s71, {s(S_T2)}, s70')
    a(f's_add_u32 s70, {s(S_T2)}, s70')
    def issue(p, half):
        src(p)
        for n in range(16):
            a(f's_add_u32 m0, {"s70" if n < 8 else "s71"}, {half*16384 + n*1024}')
            a('s_nop 0')
            a(f'buffer_load_dwordx4 v21, {s(SRD_T,4)}, {s(S_T3)} offen lds')
            a(f's_add_u32 {s(S_T3)}, {s(S_T3)}, {16*8192}')
            if n == 7: a(f's_sub_u32 {s(S_T3)}, {s(S_T3)}, s73')
    def fetch(p, half):
        for b in range(4):
            for T in range(2):
                for t4 in range(4):
                    a(f'ds_read_b64_tr_b16 {v(pw(b, 2*p+T)+2*t4, 2)}, v24 offset:{half*16384 + b*4096 + (32*(t4>>1) + 2*(t4&1))*64 + T*32}')
            a('s_waitcnt lgkmcnt(0)')
    issue(0, 0); issue(1, 1)
    src(2)
    land = [pw(n // 4, 4) + 4 * (n & 3) for n in range(16)]
    for n in range(16):
        a(f'buffer_load_dwordx4 {v(land[n],4)}, v21, {s(SRD_T,4)}, {s(S_T3)} offen')
        a(f's_add_u32 {s(S_T3)}, {s(S_T3)}, {16*8192}')
        if n == 7: a(f's_sub_u32 {s(S_T3)}, {s(S_T3)}, s73')
    mem0_issue(a)
    a('s_barrier')
    a(f'v_add_u32 v56, s70, {v(PV_L16)}')
    a(f'v_add_u32 v26, s71, {v(PV_L16)}')
    a('s_waitcnt vmcnt(40)'); fetch(0, 0)
    a('s_waitcnt vmcnt(24)'); fetch(1, 1)
    a('s_waitcnt vmcnt(8)')
    for n in range(16):
        a(f'ds_write_b128 {"v56" if n < 8 else "v26"}, {v(land[n],4)} offset:{n*1024}')
    a('s_waitcnt lgkmcnt(0)')
    fetch(2, 0)
    a(f'''
    v_mov_b32 v21, 0x44444444
    v_mov_b32 v22, 0xeeeeeeee
    v_and_b32 v23, 2, v20
    v_cmp_eq_u32 vcc, 0, v23
    s_nop 1
    v_cndmask_b32 {v(PV_IDX)}, v22, v21, vcc
    ''')
    a(f'''
    v_bfe_u32 v21, v20, 2, 3                  ; t
    v_lshrrev_b32 v22, 5, v20                 ; isk
    v_mul_u32_u24 v23, 160, v21
    v_mul_u32_u24 v24, 1280, v22
    v_add_u32 v23, v23, v24
    v_and_b32 v24, 3, v20
    v_lshl_add_u32 v27, v24, 4, v23
    v_lshrrev_b32 v23, 1, v21
    v_and_b32 v21, 1, v21
    v_lshl_add_u32 v21, v23, 2, v21           ; row0
    v_xor_b32 v22, 1, v22
    v_lshl_add_u32 v21, v22, 1, v21           ; row
    v_bfe_u32 v22, v20, 1, 1                  ; gq&1
    v_lshl_add_u32 v21, v22, 4, v21
    v_xor_b32 v22, v20, v22
    v_and_b32 v22, 1, v22                     ; hs
    v_lshlrev_b32 v21, 4, v21
    v_lshl_add_u32 v25, v22, 3, v21
    v_lshrrev_b32 v21, 3, v20                 ; t
    v_mul_u32_u24 v23, 160, v21
    v_and_b32 v24, 7, v20
    v_lshl_add_u32 v28, v24, 4, v23
    v_lshrrev_b32 v23, 1, v21
    v_and_b32 v21, 1, v21
    v_lshl_add_u32 v21, v23, 2, v21
    v_and_b32 v22, 1, v20                     ; p
    v_lshl_add_u32 v21, v22, 1, v21
    v_bfe_u32 v22, v20, 2, 1                  ; gq>>1
    v_lshl_add_u32 v21, v22, 4, v21
    v_bfe_u32 v22, v20, 1, 1                  ; gq&1
    v_lshlrev_b32 v21, 4, v21
    v_lshl_add_u32 v26, v22, 3, v21
    s_lshl_b32 {s(S_T0)}, {s(S_J)}, 10
    s_lshl_b32 {s(S_T1)}, {s(S_W)}, 9
    s_add_u32 {s(S_T0)}, {s(S_T0)}, {s(S_T1)}
    s_lshl_b32 {s(S_T1)}, {s(S_W)}, 6
    s_lshl_b32 {s(S_T2)}, {s(S_J)}, 9
    s_add_u32 {s(S_T2)}, {s(S_T2)}, 4096
    s_cmp_ge_u32 {s(S_W)}, 2
    s_cselect_b32 {s(S_T0)}, {s(S_T2)}, {s(S_T0)}
    s_cselect_b32 {s(S_T1)}, 2560, {s(S_T1)}
    s_cselect_b64 vcc, -1, 0
    v_cndmask_b32 v22, v25, v26, vcc
    v_cndmask_b32 v23, v27, v28, vcc
    v_add_u32 {v(PV_QST)}, {s(S_T0)}, v22
    v_add_u32 {v(PV_R1R)}, {s(S_T1)}, v23
    v_lshrrev_b32 v21, 4, v20                 ; g
    v_and_b32 v22, 15, v20                    ; n
    v_mul_u32_u24 v23, 320, v21
    v_lshl_add_u32 v23, v22, 2, v23
    s_mul_i32 {s(S_T0)}, {s(S_W)}, 3840
    v_add_u32 {v(PV_R1W)}, {s(S_T0)}, v23
    v_add_u32 {v(PV_R1W1)}, 1280, {v(PV_R1W)}
    v_bfe_u32 v24, v20, 3, 1
    v_bfe_u32 v25, v20, 2, 1
    v_xor_b32 v25, v25, v24                   ; hs
    v_bfe_u32 v26, v20, 1, 1                  ; p
    v_lshl_add_u32 v25, v26, 1, v25
    v_lshl_add_u32 v25, v24, 2, v25
    v_and_b32 v26, 1, v20
    v_lshl_add_u32 v25, v25, 1, v26           ; pos(n)
    v_sub_u32 v25, v25, v22
    v_lshl_add_u32 v25, v25, 2, {v(PV_R1W)}
    v_add_u32 {v(PV_R1W2)}, 2560, v25
    v_lshlrev_b32 v23, 4, v22
    v_lshl_add_u32 {v(PV_SGR)}, v21, 12, v23
    s_lshl_b32 {s(S_T0)}, {s(S_W)}, 10
    s_add_u32 {s(S_T0)}, {s(S_T0)}, {LDS_SEG}
    v_add_u32 {v(PV_SGR)}, {s(S_T0)}, {v(PV_SGR)}
    v_lshrrev_b32 v24, 1, v21
    v_lshl_add_u32 v23, v24, 15, v23
    v_and_b32 v24, 1, v21
    v_lshl_add_u32 {v(PV_SPS)}, v24, 8, v23
    v_mov_b32 {v(PV_FLGR)}, {LDS_FLG}
    v_bfe_u32 v23, v20, 1, 2                  ; t>>1
    v_lshlrev_b32 v23, 6, v23
    v_and_b32 v25, 1, v20
    v_lshl_add_u32 v23, v25, 4, v23
    v_lshrrev_b32 v24, 5, v20
    v_lshl_add_u32 {v(PV_MST)}, v24, 5, v23
    v_and_b32 v23, 7, v20
    v_lshlrev_b32 v23, 7, v23
    v_bfe_u32 v24, v20, 3, 1
    v_lshl_add_u32 v23, v24, 17, v23
    v_lshrrev_b32 v24, 4, v20
    v_add_u32 v24, 1, v24
    v_cmp_le_u32 vcc, 3, v24
    s_nop 1
    v_cndmask_b32 v24, v24, 0, vcc
    v_lshl_add_u32 v23, v24, 24, v23
    s_lshl_b32 {s(S_T0)}, {s(S_G)}, 14
    s_lshl_b32 {s(S_T1)}, {s(S_C)}, 10
    s_add_u32 {s(S_T0)}, {s(S_T0)}, {s(S_T1)}
    s_add_u32 {s(S_T0)}, {s(S_T0)}, {WS_QS}
    v_add_u32 {v(PV_PFA)}, {s(S_T0)}, v23
    s_lshl_b32 {s(S_T0)}, {s(S_W)}, 2
    s_add_u32 {s(S_T0)}, {s(S_T0)}, {LDS_FLG}
    v_mov_b32 {v(PV_FLGW)}, {s(S_T0)}
    ''')
    sel_init(a, PV_SEL, 20, 21, 22)
    a('s_waitcnt vmcnt(0)')
    for i in range(16): a(f'v_mov_b32 {v(PV_M+i)}, {v(32+i)}')

def gate_addr(a, d, add, tg):
    a(f's_add_u32 {s(S_T4)}, {s(S_S)}, {add}')
    a(f's_min_u32 {s(S_T4)}, {s(S_T4)}, 63')
    a(f's_cmp_ge_u32 {s(S_T4)}, {a.s0}')
    a(f's_cselect_b32 {s(tg)}, 12, 8')
    a(f's_and_b32 {s(d)}, {s(S_T4)}, 4')
    a(f's_lshr_b32 {s(S_T4)}, {s(S_T4)}, 3')
    a(f's_lshl_b32 {s(S_T4)}, {s(S_T4)}, 8')
    a(f's_add_u32 {s(d)}, {s(d)}, {s(S_T4)}')
    a(f's_add_u32 {s(d)}, {s(d)}, {s(S_CQG)}')

def p_gate(a, k):
    l = a.uid('gate')
    a(f's_bitcmp1_b32 {s(S_OK)}, {k}')
    a(f's_cbranch_scc1 {l}_ok')
    gate_addr(a, S_RDG, 1 + k, S_T2)
    a.label(l)
    a(f'buffer_load_dword {v(PV_T)}, off, {s(SRD_WS,4)}, {s(S_RDG)} sc1')
    a('s_waitcnt vmcnt(0)')
    a(f'v_readfirstlane_b32 {s(S_T4)}, {v(PV_T)}')
    a(f's_cmp_ge_u32 {s(S_T4)}, {s(S_T2)}')
    a(f's_cbranch_scc1 {l}_set')
    a('s_sleep 8')
    a(f's_sub_u32 {s(S_TO)}, {s(S_TO)}, 1')
    a(f's_cbranch_scc0 {l}')
    a(f's_mov_b32 {s(S_TO)}, 0')
    a.label(l + '_set')
    a(f's_bitset1_b32 {s(S_OK)}, {k}')
    a.label(l + '_ok')

def dma_list(a, m, vl16, st, S_KG=S_KG, S_KL=S_KL, hd=0):
    base = (WS_KS, WS_VS, WS_QS)[m] + 4096 * hd
    o = []
    for kt in range(2):
        for u in range(4):
            pre = f's_add_u32 m0, {s(S_KL)}, {8192*m + 4096*kt + 24576*hd}\ns_add_u32 {s(st)}, {s(S_KG)}, {base + 131072*kt}\n' if u == 0 else ''
            o.append(pre + f'buffer_load_dwordx4 {v(vl16)}, {s(SRD_WS,4)}, {s(st)} offen offset:{1024*u} sc1{a.bnt} lds')
    return o

def reg_list(a, m, reg, st):
    base = (WS_KS, WS_VS, WS_QS)[m]
    o = []
    for kt in range(2):
        for u in range(4):
            pre = f's_add_u32 {s(st+kt)}, {s(S_KG)}, {base + 131072*kt}\n' if u == 0 else ''
            o.append(pre + f'buffer_load_dwordx4 {v(reg+(kt*4+u)*4,4)}, {v(AV_L16)}, {s(SRD_WS,4)}, {s(st+kt)} offen offset:{1024*u} sc1{a.bnt}')
    return o

def p_segreduce(a, part=3):
    if part & 1: p_segcalc(a)
    if part & 2: p_segstore(a)

def p_segcalc(a):
    S1 = 48
    for ul in range(2):
        for rt in range(2):
            a(f'ds_read_b128 {v(PV_M+4*(2*ul+rt),4)}, {v(PV_SGR)} offset:{512*ul+256*rt}')
    a(f'v_xor_b32 {v(PV_SGR)}, 0x4000, {v(PV_SGR)}')
    for ul in range(2):
        D = 40 + 4 * ul
        a(f's_waitcnt lgkmcnt({2-2*ul})')
        a(f'v_mfma_f32_16x16x32_bf16 {v(D,4)}, {v(PV_SEL,4)}, {v(PV_M+8*ul,4)}, 0')
        a(f'v_mfma_f32_16x16x32_bf16 {v(D,4)}, {v(S1,4)}, {v(PV_M+8*ul+4,4)}, {v(D,4)}')
    a('s_nop 7')
    a('v_cvt_pk_bf16_f32 v40, v40, v41')
    a('v_cvt_pk_bf16_f32 v41, v42, v43')
    a('v_cvt_pk_bf16_f32 v42, v44, v45')
    a('v_cvt_pk_bf16_f32 v43, v46, v47')
    a('s_nop 1')
    a('v_permlane16_swap_b32 v40, v42')
    a('v_permlane16_swap_b32 v41, v43')
    a('s_nop 1')
    a('v_min_u32 v40, -2, v40')

def p_segstore(a):
    a(f'buffer_store_dwordx4 v[40:43], {v(PV_SPS)}, {s(SRD_WS,4)}, {s(S_SP)} offen sc1{a.spnt}')
    a(f's_add_u32 {s(S_SP)}, {s(S_SP)}, 65536')

def p_loop(a, loc, prof, done):
    LH = a.uid('ploopH')
    for i in range(24): a(f'v_mov_b32 {v(PV_ACC+i)}, 0')
    a(f'v_mov_b32 {v(PV_FV)}, 0')
    a('s_nop 1')
    if a.s1:
        LL = a.uid('ploopL')
        a(f's_branch {LL}_nc')
        p_body(a, loc, Prof(prof), done, LL, True, LH, True)
    else: a(f's_branch {LH}_nc')
    p_body(a, loc, Prof(prof), done, LH, False, None, not a.s1)

def p_body(a, loc, pf, done, L, light, nxt, entry):
    Lrm = L + '_rm'; Lrp = L + '_rp'
    mld = [f'buffer_load_dwordx4 {v(PV_M+4*j,4)}, {v(PV_L16)}, {s(SRD_WS,4)}, {s(S_MLD)} offen offset:{1024*j} sc1' for j in range(4)]
    mreg = lambda b: [PV_M + 4 * b]
    def mm(check):
        if check:
            a('s_waitcnt vmcnt(3)')
            for x in chk(mreg(0), PV_T, f'{Lrm}_0'): a(x)
            a.label(f'{Lrm}_0ok')
            pf.stamp(a, 'b0ok')
        for b in range(4):
            ms = [f'v_smfmac_f32_16x16x64_bf16 {v(PV_ACC+4*t,4)}, {v(PV_M+4*b,4)}, {v(pw(b,t),8)}, {v(PV_IDX)}' for t in range(4 if a.qkf else 6)]
            if check and b < 3:
                c = chk(mreg(b + 1), PV_T, f'{Lrm}_{b+1}')
                ms = ms[:a.mck] + [f's_waitcnt vmcnt({2-b})'] + c[:-1] + ms[a.mck:] + c[-1:]
            if b == 3:
                ms = ms[:1] + [f'ds_write_b32 {v(PV_FLGW)}, {v(PV_FV)} offset:32'] + ms[1:]
            for x in ms: a(x)
            if check and b < 3: a.label(f'{Lrm}_{b+1}ok')
    if a.al: a.raw(f'.p2align {a.al}')
    for i in range(a.alo): a('s_nop 0')
    a.label(L)
    pf.stamp(a, 'top')
    for i in range(24): a(f'v_mov_b32 {v(PV_ACC+i)}, 0')
    if light and a.jit: p_gate(a, 0)
    if a.md: a(f's_sleep {a.md}')
    for x in mld: a(x)
    mm(True)
    if entry:
        a(f's_branch {L}_mmd')
        a.label(L + '_nc')
        if pf.on:
            a(f's_memtime {s(S_PROF, 2)}'); a(f's_memtime {s(S_PROF+2, 2)}')
        mm(False)
        a.label(L + '_mmd')
    pf.stamp(a, 'mmdone')
    def wr(t):
        A = PV_ACC + 4 * t
        a(f'v_add_f32 {v(A)}, {v(A)}, {v(A+2)}'); a(f'v_add_f32 {v(A+1)}, {v(A+1)}, {v(A+3)}')
        a(f'ds_write2_b32 {v((PV_R1W, PV_R1W1, PV_R1W2)[t>>1])}, {v(A)}, {v(A+1)} offset0:{16*(t&1)} offset1:{16*(t&1)+40}')
    R = 32
    def add4(d, x):
        for e in range(4): a(f'v_add_f32 {v(d+e)}, {v(d+e)}, {v(x+e)}')
    def reduce(fill=()):
        for h in range(4):
            a(f'ds_read_b128 {v(R+4*h,4)}, {v(PV_R1R)} offset:{LDS_RED1+3840*h}')
        for x in fill: a(x)
        a('s_waitcnt lgkmcnt(2)')
        add4(R, R + 4)
        a('s_waitcnt lgkmcnt(0)')
        add4(R + 8, R + 12)
        add4(R, R + 8)
        a(f'v_cvt_pk_bf16_f32 v56, {v(R)}, {v(R+1)}')
        a(f'v_cvt_pk_bf16_f32 v57, {v(R+2)}, {v(R+3)}')
        a('v_min_u32 v56, -2, v56')
        a(f'buffer_store_dwordx2 v[56:57], {v(PV_QST)}, {s(SRD_WS,4)}, {s(S_QST)} offen{loc}')
    def qreset():
        ring(a, S_QRS, 2, 18, S_QO)
        a(f'buffer_store_dwordx2 {v(PV_NEG,2)}, {v(PV_QST)}, {s(SRD_WS,4)}, {s(S_QRS)} offen{loc}')
    if a.qkf:
        vm = [f'v_smfmac_f32_16x16x64_bf16 {v(PV_ACC+4*t,4)}, {v(PV_M+4*b,4)}, {v(pw(b,t),8)}, {v(PV_IDX)}' for b in range(4) for t in (4, 5)]
        a(f's_cmp_ge_u32 {s(S_W)}, 2')
        for x in vm[:2]: a(x)
        a('s_nop 1')
        for t in range(4): wr(t)
        for x in vm[2:4]: a(x)
        a('s_waitcnt lgkmcnt(0)')
        pf.stamp(a, 'b1rdy', -2)
        a('s_barrier')
        pf.stamp(a, 'b1')
        a(f's_cbranch_scc1 {L}_sk0')
        reduce(vm[4:])
        a(f's_branch {L}_sk0b')
        a.label(L + '_sk0')
        for x in vm[4:]: a(x)
        a('s_nop 6')
        a.label(L + '_sk0b')
        a(f's_cmp_lg_u32 {s(S_W)}, 2')
        wr(4); wr(5)
        a('s_waitcnt lgkmcnt(0)')
        a('s_barrier')
        a(f's_cbranch_scc1 {L}_sk2')
        reduce()
        a.label(L + '_sk2')
        a(f's_cmp_eq_u32 {s(S_W)}, 3')
        a(f's_cbranch_scc1 {L}_sk1')
        qreset()
    else:
        a(f's_cmp_eq_u32 {s(S_W)}, 3')
        a('s_nop 1')
        for t in range(6): wr(t)
        a('s_waitcnt lgkmcnt(0)')
        pf.stamp(a, 'b1rdy', -2)
        a('s_barrier')
        pf.stamp(a, 'b1')
        a(f's_cbranch_scc1 {L}_sk1')
        reduce()
        qreset()
    a.label(L + '_sk1')
    pf.stamp(a, 'qpub', -2)
    a('s_setprio 0')
    ring(a, S_MRS, 3, a.msh, S_MSO)
    mex = f's_mov_b64 exec, {s(S_MEX,2)}'
    for d in range(4): a(f'v_mov_b32 {v(44+d)}, -1')
    a(mex)
    a(f'buffer_store_dwordx4 v[44:47], {v(PV_MST)}, {s(SRD_WS,4)}, {s(S_MRS)} offen{loc}')
    a('s_mov_b64 exec, -1')
    for d in range(4): a(f'v_mov_b32_dpp {v(48+d)}, {v(PV_SEL+d)} row_ror:8 row_mask:0xf bank_mask:0xf')
    ring(a, S_PLD, 0, PSLOT, S_PO)
    ring(a, S_MST, 1, a.msh, S_MSO)
    ring(a, S_MLD, 1, a.msh, S_MO)
    ring(a, S_QST, 1, 18, S_QO)
    def seg(part):
        if 's' in a.abl: return
        Lh = a.uid('pnoseg')
        a(f's_cmp_eq_u32 {s(S_SP)}, {s(S_SP0)}')
        a(f's_cbranch_scc1 {Lh}')
        p_segreduce(a, part)
        a.label(Lh)
    def oflush(part):
        l = a.uid('ofl')
        a(f's_cmp_eq_u32 {s(S_OF)}, 0')
        a(f's_cbranch_scc1 {l}')
        if part == 1:
            a(f's_lshl_b32 {s(S_T0)}, {s(S_W)}, 10')
            a(f'v_add_u32 v39, {s(S_T0)}, {v(PV_L16)}')
            a(f'ds_read_b128 v[40:43], v39 offset:{LDS_SEG}')
        else:
            a(f's_lshl_b32 {s(S_T0)}, {s(S_S)}, 18')
            a(f's_add_u32 {s(S_T0)}, {s(S_T0)}, {s(S_OB)}')
            a(f'buffer_store_dwordx4 v[40:43], {v(PV_L16)}, {s(SRD_WS,4)}, {s(S_T0)} offen sc1')
            a(f's_mov_b32 {s(S_OF)}, 0')
        a.label(l)
    unit = a.s0 < a.s1
    if unit: oflush(1)
    if light:
        a(f"""
        s_cmp_ge_u32 {s(S_S)}, {a.s0}
        s_cbranch_scc1 {L}_nx
        v_mov_b32 v40, {v(PV_QST)}
        v_mov_b32 v42, v56
        v_mov_b32 v43, v57
        s_cmp_lg_u32 {s(S_W)}, 2
        s_cbranch_scc1 {L}_nx
        v_and_b32 v40, 0x60, {v(PV_L16)}
        v_lshlrev_b32 v40, 2, v40
        v_lshrrev_b32 v41, 3, {v(PV_L16)}
        v_and_b32 v41, 0x70, v41
        v_or_b32 v40, v40, v41
        v_bfe_u32 v41, {v(PV_L16)}, 4, 1
        v_lshl_or_b32 v40, v41, 3, v40
        s_lshl_b32 {s(S_T0)}, {s(S_J)}, 9
        s_add_u32 {s(S_T0)}, {s(S_T0)}, 4096
        v_add_u32 v40, {s(S_T0)}, v40
        s_mov_b32 vcc_lo, 0x55555555
        s_mov_b32 vcc_hi, 0x55555555
        v_cndmask_b32_dpp v42, v57, v56, vcc quad_perm:[1,0,3,2] row_mask:0xf bank_mask:0xf
        s_not_b64 vcc, vcc
        v_cndmask_b32_dpp v43, v56, v57, vcc quad_perm:[1,0,3,2] row_mask:0xf bank_mask:0xf
        """)
        a.label(L + '_nx')
    else:
        a(f's_cmp_eq_u32 {s(S_S)}, {a.last}')
        a(f's_cbranch_scc1 {L}_tail')
        seg(1)
    if not (light and a.jit): p_gate(a, 1 if light else 0)
    a(f'v_readfirstlane_b32 {s(S_T4)}, {v(PV_RDY)}')
    a(f's_lshr_b32 {s(S_OK)}, {s(S_OK)}, 1')
    a(f's_cmp_ge_u32 {s(S_T4)}, {s(S_RTG)}')
    a(f's_cselect_b32 {s(S_T4)}, 2, 0')
    a(f's_or_b32 {s(S_OK)}, {s(S_OK)}, {s(S_T4)}')
    a(f's_cmp_eq_u32 {s(S_W)}, 3')
    a(f's_cselect_b32 {s(S_T3)}, {s(S_T4)}, 0')
    gate_addr(a, S_RDY, 4, S_RTG)
    dl = []
    for m, ch in ((0, 'k'), (1, 'v'))[:1 if light else 2]:
        if ch not in a.abl and not (light and a.lr & 2): dl += dma_list(a, m, PV_L16, S_T0)
    nd1 = a.ndl if light else a.nd1
    a(f's_setprio {a.fprio}')
    flag_wait(a, L + '_fs', PV_FLGR, 0, 32, S_T1, sl=a.fsl)
    pf.stamp(a, 'flag')
    a(f's_setprio {a.dprio}')
    for x in dl[:nd1]: a(x)
    if light and a.ofd: a(f's_sleep {a.ofd}')
    if 't' not in a.abl:
        a(f's_cmp_eq_u32 {s(S_T3)}, 0')
        a(f's_cbranch_scc1 {L}_nt')
        if light:
            a(f's_cmp_ge_u32 {s(S_S)}, {max(a.s0 - 3, 0)}')
            a('s_cselect_b32 exec_hi, 0xffff, 0')
        else: a('s_mov_b32 exec_hi, 0xffff')
        a(f'buffer_load_dword {v(PV_RDY)}, {v(PV_PFA)}, {s(SRD_WS,4)}, {s(S_TCH)} offen sc1')
        a('s_mov_b32 exec_hi, -1')
        a.label(L + '_nt')
    if unit: oflush(2)
    if light:
        if unit:
            a(f's_lshr_b32 {s(S_T0)}, {s(S_C)}, 3')
            a(f's_xor_b32 {s(S_T0)}, {s(S_T0)}, {s(S_S)}')
            a(f's_andn2_b32 {s(S_OF)}, 1, {s(S_T0)}')
            a(f's_cmp_ge_u32 {s(S_S)}, {a.s0}')
            a(f's_cselect_b32 {s(S_OF)}, {s(S_OF)}, 0')
            a(f's_cbranch_scc1 {L}_nx2')
        a(f's_cmp_eq_u32 {s(S_W)}, 3')
        a(f's_cbranch_scc1 {L}_nx2')
        if 'x' not in a.abl: a(f'buffer_store_dwordx2 v[42:43], v40, {s(SRD_WS,4)}, {s(S_KMX)} offen sc1')
        a.label(L + '_nx2')
        a(f's_add_u32 {s(S_KMX)}, {s(S_KMX)}, 262144')
    else: seg(2)
    pf.stamp(a, 'b2rdy')
    a('s_barrier')
    pf.stamp(a, 'b2')
    a(f'buffer_load_dword {v(PV_RDY)}, off, {s(SRD_WS,4)}, {s(S_RDY)} sc1')
    if dl[nd1:]:
        if a.d2: a(f's_sleep {a.d2}')
        for x in dl[nd1:]: a(x)
    a(f's_add_u32 {s(S_S)}, {s(S_S)}, 1')
    a(f'v_mov_b32 {v(PV_FV)}, {s(S_S)}')
    a(f's_add_u32 {s(S_KG)}, {s(S_KG)}, 262144')
    a(f's_add_u32 {s(S_TCH)}, {s(S_TCH)}, 262144')
    if not light: a(f's_mov_b32 {s(S_SP0)}, 0')
    a('s_setprio 3')
    cd = a.cdl if light else a.cd
    if cd: a(f's_sleep {cd}')
    pf.stamp(a, 'poll')
    a.label(L + '_pagain')
    for i in range(2): a(f'buffer_load_dwordx4 {v(PV_M+4*i,4)}, {v(PV_L16)}, {s(SRD_WS,4)}, {s(S_PLD)} offen offset:{1024*i} sc1')
    D = 32
    a('s_waitcnt vmcnt(1)')
    a(f'v_mfma_f32_16x16x32_bf16 {v(D,4)}, {v(PV_SEL,4)}, {v(PV_M,4)}, 0')
    a('s_waitcnt vmcnt(0)')
    pf.stamp(a, 'p1')
    a(f'v_mfma_f32_16x16x32_bf16 {v(D,4)}, v[48:51], {v(PV_M+4,4)}, {v(D,4)}')
    for x in chk([PV_M, PV_M + 4], PV_T, Lrp): a(x)
    a.label(L + '_pgo')
    if light: a(f's_cmp_lt_u32 {s(S_S)}, {a.s1}')
    a(f's_nop {3 if light else 4}')
    for e in range(4): a(f'v_add_f32_dpp {v(D+4+e)}, {v(D+e)}, {v(D+e)} row_ror:8 row_mask:0xf bank_mask:0xf')
    a(f'v_cvt_pk_bf16_f32 v52, {v(D+4)}, {v(D+5)}')
    a(f'v_cvt_pk_bf16_f32 v53, {v(D+6)}, {v(D+7)}')
    a('s_nop 0')
    a('v_permlane16_swap_b32 v52, v54')
    a('v_permlane16_swap_b32 v53, v55')
    a(mex)
    a('v_min_u32 v52, -2, v52')
    a(f'buffer_store_dwordx4 v[52:55], {v(PV_MST)}, {s(SRD_WS,4)}, {s(S_MST)} offen{loc}')
    a('s_mov_b64 exec, -1')
    a(f'ds_write_b32 {v(PV_FLGW)}, {v(PV_FV)} offset:16')
    pf.stamp(a, 'mpub')
    if pf.on:
        a(f's_sub_u32 {s(S_S)}, {s(S_S)}, 1')
        pf.flush(a, 56, 'P')
        a(f's_add_u32 {s(S_S)}, {s(S_S)}, 1')
        if light: a(f's_cmp_lt_u32 {s(S_S)}, {a.s1}')
    if light:
        a(f's_cbranch_scc1 {L}')
        a(f's_branch {nxt}')
    else: a(f's_branch {L}')
    for b in range(4):
        spin_block(a, f'{Lrm}_{b}', mld[b:], mreg(b), PV_T, f'{Lrm}_{b}ok', f'{Lrm}_{b}ok')
    a.label(Lrp)
    if a.rsleep: a(f's_sleep {a.rsleep}')
    a(f's_sub_u32 {s(S_TO)}, {s(S_TO)}, 1')
    a(f's_cbranch_scc0 {L}_pagain')
    a(f's_mov_b32 {s(S_TO)}, 0')
    a(f's_branch {L}_pgo')
    if not light:
        a.label(L + '_tail')
        p_segreduce(a)
        a('s_barrier')
        p_segreduce(a)
        a(f's_branch {done}')

AV_L16, AV_PST, AV_MX, AV_T = 0, 1, 2, 3
AV_ONE = 4
AV_HALF = 8
AV_IDX = 166
AV_FLGR = 167
AV_VMW, AV_TRV, AV_TRM = 180, 181, 182
S_QM = 56
AV_S = 12
AV_O = 24
AV_VWM = 40
AV_Y, AV_X = 48, 64
AV_VWS = 80
AV_KS, AV_TB = 96, 128
AV_NEG, AV_R2W, AV_R2R, AV_SGW, AV_LB, AV_FLGW, AV_FV = 176, 160, 161, 162, 163, 164, 165
AV_PK = 168
AV_SEL = 184
AV_FT = 188
AV_WO = 192
def wo(u, ct): return AV_WO + (ct * 4 + u) * 4
def xk(u): return AV_Y + 4 * u

def tr_addr(a, vd, vl, rowbytes, T, hh, t1, t2):
    sh = rowbytes.bit_length() - 1
    a(f'''
    v_lshrrev_b32 {v(t1)}, 4, {v(vl)}
    v_and_b32 {v(t2)}, 1, {v(t1)}
    v_xor_b32 {v(t2)}, {hh}, {v(t2)}
    v_lshlrev_b32 {v(t2)}, 2, {v(t2)}
    v_lshl_add_u32 {v(t2)}, {v(t1)}, 3, {v(t2)}
    v_bfe_u32 {v(t1)}, {v(vl)}, 2, 2
    v_add_u32 {v(t2)}, {v(t2)}, {v(t1)}
    v_lshlrev_b32 {v(t2)}, {sh}, {v(t2)}
    v_and_b32 {v(t1)}, 3, {v(vl)}
    v_lshl_add_u32 {v(t2)}, {v(t1)}, 4, {v(t2)}
    v_and_b32 {v(t1)}, 1, {v(t1)}
    v_xor_b32 {v(t1)}, {T}, {v(t1)}
    v_lshl_add_u32 {v(vd)}, {v(t1)}, 3, {v(t2)}
    ''')

def vw_list():
    m = []
    for u in range(4):
        for kt in range(2):
            for ct in range(4):
                d = AV_Y + (kt * 4 + ct) * 4
                m.append(f'v_mfma_f32_16x16x32_bf16 {v(d,4)}, {v(AV_TB+(kt*4+u)*4,4)}, {v(wo(u,ct),4)}, {"0" if u==0 else v(d,4)}')
    return m
def vw_pack():
    o = []
    for ct in range(4):
        for kt in range(2):
            d = AV_Y + (kt * 4 + ct) * 4
            o.append(f'v_cvt_pk_bf16_f32 {v(AV_VWS+4*ct+2*kt)}, {v(d)}, {v(d+1)}')
            o.append(f'v_cvt_pk_bf16_f32 {v(AV_VWS+4*ct+2*kt+1)}, {v(d+2)}, {v(d+3)}')
    return o

def a_prologue(a):
    a(f'''
    v_and_b32 v20, 63, v0
    v_lshlrev_b32 {v(AV_L16)}, 4, v20
    s_lshl_b32 {s(S_T0)}, {s(S_H)}, 18
    s_lshl_b32 {s(S_T1)}, {s(S_C)}, 7
    s_add_u32 {s(S_T0)}, {s(S_T0)}, {s(S_T1)}
    s_lshl_b32 {s(S_T2)}, {s(S_T4)}, 13
    s_add_u32 {s(S_T2)}, {s(S_T2)}, 131072
    s_load_dwordx2 {s(SRD_T,2)}, s[0:1], {KA_WO}
    s_mov_b32 {s(SRD_T+2)}, {8*MB}
    s_mov_b32 {s(SRD_T+3)}, {SRD3}
    v_lshrrev_b32 v21, 3, v20
    v_and_b32 v22, 7, v20
    v_lshlrev_b32 v21, 11, v21
    v_lshl_add_u32 v21, v22, 4, v21
    ''')
    for T in range(2):
        for hh in range(2):
            tr_addr(a, 24 + T * 2 + hh, 20, 128, T, hh, 28, 29)
            a(f'v_add_u32 {v(24+T*2+hh)}, {s(S_T2)}, {v(24+T*2+hh)}')
    a('s_waitcnt lgkmcnt(0)')
    for n in range(8):
        a(f's_add_u32 m0, {s(S_T2)}, {n*1024}')
        a('s_nop 0')
        a(f'buffer_load_dwordx4 v21, {s(SRD_T,4)}, {s(S_T0)} offen lds')
        a(f's_add_u32 {s(S_T0)}, {s(S_T0)}, {8*2048}')
    for n in range(8):
        a(f'buffer_load_dwordx4 {v(AV_KS+4*n,4)}, v21, {s(SRD_T,4)}, {s(S_T0)} offen')
        a(f's_add_u32 {s(S_T0)}, {s(S_T0)}, {8*2048}')

def a_prologue2(a):
    a(f's_lshl_b32 {s(S_T2)}, {s(S_T4)}, 13')
    a(f's_add_u32 {s(S_T2)}, {s(S_T2)}, 131072')
    a(f'v_add_u32 v30, {s(S_T2)}, {v(AV_L16)}')
    for half in range(2):
        a(f's_waitcnt vmcnt({8 - 8*half})')
        if half:
            for n in range(8): a(f'ds_write_b128 v30, {v(AV_KS+4*n,4)} offset:{n*1024}')
            a('s_waitcnt lgkmcnt(0)')
        for uu in range(2):
            for p in range(2):
                for T in range(2):
                    for hh in range(2):
                        a(f'ds_read_b64_tr_b16 {v(wo(2*half+uu, 2*p+T)+2*hh,2)}, {v(24+T*2+hh)} offset:{uu*4096+p*64}')
            a('s_waitcnt lgkmcnt(0)')
    a(f'''
    v_lshrrev_b32 v21, 4, v20
    v_and_b32 v22, 2, v20
    v_cmp_eq_u32 {s(S_QM,2)}, 2, v22
    v_and_b32 v23, 15, v20
    v_lshlrev_b32 v21, 2, v21
    v_mov_b32 v8, 0x44444444
    v_mov_b32 v9, 0xeeeeeeee
    v_cndmask_b32 {v(AV_IDX)}, v8, v9, {s(S_QM,2)}
    v_mov_b32 v8, 0x3f803f80
    v_mov_b32 v9, 0
    v_mov_b32 v10, 0
    v_mov_b32 v11, 0
    v_mov_b32 v4, 0x3f803f80
    v_mov_b32 v5, 0x3f803f80
    v_mov_b32 v6, 0x3f803f80
    v_mov_b32 v7, 0x3f803f80
    s_mov_b32 {s(S_CST)}, 0x3e0293ee
    s_lshl_b32 {s(S_PRG)}, {s(S_I)}, 2
    s_add_u32 {s(S_PRG)}, {s(S_PRG)}, {s(S_T4)}
    s_lshl_b32 {s(S_CS)}, {s(S_X)}, 7
    s_add_u32 {s(S_CS)}, {s(S_CS)}, {F.CS_TAB}
    v_add_u32 {v(AV_LB)}, {s(S_KL)}, {v(AV_L16)}
    s_lshl_b32 {s(S_T0)}, {s(S_T4)}, 2
    s_add_u32 {s(S_T0)}, {s(S_T0)}, {LDS_FLG}
    v_mov_b32 {v(AV_FLGW)}, {s(S_T0)}
    v_mov_b32 {v(AV_FLGR)}, {LDS_FLG}
    ''')
    sel_init(a, AV_SEL, 20, 24, 25)
    a(f'''
    v_lshrrev_b32 v24, 4, v20                 ; g
    v_bfe_u32 v25, v20, 2, 2
    v_and_b32 v26, 1, v20
    v_lshl_add_u32 v26, v25, 1, v26           ; t
    v_lshlrev_b32 v26, 4, v26
    v_lshl_add_u32 v26, v24, 8, v26
    v_bfe_u32 v27, v20, 1, 1
    v_lshl_add_u32 v26, v27, 2, v26
    s_add_u32 {s(S_T0)}, {s(S_KL)}, 20480
    v_add_u32 {v(AV_VMW)}, {s(S_T0)}, v26
    v_and_b32 v26, 3, v20                     ; cc
    v_lshl_add_u32 v27, v24, 2, v25
    v_lshl_add_u32 v27, v26, 4, v27
    v_lshlrev_b32 v27, 4, v27
    v_add_u32 {v(AV_TRV)}, {s(S_KL)}, v27
    v_and_b32 v25, 1, v25
    v_lshl_add_u32 v25, v24, 1, v25
    v_lshl_add_u32 v25, v26, 3, v25
    v_lshlrev_b32 v25, 4, v25
    v_add_u32 {v(AV_TRM)}, {s(S_T0)}, v25
    s_bfe_u32 {s(S_T0)}, {s(S_C)}, 0x20001
    s_lshr_b32 {s(S_DW)}, {s(S_C)}, 3
    s_cmp_eq_u32 {s(S_T0)}, {s(S_T4)}
    s_cselect_b32 {s(S_DW)}, {s(S_DW)}, 2
    s_and_b32 {s(S_QT)}, {s(S_C)}, 1
    s_lshl_b32 {s(S_QT)}, {s(S_QT)}, 17
    s_mov_b32 {s(S_U2)}, 0
    ''')
    for i in range(4):
        a(f'v_add_u32 v24, {i}, v21')
        a(f'v_cmp_gt_u32 {s(S_M0+2*i,2)}, v24, v23')

def a_static(a):
    a(f"""
    v_and_b32 v20, 63, v0
    v_lshrrev_b32 v21, 4, v20                 ; g
    v_bfe_u32 v22, v20, 1, 1
    v_xor_b32 v22, 1, v22                     ; p = !(n&2)
    v_lshl_add_u32 v23, v22, 2, v21           ; uu
    v_bfe_u32 v22, v20, 2, 2
    v_and_b32 v24, 1, v20
    v_lshl_add_u32 v22, v22, 1, v24           ; t
    v_lshl_add_u32 v23, v23, 3, v22
    v_and_b32 v22, 7, v20
    v_lshlrev_b32 v23, 4, v23
    s_lshl_b32 {s(S_T0)}, {s(S_T4)}, 10
    s_add_u32 {s(S_T0)}, {s(S_T0)}, {LDS_RED2}
    v_add_u32 {v(AV_R2W)}, {s(S_T0)}, v23
    v_and_b32 v24, 15, v20
    v_lshlrev_b32 v24, 4, v24                 ; n*16
    v_lshl_add_u32 v23, v21, 10, v24
    s_lshl_b32 {s(S_T0)}, {s(S_T4)}, 8
    s_add_u32 {s(S_T0)}, {s(S_T0)}, {LDS_RED2}
    v_add_u32 {v(AV_R2R)}, {s(S_T0)}, v23
    v_lshl_add_u32 v23, v21, 9, v24
    s_lshl_b32 {s(S_T0)}, {s(S_T4)}, 12
    s_add_u32 {s(S_T0)}, {s(S_T0)}, {LDS_SEG}
    v_add_u32 {v(AV_SGW)}, {s(S_T0)}, v23
    v_bfe_u32 v23, v20, 3, 1
    v_lshlrev_b32 v23, 10, v23
    v_lshl_add_u32 v23, v22, 4, v23
    v_mov_b32 {v(AV_PST)}, v23
    s_lshl_b32 {s(S_PO)}, {s(S_C)}, 14
    s_lshl_b32 {s(S_T0)}, {s(S_T4)}, 11
    s_add_u32 {s(S_PO)}, {s(S_PO)}, {s(S_T0)}
    s_lshl_b32 {s(S_T0)}, {s(S_G)}, 7
    s_add_u32 {s(S_PO)}, {s(S_PO)}, {s(S_T0)}
    s_add_u32 {s(S_PO)}, {s(S_PO)}, {WS_PART}
    """)
    for i in range(4): a(f'v_mov_b32 {v(AV_NEG+i)}, -1')

def exp_seq(r):
    seq = []
    n = len(r)
    seq.append(f'v_max3_f32 {v(AV_MX)}, {v(r[0])}, {v(r[1])}, {v(r[2])}')
    seq.append(f'v_max3_f32 {v(AV_T)}, {v(r[3])}, {v(r[4])}, {v(r[5])}')
    rr = r[6:]; k = 0
    while len(rr) >= 2:
        d = (AV_MX, AV_T)[k & 1]; k += 1
        seq.append(f'v_max3_f32 {v(d)}, {v(d)}, {v(rr[0])}, {v(rr[1])}'); rr = rr[2:]
    seq.append(f'v_max_f32 {v(AV_MX)}, {v(AV_MX)}, {v(AV_T)}')
    seq += red_gq(AV_MX, AV_T, 'v_max_f32')
    seq.append(f'v_mul_f32 {v(AV_MX)}, {s(S_CST)}, {v(AV_MX)}')
    fm = [f'v_fma_f32 {v(x)}, {v(x)}, {s(S_CST)}, -{v(AV_MX)}' for x in r]
    ex = [f'v_exp_f32 {v(x)}, {v(x)}' for x in r]
    seq += fm[:2]
    for i in range(n):
        if i + 2 < n: seq.append(fm[i + 2])
        seq.append(ex[i])
    return seq

def packP(S, t1zero=False):
    T0, T1, TM = S, S + 4, S + 8
    o = [f'v_cvt_pk_bf16_f32 {v(T0)}, {v(T0)}, {v(T0+1)}', f'v_cvt_pk_bf16_f32 {v(T0+1)}, {v(T0+2)}, {v(T0+3)}']
    if t1zero: o += [f'v_mov_b32 {v(T0+2)}, 0', f'v_mov_b32 {v(T0+3)}, 0']
    else: o += [f'v_cvt_pk_bf16_f32 {v(T0+2)}, {v(T1)}, {v(T1+1)}', f'v_cvt_pk_bf16_f32 {v(T0+3)}, {v(T1+2)}, {v(T1+3)}']
    o += [f'v_cvt_pk_bf16_f32 {v(TM)}, {v(TM)}, {v(TM+1)}', f'v_mov_b32 {v(TM+2)}, 0',
          f'v_mov_b32 {v(TM+1)}, {v(TM)}', f'v_mov_b32 {v(TM+3)}, 0']
    return o

def pv_seq(S, qt, rc):
    SM = S + 4
    o = [f'v_mfma_f32_16x16x32_bf16 {v(SM,4)}, {v(AV_ONE,4)}, {v(S,4)}, 0',
         f'v_mfma_f32_16x16x32_bf16 {v(SM,4)}, {v(AV_HALF,4)}, {v(S+8,4)}, {v(SM,4)}']
    for ct in range(4):
        o.append(f'v_mfma_f32_16x16x32_bf16 {v(AV_O+4*ct,4)}, {v(AV_VWS+4*ct,4)}, {v(S,4)}, 0')
        o.append(f'v_mfma_f32_16x16x32_bf16 {v(AV_O+4*ct,4)}, {v(AV_VWM+2*ct,4)}, {v(S+8,4)}, {v(AV_O+4*ct,4)}')
    o.append(f'v_rcp_f32 {v(rc)}, {v(SM)}')
    o.append('s_nop 0')
    P = AV_PK
    for ct in range(4):
        for i in range(4): o.append(f'v_mul_f32 {v(AV_O+4*ct+i)}, {v(AV_O+4*ct+i)}, {v(rc)}')
        o.append(f'v_cvt_pk_bf16_f32 {v(P+2*ct)}, {v(AV_O+4*ct)}, {v(AV_O+4*ct+1)}')
        o.append(f'v_cvt_pk_bf16_f32 {v(P+2*ct+1)}, {v(AV_O+4*ct+2)}, {v(AV_O+4*ct+3)}')
    for p in range(2): o.append(f'ds_write_b128 {v(AV_SGW)}, {v(P+4*p,4)} offset:{2048*p+256*qt}')
    return o

def a_loop(a, prof, done):
    LH = a.uid('aloopH')
    if a.s1: a_body(a, Prof(prof), done, a.uid('aloopL'), True, LH)
    a_body(a, Prof(prof), done, LH, False, None)

def a_body(a, pf, done, L, light, nxt):
    Lr = L + '_rq'
    SA = AV_S; SB = AV_X + 4
    if a.al: a.raw(f'.p2align {a.al}')
    for i in range(a.aloa): a('s_nop 0')
    a.label(L)
    pf.stamp(a, 'top')
    ring(a, S_QLD, 0, 18, S_QO)
    a(f's_add_u32 {s(S_QLD2)}, {s(S_QLD)}, 4096')
    ring(a, S_PSTC, 0, PSLOT, S_PO)
    ring(a, S_PRS, 2, PSLOT, S_PO)
    a(f'v_mov_b32 {v(AV_FV)}, {s(S_S)}')
    vw = vw_list()
    kr = [f'ds_read_b128 {v(AV_KS+4*i,4)}, {v(AV_LB)} offset:{1024*i}' for i in range(8)]
    vr = [f'ds_read_b128 {v(AV_TB+4*(kt*4+u),4)}, {v(AV_LB)} offset:{8192+1024*(kt*4+u)}' for u in range(4) for kt in range(2)]
    zo = [f'v_mov_b32 {v(AV_O+i)}, 0' for i in range(16)]
    unit = light and a.s0 < a.s1
    def part2(tag):
        a(f's_cmp_eq_u32 {s(S_U2)}, 0')
        a(f's_cbranch_scc1 {L}_{tag}')
        a(f's_mov_b32 {s(S_U2)}, 0')
        for p in range(4):
            for Tt in range(2):
                t = 2 * p + Tt
                for kt in range(2):
                    a(f'ds_read_b64_tr_b16 {v(AV_TB+4*t+2*kt,2)}, {v(AV_TRV)} offset:{4096*kt + 1024*p + 8*Tt}')
                a(f'ds_read_b64_tr_b16 {v(AV_X+2*t,2)}, {v(AV_TRM)} offset:{512*p + 8*Tt}')
        a(f'v_mov_b32 {v(AV_FT)}, 0xff61b1e6')
        a(f's_cmp_eq_u32 {s(S_QT)}, 0')
        for i in range(4):
            a(f's_cselect_b64 vcc, {s(S_M0+2*i,2)}, 0')
            a(f'v_cndmask_b32 {v(SA+i)}, {v(SA+i)}, {v(AV_FT)}, vcc')
            a(f's_cselect_b64 vcc, -1, {s(S_M0+2*i,2)}')
            a(f'v_cndmask_b32 {v(SA+4+i)}, {v(SA+4+i)}, {v(AV_FT)}, vcc')
        for x in exp_seq(list(range(SA, SA + 10))): a(x)
        pk = packP(SA); pk[6] = f'v_mov_b32 {v(SA+9)}, 0'
        for x in pk: a(x)
        a('s_waitcnt lgkmcnt(0)')
        a('s_nop 0')
        SM = SA + 4
        a(f'v_mfma_f32_16x16x32_bf16 {v(SM,4)}, {v(AV_ONE,4)}, {v(SA,4)}, 0')
        a(f'v_mfma_f32_16x16x32_bf16 {v(SM,4)}, {v(AV_ONE,4)}, {v(SA+8,4)}, {v(SM,4)}')
        oa = lambda t: (AV_O if t < 4 else AV_Y - 16) + 4 * t
        for t in range(8):
            a(f'v_mfma_f32_16x16x32_bf16 {v(oa(t),4)}, {v(AV_TB+4*t,4)}, {v(SA,4)}, 0')
            a(f'v_mfma_f32_16x16x32_bf16 {v(oa(t),4)}, {v(AV_X+2*t,4)}, {v(SA+8,4)}, {v(oa(t),4)}')
        a(f'v_rcp_f32 {v(AV_T)}, {v(SM)}')
        a('s_nop 0')
        for p in range(4):
            o = oa(2 * p)
            for i in range(8): a(f'v_mul_f32 {v(o+i)}, {v(o+i)}, {v(AV_T)}')
            for d in range(4): a(f'v_cvt_pk_bf16_f32 {v(o+d)}, {v(o+2*d)}, {v(o+2*d+1)}')
            a(f'ds_write_b128 {v(AV_L16)}, {v(o,4)} offset:{LDS_SEG + 1024*p}')
        a.label(f'{L}_{tag}')
    if light and a.vpos: a('s_waitcnt vmcnt(8)')
    if unit:
        assert a.lr == 3
        a(f's_and_b32 {s(S_DU)}, {s(S_S)}, 1')
        a(f's_cmp_lt_u32 {s(S_S)}, {a.s0}')
        a(f's_cselect_b32 {s(S_DU)}, 3, {s(S_DU)}')
        a(f's_cmp_lg_u32 {s(S_DU)}, {s(S_DW)}')
        a(f's_cbranch_scc1 {L}_nd0')
        for i in range(8): a(f'ds_write_b128 {v(AV_LB)}, {v(AV_TB+4*i,4)} offset:{1024*i}')
        a.label(L + '_nd0')
    if light:
        if not a.lr & 1:
            for x in vr: a(x)
            for u in range(4): vw[8*u] = f's_waitcnt lgkmcnt({6 - 2*u})\n' + vw[8*u]
        for x in vw: a(x)
        if unit:
            a('s_nop 2')
            for x in vw_pack(): a(x)
            part2('p2a')
            for x in zo: a(x)
        else:
            for x in zo: a(x)
            for x in vw_pack(): a(x)
        if not a.lr & 2:
            flag_wait(a, L + '_wkv', AV_FLGW, 16, AV_FT, S_T2, sl=a.kvsl, one=True)
            for x in kr: a(x)
        pf.stamp(a, 'kv', -3)
    else:
        flag_wait(a, L + '_wkv', AV_FLGW, 16, AV_FT, S_T2, sl=a.kvsl, one=True)
        pf.stamp(a, 'kv', -3)
        for x in vr + kr: a(x)
        for u in range(4): vw[8*u] = f's_waitcnt lgkmcnt({14 - 2*u})\n' + vw[8*u]
        for x in vw[:a.vwp]: a(x)
    vp = light and a.vpos
    a('s_setprio 2')
    if not vp: flag_wait(a, L + '_wm', AV_FLGW, 32, AV_FT, S_T2, sl=a.kvsl, one=True)
    pf.stamp(a, 'fm', -3)
    if unit:
        a(f's_cmp_lg_u32 {s(S_DU)}, {s(S_DW)}')
        a(f's_cbranch_scc1 {L}_nd1')
        a(f's_add_u32 m0, {s(S_KL)}, 16384')
        a(f's_add_u32 {s(S_T0)}, {s(S_KG)}, {s(S_QT)}')
        a(f's_add_u32 {s(S_T0)}, {s(S_T0)}, {WS_QS}')
        for u in range(4): a(f'buffer_load_dwordx4 {v(AV_L16)}, {s(SRD_WS,4)}, {s(S_T0)} offen offset:{1024*u} sc1 lds')
        a.label(L + '_nd1')
    if light: a(f's_add_u32 {s(S_KG)}, {s(S_KG)}, 262144')
    if ('v' if light else 'q') not in a.abl and not vp:
        for x in (reg_list(a, 1, AV_TB, S_T0) if light and a.lr & 1 else dma_list(a, 1 if light else 2, AV_L16, S_T0)): a(x)
    if not light: a(f's_add_u32 {s(S_KG)}, {s(S_KG)}, 262144')
    pf.stamp(a, 'b1rdy', -3)
    a('s_barrier')
    pf.stamp(a, 'b1')
    qr = [f'ds_read_b128 {v(AV_TB+4*i,4)}, {v(AV_LB)} offset:{16384+1024*i}' for i in range(8)]
    if not light:
        for x in vw[a.vwp:]: a(x)
        a('s_nop 2')
        for x in vw_pack(): a(x)
        for x in zo: a(x)
    if a.qkf: a('s_barrier')
    qd = a.qdl if light else a.qd
    if qd: a(f's_sleep {qd}')
    a('s_waitcnt lgkmcnt(0)')
    pf.stamp(a, 'poll')
    qm = [f'buffer_load_dwordx4 {v(AV_Y+4*u,4)}, {v(AV_L16)}, {s(SRD_WS,4)}, {s(S_QLD)} offen offset:{1024*u} sc1' for u in range(4)]
    qm += [f'buffer_load_dwordx4 {v(AV_X+4*u2,4)}, {v(AV_L16)}, {s(SRD_WS,4)}, {s(S_QLD2)} offen offset:{1024*u2} sc1' for u2 in range(2)]
    qreg = [[AV_Y + 4 * u + i for i in (0, 2)] for u in range(4)]
    vreg = [AV_X + i for i in range(0, 8, 2)]
    for x in qm[:4]: a(x)
    if a.vdel: a(f's_sleep {a.vdel}' if a.vdel > 0 else f's_nop {-a.vdel}')
    for x in qm[4:]: a(x)
    def crit_s(check, first=False):
        for u in range(4):
            if check: a(f's_waitcnt vmcnt({5-u})')
            if first and u == 0: pf.stamp(a, 'z0')
            z = v(AV_Y + 4 * u, 4)
            for kt in range(2):
                d = SA + 4 * kt
                a(f'v_mfma_f32_16x16x32_bf16 {v(d,4)}, {v(AV_KS+(kt*4+u)*4,4)}, {z}, {"0" if u==0 else v(d,4)}')
            if check:
                c = chk(qreg[u], AV_T, f'{Lr}_{u}')
                for x in c[:-1]: a(x)
            a(f'v_mfma_f32_16x16x32_bf16 {v(SA+8,4)}, {z}, {z}, {"0" if u==0 else v(SA+8,4)}')
            if check: a(c[-1])
    crit_s(True, True)
    a.label(L + '_sdone')
    pf.stamp(a, 'sdone')
    if light: a('s_nop 1')
    else:
        a(f's_cmp_eq_u32 {s(S_S)}, {a.last}')
        a(f's_cbranch_scc1 {L}_lsk')
    vwm = [f'v_smfmac_f32_16x16x64_bf16 {v(AV_O+4*ct,4)}, {v(AV_X+4*c2,4)}, {v(wo(2*c2,ct),8)}, {v(AV_IDX)}' for c2 in range(2) for ct in (0, 2, 1, 3)]
    vc = chk(vreg, AV_FT, f'{Lr}_v')
    M, T = v(AV_MX), v(AV_T)
    a(f"""
    ds_write_b32 {v(AV_FLGW)}, {v(AV_FV)}
    s_nop 0
    v_max3_f32 {M}, {v(SA)}, {v(SA+1)}, {v(SA+2)}
    v_max3_f32 {T}, {v(SA+3)}, {v(SA+4)}, {v(SA+5)}
    v_max3_f32 {M}, {M}, {v(SA+6)}, {v(SA+7)}
    v_max3_f32 {T}, {T}, {v(SA+8)}, {v(SA+9)}
    v_max_f32 {M}, {M}, {T}
    v_mov_b32 {T}, {M}
    s_nop 1
    v_permlane16_swap_b32 {T}, {M}
    v_max_f32 {M}, {M}, {T}
    v_mov_b32 {T}, {M}
    s_waitcnt vmcnt(0)
    {vc[0]}
    v_permlane32_swap_b32 {T}, {M}
    v_max_f32 {M}, {M}, {T}
    {vc[1]}
    v_mul_f32 {M}, {s(S_CST)}, {M}
    {vc[2]}
    """)
    r = list(range(SA, SA + 10))
    fm = [f'v_fma_f32 {v(x)}, {v(x)}, {s(S_CST)}, -{M}' for x in r]
    ex = [f'v_exp_f32 {v(x)}, {v(x)}' for x in r]
    a(fm[0]); a(fm[1])
    a(vc[3])
    a.label(L + '_vok')
    pf.stamp(a, 'max', 3)
    vwc = []
    for ct in range(4):
        d = AV_O + 4 * ct
        vwc += [f'v_cvt_pk_bf16_f32 {v(AV_VWM+2*ct)}, {v(d)}, {v(d+1)}', f'v_cvt_pk_bf16_f32 {v(AV_VWM+2*ct+1)}, {v(d+2)}, {v(d+3)}']
    SM = SA + 4
    def mid(kin, st):
        a(vwm[0])
        for i in range(10):
            if i + 2 < 10: a(fm[i + 2])
            a(ex[i])
            if i + 1 < 8: a(vwm[i + 1])
            if kin and (a.kpos + a.vpos == 1 or i & 1): a(kin.pop(0))
        if st: pf.stamp(a, 'exp', 3)
        pk = packP(SA)
        for x in pk[:4]: a(x)
        mA = f'v_mfma_f32_16x16x32_bf16 {v(SM,4)}, {v(AV_ONE,4)}, {v(SA,4)}, 0'
        mB = f'v_mfma_f32_16x16x32_bf16 {v(SM,4)}, {v(AV_HALF,4)}, {v(SA+8,4)}, {v(SM,4)}'
        for x in pk[4:6]: a(x)
        a(mA)
        for x in pk[6:]: a(x)
        for n, ct in enumerate((0, 2, 1, 3)):
            a(vwc[2*ct]); a(vwc[2*ct+1])
            if n == 0: a(mB)
            a(f'v_mfma_f32_16x16x32_bf16 {v(AV_O+4*ct,4)}, {v(AV_VWS+4*ct,4)}, {v(SA,4)}, 0')
            if kin: a(kin.pop(0))
        assert not kin
    kp = light and a.lr & 2 and a.kpos and 'k' not in a.abl
    assert not (kp and vp)
    if kp and unit:
        a(f's_cmp_eq_u32 {s(S_DU)}, {s(S_DW)}')
        a(f's_cbranch_scc1 {L}_midD')
    mid(reg_list(a, 0, AV_KS, S_T0) if kp else reg_list(a, 1, AV_TB, S_T0) if vp else [], True)
    a.label(L + '_midE')
    a(f's_mov_b64 vcc, {s(S_QM,2)}')
    a(f'v_rcp_f32 {T}, {v(SM)}')
    for ct in (0, 2, 1, 3):
        a(f'v_mfma_f32_16x16x32_bf16 {v(AV_O+4*ct,4)}, {v(AV_VWM+2*ct,4)}, {v(SA+8,4)}, {v(AV_O+4*ct,4)}')
    pf.stamp(a, 'pv', 3)
    qp = 'quad_perm:[2,3,2,3] row_mask:0xf bank_mask:0xf'
    a(f'v_mov_b32_dpp {T}, {T} {qp}')
    a('s_nop 4')
    for h in range(2):
        for i in range(4*h, 4*h+4): a(f'v_cndmask_b32_dpp {v(AV_O+i)}, {v(AV_O+8+i)}, {v(AV_O+i)}, vcc {qp}')
    for i in range(8): a(f'v_mul_f32 {v(AV_O+i)}, {v(AV_O+i)}, {T}')
    for d in range(4): a(f'v_cvt_pk_bf16_f32 {v(AV_PK+d)}, {v(AV_O+2*d)}, {v(AV_O+2*d+1)}')
    a(f'ds_write_b128 {v(AV_R2W)}, {v(AV_PK,4)}')
    a('s_waitcnt lgkmcnt(0)')
    pf.stamp(a, 'b2rdy')
    a('s_barrier')
    pf.stamp(a, 'b2')
    a(f'ds_read_b128 {v(AV_PK+4,4)}, {v(AV_R2R)}')
    a('s_waitcnt lgkmcnt(0)')
    a(f'v_mfma_f32_16x16x32_bf16 {v(AV_O,4)}, {v(AV_SEL,4)}, {v(AV_PK+4,4)}, 0')
    a('s_nop 7')
    a(f'v_cvt_pk_bf16_f32 {v(AV_PK)}, {v(AV_O)}, {v(AV_O+1)}')
    a(f'v_cvt_pk_bf16_f32 {v(AV_PK+1)}, {v(AV_O+2)}, {v(AV_O+3)}')
    a('s_nop 0')
    a(f'v_permlane16_swap_b32 {v(AV_PK)}, {v(AV_PK+2)}')
    a(f'v_permlane16_swap_b32 {v(AV_PK+1)}, {v(AV_PK+3)}')
    a('s_mov_b64 exec, 0xffff')
    a(f'v_min_u32 {v(AV_PK)}, -2, {v(AV_PK)}')
    a(f'buffer_store_dwordx4 {v(AV_PK,4)}, {v(AV_PST)}, {s(SRD_WS,4)}, {s(S_PSTC)} offen sc1')
    a('s_setprio 0')
    pf.stamp(a, 'ppub')
    a(f'buffer_store_dwordx4 {v(AV_NEG,4)}, {v(AV_PST)}, {s(SRD_WS,4)}, {s(S_PRS)} offen sc1')
    a('s_mov_b64 exec, -1')
    l = a.uid('pg')
    a(f's_cmp_lg_u32 {s(S_PRG)}, 0')
    a(f's_cbranch_scc1 {l}')
    a(f's_sub_u32 {s(S_T4)}, {s(S_S)}, 1')
    a(f's_cbranch_scc1 {l}')
    a(f's_and_b32 {s(S_T0)}, {s(S_T4)}, 3')
    a(f's_cmp_ge_u32 {s(S_S)}, 58')
    a(f's_cselect_b32 {s(S_T0)}, 0, {s(S_T0)}')
    a(f's_cmp_lg_u32 {s(S_T0)}, 0')
    a(f's_cbranch_scc1 {l}')
    a(f'v_mov_b32 {v(AV_T)}, {s(S_T4)}')
    a('s_mov_b64 exec, 1')
    a(f'buffer_store_dword {v(AV_T)}, off, {s(SRD_WS,4)}, {s(S_CS)} sc1')
    a('s_mov_b64 exec, -1')
    a.label(l)
    if unit:
        a(f's_cmp_lg_u32 {s(S_DU)}, {s(S_DW)}')
        a(f's_cbranch_scc1 {L}_nd2')
        for u in range(4): a(f'ds_read_b128 {v(AV_O+4*u,4)}, {v(AV_LB)} offset:{16384+1024*u}')
        for c2 in range(2):
            for i in range(4): a(f'ds_write_b32 {v(AV_VMW)}, {v(AV_X+4*c2+i)} offset:{1024*c2 + 128*(i>>1) + 8*(i&1)}')
        a(f's_mov_b32 {s(S_U2)}, 1')
        for u in range(4):
            a(f's_waitcnt lgkmcnt({8+3-u})')
            q = v(AV_O + 4 * u, 4)
            for kt in range(2): a(f'v_mfma_f32_16x16x32_bf16 {v(SA+4*kt,4)}, {v(AV_KS+(kt*4+u)*4,4)}, {q}, {"0" if u==0 else v(SA+4*kt,4)}')
            a(f'v_mfma_f32_16x16x32_bf16 {v(SA+8,4)}, {v(xk(u),4)}, {q}, {"0" if u==0 else v(SA+8,4)}')
        a('s_waitcnt lgkmcnt(0)')
        a('s_nop 3')
        if a.kpos:
            for x in reg_list(a, 0, AV_KS, S_T0): a(x)
        a.label(L + '_nd2')
    if light:
        if a.lr & 2 and 'k' not in a.abl and not a.kpos:
            if a.kdl: a(f's_sleep {a.kdl}')
            for x in reg_list(a, 0, AV_KS, S_T0): a(x)
        pf.stamp(a, 'bg')
        pf.flush(a, AV_MX, 'A')
        a(f's_add_u32 {s(S_S)}, {s(S_S)}, 1')
        a(f's_cmp_lt_u32 {s(S_S)}, {a.s1}')
        a(f's_cbranch_scc1 {L}')
        a('s_waitcnt vmcnt(0)')
        for i in range(8):
            if a.lr & 1: a(f'ds_write_b128 {v(AV_LB)}, {v(AV_TB+4*i,4)} offset:{8192+1024*i}')
        if unit:
            a('s_waitcnt lgkmcnt(0)')
            part2('p2b')
        for i in range(8):
            if a.lr & 2: a(f'ds_write_b128 {v(AV_LB)}, {v(AV_KS+4*i,4)} offset:{1024*i}')
        a('s_waitcnt lgkmcnt(0)')
        a(f's_branch {nxt}')
    else:
        a.label(L + '_lskb')
        a(f'v_mov_b32 {v(AV_X)}, 0xff61b1e6')
        def s_mf(qt, S):
            m = []
            for u in range(4):
                q = v(AV_TB + (qt * 4 + u) * 4, 4)
                for kt in range(qt + 1):
                    d = S + 4 * kt
                    m.append(f'v_mfma_f32_16x16x32_bf16 {v(d,4)}, {v(AV_KS+(kt*4+u)*4,4)}, {q}, {"0" if u==0 else v(d,4)}')
                m.append(f'v_mfma_f32_16x16x32_bf16 {v(S+8,4)}, {v(xk(u),4)}, {q}, {"0" if u==0 else v(S+8,4)}')
            return m
        bg = qr + ['s_waitcnt lgkmcnt(4)'] + s_mf(0, SA) + ['s_waitcnt lgkmcnt(0)'] + s_mf(1, SB)
        seq = [f'v_cndmask_b32 {v(SA+i)}, {v(SA+i)}, {v(AV_X)}, {s(S_M0+2*i,2)}' for i in range(4)]
        seq += exp_seq([SA + i for i in range(4)] + [SA + 8, SA + 9]) + packP(SA, True)
        bg += seq + ['s_nop 1']
        pv0 = pv_seq(SA, 0, AV_X + 2)
        seq = [f'v_cndmask_b32 {v(SB+4+i)}, {v(SB+4+i)}, {v(AV_X)}, {s(S_M0+2*i,2)}' for i in range(4)]
        seq += exp_seq(list(range(SB, SB + 10))) + packP(SB)
        seq = merge_fill(seq, pv0[:10], every=2, start=0)
        bg += seq + pv0[10:] + pv_seq(SB, 1, AV_T)
        if 'b' in a.abl: bg = []
        for x in bg: a(x)
        a(f'v_xor_b32 {v(AV_SGW)}, 0x4000, {v(AV_SGW)}')
        pf.stamp(a, 'bg')
        pf.flush(a, AV_MX, 'A')
        a(f's_add_u32 {s(S_S)}, {s(S_S)}, 1')
        a(f's_cmp_le_u32 {s(S_S)}, {a.last}')
        a(f's_cbranch_scc1 {L}')
        a('s_waitcnt lgkmcnt(0)')
        a('s_barrier')
        a('s_waitcnt vmcnt(0)')
        a(f's_branch {done}')
    if kp and unit:
        a.label(L + '_midD')
        mid([], False)
        a(f's_branch {L}_midE')
    for i in range(4):
        spin_block(a, f'{Lr}_{i}', qm[i:], qreg[i], AV_T, L + '_again', L + '_nochk')
    a.label(L + '_again')
    crit_s(True)
    a(f's_branch {L}_sdone')
    def vretry(lab, ok):
        a.label(lab)
        a(f's_sub_u32 {s(S_TO)}, {s(S_TO)}, 1')
        a(f's_cbranch_scc1 {lab}g')
        for x in qm[4:]: a(x)
        a('s_waitcnt vmcnt(0)')
        for x in chk(vreg, AV_FT, lab): a(x)
        a(f's_branch {ok}')
        a.label(lab + 'g')
        a(f's_mov_b32 {s(S_TO)}, 0')
        a(f's_branch {ok}')
    vretry(f'{Lr}_v', L + '_vok')
    a.label(L + '_nochk')
    crit_s(False)
    a('s_nop 1')
    a(f's_branch {L}_sdone')
    if light: return
    vretry(f'{Lr}_v2', L + '_lsk3')
    a.label(f'{L}_lsk')
    a(f's_cmp_lg_u32 {s(S_PRG)}, 0')
    a(f's_cbranch_scc1 {L}_lsk2')
    a(f'v_mov_b32 {v(AV_T)}, {a.last - 1}')
    a('s_mov_b64 exec, 1')
    a(f'buffer_store_dword {v(AV_T)}, off, {s(SRD_WS,4)}, {s(S_CS)} sc1')
    a('s_mov_b64 exec, -1')
    a.label(f'{L}_lsk2')
    a('s_waitcnt vmcnt(0)')
    for x in chk(vreg, AV_FT, f'{Lr}_v2'): a(x)
    a.label(f'{L}_lsk3')
    for x in vwm: a(x)
    a('s_nop 7')
    a('s_nop 1')
    for x in vwc: a(x)
    a('s_waitcnt lgkmcnt(0)')
    a(f's_branch {L}_lskb')

def emit_chain(a, done, prof=False):
    if prof: a('s_memrealtime s[94:95]')
    a(f"""
    s_lshl_b32 {s(S_ID)}, {s(S_X)}, 5
    s_add_u32 {s(S_ID)}, {s(S_ID)}, {s(S_I)}
    s_lshr_b32 {s(S_H)}, {s(S_ID)}, 2
    s_lshr_b32 {s(S_G)}, {s(S_ID)}, 4
    s_and_b32 {s(S_C)}, {s(S_I)}, 15
    s_and_b32 {s(S_J)}, {s(S_I)}, 3
    s_mov_b32 {s(S_S)}, 0
    s_mov_b32 {s(S_TO)}, {TIMEOUT}
    s_mov_b32 s100, {TIMEOUT}
    s_getreg_b32 {s(S_X1)}, hwreg(HW_REG_XCC_ID)
    s_and_b32 {s(S_X1)}, {s(S_X1)}, 15
    s_mul_i32 {s(S_T2)}, {s(S_X1)}, {s(S_X1)}
    s_lshl_b32 {s(S_T2)}, {s(S_T2)}, 18
    s_lshl_b32 {s(S_X1)}, {s(S_X1)}, 8
    s_add_u32 {s(S_X1)}, {s(S_X1)}, {s(S_T2)}
    s_add_u32 {s(S_X1)}, {s(S_X1)}, 1
    s_lshl_b32 {s(S_CQG)}, {s(S_G)}, 4
    s_add_u32 {s(S_CQG)}, {s(S_CQG)}, {CQ_TAB}
    s_and_b32 {s(S_T4)}, {s(S_W)}, 3
    s_mul_i32 {s(S_KL)}, {s(S_T4)}, 24576
    s_add_u32 {s(S_KL)}, {s(S_KL)}, {LDS_BULK}
    s_lshl_b32 {s(S_KG)}, {s(S_G)}, 2
    s_add_u32 {s(S_KG)}, {s(S_KG)}, {s(S_T4)}
    s_lshl_b32 {s(S_KG)}, {s(S_KG)}, 12
    s_cmp_ge_u32 {s(S_W)}, 4
    s_cbranch_scc1 ch_a_pro
    s_add_u32 {s(S_KG)}, {s(S_KG)}, 262144
    s_lshl_b32 {s(S_QO)}, {s(S_H)}, 13
    s_add_u32 {s(S_QO)}, {s(S_QO)}, {WS_QKV}
    s_lshl_b32 {s(S_T0)}, {s(S_I)}, 1
    s_and_b32 {s(S_T1)}, {s(S_W)}, 1
    s_add_u32 {s(S_T0)}, {s(S_T0)}, {s(S_T1)}
    s_lshl_b32 {s(S_T0)}, {s(S_T0)}, 1       ; first u
    s_cmp_lt_u32 {s(S_W)}, 2
    s_cselect_b32 {s(S_MEX)}, 0xff, 0
    s_mov_b32 {s(S_MEX+1)}, {s(S_MEX)}
    s_lshr_b32 {s(S_T1)}, {s(S_T0)}, 1
    s_and_b32 {s(S_T2)}, {s(S_T0)}, 1
    s_lshl_b32 {s(S_T3)}, {s(S_X)}, 14
    s_add_u32 {s(S_T3)}, {s(S_T3)}, {WS_MEM}
    s_lshl_b32 {s(S_MO)}, {s(S_W)}, 12
    s_add_u32 {s(S_MO)}, {s(S_MO)}, {s(S_T3)}
    s_lshl_b32 {s(S_MSO)}, {s(S_T1)}, 8
    s_add_u32 {s(S_MSO)}, {s(S_MSO)}, {s(S_T3)}
    s_lshl_b32 {s(S_T3)}, {s(S_T2)}, 5
    s_add_u32 {s(S_MSO)}, {s(S_MSO)}, {s(S_T3)}
    s_lshr_b32 {s(S_PO)}, {s(S_T0)}, 3
    s_lshl_b32 {s(S_PO)}, {s(S_PO)}, 14
    s_and_b32 {s(S_T3)}, {s(S_T0)}, 7
    s_lshl_b32 {s(S_T3)}, {s(S_T3)}, 10
    s_add_u32 {s(S_PO)}, {s(S_PO)}, {s(S_T3)}
    s_add_u32 {s(S_PO)}, {s(S_PO)}, {WS_PART}
    s_lshl_b32 {s(S_SP)}, {s(S_G)}, 22
    s_lshl_b32 {s(S_T3)}, {s(S_C)}, 11
    s_add_u32 {s(S_SP)}, {s(S_SP)}, {s(S_T3)}
    s_lshl_b32 {s(S_T3)}, {s(S_W)}, 9
    s_add_u32 {s(S_SP)}, {s(S_SP)}, {s(S_T3)}
    s_add_u32 {s(S_SP)}, {s(S_SP)}, {WS_SP + a.s1 * 65536}
    s_lshl_b32 {s(S_KMX)}, {s(S_H)}, 13
    s_add_u32 {s(S_KMX)}, {s(S_KMX)}, {WS_KM}
    s_mov_b32 {s(S_QST)}, {s(S_QO)}
    s_mov_b32 {s(S_SP0)}, {s(S_SP)}
    s_mov_b32 {s(S_OK)}, 2
    s_mov_b32 {s(S_RTG)}, 0
    s_mov_b32 {s(S_OF)}, 0
    s_bfe_u32 {s(S_T0)}, {s(S_C)}, 0x20001
    s_lshl_b32 {s(S_OB)}, {s(S_G)}, 2
    s_add_u32 {s(S_OB)}, {s(S_OB)}, {s(S_T0)}
    s_lshl_b32 {s(S_OB)}, {s(S_OB)}, 2
    s_add_u32 {s(S_OB)}, {s(S_OB)}, {s(S_W)}
    s_lshl_b32 {s(S_OB)}, {s(S_OB)}, 10
    s_and_b32 {s(S_T0)}, {s(S_C)}, 1
    s_lshl_b32 {s(S_T0)}, {s(S_T0)}, 17
    s_add_u32 {s(S_OB)}, {s(S_OB)}, {s(S_T0)}
    s_add_u32 {s(S_OB)}, {s(S_OB)}, {WS_OO - 262144}
    s_mov_b32 {s(S_TCH)}, {3 * 262144}
    """)
    p_prologue(a)
    for i in range(4): a(f'v_mov_b32 {v(52+i)}, -1')
    for sg in range(64 - NTAIL, 64):
        a(f's_add_u32 {s(S_T0)}, {s(S_SP)}, {(sg - a.s1)*65536}')
        a(f'buffer_store_dwordx4 v[52:55], {v(PV_SPS)}, {s(SRD_WS,4)}, {s(S_T0)} offen sc1')
    if prof: a('s_memrealtime s[96:97]')
    a(f's_lshl_b32 {s(S_X1)}, {s(S_X1)}, 5')
    a('s_barrier')
    a(f'ds_write_b32 {v(PV_FLGW)}, {v(PV_NEG)}')
    a(f'ds_write_b32 {v(PV_FLGW)}, {v(PV_NEG)} offset:16')
    a(f'ds_write_b32 {v(PV_FLGW)}, {v(PV_NEG)} offset:32')
    a(f'ds_write_b32 {v(PV_FLGW)}, {v(PV_NEG)} offset:48')
    a(f'v_mov_b32 {v(PV_RDY)}, 12')
    a(f"""
    v_mov_b32 v56, {LDS_PUB}
    s_waitcnt lgkmcnt(0)
    s_barrier
    ds_read_b64 v[32:33], v56
    s_waitcnt lgkmcnt(0)
    v_cmp_ne_u32 vcc, {s(S_X1)}, v32
    s_setprio 3
    v_readfirstlane_b32 {s(S_T0)}, v33
    s_add_u32 {s(S_PO)}, {s(S_PO)}, {s(S_T0)}
    s_cbranch_vccnz ch_p_slow
    """)
    if prof:
        a(f"""
        v_mov_b32 v33, {s(S_T0)}
        s_memrealtime s[98:99]
        s_waitcnt lgkmcnt(0)
        s_lshl_b32 {s(S_T0)}, {s(S_ID)}, 3
        s_add_u32 {s(S_T0)}, {s(S_T0)}, {s(S_W)}
        s_lshl_b32 {s(S_T0)}, {s(S_T0)}, 12
        s_add_u32 {s(S_T0)}, {s(S_T0)}, {WS_YP + 63*64}
        v_mov_b32 v56, s94
        v_mov_b32 v57, s96
        v_mov_b32 v32, s98
        s_mov_b64 exec, 1
        buffer_store_dwordx2 v[56:57], off, {s(SRD_WS,4)}, {s(S_T0)}
        buffer_store_dwordx2 v[32:33], off, {s(SRD_WS,4)}, {s(S_T0)} offset:8
        s_mov_b64 exec, -1
        s_nop 1
        """)
    if a.force_slow: a('s_branch ch_p_slow')
    p_loop(a, '', prof, done)
    a.label('ch_p_slow')
    p_loop(a, ' sc1', prof, done)
    a.label('ch_a_pro')
    a(f"""
    s_sub_u32 {s(S_T4)}, {s(S_W)}, 4
    s_lshl_b32 {s(S_H)}, {s(S_G)}, 2
    s_add_u32 {s(S_H)}, {s(S_H)}, {s(S_T4)}
    s_lshl_b32 {s(S_QO)}, {s(S_H)}, 13
    s_add_u32 {s(S_QO)}, {s(S_QO)}, {WS_QKV}
    """)
    if a.stouch:
        a(f"""
        s_min_u32 {s(S_T3)}, {s(S_T4)}, 2
        s_lshl_b32 {s(S_T1)}, {s(S_T3)}, 3
        s_add_u32 {s(S_T1)}, {s(S_T1)}, {KA_WQ}
        s_load_dwordx2 {s(SRD_T,2)}, s[0:1], {s(S_T1)}
        s_mov_b32 {s(SRD_T+2)}, {8*MB}
        s_mov_b32 {s(SRD_T+3)}, {SRD3}
        v_and_b32 v20, 63, v0
        v_lshlrev_b32 v21, 13, v20
        s_lshl_b32 {s(S_T0)}, {s(S_C)}, 19
        s_lshl_b32 {s(S_T1)}, {s(S_G)}, 10
        s_add_u32 {s(S_T0)}, {s(S_T0)}, {s(S_T1)}
        s_waitcnt lgkmcnt(0)
        buffer_load_dword v26, v21, {s(SRD_T,4)}, {s(S_T0)} offen offset:384
        """)
    a_static(a)
    a(f"""
    v_lshlrev_b32 v24, 4, v0
    s_lshl_b32 {s(S_T0)}, {s(S_ID)}, 13
    s_add_u32 {s(S_T2)}, {s(S_T0)}, {WS_PART - 4096}
    s_add_u32 {s(S_T0)}, {s(S_T0)}, {WS_QKV - 4096}
    s_lshl_b32 {s(S_T1)}, {s(S_ID)}, 12
    s_add_u32 {s(S_T1)}, {s(S_T1)}, {WS_MEM - 4096}
    buffer_store_dwordx4 {v(AV_NEG,4)}, v24, {s(SRD_WS,4)}, {s(S_T2)} offen sc1
    s_add_u32 {s(S_T2)}, {s(S_T2)}, 4096
    buffer_store_dwordx4 {v(AV_NEG,4)}, v24, {s(SRD_WS,4)}, {s(S_T2)} offen sc1
    buffer_store_dwordx4 {v(AV_NEG,4)}, v24, {s(SRD_WS,4)}, {s(S_T0)} offen sc1
    s_add_u32 {s(S_T0)}, {s(S_T0)}, 4096
    buffer_store_dwordx4 {v(AV_NEG,4)}, v24, {s(SRD_WS,4)}, {s(S_T0)} offen sc1
    buffer_store_dwordx4 {v(AV_NEG,4)}, v24, {s(SRD_WS,4)}, {s(S_T1)} offen sc1
    """)
    a(f"""
    s_and_b32 {s(S_T0)}, {s(S_I)}, 7
    s_sub_u32 {s(S_T1)}, {s(S_T4)}, 1
    s_cmp_lt_u32 {s(S_T1)}, 2
    s_cselect_b32 s54, {s(S_T0)}, 1
    s_lshr_b32 {s(S_T2)}, {s(S_ID)}, 3
    s_lshl_b32 {s(S_T2)}, {s(S_T2)}, 8
    s_lshl_b32 {s(S_T1)}, {s(S_T1)}, 7
    s_add_u32 {s(S_T2)}, {s(S_T2)}, {s(S_T1)}
    s_add_u32 s55, {s(S_T2)}, {WS_PART + MB}
    s_cmp_lg_u32 s54, 0
    s_cbranch_scc1 ch_nv0
    v_lshlrev_b32 v24, 13, v20
    s_mov_b64 exec, 0xffff
    buffer_store_dword {v(AV_NEG)}, v24, {s(SRD_WS,4)}, s55 offen sc1
    s_mov_b64 exec, -1
    """)
    a.label('ch_nv0')
    a(f"""
    v_mov_b32 v2, {s(S_X1)}
    s_lshl_b32 {s(S_T0)}, {s(S_X)}, 2
    s_add_u32 {s(S_T0)}, {s(S_T0)}, {F.DBG_XCC}
    s_waitcnt vmcnt(0)
    s_barrier
    s_cmp_lg_u32 {s(S_W)}, 4
    s_cbranch_scc1 ch_nox
    s_mov_b64 exec, 1
    buffer_atomic_add v2, off, {s(F.SRD_DBG,4)}, {s(S_T0)} sc1
    s_mov_b64 exec, -1
    """)
    a.label('ch_nox')
    a_prologue(a)
    a('s_cmp_lg_u32 s54, 0')
    a('s_cbranch_scc1 ch_nv1')
    a('s_mov_b32 s58, -1')
    a('s_mov_b32 s59, -1')
    for k in range(8):
        for ph in range(2):
            a('s_memtime s[60:61]')
            a(f's_add_u32 s56, s55, {k*16384 + ph*8192}')
            a('s_waitcnt lgkmcnt(0)')
            a('s_load_dword s57, s[4:5], s56 glc')
            a('s_waitcnt lgkmcnt(0)')
            a('s_memtime s[62:63]')
            a('s_waitcnt lgkmcnt(0)')
            a('s_sub_u32 s57, s62, s60')
            a(f's_min_u32 s{58+ph}, s{58+ph}, s57')
    a(f"""
    s_sub_i32 s57, s58, s59
    s_min_i32 s57, s57, {a.vote}
    s_max_i32 s57, s57, {-a.vote}
    s_add_u32 s57, s57, {a.vote + (1 << 24)}
    s_getreg_b32 s56, hwreg(HW_REG_XCC_ID)
    s_and_b32 s56, s56, 0
    v_mov_b32 v2, s57
    s_mov_b64 exec, 1
    buffer_atomic_add v2, off, {s(F.SRD_DBG,4)}, s56 offset:{F.DBG_VOTE} sc1
    s_mov_b64 exec, -1
    """)
    a('s_waitcnt vmcnt(0)')
    a.label('ch_nv1')
    a_prologue2(a)
    a(f"""
    s_cmp_lg_u32 {s(S_W)}, 4
    s_cbranch_scc1 ch_xcc_skip
    v_lshrrev_b32 v56, 2, {v(AV_L16)}
    v_add_u32 v56, {F.DBG_XCC}, v56
    v_writelane_b32 v56, 0, 10
    v_mov_b32 v59, 63
    v_mov_b32 v60, 32
    v_writelane_b32 v59, 0, 8
    v_writelane_b32 v60, 0, 8
    v_writelane_b32 v59, 0, 9
    v_writelane_b32 v60, 0, 9
    v_writelane_b32 v59, -1, 10
    s_movk_i32 {s(S_T0)}, 128
    v_writelane_b32 v60, {s(S_T0)}, 10
    s_mov_b64 exec, 0x70f
    """)
    a.label('ch_xcc')
    a(f"""
    buffer_load_dword v57, v56, {s(F.SRD_DBG,4)}, 0 offen sc1
    s_waitcnt vmcnt(0)
    v_and_b32 v62, v59, v57
    v_cmp_ne_u32 vcc, v62, v60
    v_readlane_b32 {s(S_T1)}, v57, 8
    v_readlane_b32 {s(S_T2)}, v57, 9
    s_add_u32 {s(S_T0)}, {s(S_T1)}, {s(S_T2)}
    s_lshr_b32 {s(S_T0)}, {s(S_T0)}, 24
    s_cmp_lg_u32 {s(S_T0)}, 32
    s_cbranch_scc1 ch_xcc_w
    s_cbranch_vccz ch_xcc_ok
    """)
    a.label('ch_xcc_w')
    a(f"""
    s_sleep 16
    s_sub_u32 {s(S_TO)}, {s(S_TO)}, 1
    s_cbranch_scc0 ch_xcc
    s_mov_b32 {s(S_TO)}, 0
    """)
    a.label('ch_xcc_ok')
    a(f"""
    s_getreg_b32 {s(S_T0)}, hwreg(HW_REG_XCC_ID)
    s_bitcmp1_b32 {s(S_T0)}, 2
    s_cselect_b32 {s(S_T1)}, {s(S_T1)}, {s(S_T1)}
    v_readlane_b32 {s(S_T0)}, v57, {s(S_X)}
    s_mov_b64 exec, -1
    s_lshr_b32 {s(S_T2)}, {s(S_T1)}, 24
    s_mul_i32 {s(S_T2)}, {s(S_T2)}, {a.vote}
    s_and_b32 {s(S_T1)}, {s(S_T1)}, 0xffffff
    s_cmp_gt_u32 {s(S_T1)}, {s(S_T2)}
    s_cselect_b32 {s(S_T1)}, {0 if a.pgf else 0x2000}, {0x2000 if a.pgf else 0}
    v_mov_b32 v58, {LDS_PUB}
    v_mov_b32 v60, {s(S_T0)}
    v_mov_b32 v61, {s(S_T1)}
    s_barrier
    ds_write_b64 v58, v[60:61]
    s_waitcnt lgkmcnt(0)
    s_branch ch_xcc_b3
    """)
    a.label('ch_xcc_skip')
    a('s_barrier')
    a.label('ch_xcc_b3')
    a(f"""
    s_barrier
    v_mov_b32 v58, {LDS_PUB}
    ds_read_b64 v[60:61], v58
    v_and_b32 v23, 7, v20
    v_lshlrev_b32 v23, 7, v23
    v_bfe_u32 v24, v20, 3, 1
    v_lshl_add_u32 v23, v24, 17, v23
    v_lshrrev_b32 v24, 4, v20
    v_lshl_add_u32 v23, v24, 24, v23
    s_lshl_b32 {s(S_T2)}, {s(S_G)}, 14
    s_lshl_b32 {s(S_T1)}, {s(S_C)}, 10
    s_add_u32 {s(S_T2)}, {s(S_T2)}, {s(S_T1)}
    s_and_b32 {s(S_T1)}, {s(S_T4)}, 1
    s_lshl_b32 {s(S_T1)}, {s(S_T1)}, 18
    s_add_u32 {s(S_T2)}, {s(S_T2)}, {s(S_T1)}
    s_add_u32 {s(S_T2)}, {s(S_T2)}, {WS_QS + 262144}
    s_waitcnt lgkmcnt(0)
    v_readfirstlane_b32 {s(S_T0)}, v61
    s_add_u32 {s(S_PO)}, {s(S_PO)}, {s(S_T0)}
    """)
    a.label('ch_g0')
    a(f"""
    buffer_load_dword v57, off, {s(SRD_WS,4)}, {s(S_CQG)} sc1
    s_waitcnt vmcnt(0)
    v_readfirstlane_b32 {s(S_T0)}, v57
    s_cmp_ge_u32 {s(S_T0)}, {8 if a.s0 else 12}
    s_cbranch_scc1 ch_g0b
    s_sleep 12
    s_sub_u32 {s(S_TO)}, {s(S_TO)}, 1
    s_cbranch_scc0 ch_g0
    s_mov_b32 {s(S_TO)}, 0
    """)
    a.label('ch_g0b')
    for m in (1, 0):
        for x in (reg_list(a, m, AV_TB if m else AV_KS, S_QLD) if a.s1 and a.lr & (1 if m else 2) else dma_list(a, m, AV_L16, S_T1)): a(x)
    a('s_mov_b32 exec_hi, 0xffff')
    a(f'buffer_load_dword {v(AV_PK+7)}, v23, {s(SRD_WS,4)}, {s(S_T2)} offen sc1')
    a('s_mov_b32 exec_hi, -1')
    a(f'v_mov_b32 {v(AV_FV)}, 0')
    a('s_waitcnt vmcnt(1)')
    a(f'ds_write_b32 {v(AV_FLGW)}, {v(AV_FV)} offset:16')
    a_loop(a, prof, done)
```

```python
from asmlib import *
from layout4 import *
from k_prep import red_gq, rnd_bf16

SRD_WS = 4
SRD_DBG = 64
CS_TAB = WS_CNT + 8192
CD_TAB = WS_CNT + 2560
DBG_INIT = 0
DBG_INIT2 = 64
DBG_XCC = 128
DBG_INITA = 192
DBG_VOTE = 160
S_EARLY = 70
TIMEOUT = 1 << 16

def emit_ln_init(a, swk, touch):
    a(f'''
    s_cmp_ge_u32 s3, 4
    s_cbranch_scc1 ln_touch
    {f's_cmp_lt_u32 {s(swk)}, 32' if a.cln else ''}
    {'s_cbranch_scc1 ln_short' if a.cln else ''}
    s_load_dwordx2 s[8:9], s[0:1], {KA_X}
    v_and_b32 v1, 63, v0
    s_mov_b32 s10, {4*MB}
    s_mov_b32 s11, {SRD3}
    v_and_b32 v3, 15, v1
    v_lshrrev_b32 v4, 4, v1
    v_lshlrev_b32 v5, 11, v3
    v_lshl_add_u32 v5, v4, 4, v5
    s_lshl_b32 s12, {s(swk)}, 15
    s_lshl_b32 s13, s3, 9
    s_add_u32 s12, s12, s13
    s_waitcnt lgkmcnt(0)
    ''')
    NB = 8; ND = NB * 4; NF = ND * 2
    P = 16; F = 48; T = 112; C = 176
    for j in range(NB):
        a(f'buffer_load_dwordx4 {v(P+4*j,4)}, v5, s[8:11], s12 offen offset:{64*j}')
    if a.cln: a('s_barrier')
    a(f'''
    v_mov_b32 v14, 0
    s_lshl_b32 s13, {s(swk)}, 7
    s_add_u32 s13, s13, {WS_CNT}
    v_lshlrev_b32 v13, 2, v0
    v_cmp_gt_u32 vcc, 32, v0
    s_and_saveexec_b64 s[22:23], vcc
    s_cbranch_execz ln_nz
    buffer_store_dword v14, v13, s[4:7], s13 offen sc1
    ''')
    a.label('ln_nz')
    a(f'''
    s_mov_b64 exec, -1
    v_lshlrev_b32 v6, 4, v3
    s_lshl_b32 s14, s3, 2
    v_add_u32 v7, s14, v6
    v_lshlrev_b32 v8, 4, v1
    s_lshl_b32 s15, {s(swk)}, 15
    s_lshl_b32 s16, s3, 13
    s_add_u32 s15, s15, s16
    s_add_u32 s16, s15, 4096
    v_and_b32 v9, 1, v4
    v_cmp_eq_u32 s[20:21], 1, v9
    s_waitcnt vmcnt(1)
    ''')
    for d in range(ND):
        a(f'v_lshlrev_b32 {v(F+2*d)}, 16, {v(P+d)}')
        a(f'v_and_b32 {v(F+2*d+1)}, 0xffff0000, {v(P+d)}')
    def tree(n):
        while n > 1:
            n //= 2
            for i in range(n): a(f'v_add_f32 {v(T+i)}, {v(T+i)}, {v(T+n+i)}')
    for i in range(ND): a(f'v_add_f32 {v(T+i)}, {v(F+i)}, {v(F+ND+i)}')
    tree(ND); red_gq(a, T, T+1)
    a(f'''
    ds_write_b32 v7, {v(T)}
    s_waitcnt lgkmcnt(0)
    s_barrier
    ds_read_b128 {v(T,4)}, v6
    s_waitcnt lgkmcnt(0)
    ''')
    tree(4)
    a(f'v_mul_f32 v10, 0x3a800000, {v(T)}')
    for i in range(NF): a(f'v_sub_f32 {v(C+i)}, {v(F+i)}, v10')
    for i in range(ND):
        a(f'v_mul_f32 {v(T+i)}, {v(C+i)}, {v(C+i)}')
        a(f'v_fmac_f32 {v(T+i)}, {v(C+ND+i)}, {v(C+ND+i)}')
    tree(ND); red_gq(a, T, T+1)
    a(f'''
    ds_write_b32 v7, {v(T)} offset:512
    s_waitcnt lgkmcnt(0)
    s_barrier
    ds_read_b128 {v(T,4)}, v6 offset:512
    s_waitcnt lgkmcnt(0)
    ''')
    tree(4)
    a(f'v_mul_f32 v11, 0x3a800000, {v(T)}')
    rnd_bf16(a, 10, 10); rnd_bf16(a, 11, 11)
    a('v_add_f32 v11, 0x3727c5ac, v11')
    rnd_bf16(a, 11, 11)
    a('v_sqrt_f32 v11, v11'); a('s_nop 0')
    rnd_bf16(a, 11, 11)
    a('v_rcp_f32 v11, v11'); a('s_nop 0')
    for j in range(NB):
        for d in range(4*j, 4*j+4):
            a(f'v_sub_f32 {v(F+2*d)}, {v(F+2*d)}, v10')
            a(f'v_sub_f32 {v(F+2*d+1)}, {v(F+2*d+1)}, v10')
            a(f'v_cvt_pk_bf16_f32 {v(P+d)}, {v(F+2*d)}, {v(F+2*d+1)}')
            a(f'v_lshlrev_b32 {v(F+2*d)}, 16, {v(P+d)}')
            a(f'v_and_b32 {v(F+2*d+1)}, 0xffff0000, {v(P+d)}')
            a(f'v_mul_f32 {v(F+2*d)}, {v(F+2*d)}, v11')
            a(f'v_mul_f32 {v(F+2*d+1)}, {v(F+2*d+1)}, v11')
            a(f'v_cvt_pk_bf16_f32 {v(P+d)}, {v(F+2*d)}, {v(F+2*d+1)}')
        b = P + 4 * j; o = T + 4 * j
        a(f'v_cndmask_b32 {v(o)}, {v(b)}, {v(b+2)}, s[20:21]')
        a(f'v_cndmask_b32 {v(o+1)}, {v(b+1)}, {v(b+3)}, s[20:21]')
        a(f'v_cndmask_b32 {v(o+2)}, {v(b+2)}, {v(b)}, s[20:21]')
        a(f'v_cndmask_b32 {v(o+3)}, {v(b+3)}, {v(b+1)}, s[20:21]')
        a(f'buffer_store_dwordx4 {v(o,4)}, v8, s[4:7], s{15 + j//4} offen offset:{1024*(j&3)} sc1')
    a(f'''
    s_waitcnt vmcnt(0)
    s_barrier
    s_cmp_lg_u32 s3, 0
    s_cbranch_scc1 ln_sig
    v_mov_b32 v2, 1
    s_mov_b64 exec, 1
    s_cmp_ge_u32 {s(swk)}, {0 if a.cln else 8}
    s_cbranch_scc1 ln_sb
    buffer_atomic_add v2, off, {s(SRD_DBG,4)}, 0 offset:{DBG_INITA} sc1
    ''')
    a.label('ln_sb')
    a(f'''
    buffer_atomic_add v2, off, {s(SRD_DBG,4)}, 0 offset:{DBG_INIT} sc1
    s_mov_b64 exec, -1
    s_branch ln_sig
    ''')
    a.label('ln_touch')
    if a.cln:
        a(f's_lshl_b32 s16, {s(swk)}, 2')
        a('s_add_u32 s16, s16, s3')
        a('s_sub_u32 s16, s16, 4')
        ln2 = emit_row_ln(a, 16, 8, 17, 18)
        a('''
        v_mov_b32 v64, 2048
        v_mov_b32 v65, 0
        ds_write_b32 v64, v65
        s_waitcnt lgkmcnt(0)
        s_barrier
        s_waitcnt vmcnt(0)
        ''')
        ln2()
        a(f'''
        v_mov_b32 v65, 1
        s_waitcnt vmcnt(0)
        s_mov_b64 exec, 1
        ds_add_rtn_u32 v66, v64, v65
        s_waitcnt lgkmcnt(0)
        v_readfirstlane_b32 s17, v66
        s_cmp_lg_u32 s17, 3
        s_cbranch_scc1 ln_r2
        buffer_atomic_add v65, off, {s(SRD_DBG,4)}, 0 offset:{DBG_INITA} sc1
        ''')
        a.label('ln_r2')
        a('s_mov_b64 exec, -1')
    touch()
    if a.cln:
        a(f's_cmp_lt_u32 {s(swk)}, 32')
        a('s_cbranch_scc1 ln_sig')
    a('s_barrier'); a('s_barrier'); a('s_barrier')
    if a.cln:
        a('s_branch ln_sig')
        a.label('ln_short')
        a(f'''
        s_barrier
        s_cmp_lg_u32 s3, 0
        s_cbranch_scc1 ln_sig
        v_mov_b32 v14, 0
        v_mov_b32 v2, 1
        s_lshl_b32 s13, {s(swk)}, 7
        s_add_u32 s13, s13, {WS_CNT}
        v_lshlrev_b32 v13, 2, v0
        s_mov_b32 exec_hi, 0
        buffer_store_dword v14, v13, s[4:7], s13 offen sc1
        s_waitcnt vmcnt(0)
        s_mov_b64 exec, 1
        buffer_atomic_add v2, off, {s(SRD_DBG,4)}, 0 offset:{DBG_INIT} sc1
        s_mov_b64 exec, -1
        ''')
    a.label('ln_sig')

def emit_row_ln(a, s_row, srd, t0, t1):
    P, Fl, T = 24, 32, 48
    a(f"""
    s_load_dwordx2 {s(srd,2)}, s[0:1], {KA_X}
    s_mov_b32 {s(srd+2)}, {4*MB}
    s_mov_b32 {s(srd+3)}, {SRD3}
    v_and_b32 v20, 63, v0
    v_lshlrev_b32 v21, 4, v20
    s_lshl_b32 {s(t0)}, {s(s_row)}, 11
    s_waitcnt lgkmcnt(0)
    buffer_load_dwordx4 {v(P,4)}, v21, {s(srd,4)}, {s(t0)} offen
    buffer_load_dwordx4 {v(P+4,4)}, v21, {s(srd,4)}, {s(t0)} offen offset:1024
    """)
    return lambda: _row_ln2(a, s_row, t0, t1, P, Fl, T)

def _row_ln2(a, s_row, t0, t1, P, Fl, T):
    a(f"""
    v_lshrrev_b32 v22, 2, v20
    v_lshlrev_b32 v22, 10, v22
    v_and_b32 v23, 3, v20
    v_lshl_add_u32 v22, v23, 8, v22
    v_and_b32 v23, 1, v20
    v_cmp_eq_u32 vcc, 1, v23
    s_lshr_b32 {s(t0)}, {s(s_row)}, 4
    s_lshl_b32 {s(t0)}, {s(t0)}, 15
    s_and_b32 {s(t1)}, {s(s_row)}, 15
    s_lshl_b32 {s(t1)}, {s(t1)}, 4
    s_add_u32 {s(t0)}, {s(t0)}, {s(t1)}
    s_add_u32 {s(t1)}, {s(t0)}, 16384
    """)
    for d in range(8):
        a(f'v_lshlrev_b32 {v(Fl+2*d)}, 16, {v(P+d)}')
        a(f'v_and_b32 {v(Fl+2*d+1)}, 0xffff0000, {v(P+d)}')
    def wave_sum():
        n = 8
        while n > 1:
            n //= 2
            for i in range(n): a(f'v_add_f32 {v(T+i)}, {v(T+i)}, {v(T+n+i)}')
        for r in (1, 2, 4, 8):
            a('s_nop 1')
            a(f'v_add_f32_dpp {v(T)}, {v(T)}, {v(T)} row_ror:{r} row_mask:0xf bank_mask:0xf')
        red_gq(a, T, T + 1)
    for i in range(8): a(f'v_add_f32 {v(T+i)}, {v(Fl+i)}, {v(Fl+8+i)}')
    wave_sum()
    a(f'v_mul_f32 v21, 0x3a800000, {v(T)}')
    for i in range(8):
        a(f'v_sub_f32 {v(T+8)}, {v(Fl+i)}, v21')
        a(f'v_sub_f32 {v(T+9)}, {v(Fl+8+i)}, v21')
        a(f'v_mul_f32 {v(T+i)}, {v(T+8)}, {v(T+8)}')
        a(f'v_fmac_f32 {v(T+i)}, {v(T+9)}, {v(T+9)}')
    wave_sum()
    a(f'v_mul_f32 v23, 0x3a800000, {v(T)}')
    rnd_bf16(a, 21, 21); rnd_bf16(a, 23, 23)
    a('v_add_f32 v23, 0x3727c5ac, v23')
    rnd_bf16(a, 23, 23)
    a('v_sqrt_f32 v23, v23'); a('s_nop 0')
    rnd_bf16(a, 23, 23)
    a('v_rcp_f32 v23, v23'); a('s_nop 0')
    for d in range(8):
        a(f'v_sub_f32 {v(Fl+2*d)}, {v(Fl+2*d)}, v21')
        a(f'v_sub_f32 {v(Fl+2*d+1)}, {v(Fl+2*d+1)}, v21')
        a(f'v_cvt_pk_bf16_f32 {v(P+d)}, {v(Fl+2*d)}, {v(Fl+2*d+1)}')
        a(f'v_lshlrev_b32 {v(Fl+2*d)}, 16, {v(P+d)}')
        a(f'v_and_b32 {v(Fl+2*d+1)}, 0xffff0000, {v(P+d)}')
        a(f'v_mul_f32 {v(Fl+2*d)}, {v(Fl+2*d)}, v23')
        a(f'v_mul_f32 {v(Fl+2*d+1)}, {v(Fl+2*d+1)}, v23')
        a(f'v_cvt_pk_bf16_f32 {v(P+d)}, {v(Fl+2*d)}, {v(Fl+2*d+1)}')
    for j in range(2):
        b = P + 4 * j; o = T + 4 * j
        a(f'v_cndmask_b32 {v(o)}, {v(b)}, {v(b+2)}, vcc')
        a(f'v_cndmask_b32 {v(o+1)}, {v(b+1)}, {v(b+3)}, vcc')
        a(f'v_cndmask_b32 {v(o+2)}, {v(b+2)}, {v(b)}, vcc')
        a(f'v_cndmask_b32 {v(o+3)}, {v(b+3)}, {v(b+1)}, vcc')
        a(f'buffer_store_dwordx4 {v(o,4)}, v22, s[4:7], {s((t0, t1)[j])} offen sc1')

def emit_ln_wait(a, s_type, s_aoff, t_fh, x=''):
    if a.cln:
        a(f's_cmp_lt_u32 {s(s_aoff)}, {WS_XN + MB}')
        a(f's_cselect_b32 {s(S_EARLY)}, 1, 0')
    else:
        a(f's_cmp_eq_u32 {s(s_type)}, {t_fh}')
        a(f's_cselect_b32 {s(S_EARLY)}, {1 if a.early else 0}, 0')
        a(f's_cmp_eq_u32 {s(s_aoff)}, {WS_XN}')
        a(f's_cselect_b32 {s(S_EARLY)}, {s(S_EARLY)}, 0')
    a('s_cmp_lg_u32 s3, 0')
    a(f's_cbranch_scc1 lnw{x}_ok')
    a(f's_cmp_eq_u32 {s(S_EARLY)}, 0')
    a(f's_cbranch_scc1 lnw{x}_full')
    emit_wait_init(a, f'lnwa{x}', 20, 68, 69, DBG_INITA, 128 if a.cln else 8)
    a(f's_branch lnw{x}_ok')
    a.label(f'lnw{x}_full')
    emit_wait_init(a, f'lnw{x}', 20, 68, 69)
    a('s_barrier')

def emit_drain_hook(a):
    a(f's_cmp_eq_u32 {s(S_EARLY)}, 0')
    a('s_cbranch_scc1 drw_ok')
    a(f's_mov_b32 {s(S_EARLY)}, 0')
    a('s_cmp_lg_u32 s3, 0')
    a('s_cbranch_scc1 drw_ok')
    a('v_readfirstlane_b32 s68, v22')
    a('s_cmp_ge_u32 s68, 128')
    a('s_cbranch_scc1 drw_ok')
    emit_wait_init(a, 'drw', 20, 68, 69)

def emit_wait_init(a, tag, vt, st, sto, off=DBG_INIT, tgt=128):
    a(f's_mov_b32 {s(sto)}, {TIMEOUT}')
    a.label(tag)
    a(f'''
    buffer_load_dword {v(vt)}, off, {s(SRD_DBG,4)}, 0 offset:{off} sc1
    s_waitcnt vmcnt(0)
    v_readfirstlane_b32 {s(st)}, {v(vt)}
    s_cmp_ge_u32 {s(st)}, {tgt}
    s_cbranch_scc1 {tag}_ok
    s_sleep 8
    s_sub_u32 {s(sto)}, {s(sto)}, 1
    s_cbranch_scc0 {tag}
    ''')
    a.label(tag + '_ok')


def silu8(a, gs, n, T):
    g0, g1 = gs[0], gs[1]
    for d in range(n):
        a(f'v_lshlrev_b32 {v(T+2*d)}, 16, {v(g0+d)}')
        a(f'v_and_b32 {v(T+2*d+1)}, 0xffff0000, {v(g0+d)}')
        for g in gs[1:]:
            a(f'v_lshlrev_b32 {v(g0+d)}, 16, {v(g+d)}')
            a(f'v_and_b32 {v(g+d)}, 0xffff0000, {v(g+d)}')
            a(f'v_add_f32 {v(T+2*d)}, {v(T+2*d)}, {v(g0+d)}')
            a(f'v_add_f32 {v(T+2*d+1)}, {v(T+2*d+1)}, {v(g+d)}')
        a(f'v_cvt_pk_bf16_f32 {v(g0+d)}, {v(T+2*d)}, {v(T+2*d+1)}')
        a(f'v_lshlrev_b32 {v(T+2*d)}, 16, {v(g0+d)}')
        a(f'v_and_b32 {v(T+2*d+1)}, 0xffff0000, {v(g0+d)}')
        a(f'v_mul_f32 {v(g0+d)}, s89, {v(T+2*d)}')
        a(f'v_mul_f32 {v(g1+d)}, s89, {v(T+2*d+1)}')
    for d in range(n):
        a(f'v_exp_f32 {v(g0+d)}, {v(g0+d)}')
        a(f'v_exp_f32 {v(g1+d)}, {v(g1+d)}')
    a('s_nop 0')
    for d in range(n):
        a(f'v_add_f32 {v(g0+d)}, 1.0, {v(g0+d)}')
        a(f'v_add_f32 {v(g1+d)}, 1.0, {v(g1+d)}')
    for d in range(n):
        a(f'v_rcp_f32 {v(g0+d)}, {v(g0+d)}')
        a(f'v_rcp_f32 {v(g1+d)}, {v(g1+d)}')
    a('s_nop 0')
    for d in range(n):
        a(f'v_mul_f32 {v(T+2*d)}, {v(T+2*d)}, {v(g0+d)}')
        a(f'v_mul_f32 {v(T+2*d+1)}, {v(T+2*d+1)}, {v(g1+d)}')
        a(f'v_cvt_pk_bf16_f32 {v(g0+d)}, {v(T+2*d)}, {v(T+2*d+1)}')

def finish(a, A, G, X, O, n, t):
    for d in range(n):
        a(f'v_cvt_pk_bf16_f32 {v(t)}, {v(A+2*d)}, {v(A+2*d+1)}')
        a(f'v_lshlrev_b32 {v(A+2*d)}, 16, {v(t)}')
        a(f'v_and_b32 {v(A+2*d+1)}, 0xffff0000, {v(t)}')
        a(f'v_lshlrev_b32 {v(t)}, 16, {v(G+d)}')
        a(f'v_and_b32 {v(t+1)}, 0xffff0000, {v(G+d)}')
        a(f'v_mul_f32 {v(A+2*d)}, {v(A+2*d)}, {v(t)}')
        a(f'v_mul_f32 {v(A+2*d+1)}, {v(A+2*d+1)}, {v(t+1)}')
        a(f'v_cvt_pk_bf16_f32 {v(t)}, {v(A+2*d)}, {v(A+2*d+1)}')
        a(f'v_lshlrev_b32 {v(A+2*d)}, 16, {v(t)}')
        a(f'v_and_b32 {v(A+2*d+1)}, 0xffff0000, {v(t)}')
        a(f'v_lshlrev_b32 {v(t)}, 16, {v(X+d)}')
        a(f'v_and_b32 {v(t+1)}, 0xffff0000, {v(X+d)}')
        a(f'v_add_f32 {v(A+2*d)}, {v(A+2*d)}, {v(t)}')
        a(f'v_add_f32 {v(A+2*d+1)}, {v(A+2*d+1)}, {v(t+1)}')
        a(f'v_cvt_pk_bf16_f32 {v(O+d)}, {v(A+2*d)}, {v(A+2*d+1)}')

def emit_fin(a, s_type, s_a, s_b, t_tail, done):
    a(f"""
    s_load_dwordx2 s[8:9], s[0:1], {KA_X}
    s_load_dwordx2 s[12:13], s[0:1], {KA_OUT}
    v_mbcnt_lo_u32_b32 v1, -1, 0
    v_mbcnt_hi_u32_b32 v1, -1, v1
    s_mov_b32 s10, {4*MB}
    s_mov_b32 s11, {SRD3}
    s_mov_b32 s14, {4*MB}
    s_mov_b32 s15, {SRD3}
    s_mov_b32 s89, 0xbfb8aa3b
    v_lshlrev_b32 v3, 4, v1
    v_and_b32 v4, 15, v1
    v_lshrrev_b32 v5, 4, v1
    v_lshlrev_b32 v4, 11, v4
    v_lshl_add_u32 v4, v5, 4, v4
    v_and_b32 v5, 1, v5
    v_cmp_eq_u32 s[76:77], 1, v5
    v_and_b32 v6, 3, v1
    v_lshlrev_b32 v6, 7, v6
    s_mov_b32 s80, {s(s_a)}
    s_lshl_b32 s81, {s(s_b)}, 2
    s_and_b32 s82, s3, 3
    s_add_u32 s81, s81, s82
    s_lshr_b32 s82, s3, 2               ; rb & 1
    s_mov_b32 s84, {TIMEOUT}
    s_mov_b32 s85, {CS_TAB}
    s_waitcnt lgkmcnt(0)
    s_cmp_eq_u32 {s(s_type)}, {t_tail}
    s_cbranch_scc1 fin_tail
    """)
    a.label('fin_job')
    a(f"""
    s_lshl_b32 s72, s80, 1
    s_add_u32 s72, s72, s82             ; rb
    s_lshl_b32 s74, s72, 15
    s_lshl_b32 s73, s81, 11
    s_add_u32 s73, s73, s74             ; F offset
    s_lshl_b32 s75, s81, 7
    s_add_u32 s74, s74, s75
    s_add_u32 s78, s73, {WS_GG}
    s_add_u32 s79, s73, {WS_SP}
    s_lshr_b32 s83, s80, 3
    s_lshl_b32 s83, s83, 6
    s_add_u32 s83, s83, {CD_TAB}
    s_add_u32 s87, s80, 1
    """)
    for b in range(2):
        a(f'buffer_load_dwordx4 {v(88+4*b,4)}, v4, s[8:11], s74 offen offset:{64*b}')
    a('s_cmp_lg_u32 s3, 0')
    a('s_cbranch_scc1 fin_ws_ok')
    a.label('fin_wd')
    a(f"""
    buffer_load_dwordx2 v[8:9], off, s[4:7], s83 sc1
    s_waitcnt vmcnt(0)
    v_readfirstlane_b32 s86, v8
    v_readfirstlane_b32 s88, v9
    s_cmp_ge_u32 s80, {a.s1}
    s_cselect_b32 s88, 16, s88
    s_min_u32 s86, s86, s88
    s_cmp_ge_u32 s86, 16
    s_cbranch_scc1 fin_wd2
    s_sleep 64
    s_sub_u32 s84, s84, 1
    s_cbranch_scc0 fin_wd
    s_mov_b32 s84, 0
    """)
    a.label('fin_wd2')
    a(f's_cmp_lt_u32 s80, {a.s1}')
    a('s_cbranch_scc1 fin_ws_ok')
    a.label('fin_ws')
    a(f"""
    buffer_load_dword v7, v6, s[4:7], s85 offen sc1
    s_waitcnt vmcnt(0)
    v_cmp_gt_u32 vcc, s87, v7
    s_cbranch_vccz fin_ws_ok
    s_sleep {a.fin_sleep}
    s_sub_u32 s86, s87, 2
    v_cmp_gt_i32 vcc, s86, v7
    s_cbranch_vccz fin_ws_f
    s_sleep 64
    s_sub_u32 s86, s87, 6
    v_cmp_gt_i32 vcc, s86, v7
    s_cbranch_vccz fin_ws_f
    s_sleep 127
    s_sleep 127
    """)
    a.label('fin_ws_f')
    a(f"""
    s_sub_u32 s84, s84, 1
    s_cbranch_scc0 fin_ws
    s_mov_b32 s84, 0
    """)
    a.label('fin_ws_ok')
    a.fin_claim()
    a('s_barrier')
    for k in range(4):
        for b in range(2):
            a(f'buffer_load_dwordx4 {v(136+8*k+4*b,4)}, v3, s[4:7], s78 offen offset:{1024*b} sc1')
        a(f's_add_u32 s78, s78, {4*MB}')
    for g in range(8):
        if g == 4:
            a(f's_cmp_lt_u32 s80, {a.s1}')
            a('s_cbranch_scc1 fin_4p')
        for b in range(2):
            a(f'buffer_load_dwordx4 {v(16+(b*8+g)*4,4)}, v3, s[4:7], s79 offen offset:{1024*b} sc1')
        a(f's_add_u32 s79, s79, {4*MB}')
    a('s_waitcnt vmcnt(16)')
    a('s_branch fin_8p')
    a.label('fin_4p')
    for b in range(2):
        for i in range(16): a(f'v_mov_b32 {v(16+(b*8+4)*4+i)}, 0')
    a('s_waitcnt vmcnt(8)')
    a.label('fin_8p')
    for b in range(2): silu8(a, [136 + 8 * k + 4 * b for k in range(4)], 4, 120)
    a('s_waitcnt vmcnt(0)')
    def combine(b):
        A = 96
        for d in range(4):
            r = 16 + b * 32 + d
            a(f'v_lshlrev_b32 {v(A+2*d)}, 16, {v(r)}')
            a(f'v_and_b32 {v(A+2*d+1)}, 0xffff0000, {v(r)}')
        for g in range(1, 8):
            for d in range(4):
                r = 16 + (b * 8 + g) * 4 + d
                a(f'v_lshlrev_b32 {v(120+2*d)}, 16, {v(r)}')
                a(f'v_and_b32 {v(121+2*d)}, 0xffff0000, {v(r)}')
            for e in range(8):
                a(f'v_add_f32 {v(A+e)}, {v(A+e)}, {v(120+e)}')
        X = 88 + 4 * b
        a(f'v_cndmask_b32 v108, {v(X)}, {v(X+2)}, s[76:77]')
        a(f'v_cndmask_b32 v109, {v(X+1)}, {v(X+3)}, s[76:77]')
        a(f'v_cndmask_b32 v110, {v(X+2)}, {v(X)}, s[76:77]')
        a(f'v_cndmask_b32 v111, {v(X+3)}, {v(X+1)}, s[76:77]')
        finish(a, A, 136 + 4 * b, 108, 112, 4, 104)
        O = 128 + 4 * b
        a(f'v_cndmask_b32 {v(O)}, v112, v114, s[76:77]')
        a(f'v_cndmask_b32 {v(O+1)}, v113, v115, s[76:77]')
        a(f'v_cndmask_b32 {v(O+2)}, v114, v112, s[76:77]')
        a(f'v_cndmask_b32 {v(O+3)}, v115, v113, s[76:77]')
        a(f'buffer_store_dwordx4 {v(O,4)}, v4, s[12:15], s74 offen offset:{64*b}')
    for b in range(2): combine(b)
    if a.wprof:
        import k_gemm5
        a('s_waitcnt vmcnt(0)')
        k_gemm5.prof_stamp(a, 1)
    a(f's_branch {done}')
    a.label('fin_tail')
    a(f"""
    s_mov_b32 s81, {s(s_b)}
    s_lshl_b32 s81, s81, 2
    s_and_b32 s82, s3, 3
    s_add_u32 s81, s81, s82             ; blk 0..63
    s_lshr_b32 s82, s81, 5
    s_and_b32 s81, s81, 31              ; cb
    s_lshl_b32 s72, s80, 1
    s_add_u32 s72, s72, s82             ; rb
    s_lshl_b32 s74, s72, 15
    s_lshl_b32 s73, s81, 10
    s_add_u32 s73, s73, s74
    s_lshl_b32 s75, s81, 6
    s_add_u32 s74, s74, s75
    s_add_u32 s78, s73, {WS_GG}
    s_add_u32 s79, s73, {WS_SP}
    s_mov_b32 s83, {CD_TAB + 7 * 64}
    s_mov_b32 s84, {TIMEOUT}
    s_min_u32 s87, s80, 62
    v_and_b32 v8, 7, v1
    v_lshlrev_b32 v8, 22, v8
    s_cmp_lg_u32 s3, 0
    s_cbranch_scc1 ft_ok
    """)
    a.label('ft_wd')
    a(f"""
    buffer_load_dword v7, off, s[4:7], s83 sc1
    s_waitcnt vmcnt(0)
    v_readfirstlane_b32 s86, v7
    s_cmp_ge_u32 s86, 16
    s_cbranch_scc1 ft_wdok
    s_sleep 32
    s_sub_u32 s84, s84, 1
    s_cbranch_scc0 ft_wd
    s_mov_b32 s84, 0
    """)
    a.label('ft_wdok')
    a.label('ft_ok')
    a(f"""
    s_barrier
    s_cmp_ge_u32 s3, 4
    s_cbranch_scc1 {done}
    buffer_load_dwordx4 v[88:91], v4, s[8:11], s74 offen
    """)
    for k in range(4):
        a(f'buffer_load_dwordx4 {v(136+8*k,4)}, v3, s[4:7], s78 offen sc1')
        a(f's_add_u32 s78, s78, {4*MB}')
    a('s_waitcnt vmcnt(0)')
    silu8(a, [136 + 8 * k for k in range(4)], 4, 120)
    a.label('ft_ws')
    a(f"""
    buffer_load_dword v7, v6, s[4:7], s85 offen sc1
    s_waitcnt vmcnt(0)
    v_cmp_gt_u32 vcc, s87, v7
    s_cbranch_vccz ft_p
    s_sleep {a.fin_sleep}
    v_cmp_gt_u32 vcc, 59, v7
    s_cbranch_vccz ft_wsf
    s_sleep 64
    v_cmp_gt_u32 vcc, 56, v7
    s_cbranch_vccz ft_wsf
    s_sleep 127
    s_sleep 127
    """)
    a.label('ft_wsf')
    a(f"""
    s_sub_u32 s84, s84, 1
    s_cbranch_scc0 ft_ws
    s_mov_b32 s84, 0
    """)
    a.label('ft_p')
    a(f"""
    buffer_load_dword v7, v8, s[4:7], s79 offen offset:1008 sc1
    s_waitcnt vmcnt(0)
    v_cmp_eq_u32 vcc, -1, v7
    s_cbranch_vccz ft_l0
    s_sleep {a.ft_sleep}
    s_sub_u32 s84, s84, 1
    s_cbranch_scc0 ft_p
    s_mov_b32 s84, 0
    """)
    a.label('ft_l0')
    a.fin_claim()
    a.label('ft_l')
    a('s_mov_b32 s86, s79')
    for g in range(8):
        a(f'buffer_load_dwordx4 {v(16+g*4,4)}, v3, s[4:7], s86 offen sc1')
        if g < 7: a(f's_add_u32 s86, s86, {4*MB}')
    a('s_waitcnt vmcnt(0)')
    a('v_max3_u32 v7, v16, v20, v24')
    a('v_max3_u32 v7, v7, v28, v32')
    a('v_max3_u32 v7, v7, v36, v40')
    a('v_max_u32 v7, v7, v44')
    a(f"""
    v_cmp_eq_u32 vcc, -1, v7
    s_cbranch_vccz ft_go
    s_sub_u32 s84, s84, 1
    s_cbranch_scc0 ft_l
    """)
    a.label('ft_go')
    combine(0)
    if a.wprof:
        import k_gemm5
        a('s_waitcnt vmcnt(0)')
        k_gemm5.prof_stamp(a, 1)
    a(f's_branch {done}')
```

```python
from asmlib import *
from layout4 import *

S_W = 3
SRD_WS = 4
SRD_B0 = 8
SRD_B1 = 12
S_A0, S_A1, S_B0, S_B1, S_BSTEP = 16, 17, 18, 19, 20
S_MA, S_MB = 21, 22
S_LEFT = 23
S_TAB = 24
S_WM, S_WN = 26, 27
S_PEND = 28
S_T0, S_T1, S_T2, S_T3 = 29, 30, 31, 56
S_ND = 32
S_CT, S_COUT, S_CSTR, S_CSIG = 48, 49, 50, 51
S_RDY = 52
S_K0, S_K1 = 54, 55
S_PF = 58
D_TYPE, D_KB0, D_KB1, D_LDB, D_B0, D_B1, D_BSZ, D_A, D_ASTR, D_NB, D_OUT, D_OSTR, D_WAIT, D_WTGT, D_SIG, D_X = range(16)
T_END, T_F, T_GLU, T_SILU, T_FH, T_ATT, T_FIN, T_FINT = 0, 1, 2, 3, 4, 5, 6, 7
S_ASTEP = 62
S_QH, S_JI = 71, 59
V_NX = 26
LDS_NX = 131072 + 64
V_L16, V_OFFB, V_SWZ, V_GQ, V_AA, V_AAH = 1, 2, 3, 4, 5, 6
V_AW = 8
V_POLL, V_ZERO, V_ONE, V_L16B, V_FLAG = 16, 17, 18, 19, 7
V_TMP = 20
SETS = [(32, 64), (80, 112)]
ACC = 128
LDS_FLAG = 131072
GEMM_LDS = 131072 + 256

NTA = ''
NTB = ''
ENT = ''
def acc(i, t):
    return ACC + (i * 4 + t) * 4

def emit_worker_init(a):
    a(f'''
    v_and_b32 v20, 63, v0
    v_lshlrev_b32 {v(V_L16)}, 4, v20
    v_add_u32 {v(V_L16B)}, 0x1000, {v(V_L16)}
    v_lshrrev_b32 {v(V_GQ)}, 4, v20
    v_mov_b32 {v(V_ZERO)}, 0
    v_mov_b32 {v(V_ONE)}, 1
    s_lshr_b32 {s(S_WM)}, {s(S_W)}, 2
    s_and_b32 {s(S_WN)}, {s(S_W)}, 3
    s_lshl_b32 {s(S_MA)}, {s(S_W)}, 11
    s_lshl_b32 {s(S_MB)}, {s(S_W)}, 10
    s_add_u32 {s(S_MB)}, {s(S_MB)}, 16384
    s_mov_b32 {s(SRD_B0+3)}, {SRD3}
    s_mov_b32 {s(SRD_B1+3)}, {SRD3}
    s_mov_b32 {s(S_PEND)}, 0
    ''')
    a(f'''
    v_and_b32 v21, 15, v20
    v_lshlrev_b32 v22, 2, {v(V_GQ)}
    v_xor_b32 v21, v21, v22
    s_lshr_b32 {s(S_T1)}, {s(S_W)}, 1
    s_and_b32 {s(S_T1)}, {s(S_T1)}, 1
    v_xor_b32 v21, {s(S_T1)}, v21
    v_lshlrev_b32 {v(V_SWZ)}, 4, v21
    ''')
    a(f'''
    s_lshl_b32 {s(S_T1)}, {s(S_WM)}, 13
    v_add_u32 {v(V_AA)}, {s(S_T1)}, {v(V_L16)}
    v_add_u32 {v(V_AAH)}, 0x10000, {v(V_AA)}
    ''')
    a(f'''
    v_bfe_u32 v21, v20, 2, 2          ; r
    v_and_b32 v22, 3, v20             ; c
    v_and_b32 v23, 1, {v(V_GQ)}       ; gq&1
    v_xor_b32 v24, {s(S_WN)}, v21     ; p^r
    v_xor_b32 v25, v22, v23           ; c^(gq&1)
    v_lshl_add_u32 v24, v24, 2, v25   ; unit
    v_lshlrev_b32 v24, 4, v24         ; unit*16
    v_lshl_add_u32 v25, {v(V_GQ)}, 3, v21   ; 8gq + r
    v_lshl_add_u32 v24, v25, 8, v24
    v_and_b32 v22, 1, v22             ; c&1
    ''')
    for T in range(2):
        for hh in range(2):
            d = V_AW + T * 2 + hh
            a(f'v_xor_b32 v25, {hh}, v23')
            a(f'v_lshl_add_u32 {v(d)}, v25, 10, v24')
            a(f'v_xor_b32 v25, {T}, v22')
            a(f'v_lshl_add_u32 {v(d)}, v25, 3, {v(d)}')
            a(f'v_add_u32 {v(d+4)}, 0x10000, {v(d)}')
    a(f'''
    s_lshl_b32 {s(S_T1)}, {s(S_W)}, 2
    s_add_u32 {s(S_T1)}, {s(S_T1)}, {LDS_FLAG}
    v_mov_b32 {v(V_FLAG)}, {s(S_T1)}
    ''')

def dma_group(slot):
    base = slot * 32768
    items = []
    items.append([f's_add_u32 m0, {s(S_MA)}, {base}', 's_nop 0',
                  f'buffer_load_dwordx4 {v(V_L16)}, {s(SRD_WS,4)}, {s(S_A0)} offen sc1{NTA} lds',
                  f's_add_u32 {s(S_A0)}, {s(S_A0)}, {s(S_ASTEP)}'])
    items.append([f's_add_u32 m0, {s(S_MA)}, {base+1024}', 's_nop 0',
                  f'buffer_load_dwordx4 {v(V_L16)}, {s(SRD_WS,4)}, {s(S_A1)} offen sc1{NTA} lds',
                  f's_add_u32 {s(S_A1)}, {s(S_A1)}, {s(S_ASTEP)}'])
    items.append([f's_add_u32 m0, {s(S_MB)}, {base}', 's_nop 0',
                  f'buffer_load_dwordx4 {v(V_OFFB)}, {s(SRD_B0,4)}, {s(S_B0)} offen{NTB} lds',
                  f's_add_u32 {s(S_B0)}, {s(S_B0)}, {s(S_BSTEP)}'])
    items.append([f's_add_u32 m0, {s(S_MB)}, {base+8192}', 's_nop 0',
                  f'buffer_load_dwordx4 {v(V_OFFB)}, {s(SRD_B1,4)}, {s(S_B1)} offen{NTB} lds',
                  f's_add_u32 {s(S_B1)}, {s(S_B1)}, {s(S_BSTEP)}'])
    return items

def frag_reads(slot, fset):
    av, wv = SETS[fset]
    hi = slot >> 1
    base = (slot & 1) * 32768
    items = []
    for hf in range(2):
        for T in range(2):
            t = hf * 2 + T
            for hh in range(2):
                ad = V_AW + hi * 4 + T * 2 + hh
                items.append([f'ds_read_b64_tr_b16 {v(wv+4*t+2*hh,2)}, {v(ad)} offset:{base+16384+hf*8192}'])
    for i in range(8):
        items.append([f'ds_read_b128 {v(av+4*i,4)}, {v(V_AAH if hi else V_AA)} offset:{base+i*1024}'])
    return items

def iteration(a, q, vm, zero_c=False, extra_after_barrier=None, poll=False, mt=8, full_reads=False):
    cur = q & 1
    av, wv = SETS[cur]
    a(f's_waitcnt vmcnt({vm})')
    a('s_barrier')
    if extra_after_barrier:
        extra_after_barrier()
    mf = []
    if mt == 8:
        for i in range(8):
            for t in range(4):
                c = '0' if zero_c else v(acc(i, t), 4)
                mf.append(f'v_mfma_f32_16x16x32_bf16 {v(acc(i,t),4)}, {v(wv+4*t,4)}, {v(av+4*i,4)}, {c}')
    else:
        for kc in range(2):
            for i in range(4):
                for T in range(2):
                    c = '0' if (zero_c and kc == 0) else v(acc(i, T), 4)
                    mf.append(f'v_mfma_f32_16x16x32_bf16 {v(acc(i,T),4)}, {v(wv+4*(2*kc+T),4)}, {v(av+4*(2*i+kc),4)}, {c}')
    reads = frag_reads((q + 1) & 3, cur ^ 1)
    dmas = dma_group(q)
    if poll:
        a(f'buffer_load_dword {v(V_POLL)}, {v(V_ZERO)}, {s(SRD_WS,4)}, {s(S_ND+D_WAIT)} offen sc1')
    seq = []
    ri = 0; di = 0
    if mt == 4:
        for d in dmas[:4]: seq.extend(d)
        di = 4
    gdp, gde, grs, gr0 = (getattr(a, n, d) for n, d in (('gdp', 17), ('gde', 3), ('grs', 1), ('gr0', 0)))
    for k, m in enumerate(mf):
        seq.append(m)
        if mt == 4:
            if ri < len(reads): seq.extend(reads[ri]); ri += 1
            continue
        if k >= gdp and (k - gdp) % gde == 0 and di < len(dmas):
            seq.extend(dmas[di]); di += 1
        elif k >= gr0 and ri < len(reads) and (grs == 1 or (k - gr0) % 3 != 2):
            seq.extend(reads[ri]); ri += 1
    assert ri == len(reads)
    while di < len(dmas):
        seq.extend(dmas[di]); di += 1
    for ln in seq:
        a(ln)
    a('s_waitcnt lgkmcnt(0)')

def emit_loader_setup(a):
    a(f'''
    s_load_dwordx2 {s(SRD_B0,2)}, s[0:1], {s(S_ND+D_KB0)}
    s_load_dwordx2 {s(SRD_B1,2)}, s[0:1], {s(S_ND+D_KB1)}
    s_mov_b32 {s(SRD_B0+2)}, {s(S_ND+D_BSZ)}
    s_mov_b32 {s(SRD_B1+2)}, {s(S_ND+D_BSZ)}
    s_cmp_eq_u32 {s(S_ND+D_TYPE)}, {T_FH}
    s_cselect_b32 {s(S_T2)}, 0, 1
    s_lshl_b32 {s(S_T1)}, {s(S_W)}, {s(S_T2)}
    s_mul_i32 {s(S_T1)}, {s(S_T1)}, {s(S_ND+D_ASTR)}
    s_add_u32 {s(S_A0)}, {s(S_ND+D_A)}, {s(S_T1)}
    s_cmp_eq_u32 {s(S_ND+D_TYPE)}, {T_FH}
    s_cselect_b32 {s(S_T1)}, 1024, {s(S_ND+D_ASTR)}
    s_cselect_b32 {s(S_T2)}, 6, 5
    s_lshl_b32 {s(S_ASTEP)}, 32, {s(S_T2)}
    s_add_u32 {s(S_A1)}, {s(S_A0)}, {s(S_T1)}
    s_lshl_b32 {s(S_T1)}, {s(S_W)}, 2
    s_mul_i32 {s(S_T1)}, {s(S_T1)}, {s(S_ND+D_LDB)}
    s_add_u32 {s(S_B0)}, {s(S_ND+D_B0)}, {s(S_T1)}
    s_add_u32 {s(S_B1)}, {s(S_ND+D_B1)}, {s(S_T1)}
    s_lshl_b32 {s(S_BSTEP)}, {s(S_ND+D_LDB)}, {s(S_T2)}
    v_mul_u32_u24 {v(V_OFFB)}, {s(S_ND+D_LDB)}, {v(V_GQ)}
    v_add_u32 {v(V_OFFB)}, {v(V_OFFB)}, {v(V_SWZ)}
    s_waitcnt lgkmcnt(0)
    ''')

def prof_stamp(a, mark=0):
    if not getattr(a, 'wprof', False): return
    a(f'''
    s_memrealtime s[60:61]
    s_memtime s[92:93]
    s_waitcnt lgkmcnt(0)
    s_andn2_b32 s60, s60, 1
    s_or_b32 s60, s60, {mark}
    v_mov_b32 v21, s60
    v_mov_b32 v23, s92
    v_mov_b32 v27, {s(S_JI)}
    s_add_u32 s92, {s(S_PF)}, {MB}
    s_add_u32 s93, {s(S_PF)}, {2*MB}
    s_mov_b64 exec, 1
    buffer_store_dword v21, off, {s(SRD_WS,4)}, {s(S_PF)}
    buffer_store_dword v23, off, {s(SRD_WS,4)}, s92
    buffer_store_dword v27, off, {s(SRD_WS,4)}, s93
    s_mov_b64 exec, -1
    s_add_u32 {s(S_PF)}, {s(S_PF)}, 4
    ''')

def emit_adopt(a, with_load=True):
    prof_stamp(a)
    a(f'''
    s_mov_b32 {s(S_CT)}, {s(S_ND+D_TYPE)}
    s_cmp_eq_u32 {s(S_ND+D_TYPE)}, {T_FH}
    s_cselect_b32 {s(S_T1)}, 2, 3
    s_lshl_b32 {s(S_T1)}, {s(S_WM)}, {s(S_T1)}
    s_mul_i32 {s(S_T1)}, {s(S_T1)}, {s(S_ND+D_OSTR)}
    s_add_u32 {s(S_COUT)}, {s(S_ND+D_OUT)}, {s(S_T1)}
    s_mov_b32 {s(S_CSTR)}, {s(S_ND+D_OSTR)}
    s_mov_b32 {s(S_CSIG)}, {s(S_ND+D_SIG)}
    s_mov_b32 {s(S_LEFT)}, {s(S_ND+D_NB)}
    ''')

def claim(a, vr):
    l = a.uid('clm')
    a(f'''
    s_cmp_lg_u32 {s(S_W)}, 0
    s_cbranch_scc1 {l}
    v_mov_b32 {v(vr)}, 1
    s_mov_b64 exec, 1
    buffer_atomic_add {v(vr)}, off, s[64:67], {s(S_QH)} sc0 sc1
    s_mov_b64 exec, -1
    ''')
    a.label(l)

def publish(a, vr):
    l = a.uid('pub')
    a(f'''
    s_cmp_lg_u32 {s(S_W)}, 0
    s_cbranch_scc1 {l}
    v_mov_b32 v20, {LDS_NX}
    s_mov_b64 exec, 1
    ds_write_b32 v20, {v(vr)}
    s_mov_b64 exec, -1
    s_waitcnt lgkmcnt(0)
    ''')
    a.label(l)

def fetch(a, nj):
    a(f'''
    v_mov_b32 v20, {LDS_NX}
    ds_read_b32 v20, v20
    s_waitcnt lgkmcnt(0)
    v_readfirstlane_b32 {s(S_JI)}, v20
    s_add_u32 {s(S_JI)}, {s(S_JI)}, 32
    s_min_u32 {s(S_JI)}, {s(S_JI)}, {nj - 1}
    s_lshl_b32 s57, {s(S_JI)}, 6
    s_load_dwordx16 {s(S_ND,16)}, {s(S_TAB,2)}, s57
    ''')

def emit_signal(a, sreg):
    l = a.uid('sig')
    a(f'''
    s_cmp_eq_u32 {s(sreg)}, 0
    s_cbranch_scc1 {l}
    s_cmp_lg_u32 {s(S_W)}, 0
    s_cbranch_scc1 {l}
    s_and_b32 s57, {s(sreg)}, 3
    v_mov_b32 v24, s57
    s_bfe_u32 s57, {s(sreg)}, 0x20002
    v_mov_b32 v25, s57
    s_andn2_b32 {s(sreg)}, {s(sreg)}, 15
    s_mov_b64 exec, 1
    buffer_atomic_add_x2 v[24:25], {v(V_ZERO)}, {s(SRD_WS,4)}, {s(sreg)} offen sc1
    s_mov_b64 exec, -1
    ''')
    a.label(l)
    a(f's_mov_b32 {s(sreg)}, 0')

def first_body(a, nst, mt=8, sq=3):
    for q in range(4):
        vm = min(8 + nst, 63) if q < sq else (4 * q if q == sq and q < 2 else 8)
        iteration(a, q, vm, zero_c=(q == 0), mt=mt,
                  extra_after_barrier=(lambda: emit_signal(a, S_PEND)) if q == sq else None)

EPI_TMP = 80

def epi_F(a, silu=False, mt=8):
    a(f's_lshl_b32 {s(S_T1)}, {s(S_WN)}, 10')
    a(f's_add_u32 {s(S_T1)}, {s(S_T1)}, {s(S_COUT)}')
    if silu:
        a(f's_mov_b32 {s(S_K0)}, 0xbfb8aa3b')
    a('s_nop 7')
    n = 0
    for i in range(mt):
        for hf in range(2 if mt == 8 else 1):
            tq = EPI_TMP + 4 * (n % 4); n += 1
            src = acc(i, 2 * hf)
            if silu:
                w = EPI_TMP + 16 + 8 * (n % 2)
                for d in range(4):
                    a(f'v_cvt_pk_bf16_f32 {v(tq+d)}, {v(src+2*d)}, {v(src+2*d+1)}')
                for d in range(4):
                    a(f'v_lshlrev_b32 {v(src+2*d)}, 16, {v(tq+d)}')
                    a(f'v_and_b32 {v(src+2*d+1)}, 0xffff0000, {v(tq+d)}')
                for e in range(8):
                    a(f'v_mul_f32 {v(w+e)}, {s(S_K0)}, {v(src+e)}')
                for e in range(8):
                    a(f'v_exp_f32 {v(w+e)}, {v(w+e)}')
                for e in range(8):
                    a(f'v_add_f32 {v(w+e)}, 1.0, {v(w+e)}')
                for e in range(8):
                    a(f'v_rcp_f32 {v(w+e)}, {v(w+e)}')
                for e in range(8):
                    a(f'v_mul_f32 {v(src+e)}, {v(src+e)}, {v(w+e)}')
            for d in range(4):
                a(f'v_cvt_pk_bf16_f32 {v(tq+d)}, {v(src+2*d)}, {v(src+2*d+1)}')
            a(f'buffer_store_dwordx4 {v(tq,4)}, {v(V_L16B if hf else V_L16)}, {s(SRD_WS,4)}, {s(S_T1)} offen sc1{ENT}')
        if i < 7:
            a(f's_add_u32 {s(S_T1)}, {s(S_T1)}, {s(S_CSTR)}')
    return 16 if mt == 8 else 4

def epi_GLU(a):
    a(f's_lshl_b32 {s(S_T1)}, {s(S_WN)}, 10')
    a(f's_add_u32 {s(S_T1)}, {s(S_T1)}, {s(S_COUT)}')
    a(f's_mov_b32 {s(S_K0)}, 0xbfb8aa3b')
    a('s_nop 7')
    for i in range(8):
        tq = EPI_TMP + 4 * (i % 4)
        w = EPI_TMP + 16 + 8 * (i % 2)
        g = acc(i, 0); u = acc(i, 2)
        for d in range(4):
            a(f'v_cvt_pk_bf16_f32 {v(tq+d)}, {v(g+2*d)}, {v(g+2*d+1)}')
        for d in range(4):
            a(f'v_lshlrev_b32 {v(w+2*d)}, 16, {v(tq+d)}')
            a(f'v_and_b32 {v(w+2*d+1)}, 0xffff0000, {v(tq+d)}')
        for e in range(8):
            a(f'v_mul_f32 {v(w+e)}, {s(S_K0)}, {v(w+e)}')
        for e in range(8):
            a(f'v_exp_f32 {v(w+e)}, {v(w+e)}')
        for e in range(8):
            a(f'v_add_f32 {v(w+e)}, 1.0, {v(w+e)}')
        for e in range(8):
            a(f'v_rcp_f32 {v(w+e)}, {v(w+e)}')
        for e in range(8):
            a(f'v_mul_f32 {v(w+e)}, {v(w+e)}, {v(u+e)}')
        for d in range(4):
            a(f'v_cvt_pk_bf16_f32 {v(tq+d)}, {v(w+2*d)}, {v(w+2*d+1)}')
        a(f'buffer_store_dwordx4 {v(tq,4)}, {v(V_L16)}, {s(SRD_WS,4)}, {s(S_T1)} offen sc1{ENT}')
        if i < 7:
            a(f's_add_u32 {s(S_T1)}, {s(S_T1)}, {s(S_CSTR)}')
    return 8

def emit_worker(a, table_label, jobs_per_worker, done_label):
    emit_worker_init(a)
    if getattr(a, 'gprio', 0):
        a(f's_cmp_ge_u32 {s(S_W)}, 4')
        a(f's_cbranch_scc{0 if a.gprio == 1 else 1} w_np')
        a('s_setprio 1')
        a.label('w_np')
    if getattr(a, 'wprof', False):
        a(f's_lshl_b32 {s(S_PF)}, {s(S_T0)}, 3')
        a(f's_add_u32 {s(S_PF)}, {s(S_PF)}, {s(S_W)}')
        a(f's_lshl_b32 {s(S_PF)}, {s(S_PF)}, 7')
        a(f's_add_u32 {s(S_PF)}, {s(S_PF)}, {WS_YP + 8*MB}')
        prof_stamp(a)
    a(f'''
    s_getpc_b64 {s(S_TAB,2)}
    s_add_u32 {s(S_TAB)}, {s(S_TAB)}, {table_label}@rel32@lo+4
    s_addc_u32 {s(S_TAB+1)}, {s(S_TAB+1)}, {table_label}@rel32@hi+12
    s_and_b32 {s(S_T2)}, {s(S_T0)}, 3
    s_mul_i32 {s(S_T1)}, {s(S_T2)}, {jobs_per_worker*64}
    s_add_u32 {s(S_TAB)}, {s(S_TAB)}, {s(S_T1)}
    s_addc_u32 {s(S_TAB+1)}, {s(S_TAB+1)}, 0
    s_lshl_b32 {s(S_QH)}, {s(S_T2)}, 2
    s_add_u32 {s(S_QH)}, {s(S_QH)}, 64
    s_lshr_b32 {s(S_JI)}, {s(S_T0)}, 2
    s_lshl_b32 {s(S_T1)}, {s(S_JI)}, 6
    s_load_dwordx16 {s(S_ND,16)}, {s(S_TAB,2)}, {s(S_T1)}
    s_waitcnt lgkmcnt(0)
    ''')
    bpre = getattr(a, 'bpre', 0)
    if bpre:
        a(f's_cmp_lg_u32 {s(S_ND+D_TYPE)}, {T_FH}')
        a('s_cbranch_scc1 w_nopre')
        emit_loader_setup(a)
        for q in range(bpre):
            for it in dma_group(q)[2:]:
                for ln in it: a(ln)
        a.pre_cold('p')
        for q in range(4):
            for it in (dma_group(q)[:2] if q < bpre else dma_group(q)):
                for ln in it: a(ln)
        a('s_branch w_adopt')
        a.label('w_nopre')
    if getattr(a, 'pre_cold', None): a.pre_cold()
    a.label('w_cold')
    a(f'''
    s_cmp_eq_u32 {s(S_ND+D_TYPE)}, {T_END}
    s_cbranch_scc1 {done_label}
    s_cmp_ge_u32 {s(S_ND+D_TYPE)}, {T_FIN}
    s_cbranch_scc1 w_fin
    ''')
    a(f's_cmp_lg_u32 {s(S_W)}, 0')
    a('s_cbranch_scc1 w_depok')
    if getattr(a, 'nodep', 0):
        a(f's_cmp_eq_u32 {s(S_ND+D_WTGT)}, 0')
        a('s_cbranch_scc1 w_depok')
    a(f's_mov_b32 {s(S_T2)}, 0x40000')
    a.label('w_waitdep')
    a(f'''
    buffer_load_dword {v(V_POLL)}, {v(V_ZERO)}, {s(SRD_WS,4)}, {s(S_ND+D_WAIT)} offen sc1
    s_waitcnt vmcnt(0)
    v_readfirstlane_b32 {s(S_T1)}, {v(V_POLL)}
    s_cmp_ge_u32 {s(S_T1)}, {s(S_ND+D_WTGT)}
    s_cbranch_scc1 w_depok
    s_sleep 16
    s_sub_u32 {s(S_T2)}, {s(S_T2)}, 1
    s_cbranch_scc0 w_waitdep
    ''')
    a.label('w_depok')
    if getattr(a, 'dbgt', False):
        a('s_mov_b32 s96, s94')
        a('s_memrealtime s[94:95]')
    a(f's_cmp_eq_u32 {s(S_ND+D_TYPE)}, {T_ATT}')
    a('s_cbranch_scc1 w_att')
    emit_loader_setup(a)
    a('s_barrier')
    for q in range(4):
        for it in dma_group(q):
            for ln in it:
                a(ln)
    a.label('w_adopt')
    emit_adopt(a)
    a('s_waitcnt vmcnt(0)')
    a('s_barrier')
    for it in frag_reads(0, 0):
        for ln in it:
            a(ln)
    a('s_waitcnt lgkmcnt(0)')
    a(f's_cmp_eq_u32 {s(S_CT)}, {T_FH}')
    a('s_cbranch_scc1 w_firstH')
    a('s_branch w_first16')
    for nst in (4, 8, 16):
        a.label(f'w_first{nst}')
        first_body(a, nst, sq=getattr(a, 'fsq', 3))
        if nst != 16:
            a('s_branch w_loop_chk')
    def loop(sfx, mt):
        a.label('w_loop_chk' + sfx)
        a(f's_sub_u32 {s(S_LEFT)}, {s(S_LEFT)}, 1')
        a.label('w_loop' + sfx)
        a(f's_cmp_gt_u32 {s(S_LEFT)}, 3')
        a(f's_cbranch_scc1 w_body{sfx}')
        a(f's_cmp_lg_u32 {s(S_LEFT)}, 3')
        a(f's_cbranch_scc1 w_l2{sfx}')
        claim(a, V_NX)
        a(f's_branch w_body{sfx}')
        a.label('w_l2' + sfx)
        a(f's_cmp_lg_u32 {s(S_LEFT)}, 2')
        a(f's_cbranch_scc1 w_l1{sfx}')
        publish(a, V_NX)
        a(f's_branch w_body{sfx}')
        a.label('w_l1' + sfx)
        a('s_waitcnt vmcnt(8)')
        hh = sfx == 'H' and getattr(a, 'hh', 0)
        if hh:
            a('v_readfirstlane_b32 s68, v22')
            a('s_cmp_ge_u32 s68, 128')
            a('s_cselect_b32 s70, 0, s70')
        a(f'''
        {'buffer_load_dword v22, off, s[64:67], 0 sc1' if sfx == 'H' and not hh else ''}
        v_readfirstlane_b32 {s(S_T1)}, {v(V_POLL)}
        s_cmp_ge_u32 {s(S_T1)}, {s(S_ND+D_WTGT)}
        s_cselect_b32 {s(S_T1)}, 0, 1
        s_or_b32 {s(S_T1)}, {s(S_T1)}, s70
        s_cmp_eq_u32 {s(S_ND+D_TYPE)}, {T_END if hh else T_FH}
        s_cselect_b32 {s(S_T1)}, 1, {s(S_T1)}
        s_sub_u32 s57, {s(S_ND+D_TYPE)}, 1
        s_cmp_ge_u32 s57, 4
        s_cselect_b32 {s(S_T1)}, 1, {s(S_T1)}
        v_mov_b32 v20, {s(S_T1)}
        ds_write_b32 {v(V_FLAG)}, v20
        s_cbranch_scc1 w_body{sfx}
        ''')
        emit_loader_setup(a)
        a.label('w_body' + sfx)
        if hh: a('buffer_load_dword v22, off, s[64:67], 0 sc1')
        for q in range(4):
            def hook():
                a(f's_cmp_lg_u32 {s(S_LEFT)}, 2')
                a(f's_cbranch_scc1 w_nf{sfx}')
                fetch(a, jobs_per_worker)
                a.label('w_nf' + sfx)
            iteration(a, q, 8, poll=(q == 1), mt=mt, full_reads=(q == 3), extra_after_barrier=hook if q == 0 else None)
        a(f'''
        s_sub_u32 {s(S_LEFT)}, {s(S_LEFT)}, 1
        s_cmp_lg_u32 {s(S_LEFT)}, 0
        s_cbranch_scc1 w_loop{sfx}
        ''')
    loop('', 8)
    a(f'''
    v_mov_b32 v20, {LDS_FLAG}
    ds_read_b128 v[24:27], v20
    ds_read_b128 v[28:31], v20 offset:16
    s_cmp_eq_u32 {s(S_CT)}, {T_GLU}
    s_cbranch_scc1 w_epi_glu
    ''')
    def tail(nst, h=False):
        a(f'''
        s_waitcnt lgkmcnt(0)
        v_or3_b32 v24, v24, v25, v26
        v_or3_b32 v28, v28, v29, v30
        v_or3_b32 v24, v24, v27, v31
        v_or_b32 v24, v24, v28
        s_mov_b32 {s(S_PEND)}, {s(S_CSIG)}
        v_readfirstlane_b32 {s(S_T1)}, v24
        s_cmp_lg_u32 {s(S_T1)}, 0
        s_cbranch_scc1 w_drain
        ''')
        emit_adopt(a)
        if h and getattr(a, 'hh', 0):
            a(f's_cmp_eq_u32 {s(S_CT)}, {T_FH}')
            a('s_cbranch_scc1 w_firstH4')
        a(f's_branch w_first{nst}')
    tail(epi_F(a))
    a.label('w_epi_glu')
    tail(epi_GLU(a))
    if getattr(a, 'hh', 0):
        a.label('w_firstH4')
        first_body(a, 4, mt=4, sq=a.hh)
        a('s_branch w_loop_chkH')
    a.label('w_firstH')
    for q in range(4):
        iteration(a, q, 8, zero_c=(q == 0), mt=4)
    loop('H', 4)
    a(f'''
    v_mov_b32 v20, {LDS_FLAG}
    ds_read_b128 v[24:27], v20
    ds_read_b128 v[28:31], v20 offset:16
    ''')
    tail(epi_F(a, mt=4), True)
    a.label('w_drain')
    a('s_waitcnt vmcnt(0)')
    a('s_barrier')
    if getattr(a, 'drain_hook', None): a.drain_hook()
    emit_signal(a, S_PEND)
    prof_stamp(a, 1)
    a('s_branch w_cold')
    a.label('w_att')
    a(f's_cmp_lg_u32 {s(S_W)}, 0')
    a('s_cbranch_scc1 w_att_go')
    a(f's_mov_b32 {s(S_T2)}, 0x40000')
    a.label('w_att_w')
    a(f'''
    buffer_load_dwordx2 v[20:21], off, {s(SRD_WS,4)}, {s(S_ND+D_KB0)} sc1
    s_waitcnt vmcnt(0)
    v_add_u32 v20, v20, v21
    s_nop 0
    v_readfirstlane_b32 {s(S_T1)}, v20
    s_cmp_ge_u32 {s(S_T1)}, 8
    s_cbranch_scc1 w_att_go
    s_sleep 16
    s_sub_u32 {s(S_T2)}, {s(S_T2)}, 1
    s_cbranch_scc0 w_att_w
    ''')
    a.label('w_att_go')
    claim(a, 250)
    a('s_barrier')
    prof_stamp(a)
    import k_att
    k_att.emit_att(a, S_ND + D_A, S_ND + D_B0, S_W)
    a(f'''
    s_mov_b32 {s(S_PEND)}, {s(S_ND+D_SIG)}
    s_waitcnt vmcnt(0)
    s_barrier
    ''')
    emit_signal(a, S_PEND)
    prof_stamp(a, 1)
    publish(a, 250)
    a('s_barrier')
    fetch(a, jobs_per_worker)
    a('s_waitcnt lgkmcnt(0)')
    a('s_branch w_cold')
    a.label('w_fin')
    a.fin_claim = lambda: claim(a, 250)
    prof_stamp(a)
    a.fin_hook(S_ND + D_TYPE, S_ND + D_A, S_ND + D_B0, T_FINT, 'w_fin_done')
    a.label('w_fin_done')
    publish(a, 250)
    a('s_barrier')
    fetch(a, jobs_per_worker)
    a(f'''
    s_waitcnt lgkmcnt(0)
    s_barrier
    s_sub_u32 s57, {s(S_ND+D_TYPE)}, 1
    s_cmp_ge_u32 s57, 5
    s_cbranch_scc1 w_cold
    ''')
    emit_worker_init(a)
    a('s_branch w_cold')

def job(type, kb0, kb1, ldb, b0, b1, bsz, aoff, astr, nb, out, ostr, wait=0, wtgt=0, sig=0):
    return [type, kb0, kb1, ldb, b0, b1, bsz, aoff, astr, nb, out, ostr, wait, wtgt, sig, 0]

def job_qkv(mat, mb, nt, sig=0):
    ka = [KA_WQ, KA_WK, KA_WV][mat]; o = [WS_QS, WS_KS, WS_VS][mat]
    return job(T_F, ka, ka, 8192, nt * 512, nt * 512 + 256, 8 * MB, WS_XN + mb * 16 * 32 * 1024, 32 * 1024, 8,
               o + (mb * 16 * 128 + nt * 8) * 1024, 128 * 1024, sig=sig)

def job_qkv_half(mat, hb, nt, sig=0):
    ka = [KA_WQ, KA_WK, KA_WV][mat]; o = [WS_QS, WS_KS, WS_VS][mat]
    return job(T_FH, ka, ka, 8192, nt * 256, nt * 256 + 32 * 8192, 8 * MB, WS_XN + hb * 8 * 32 * 1024, 32 * 1024, 4,
               o + (hb * 8 * 128 + nt * 4) * 1024, 128 * 1024, sig=sig)

def job_glu(mb, ft, sig=0):
    return job(T_GLU, KA_WG, KA_WU, 7168, ft * 256, ft * 256, 7 * MB, WS_XN + mb * 16 * 32 * 1024, 32 * 1024, 8,
               WS_HH + (mb * 16 * 112 + ft * 4) * 1024, 112 * 1024, sig=sig)

def job_down_h(mb, nt, kh, wait=0, wtgt=0, sig=0):
    return job(T_F, KA_WD, KA_WD, 2048, nt * 512 + kh * 896 * 2048, nt * 512 + 256 + kh * 896 * 2048, 7 * MB,
               WS_HH + (mb * 16 * 112 + kh * 28) * 1024, 112 * 1024, 7,
               WS_GG + kh * 4 * MB + (mb * 16 * 32 + nt * 8) * 1024, 32 * 1024, wait=wait, wtgt=wtgt, sig=sig)

def job_att(hb, hg, wait, wtgt, sig, wq):
    return job(T_ATT, wq, 0, 0, 4 * hg, 0, 0, 4 * hb, 0, 0, 0, 0, wait=wait, wtgt=wtgt, sig=sig)

def job_wo(mb, nt, kq, wait=0, wtgt=0, sig=0):
    return job(T_F, KA_WO, KA_WO, 2048, nt * 512 + kq * 1024 * 2048, nt * 512 + 256 + kq * 1024 * 2048, 8 * MB,
               WS_OO + (mb * 16 * 128 + kq * 32) * 1024, 128 * 1024, 8,
               WS_SP + kq * 4 * MB + (mb * 16 * 32 + nt * 8) * 1024, 32 * 1024, wait=wait, wtgt=wtgt, sig=sig)

def job_fin(seg, quarter, tail=False):
    return job(T_FINT if tail else T_FIN, 0, 0, 0, quarter, 0, 0, seg, 0, 0, 0, 0)

END_JOB = [0] * 16

def emit_table(a, label, lists, per):
    a.raw('.p2align 6')
    a.label(label)
    for l in lists:
        assert len(l) < per
        l = l + [END_JOB] * (per - len(l))
        for j in l:
            a.raw('    .long ' + ', '.join(str(x) for x in j))

def emit_touch_first(a, table_label, jobs_per_worker, swk):
    l = a.uid('tch')
    a(f'''
    s_getpc_b64 {s(S_TAB,2)}
    s_add_u32 {s(S_TAB)}, {s(S_TAB)}, {table_label}@rel32@lo+4
    s_addc_u32 {s(S_TAB+1)}, {s(S_TAB+1)}, {table_label}@rel32@hi+12
    s_mul_i32 {s(S_T1)}, {s(swk)}, {jobs_per_worker*64}
    s_add_u32 {s(S_TAB)}, {s(S_TAB)}, {s(S_T1)}
    s_addc_u32 {s(S_TAB+1)}, {s(S_TAB+1)}, 0
    s_load_dwordx16 {s(S_ND,16)}, {s(S_TAB,2)}, 0
    s_mov_b32 {s(SRD_B0+3)}, {SRD3}
    s_waitcnt lgkmcnt(0)
    s_cmp_eq_u32 {s(S_ND+D_TYPE)}, {T_END}
    s_cbranch_scc1 {l}
    s_load_dwordx2 {s(SRD_B0,2)}, s[0:1], {s(S_ND+D_KB0)}
    s_mov_b32 {s(SRD_B0+2)}, {s(S_ND+D_BSZ)}
    v_bfe_u32 v20, v0, 2, 6
    v_mul_u32_u24 v20, {s(S_ND+D_LDB)}, v20
    v_and_b32 v21, 3, v0
    v_lshl_add_u32 v20, v21, 6, v20
    s_lshl_b32 {s(S_T1)}, {s(S_ND+D_LDB)}, 6
    s_mov_b32 {s(S_T2)}, {s(S_ND+D_B0)}
    s_waitcnt lgkmcnt(0)
    ''')
    for j in range(16):
        a(f'buffer_load_dword v22, v20, {s(SRD_B0,4)}, {s(S_T2)} offen')
        a(f's_add_u32 {s(S_T2)}, {s(S_T2)}, {s(S_T1)}')
    a.label(l)

def emit_tlb_touch(a, table_label, jobs_per_worker, swk):
    l = a.uid('tlb')
    a(f'''
    s_getpc_b64 {s(S_TAB,2)}
    s_add_u32 {s(S_TAB)}, {s(S_TAB)}, {table_label}@rel32@lo+4
    s_addc_u32 {s(S_TAB+1)}, {s(S_TAB+1)}, {table_label}@rel32@hi+12
    s_and_b32 {s(S_T1)}, {s(swk)}, 3
    s_mul_i32 {s(S_T1)}, {s(S_T1)}, {jobs_per_worker}
    s_lshr_b32 {s(S_T2)}, {s(swk)}, 2
    s_add_u32 {s(S_T1)}, {s(S_T1)}, {s(S_T2)}
    s_lshl_b32 {s(S_T1)}, {s(S_T1)}, 6
    s_add_u32 {s(S_TAB)}, {s(S_TAB)}, {s(S_T1)}
    s_addc_u32 {s(S_TAB+1)}, {s(S_TAB+1)}, 0
    s_load_dwordx16 {s(S_ND,16)}, {s(S_TAB,2)}, 0
    s_mov_b32 {s(SRD_B0+3)}, {SRD3}
    v_and_b32 v20, 63, v0
    s_waitcnt lgkmcnt(0)
    s_load_dwordx2 {s(SRD_B0,2)}, s[0:1], {s(S_ND+D_KB0)}
    s_mov_b32 {s(SRD_B0+2)}, {s(S_ND+D_BSZ)}
    s_lshl_b32 {s(S_T1)}, {s(S_ND+D_LDB)}, 4
    v_mul_lo_u32 v21, {s(S_T1)}, v20
    v_and_b32 v22, 15, v20
    v_mul_lo_u32 v22, {s(S_ND+D_OSTR)}, v22
    s_waitcnt lgkmcnt(0)
    s_cmp_eq_u32 s3, 4
    s_cbranch_scc0 {l}_1
    buffer_load_dword v23, v21, {s(SRD_B0,4)}, {s(S_ND+D_B0)} offen
    s_branch {l}
    ''')
    a.label(l + '_1')
    a(f'''
    s_cmp_eq_u32 s3, 5
    s_cbranch_scc0 {l}
    buffer_load_dword v23, v22, {s(SRD_WS,4)}, {s(S_ND+D_OUT)} offen
    buffer_load_dword v23, off, {s(SRD_WS,4)}, {s(S_ND+D_SIG)}
    ''')
    a.label(l)
    if getattr(a, 'ctouch', 0) >= 2:
        a('s_cmp_eq_u32 s3, 6')
        a(f's_cbranch_scc0 {l}_7')
        code_touch(a, 'ln_sig', 18, 68, 70)
        code_touch(a, 'w_firstH', 30, 68, 70)
        a.label(l + '_7')
        a('s_cmp_eq_u32 s3, 7')
        a(f's_cbranch_scc0 {l}_8')
        code_touch(a, 'w_first16', 60, 68, 70)
        a.label(l + '_8')
        a('s_waitcnt lgkmcnt(0)')
```

```python
import heapq, random, json, os, math
from layout4 import *
import k_gemm5 as G
import k_fin5 as F
CQ_TAB = WS_CNT + 512
CA_TAB = WS_CNT + 3072
CQ2_TAB = WS_CNT + 4096
NW = 32
DEF = dict(T0=21.0, P=2.5, PH=2.9, ts=9.7, dh0=10.0, dh=8.2, nhb=1, lw=0.5, dq=22.2, dg=23.3, cold=dict(g=5.0, d=5.0, o=1.0), dd=20.2, do=21.6, da=11.3, df=3.2, gap=0.8, margin=3.0, rm=1.0, tgt=172.0)

def make_jobs(nlb, p):
    T0, P = p['T0'], p['P']
    ct = lambda st: T0 + min(st, 8 * nlb) * P + max(0, st - 8 * nlb) * p['PH']
    jobs = []
    def add(**k): k['id'] = len(jobs); k.setdefault('rel', 0); k.setdefault('dl', None); k.setdefault('deps', []); jobs.append(k); return k['id']
    dl = lambda seg: ct(seg - 2) - p['margin'] if seg else T0
    Q = {}; Gj = {}; A = {}; DO = {}; nb0 = p.get('nb0', nlb)
    for b in range(8):
        for mat in (1, 2, 0):
            lq = mat == 0 and b < nb0
            if b < p['nhb'] and not lq:
                for hb in (2 * b, 2 * b + 1):
                    for i in range(8): add(kind='h', mb=hb, mat=mat, i=i, dur=p['dh'], dl=dl(4 * hb))
            else:
                for i in range(4):
                    n = add(kind='q', mb=b, mat=mat, i=i, dur=p['dq'], dl=None if lq else dl(8 * b) + (p['margin'] if b == 1 else 0))
                    if lq: Q.setdefault((b, i // 2), []).append(n)
    for mb in range(8):
        for i in range(7): Gj.setdefault(mb, []).append(add(kind='g', mb=mb, i=i, dur=p['dg']))
        for i in range(4): DO.setdefault(mb, []).append(add(kind='d', mb=mb, i=i, dur=p['dd'], deps=Gj[mb]))
    for b in range(nlb):
        for hf in range(2 if b < nb0 else 0):
            for i in range(2): A.setdefault(b, []).append(add(kind='a', mb=b, i=i, hf=hf, dur=p['da'], rel=ct(8 * b + 4 * hf + 5.6) + p['rm'], deps=Q[(b, i)]))
        for i in range(4): DO[b].append(add(kind='o', mb=b, i=i, dur=p['do'], deps=A.get(b, []), rel=0 if b < nb0 else ct(8 * b + 9.6) + p['rm']))
    for seg in range(64 - NTAIL):
        rel = ct(seg + 2.6 + ((3 - seg) % 4 if seg < 56 else 0)) if seg >= 8 * nlb else 0
        add(kind='f', mb=seg >> 3, i=seg, dur=p['df'], rel=rel, deps=DO[seg >> 3])
    for sg in range(NTAIL):
        for i in range(4): add(kind='t', mb=7, seg=64 - NTAIL + sg, i=i, dur=1.5, rel=ct(64 - NTAIL + sg + 1.4) + (0.3 if sg == NTAIL - 1 else 2.0), deps=DO[7])
    for j in jobs: j['pan'] = panels(j)
    return jobs, ct

def simulate(jobs, lists, p, sc=None, detail=False):
    n = len(jobs); end = [None] * n; start = [0] * n
    pos = [0] * NW
    durs, rs = sc if sc else ([j['dur'] for j in jobs], 1.0)
    T0 = p['T0']; gap = p['gap']; tgt = p['tgt']
    waiting = {}; heap = [(p['ts'], w, p['ts']) for w in range(NW)]; ndone = 0; pen = 0.0
    first = {}
    while heap:
        t, w, fr = heapq.heappop(heap); l = lists[w]
        if pos[w] >= len(l): continue
        i = l[pos[w]]; j = jobs[i]
        blk = None; rt = fr
        for d in j['deps']:
            e = end[d]
            if e is None: blk = d; break
            if e > rt: rt = e
        if blk is not None:
            waiting.setdefault(blk, []).append((w, fr)); continue
        rel = T0 + (j['rel'] - T0) * rs if j['rel'] else 0
        if rel > rt: rt = rel
        if rt > t + 1e-9:
            heapq.heappush(heap, (rt, w, fr)); continue
        k = j['kind']; dur = durs[i]
        if pos[w] == 0: dur += p['dh0'] - p['dh'] + (1.0 if k == 'q' else 0)
        if k in 'gdo':
            f = first.setdefault(k, rt)
            if rt < f + 12: dur += p['cold'][k]
        if not (rt == fr and k in 'qgdo' and pos[w] and jobs[l[pos[w] - 1]]['kind'] in 'qgdo'): rt += gap
        e = rt + dur
        x = e - max(tgt, rel + gap + dur)
        if x > 0: pen += x * x
        start[i] = rt; end[i] = e; pos[w] += 1; ndone += 1
        heapq.heappush(heap, (e, w, e))
        for w2, f2 in waiting.pop(i, ()): heapq.heappush(heap, (rt, w2, f2))
    if ndone < n: return None
    if detail: return start, end
    late = {}
    for j in jobs:
        if j['dl'] is not None:
            x = end[j['id']] - (T0 + (j['dl'] - T0) * rs)
            if x > late.get(j['dl'], 0): late[j['dl']] = x
    return max(end), sum(late.values()), pen, start

def scenarios(jobs, seed=5):
    r = random.Random(seed); out = [None]
    for g, rs in ((1.05, 0.99), (0.98, 1.04), (1.03, 1.01), (1.0, 1.0)):
        ks = {k: r.uniform(0.97, 1.05) for k in 'hqgdaoft'}
        out.append(([j['dur'] * g * ks[j['kind']] * r.uniform(0.95, 1.08) for j in jobs], rs))
    return out

def panels(j):
    k = j['kind']
    if k == 'q': return (('X', j['mb']), ('W', j['mat'], j['i']))
    if k == 'g': return (('X', j['mb']), ('G', j['i']))
    if k == 'd': return (('H', j['mb']), ('D', j['i']))
    if k == 'o': return (('O', j['mb']), ('Wo', j['i']))
    return ()

def unshared(jobs, start, win):
    by = {}
    for j in jobs:
        for pn in j['pan']: by.setdefault(pn, []).append(start[j['id']])
    n = 0
    for l in by.values():
        l.sort(); last = -1e9
        for t in l:
            if t - last > win: n += 1; last = t
    return n

def score(jobs, lists, p, scs):
    tot = 0.0
    for sc in scs:
        r = simulate(jobs, lists, p, sc)
        if r is None: return 1e9
        tot += r[0] + 3 * r[1] + 0.004 * r[2]
        if sc is None: tot += p['lw'] * len(scs) / 2 * unshared(jobs, r[3], 2.5)
    return tot / len(scs) * 2

def initial(jobs, nlb, p):
    lists = [[] for _ in range(NW)]
    h = {(j['mb'], j['mat'], j['i']): j['id'] for j in jobs if j['kind'] == 'h'}
    pre = set()
    for k in range(NW):
        mat, i = 1 + ((k >> 3) & 1), k & 7
        if (2, 1, 0) in h: lists[k] = [h[(k >> 4, mat, i)], h[(2 + (k >> 4), mat, i)]]
        elif k < 16: lists[k] = [h[(0, mat, i)], h[(1, mat, i)]]
        else:
            mb, mt = ((1, 1 + ((k >> 2) & 1)) if k < 24 else ((k >> 2) & 1, 0)) if p.get('cln') else (1 + ((k >> 3) & 1), 1 + ((k >> 2) & 1))
            lists[k] = [[j['id'] for j in jobs if j['kind'] == 'q' and j['mb'] == mb and j['mat'] == mt and j['i'] == k & 3][0]]
            pre.add(lists[k][0])
    def key(j):
        k, b = j['kind'], j['mb']
        if k == 'q': return j['dl'] - 45 if j['dl'] is not None else 20 * b + 5
        return {'g': 30 + 12 * b, 'd': 120 + 5 * b, 'a': j['rel'] + 8, 'o': max(75 + 20 * b, j['rel'] + 5), 'f': max(170 + b, j['rel']), 't': 300}[k]
    rest = sorted((j for j in jobs if j['kind'] not in 'ht' and j['id'] not in pre), key=key)
    load = [(0.0 if len(lists[w]) == 2 else 5.0, w) for w in range(NW)]
    for j in rest:
        t, w = heapq.heappop(load); lists[w].append(j['id']); heapq.heappush(load, (t + j['dur'], w))
    for n, j in enumerate(j for j in jobs if j['kind'] == 't'): lists[(n * 5) % NW].append(j['id'])
    return lists

def optimise(jobs, lists, p, iters, seed=1, t0=3.0):
    rnd = random.Random(seed); scs = scenarios(jobs); cur = score(jobs, lists, p, scs); best = (cur, [list(l) for l in lists])
    for it in range(iters):
        temp = t0 * (1 - it / iters) ** 2 + 0.01
        w1 = rnd.randrange(NW); w2 = rnd.randrange(NW)
        l1, l2 = lists[w1], lists[w2]
        n1 = len(l1) - (jobs[l1[-1]]['kind'] == 't'); n2 = len(l2) - (jobs[l2[-1]]['kind'] == 't')
        f1 = 2 if jobs[l1[0]]['kind'] == 'h' else 1; f2 = 2 if jobs[l2[0]]['kind'] == 'h' else 1
        if n1 <= f1: continue
        i1 = rnd.randrange(f1, n1); o1, o2 = list(l1), list(l2)
        m = rnd.random()
        if m < 0.4 and n2 > f2:
            i2 = min(max(f2, i1 + rnd.randint(-2, 2)), n2 - 1)
            if w1 == w2 and i1 == i2: continue
            l1[i1], l2[i2] = l2[i2], l1[i1]
        elif m < 0.8:
            j = l1.pop(i1)
            if w1 == w2: n2 -= 1
            l2.insert(min(max(f2, i1 + rnd.randint(-2, 2)), n2), j)
        else:
            if w1 == w2: continue
            i2 = min(max(f2, i1 + rnd.randint(-1, 1)), n2)
            l1[:], l2[:] = o1[:i1] + o2[i2:], o2[:i2] + o1[i1:]
        sc = score(jobs, lists, p, scs)
        if sc <= cur or rnd.random() < math.exp((cur - sc) / temp):
            cur = sc
            if sc < best[0]: best = (sc, [list(l) for l in lists])
        else:
            l1[:] = o1; l2[:] = o2
        if it % 20000 == 0: r = simulate(jobs, lists, p); print(it, round(cur, 2), r[:3], unshared(jobs, r[3], 2.5), flush=True)
    return best[1]

def report(jobs, lists, p, ct):
    st, en = simulate(jobs, lists, p, detail=True)
    print('fetches', unshared(jobs, st, 2.5), 'scen', [[round(x, 1) for x in simulate(jobs, lists, p, sc)[:2]] for sc in scenarios(jobs) + scenarios(jobs, 77)[1:]], 'chain end', ct(64))
    for k in 'hqgdaoft': print(k, [round(max(en[j['id']] for j in jobs if j['kind'] == k and j['mb'] == mb)) for mb in range(8) if any(j['kind'] == k and j['mb'] == mb for j in jobs)])
    for w in range(NW): print(w, ' '.join(f"{jobs[i]['kind']}{jobs[i]['mb']}@{st[i]:.0f}" for i in lists[w]))

def path(nlb, tag): return os.path.join(os.path.dirname(os.path.abspath(__file__)), f'plan_{nlb}{tag}.json')

def descriptor(j, x, nb0):
    o = []
    k, mb, i = j['kind'], j['mb'], j['i']
    q2 = lambda base: (base + 16 * (x >> 1), 4 if x & 1 else 1)
    if k == 'q':
        t = 4 * x + i
        o.append(G.job_qkv(j['mat'], mb, t, sig=((CQ2_TAB if j['mat'] == 0 and mb < nb0 else CQ_TAB) + mb * 256 + (t // 2) * 16) | 10))
    elif k == 'h':
        t = 8 * x + i
        o.append(G.job_qkv_half(j['mat'], mb, t, sig=(CQ_TAB + (mb >> 1) * 256 + (t // 4) * 16) | (4 if mb & 1 else 1)))
    elif k == 'g': ad, inc = q2(WS_CNT + 64 * mb); o.append(G.job_glu(mb, 7 * x + i, sig=ad | inc))
    elif k == 'd': ad, inc = q2(WS_CNT + 64 * mb); o.append(G.job_down_h(mb, i, x, wait=ad + 4 * (x & 1), wtgt=7, sig=(F.CD_TAB + 64 * mb) | 1))
    elif k == 'f': o.append(G.job_fin(i, x))
    elif k == 't': o.append(G.job_fin(j['seg'], 4 * x + i, True))
    elif k == 'a':
        ad, inc = q2(CA_TAB + 64 * mb); hg = 2 * x + i
        o.append(G.job_att(2 * mb + j['hf'], hg, wait=F.CS_TAB + 128 * x, wtgt=8 * mb + 4 * j['hf'] + 3, sig=ad | inc, wq=CQ2_TAB + mb * 256 + hg * 16))
    elif mb >= nb0: o.append(G.job_wo(mb, i, x, wait=F.CS_TAB + 128 * x, wtgt=8 * mb + 8, sig=(F.CD_TAB + 64 * mb) | 4))
    else: ad, inc = q2(CA_TAB + 64 * mb); o.append(G.job_wo(mb, i, x, wait=ad + 4 * (x & 1), wtgt=4, sig=(F.CD_TAB + 64 * mb) | 4))
    return o[0]

def build(nlb=6, tag='', nb0=None):
    global PLAN
    d = json.load(open(path(nlb, tag))); p = d['p']; lists = d['lists']
    assert p.get('nb0', nlb) == nb0
    jobs, ct = make_jobs(nlb, p)
    assert sorted(i for l in lists for i in l) == list(range(len(jobs)))
    st, en = simulate(jobs, lists, p, detail=True)
    out = []; PLAN = []
    for wk in range(128):
        x = wk & 3; o = []
        PLAN.append([(jobs[i]['kind'], jobs[i]['mb'], round(st[i], 1)) for i in lists[wk >> 2]])
        for n in lists[wk >> 2]:
            o.append(descriptor(jobs[n], x, nb0))
        out.append(o)
    return out

if __name__ == '__main__':
    import sys
    nlb = int(sys.argv[1]); iters = int(sys.argv[2]); tag = sys.argv[3] if len(sys.argv) > 3 else ''
    p = dict(DEF); p.update(eval(sys.argv[4]) if len(sys.argv) > 4 else {})
    jobs, ct = make_jobs(nlb, p)
    lists = optimise(jobs, initial(jobs, nlb, p), p, iters, seed=p.get('seed', 1))
    report(jobs, lists, p, ct)
    json.dump(dict(p=p, lists=lists), open(path(nlb, tag), 'w'))
```

```python
import heapq, random, json, os, math
import sched6 as S
from sched6 import make_jobs, scenarios, unshared, DEF, NW
from layout4 import *

def simulate(jobs, order, p, sc=None, detail=False):
    n = len(jobs); end = [None] * n; start = [0] * n; who = [0] * n
    durs, rs = sc if sc else ([j['dur'] for j in jobs], 1.0)
    T0 = p['T0']; gap = p['gap']; tgt = p['tgt']
    head = NW; nxt = [None] * NW; free = [None] * NW; prevk = [''] * NW
    ev = [(p['ts'], 1, w, order[w]) for w in range(NW)]
    fr = [p['ts']] * NW; waiting = {}; first = {}; pen = 0.0; nd = 0
    while ev:
        t, kind, w, i = heapq.heappop(ev)
        if kind == 0:
            if head < n:
                heapq.heappush(ev, (fr[w], 1, w, order[head])); head += 1
            continue
        j = jobs[i]; blk = None; rt = fr[w]
        for d in j['deps']:
            e = end[d]
            if e is None: blk = d; break
            if e > rt: rt = e
        if blk is not None:
            waiting.setdefault(blk, []).append((w, i)); continue
        rel = T0 + (j['rel'] - T0) * rs if j['rel'] else 0
        if rel > rt: rt = rel
        if rt > t + 1e-9:
            heapq.heappush(ev, (rt, 1, w, i)); continue
        k = j['kind']; dur = durs[i]
        if not prevk[w]: dur += p['dh0'] - p['dh'] + (1.0 if k == 'q' else 0)
        if k in 'gdo':
            f = first.setdefault(k, rt)
            if rt < f + 12: dur += p['cold'][k]
        if not (rt == fr[w] and k in 'qgdo' and prevk[w] in 'qgdo' and prevk[w]): rt += gap
        e = rt + dur
        x = e - max(tgt, rel + gap + dur)
        if x > 0: pen += x * x
        start[i] = rt; end[i] = e; who[i] = w; fr[w] = e; prevk[w] = k; nd += 1
        lead = dur * 0.75 if k == 'h' else 8.2 if k in 'qgdo' else dur
        heapq.heappush(ev, (e - lead, 0, w, -1))
        for w2, i2 in waiting.pop(i, ()): heapq.heappush(ev, (max(rt, fr[w2]), 1, w2, i2))
    if nd < n: return None
    if detail: return start, end, who
    late = {}
    for j in jobs:
        if j['dl'] is not None:
            x = end[j['id']] - (T0 + (j['dl'] - T0) * rs)
            if x > late.get(j['dl'], 0): late[j['dl']] = x
    return max(end), sum(late.values()), pen, start

def valid(jobs, order):
    pos = {i: k for k, i in enumerate(order)}
    return all(pos[d] < pos[j['id']] for j in jobs for d in j['deps'])

def score(jobs, order, p, scs):
    tot = 0.0
    for sc in scs:
        r = simulate(jobs, order, p, sc)
        if r is None: return 1e9
        tot += r[0] + 3 * r[1] + 0.004 * r[2]
        if sc is None: tot += p['lw'] * len(scs) / 2 * unshared(jobs, r[3], 2.5)
    return tot / len(scs) * 2

def optimise(jobs, order, p, iters, seed, t0=2.0):
    rnd = random.Random(seed); scs = scenarios(jobs); cur = score(jobs, order, p, scs); best = (cur, list(order)); n = len(order)
    nt = sum(j['kind'] == 't' for j in jobs)
    pos = {i: k for k, i in enumerate(order)}
    users = {}
    for j in jobs:
        for d in j['deps']: users.setdefault(d, []).append(j['id'])
    for it in range(iters):
        temp = t0 * (1 - it / iters) ** 2 + 0.01
        a = rnd.randrange(NW, n - nt); b = min(max(NW, a + rnd.choice((-1, 1)) * int(rnd.expovariate(1 / 14) + 1)), n - nt - 1)
        if a == b: continue
        old = list(order)
        if rnd.random() < 0.5: order[a], order[b] = order[b], order[a]
        else: order.insert(b, order.pop(a))
        if jobs[old[a]]['kind'] == jobs[old[b]]['kind'] == 'f' or not valid(jobs, order): order[:] = old; continue
        sc = score(jobs, order, p, scs)
        if sc <= cur or rnd.random() < math.exp((cur - sc) / temp):
            cur = sc
            if sc < best[0]: best = (sc, list(order))
        else: order[:] = old
        if it % 20000 == 0: r = simulate(jobs, order, p); print(it, round(cur, 2), r[:3], unshared(jobs, r[3], 2.5), flush=True)
    return best[1]

def path(nlb, tag): return os.path.join(os.path.dirname(os.path.abspath(__file__)), f'order_{nlb}{tag}.json')

def build(nlb=6, tag='', nb0=None):
    global PLAN
    d = json.load(open(path(nlb, tag))); p = d['p']; order = d['order']
    assert p.get('nb0', nlb) == nb0
    jobs, ct = make_jobs(nlb, p)
    assert sorted(order) == list(range(len(jobs))) and valid(jobs, order)
    st, en, who = simulate(jobs, order, p, detail=True)
    PLAN = [(jobs[i]['kind'], jobs[i]['mb'], round(st[i], 1)) for i in order]
    return [[S.descriptor(jobs[i], x, nb0) for i in order] for x in range(4)]

if __name__ == '__main__':
    import sys
    nlb = int(sys.argv[1]); iters = int(sys.argv[2]); tag = sys.argv[3]; src = sys.argv[4]
    d = json.load(open(S.path(nlb, src))); p = d['p']; p.update(eval(sys.argv[5]) if len(sys.argv) > 5 else {})
    jobs, ct = make_jobs(nlb, p)
    st, en = S.simulate(jobs, d['lists'], p, detail=True)
    first = [l[0] for l in d['lists']]
    rest = sorted((j['id'] for j in jobs if j['id'] not in first), key=lambda i: (jobs[i]['kind'] == 't', st[i] if jobs[i]['kind'] != 't' else jobs[i]['rel'], jobs[i]['pan']))
    order = optimise(jobs, first + rest, p, iters, p.get('seed', 1))
    st, en, who = simulate(jobs, order, p, detail=True)
    print('fetches', unshared(jobs, st, 2.5), 'scen', [[round(x, 1) for x in simulate(jobs, order, p, sc)[:2]] for sc in scenarios(jobs) + scenarios(jobs, 77)[1:]], 'chain end', ct(64))
    for k in 'hqgdaoft': print(k, [round(max(en[j['id']] for j in jobs if j['kind'] == k and j['mb'] == mb)) for mb in range(8) if any(j['kind'] == k and j['mb'] == mb for j in jobs)])
    print(' '.join(f"{jobs[i]['kind']}{jobs[i]['mb']}@{st[i]:.0f}" for i in order))
    json.dump(dict(p=p, order=order), open(path(nlb, tag), 'w'))
```

```python
import sys, argparse, os
from asmlib import *
from layout4 import *
import k_gemm5 as G
import k_chain5 as C
import k_fin5 as F
import sched7 as sched5

ap = argparse.ArgumentParser()
ap.add_argument('out')
ap.add_argument('--prof', action='store_true')
ap.add_argument('--wprof', action='store_true')
ap.add_argument('--slow', action='store_true')
ap.add_argument('--tim', action='store_true')
ap.add_argument('--list', action='store_true', help='emit as launch list (dev harness)')
OPTS = dict(gdp=0, gde=4, grs=1, gr0=0, gprio=1, wdel=0, stag=0, ctch=1, fl=0, swp=0, nlb=6, vpos=1, qkf=0, ofd=5, s0=16, jit=1, cln=0, ent=0, kpos=0, lr=3, kdl=0, s1=48, cd=1, cdl=13, qd=0, qdl=9, md=1, last=63, vwp=8, fine=0, finsleep=12, touch=2, ntb=0, nta=0, ftsleep=4, nodep=1, bpre=4, vote=400,
            al=6, alo=11, aloa=0, hh=0, fsq=3, pgf=0, early=1, stouch=1, mck=2, dprio=1, nd1=8, ndl=8, d2=6, fprio=3, fsl=1, kvsl=1, rsleep=0,
            bnt=0, xflip=0, vdel=2, spnt=0)
for n, d in OPTS.items():
    ap.add_argument('--' + n, type=int, default=d)
ap.add_argument('--sp', default='b2')
ap.add_argument('--abl', default='')
args = ap.parse_args()

a = Asm()
G.ENT = ' nt' if args.ent else ''
G.NTA = ' nt' if args.nta else ''; G.NTB = ' nt' if args.ntb else ''
for n in OPTS: setattr(a, n, getattr(args, n))
a.force_slow = args.slow; a.abl = args.abl; a.wprof = args.prof or args.wprof; a.fin_sleep = args.finsleep; a.ft_sleep = args.ftsleep
a.msh = 16
a.spnt = ' nt' if args.spnt else ''
a.bnt = ' nt' if args.bnt else ''
name = NAME + '_kernel'
hdr = open(os.path.join(os.path.dirname(os.path.abspath(__file__)), '..', NAME + '.s.ref')).read().split('; Override launch')[0]
a.raw(hdr.rstrip())
if args.list:
    a.raw(f'; @launch kernel={name} grid=(256,1,1) block=(512,1,1) lds={C.CHAIN_LDS}')
else:
    a.raw(f'; @launch grid=(256,1,1) block=(512,1,1) lds={C.CHAIN_LDS}')
a.raw('.amdgcn_target "amdgcn-amd-amdhsa--gfx950"\n.text')
a.s0 = min(args.s0, args.s1)
lists = sched5.build(nlb=args.nlb, tag=args.sp, nb0=a.s0 // 8, s1=args.s1)
per = len(lists[0]) + 1
a.raw(f'.globl {name}\n.p2align 8\n.type {name},@function')
a.label(name)
S_WK = 63
a(f'''
s_cmp_ge_u32 s2, 256
s_cbranch_scc1 k_exit
{'s_memrealtime s[90:91]' if args.tim else ''}
s_mov_b32 s99, s2
s_load_dwordx2 s[4:5], s[0:1], {KA_WS}
s_load_dwordx2 {s(F.SRD_DBG,2)}, s[0:1], {KA_DBG}
v_lshrrev_b32 v2, 6, v0
s_mov_b32 s6, {WS_SIZE}
s_mov_b32 s7, {SRD3}
s_mov_b32 {s(F.SRD_DBG+2)}, 256
s_mov_b32 {s(F.SRD_DBG+3)}, {SRD3}
v_readfirstlane_b32 s3, v2
s_lshr_b32 {s(C.S_I)}, s2, 3
s_and_b32 {s(C.S_X)}, s2, 3
s_waitcnt lgkmcnt(0)
s_bitcmp{args.xflip}_b32 s2, 2
s_cbranch_scc1 chain_map
s_lshl_b32 {s(S_WK)}, {s(C.S_I)}, 2
s_add_u32 {s(S_WK)}, {s(S_WK)}, {s(C.S_X)}
''')
F.emit_ln_init(a, S_WK, [(lambda: None), (lambda: G.emit_touch_first(a, 'jobtab', per, S_WK)), (lambda: G.emit_tlb_touch(a, 'jobtab', per, S_WK))][args.touch])
for i in range(args.wdel): a('s_sleep 127')
a(f's_mov_b32 {s(G.S_T0)}, {s(S_WK)}')
def pre_cold(x=''):
    F.emit_ln_wait(a, G.S_ND + G.D_TYPE, G.S_ND + G.D_A, G.T_FH, x)
a.pre_cold = pre_cold
a.drain_hook = lambda: F.emit_drain_hook(a)
a.fin_hook = lambda *x: F.emit_fin(a, *x)
G.emit_worker(a, 'jobtab', per, 'k_end')
a.label('chain_map')
C.emit_chain(a, 'k_end', prof=args.prof)
a.label('k_end')
if args.tim:
    a(f'''
    s_waitcnt vmcnt(0)
    s_memrealtime s[96:97]
    s_lshl_b32 s98, s99, 3
    s_add_u32 s98, s98, s3
    s_lshl_b32 s98, s98, 3
    s_add_u32 s98, s98, {WS_YP + 13*MB}
    s_waitcnt lgkmcnt(0)
    v_mov_b32 v2, s90
    v_mov_b32 v3, s96
    s_mov_b64 exec, 1
    buffer_store_dwordx2 v[2:3], off, s[4:7], s98
    ''')
a.label('k_exit')
a('s_endpgm')
a.raw('.section .rodata,"a"')
G.emit_table(a, 'jobtab', lists, per)
a.raw('.p2align 6')
a.raw(kernel_desc(name, 256, 102))
a.raw('; PLAN ' + repr(sched5.PLAN))
open(args.out, 'w').write(a.text())
```

```python
class Asm:
    def __init__(self):
        self.lines = []
        self._uid = 0
    def __call__(self, s):
        for ln in s.split('\n'):
            ln = ln.strip()
            if ln:
                self.lines.append('    ' + ln)
    def label(self, l):
        self.lines.append(l + ':')
    def raw(self, s):
        self.lines.append(s)
    def uid(self, p='L'):
        self._uid += 1
        return f'{p}_{self._uid}'
    def text(self):
        return '\n'.join(self.lines) + '\n'

def v(i, n=1):
    return f'v{i}' if n == 1 else f'v[{i}:{i+n-1}]'
def s(i, n=1):
    return f's{i}' if n == 1 else f's[{i}:{i+n-1}]'

def interleave(main, fill, start=0, per=1, every=1):
    out = []
    fi = 0
    for i, m in enumerate(main):
        out.append(m)
        if i >= start and (i - start) % every == 0:
            for _ in range(per):
                if fi < len(fill):
                    out.extend(fill[fi]); fi += 1
    while fi < len(fill):
        out.extend(fill[fi]); fi += 1
    return out

def kernel_desc(name, vgpr=256, sgpr=102):
    acc = (vgpr + 3) // 4 * 4
    return f'''.amdhsa_kernel {name}
  .amdhsa_next_free_vgpr {vgpr}
  .amdhsa_next_free_sgpr {sgpr}
  .amdhsa_accum_offset {acc}
  .amdhsa_group_segment_fixed_size 0
  .amdhsa_kernarg_size 112
  .amdhsa_user_sgpr_count 2
  .amdhsa_user_sgpr_kernarg_segment_ptr 1
  .amdhsa_system_sgpr_workgroup_id_x 1
  .amdhsa_float_denorm_mode_32 3
.end_amdhsa_kernel
'''


def code_touch(a, label, nlines, sp, sd, stride=128, sadd=None):
    a(f's_getpc_b64 s[{sp}:{sp+1}]')
    a(f's_add_u32 s{sp}, s{sp}, {label}@rel32@lo+4')
    a(f's_addc_u32 s{sp+1}, s{sp+1}, {label}@rel32@hi+12')
    if sadd is not None:
        a(f's_add_u32 s{sp}, s{sp}, s{sadd}')
        a(f's_addc_u32 s{sp+1}, s{sp+1}, 0')
    for i in range(nlines):
        a(f's_load_dword s{sd}, s[{sp}:{sp+1}], {i*stride}')


def vcode_touch(a, label, nlines, sp, vl16, vt, vd):
    a(f's_getpc_b64 s[{sp}:{sp+1}]')
    a(f's_add_u32 s{sp}, s{sp}, {label}@rel32@lo+4')
    a(f's_addc_u32 s{sp+1}, s{sp+1}, {label}@rel32@hi+12')
    a(f'v_lshlrev_b32 v{vt}, 3, v{vl16}')
    for i in range(0, nlines, 64):
        if i: a(f'v_add_u32 v{vt}, 8192, v{vt}')
        if nlines - i < 64: a(f's_mov_b64 exec, -1\ns_lshr_b64 exec, exec, {64 - (nlines - i)}')
        a(f'global_load_dword v{vd}, v{vt}, s[{sp}:{sp+1}]')
        if nlines - i < 64: a('s_mov_b64 exec, -1')
```

```python
from asmlib import *
from layout4 import *
import k_fin5 as F

SRD_WS = 4
SRD_T = 8
S_W = 3
S_X, S_I, S_G, S_H, S_S = 12, 13, 14, 15, 16
S_T0, S_T1, S_T2, S_T3, S_T4 = 17, 18, 19, 20, 21
S_TO = 22
S_MLD, S_MST, S_MRS, S_QST, S_QRS, S_PLD, S_OK, S_SP, S_TCH, S_RDG, S_RDY, S_C, S_CQG = range(23, 36)
S_MO, S_MSO, S_QO, S_PO, S_X1, S_KG, S_KL = range(36, 43)
S_QLD, S_QLD2, S_PSTC, S_PRS, S_PRG, S_CS, S_CST, S_DW, S_DU, S_U2, S_QT = range(23, 34)
S_M0 = 44
S_ID = 52
S_J = 53
S_SP0 = 54
S_KMX = 55
S_RTG = 58
S_OF, S_OB = 59, 60
S_MEX = 56
S_PROF = 70
LDS_RED1 = 0
LDS_FLG = 15872
LDS_PUB = 15968
LDS_RED2 = 16384
LDS_SEG = 32768
LDS_BULK = 65536
PSLOT = 18
CHAIN_LDS = 163840
CQ_TAB = WS_CNT + 512
TIMEOUT = 1 << 17

def red_gq(vs, vt, op):
    return [f'v_mov_b32 {v(vt)}, {v(vs)}', 's_nop 1', f'v_permlane16_swap_b32 {v(vt)}, {v(vs)}', f'{op} {v(vs)}, {v(vs)}, {v(vt)}',
            f'v_mov_b32 {v(vt)}, {v(vs)}', 's_nop 1', f'v_permlane32_swap_b32 {v(vt)}, {v(vs)}', f'{op} {v(vs)}, {v(vs)}, {v(vt)}']

def chk(regs, vt, target):
    r = list(regs); o = []
    if len(r) == 1:
        return [f'v_cmp_eq_u32 vcc, -1, {v(r[0])}', f's_cbranch_vccnz {target}']
    if len(r) == 2:
        o.append(f'v_max_u32 {v(vt)}, {v(r[0])}, {v(r[1])}'); r = []
    else:
        o.append(f'v_max3_u32 {v(vt)}, {v(r[0])}, {v(r[1])}, {v(r[2])}'); r = r[3:]
    while len(r) >= 2:
        o.append(f'v_max3_u32 {v(vt)}, {v(vt)}, {v(r[0])}, {v(r[1])}'); r = r[2:]
    if r: o.append(f'v_max_u32 {v(vt)}, {v(vt)}, {v(r[0])}')
    o.append(f'v_cmp_eq_u32 vcc, -1, {v(vt)}')
    o.append(f's_cbranch_vccnz {target}')
    return o

def retry_block(a, label, again, giveup):
    a.label(label)
    a('s_waitcnt vmcnt(0)')
    if a.rsleep: a(f's_sleep {a.rsleep}')
    a(f's_sub_u32 {s(S_TO)}, {s(S_TO)}, 1')
    a(f's_cbranch_scc0 {again}')
    a(f's_mov_b32 {s(S_TO)}, 0')
    a(f's_branch {giveup}')

def spin_block(a, label, loads, regs, vt, ok, giveup):
    a.label(label)
    a(f's_sub_u32 {s(S_TO)}, {s(S_TO)}, 1')
    a(f's_cbranch_scc1 {label}_g')
    for x in loads: a(x)
    a(f's_waitcnt vmcnt({len(loads)-1})')
    for x in chk(regs, vt, label): a(x)
    a(f's_branch {ok}')
    a.label(label + '_g')
    a(f's_mov_b32 {s(S_TO)}, 0')
    a('s_waitcnt vmcnt(0)')
    a(f's_branch {giveup}')

class Prof:
    def __init__(self, on): self.on = on; self.n = 0; self.names = []
    def stamp(self, a, name, lvl=0):
        if self.on and (lvl == 0 or lvl == a.fine or (lvl < 0 and -lvl != a.fine)):
            a(f's_memtime {s(S_PROF + 2*self.n, 2)}'); self.n += 1; self.names.append(name)
    def flush(self, a, vtmp, tag):
        if not self.on: return
        a(f's_memrealtime {s(S_PROF + 2*self.n, 2)}'); self.n += 1; self.names.append('rt')
        a(f's_sub_u32 {s(S_PROF + 2*self.n)}, s100, {s(S_TO)}'); self.n += 1; self.names.append('retries')
        a(f's_mov_b32 s100, {s(S_TO)}')
        assert self.n <= 15
        a('s_waitcnt lgkmcnt(0)')
        a(f's_lshl_b32 {s(S_T0)}, {s(S_ID)}, 3')
        a(f's_add_u32 {s(S_T0)}, {s(S_T0)}, {s(S_W)}')
        a(f's_lshl_b32 {s(S_T0)}, {s(S_T0)}, 6')
        a(f's_add_u32 {s(S_T0)}, {s(S_T0)}, {s(S_S)}')
        a(f's_lshl_b32 {s(S_T0)}, {s(S_T0)}, 6')
        a(f's_add_u32 {s(S_T0)}, {s(S_T0)}, {WS_YP}')
        for i in range(self.n):
            a(f'v_writelane_b32 {v(vtmp)}, {s(S_PROF+2*i)}, {i}')
        a(f's_mov_b64 exec, {(1<<self.n)-1}')
        a(f'v_mbcnt_lo_u32_b32 {v(vtmp+1)}, -1, 0')
        a(f'v_lshlrev_b32 {v(vtmp+1)}, 2, {v(vtmp+1)}')
        a(f'buffer_store_dword {v(vtmp)}, {v(vtmp+1)}, {s(SRD_WS,4)}, {s(S_T0)} offen')
        a('s_mov_b64 exec, -1')
        a.raw(f'; PROF {tag} ' + ' '.join(self.names))
        self.n = 0; self.names = []

def merge_fill(seq, fill, every=2, start=1):
    out = []; fi = 0
    for k, x in enumerate(seq):
        out.append(x)
        if k >= start and (k - start) % every == 0 and fi < len(fill):
            out.append(fill[fi]); fi += 1
    out += fill[fi:]
    return out

def flag_wait(a, tag, vaddr, off, vt, st, sl=1, one=False):
    a.label(tag)
    if one:
        a(f'ds_read_b32 {v(vt)}, {v(vaddr)} offset:{off}')
        a('s_waitcnt lgkmcnt(0)')
    else:
        a(f'ds_read_b128 {v(vt,4)}, {v(vaddr)} offset:{off}')
        a('s_waitcnt lgkmcnt(0)')
        a(f'v_min3_i32 {v(vt)}, {v(vt)}, {v(vt+1)}, {v(vt+2)}')
        a(f'v_min_i32 {v(vt)}, {v(vt)}, {v(vt+3)}')
        a('s_nop 0')
    a(f'v_readfirstlane_b32 {s(st)}, {v(vt)}')
    a(f's_cmp_ge_i32 {s(st)}, {s(S_S)}')
    a(f's_cbranch_scc1 {tag}ok')
    a(f's_sleep {sl}')
    a(f's_branch {tag}')
    a.label(tag + 'ok')

def ring(a, d, add, sh, base):
    if add: a(f's_add_u32 {s(d)}, {s(S_S)}, {add}')
    a(f's_and_b32 {s(d)}, {s(d if add else S_S)}, 3')
    a(f's_lshl_b32 {s(d)}, {s(d)}, {sh}')
    a(f's_add_u32 {s(d)}, {s(d)}, {s(base)}')

def sel_init(a, sel, vl, t1, t2):
    a(f'v_and_b32 {v(t1)}, 15, {v(vl)}')
    a(f'v_and_b32 {v(t2)}, 1, {v(t1)}')
    a(f'v_lshlrev_b32 {v(t2)}, 4, {v(t2)}')
    a(f'v_lshlrev_b32 {v(t2)}, {v(t2)}, 0x3f80' if False else f'v_mov_b32 {v(sel)}, 0x3f80')
    a(f'v_lshlrev_b32 {v(t2)}, {v(t2)}, {v(sel)}')
    a(f'v_lshrrev_b32 {v(t1)}, 1, {v(t1)}')
    for d in range(4):
        a(f'v_cmp_eq_u32 vcc, {d}, {v(t1)}')
        a('s_nop 1')
        a(f'v_cndmask_b32 {v(sel+d)}, 0, {v(t2)}, vcc')

PV_L16, PV_QST, PV_R1W, PV_R1R, PV_MST, PV_SGR, PV_SPS, PV_IDX = 1, 2, 3, 4, 5, 6, 7, 8
PV_PFA, PV_PFD, PV_FLGR = 0, 9, 58
PV_T, PV_NEG, PV_SEL = 9, 10, 12
PV_M, PV_ACC, PV_W = 16, 32, 64
PV_FV, PV_RDY, PV_R1W1, PV_R1W2, PV_FLGW = 59, 60, 61, 62, 63
def pw(b, t): return PV_W + (b * 6 + t) * 8

def mem0_issue(a):
    a(f'''
    s_load_dwordx2 {s(SRD_T,2)}, s[0:1], {KA_MEM0}
    s_mov_b32 {s(SRD_T+2)}, 16384
    v_bfe_u32 v57, v20, 2, 2
    v_and_b32 v58, 1, v20
    v_lshl_add_u32 v57, v57, 1, v58           ; token
    v_lshlrev_b32 v57, 11, v57
    v_lshrrev_b32 v58, 4, v20
    v_lshl_add_u32 v57, v58, 5, v57           ; + 32 g
    v_bfe_u32 v58, v20, 1, 1                  ; p
    v_lshl_add_u32 v57, v58, 4, v57
    v_lshl_add_u32 v59, v58, 3, v57
    v_xor_b32 v60, 8, v59
    s_lshl_b32 {s(S_T3)}, {s(S_W)}, 9
    s_waitcnt lgkmcnt(0)
    ''')
    for b in range(4):
        a(f'buffer_load_dwordx2 {v(32+4*b,2)}, v59, {s(SRD_T,4)}, {s(S_T3)} offen offset:{128*b}')
        a(f'buffer_load_dwordx2 {v(34+4*b,2)}, v60, {s(SRD_T,4)}, {s(S_T3)} offen offset:{128*b}')

def p_prologue(a):
    a(f'''
    v_and_b32 v20, 63, v0
    v_lshlrev_b32 {v(PV_L16)}, 4, v20
    v_mov_b32 {v(PV_NEG)}, -1
    v_mov_b32 {v(PV_NEG+1)}, -1
    v_lshrrev_b32 v21, 2, v20
    v_and_b32 v22, 3, v20
    v_lshlrev_b32 v21, 13, v21
    v_lshl_add_u32 v21, v22, 4, v21
    s_lshl_b32 {s(S_T0)}, {s(S_W)}, 21
    s_lshl_b32 {s(S_T1)}, {s(S_ID)}, 6
    s_add_u32 {s(S_T0)}, {s(S_T0)}, {s(S_T1)}
    s_lshl_b32 {s(S_T2)}, {s(S_W)}, 15
    s_mov_b32 {s(SRD_T+2)}, {8*MB}
    s_mov_b32 {s(SRD_T+3)}, {SRD3}
    v_lshrrev_b32 v24, 5, v20                 ; gB>>1
    v_bfe_u32 v25, v20, 3, 1                  ; r>>1
    v_lshl_add_u32 v24, v24, 1, v25           ; 2(gB>>1) + (r>>1)
    v_bfe_u32 v26, v20, 4, 1                  ; gB&1
    v_xor_b32 v26, v26, v25
    v_lshl_add_u32 v24, v24, 1, v26
    v_bfe_u32 v25, v20, 2, 1                  ; r&1
    v_lshl_add_u32 v24, v24, 2, v25           ; row
    v_lshlrev_b32 v24, 6, v24
    v_lshl_add_u32 v24, v22, 3, v24           ; + cc*8
    v_add_u32 v24, {s(S_T2)}, v24
    ''')
    if a.fl:
        a(f'''
        v_lshrrev_b32 v21, 3, v20
        v_and_b32 v23, 7, v20
        v_lshlrev_b32 v21, 14, v21
        v_lshl_add_u32 v21, v23, 4, v21
        s_and_b32 {s(S_T1)}, {s(S_I)}, 1
        s_mul_i32 {s(S_T1)}, {s(S_T1)}, {8192 - 64}
        s_add_u32 {s(S_T0)}, {s(S_T0)}, {s(S_T1)}
        ''')
    def src(p):
        a(f's_load_dwordx2 {s(SRD_T,2)}, s[0:1], {KA_WQ + 8*p}')
        a(f's_add_u32 {s(S_T3)}, {s(S_T0)}, s72')
        a('s_waitcnt lgkmcnt(0)')
    a(f's_and_b32 s70, {s(S_I)}, {1 if a.stag else 0}')
    a('s_lshl_b32 s72, s70, 20')
    a('s_lshl_b32 s73, s70, 21')
    a('s_lshl_b32 s70, s70, 13')
    a(f's_sub_u32 s71, {s(S_T2)}, s70')
    a(f's_add_u32 s70, {s(S_T2)}, s70')
    def issue(p, half):
        src(p)
        for n in range(16):
            a(f's_add_u32 m0, {"s70" if n < 8 else "s71"}, {half*16384 + n*1024}')
            a('s_nop 0')
            a(f'buffer_load_dwordx4 v21, {s(SRD_T,4)}, {s(S_T3)} offen lds')
            a(f's_add_u32 {s(S_T3)}, {s(S_T3)}, {16*8192}')
            if n == 7: a(f's_sub_u32 {s(S_T3)}, {s(S_T3)}, s73')
    def fetch(p, half):
        for b in range(4):
            for T in range(2):
                for t4 in range(4):
                    a(f'ds_read_b64_tr_b16 {v(pw(b, 2*p+T)+2*t4, 2)}, v24 offset:{half*16384 + b*4096 + (32*(t4>>1) + 2*(t4&1))*64 + T*32}')
            a('s_waitcnt lgkmcnt(0)')
    issue(0, 0); issue(1, 1)
    src(2)
    land = [pw(n // 4, 4) + 4 * (n & 3) for n in range(16)]
    for n in range(16):
        a(f'buffer_load_dwordx4 {v(land[n],4)}, v21, {s(SRD_T,4)}, {s(S_T3)} offen')
        a(f's_add_u32 {s(S_T3)}, {s(S_T3)}, {16*8192}')
        if n == 7: a(f's_sub_u32 {s(S_T3)}, {s(S_T3)}, s73')
    mem0_issue(a)
    a('s_barrier')
    a(f'v_add_u32 v56, s70, {v(PV_L16)}')
    a(f'v_add_u32 v26, s71, {v(PV_L16)}')
    a('s_waitcnt vmcnt(40)'); fetch(0, 0)
    a('s_waitcnt vmcnt(24)'); fetch(1, 1)
    a('s_waitcnt vmcnt(8)')
    for n in range(16):
        a(f'ds_write_b128 {"v56" if n < 8 else "v26"}, {v(land[n],4)} offset:{n*1024}')
    a('s_waitcnt lgkmcnt(0)')
    fetch(2, 0)
    a(f'''
    v_mov_b32 v21, 0x44444444
    v_mov_b32 v22, 0xeeeeeeee
    v_and_b32 v23, 2, v20
    v_cmp_eq_u32 vcc, 0, v23
    s_nop 1
    v_cndmask_b32 {v(PV_IDX)}, v22, v21, vcc
    ''')
    a(f'''
    v_bfe_u32 v21, v20, 2, 3                  ; t
    v_lshrrev_b32 v22, 5, v20                 ; isk
    v_mul_u32_u24 v23, 160, v21
    v_mul_u32_u24 v24, 1280, v22
    v_add_u32 v23, v23, v24
    v_and_b32 v24, 3, v20
    v_lshl_add_u32 v27, v24, 4, v23
    v_lshrrev_b32 v23, 1, v21
    v_and_b32 v21, 1, v21
    v_lshl_add_u32 v21, v23, 2, v21           ; row0
    v_xor_b32 v22, 1, v22
    v_lshl_add_u32 v21, v22, 1, v21           ; row
    v_bfe_u32 v22, v20, 1, 1                  ; gq&1
    v_lshl_add_u32 v21, v22, 4, v21
    v_xor_b32 v22, v20, v22
    v_and_b32 v22, 1, v22                     ; hs
    v_lshlrev_b32 v21, 4, v21
    v_lshl_add_u32 v25, v22, 3, v21
    v_lshrrev_b32 v21, 3, v20                 ; t
    v_mul_u32_u24 v23, 160, v21
    v_and_b32 v24, 7, v20
    v_lshl_add_u32 v28, v24, 4, v23
    v_lshrrev_b32 v23, 1, v21
    v_and_b32 v21, 1, v21
    v_lshl_add_u32 v21, v23, 2, v21
    v_and_b32 v22, 1, v20                     ; p
    v_lshl_add_u32 v21, v22, 1, v21
    v_bfe_u32 v22, v20, 2, 1                  ; gq>>1
    v_lshl_add_u32 v21, v22, 4, v21
    v_bfe_u32 v22, v20, 1, 1                  ; gq&1
    v_lshlrev_b32 v21, 4, v21
    v_lshl_add_u32 v26, v22, 3, v21
    s_lshl_b32 {s(S_T0)}, {s(S_J)}, 10
    s_lshl_b32 {s(S_T1)}, {s(S_W)}, 9
    s_add_u32 {s(S_T0)}, {s(S_T0)}, {s(S_T1)}
    s_lshl_b32 {s(S_T1)}, {s(S_W)}, 6
    s_lshl_b32 {s(S_T2)}, {s(S_J)}, 9
    s_add_u32 {s(S_T2)}, {s(S_T2)}, 4096
    s_cmp_ge_u32 {s(S_W)}, 2
    s_cselect_b32 {s(S_T0)}, {s(S_T2)}, {s(S_T0)}
    s_cselect_b32 {s(S_T1)}, 2560, {s(S_T1)}
    s_cselect_b64 vcc, -1, 0
    v_cndmask_b32 v22, v25, v26, vcc
    v_cndmask_b32 v23, v27, v28, vcc
    v_add_u32 {v(PV_QST)}, {s(S_T0)}, v22
    v_add_u32 {v(PV_R1R)}, {s(S_T1)}, v23
    v_lshrrev_b32 v21, 4, v20                 ; g
    v_and_b32 v22, 15, v20                    ; n
    v_mul_u32_u24 v23, 320, v21
    v_lshl_add_u32 v23, v22, 2, v23
    s_mul_i32 {s(S_T0)}, {s(S_W)}, 3840
    v_add_u32 {v(PV_R1W)}, {s(S_T0)}, v23
    v_add_u32 {v(PV_R1W1)}, 1280, {v(PV_R1W)}
    v_bfe_u32 v24, v20, 3, 1
    v_bfe_u32 v25, v20, 2, 1
    v_xor_b32 v25, v25, v24                   ; hs
    v_bfe_u32 v26, v20, 1, 1                  ; p
    v_lshl_add_u32 v25, v26, 1, v25
    v_lshl_add_u32 v25, v24, 2, v25
    v_and_b32 v26, 1, v20
    v_lshl_add_u32 v25, v25, 1, v26           ; pos(n)
    v_sub_u32 v25, v25, v22
    v_lshl_add_u32 v25, v25, 2, {v(PV_R1W)}
    v_add_u32 {v(PV_R1W2)}, 2560, v25
    v_lshlrev_b32 v23, 4, v22
    v_lshl_add_u32 {v(PV_SGR)}, v21, 12, v23
    s_lshl_b32 {s(S_T0)}, {s(S_W)}, 10
    s_add_u32 {s(S_T0)}, {s(S_T0)}, {LDS_SEG}
    v_add_u32 {v(PV_SGR)}, {s(S_T0)}, {v(PV_SGR)}
    v_lshrrev_b32 v24, 1, v21
    v_lshl_add_u32 v23, v24, 15, v23
    v_and_b32 v24, 1, v21
    v_lshl_add_u32 {v(PV_SPS)}, v24, 8, v23
    v_mov_b32 {v(PV_FLGR)}, {LDS_FLG}
    v_bfe_u32 v23, v20, 1, 2                  ; t>>1
    v_lshlrev_b32 v23, 6, v23
    v_and_b32 v25, 1, v20
    v_lshl_add_u32 v23, v25, 4, v23
    v_lshrrev_b32 v24, 5, v20
    v_lshl_add_u32 {v(PV_MST)}, v24, 5, v23
    v_and_b32 v23, 7, v20
    v_lshlrev_b32 v23, 7, v23
    v_bfe_u32 v24, v20, 3, 1
    v_lshl_add_u32 v23, v24, 17, v23
    v_lshrrev_b32 v24, 4, v20
    v_add_u32 v24, 1, v24
    v_cmp_le_u32 vcc, 3, v24
    s_nop 1
    v_cndmask_b32 v24, v24, 0, vcc
    v_lshl_add_u32 v23, v24, 24, v23
    s_lshl_b32 {s(S_T0)}, {s(S_G)}, 14
    s_lshl_b32 {s(S_T1)}, {s(S_C)}, 10
    s_add_u32 {s(S_T0)}, {s(S_T0)}, {s(S_T1)}
    s_add_u32 {s(S_T0)}, {s(S_T0)}, {WS_QS}
    v_add_u32 {v(PV_PFA)}, {s(S_T0)}, v23
    s_lshl_b32 {s(S_T0)}, {s(S_W)}, 2
    s_add_u32 {s(S_T0)}, {s(S_T0)}, {LDS_FLG}
    v_mov_b32 {v(PV_FLGW)}, {s(S_T0)}
    ''')
    sel_init(a, PV_SEL, 20, 21, 22)
    a('s_waitcnt vmcnt(0)')
    for i in range(16): a(f'v_mov_b32 {v(PV_M+i)}, {v(32+i)}')

def gate_addr(a, d, add, tg):
    a(f's_add_u32 {s(S_T4)}, {s(S_S)}, {add}')
    a(f's_min_u32 {s(S_T4)}, {s(S_T4)}, 63')
    a(f's_cmp_ge_u32 {s(S_T4)}, {a.s0}')
    a(f's_cselect_b32 {s(tg)}, 12, 8')
    a(f's_and_b32 {s(d)}, {s(S_T4)}, 4')
    a(f's_lshr_b32 {s(S_T4)}, {s(S_T4)}, 3')
    a(f's_lshl_b32 {s(S_T4)}, {s(S_T4)}, 8')
    a(f's_add_u32 {s(d)}, {s(d)}, {s(S_T4)}')
    a(f's_add_u32 {s(d)}, {s(d)}, {s(S_CQG)}')

def p_gate(a, k):
    l = a.uid('gate')
    a(f's_bitcmp1_b32 {s(S_OK)}, {k}')
    a(f's_cbranch_scc1 {l}_ok')
    gate_addr(a, S_RDG, 1 + k, S_T2)
    a.label(l)
    a(f'buffer_load_dword {v(PV_T)}, off, {s(SRD_WS,4)}, {s(S_RDG)} sc1')
    a('s_waitcnt vmcnt(0)')
    a(f'v_readfirstlane_b32 {s(S_T4)}, {v(PV_T)}')
    a(f's_cmp_ge_u32 {s(S_T4)}, {s(S_T2)}')
    a(f's_cbranch_scc1 {l}_set')
    a('s_sleep 8')
    a(f's_sub_u32 {s(S_TO)}, {s(S_TO)}, 1')
    a(f's_cbranch_scc0 {l}')
    a(f's_mov_b32 {s(S_TO)}, 0')
    a.label(l + '_set')
    a(f's_bitset1_b32 {s(S_OK)}, {k}')
    a.label(l + '_ok')

def dma_list(a, m, vl16, st, S_KG=S_KG, S_KL=S_KL, hd=0):
    base = (WS_KS, WS_VS, WS_QS)[m] + 4096 * hd
    o = []
    for kt in range(2):
        for u in range(4):
            pre = f's_add_u32 m0, {s(S_KL)}, {8192*m + 4096*kt + 24576*hd}\ns_add_u32 {s(st)}, {s(S_KG)}, {base + 131072*kt}\n' if u == 0 else ''
            o.append(pre + f'buffer_load_dwordx4 {v(vl16)}, {s(SRD_WS,4)}, {s(st)} offen offset:{1024*u} sc1{a.bnt} lds')
    return o

def reg_list(a, m, reg, st):
    base = (WS_KS, WS_VS, WS_QS)[m]
    o = []
    for kt in range(2):
        for u in range(4):
            pre = f's_add_u32 {s(st+kt)}, {s(S_KG)}, {base + 131072*kt}\n' if u == 0 else ''
            o.append(pre + f'buffer_load_dwordx4 {v(reg+(kt*4+u)*4,4)}, {v(AV_L16)}, {s(SRD_WS,4)}, {s(st+kt)} offen offset:{1024*u} sc1{a.bnt}')
    return o

def p_segreduce(a, part=3):
    if part & 1: p_segcalc(a)
    if part & 2: p_segstore(a)

def p_segcalc(a):
    S1 = 48
    for ul in range(2):
        for rt in range(2):
            a(f'ds_read_b128 {v(PV_M+4*(2*ul+rt),4)}, {v(PV_SGR)} offset:{512*ul+256*rt}')
    a(f'v_xor_b32 {v(PV_SGR)}, 0x4000, {v(PV_SGR)}')
    for ul in range(2):
        D = 40 + 4 * ul
        a(f's_waitcnt lgkmcnt({2-2*ul})')
        a(f'v_mfma_f32_16x16x32_bf16 {v(D,4)}, {v(PV_SEL,4)}, {v(PV_M+8*ul,4)}, 0')
        a(f'v_mfma_f32_16x16x32_bf16 {v(D,4)}, {v(S1,4)}, {v(PV_M+8*ul+4,4)}, {v(D,4)}')
    a('s_nop 7')
    a('v_cvt_pk_bf16_f32 v40, v40, v41')
    a('v_cvt_pk_bf16_f32 v41, v42, v43')
    a('v_cvt_pk_bf16_f32 v42, v44, v45')
    a('v_cvt_pk_bf16_f32 v43, v46, v47')
    a('s_nop 1')
    a('v_permlane16_swap_b32 v40, v42')
    a('v_permlane16_swap_b32 v41, v43')
    a('s_nop 1')
    a('v_min_u32 v40, -2, v40')

def p_segstore(a):
    a(f'buffer_store_dwordx4 v[40:43], {v(PV_SPS)}, {s(SRD_WS,4)}, {s(S_SP)} offen sc1{a.spnt}')
    a(f's_add_u32 {s(S_SP)}, {s(S_SP)}, 65536')

def p_loop(a, loc, prof, done):
    LH = a.uid('ploopH')
    for i in range(24): a(f'v_mov_b32 {v(PV_ACC+i)}, 0')
    a(f'v_mov_b32 {v(PV_FV)}, 0')
    a('s_nop 1')
    if a.s1:
        LL = a.uid('ploopL')
        a(f's_branch {LL}_nc')
        p_body(a, loc, Prof(prof), done, LL, True, LH, True)
    else: a(f's_branch {LH}_nc')
    p_body(a, loc, Prof(prof), done, LH, False, None, not a.s1)

def p_body(a, loc, pf, done, L, light, nxt, entry):
    Lrm = L + '_rm'; Lrp = L + '_rp'
    mld = [f'buffer_load_dwordx4 {v(PV_M+4*j,4)}, {v(PV_L16)}, {s(SRD_WS,4)}, {s(S_MLD)} offen offset:{1024*j} sc1' for j in range(4)]
    mreg = lambda b: [PV_M + 4 * b]
    def mm(check):
        if check:
            a('s_waitcnt vmcnt(3)')
            for x in chk(mreg(0), PV_T, f'{Lrm}_0'): a(x)
            a.label(f'{Lrm}_0ok')
            pf.stamp(a, 'b0ok')
        for b in range(4):
            ms = [f'v_smfmac_f32_16x16x64_bf16 {v(PV_ACC+4*t,4)}, {v(PV_M+4*b,4)}, {v(pw(b,t),8)}, {v(PV_IDX)}' for t in range(4 if a.qkf else 6)]
            if check and b < 3:
                c = chk(mreg(b + 1), PV_T, f'{Lrm}_{b+1}')
                ms = ms[:a.mck] + [f's_waitcnt vmcnt({2-b})'] + c[:-1] + ms[a.mck:] + c[-1:]
            if b == 3:
                ms = ms[:1] + [f'ds_write_b32 {v(PV_FLGW)}, {v(PV_FV)} offset:32'] + ms[1:]
            for x in ms: a(x)
            if check and b < 3: a.label(f'{Lrm}_{b+1}ok')
    if a.al: a.raw(f'.p2align {a.al}')
    for i in range(a.alo): a('s_nop 0')
    a.label(L)
    pf.stamp(a, 'top')
    for i in range(24): a(f'v_mov_b32 {v(PV_ACC+i)}, 0')
    if light and a.jit: p_gate(a, 0)
    if a.md: a(f's_sleep {a.md}')
    for x in mld: a(x)
    mm(True)
    if entry:
        a(f's_branch {L}_mmd')
        a.label(L + '_nc')
        if pf.on:
            a(f's_memtime {s(S_PROF, 2)}'); a(f's_memtime {s(S_PROF+2, 2)}')
        mm(False)
        a.label(L + '_mmd')
    pf.stamp(a, 'mmdone')
    def wr(t):
        A = PV_ACC + 4 * t
        a(f'v_add_f32 {v(A)}, {v(A)}, {v(A+2)}'); a(f'v_add_f32 {v(A+1)}, {v(A+1)}, {v(A+3)}')
        a(f'ds_write2_b32 {v((PV_R1W, PV_R1W1, PV_R1W2)[t>>1])}, {v(A)}, {v(A+1)} offset0:{16*(t&1)} offset1:{16*(t&1)+40}')
    R = 32
    def add4(d, x):
        for e in range(4): a(f'v_add_f32 {v(d+e)}, {v(d+e)}, {v(x+e)}')
    def reduce(fill=()):
        for h in range(4):
            a(f'ds_read_b128 {v(R+4*h,4)}, {v(PV_R1R)} offset:{LDS_RED1+3840*h}')
        for x in fill: a(x)
        a('s_waitcnt lgkmcnt(2)')
        add4(R, R + 4)
        a('s_waitcnt lgkmcnt(0)')
        add4(R + 8, R + 12)
        add4(R, R + 8)
        a(f'v_cvt_pk_bf16_f32 v56, {v(R)}, {v(R+1)}')
        a(f'v_cvt_pk_bf16_f32 v57, {v(R+2)}, {v(R+3)}')
        a('v_min_u32 v56, -2, v56')
        a(f'buffer_store_dwordx2 v[56:57], {v(PV_QST)}, {s(SRD_WS,4)}, {s(S_QST)} offen{loc}')
    def qreset():
        ring(a, S_QRS, 2, 18, S_QO)
        a(f'buffer_store_dwordx2 {v(PV_NEG,2)}, {v(PV_QST)}, {s(SRD_WS,4)}, {s(S_QRS)} offen{loc}')
    if a.qkf:
        vm = [f'v_smfmac_f32_16x16x64_bf16 {v(PV_ACC+4*t,4)}, {v(PV_M+4*b,4)}, {v(pw(b,t),8)}, {v(PV_IDX)}' for b in range(4) for t in (4, 5)]
        a(f's_cmp_ge_u32 {s(S_W)}, 2')
        for x in vm[:2]: a(x)
        a('s_nop 1')
        for t in range(4): wr(t)
        for x in vm[2:4]: a(x)
        a('s_waitcnt lgkmcnt(0)')
        pf.stamp(a, 'b1rdy', -2)
        a('s_barrier')
        pf.stamp(a, 'b1')
        a(f's_cbranch_scc1 {L}_sk0')
        reduce(vm[4:])
        a(f's_branch {L}_sk0b')
        a.label(L + '_sk0')
        for x in vm[4:]: a(x)
        a('s_nop 6')
        a.label(L + '_sk0b')
        a(f's_cmp_lg_u32 {s(S_W)}, 2')
        wr(4); wr(5)
        a('s_waitcnt lgkmcnt(0)')
        a('s_barrier')
        a(f's_cbranch_scc1 {L}_sk2')
        reduce()
        a.label(L + '_sk2')
        a(f's_cmp_eq_u32 {s(S_W)}, 3')
        a(f's_cbranch_scc1 {L}_sk1')
        qreset()
    else:
        a(f's_cmp_eq_u32 {s(S_W)}, 3')
        a('s_nop 1')
        for t in range(6): wr(t)
        a('s_waitcnt lgkmcnt(0)')
        pf.stamp(a, 'b1rdy', -2)
        a('s_barrier')
        pf.stamp(a, 'b1')
        a(f's_cbranch_scc1 {L}_sk1')
        reduce()
        qreset()
    a.label(L + '_sk1')
    pf.stamp(a, 'qpub', -2)
    a('s_setprio 0')
    ring(a, S_MRS, 3, a.msh, S_MSO)
    mex = f's_mov_b64 exec, {s(S_MEX,2)}'
    for d in range(4): a(f'v_mov_b32 {v(44+d)}, -1')
    a(mex)
    a(f'buffer_store_dwordx4 v[44:47], {v(PV_MST)}, {s(SRD_WS,4)}, {s(S_MRS)} offen{loc}')
    a('s_mov_b64 exec, -1')
    for d in range(4): a(f'v_mov_b32_dpp {v(48+d)}, {v(PV_SEL+d)} row_ror:8 row_mask:0xf bank_mask:0xf')
    ring(a, S_PLD, 0, PSLOT, S_PO)
    ring(a, S_MST, 1, a.msh, S_MSO)
    ring(a, S_MLD, 1, a.msh, S_MO)
    ring(a, S_QST, 1, 18, S_QO)
    def seg(part):
        if 's' in a.abl: return
        Lh = a.uid('pnoseg')
        a(f's_cmp_eq_u32 {s(S_SP)}, {s(S_SP0)}')
        a(f's_cbranch_scc1 {Lh}')
        p_segreduce(a, part)
        a.label(Lh)
    def oflush(part):
        l = a.uid('ofl')
        a(f's_cmp_eq_u32 {s(S_OF)}, 0')
        a(f's_cbranch_scc1 {l}')
        if part == 1:
            a(f's_lshl_b32 {s(S_T0)}, {s(S_W)}, 10')
            a(f'v_add_u32 v39, {s(S_T0)}, {v(PV_L16)}')
            a(f'ds_read_b128 v[40:43], v39 offset:{LDS_SEG}')
        else:
            a(f's_lshl_b32 {s(S_T0)}, {s(S_S)}, 18')
            a(f's_add_u32 {s(S_T0)}, {s(S_T0)}, {s(S_OB)}')
            if 'o' not in a.abl: a(f'buffer_store_dwordx4 v[40:43], {v(PV_L16)}, {s(SRD_WS,4)}, {s(S_T0)} offen sc1')
            a(f's_mov_b32 {s(S_OF)}, 0')
        a.label(l)
    unit = a.s0 < a.s1
    if unit: oflush(1)
    if light:
        a(f"""
        s_cmp_ge_u32 {s(S_S)}, {a.s0}
        s_cbranch_scc1 {L}_nx
        v_mov_b32 v40, {v(PV_QST)}
        v_mov_b32 v42, v56
        v_mov_b32 v43, v57
        s_cmp_lg_u32 {s(S_W)}, 2
        s_cbranch_scc1 {L}_nx
        v_and_b32 v40, 0x60, {v(PV_L16)}
        v_lshlrev_b32 v40, 2, v40
        v_lshrrev_b32 v41, 3, {v(PV_L16)}
        v_and_b32 v41, 0x70, v41
        v_or_b32 v40, v40, v41
        v_bfe_u32 v41, {v(PV_L16)}, 4, 1
        v_lshl_or_b32 v40, v41, 3, v40
        s_lshl_b32 {s(S_T0)}, {s(S_J)}, 9
        s_add_u32 {s(S_T0)}, {s(S_T0)}, 4096
        v_add_u32 v40, {s(S_T0)}, v40
        s_mov_b32 vcc_lo, 0x55555555
        s_mov_b32 vcc_hi, 0x55555555
        v_cndmask_b32_dpp v42, v57, v56, vcc quad_perm:[1,0,3,2] row_mask:0xf bank_mask:0xf
        s_not_b64 vcc, vcc
        v_cndmask_b32_dpp v43, v56, v57, vcc quad_perm:[1,0,3,2] row_mask:0xf bank_mask:0xf
        """)
        a.label(L + '_nx')
    else:
        a(f's_cmp_eq_u32 {s(S_S)}, {a.last}')
        a(f's_cbranch_scc1 {L}_tail')
        seg(1)
    if not (light and a.jit): p_gate(a, 1 if light else 0)
    a(f'v_readfirstlane_b32 {s(S_T4)}, {v(PV_RDY)}')
    a(f's_lshr_b32 {s(S_OK)}, {s(S_OK)}, 1')
    a(f's_cmp_ge_u32 {s(S_T4)}, {s(S_RTG)}')
    a(f's_cselect_b32 {s(S_T4)}, 2, 0')
    a(f's_or_b32 {s(S_OK)}, {s(S_OK)}, {s(S_T4)}')
    a(f's_cmp_eq_u32 {s(S_W)}, 3')
    a(f's_cselect_b32 {s(S_T3)}, {s(S_T4)}, 0')
    gate_addr(a, S_RDY, 4, S_RTG)
    dl = []
    for m, ch in ((0, 'k'), (1, 'v'))[:1 if light else 2]:
        if ch not in a.abl and not (light and a.lr & 2): dl += dma_list(a, m, PV_L16, S_T0)
    nd1 = a.ndl if light else a.nd1
    a(f's_setprio {a.fprio}')
    flag_wait(a, L + '_fs', PV_FLGR, 0, 32, S_T1, sl=a.fsl)
    pf.stamp(a, 'flag')
    a(f's_setprio {a.dprio}')
    for x in dl[:nd1]: a(x)
    if light and a.ofd: a(f's_sleep {a.ofd}')
    if 't' not in a.abl:
        a(f's_cmp_eq_u32 {s(S_T3)}, 0')
        a(f's_cbranch_scc1 {L}_nt')
        if light:
            a(f's_cmp_ge_u32 {s(S_S)}, {max(a.s0 - 3, 0)}')
            a('s_cselect_b32 exec_hi, 0xffff, 0')
        else: a('s_mov_b32 exec_hi, 0xffff')
        a(f'buffer_load_dword {v(PV_RDY)}, {v(PV_PFA)}, {s(SRD_WS,4)}, {s(S_TCH)} offen sc1')
        a('s_mov_b32 exec_hi, -1')
        if a.ctch:
            for n, (st, lab, nl) in enumerate(((a.s1 - 2, nxt, 18), (a.s1 - 2, 'ct_aH', 30)) if light else ((a.last - 2, 'ct_tail', 2), (a.last - 2, L + '_tail', 4))):
                a(f's_cmp_lg_u32 {s(S_S)}, {st}')
                a(f's_cbranch_scc1 {L}_nt')
                vcode_touch(a, lab, nl, 62, PV_L16, 38, PV_RDY)
        a.label(L + '_nt')
    if unit: oflush(2)
    if light:
        if unit:
            a(f's_lshr_b32 {s(S_T0)}, {s(S_C)}, 3')
            a(f's_xor_b32 {s(S_T0)}, {s(S_T0)}, {s(S_S)}')
            a(f's_andn2_b32 {s(S_OF)}, 1, {s(S_T0)}')
            a(f's_cmp_ge_u32 {s(S_S)}, {a.s0}')
            a(f's_cselect_b32 {s(S_OF)}, {s(S_OF)}, 0')
            a(f's_cbranch_scc1 {L}_nx2')
        a(f's_cmp_eq_u32 {s(S_W)}, 3')
        a(f's_cbranch_scc1 {L}_nx2')
        if 'x' not in a.abl: a(f'buffer_store_dwordx2 v[42:43], v40, {s(SRD_WS,4)}, {s(S_KMX)} offen sc1')
        a.label(L + '_nx2')
        a(f's_add_u32 {s(S_KMX)}, {s(S_KMX)}, 262144')
    else: seg(2)
    pf.stamp(a, 'b2rdy')
    a('s_barrier')
    pf.stamp(a, 'b2')
    a(f'buffer_load_dword {v(PV_RDY)}, off, {s(SRD_WS,4)}, {s(S_RDY)} sc1')
    if dl[nd1:]:
        if a.d2: a(f's_sleep {a.d2}')
        for x in dl[nd1:]: a(x)
    a(f's_add_u32 {s(S_S)}, {s(S_S)}, 1')
    a(f'v_mov_b32 {v(PV_FV)}, {s(S_S)}')
    a(f's_add_u32 {s(S_KG)}, {s(S_KG)}, 262144')
    a(f's_add_u32 {s(S_TCH)}, {s(S_TCH)}, 262144')
    if not light: a(f's_mov_b32 {s(S_SP0)}, 0')
    a('s_setprio 3')
    cd = a.cdl if light else a.cd
    if cd: a(f's_sleep {cd}')
    pf.stamp(a, 'poll')
    a.label(L + '_pagain')
    for i in range(2): a(f'buffer_load_dwordx4 {v(PV_M+4*i,4)}, {v(PV_L16)}, {s(SRD_WS,4)}, {s(S_PLD)} offen offset:{1024*i} sc1')
    D = 32
    a('s_waitcnt vmcnt(1)')
    a(f'v_mfma_f32_16x16x32_bf16 {v(D,4)}, {v(PV_SEL,4)}, {v(PV_M,4)}, 0')
    a('s_waitcnt vmcnt(0)')
    pf.stamp(a, 'p1')
    a(f'v_mfma_f32_16x16x32_bf16 {v(D,4)}, v[48:51], {v(PV_M+4,4)}, {v(D,4)}')
    for x in chk([PV_M, PV_M + 4], PV_T, Lrp): a(x)
    a.label(L + '_pgo')
    if light: a(f's_cmp_lt_u32 {s(S_S)}, {a.s1}')
    a(f's_nop {3 if light else 4}')
    for e in range(4): a(f'v_add_f32_dpp {v(D+4+e)}, {v(D+e)}, {v(D+e)} row_ror:8 row_mask:0xf bank_mask:0xf')
    a(f'v_cvt_pk_bf16_f32 v52, {v(D+4)}, {v(D+5)}')
    a(f'v_cvt_pk_bf16_f32 v53, {v(D+6)}, {v(D+7)}')
    a('s_nop 0')
    a('v_permlane16_swap_b32 v52, v54')
    a('v_permlane16_swap_b32 v53, v55')
    a(mex)
    a('v_min_u32 v52, -2, v52')
    a(f'buffer_store_dwordx4 v[52:55], {v(PV_MST)}, {s(SRD_WS,4)}, {s(S_MST)} offen{loc}')
    a('s_mov_b64 exec, -1')
    a(f'ds_write_b32 {v(PV_FLGW)}, {v(PV_FV)} offset:16')
    pf.stamp(a, 'mpub')
    if pf.on:
        a(f's_sub_u32 {s(S_S)}, {s(S_S)}, 1')
        pf.flush(a, 56, 'P')
        a(f's_add_u32 {s(S_S)}, {s(S_S)}, 1')
        if light: a(f's_cmp_lt_u32 {s(S_S)}, {a.s1}')
    if light:
        a(f's_cbranch_scc1 {L}')
        a(f's_branch {nxt}')
    else: a(f's_branch {L}')
    for b in range(4):
        spin_block(a, f'{Lrm}_{b}', mld[b:], mreg(b), PV_T, f'{Lrm}_{b}ok', f'{Lrm}_{b}ok')
    a.label(Lrp)
    if a.rsleep: a(f's_sleep {a.rsleep}')
    a(f's_sub_u32 {s(S_TO)}, {s(S_TO)}, 1')
    a(f's_cbranch_scc0 {L}_pagain')
    a(f's_mov_b32 {s(S_TO)}, 0')
    a(f's_branch {L}_pgo')
    if not light:
        a.label(L + '_tail')
        p_segreduce(a)
        a('s_barrier')
        p_segreduce(a)
        a(f's_branch {done}')

AV_L16, AV_PST, AV_MX, AV_T = 0, 1, 2, 3
AV_ONE = 4
AV_HALF = 8
AV_IDX = 166
AV_FLGR = 167
AV_VMW, AV_TRV, AV_TRM = 180, 181, 182
S_QM = 56
AV_S = 12
AV_O = 24
AV_VWM = 40
AV_Y, AV_X = 48, 64
AV_VWS = 80
AV_KS, AV_TB = 96, 128
AV_NEG, AV_R2W, AV_R2R, AV_SGW, AV_LB, AV_FLGW, AV_FV = 176, 160, 161, 162, 163, 164, 165
AV_PK = 168
AV_SEL = 184
AV_FT = 188
AV_WO = 192
def wo(u, ct): return AV_WO + (ct * 4 + u) * 4
def xk(u): return AV_Y + 4 * u

def tr_addr(a, vd, vl, rowbytes, T, hh, t1, t2):
    sh = rowbytes.bit_length() - 1
    a(f'''
    v_lshrrev_b32 {v(t1)}, 4, {v(vl)}
    v_and_b32 {v(t2)}, 1, {v(t1)}
    v_xor_b32 {v(t2)}, {hh}, {v(t2)}
    v_lshlrev_b32 {v(t2)}, 2, {v(t2)}
    v_lshl_add_u32 {v(t2)}, {v(t1)}, 3, {v(t2)}
    v_bfe_u32 {v(t1)}, {v(vl)}, 2, 2
    v_add_u32 {v(t2)}, {v(t2)}, {v(t1)}
    v_lshlrev_b32 {v(t2)}, {sh}, {v(t2)}
    v_and_b32 {v(t1)}, 3, {v(vl)}
    v_lshl_add_u32 {v(t2)}, {v(t1)}, 4, {v(t2)}
    v_and_b32 {v(t1)}, 1, {v(t1)}
    v_xor_b32 {v(t1)}, {T}, {v(t1)}
    v_lshl_add_u32 {v(vd)}, {v(t1)}, 3, {v(t2)}
    ''')

def vw_list(AV_TB):
    m = []
    for u in range(4):
        for kt in range(2):
            for ct in range(4):
                d = AV_Y + (kt * 4 + ct) * 4
                m.append(f'v_mfma_f32_16x16x32_bf16 {v(d,4)}, {v(AV_TB+(kt*4+u)*4,4)}, {v(wo(u,ct),4)}, {"0" if u==0 else v(d,4)}')
    return m
def vw_pack():
    o = []
    for ct in range(4):
        for kt in range(2):
            d = AV_Y + (kt * 4 + ct) * 4
            o.append(f'v_cvt_pk_bf16_f32 {v(AV_VWS+4*ct+2*kt)}, {v(d)}, {v(d+1)}')
            o.append(f'v_cvt_pk_bf16_f32 {v(AV_VWS+4*ct+2*kt+1)}, {v(d+2)}, {v(d+3)}')
    return o

def a_prologue(a):
    a(f'''
    v_and_b32 v20, 63, v0
    v_lshlrev_b32 {v(AV_L16)}, 4, v20
    s_lshl_b32 {s(S_T0)}, {s(S_H)}, 18
    s_lshl_b32 {s(S_T1)}, {s(S_C)}, 7
    s_add_u32 {s(S_T0)}, {s(S_T0)}, {s(S_T1)}
    s_lshl_b32 {s(S_T2)}, {s(S_T4)}, 13
    s_add_u32 {s(S_T2)}, {s(S_T2)}, 131072
    s_load_dwordx2 {s(SRD_T,2)}, s[0:1], {KA_WO}
    s_mov_b32 {s(SRD_T+2)}, {8*MB}
    s_mov_b32 {s(SRD_T+3)}, {SRD3}
    v_lshrrev_b32 v21, 3, v20
    v_and_b32 v22, 7, v20
    v_lshlrev_b32 v21, 11, v21
    v_lshl_add_u32 v21, v22, 4, v21
    ''')
    for T in range(2):
        for hh in range(2):
            tr_addr(a, 24 + T * 2 + hh, 20, 128, T, hh, 28, 29)
            a(f'v_add_u32 {v(24+T*2+hh)}, {s(S_T2)}, {v(24+T*2+hh)}')
    a('s_waitcnt lgkmcnt(0)')
    for n in range(8):
        a(f's_add_u32 m0, {s(S_T2)}, {n*1024}')
        a('s_nop 0')
        a(f'buffer_load_dwordx4 v21, {s(SRD_T,4)}, {s(S_T0)} offen lds')
        a(f's_add_u32 {s(S_T0)}, {s(S_T0)}, {8*2048}')
    for n in range(8):
        a(f'buffer_load_dwordx4 {v(AV_KS+4*n,4)}, v21, {s(SRD_T,4)}, {s(S_T0)} offen')
        a(f's_add_u32 {s(S_T0)}, {s(S_T0)}, {8*2048}')

def a_prologue2(a):
    a(f's_lshl_b32 {s(S_T2)}, {s(S_T4)}, 13')
    a(f's_add_u32 {s(S_T2)}, {s(S_T2)}, 131072')
    a(f'v_add_u32 v30, {s(S_T2)}, {v(AV_L16)}')
    for half in range(2):
        a(f's_waitcnt vmcnt({8 - 8*half})')
        if half:
            for n in range(8): a(f'ds_write_b128 v30, {v(AV_KS+4*n,4)} offset:{n*1024}')
            a('s_waitcnt lgkmcnt(0)')
        for uu in range(2):
            for p in range(2):
                for T in range(2):
                    for hh in range(2):
                        a(f'ds_read_b64_tr_b16 {v(wo(2*half+uu, 2*p+T)+2*hh,2)}, {v(24+T*2+hh)} offset:{uu*4096+p*64}')
            a('s_waitcnt lgkmcnt(0)')
    a(f'''
    v_lshrrev_b32 v21, 4, v20
    v_and_b32 v22, 2, v20
    v_cmp_eq_u32 {s(S_QM,2)}, 2, v22
    v_and_b32 v23, 15, v20
    v_lshlrev_b32 v21, 2, v21
    v_mov_b32 v8, 0x44444444
    v_mov_b32 v9, 0xeeeeeeee
    v_cndmask_b32 {v(AV_IDX)}, v8, v9, {s(S_QM,2)}
    v_mov_b32 v8, 0x3f803f80
    v_mov_b32 v9, 0
    v_mov_b32 v10, 0
    v_mov_b32 v11, 0
    v_mov_b32 v4, 0x3f803f80
    v_mov_b32 v5, 0x3f803f80
    v_mov_b32 v6, 0x3f803f80
    v_mov_b32 v7, 0x3f803f80
    s_mov_b32 {s(S_CST)}, 0x3e0293ee
    s_lshl_b32 {s(S_PRG)}, {s(S_I)}, 2
    s_add_u32 {s(S_PRG)}, {s(S_PRG)}, {s(S_T4)}
    s_lshl_b32 {s(S_CS)}, {s(S_X)}, 7
    s_add_u32 {s(S_CS)}, {s(S_CS)}, {F.CS_TAB}
    v_add_u32 {v(AV_LB)}, {s(S_KL)}, {v(AV_L16)}
    s_lshl_b32 {s(S_T0)}, {s(S_T4)}, 2
    s_add_u32 {s(S_T0)}, {s(S_T0)}, {LDS_FLG}
    v_mov_b32 {v(AV_FLGW)}, {s(S_T0)}
    v_mov_b32 {v(AV_FLGR)}, {LDS_FLG}
    ''')
    sel_init(a, AV_SEL, 20, 24, 25)
    a(f'''
    v_lshrrev_b32 v24, 4, v20                 ; g
    v_bfe_u32 v25, v20, 2, 2
    v_and_b32 v26, 1, v20
    v_lshl_add_u32 v26, v25, 1, v26           ; t
    v_lshlrev_b32 v26, 4, v26
    v_lshl_add_u32 v26, v24, 8, v26
    v_bfe_u32 v27, v20, 1, 1
    v_lshl_add_u32 v26, v27, 2, v26
    s_add_u32 {s(S_T0)}, {s(S_KL)}, 20480
    v_add_u32 {v(AV_VMW)}, {s(S_T0)}, v26
    v_and_b32 v26, 3, v20                     ; cc
    v_lshl_add_u32 v27, v24, 2, v25
    v_lshl_add_u32 v27, v26, 4, v27
    v_lshlrev_b32 v27, 4, v27
    v_add_u32 {v(AV_TRV)}, {s(S_KL)}, v27
    v_and_b32 v25, 1, v25
    v_lshl_add_u32 v25, v24, 1, v25
    v_lshl_add_u32 v25, v26, 3, v25
    v_lshlrev_b32 v25, 4, v25
    v_add_u32 {v(AV_TRM)}, {s(S_T0)}, v25
    s_bfe_u32 {s(S_T0)}, {s(S_C)}, 0x20001
    s_lshr_b32 {s(S_DW)}, {s(S_C)}, 3
    s_cmp_eq_u32 {s(S_T0)}, {s(S_T4)}
    s_cselect_b32 {s(S_DW)}, {2 if 'u' in a.abl else s(S_DW)}, 2
    s_and_b32 {s(S_QT)}, {s(S_C)}, 1
    s_lshl_b32 {s(S_QT)}, {s(S_QT)}, 17
    s_mov_b32 {s(S_U2)}, 0
    ''')
    for i in range(4):
        a(f'v_add_u32 v24, {i}, v21')
        a(f'v_cmp_gt_u32 {s(S_M0+2*i,2)}, v24, v23')

def a_static(a):
    a(f"""
    v_and_b32 v20, 63, v0
    v_lshrrev_b32 v21, 4, v20                 ; g
    v_bfe_u32 v22, v20, 1, 1
    v_xor_b32 v22, 1, v22                     ; p = !(n&2)
    v_lshl_add_u32 v23, v22, 2, v21           ; uu
    v_bfe_u32 v22, v20, 2, 2
    v_and_b32 v24, 1, v20
    v_lshl_add_u32 v22, v22, 1, v24           ; t
    v_lshl_add_u32 v23, v23, 3, v22
    v_and_b32 v22, 7, v20
    v_lshlrev_b32 v23, 4, v23
    s_lshl_b32 {s(S_T0)}, {s(S_T4)}, 10
    s_add_u32 {s(S_T0)}, {s(S_T0)}, {LDS_RED2}
    v_add_u32 {v(AV_R2W)}, {s(S_T0)}, v23
    v_and_b32 v24, 15, v20
    v_lshlrev_b32 v24, 4, v24                 ; n*16
    v_lshl_add_u32 v23, v21, 10, v24
    s_lshl_b32 {s(S_T0)}, {s(S_T4)}, 8
    s_add_u32 {s(S_T0)}, {s(S_T0)}, {LDS_RED2}
    v_add_u32 {v(AV_R2R)}, {s(S_T0)}, v23
    v_lshl_add_u32 v23, v21, 9, v24
    s_lshl_b32 {s(S_T0)}, {s(S_T4)}, 12
    s_add_u32 {s(S_T0)}, {s(S_T0)}, {LDS_SEG}
    v_add_u32 {v(AV_SGW)}, {s(S_T0)}, v23
    v_bfe_u32 v23, v20, 3, 1
    v_lshlrev_b32 v23, 10, v23
    v_lshl_add_u32 v23, v22, 4, v23
    v_mov_b32 {v(AV_PST)}, v23
    s_lshl_b32 {s(S_PO)}, {s(S_C)}, 14
    s_lshl_b32 {s(S_T0)}, {s(S_T4)}, 11
    s_add_u32 {s(S_PO)}, {s(S_PO)}, {s(S_T0)}
    s_lshl_b32 {s(S_T0)}, {s(S_G)}, 7
    s_add_u32 {s(S_PO)}, {s(S_PO)}, {s(S_T0)}
    s_add_u32 {s(S_PO)}, {s(S_PO)}, {WS_PART}
    """)
    for i in range(4): a(f'v_mov_b32 {v(AV_NEG+i)}, -1')

def exp_seq(r):
    seq = []
    n = len(r)
    seq.append(f'v_max3_f32 {v(AV_MX)}, {v(r[0])}, {v(r[1])}, {v(r[2])}')
    seq.append(f'v_max3_f32 {v(AV_T)}, {v(r[3])}, {v(r[4])}, {v(r[5])}')
    rr = r[6:]; k = 0
    while len(rr) >= 2:
        d = (AV_MX, AV_T)[k & 1]; k += 1
        seq.append(f'v_max3_f32 {v(d)}, {v(d)}, {v(rr[0])}, {v(rr[1])}'); rr = rr[2:]
    seq.append(f'v_max_f32 {v(AV_MX)}, {v(AV_MX)}, {v(AV_T)}')
    seq += red_gq(AV_MX, AV_T, 'v_max_f32')
    seq.append(f'v_mul_f32 {v(AV_MX)}, {s(S_CST)}, {v(AV_MX)}')
    fm = [f'v_fma_f32 {v(x)}, {v(x)}, {s(S_CST)}, -{v(AV_MX)}' for x in r]
    ex = [f'v_exp_f32 {v(x)}, {v(x)}' for x in r]
    seq += fm[:2]
    for i in range(n):
        if i + 2 < n: seq.append(fm[i + 2])
        seq.append(ex[i])
    return seq

def packP(S, t1zero=False):
    T0, T1, TM = S, S + 4, S + 8
    o = [f'v_cvt_pk_bf16_f32 {v(T0)}, {v(T0)}, {v(T0+1)}', f'v_cvt_pk_bf16_f32 {v(T0+1)}, {v(T0+2)}, {v(T0+3)}']
    if t1zero: o += [f'v_mov_b32 {v(T0+2)}, 0', f'v_mov_b32 {v(T0+3)}, 0']
    else: o += [f'v_cvt_pk_bf16_f32 {v(T0+2)}, {v(T1)}, {v(T1+1)}', f'v_cvt_pk_bf16_f32 {v(T0+3)}, {v(T1+2)}, {v(T1+3)}']
    o += [f'v_cvt_pk_bf16_f32 {v(TM)}, {v(TM)}, {v(TM+1)}', f'v_mov_b32 {v(TM+2)}, 0',
          f'v_mov_b32 {v(TM+1)}, {v(TM)}', f'v_mov_b32 {v(TM+3)}, 0']
    return o

def pv_seq(S, qt, rc):
    SM = S + 4
    o = [f'v_mfma_f32_16x16x32_bf16 {v(SM,4)}, {v(AV_ONE,4)}, {v(S,4)}, 0',
         f'v_mfma_f32_16x16x32_bf16 {v(SM,4)}, {v(AV_HALF,4)}, {v(S+8,4)}, {v(SM,4)}']
    for ct in range(4):
        o.append(f'v_mfma_f32_16x16x32_bf16 {v(AV_O+4*ct,4)}, {v(AV_VWS+4*ct,4)}, {v(S,4)}, 0')
        o.append(f'v_mfma_f32_16x16x32_bf16 {v(AV_O+4*ct,4)}, {v(AV_VWM+2*ct,4)}, {v(S+8,4)}, {v(AV_O+4*ct,4)}')
    o.append(f'v_rcp_f32 {v(rc)}, {v(SM)}')
    o.append('s_nop 0')
    P = AV_PK
    for ct in range(4):
        for i in range(4): o.append(f'v_mul_f32 {v(AV_O+4*ct+i)}, {v(AV_O+4*ct+i)}, {v(rc)}')
        o.append(f'v_cvt_pk_bf16_f32 {v(P+2*ct)}, {v(AV_O+4*ct)}, {v(AV_O+4*ct+1)}')
        o.append(f'v_cvt_pk_bf16_f32 {v(P+2*ct+1)}, {v(AV_O+4*ct+2)}, {v(AV_O+4*ct+3)}')
    for p in range(2): o.append(f'ds_write_b128 {v(AV_SGW)}, {v(P+4*p,4)} offset:{2048*p+256*qt}')
    return o

def a_loop(a, prof, done):
    LH = a.uid('aloopH')
    if a.s1 and a.swp:
        assert a.s1 % 2 == 0 and a.lr == 3 and a.vpos and not a.kpos
        L0, L1 = a.uid('aloopL'), a.uid('aloopM')
        a_body(a, Prof(prof), done, L0, True, None, L1)
        a_body(a, Prof(prof), done, L1, True, LH, L0, 1)
    elif a.s1: a_body(a, Prof(prof), done, a.uid('aloopL'), True, LH)
    a.label('ct_aH')
    a_body(a, Prof(prof), done, LH, False, None)

def a_body(a, pf, done, L, light, nxt, other=None, ph=0):
    Lr = L + '_rq'
    AV_KS, AV_TB = (128, 96) if ph else (96, 128)
    swp = other is not None
    SA = AV_S; SB = AV_X + 4
    if a.al: a.raw(f'.p2align {a.al}')
    for i in range(a.aloa): a('s_nop 0')
    a.label(L)
    pf.stamp(a, 'top')
    ring(a, S_QLD, 0, 18, S_QO)
    a(f's_add_u32 {s(S_QLD2)}, {s(S_QLD)}, 4096')
    ring(a, S_PSTC, 0, PSLOT, S_PO)
    ring(a, S_PRS, 2, PSLOT, S_PO)
    a(f'v_mov_b32 {v(AV_FV)}, {s(S_S)}')
    vw = vw_list(AV_TB)
    kr = [f'ds_read_b128 {v(AV_KS+4*i,4)}, {v(AV_LB)} offset:{1024*i}' for i in range(8)]
    vr = [f'ds_read_b128 {v(AV_TB+4*(kt*4+u),4)}, {v(AV_LB)} offset:{8192+1024*(kt*4+u)}' for u in range(4) for kt in range(2)]
    zo = [f'v_mov_b32 {v(AV_O+i)}, 0' for i in range(16)]
    unit = light and a.s0 < a.s1
    def part2(tag, AV_TB=AV_TB):
        a(f's_cmp_eq_u32 {s(S_U2)}, 0')
        a(f's_cbranch_scc1 {L}_{tag}')
        a(f's_mov_b32 {s(S_U2)}, 0')
        for p in range(4):
            for Tt in range(2):
                t = 2 * p + Tt
                for kt in range(2):
                    a(f'ds_read_b64_tr_b16 {v(AV_TB+4*t+2*kt,2)}, {v(AV_TRV)} offset:{4096*kt + 1024*p + 8*Tt}')
                a(f'ds_read_b64_tr_b16 {v(AV_X+2*t,2)}, {v(AV_TRM)} offset:{512*p + 8*Tt}')
        a(f'v_mov_b32 {v(AV_FT)}, 0xff61b1e6')
        a(f's_cmp_eq_u32 {s(S_QT)}, 0')
        for i in range(4):
            a(f's_cselect_b64 vcc, {s(S_M0+2*i,2)}, 0')
            a(f'v_cndmask_b32 {v(SA+i)}, {v(SA+i)}, {v(AV_FT)}, vcc')
            a(f's_cselect_b64 vcc, -1, {s(S_M0+2*i,2)}')
            a(f'v_cndmask_b32 {v(SA+4+i)}, {v(SA+4+i)}, {v(AV_FT)}, vcc')
        for x in exp_seq(list(range(SA, SA + 10))): a(x)
        pk = packP(SA); pk[6] = f'v_mov_b32 {v(SA+9)}, 0'
        for x in pk: a(x)
        a('s_waitcnt lgkmcnt(0)')
        a('s_nop 0')
        SM = SA + 4
        a(f'v_mfma_f32_16x16x32_bf16 {v(SM,4)}, {v(AV_ONE,4)}, {v(SA,4)}, 0')
        a(f'v_mfma_f32_16x16x32_bf16 {v(SM,4)}, {v(AV_ONE,4)}, {v(SA+8,4)}, {v(SM,4)}')
        oa = lambda t: (AV_O if t < 4 else AV_Y - 16) + 4 * t
        for t in range(8):
            a(f'v_mfma_f32_16x16x32_bf16 {v(oa(t),4)}, {v(AV_TB+4*t,4)}, {v(SA,4)}, 0')
            a(f'v_mfma_f32_16x16x32_bf16 {v(oa(t),4)}, {v(AV_X+2*t,4)}, {v(SA+8,4)}, {v(oa(t),4)}')
        a(f'v_rcp_f32 {v(AV_T)}, {v(SM)}')
        a('s_nop 0')
        for p in range(4):
            o = oa(2 * p)
            for i in range(8): a(f'v_mul_f32 {v(o+i)}, {v(o+i)}, {v(AV_T)}')
            for d in range(4): a(f'v_cvt_pk_bf16_f32 {v(o+d)}, {v(o+2*d)}, {v(o+2*d+1)}')
            a(f'ds_write_b128 {v(AV_L16)}, {v(o,4)} offset:{LDS_SEG + 1024*p}')
        a.label(f'{L}_{tag}')
    if light and a.vpos: a(f's_waitcnt vmcnt({0 if swp else 8})')
    if unit:
        assert a.lr == 3
        a(f's_and_b32 {s(S_DU)}, {s(S_S)}, 1')
        a(f's_cmp_lt_u32 {s(S_S)}, {a.s0}')
        a(f's_cselect_b32 {s(S_DU)}, 3, {s(S_DU)}')
        a(f's_cmp_lg_u32 {s(S_DU)}, {s(S_DW)}')
        a(f's_cbranch_scc1 {L}_nd0')
        for i in range(8): a(f'ds_write_b128 {v(AV_LB)}, {v(AV_TB+4*i,4)} offset:{1024*i}')
        a.label(L + '_nd0')
    if light:
        if not a.lr & 1:
            for x in vr: a(x)
            for u in range(4): vw[8*u] = f's_waitcnt lgkmcnt({6 - 2*u})\n' + vw[8*u]
        for x in vw: a(x)
        if unit:
            a('s_nop 2')
            for x in vw_pack(): a(x)
            part2('p2a')
            for x in zo: a(x)
        else:
            for x in zo: a(x)
            for x in vw_pack(): a(x)
        if not a.lr & 2:
            flag_wait(a, L + '_wkv', AV_FLGW, 16, AV_FT, S_T2, sl=a.kvsl, one=True)
            for x in kr: a(x)
        pf.stamp(a, 'kv', -3)
    else:
        flag_wait(a, L + '_wkv', AV_FLGW, 16, AV_FT, S_T2, sl=a.kvsl, one=True)
        pf.stamp(a, 'kv', -3)
        for x in vr + kr: a(x)
        for u in range(4): vw[8*u] = f's_waitcnt lgkmcnt({14 - 2*u})\n' + vw[8*u]
        for x in vw[:a.vwp]: a(x)
    vp = light and a.vpos
    a('s_setprio 2')
    if not vp or swp: flag_wait(a, L + '_wm', AV_FLGW, 32, AV_FT, S_T2, sl=a.kvsl, one=True)
    pf.stamp(a, 'fm', -3)
    if unit:
        a(f's_cmp_lg_u32 {s(S_DU)}, {s(S_DW)}')
        a(f's_cbranch_scc1 {L}_nd1')
        a(f's_add_u32 m0, {s(S_KL)}, 16384')
        a(f's_add_u32 {s(S_T0)}, {s(S_KG)}, {s(S_QT)}')
        a(f's_add_u32 {s(S_T0)}, {s(S_T0)}, {WS_QS}')
        for u in range(4): a(f'buffer_load_dwordx4 {v(AV_L16)}, {s(SRD_WS,4)}, {s(S_T0)} offen offset:{1024*u} sc1 lds')
        a.label(L + '_nd1')
    if light: a(f's_add_u32 {s(S_KG)}, {s(S_KG)}, 262144')
    if swp:
        for x in reg_list(a, 0, AV_TB, S_T0): a(x)
    if ('v' if light else 'q') not in a.abl and not vp:
        for x in (reg_list(a, 1, AV_TB, S_T0) if light and a.lr & 1 else dma_list(a, 1 if light else 2, AV_L16, S_T0)): a(x)
    if not light: a(f's_add_u32 {s(S_KG)}, {s(S_KG)}, 262144')
    pf.stamp(a, 'b1rdy', -3)
    a('s_barrier')
    pf.stamp(a, 'b1')
    qr = [f'ds_read_b128 {v(AV_TB+4*i,4)}, {v(AV_LB)} offset:{16384+1024*i}' for i in range(8)]
    if not light:
        for x in vw[a.vwp:]: a(x)
        a('s_nop 2')
        for x in vw_pack(): a(x)
        for x in zo: a(x)
    if a.qkf: a('s_barrier')
    qd = a.qdl if light else a.qd
    if qd: a(f's_sleep {qd}')
    a('s_waitcnt lgkmcnt(0)')
    pf.stamp(a, 'poll')
    qm = [f'buffer_load_dwordx4 {v(AV_Y+4*u,4)}, {v(AV_L16)}, {s(SRD_WS,4)}, {s(S_QLD)} offen offset:{1024*u} sc1' for u in range(4)]
    qm += [f'buffer_load_dwordx4 {v(AV_X+4*u2,4)}, {v(AV_L16)}, {s(SRD_WS,4)}, {s(S_QLD2)} offen offset:{1024*u2} sc1' for u2 in range(2)]
    qreg = [[AV_Y + 4 * u + i for i in (0, 2)] for u in range(4)]
    vreg = [AV_X + i for i in range(0, 8, 2)]
    for x in qm[:4]: a(x)
    if a.vdel: a(f's_sleep {a.vdel}' if a.vdel > 0 else f's_nop {-a.vdel}')
    for x in qm[4:]: a(x)
    def crit_s(check, first=False):
        for u in range(4):
            if check: a(f's_waitcnt vmcnt({5-u})')
            if first and u == 0: pf.stamp(a, 'z0')
            z = v(AV_Y + 4 * u, 4)
            for kt in range(2):
                d = SA + 4 * kt
                a(f'v_mfma_f32_16x16x32_bf16 {v(d,4)}, {v(AV_KS+(kt*4+u)*4,4)}, {z}, {"0" if u==0 else v(d,4)}')
            if check:
                c = chk(qreg[u], AV_T, f'{Lr}_{u}')
                for x in c[:-1]: a(x)
            a(f'v_mfma_f32_16x16x32_bf16 {v(SA+8,4)}, {z}, {z}, {"0" if u==0 else v(SA+8,4)}')
            if check: a(c[-1])
    crit_s(True, True)
    a.label(L + '_sdone')
    pf.stamp(a, 'sdone')
    if light: a('s_nop 1')
    else:
        a(f's_cmp_eq_u32 {s(S_S)}, {a.last}')
        a(f's_cbranch_scc1 {L}_lsk')
    vwm = [f'v_smfmac_f32_16x16x64_bf16 {v(AV_O+4*ct,4)}, {v(AV_X+4*c2,4)}, {v(wo(2*c2,ct),8)}, {v(AV_IDX)}' for c2 in range(2) for ct in (0, 2, 1, 3)]
    vc = chk(vreg, AV_FT, f'{Lr}_v')
    M, T = v(AV_MX), v(AV_T)
    a(f"""
    ds_write_b32 {v(AV_FLGW)}, {v(AV_FV)}
    s_nop 0
    v_max3_f32 {M}, {v(SA)}, {v(SA+1)}, {v(SA+2)}
    v_max3_f32 {T}, {v(SA+3)}, {v(SA+4)}, {v(SA+5)}
    v_max3_f32 {M}, {M}, {v(SA+6)}, {v(SA+7)}
    v_max3_f32 {T}, {T}, {v(SA+8)}, {v(SA+9)}
    v_max_f32 {M}, {M}, {T}
    v_mov_b32 {T}, {M}
    s_nop 1
    v_permlane16_swap_b32 {T}, {M}
    v_max_f32 {M}, {M}, {T}
    v_mov_b32 {T}, {M}
    s_waitcnt vmcnt(0)
    {vc[0]}
    v_permlane32_swap_b32 {T}, {M}
    v_max_f32 {M}, {M}, {T}
    {vc[1]}
    v_mul_f32 {M}, {s(S_CST)}, {M}
    {vc[2]}
    """)
    r = list(range(SA, SA + 10))
    fm = [f'v_fma_f32 {v(x)}, {v(x)}, {s(S_CST)}, -{M}' for x in r]
    ex = [f'v_exp_f32 {v(x)}, {v(x)}' for x in r]
    a(fm[0]); a(fm[1])
    a(vc[3])
    a.label(L + '_vok')
    pf.stamp(a, 'max', 3)
    vwc = []
    for ct in range(4):
        d = AV_O + 4 * ct
        vwc += [f'v_cvt_pk_bf16_f32 {v(AV_VWM+2*ct)}, {v(d)}, {v(d+1)}', f'v_cvt_pk_bf16_f32 {v(AV_VWM+2*ct+1)}, {v(d+2)}, {v(d+3)}']
    SM = SA + 4
    def mid(kin, st):
        a(vwm[0])
        for i in range(10):
            if i + 2 < 10: a(fm[i + 2])
            a(ex[i])
            if i + 1 < 8: a(vwm[i + 1])
            if kin and (a.kpos + a.vpos == 1 or i & 1): a(kin.pop(0))
        if st: pf.stamp(a, 'exp', 3)
        pk = packP(SA)
        for x in pk[:4]: a(x)
        mA = f'v_mfma_f32_16x16x32_bf16 {v(SM,4)}, {v(AV_ONE,4)}, {v(SA,4)}, 0'
        mB = f'v_mfma_f32_16x16x32_bf16 {v(SM,4)}, {v(AV_HALF,4)}, {v(SA+8,4)}, {v(SM,4)}'
        for x in pk[4:6]: a(x)
        a(mA)
        for x in pk[6:]: a(x)
        for n, ct in enumerate((0, 2, 1, 3)):
            a(vwc[2*ct]); a(vwc[2*ct+1])
            if n == 0: a(mB)
            a(f'v_mfma_f32_16x16x32_bf16 {v(AV_O+4*ct,4)}, {v(AV_VWS+4*ct,4)}, {v(SA,4)}, 0')
            if kin: a(kin.pop(0))
        assert not kin
    kp = light and a.lr & 2 and a.kpos and 'k' not in a.abl
    assert not (kp and vp)
    if (kp or swp) and unit:
        a(f's_cmp_eq_u32 {s(S_DU)}, {s(S_DW)}')
        a(f's_cbranch_scc1 {L}_midD')
    mid(reg_list(a, 0, AV_KS, S_T0) if kp else reg_list(a, 1, AV_KS if swp else AV_TB, S_T0) if vp else [], True)
    a.label(L + '_midE')
    a(f's_mov_b64 vcc, {s(S_QM,2)}')
    a(f'v_rcp_f32 {T}, {v(SM)}')
    for ct in (0, 2, 1, 3):
        a(f'v_mfma_f32_16x16x32_bf16 {v(AV_O+4*ct,4)}, {v(AV_VWM+2*ct,4)}, {v(SA+8,4)}, {v(AV_O+4*ct,4)}')
    pf.stamp(a, 'pv', 3)
    qp = 'quad_perm:[2,3,2,3] row_mask:0xf bank_mask:0xf'
    a(f'v_mov_b32_dpp {T}, {T} {qp}')
    a('s_nop 4')
    for h in range(2):
        for i in range(4*h, 4*h+4): a(f'v_cndmask_b32_dpp {v(AV_O+i)}, {v(AV_O+8+i)}, {v(AV_O+i)}, vcc {qp}')
    for i in range(8): a(f'v_mul_f32 {v(AV_O+i)}, {v(AV_O+i)}, {T}')
    for d in range(4): a(f'v_cvt_pk_bf16_f32 {v(AV_PK+d)}, {v(AV_O+2*d)}, {v(AV_O+2*d+1)}')
    a(f'ds_write_b128 {v(AV_R2W)}, {v(AV_PK,4)}')
    a('s_waitcnt lgkmcnt(0)')
    pf.stamp(a, 'b2rdy')
    a('s_barrier')
    pf.stamp(a, 'b2')
    a(f'ds_read_b128 {v(AV_PK+4,4)}, {v(AV_R2R)}')
    a('s_waitcnt lgkmcnt(0)')
    a(f'v_mfma_f32_16x16x32_bf16 {v(AV_O,4)}, {v(AV_SEL,4)}, {v(AV_PK+4,4)}, 0')
    a('s_nop 7')
    a(f'v_cvt_pk_bf16_f32 {v(AV_PK)}, {v(AV_O)}, {v(AV_O+1)}')
    a(f'v_cvt_pk_bf16_f32 {v(AV_PK+1)}, {v(AV_O+2)}, {v(AV_O+3)}')
    a('s_nop 0')
    a(f'v_permlane16_swap_b32 {v(AV_PK)}, {v(AV_PK+2)}')
    a(f'v_permlane16_swap_b32 {v(AV_PK+1)}, {v(AV_PK+3)}')
    a('s_mov_b64 exec, 0xffff')
    a(f'v_min_u32 {v(AV_PK)}, -2, {v(AV_PK)}')
    a(f'buffer_store_dwordx4 {v(AV_PK,4)}, {v(AV_PST)}, {s(SRD_WS,4)}, {s(S_PSTC)} offen sc1')
    a('s_setprio 0')
    pf.stamp(a, 'ppub')
    a(f'buffer_store_dwordx4 {v(AV_NEG,4)}, {v(AV_PST)}, {s(SRD_WS,4)}, {s(S_PRS)} offen sc1')
    a('s_mov_b64 exec, -1')
    l = a.uid('pg')
    a(f's_cmp_lg_u32 {s(S_PRG)}, 0')
    a(f's_cbranch_scc1 {l}')
    a(f's_sub_u32 {s(S_T4)}, {s(S_S)}, 1')
    a(f's_cbranch_scc1 {l}')
    a(f's_and_b32 {s(S_T0)}, {s(S_T4)}, 3')
    a(f's_cmp_ge_u32 {s(S_S)}, 58')
    a(f's_cselect_b32 {s(S_T0)}, 0, {s(S_T0)}')
    a(f's_cmp_lg_u32 {s(S_T0)}, 0')
    a(f's_cbranch_scc1 {l}')
    a(f'v_mov_b32 {v(AV_T)}, {s(S_T4)}')
    a('s_mov_b64 exec, 1')
    a(f'buffer_store_dword {v(AV_T)}, off, {s(SRD_WS,4)}, {s(S_CS)} sc1')
    a('s_mov_b64 exec, -1')
    a.label(l)
    if unit:
        a(f's_cmp_lg_u32 {s(S_DU)}, {s(S_DW)}')
        a(f's_cbranch_scc1 {L}_nd2')
        for u in range(4): a(f'ds_read_b128 {v(AV_O+4*u,4)}, {v(AV_LB)} offset:{16384+1024*u}')
        for c2 in range(2):
            for i in range(4): a(f'ds_write_b32 {v(AV_VMW)}, {v(AV_X+4*c2+i)} offset:{1024*c2 + 128*(i>>1) + 8*(i&1)}')
        a(f's_mov_b32 {s(S_U2)}, 1')
        for u in range(4):
            a(f's_waitcnt lgkmcnt({8+3-u})')
            q = v(AV_O + 4 * u, 4)
            for kt in range(2): a(f'v_mfma_f32_16x16x32_bf16 {v(SA+4*kt,4)}, {v(AV_KS+(kt*4+u)*4,4)}, {q}, {"0" if u==0 else v(SA+4*kt,4)}')
            a(f'v_mfma_f32_16x16x32_bf16 {v(SA+8,4)}, {v(xk(u),4)}, {q}, {"0" if u==0 else v(SA+8,4)}')
        a('s_waitcnt lgkmcnt(0)')
        a('s_nop 3')
        if a.kpos or swp:
            for x in reg_list(a, 1 if swp else 0, AV_KS, S_T0): a(x)
        a.label(L + '_nd2')
    if light:
        if a.lr & 2 and 'k' not in a.abl and not a.kpos and not swp:
            if a.kdl: a(f's_sleep {a.kdl}')
            for x in reg_list(a, 0, AV_KS, S_T0): a(x)
        pf.stamp(a, 'bg')
        pf.flush(a, AV_MX, 'A')
        a(f's_add_u32 {s(S_S)}, {s(S_S)}, 1')
        if swp and not ph: a(f's_branch {other}')
        if swp: AV_KS, AV_TB = AV_TB, AV_KS
        a(f's_cmp_lt_u32 {s(S_S)}, {a.s1}')
        a(f's_cbranch_scc1 {other or L}')
        a('s_waitcnt vmcnt(0)')
        for i in range(8):
            if a.lr & 1: a(f'ds_write_b128 {v(AV_LB)}, {v(AV_TB+4*i,4)} offset:{8192+1024*i}')
        if unit:
            a('s_waitcnt lgkmcnt(0)')
            part2('p2b', AV_TB)
        for i in range(8):
            if a.lr & 2: a(f'ds_write_b128 {v(AV_LB)}, {v(AV_KS+4*i,4)} offset:{1024*i}')
        a('s_waitcnt lgkmcnt(0)')
        a(f's_branch {nxt or L}')
        if swp: AV_KS, AV_TB = AV_TB, AV_KS
    else:
        a.label(L + '_lskb')
        a(f'v_mov_b32 {v(AV_X)}, 0xff61b1e6')
        def s_mf(qt, S):
            m = []
            for u in range(4):
                q = v(AV_TB + (qt * 4 + u) * 4, 4)
                for kt in range(qt + 1):
                    d = S + 4 * kt
                    m.append(f'v_mfma_f32_16x16x32_bf16 {v(d,4)}, {v(AV_KS+(kt*4+u)*4,4)}, {q}, {"0" if u==0 else v(d,4)}')
                m.append(f'v_mfma_f32_16x16x32_bf16 {v(S+8,4)}, {v(xk(u),4)}, {q}, {"0" if u==0 else v(S+8,4)}')
            return m
        bg = qr + ['s_waitcnt lgkmcnt(4)'] + s_mf(0, SA) + ['s_waitcnt lgkmcnt(0)'] + s_mf(1, SB)
        seq = [f'v_cndmask_b32 {v(SA+i)}, {v(SA+i)}, {v(AV_X)}, {s(S_M0+2*i,2)}' for i in range(4)]
        seq += exp_seq([SA + i for i in range(4)] + [SA + 8, SA + 9]) + packP(SA, True)
        bg += seq + ['s_nop 1']
        pv0 = pv_seq(SA, 0, AV_X + 2)
        seq = [f'v_cndmask_b32 {v(SB+4+i)}, {v(SB+4+i)}, {v(AV_X)}, {s(S_M0+2*i,2)}' for i in range(4)]
        seq += exp_seq(list(range(SB, SB + 10))) + packP(SB)
        seq = merge_fill(seq, pv0[:10], every=2, start=0)
        bg += seq + pv0[10:] + pv_seq(SB, 1, AV_T)
        if 'b' in a.abl: bg = []
        for x in bg: a(x)
        a(f'v_xor_b32 {v(AV_SGW)}, 0x4000, {v(AV_SGW)}')
        pf.stamp(a, 'bg')
        pf.flush(a, AV_MX, 'A')
        a(f's_add_u32 {s(S_S)}, {s(S_S)}, 1')
        a(f's_cmp_le_u32 {s(S_S)}, {a.last}')
        a(f's_cbranch_scc1 {L}')
        a('s_waitcnt lgkmcnt(0)')
        a('s_barrier')
        a('s_waitcnt vmcnt(0)')
        a(f's_branch {done}')
    if (kp or swp) and unit:
        a.label(L + '_midD')
        mid([], False)
        a(f's_branch {L}_midE')
    for i in range(4):
        spin_block(a, f'{Lr}_{i}', qm[i:], qreg[i], AV_T, L + '_again', L + '_nochk')
    a.label(L + '_again')
    crit_s(True)
    a(f's_branch {L}_sdone')
    def vretry(lab, ok):
        a.label(lab)
        a(f's_sub_u32 {s(S_TO)}, {s(S_TO)}, 1')
        a(f's_cbranch_scc1 {lab}g')
        for x in qm[4:]: a(x)
        a('s_waitcnt vmcnt(0)')
        for x in chk(vreg, AV_FT, lab): a(x)
        a(f's_branch {ok}')
        a.label(lab + 'g')
        a(f's_mov_b32 {s(S_TO)}, 0')
        a(f's_branch {ok}')
    vretry(f'{Lr}_v', L + '_vok')
    a.label(L + '_nochk')
    crit_s(False)
    a('s_nop 1')
    a(f's_branch {L}_sdone')
    if light: return
    vretry(f'{Lr}_v2', L + '_lsk3')
    a.label('ct_tail')
    a.label(f'{L}_lsk')
    a(f's_cmp_lg_u32 {s(S_PRG)}, 0')
    a(f's_cbranch_scc1 {L}_lsk2')
    a(f'v_mov_b32 {v(AV_T)}, {a.last - 1}')
    a('s_mov_b64 exec, 1')
    a(f'buffer_store_dword {v(AV_T)}, off, {s(SRD_WS,4)}, {s(S_CS)} sc1')
    a('s_mov_b64 exec, -1')
    a.label(f'{L}_lsk2')
    a('s_waitcnt vmcnt(0)')
    for x in chk(vreg, AV_FT, f'{Lr}_v2'): a(x)
    a.label(f'{L}_lsk3')
    for x in vwm: a(x)
    a('s_nop 7')
    a('s_nop 1')
    for x in vwc: a(x)
    a('s_waitcnt lgkmcnt(0)')
    a(f's_branch {L}_lskb')

def emit_chain(a, done, prof=False):
    if prof: a('s_memrealtime s[94:95]')
    a(f"""
    s_lshl_b32 {s(S_ID)}, {s(S_X)}, 5
    s_add_u32 {s(S_ID)}, {s(S_ID)}, {s(S_I)}
    s_lshr_b32 {s(S_H)}, {s(S_ID)}, 2
    s_lshr_b32 {s(S_G)}, {s(S_ID)}, 4
    s_and_b32 {s(S_C)}, {s(S_I)}, 15
    s_and_b32 {s(S_J)}, {s(S_I)}, 3
    s_mov_b32 {s(S_S)}, 0
    s_mov_b32 {s(S_TO)}, {TIMEOUT}
    s_mov_b32 s100, {TIMEOUT}
    s_getreg_b32 {s(S_X1)}, hwreg(HW_REG_XCC_ID)
    s_and_b32 {s(S_X1)}, {s(S_X1)}, 15
    s_mul_i32 {s(S_T2)}, {s(S_X1)}, {s(S_X1)}
    s_lshl_b32 {s(S_T2)}, {s(S_T2)}, 18
    s_lshl_b32 {s(S_X1)}, {s(S_X1)}, 8
    s_add_u32 {s(S_X1)}, {s(S_X1)}, {s(S_T2)}
    s_add_u32 {s(S_X1)}, {s(S_X1)}, 1
    s_lshl_b32 {s(S_CQG)}, {s(S_G)}, 4
    s_add_u32 {s(S_CQG)}, {s(S_CQG)}, {CQ_TAB}
    s_and_b32 {s(S_T4)}, {s(S_W)}, 3
    s_mul_i32 {s(S_KL)}, {s(S_T4)}, 24576
    s_add_u32 {s(S_KL)}, {s(S_KL)}, {LDS_BULK}
    s_lshl_b32 {s(S_KG)}, {s(S_G)}, 2
    s_add_u32 {s(S_KG)}, {s(S_KG)}, {s(S_T4)}
    s_lshl_b32 {s(S_KG)}, {s(S_KG)}, 12
    s_cmp_ge_u32 {s(S_W)}, 4
    s_cbranch_scc1 ch_a_pro
    s_add_u32 {s(S_KG)}, {s(S_KG)}, 262144
    s_lshl_b32 {s(S_QO)}, {s(S_H)}, 13
    s_add_u32 {s(S_QO)}, {s(S_QO)}, {WS_QKV}
    s_lshl_b32 {s(S_T0)}, {s(S_I)}, 1
    s_and_b32 {s(S_T1)}, {s(S_W)}, 1
    s_add_u32 {s(S_T0)}, {s(S_T0)}, {s(S_T1)}
    s_lshl_b32 {s(S_T0)}, {s(S_T0)}, 1       ; first u
    s_cmp_lt_u32 {s(S_W)}, 2
    s_cselect_b32 {s(S_MEX)}, 0xff, 0
    s_mov_b32 {s(S_MEX+1)}, {s(S_MEX)}
    s_lshr_b32 {s(S_T1)}, {s(S_T0)}, 1
    s_and_b32 {s(S_T2)}, {s(S_T0)}, 1
    s_lshl_b32 {s(S_T3)}, {s(S_X)}, 14
    s_add_u32 {s(S_T3)}, {s(S_T3)}, {WS_MEM}
    s_lshl_b32 {s(S_MO)}, {s(S_W)}, 12
    s_add_u32 {s(S_MO)}, {s(S_MO)}, {s(S_T3)}
    s_lshl_b32 {s(S_MSO)}, {s(S_T1)}, 8
    s_add_u32 {s(S_MSO)}, {s(S_MSO)}, {s(S_T3)}
    s_lshl_b32 {s(S_T3)}, {s(S_T2)}, 5
    s_add_u32 {s(S_MSO)}, {s(S_MSO)}, {s(S_T3)}
    s_lshr_b32 {s(S_PO)}, {s(S_T0)}, 3
    s_lshl_b32 {s(S_PO)}, {s(S_PO)}, 14
    s_and_b32 {s(S_T3)}, {s(S_T0)}, 7
    s_lshl_b32 {s(S_T3)}, {s(S_T3)}, 10
    s_add_u32 {s(S_PO)}, {s(S_PO)}, {s(S_T3)}
    s_add_u32 {s(S_PO)}, {s(S_PO)}, {WS_PART}
    s_lshl_b32 {s(S_SP)}, {s(S_G)}, 22
    s_lshl_b32 {s(S_T3)}, {s(S_C)}, 11
    s_add_u32 {s(S_SP)}, {s(S_SP)}, {s(S_T3)}
    s_lshl_b32 {s(S_T3)}, {s(S_W)}, 9
    s_add_u32 {s(S_SP)}, {s(S_SP)}, {s(S_T3)}
    s_add_u32 {s(S_SP)}, {s(S_SP)}, {WS_SP + a.s1 * 65536}
    s_lshl_b32 {s(S_KMX)}, {s(S_H)}, 13
    s_add_u32 {s(S_KMX)}, {s(S_KMX)}, {WS_KM}
    s_mov_b32 {s(S_QST)}, {s(S_QO)}
    s_mov_b32 {s(S_SP0)}, {s(S_SP)}
    s_mov_b32 {s(S_OK)}, 2
    s_mov_b32 {s(S_RTG)}, 0
    s_mov_b32 {s(S_OF)}, 0
    s_bfe_u32 {s(S_T0)}, {s(S_C)}, 0x20001
    s_lshl_b32 {s(S_OB)}, {s(S_G)}, 2
    s_add_u32 {s(S_OB)}, {s(S_OB)}, {s(S_T0)}
    s_lshl_b32 {s(S_OB)}, {s(S_OB)}, 2
    s_add_u32 {s(S_OB)}, {s(S_OB)}, {s(S_W)}
    s_lshl_b32 {s(S_OB)}, {s(S_OB)}, 10
    s_and_b32 {s(S_T0)}, {s(S_C)}, 1
    s_lshl_b32 {s(S_T0)}, {s(S_T0)}, 17
    s_add_u32 {s(S_OB)}, {s(S_OB)}, {s(S_T0)}
    s_add_u32 {s(S_OB)}, {s(S_OB)}, {WS_OO - 262144}
    s_mov_b32 {s(S_TCH)}, {3 * 262144}
    """)
    p_prologue(a)
    for i in range(4): a(f'v_mov_b32 {v(52+i)}, -1')
    for sg in range(64 - NTAIL, 64):
        a(f's_add_u32 {s(S_T0)}, {s(S_SP)}, {(sg - a.s1)*65536}')
        a(f'buffer_store_dwordx4 v[52:55], {v(PV_SPS)}, {s(SRD_WS,4)}, {s(S_T0)} offen sc1')
    if prof: a('s_memrealtime s[96:97]')
    a(f's_lshl_b32 {s(S_X1)}, {s(S_X1)}, 5')
    a('s_barrier')
    a(f'ds_write_b32 {v(PV_FLGW)}, {v(PV_NEG)}')
    a(f'ds_write_b32 {v(PV_FLGW)}, {v(PV_NEG)} offset:16')
    a(f'ds_write_b32 {v(PV_FLGW)}, {v(PV_NEG)} offset:32')
    a(f'ds_write_b32 {v(PV_FLGW)}, {v(PV_NEG)} offset:48')
    a(f'v_mov_b32 {v(PV_RDY)}, 12')
    a(f"""
    v_mov_b32 v56, {LDS_PUB}
    s_waitcnt lgkmcnt(0)
    s_barrier
    ds_read_b64 v[32:33], v56
    s_waitcnt lgkmcnt(0)
    v_cmp_ne_u32 vcc, {s(S_X1)}, v32
    s_setprio 3
    v_readfirstlane_b32 {s(S_T0)}, v33
    s_add_u32 {s(S_PO)}, {s(S_PO)}, {s(S_T0)}
    s_cbranch_vccnz ch_p_slow
    """)
    if prof:
        a(f"""
        v_mov_b32 v33, {s(S_T0)}
        s_memrealtime s[98:99]
        s_waitcnt lgkmcnt(0)
        s_lshl_b32 {s(S_T0)}, {s(S_ID)}, 3
        s_add_u32 {s(S_T0)}, {s(S_T0)}, {s(S_W)}
        s_lshl_b32 {s(S_T0)}, {s(S_T0)}, 12
        s_add_u32 {s(S_T0)}, {s(S_T0)}, {WS_YP + 63*64}
        v_mov_b32 v56, s94
        v_mov_b32 v57, s96
        v_mov_b32 v32, s98
        s_mov_b64 exec, 1
        buffer_store_dwordx2 v[56:57], off, {s(SRD_WS,4)}, {s(S_T0)}
        buffer_store_dwordx2 v[32:33], off, {s(SRD_WS,4)}, {s(S_T0)} offset:8
        s_mov_b64 exec, -1
        s_nop 1
        """)
    if a.force_slow: a('s_branch ch_p_slow')
    p_loop(a, '', prof, done)
    a.label('ch_p_slow')
    p_loop(a, ' sc1', prof, done)
    a.label('ch_a_pro')
    a(f"""
    s_sub_u32 {s(S_T4)}, {s(S_W)}, 4
    s_lshl_b32 {s(S_H)}, {s(S_G)}, 2
    s_add_u32 {s(S_H)}, {s(S_H)}, {s(S_T4)}
    s_lshl_b32 {s(S_QO)}, {s(S_H)}, 13
    s_add_u32 {s(S_QO)}, {s(S_QO)}, {WS_QKV}
    """)
    if a.stouch:
        a(f"""
        s_min_u32 {s(S_T3)}, {s(S_T4)}, 2
        s_lshl_b32 {s(S_T1)}, {s(S_T3)}, 3
        s_add_u32 {s(S_T1)}, {s(S_T1)}, {KA_WQ}
        s_load_dwordx2 {s(SRD_T,2)}, s[0:1], {s(S_T1)}
        s_mov_b32 {s(SRD_T+2)}, {8*MB}
        s_mov_b32 {s(SRD_T+3)}, {SRD3}
        v_and_b32 v20, 63, v0
        v_lshlrev_b32 v21, 13, v20
        s_lshl_b32 {s(S_T0)}, {s(S_C)}, 19
        s_lshl_b32 {s(S_T1)}, {s(S_G)}, 10
        s_add_u32 {s(S_T0)}, {s(S_T0)}, {s(S_T1)}
        s_waitcnt lgkmcnt(0)
        buffer_load_dword v26, v21, {s(SRD_T,4)}, {s(S_T0)} offen offset:384
        """)
    a_static(a)
    a(f"""
    v_lshlrev_b32 v24, 4, v0
    s_lshl_b32 {s(S_T0)}, {s(S_ID)}, 13
    s_add_u32 {s(S_T2)}, {s(S_T0)}, {WS_PART - 4096}
    s_add_u32 {s(S_T0)}, {s(S_T0)}, {WS_QKV - 4096}
    s_lshl_b32 {s(S_T1)}, {s(S_ID)}, 12
    s_add_u32 {s(S_T1)}, {s(S_T1)}, {WS_MEM - 4096}
    buffer_store_dwordx4 {v(AV_NEG,4)}, v24, {s(SRD_WS,4)}, {s(S_T2)} offen sc1
    s_add_u32 {s(S_T2)}, {s(S_T2)}, 4096
    buffer_store_dwordx4 {v(AV_NEG,4)}, v24, {s(SRD_WS,4)}, {s(S_T2)} offen sc1
    buffer_store_dwordx4 {v(AV_NEG,4)}, v24, {s(SRD_WS,4)}, {s(S_T0)} offen sc1
    s_add_u32 {s(S_T0)}, {s(S_T0)}, 4096
    buffer_store_dwordx4 {v(AV_NEG,4)}, v24, {s(SRD_WS,4)}, {s(S_T0)} offen sc1
    buffer_store_dwordx4 {v(AV_NEG,4)}, v24, {s(SRD_WS,4)}, {s(S_T1)} offen sc1
    """)
    a(f"""
    s_and_b32 {s(S_T0)}, {s(S_I)}, 7
    s_sub_u32 {s(S_T1)}, {s(S_T4)}, 1
    s_cmp_lt_u32 {s(S_T1)}, 2
    s_cselect_b32 s54, {s(S_T0)}, 1
    s_lshr_b32 {s(S_T2)}, {s(S_ID)}, 3
    s_lshl_b32 {s(S_T2)}, {s(S_T2)}, 8
    s_lshl_b32 {s(S_T1)}, {s(S_T1)}, 7
    s_add_u32 {s(S_T2)}, {s(S_T2)}, {s(S_T1)}
    s_add_u32 s55, {s(S_T2)}, {WS_PART + MB}
    s_cmp_lg_u32 s54, 0
    s_cbranch_scc1 ch_nv0
    v_lshlrev_b32 v24, 13, v20
    s_mov_b64 exec, 0xffff
    buffer_store_dword {v(AV_NEG)}, v24, {s(SRD_WS,4)}, s55 offen sc1
    s_mov_b64 exec, -1
    """)
    a.label('ch_nv0')
    a(f"""
    v_mov_b32 v2, {s(S_X1)}
    s_lshl_b32 {s(S_T0)}, {s(S_X)}, 2
    s_add_u32 {s(S_T0)}, {s(S_T0)}, {F.DBG_XCC}
    s_waitcnt vmcnt(0)
    s_barrier
    s_cmp_lg_u32 {s(S_W)}, 4
    s_cbranch_scc1 ch_nox
    s_mov_b64 exec, 1
    buffer_atomic_add v2, off, {s(F.SRD_DBG,4)}, {s(S_T0)} sc1
    s_mov_b64 exec, -1
    """)
    a.label('ch_nox')
    a_prologue(a)
    a('s_cmp_lg_u32 s54, 0')
    a('s_cbranch_scc1 ch_nv1')
    a('s_mov_b32 s58, -1')
    a('s_mov_b32 s59, -1')
    for k in range(8):
        for ph in range(2):
            a('s_memtime s[60:61]')
            a(f's_add_u32 s56, s55, {k*16384 + ph*8192}')
            a('s_waitcnt lgkmcnt(0)')
            a('s_load_dword s57, s[4:5], s56 glc')
            a('s_waitcnt lgkmcnt(0)')
            a('s_memtime s[62:63]')
            a('s_waitcnt lgkmcnt(0)')
            a('s_sub_u32 s57, s62, s60')
            a(f's_min_u32 s{58+ph}, s{58+ph}, s57')
    a(f"""
    s_sub_i32 s57, s58, s59
    s_min_i32 s57, s57, {a.vote}
    s_max_i32 s57, s57, {-a.vote}
    s_add_u32 s57, s57, {a.vote + (1 << 24)}
    s_getreg_b32 s56, hwreg(HW_REG_XCC_ID)
    s_and_b32 s56, s56, 0
    v_mov_b32 v2, s57
    s_mov_b64 exec, 1
    buffer_atomic_add v2, off, {s(F.SRD_DBG,4)}, s56 offset:{F.DBG_VOTE} sc1
    s_mov_b64 exec, -1
    """)
    a('s_waitcnt vmcnt(0)')
    a.label('ch_nv1')
    a_prologue2(a)
    a(f"""
    s_cmp_lg_u32 {s(S_W)}, 4
    s_cbranch_scc1 ch_xcc_skip
    v_lshrrev_b32 v56, 2, {v(AV_L16)}
    v_add_u32 v56, {F.DBG_XCC}, v56
    v_writelane_b32 v56, 0, 10
    v_mov_b32 v59, 63
    v_mov_b32 v60, 32
    v_writelane_b32 v59, 0, 8
    v_writelane_b32 v60, 0, 8
    v_writelane_b32 v59, 0, 9
    v_writelane_b32 v60, 0, 9
    v_writelane_b32 v59, -1, 10
    s_movk_i32 {s(S_T0)}, 128
    v_writelane_b32 v60, {s(S_T0)}, 10
    s_mov_b64 exec, 0x70f
    """)
    a.label('ch_xcc')
    a(f"""
    buffer_load_dword v57, v56, {s(F.SRD_DBG,4)}, 0 offen sc1
    s_waitcnt vmcnt(0)
    v_and_b32 v62, v59, v57
    v_cmp_ne_u32 vcc, v62, v60
    v_readlane_b32 {s(S_T1)}, v57, 8
    v_readlane_b32 {s(S_T2)}, v57, 9
    s_add_u32 {s(S_T0)}, {s(S_T1)}, {s(S_T2)}
    s_lshr_b32 {s(S_T0)}, {s(S_T0)}, 24
    s_cmp_lg_u32 {s(S_T0)}, 32
    s_cbranch_scc1 ch_xcc_w
    s_cbranch_vccz ch_xcc_ok
    """)
    a.label('ch_xcc_w')
    a(f"""
    s_sleep 16
    s_sub_u32 {s(S_TO)}, {s(S_TO)}, 1
    s_cbranch_scc0 ch_xcc
    s_mov_b32 {s(S_TO)}, 0
    """)
    a.label('ch_xcc_ok')
    a(f"""
    s_getreg_b32 {s(S_T0)}, hwreg(HW_REG_XCC_ID)
    s_bitcmp1_b32 {s(S_T0)}, 2
    s_cselect_b32 {s(S_T1)}, {s(S_T1)}, {s(S_T1)}
    v_readlane_b32 {s(S_T0)}, v57, {s(S_X)}
    s_mov_b64 exec, -1
    s_lshr_b32 {s(S_T2)}, {s(S_T1)}, 24
    s_mul_i32 {s(S_T2)}, {s(S_T2)}, {a.vote}
    s_and_b32 {s(S_T1)}, {s(S_T1)}, 0xffffff
    s_cmp_gt_u32 {s(S_T1)}, {s(S_T2)}
    s_cselect_b32 {s(S_T1)}, {0 if a.pgf else 0x2000}, {0x2000 if a.pgf else 0}
    v_mov_b32 v58, {LDS_PUB}
    v_mov_b32 v60, {s(S_T0)}
    v_mov_b32 v61, {s(S_T1)}
    s_barrier
    ds_write_b64 v58, v[60:61]
    s_waitcnt lgkmcnt(0)
    s_branch ch_xcc_b3
    """)
    a.label('ch_xcc_skip')
    a('s_barrier')
    a.label('ch_xcc_b3')
    a(f"""
    s_barrier
    v_mov_b32 v58, {LDS_PUB}
    ds_read_b64 v[60:61], v58
    v_and_b32 v23, 7, v20
    v_lshlrev_b32 v23, 7, v23
    v_bfe_u32 v24, v20, 3, 1
    v_lshl_add_u32 v23, v24, 17, v23
    v_lshrrev_b32 v24, 4, v20
    v_lshl_add_u32 v23, v24, 24, v23
    s_lshl_b32 {s(S_T2)}, {s(S_G)}, 14
    s_lshl_b32 {s(S_T1)}, {s(S_C)}, 10
    s_add_u32 {s(S_T2)}, {s(S_T2)}, {s(S_T1)}
    s_and_b32 {s(S_T1)}, {s(S_T4)}, 1
    s_lshl_b32 {s(S_T1)}, {s(S_T1)}, 18
    s_add_u32 {s(S_T2)}, {s(S_T2)}, {s(S_T1)}
    s_add_u32 {s(S_T2)}, {s(S_T2)}, {WS_QS + 262144}
    s_waitcnt lgkmcnt(0)
    v_readfirstlane_b32 {s(S_T0)}, v61
    s_add_u32 {s(S_PO)}, {s(S_PO)}, {s(S_T0)}
    """)
    a.label('ch_g0')
    a(f"""
    buffer_load_dword v57, off, {s(SRD_WS,4)}, {s(S_CQG)} sc1
    s_waitcnt vmcnt(0)
    v_readfirstlane_b32 {s(S_T0)}, v57
    s_cmp_ge_u32 {s(S_T0)}, {8 if a.s0 else 12}
    s_cbranch_scc1 ch_g0b
    s_sleep 12
    s_sub_u32 {s(S_TO)}, {s(S_TO)}, 1
    s_cbranch_scc0 ch_g0
    s_mov_b32 {s(S_TO)}, 0
    """)
    a.label('ch_g0b')
    for m in (1, 0):
        for x in (reg_list(a, m, AV_TB if m else AV_KS, S_QLD) if a.s1 and a.lr & (1 if m else 2) else dma_list(a, m, AV_L16, S_T1)): a(x)
    a('s_mov_b32 exec_hi, 0xffff')
    a(f'buffer_load_dword {v(AV_PK+7)}, v23, {s(SRD_WS,4)}, {s(S_T2)} offen sc1')
    a('s_mov_b32 exec_hi, -1')
    a(f'v_mov_b32 {v(AV_FV)}, 0')
    a('s_waitcnt vmcnt(1)')
    a(f'ds_write_b32 {v(AV_FLGW)}, {v(AV_FV)} offset:16')
    a_loop(a, prof, done)
```

```python
from asmlib import *
from layout4 import *
from k_prep import red_gq, rnd_bf16

SRD_WS = 4
SRD_DBG = 64
CS_TAB = WS_CNT + 8192
CD_TAB = WS_CNT + 2560
DBG_INIT = 0
DBG_INIT2 = 64
DBG_XCC = 128
DBG_INITA = 192
DBG_VOTE = 160
S_EARLY = 70
TIMEOUT = 1 << 16

def emit_ln_init(a, swk, touch):
    a(f'''
    s_cmp_ge_u32 s3, 4
    s_cbranch_scc1 ln_touch
    {f's_cmp_lt_u32 {s(swk)}, 32' if a.cln else ''}
    {'s_cbranch_scc1 ln_short' if a.cln else ''}
    s_load_dwordx2 s[8:9], s[0:1], {KA_X}
    v_and_b32 v1, 63, v0
    s_mov_b32 s10, {4*MB}
    s_mov_b32 s11, {SRD3}
    v_and_b32 v3, 15, v1
    v_lshrrev_b32 v4, 4, v1
    v_lshlrev_b32 v5, 11, v3
    v_lshl_add_u32 v5, v4, 4, v5
    s_lshl_b32 s12, {s(swk)}, 15
    s_lshl_b32 s13, s3, 9
    s_add_u32 s12, s12, s13
    s_waitcnt lgkmcnt(0)
    ''')
    NB = 8; ND = NB * 4; NF = ND * 2
    P = 16; F = 48; T = 112; C = 176
    for j in range(NB):
        a(f'buffer_load_dwordx4 {v(P+4*j,4)}, v5, s[8:11], s12 offen offset:{64*j}')
    if a.cln: a('s_barrier')
    a(f'''
    v_mov_b32 v14, 0
    s_lshl_b32 s13, {s(swk)}, 7
    s_add_u32 s13, s13, {WS_CNT}
    v_lshlrev_b32 v13, 2, v0
    v_cmp_gt_u32 vcc, 32, v0
    s_and_saveexec_b64 s[22:23], vcc
    s_cbranch_execz ln_nz
    buffer_store_dword v14, v13, s[4:7], s13 offen sc1
    ''')
    a.label('ln_nz')
    a(f'''
    s_mov_b64 exec, -1
    v_lshlrev_b32 v6, 4, v3
    s_lshl_b32 s14, s3, 2
    v_add_u32 v7, s14, v6
    v_lshlrev_b32 v8, 4, v1
    s_lshl_b32 s15, {s(swk)}, 15
    s_lshl_b32 s16, s3, 13
    s_add_u32 s15, s15, s16
    s_add_u32 s16, s15, 4096
    v_and_b32 v9, 1, v4
    v_cmp_eq_u32 s[20:21], 1, v9
    s_waitcnt vmcnt(1)
    ''')
    for d in range(ND):
        a(f'v_lshlrev_b32 {v(F+2*d)}, 16, {v(P+d)}')
        a(f'v_and_b32 {v(F+2*d+1)}, 0xffff0000, {v(P+d)}')
    def tree(n):
        while n > 1:
            n //= 2
            for i in range(n): a(f'v_add_f32 {v(T+i)}, {v(T+i)}, {v(T+n+i)}')
    for i in range(ND): a(f'v_add_f32 {v(T+i)}, {v(F+i)}, {v(F+ND+i)}')
    tree(ND); red_gq(a, T, T+1)
    a(f'''
    ds_write_b32 v7, {v(T)}
    s_waitcnt lgkmcnt(0)
    s_barrier
    ds_read_b128 {v(T,4)}, v6
    s_waitcnt lgkmcnt(0)
    ''')
    tree(4)
    a(f'v_mul_f32 v10, 0x3a800000, {v(T)}')
    for i in range(NF): a(f'v_sub_f32 {v(C+i)}, {v(F+i)}, v10')
    for i in range(ND):
        a(f'v_mul_f32 {v(T+i)}, {v(C+i)}, {v(C+i)}')
        a(f'v_fmac_f32 {v(T+i)}, {v(C+ND+i)}, {v(C+ND+i)}')
    tree(ND); red_gq(a, T, T+1)
    a(f'''
    ds_write_b32 v7, {v(T)} offset:512
    s_waitcnt lgkmcnt(0)
    s_barrier
    ds_read_b128 {v(T,4)}, v6 offset:512
    s_waitcnt lgkmcnt(0)
    ''')
    tree(4)
    a(f'v_mul_f32 v11, 0x3a800000, {v(T)}')
    rnd_bf16(a, 10, 10); rnd_bf16(a, 11, 11)
    a('v_add_f32 v11, 0x3727c5ac, v11')
    rnd_bf16(a, 11, 11)
    a('v_sqrt_f32 v11, v11'); a('s_nop 0')
    rnd_bf16(a, 11, 11)
    a('v_rcp_f32 v11, v11'); a('s_nop 0')
    for j in range(NB):
        for d in range(4*j, 4*j+4):
            a(f'v_sub_f32 {v(F+2*d)}, {v(F+2*d)}, v10')
            a(f'v_sub_f32 {v(F+2*d+1)}, {v(F+2*d+1)}, v10')
            a(f'v_cvt_pk_bf16_f32 {v(P+d)}, {v(F+2*d)}, {v(F+2*d+1)}')
            a(f'v_lshlrev_b32 {v(F+2*d)}, 16, {v(P+d)}')
            a(f'v_and_b32 {v(F+2*d+1)}, 0xffff0000, {v(P+d)}')
            a(f'v_mul_f32 {v(F+2*d)}, {v(F+2*d)}, v11')
            a(f'v_mul_f32 {v(F+2*d+1)}, {v(F+2*d+1)}, v11')
            a(f'v_cvt_pk_bf16_f32 {v(P+d)}, {v(F+2*d)}, {v(F+2*d+1)}')
        b = P + 4 * j; o = T + 4 * j
        a(f'v_cndmask_b32 {v(o)}, {v(b)}, {v(b+2)}, s[20:21]')
        a(f'v_cndmask_b32 {v(o+1)}, {v(b+1)}, {v(b+3)}, s[20:21]')
        a(f'v_cndmask_b32 {v(o+2)}, {v(b+2)}, {v(b)}, s[20:21]')
        a(f'v_cndmask_b32 {v(o+3)}, {v(b+3)}, {v(b+1)}, s[20:21]')
        a(f'buffer_store_dwordx4 {v(o,4)}, v8, s[4:7], s{15 + j//4} offen offset:{1024*(j&3)} sc1')
    a(f'''
    s_waitcnt vmcnt(0)
    s_barrier
    s_cmp_lg_u32 s3, 0
    s_cbranch_scc1 ln_sig
    v_mov_b32 v2, 1
    s_mov_b64 exec, 1
    s_cmp_ge_u32 {s(swk)}, {0 if a.cln else 8}
    s_cbranch_scc1 ln_sb
    buffer_atomic_add v2, off, {s(SRD_DBG,4)}, 0 offset:{DBG_INITA} sc1
    ''')
    a.label('ln_sb')
    a(f'''
    buffer_atomic_add v2, off, {s(SRD_DBG,4)}, 0 offset:{DBG_INIT} sc1
    s_mov_b64 exec, -1
    s_branch ln_sig
    ''')
    a.label('ln_touch')
    if a.cln:
        a(f's_lshl_b32 s16, {s(swk)}, 2')
        a('s_add_u32 s16, s16, s3')
        a('s_sub_u32 s16, s16, 4')
        ln2 = emit_row_ln(a, 16, 8, 17, 18)
        a('''
        v_mov_b32 v64, 2048
        v_mov_b32 v65, 0
        ds_write_b32 v64, v65
        s_waitcnt lgkmcnt(0)
        s_barrier
        s_waitcnt vmcnt(0)
        ''')
        ln2()
        a(f'''
        v_mov_b32 v65, 1
        s_waitcnt vmcnt(0)
        s_mov_b64 exec, 1
        ds_add_rtn_u32 v66, v64, v65
        s_waitcnt lgkmcnt(0)
        v_readfirstlane_b32 s17, v66
        s_cmp_lg_u32 s17, 3
        s_cbranch_scc1 ln_r2
        buffer_atomic_add v65, off, {s(SRD_DBG,4)}, 0 offset:{DBG_INITA} sc1
        ''')
        a.label('ln_r2')
        a('s_mov_b64 exec, -1')
    touch()
    if a.cln:
        a(f's_cmp_lt_u32 {s(swk)}, 32')
        a('s_cbranch_scc1 ln_sig')
    a('s_barrier'); a('s_barrier'); a('s_barrier')
    if a.cln:
        a('s_branch ln_sig')
        a.label('ln_short')
        a(f'''
        s_barrier
        s_cmp_lg_u32 s3, 0
        s_cbranch_scc1 ln_sig
        v_mov_b32 v14, 0
        v_mov_b32 v2, 1
        s_lshl_b32 s13, {s(swk)}, 7
        s_add_u32 s13, s13, {WS_CNT}
        v_lshlrev_b32 v13, 2, v0
        s_mov_b32 exec_hi, 0
        buffer_store_dword v14, v13, s[4:7], s13 offen sc1
        s_waitcnt vmcnt(0)
        s_mov_b64 exec, 1
        buffer_atomic_add v2, off, {s(SRD_DBG,4)}, 0 offset:{DBG_INIT} sc1
        s_mov_b64 exec, -1
        ''')
    a.label('ln_sig')

def emit_row_ln(a, s_row, srd, t0, t1):
    P, Fl, T = 24, 32, 48
    a(f"""
    s_load_dwordx2 {s(srd,2)}, s[0:1], {KA_X}
    s_mov_b32 {s(srd+2)}, {4*MB}
    s_mov_b32 {s(srd+3)}, {SRD3}
    v_and_b32 v20, 63, v0
    v_lshlrev_b32 v21, 4, v20
    s_lshl_b32 {s(t0)}, {s(s_row)}, 11
    s_waitcnt lgkmcnt(0)
    buffer_load_dwordx4 {v(P,4)}, v21, {s(srd,4)}, {s(t0)} offen
    buffer_load_dwordx4 {v(P+4,4)}, v21, {s(srd,4)}, {s(t0)} offen offset:1024
    """)
    return lambda: _row_ln2(a, s_row, t0, t1, P, Fl, T)

def _row_ln2(a, s_row, t0, t1, P, Fl, T):
    a(f"""
    v_lshrrev_b32 v22, 2, v20
    v_lshlrev_b32 v22, 10, v22
    v_and_b32 v23, 3, v20
    v_lshl_add_u32 v22, v23, 8, v22
    v_and_b32 v23, 1, v20
    v_cmp_eq_u32 vcc, 1, v23
    s_lshr_b32 {s(t0)}, {s(s_row)}, 4
    s_lshl_b32 {s(t0)}, {s(t0)}, 15
    s_and_b32 {s(t1)}, {s(s_row)}, 15
    s_lshl_b32 {s(t1)}, {s(t1)}, 4
    s_add_u32 {s(t0)}, {s(t0)}, {s(t1)}
    s_add_u32 {s(t1)}, {s(t0)}, 16384
    """)
    for d in range(8):
        a(f'v_lshlrev_b32 {v(Fl+2*d)}, 16, {v(P+d)}')
        a(f'v_and_b32 {v(Fl+2*d+1)}, 0xffff0000, {v(P+d)}')
    def wave_sum():
        n = 8
        while n > 1:
            n //= 2
            for i in range(n): a(f'v_add_f32 {v(T+i)}, {v(T+i)}, {v(T+n+i)}')
        for r in (1, 2, 4, 8):
            a('s_nop 1')
            a(f'v_add_f32_dpp {v(T)}, {v(T)}, {v(T)} row_ror:{r} row_mask:0xf bank_mask:0xf')
        red_gq(a, T, T + 1)
    for i in range(8): a(f'v_add_f32 {v(T+i)}, {v(Fl+i)}, {v(Fl+8+i)}')
    wave_sum()
    a(f'v_mul_f32 v21, 0x3a800000, {v(T)}')
    for i in range(8):
        a(f'v_sub_f32 {v(T+8)}, {v(Fl+i)}, v21')
        a(f'v_sub_f32 {v(T+9)}, {v(Fl+8+i)}, v21')
        a(f'v_mul_f32 {v(T+i)}, {v(T+8)}, {v(T+8)}')
        a(f'v_fmac_f32 {v(T+i)}, {v(T+9)}, {v(T+9)}')
    wave_sum()
    a(f'v_mul_f32 v23, 0x3a800000, {v(T)}')
    rnd_bf16(a, 21, 21); rnd_bf16(a, 23, 23)
    a('v_add_f32 v23, 0x3727c5ac, v23')
    rnd_bf16(a, 23, 23)
    a('v_sqrt_f32 v23, v23'); a('s_nop 0')
    rnd_bf16(a, 23, 23)
    a('v_rcp_f32 v23, v23'); a('s_nop 0')
    for d in range(8):
        a(f'v_sub_f32 {v(Fl+2*d)}, {v(Fl+2*d)}, v21')
        a(f'v_sub_f32 {v(Fl+2*d+1)}, {v(Fl+2*d+1)}, v21')
        a(f'v_cvt_pk_bf16_f32 {v(P+d)}, {v(Fl+2*d)}, {v(Fl+2*d+1)}')
        a(f'v_lshlrev_b32 {v(Fl+2*d)}, 16, {v(P+d)}')
        a(f'v_and_b32 {v(Fl+2*d+1)}, 0xffff0000, {v(P+d)}')
        a(f'v_mul_f32 {v(Fl+2*d)}, {v(Fl+2*d)}, v23')
        a(f'v_mul_f32 {v(Fl+2*d+1)}, {v(Fl+2*d+1)}, v23')
        a(f'v_cvt_pk_bf16_f32 {v(P+d)}, {v(Fl+2*d)}, {v(Fl+2*d+1)}')
    for j in range(2):
        b = P + 4 * j; o = T + 4 * j
        a(f'v_cndmask_b32 {v(o)}, {v(b)}, {v(b+2)}, vcc')
        a(f'v_cndmask_b32 {v(o+1)}, {v(b+1)}, {v(b+3)}, vcc')
        a(f'v_cndmask_b32 {v(o+2)}, {v(b+2)}, {v(b)}, vcc')
        a(f'v_cndmask_b32 {v(o+3)}, {v(b+3)}, {v(b+1)}, vcc')
        a(f'buffer_store_dwordx4 {v(o,4)}, v22, s[4:7], {s((t0, t1)[j])} offen sc1')

def emit_ln_wait(a, s_type, s_aoff, t_fh, x=''):
    if a.cln:
        a(f's_cmp_lt_u32 {s(s_aoff)}, {WS_XN + MB}')
        a(f's_cselect_b32 {s(S_EARLY)}, 1, 0')
    else:
        a(f's_cmp_eq_u32 {s(s_type)}, {t_fh}')
        a(f's_cselect_b32 {s(S_EARLY)}, {1 if a.early else 0}, 0')
        a(f's_cmp_eq_u32 {s(s_aoff)}, {WS_XN}')
        a(f's_cselect_b32 {s(S_EARLY)}, {s(S_EARLY)}, 0')
    a('s_cmp_lg_u32 s3, 0')
    a(f's_cbranch_scc1 lnw{x}_ok')
    a(f's_cmp_eq_u32 {s(S_EARLY)}, 0')
    a(f's_cbranch_scc1 lnw{x}_full')
    emit_wait_init(a, f'lnwa{x}', 20, 68, 69, DBG_INITA, 128 if a.cln else 8)
    a(f's_branch lnw{x}_ok')
    a.label(f'lnw{x}_full')
    emit_wait_init(a, f'lnw{x}', 20, 68, 69)
    a('s_barrier')

def emit_drain_hook(a):
    a(f's_cmp_eq_u32 {s(S_EARLY)}, 0')
    a('s_cbranch_scc1 drw_ok')
    a(f's_mov_b32 {s(S_EARLY)}, 0')
    a('s_cmp_lg_u32 s3, 0')
    a('s_cbranch_scc1 drw_ok')
    a('v_readfirstlane_b32 s68, v22')
    a('s_cmp_ge_u32 s68, 128')
    a('s_cbranch_scc1 drw_ok')
    emit_wait_init(a, 'drw', 20, 68, 69)

def emit_wait_init(a, tag, vt, st, sto, off=DBG_INIT, tgt=128):
    a(f's_mov_b32 {s(sto)}, {TIMEOUT}')
    a.label(tag)
    a(f'''
    buffer_load_dword {v(vt)}, off, {s(SRD_DBG,4)}, 0 offset:{off} sc1
    s_waitcnt vmcnt(0)
    v_readfirstlane_b32 {s(st)}, {v(vt)}
    s_cmp_ge_u32 {s(st)}, {tgt}
    s_cbranch_scc1 {tag}_ok
    s_sleep 8
    s_sub_u32 {s(sto)}, {s(sto)}, 1
    s_cbranch_scc0 {tag}
    ''')
    a.label(tag + '_ok')


def silu8(a, gs, n, T):
    g0, g1 = gs[0], gs[1]
    for d in range(n):
        a(f'v_lshlrev_b32 {v(T+2*d)}, 16, {v(g0+d)}')
        a(f'v_and_b32 {v(T+2*d+1)}, 0xffff0000, {v(g0+d)}')
        for g in gs[1:]:
            a(f'v_lshlrev_b32 {v(g0+d)}, 16, {v(g+d)}')
            a(f'v_and_b32 {v(g+d)}, 0xffff0000, {v(g+d)}')
            a(f'v_add_f32 {v(T+2*d)}, {v(T+2*d)}, {v(g0+d)}')
            a(f'v_add_f32 {v(T+2*d+1)}, {v(T+2*d+1)}, {v(g+d)}')
        a(f'v_cvt_pk_bf16_f32 {v(g0+d)}, {v(T+2*d)}, {v(T+2*d+1)}')
        a(f'v_lshlrev_b32 {v(T+2*d)}, 16, {v(g0+d)}')
        a(f'v_and_b32 {v(T+2*d+1)}, 0xffff0000, {v(g0+d)}')
        a(f'v_mul_f32 {v(g0+d)}, s89, {v(T+2*d)}')
        a(f'v_mul_f32 {v(g1+d)}, s89, {v(T+2*d+1)}')
    for d in range(n):
        a(f'v_exp_f32 {v(g0+d)}, {v(g0+d)}')
        a(f'v_exp_f32 {v(g1+d)}, {v(g1+d)}')
    a('s_nop 0')
    for d in range(n):
        a(f'v_add_f32 {v(g0+d)}, 1.0, {v(g0+d)}')
        a(f'v_add_f32 {v(g1+d)}, 1.0, {v(g1+d)}')
    for d in range(n):
        a(f'v_rcp_f32 {v(g0+d)}, {v(g0+d)}')
        a(f'v_rcp_f32 {v(g1+d)}, {v(g1+d)}')
    a('s_nop 0')
    for d in range(n):
        a(f'v_mul_f32 {v(T+2*d)}, {v(T+2*d)}, {v(g0+d)}')
        a(f'v_mul_f32 {v(T+2*d+1)}, {v(T+2*d+1)}, {v(g1+d)}')
        a(f'v_cvt_pk_bf16_f32 {v(g0+d)}, {v(T+2*d)}, {v(T+2*d+1)}')

def finish(a, A, G, X, O, n, t):
    for d in range(n):
        a(f'v_cvt_pk_bf16_f32 {v(t)}, {v(A+2*d)}, {v(A+2*d+1)}')
        a(f'v_lshlrev_b32 {v(A+2*d)}, 16, {v(t)}')
        a(f'v_and_b32 {v(A+2*d+1)}, 0xffff0000, {v(t)}')
        a(f'v_lshlrev_b32 {v(t)}, 16, {v(G+d)}')
        a(f'v_and_b32 {v(t+1)}, 0xffff0000, {v(G+d)}')
        a(f'v_mul_f32 {v(A+2*d)}, {v(A+2*d)}, {v(t)}')
        a(f'v_mul_f32 {v(A+2*d+1)}, {v(A+2*d+1)}, {v(t+1)}')
        a(f'v_cvt_pk_bf16_f32 {v(t)}, {v(A+2*d)}, {v(A+2*d+1)}')
        a(f'v_lshlrev_b32 {v(A+2*d)}, 16, {v(t)}')
        a(f'v_and_b32 {v(A+2*d+1)}, 0xffff0000, {v(t)}')
        a(f'v_lshlrev_b32 {v(t)}, 16, {v(X+d)}')
        a(f'v_and_b32 {v(t+1)}, 0xffff0000, {v(X+d)}')
        a(f'v_add_f32 {v(A+2*d)}, {v(A+2*d)}, {v(t)}')
        a(f'v_add_f32 {v(A+2*d+1)}, {v(A+2*d+1)}, {v(t+1)}')
        a(f'v_cvt_pk_bf16_f32 {v(O+d)}, {v(A+2*d)}, {v(A+2*d+1)}')

def emit_fin(a, s_type, s_a, s_b, t_tail, done, s_otgt, s_four):
    a(f"""
    s_load_dwordx2 s[8:9], s[0:1], {KA_X}
    s_load_dwordx2 s[12:13], s[0:1], {KA_OUT}
    v_mbcnt_lo_u32_b32 v1, -1, 0
    v_mbcnt_hi_u32_b32 v1, -1, v1
    s_mov_b32 s10, {4*MB}
    s_mov_b32 s11, {SRD3}
    s_mov_b32 s14, {4*MB}
    s_mov_b32 s15, {SRD3}
    s_mov_b32 s89, 0xbfb8aa3b
    v_lshlrev_b32 v3, 4, v1
    v_and_b32 v4, 15, v1
    v_lshrrev_b32 v5, 4, v1
    v_lshlrev_b32 v4, 11, v4
    v_lshl_add_u32 v4, v5, 4, v4
    v_and_b32 v5, 1, v5
    v_cmp_eq_u32 s[76:77], 1, v5
    v_and_b32 v6, 3, v1
    v_lshlrev_b32 v6, 7, v6
    s_mov_b32 s80, {s(s_a)}
    s_lshl_b32 s81, {s(s_b)}, 2
    s_and_b32 s82, s3, 3
    s_add_u32 s81, s81, s82
    s_lshr_b32 s82, s3, 2               ; rb & 1
    s_mov_b32 s84, {TIMEOUT}
    s_mov_b32 s85, {CS_TAB}
    s_waitcnt lgkmcnt(0)
    s_cmp_eq_u32 {s(s_type)}, {t_tail}
    s_cbranch_scc1 fin_tail
    """)
    a.label('fin_job')
    a(f"""
    s_lshl_b32 s72, s80, 1
    s_add_u32 s72, s72, s82             ; rb
    s_lshl_b32 s74, s72, 15
    s_lshl_b32 s73, s81, 11
    s_add_u32 s73, s73, s74             ; F offset
    s_lshl_b32 s75, s81, 7
    s_add_u32 s74, s74, s75
    s_add_u32 s78, s73, {WS_GG}
    s_add_u32 s79, s73, {WS_SP}
    s_lshr_b32 s83, s80, 3
    s_lshl_b32 s83, s83, 6
    s_add_u32 s83, s83, {CD_TAB}
    s_add_u32 s87, s80, 1
    """)
    for b in range(2):
        a(f'buffer_load_dwordx4 {v(88+4*b,4)}, v4, s[8:11], s74 offen offset:{64*b}')
    a('s_cmp_lg_u32 s3, 0')
    a('s_cbranch_scc1 fin_ws_ok')
    a.label('fin_wd')
    a(f"""
    buffer_load_dwordx2 v[8:9], off, s[4:7], s83 sc1
    s_waitcnt vmcnt(0)
    v_readfirstlane_b32 s86, v8
    v_readfirstlane_b32 s88, v9
    s_cmp_ge_u32 s88, {s(s_otgt)}
    s_cselect_b32 s86, s86, 0
    s_cmp_ge_u32 s86, 16
    s_cbranch_scc1 fin_wd2
    s_sleep 64
    s_sub_u32 s84, s84, 1
    s_cbranch_scc0 fin_wd
    s_mov_b32 s84, 0
    """)
    a.label('fin_wd2')
    a(f's_cmp_lg_u32 {s(s_otgt)}, 0')
    a('s_cbranch_scc1 fin_ws_ok')
    a.label('fin_ws')
    a(f"""
    buffer_load_dword v7, v6, s[4:7], s85 offen sc1
    s_waitcnt vmcnt(0)
    v_cmp_gt_u32 vcc, s87, v7
    s_cbranch_vccz fin_ws_ok
    s_sleep {a.fin_sleep}
    s_sub_u32 s86, s87, 2
    v_cmp_gt_i32 vcc, s86, v7
    s_cbranch_vccz fin_ws_f
    s_sleep 64
    s_sub_u32 s86, s87, 6
    v_cmp_gt_i32 vcc, s86, v7
    s_cbranch_vccz fin_ws_f
    s_sleep 127
    s_sleep 127
    """)
    a.label('fin_ws_f')
    a(f"""
    s_sub_u32 s84, s84, 1
    s_cbranch_scc0 fin_ws
    s_mov_b32 s84, 0
    """)
    a.label('fin_ws_ok')
    a.fin_claim()
    a('s_barrier')
    a(f's_cmp_gt_u32 {s(s_type)}, {t_tail}')
    a('s_cbranch_scc1 fin_wide')
    for k in range(4):
        for b in range(2):
            a(f'buffer_load_dwordx4 {v(136+8*k+4*b,4)}, v3, s[4:7], s78 offen offset:{1024*b} sc1')
        a(f's_add_u32 s78, s78, {4*MB}')
    for g in range(8):
        if g == 4:
            a(f's_cmp_lg_u32 {s(s_four)}, 0')
            a('s_cbranch_scc1 fin_4p')
        for b in range(2):
            a(f'buffer_load_dwordx4 {v(16+(b*8+g)*4,4)}, v3, s[4:7], s79 offen offset:{1024*b} sc1')
        a(f's_add_u32 s79, s79, {4*MB}')
    a('s_waitcnt vmcnt(16)')
    a('s_branch fin_8p')
    a.label('fin_4p')
    for b in range(2):
        for i in range(16): a(f'v_mov_b32 {v(16+(b*8+4)*4+i)}, 0')
    a('s_waitcnt vmcnt(8)')
    a.label('fin_8p')
    for b in range(2): silu8(a, [136 + 8 * k + 4 * b for k in range(4)], 4, 120)
    a('s_waitcnt vmcnt(0)')
    def combine(b):
        A = 96
        for d in range(4):
            r = 16 + b * 32 + d
            a(f'v_lshlrev_b32 {v(A+2*d)}, 16, {v(r)}')
            a(f'v_and_b32 {v(A+2*d+1)}, 0xffff0000, {v(r)}')
        for g in range(1, 8):
            for d in range(4):
                r = 16 + (b * 8 + g) * 4 + d
                a(f'v_lshlrev_b32 {v(120+2*d)}, 16, {v(r)}')
                a(f'v_and_b32 {v(121+2*d)}, 0xffff0000, {v(r)}')
            for e in range(8):
                a(f'v_add_f32 {v(A+e)}, {v(A+e)}, {v(120+e)}')
        X = 88 + 4 * b
        a(f'v_cndmask_b32 v108, {v(X)}, {v(X+2)}, s[76:77]')
        a(f'v_cndmask_b32 v109, {v(X+1)}, {v(X+3)}, s[76:77]')
        a(f'v_cndmask_b32 v110, {v(X+2)}, {v(X)}, s[76:77]')
        a(f'v_cndmask_b32 v111, {v(X+3)}, {v(X+1)}, s[76:77]')
        finish(a, A, 136 + 4 * b, 108, 112, 4, 104)
        O = 128 + 4 * b
        a(f'v_cndmask_b32 {v(O)}, v112, v114, s[76:77]')
        a(f'v_cndmask_b32 {v(O+1)}, v113, v115, s[76:77]')
        a(f'v_cndmask_b32 {v(O+2)}, v114, v112, s[76:77]')
        a(f'v_cndmask_b32 {v(O+3)}, v115, v113, s[76:77]')
        a(f'buffer_store_dwordx4 {v(O,4)}, v4, s[12:15], s74 offen offset:{64*b}')
    for b in range(2): combine(b)
    if a.wprof:
        import k_gemm5
        a('s_waitcnt vmcnt(0)')
        k_gemm5.prof_stamp(a, 1)
    a(f's_branch {done}')
    import k_chain5 as C
    a.label('fin_wide')
    a(f"""
    s_and_b32 s81, s3, 3
    s_lshl_b32 s74, s72, 15
    s_lshl_b32 s73, s81, 13
    s_add_u32 s73, s73, s74
    s_lshl_b32 s75, s81, 9
    s_add_u32 s74, s74, s75
    s_mov_b32 s75, s74
    s_add_u32 s78, s73, {WS_GG}
    s_add_u32 s79, s73, {WS_SP}
    v_and_b32 v8, 15, v1
    v_lshrrev_b32 v9, 4, v1
    v_lshlrev_b32 v10, 22, v9
    v_lshl_add_u32 v10, v8, 4, v10
    v_lshrrev_b32 v11, 1, v9
    v_xor_b32 v9, v9, v11
    v_and_b32 v9, 1, v9
    v_lshlrev_b32 v8, 11, v8
    v_lshl_add_u32 v8, v11, 4, v8
    v_lshl_add_u32 v8, v9, 3, v8
    """)
    SEL0, SEL1 = 12, 16
    C.sel_init(a, SEL0, 1, 20, 21)
    a('s_nop 1')
    for d in range(4): a(f'v_mov_b32_dpp {v(SEL1+d)}, {v(SEL0+d)} row_ror:8 row_mask:0xf bank_mask:0xf')
    base = lambda b: 64 + 36 * (b & 3)
    def loads(b):
        R = base(b)
        for gq in range(4): a(f'buffer_load_dwordx4 {v(R+4*gq,4)}, v10, s[4:7], s78 offen offset:{256*gq} sc1')
        for gq in range(4): a(f'buffer_load_dwordx4 {v(R+16+4*gq,4)}, v10, s[4:7], s79 offen offset:{256*gq} sc1')
        for h in range(2): a(f'buffer_load_dwordx2 {v(R+32+2*h,2)}, v8, s[8:11], s74 offen offset:{32*h}')
        a('s_add_u32 s78, s78, 1024'); a('s_add_u32 s79, s79, 1024'); a('s_add_u32 s74, s74, 64')
    for b in range(4): loads(b)
    for b in range(8):
        R = base(b); G_, S_, T_ = 24, 32, 40
        newer = 10 * min(3, 7 - b) + 2 * min(b, 3)
        a(f's_waitcnt vmcnt({newer})')
        for acc, src in ((G_, R), (S_, R + 16)):
            for h in range(2):
                a(f'v_mfma_f32_16x16x32_bf16 {v(acc+4*h,4)}, {v(SEL0,4)}, {v(src+8*h,4)}, 0')
                a(f'v_mfma_f32_16x16x32_bf16 {v(acc+4*h,4)}, {v(SEL1,4)}, {v(src+8*h+4,4)}, {v(acc+4*h,4)}')
        a('s_nop 2')
        for d in range(4):
            a(f'v_cvt_pk_bf16_f32 {v(T_+d)}, {v(G_+2*d)}, {v(G_+2*d+1)}')
            a(f'v_lshlrev_b32 {v(G_+2*d)}, 16, {v(T_+d)}')
            a(f'v_and_b32 {v(G_+2*d+1)}, 0xffff0000, {v(T_+d)}')
        for e in range(8): a(f'v_mul_f32 {v(T_+e)}, s89, {v(G_+e)}')
        for e in range(8): a(f'v_exp_f32 {v(T_+e)}, {v(T_+e)}')
        for e in range(8): a(f'v_add_f32 {v(T_+e)}, 1.0, {v(T_+e)}')
        for e in range(8): a(f'v_rcp_f32 {v(T_+e)}, {v(T_+e)}')
        for e in range(8): a(f'v_mul_f32 {v(G_+e)}, {v(G_+e)}, {v(T_+e)}')
        for d in range(4): a(f'v_cvt_pk_bf16_f32 {v(T_+d)}, {v(G_+2*d)}, {v(G_+2*d+1)}')
        O = 52 + 4 * (b & 1)
        finish(a, S_, T_, R + 32, O, 4, 48)
        for h in range(2): a(f'buffer_store_dwordx2 {v(O+2*h,2)}, v8, s[12:15], s75 offen offset:{32*h}')
        a('s_add_u32 s75, s75, 64')
        if b + 4 < 8: loads(b + 4)
    if a.wprof:
        import k_gemm5
        a('s_waitcnt vmcnt(0)')
        k_gemm5.prof_stamp(a, 1)
    a(f's_branch {done}')
    a.label('fin_tail')
    a(f"""
    s_mov_b32 s81, {s(s_b)}
    s_lshl_b32 s81, s81, 2
    s_and_b32 s82, s3, 3
    s_add_u32 s81, s81, s82             ; blk 0..63
    s_lshr_b32 s82, s81, 5
    s_and_b32 s81, s81, 31              ; cb
    s_lshl_b32 s72, s80, 1
    s_add_u32 s72, s72, s82             ; rb
    s_lshl_b32 s74, s72, 15
    s_lshl_b32 s73, s81, 10
    s_add_u32 s73, s73, s74
    s_lshl_b32 s75, s81, 6
    s_add_u32 s74, s74, s75
    s_add_u32 s78, s73, {WS_GG}
    s_add_u32 s79, s73, {WS_SP}
    s_mov_b32 s83, {CD_TAB + 7 * 64}
    s_mov_b32 s84, {TIMEOUT}
    s_min_u32 s87, s80, 62
    v_and_b32 v8, 7, v1
    v_lshlrev_b32 v8, 22, v8
    s_cmp_lg_u32 s3, 0
    s_cbranch_scc1 ft_ok
    """)
    a.label('ft_wd')
    a(f"""
    buffer_load_dword v7, off, s[4:7], s83 sc1
    s_waitcnt vmcnt(0)
    v_readfirstlane_b32 s86, v7
    s_cmp_ge_u32 s86, 16
    s_cbranch_scc1 ft_wdok
    s_sleep 32
    s_sub_u32 s84, s84, 1
    s_cbranch_scc0 ft_wd
    s_mov_b32 s84, 0
    """)
    a.label('ft_wdok')
    a.label('ft_ok')
    a(f"""
    s_barrier
    s_cmp_ge_u32 s3, 4
    s_cbranch_scc1 {done}
    buffer_load_dwordx4 v[88:91], v4, s[8:11], s74 offen
    """)
    for k in range(4):
        a(f'buffer_load_dwordx4 {v(136+8*k,4)}, v3, s[4:7], s78 offen sc1')
        a(f's_add_u32 s78, s78, {4*MB}')
    if a.ctch: vcode_touch(a, 'ft_l0', 10, 72, 3, 9, 10)
    a('s_waitcnt vmcnt(0)')
    silu8(a, [136 + 8 * k for k in range(4)], 4, 120)
    a.label('ft_ws')
    a(f"""
    buffer_load_dword v7, v6, s[4:7], s85 offen sc1
    s_waitcnt vmcnt(0)
    v_cmp_gt_u32 vcc, s87, v7
    s_cbranch_vccz ft_p
    s_sleep {a.fin_sleep}
    v_cmp_gt_u32 vcc, 59, v7
    s_cbranch_vccz ft_wsf
    s_sleep 64
    v_cmp_gt_u32 vcc, 56, v7
    s_cbranch_vccz ft_wsf
    s_sleep 127
    s_sleep 127
    """)
    a.label('ft_wsf')
    a(f"""
    s_sub_u32 s84, s84, 1
    s_cbranch_scc0 ft_ws
    s_mov_b32 s84, 0
    """)
    a.label('ft_p')
    a(f"""
    buffer_load_dword v7, v8, s[4:7], s79 offen offset:1008 sc1
    s_waitcnt vmcnt(0)
    v_cmp_eq_u32 vcc, -1, v7
    s_cbranch_vccz ft_l0
    s_sleep {a.ft_sleep}
    s_sub_u32 s84, s84, 1
    s_cbranch_scc0 ft_p
    s_mov_b32 s84, 0
    """)
    a.label('ft_l0')
    a.fin_claim()
    a.label('ft_l')
    a('s_mov_b32 s86, s79')
    for g in range(8):
        a(f'buffer_load_dwordx4 {v(16+g*4,4)}, v3, s[4:7], s86 offen sc1')
        if g < 7: a(f's_add_u32 s86, s86, {4*MB}')
    a('s_waitcnt vmcnt(0)')
    a('v_max3_u32 v7, v16, v20, v24')
    a('v_max3_u32 v7, v7, v28, v32')
    a('v_max3_u32 v7, v7, v36, v40')
    a('v_max_u32 v7, v7, v44')
    a(f"""
    v_cmp_eq_u32 vcc, -1, v7
    s_cbranch_vccz ft_go
    s_sub_u32 s84, s84, 1
    s_cbranch_scc0 ft_l
    """)
    a.label('ft_go')
    combine(0)
    if a.wprof:
        import k_gemm5
        a('s_waitcnt vmcnt(0)')
        k_gemm5.prof_stamp(a, 1)
    a(f's_branch {done}')
```

```python
from asmlib import *
from layout4 import *

S_W = 3
SRD_WS = 4
SRD_B0 = 8
SRD_B1 = 12
S_A0, S_A1, S_B0, S_B1, S_BSTEP = 16, 17, 18, 19, 20
S_MA, S_MB = 21, 22
S_LEFT = 23
S_TAB = 24
S_WM, S_WN = 26, 27
S_PEND = 28
S_T0, S_T1, S_T2, S_T3 = 29, 30, 31, 56
S_ND = 32
S_CT, S_COUT, S_CSTR, S_CSIG = 48, 49, 50, 51
S_RDY = 52
S_K0, S_K1 = 54, 55
S_PF = 58
D_TYPE, D_KB0, D_KB1, D_LDB, D_B0, D_B1, D_BSZ, D_A, D_ASTR, D_NB, D_OUT, D_OSTR, D_WAIT, D_WTGT, D_SIG, D_X = range(16)
T_END, T_F, T_GLU, T_SILU, T_FH, T_ATT, T_FIN, T_FINT = 0, 1, 2, 3, 4, 5, 6, 7
S_ASTEP = 62
S_QH, S_JI = 71, 59
V_NX = 26
LDS_NX = 131072 + 64
V_L16, V_OFFB, V_SWZ, V_GQ, V_AA, V_AAH = 1, 2, 3, 4, 5, 6
V_AW = 8
V_POLL, V_ZERO, V_ONE, V_L16B, V_FLAG = 16, 17, 18, 19, 7
V_TMP = 20
SETS = [(32, 64), (80, 112)]
ACC = 128
LDS_FLAG = 131072
GEMM_LDS = 131072 + 256

NTA = ''
NTB = ''
ENT = ''
def acc(i, t):
    return ACC + (i * 4 + t) * 4

def emit_worker_init(a):
    a(f'''
    v_and_b32 v20, 63, v0
    v_lshlrev_b32 {v(V_L16)}, 4, v20
    v_add_u32 {v(V_L16B)}, 0x1000, {v(V_L16)}
    v_lshrrev_b32 {v(V_GQ)}, 4, v20
    v_mov_b32 {v(V_ZERO)}, 0
    v_mov_b32 {v(V_ONE)}, 1
    s_lshr_b32 {s(S_WM)}, {s(S_W)}, 2
    s_and_b32 {s(S_WN)}, {s(S_W)}, 3
    s_lshl_b32 {s(S_MA)}, {s(S_W)}, 11
    s_lshl_b32 {s(S_MB)}, {s(S_W)}, 10
    s_add_u32 {s(S_MB)}, {s(S_MB)}, 16384
    s_mov_b32 {s(SRD_B0+3)}, {SRD3}
    s_mov_b32 {s(SRD_B1+3)}, {SRD3}
    s_mov_b32 {s(S_PEND)}, 0
    ''')
    a(f'''
    v_and_b32 v21, 15, v20
    v_lshlrev_b32 v22, 2, {v(V_GQ)}
    v_xor_b32 v21, v21, v22
    s_lshr_b32 {s(S_T1)}, {s(S_W)}, 1
    s_and_b32 {s(S_T1)}, {s(S_T1)}, 1
    v_xor_b32 v21, {s(S_T1)}, v21
    v_lshlrev_b32 {v(V_SWZ)}, 4, v21
    ''')
    a(f'''
    s_lshl_b32 {s(S_T1)}, {s(S_WM)}, 13
    v_add_u32 {v(V_AA)}, {s(S_T1)}, {v(V_L16)}
    v_add_u32 {v(V_AAH)}, 0x10000, {v(V_AA)}
    ''')
    a(f'''
    v_bfe_u32 v21, v20, 2, 2          ; r
    v_and_b32 v22, 3, v20             ; c
    v_and_b32 v23, 1, {v(V_GQ)}       ; gq&1
    v_xor_b32 v24, {s(S_WN)}, v21     ; p^r
    v_xor_b32 v25, v22, v23           ; c^(gq&1)
    v_lshl_add_u32 v24, v24, 2, v25   ; unit
    v_lshlrev_b32 v24, 4, v24         ; unit*16
    v_lshl_add_u32 v25, {v(V_GQ)}, 3, v21   ; 8gq + r
    v_lshl_add_u32 v24, v25, 8, v24
    v_and_b32 v22, 1, v22             ; c&1
    ''')
    for T in range(2):
        for hh in range(2):
            d = V_AW + T * 2 + hh
            a(f'v_xor_b32 v25, {hh}, v23')
            a(f'v_lshl_add_u32 {v(d)}, v25, 10, v24')
            a(f'v_xor_b32 v25, {T}, v22')
            a(f'v_lshl_add_u32 {v(d)}, v25, 3, {v(d)}')
            a(f'v_add_u32 {v(d+4)}, 0x10000, {v(d)}')
    a(f'''
    s_lshl_b32 {s(S_T1)}, {s(S_W)}, 2
    s_add_u32 {s(S_T1)}, {s(S_T1)}, {LDS_FLAG}
    v_mov_b32 {v(V_FLAG)}, {s(S_T1)}
    ''')

def dma_group(slot):
    base = slot * 32768
    items = []
    items.append([f's_add_u32 m0, {s(S_MA)}, {base}', 's_nop 0',
                  f'buffer_load_dwordx4 {v(V_L16)}, {s(SRD_WS,4)}, {s(S_A0)} offen sc1{NTA} lds',
                  f's_add_u32 {s(S_A0)}, {s(S_A0)}, {s(S_ASTEP)}'])
    items.append([f's_add_u32 m0, {s(S_MA)}, {base+1024}', 's_nop 0',
                  f'buffer_load_dwordx4 {v(V_L16)}, {s(SRD_WS,4)}, {s(S_A1)} offen sc1{NTA} lds',
                  f's_add_u32 {s(S_A1)}, {s(S_A1)}, {s(S_ASTEP)}'])
    items.append([f's_add_u32 m0, {s(S_MB)}, {base}', 's_nop 0',
                  f'buffer_load_dwordx4 {v(V_OFFB)}, {s(SRD_B0,4)}, {s(S_B0)} offen{NTB} lds',
                  f's_add_u32 {s(S_B0)}, {s(S_B0)}, {s(S_BSTEP)}'])
    items.append([f's_add_u32 m0, {s(S_MB)}, {base+8192}', 's_nop 0',
                  f'buffer_load_dwordx4 {v(V_OFFB)}, {s(SRD_B1,4)}, {s(S_B1)} offen{NTB} lds',
                  f's_add_u32 {s(S_B1)}, {s(S_B1)}, {s(S_BSTEP)}'])
    return items

def frag_reads(slot, fset):
    av, wv = SETS[fset]
    hi = slot >> 1
    base = (slot & 1) * 32768
    items = []
    for hf in range(2):
        for T in range(2):
            t = hf * 2 + T
            for hh in range(2):
                ad = V_AW + hi * 4 + T * 2 + hh
                items.append([f'ds_read_b64_tr_b16 {v(wv+4*t+2*hh,2)}, {v(ad)} offset:{base+16384+hf*8192}'])
    for i in range(8):
        items.append([f'ds_read_b128 {v(av+4*i,4)}, {v(V_AAH if hi else V_AA)} offset:{base+i*1024}'])
    return items

def iteration(a, q, vm, zero_c=False, extra_after_barrier=None, poll=False, mt=8, full_reads=False):
    cur = q & 1
    av, wv = SETS[cur]
    a(f's_waitcnt vmcnt({vm})')
    a('s_barrier')
    if extra_after_barrier:
        extra_after_barrier()
    mf = []
    if mt == 8:
        for i in range(8):
            for t in range(4):
                c = '0' if zero_c else v(acc(i, t), 4)
                mf.append(f'v_mfma_f32_16x16x32_bf16 {v(acc(i,t),4)}, {v(wv+4*t,4)}, {v(av+4*i,4)}, {c}')
    else:
        for kc in range(2):
            for i in range(4):
                for T in range(2):
                    c = '0' if (zero_c and kc == 0) else v(acc(i, T), 4)
                    mf.append(f'v_mfma_f32_16x16x32_bf16 {v(acc(i,T),4)}, {v(wv+4*(2*kc+T),4)}, {v(av+4*(2*i+kc),4)}, {c}')
    reads = frag_reads((q + 1) & 3, cur ^ 1)
    dmas = dma_group(q)
    if poll:
        a(f'buffer_load_dword {v(V_POLL)}, {v(V_ZERO)}, {s(SRD_WS,4)}, {s(S_ND+D_WAIT)} offen sc1')
    seq = []
    ri = 0; di = 0
    if mt == 4:
        for d in dmas[:4]: seq.extend(d)
        di = 4
    gdp, gde, grs, gr0 = (getattr(a, n, d) for n, d in (('gdp', 17), ('gde', 3), ('grs', 1), ('gr0', 0)))
    for k, m in enumerate(mf):
        seq.append(m)
        if mt == 4:
            if ri < len(reads): seq.extend(reads[ri]); ri += 1
            continue
        if k >= gdp and (k - gdp) % gde == 0 and di < len(dmas):
            seq.extend(dmas[di]); di += 1
        elif k >= gr0 and ri < len(reads) and (grs == 1 or (k - gr0) % 3 != 2):
            seq.extend(reads[ri]); ri += 1
    assert ri == len(reads)
    while di < len(dmas):
        seq.extend(dmas[di]); di += 1
    for ln in seq:
        a(ln)
    a('s_waitcnt lgkmcnt(0)')

def emit_loader_setup(a):
    a(f'''
    s_load_dwordx2 {s(SRD_B0,2)}, s[0:1], {s(S_ND+D_KB0)}
    s_load_dwordx2 {s(SRD_B1,2)}, s[0:1], {s(S_ND+D_KB1)}
    s_mov_b32 {s(SRD_B0+2)}, {s(S_ND+D_BSZ)}
    s_mov_b32 {s(SRD_B1+2)}, {s(S_ND+D_BSZ)}
    s_cmp_eq_u32 {s(S_ND+D_TYPE)}, {T_FH}
    s_cselect_b32 {s(S_T2)}, 0, 1
    s_lshl_b32 {s(S_T1)}, {s(S_W)}, {s(S_T2)}
    s_mul_i32 {s(S_T1)}, {s(S_T1)}, {s(S_ND+D_ASTR)}
    s_add_u32 {s(S_A0)}, {s(S_ND+D_A)}, {s(S_T1)}
    s_cmp_eq_u32 {s(S_ND+D_TYPE)}, {T_FH}
    s_cselect_b32 {s(S_T1)}, 1024, {s(S_ND+D_ASTR)}
    s_cselect_b32 {s(S_T2)}, 6, 5
    s_lshl_b32 {s(S_ASTEP)}, 32, {s(S_T2)}
    s_add_u32 {s(S_A1)}, {s(S_A0)}, {s(S_T1)}
    s_lshl_b32 {s(S_T1)}, {s(S_W)}, 2
    s_mul_i32 {s(S_T1)}, {s(S_T1)}, {s(S_ND+D_LDB)}
    s_add_u32 {s(S_B0)}, {s(S_ND+D_B0)}, {s(S_T1)}
    s_add_u32 {s(S_B1)}, {s(S_ND+D_B1)}, {s(S_T1)}
    s_lshl_b32 {s(S_BSTEP)}, {s(S_ND+D_LDB)}, {s(S_T2)}
    v_mul_u32_u24 {v(V_OFFB)}, {s(S_ND+D_LDB)}, {v(V_GQ)}
    v_add_u32 {v(V_OFFB)}, {v(V_OFFB)}, {v(V_SWZ)}
    s_waitcnt lgkmcnt(0)
    ''')

def prof_stamp(a, mark=0):
    if not getattr(a, 'wprof', False): return
    a(f'''
    s_memrealtime s[60:61]
    s_memtime s[92:93]
    s_waitcnt lgkmcnt(0)
    s_andn2_b32 s60, s60, 1
    s_or_b32 s60, s60, {mark}
    v_mov_b32 v21, s60
    v_mov_b32 v23, s92
    v_mov_b32 v27, {s(S_JI)}
    s_add_u32 s92, {s(S_PF)}, {MB}
    s_add_u32 s93, {s(S_PF)}, {2*MB}
    s_mov_b64 exec, 1
    buffer_store_dword v21, off, {s(SRD_WS,4)}, {s(S_PF)}
    buffer_store_dword v23, off, {s(SRD_WS,4)}, s92
    buffer_store_dword v27, off, {s(SRD_WS,4)}, s93
    s_mov_b64 exec, -1
    s_add_u32 {s(S_PF)}, {s(S_PF)}, 4
    ''')

def emit_adopt(a, with_load=True):
    prof_stamp(a)
    a(f'''
    s_mov_b32 {s(S_CT)}, {s(S_ND+D_TYPE)}
    s_cmp_eq_u32 {s(S_ND+D_TYPE)}, {T_FH}
    s_cselect_b32 {s(S_T1)}, 2, 3
    s_lshl_b32 {s(S_T1)}, {s(S_WM)}, {s(S_T1)}
    s_mul_i32 {s(S_T1)}, {s(S_T1)}, {s(S_ND+D_OSTR)}
    s_add_u32 {s(S_COUT)}, {s(S_ND+D_OUT)}, {s(S_T1)}
    s_mov_b32 {s(S_CSTR)}, {s(S_ND+D_OSTR)}
    s_mov_b32 {s(S_CSIG)}, {s(S_ND+D_SIG)}
    s_mov_b32 {s(S_LEFT)}, {s(S_ND+D_NB)}
    s_mov_b32 s53, {s(S_ND+D_NB)}
    ''')

def claim(a, vr):
    l = a.uid('clm')
    a(f'''
    s_cmp_lg_u32 {s(S_W)}, 0
    s_cbranch_scc1 {l}
    v_mov_b32 {v(vr)}, 1
    s_mov_b64 exec, 1
    buffer_atomic_add {v(vr)}, off, s[64:67], {s(S_QH)} sc0 sc1
    s_mov_b64 exec, -1
    ''')
    a.label(l)

def publish(a, vr):
    l = a.uid('pub')
    a(f'''
    s_cmp_lg_u32 {s(S_W)}, 0
    s_cbranch_scc1 {l}
    v_mov_b32 v20, {LDS_NX}
    s_mov_b64 exec, 1
    ds_write_b32 v20, {v(vr)}
    s_mov_b64 exec, -1
    s_waitcnt lgkmcnt(0)
    ''')
    a.label(l)

def fetch(a, nj):
    a(f'''
    v_mov_b32 v20, {LDS_NX}
    ds_read_b32 v20, v20
    s_waitcnt lgkmcnt(0)
    v_readfirstlane_b32 {s(S_JI)}, v20
    s_add_u32 {s(S_JI)}, {s(S_JI)}, 32
    s_min_u32 {s(S_JI)}, {s(S_JI)}, {nj - 1}
    s_lshl_b32 s57, {s(S_JI)}, 6
    s_load_dwordx16 {s(S_ND,16)}, {s(S_TAB,2)}, s57
    ''')

def emit_signal(a, sreg):
    l = a.uid('sig')
    a(f'''
    s_cmp_eq_u32 {s(sreg)}, 0
    s_cbranch_scc1 {l}
    s_cmp_lg_u32 {s(S_W)}, 0
    s_cbranch_scc1 {l}
    s_and_b32 s57, {s(sreg)}, 3
    v_mov_b32 v24, s57
    s_bfe_u32 s57, {s(sreg)}, 0x20002
    v_mov_b32 v25, s57
    s_andn2_b32 {s(sreg)}, {s(sreg)}, 15
    s_mov_b64 exec, 1
    buffer_atomic_add_x2 v[24:25], {v(V_ZERO)}, {s(SRD_WS,4)}, {s(sreg)} offen sc1
    s_mov_b64 exec, -1
    ''')
    a.label(l)
    a(f's_mov_b32 {s(sreg)}, 0')

def first_body(a, nst, mt=8, sq=3):
    for q in range(4):
        vm = min(8 + nst, 63) if q < sq else (4 * q if q == sq and q < 2 else 8)
        iteration(a, q, vm, zero_c=(q == 0), mt=mt,
                  extra_after_barrier=(lambda: emit_signal(a, S_PEND)) if q == sq else None)

EPI_TMP = 80

def epi_F(a, silu=False, mt=8):
    a(f's_lshl_b32 {s(S_T1)}, {s(S_WN)}, 10')
    a(f's_add_u32 {s(S_T1)}, {s(S_T1)}, {s(S_COUT)}')
    if silu:
        a(f's_mov_b32 {s(S_K0)}, 0xbfb8aa3b')
    a('s_nop 7')
    n = 0
    for i in range(mt):
        for hf in range(2 if mt == 8 else 1):
            tq = EPI_TMP + 4 * (n % 4); n += 1
            src = acc(i, 2 * hf)
            if silu:
                w = EPI_TMP + 16 + 8 * (n % 2)
                for d in range(4):
                    a(f'v_cvt_pk_bf16_f32 {v(tq+d)}, {v(src+2*d)}, {v(src+2*d+1)}')
                for d in range(4):
                    a(f'v_lshlrev_b32 {v(src+2*d)}, 16, {v(tq+d)}')
                    a(f'v_and_b32 {v(src+2*d+1)}, 0xffff0000, {v(tq+d)}')
                for e in range(8):
                    a(f'v_mul_f32 {v(w+e)}, {s(S_K0)}, {v(src+e)}')
                for e in range(8):
                    a(f'v_exp_f32 {v(w+e)}, {v(w+e)}')
                for e in range(8):
                    a(f'v_add_f32 {v(w+e)}, 1.0, {v(w+e)}')
                for e in range(8):
                    a(f'v_rcp_f32 {v(w+e)}, {v(w+e)}')
                for e in range(8):
                    a(f'v_mul_f32 {v(src+e)}, {v(src+e)}, {v(w+e)}')
            for d in range(4):
                a(f'v_cvt_pk_bf16_f32 {v(tq+d)}, {v(src+2*d)}, {v(src+2*d+1)}')
            a(f'buffer_store_dwordx4 {v(tq,4)}, {v(V_L16B if hf else V_L16)}, {s(SRD_WS,4)}, {s(S_T1)} offen sc1{ENT}')
        if i < 7:
            a(f's_add_u32 {s(S_T1)}, {s(S_T1)}, {s(S_CSTR)}')
    return 16 if mt == 8 else 4

def epi_GLU(a):
    a(f's_lshl_b32 {s(S_T1)}, {s(S_WN)}, 10')
    a(f's_add_u32 {s(S_T1)}, {s(S_T1)}, {s(S_COUT)}')
    a(f's_mov_b32 {s(S_K0)}, 0xbfb8aa3b')
    a('s_nop 7')
    for i in range(8):
        tq = EPI_TMP + 4 * (i % 4)
        w = EPI_TMP + 16 + 8 * (i % 2)
        g = acc(i, 0); u = acc(i, 2)
        for d in range(4):
            a(f'v_cvt_pk_bf16_f32 {v(tq+d)}, {v(g+2*d)}, {v(g+2*d+1)}')
        for d in range(4):
            a(f'v_lshlrev_b32 {v(w+2*d)}, 16, {v(tq+d)}')
            a(f'v_and_b32 {v(w+2*d+1)}, 0xffff0000, {v(tq+d)}')
        for e in range(8):
            a(f'v_mul_f32 {v(w+e)}, {s(S_K0)}, {v(w+e)}')
        for e in range(8):
            a(f'v_exp_f32 {v(w+e)}, {v(w+e)}')
        for e in range(8):
            a(f'v_add_f32 {v(w+e)}, 1.0, {v(w+e)}')
        for e in range(8):
            a(f'v_rcp_f32 {v(w+e)}, {v(w+e)}')
        for e in range(8):
            a(f'v_mul_f32 {v(w+e)}, {v(w+e)}, {v(u+e)}')
        for d in range(4):
            a(f'v_cvt_pk_bf16_f32 {v(tq+d)}, {v(w+2*d)}, {v(w+2*d+1)}')
        a(f'buffer_store_dwordx4 {v(tq,4)}, {v(V_L16)}, {s(SRD_WS,4)}, {s(S_T1)} offen sc1{ENT}')
        if i < 7:
            a(f's_add_u32 {s(S_T1)}, {s(S_T1)}, {s(S_CSTR)}')
    return 8

def emit_worker(a, table_label, jobs_per_worker, done_label):
    emit_worker_init(a)
    if getattr(a, 'gprio', 0):
        a(f's_cmp_ge_u32 {s(S_W)}, 4')
        a(f's_cbranch_scc{0 if a.gprio == 1 else 1} w_np')
        a('s_setprio 1')
        a.label('w_np')
    if getattr(a, 'wprof', False):
        a(f's_lshl_b32 {s(S_PF)}, {s(S_T0)}, 3')
        a(f's_add_u32 {s(S_PF)}, {s(S_PF)}, {s(S_W)}')
        a(f's_lshl_b32 {s(S_PF)}, {s(S_PF)}, 7')
        a(f's_add_u32 {s(S_PF)}, {s(S_PF)}, {WS_YP + 8*MB}')
        prof_stamp(a)
    a(f'''
    s_getpc_b64 {s(S_TAB,2)}
    s_add_u32 {s(S_TAB)}, {s(S_TAB)}, {table_label}@rel32@lo+4
    s_addc_u32 {s(S_TAB+1)}, {s(S_TAB+1)}, {table_label}@rel32@hi+12
    s_and_b32 {s(S_T2)}, {s(S_T0)}, 3
    s_mul_i32 {s(S_T1)}, {s(S_T2)}, {jobs_per_worker*64}
    s_add_u32 {s(S_TAB)}, {s(S_TAB)}, {s(S_T1)}
    s_addc_u32 {s(S_TAB+1)}, {s(S_TAB+1)}, 0
    s_lshl_b32 {s(S_QH)}, {s(S_T2)}, 2
    s_add_u32 {s(S_QH)}, {s(S_QH)}, 64
    s_lshr_b32 {s(S_JI)}, {s(S_T0)}, 2
    s_lshl_b32 {s(S_T1)}, {s(S_JI)}, 6
    s_load_dwordx16 {s(S_ND,16)}, {s(S_TAB,2)}, {s(S_T1)}
    s_waitcnt lgkmcnt(0)
    ''')
    bpre = getattr(a, 'bpre', 0)
    if bpre:
        a(f's_cmp_lg_u32 {s(S_ND+D_TYPE)}, {T_FH}')
        a('s_cbranch_scc1 w_nopre')
        emit_loader_setup(a)
        for q in range(bpre):
            for it in dma_group(q)[2:]:
                for ln in it: a(ln)
        a.pre_cold('p')
        for q in range(4):
            for it in (dma_group(q)[:2] if q < bpre else dma_group(q)):
                for ln in it: a(ln)
        a('s_branch w_adopt')
        a.label('w_nopre')
    if getattr(a, 'pre_cold', None): a.pre_cold()
    a.label('w_cold')
    a(f'''
    s_cmp_eq_u32 {s(S_ND+D_TYPE)}, {T_END}
    s_cbranch_scc1 {done_label}
    s_cmp_ge_u32 {s(S_ND+D_TYPE)}, {T_FIN}
    s_cbranch_scc1 w_fin
    ''')
    a(f's_cmp_lg_u32 {s(S_W)}, 0')
    a('s_cbranch_scc1 w_depok')
    if getattr(a, 'nodep', 0):
        a(f's_cmp_eq_u32 {s(S_ND+D_WTGT)}, 0')
        a('s_cbranch_scc1 w_depok')
    a(f's_mov_b32 {s(S_T2)}, 0x40000')
    a.label('w_waitdep')
    a(f'''
    buffer_load_dword {v(V_POLL)}, {v(V_ZERO)}, {s(SRD_WS,4)}, {s(S_ND+D_WAIT)} offen sc1
    s_waitcnt vmcnt(0)
    v_readfirstlane_b32 {s(S_T1)}, {v(V_POLL)}
    s_cmp_ge_u32 {s(S_T1)}, {s(S_ND+D_WTGT)}
    s_cbranch_scc1 w_depok
    s_sleep 16
    s_sub_u32 {s(S_T2)}, {s(S_T2)}, 1
    s_cbranch_scc0 w_waitdep
    ''')
    a.label('w_depok')
    if getattr(a, 'dbgt', False):
        a('s_mov_b32 s96, s94')
        a('s_memrealtime s[94:95]')
    a(f's_cmp_eq_u32 {s(S_ND+D_TYPE)}, {T_ATT}')
    a('s_cbranch_scc1 w_att')
    emit_loader_setup(a)
    a('s_barrier')
    for q in range(4):
        for it in dma_group(q):
            for ln in it:
                a(ln)
    a.label('w_adopt')
    emit_adopt(a)
    a('s_waitcnt vmcnt(0)')
    a('s_barrier')
    for it in frag_reads(0, 0):
        for ln in it:
            a(ln)
    a('s_waitcnt lgkmcnt(0)')
    a(f's_cmp_eq_u32 {s(S_CT)}, {T_FH}')
    a('s_cbranch_scc1 w_firstH')
    a('s_branch w_first16')
    for nst in (4, 8, 16):
        a.label(f'w_first{nst}')
        first_body(a, nst, sq=getattr(a, 'fsq', 3))
        if nst != 16:
            a('s_branch w_loop_chk')
    def loop(sfx, mt):
        a.label('w_loop_chk' + sfx)
        a(f's_sub_u32 {s(S_LEFT)}, {s(S_LEFT)}, 1')
        a.label('w_loop' + sfx)
        a(f's_cmp_gt_u32 {s(S_LEFT)}, 3')
        a(f's_cbranch_scc1 w_body{sfx}')
        a(f's_cmp_lg_u32 {s(S_LEFT)}, 3')
        a(f's_cbranch_scc1 w_l2{sfx}')
        claim(a, V_NX)
        a(f's_branch w_body{sfx}')
        a.label('w_l2' + sfx)
        a(f's_cmp_lg_u32 {s(S_LEFT)}, 2')
        a(f's_cbranch_scc1 w_l1{sfx}')
        publish(a, V_NX)
        a(f's_branch w_body{sfx}')
        a.label('w_l1' + sfx)
        a('s_waitcnt vmcnt(8)')
        hh = sfx == 'H' and getattr(a, 'hh', 0)
        if hh:
            a('v_readfirstlane_b32 s68, v22')
            a('s_cmp_ge_u32 s68, 128')
            a('s_cselect_b32 s70, 0, s70')
        a(f'''
        {'buffer_load_dword v22, off, s[64:67], 0 sc1' if sfx == 'H' and not hh else ''}
        v_readfirstlane_b32 {s(S_T1)}, {v(V_POLL)}
        s_cmp_ge_u32 {s(S_T1)}, {s(S_ND+D_WTGT)}
        s_cselect_b32 {s(S_T1)}, 0, 1
        s_or_b32 {s(S_T1)}, {s(S_T1)}, s70
        s_cmp_eq_u32 {s(S_ND+D_TYPE)}, {T_END if hh else T_FH}
        s_cselect_b32 {s(S_T1)}, 1, {s(S_T1)}
        s_sub_u32 s57, {s(S_ND+D_TYPE)}, 1
        s_cmp_ge_u32 s57, 4
        s_cselect_b32 {s(S_T1)}, 1, {s(S_T1)}
        v_mov_b32 v20, {s(S_T1)}
        ds_write_b32 {v(V_FLAG)}, v20
        s_cbranch_scc1 w_body{sfx}
        ''')
        emit_loader_setup(a)
        a.label('w_body' + sfx)
        if hh: a('buffer_load_dword v22, off, s[64:67], 0 sc1')
        for q in range(4):
            def hook():
                a(f's_cmp_lg_u32 {s(S_LEFT)}, 2')
                a(f's_cbranch_scc1 w_nf{sfx}')
                fetch(a, jobs_per_worker)
                a.label('w_nf' + sfx)
            iteration(a, q, 8, poll=(q == 1), mt=mt, full_reads=(q == 3), extra_after_barrier=hook if q == 0 else None)
        a(f'''
        s_sub_u32 {s(S_LEFT)}, {s(S_LEFT)}, 1
        s_cmp_lg_u32 {s(S_LEFT)}, 0
        s_cbranch_scc1 w_loop{sfx}
        ''')
    loop('', 8)
    a(f'''
    v_mov_b32 v20, {LDS_FLAG}
    ds_read_b128 v[24:27], v20
    ds_read_b128 v[28:31], v20 offset:16
    s_cmp_eq_u32 {s(S_CT)}, {T_GLU}
    s_cbranch_scc1 w_epi_glu
    ''')
    def tail(nst, h=False):
        a(f'''
        s_waitcnt lgkmcnt(0)
        v_or3_b32 v24, v24, v25, v26
        v_or3_b32 v28, v28, v29, v30
        v_or3_b32 v24, v24, v27, v31
        v_or_b32 v24, v24, v28
        s_mov_b32 {s(S_PEND)}, {s(S_CSIG)}
        v_readfirstlane_b32 {s(S_T1)}, v24
        s_cmp_lg_u32 {s(S_T1)}, 0
        s_cbranch_scc1 w_drain
        ''')
        emit_adopt(a)
        if h and getattr(a, 'hh', 0):
            a(f's_cmp_eq_u32 {s(S_CT)}, {T_FH}')
            a('s_cbranch_scc1 w_firstH4')
        a(f's_branch w_first{nst}')
    tail(epi_F(a))
    a.label('w_epi_glu')
    tail(epi_GLU(a))
    if getattr(a, 'hh', 0):
        a.label('w_firstH4')
        first_body(a, 4, mt=4, sq=a.hh)
        a('s_branch w_loop_chkH')
    a.label('w_firstH')
    for q in range(4):
        iteration(a, q, 8, zero_c=(q == 0), mt=4)
    loop('H', 4)
    a(f'''
    v_mov_b32 v20, {LDS_FLAG}
    ds_read_b128 v[24:27], v20
    ds_read_b128 v[28:31], v20 offset:16
    ''')
    tail(epi_F(a, mt=4), True)
    a.label('w_drain')
    a('s_waitcnt vmcnt(0)')
    a('s_barrier')
    if getattr(a, 'drain_hook', None): a.drain_hook()
    emit_signal(a, S_PEND)
    prof_stamp(a, 1)
    a('s_cmp_ge_u32 s53, 4')
    a('s_cbranch_scc1 w_cold')
    claim(a, V_NX)
    a('s_waitcnt vmcnt(0)')
    publish(a, V_NX)
    a('s_barrier')
    fetch(a, jobs_per_worker)
    a('s_waitcnt lgkmcnt(0)')
    a('s_barrier')
    a('s_branch w_cold')
    a.label('w_att')
    a(f's_cmp_lg_u32 {s(S_W)}, 0')
    a('s_cbranch_scc1 w_att_go')
    a(f's_mov_b32 {s(S_T2)}, 0x40000')
    a.label('w_att_w')
    a(f'''
    buffer_load_dwordx2 v[20:21], off, {s(SRD_WS,4)}, {s(S_ND+D_KB0)} sc1
    s_waitcnt vmcnt(0)
    v_add_u32 v20, v20, v21
    s_nop 0
    v_readfirstlane_b32 {s(S_T1)}, v20
    s_cmp_ge_u32 {s(S_T1)}, 8
    s_cbranch_scc1 w_att_go
    s_sleep 16
    s_sub_u32 {s(S_T2)}, {s(S_T2)}, 1
    s_cbranch_scc0 w_att_w
    ''')
    a.label('w_att_go')
    claim(a, 250)
    a('s_barrier')
    prof_stamp(a)
    import k_att
    k_att.emit_att(a, S_ND + D_A, S_ND + D_B0, S_W)
    a(f'''
    s_mov_b32 {s(S_PEND)}, {s(S_ND+D_SIG)}
    s_waitcnt vmcnt(0)
    s_barrier
    ''')
    emit_signal(a, S_PEND)
    prof_stamp(a, 1)
    publish(a, 250)
    a('s_barrier')
    fetch(a, jobs_per_worker)
    a('s_waitcnt lgkmcnt(0)')
    a('s_branch w_cold')
    a.label('w_fin')
    a.fin_claim = lambda: claim(a, 250)
    prof_stamp(a)
    a.fin_hook(S_ND + D_TYPE, S_ND + D_A, S_ND + D_B0, T_FINT, 'w_fin_done', S_ND + D_B1, S_ND + D_LDB)
    a.label('w_fin_done')
    publish(a, 250)
    a('s_barrier')
    fetch(a, jobs_per_worker)
    a(f'''
    s_waitcnt lgkmcnt(0)
    s_barrier
    s_sub_u32 s57, {s(S_ND+D_TYPE)}, 1
    s_cmp_ge_u32 s57, 5
    s_cbranch_scc1 w_cold
    ''')
    emit_worker_init(a)
    a('s_branch w_cold')

def job(type, kb0, kb1, ldb, b0, b1, bsz, aoff, astr, nb, out, ostr, wait=0, wtgt=0, sig=0):
    return [type, kb0, kb1, ldb, b0, b1, bsz, aoff, astr, nb, out, ostr, wait, wtgt, sig, 0]

def job_qkv(mat, mb, nt, sig=0):
    ka = [KA_WQ, KA_WK, KA_WV][mat]; o = [WS_QS, WS_KS, WS_VS][mat]
    return job(T_F, ka, ka, 8192, nt * 512, nt * 512 + 256, 8 * MB, WS_XN + mb * 16 * 32 * 1024, 32 * 1024, 8,
               o + (mb * 16 * 128 + nt * 8) * 1024, 128 * 1024, sig=sig)

def job_qkv_half(mat, hb, nt, sig=0):
    ka = [KA_WQ, KA_WK, KA_WV][mat]; o = [WS_QS, WS_KS, WS_VS][mat]
    return job(T_FH, ka, ka, 8192, nt * 256, nt * 256 + 32 * 8192, 8 * MB, WS_XN + hb * 8 * 32 * 1024, 32 * 1024, 4,
               o + (hb * 8 * 128 + nt * 4) * 1024, 128 * 1024, sig=sig)

def job_glu(mb, ft, sig=0):
    return job(T_GLU, KA_WG, KA_WU, 7168, ft * 256, ft * 256, 7 * MB, WS_XN + mb * 16 * 32 * 1024, 32 * 1024, 8,
               WS_HH + (mb * 16 * 112 + ft * 4) * 1024, 112 * 1024, sig=sig)

def job_down_h(mb, nt, kh, wait=0, wtgt=0, sig=0):
    return job(T_F, KA_WD, KA_WD, 2048, nt * 512 + kh * 896 * 2048, nt * 512 + 256 + kh * 896 * 2048, 7 * MB,
               WS_HH + (mb * 16 * 112 + kh * 28) * 1024, 112 * 1024, 7,
               WS_GG + kh * 4 * MB + (mb * 16 * 32 + nt * 8) * 1024, 32 * 1024, wait=wait, wtgt=wtgt, sig=sig)

def job_att(hb, hg, wait, wtgt, sig, wq):
    return job(T_ATT, wq, 0, 0, 4 * hg, 0, 0, 4 * hb, 0, 0, 0, 0, wait=wait, wtgt=wtgt, sig=sig)

def job_wo(mb, nt, kq, wait=0, wtgt=0, sig=0):
    return job(T_F, KA_WO, KA_WO, 2048, nt * 512 + kq * 1024 * 2048, nt * 512 + 256 + kq * 1024 * 2048, 8 * MB,
               WS_OO + (mb * 16 * 128 + kq * 32) * 1024, 128 * 1024, 8,
               WS_SP + kq * 4 * MB + (mb * 16 * 32 + nt * 8) * 1024, 32 * 1024, wait=wait, wtgt=wtgt, sig=sig)

def job_wo_half(hb, nt, kp, kl, wait, wtgt, sig):
    return job(T_FH, KA_WO, KA_WO, 2048, nt * 256 + kp * kl * 2048, nt * 256 + (kp * kl + 32) * 2048, 8 * MB,
               WS_OO + (hb * 8 * 128 + kp * kl // 32) * 1024, 128 * 1024, kl // 256,
               WS_SP + kp * 4 * MB + (hb * 8 * 32 + nt * 4) * 1024, 32 * 1024, wait=wait, wtgt=wtgt, sig=sig)

def job_fin(seg, quarter, tail=False, otgt=0, four=0, wide=False):
    return job(T_FINT + 1 if wide else T_FINT if tail else T_FIN, 0, 0, four, quarter, otgt, 0, seg, 0, 0, 0, 0)

END_JOB = [0] * 16

def emit_table(a, label, lists, per):
    a.raw('.p2align 6')
    a.label(label)
    for l in lists:
        assert len(l) < per
        l = l + [END_JOB] * (per - len(l))
        for j in l:
            a.raw('    .long ' + ', '.join(str(x) for x in j))

def emit_touch_first(a, table_label, jobs_per_worker, swk):
    l = a.uid('tch')
    a(f'''
    s_getpc_b64 {s(S_TAB,2)}
    s_add_u32 {s(S_TAB)}, {s(S_TAB)}, {table_label}@rel32@lo+4
    s_addc_u32 {s(S_TAB+1)}, {s(S_TAB+1)}, {table_label}@rel32@hi+12
    s_mul_i32 {s(S_T1)}, {s(swk)}, {jobs_per_worker*64}
    s_add_u32 {s(S_TAB)}, {s(S_TAB)}, {s(S_T1)}
    s_addc_u32 {s(S_TAB+1)}, {s(S_TAB+1)}, 0
    s_load_dwordx16 {s(S_ND,16)}, {s(S_TAB,2)}, 0
    s_mov_b32 {s(SRD_B0+3)}, {SRD3}
    s_waitcnt lgkmcnt(0)
    s_cmp_eq_u32 {s(S_ND+D_TYPE)}, {T_END}
    s_cbranch_scc1 {l}
    s_load_dwordx2 {s(SRD_B0,2)}, s[0:1], {s(S_ND+D_KB0)}
    s_mov_b32 {s(SRD_B0+2)}, {s(S_ND+D_BSZ)}
    v_bfe_u32 v20, v0, 2, 6
    v_mul_u32_u24 v20, {s(S_ND+D_LDB)}, v20
    v_and_b32 v21, 3, v0
    v_lshl_add_u32 v20, v21, 6, v20
    s_lshl_b32 {s(S_T1)}, {s(S_ND+D_LDB)}, 6
    s_mov_b32 {s(S_T2)}, {s(S_ND+D_B0)}
    s_waitcnt lgkmcnt(0)
    ''')
    for j in range(16):
        a(f'buffer_load_dword v22, v20, {s(SRD_B0,4)}, {s(S_T2)} offen')
        a(f's_add_u32 {s(S_T2)}, {s(S_T2)}, {s(S_T1)}')
    a.label(l)

def emit_tlb_touch(a, table_label, jobs_per_worker, swk):
    l = a.uid('tlb')
    a(f'''
    s_getpc_b64 {s(S_TAB,2)}
    s_add_u32 {s(S_TAB)}, {s(S_TAB)}, {table_label}@rel32@lo+4
    s_addc_u32 {s(S_TAB+1)}, {s(S_TAB+1)}, {table_label}@rel32@hi+12
    s_and_b32 {s(S_T1)}, {s(swk)}, 3
    s_mul_i32 {s(S_T1)}, {s(S_T1)}, {jobs_per_worker}
    s_lshr_b32 {s(S_T2)}, {s(swk)}, 2
    s_add_u32 {s(S_T1)}, {s(S_T1)}, {s(S_T2)}
    s_lshl_b32 {s(S_T1)}, {s(S_T1)}, 6
    s_add_u32 {s(S_TAB)}, {s(S_TAB)}, {s(S_T1)}
    s_addc_u32 {s(S_TAB+1)}, {s(S_TAB+1)}, 0
    s_load_dwordx16 {s(S_ND,16)}, {s(S_TAB,2)}, 0
    s_mov_b32 {s(SRD_B0+3)}, {SRD3}
    v_and_b32 v20, 63, v0
    s_waitcnt lgkmcnt(0)
    s_load_dwordx2 {s(SRD_B0,2)}, s[0:1], {s(S_ND+D_KB0)}
    s_mov_b32 {s(SRD_B0+2)}, {s(S_ND+D_BSZ)}
    s_lshl_b32 {s(S_T1)}, {s(S_ND+D_LDB)}, 4
    v_mul_lo_u32 v21, {s(S_T1)}, v20
    v_and_b32 v22, 15, v20
    v_mul_lo_u32 v22, {s(S_ND+D_OSTR)}, v22
    s_waitcnt lgkmcnt(0)
    s_cmp_eq_u32 s3, 4
    s_cbranch_scc0 {l}_1
    buffer_load_dword v23, v21, {s(SRD_B0,4)}, {s(S_ND+D_B0)} offen
    s_branch {l}
    ''')
    a.label(l + '_1')
    a(f'''
    s_cmp_eq_u32 s3, 5
    s_cbranch_scc0 {l}
    buffer_load_dword v23, v22, {s(SRD_WS,4)}, {s(S_ND+D_OUT)} offen
    buffer_load_dword v23, off, {s(SRD_WS,4)}, {s(S_ND+D_SIG)}
    ''')
    a.label(l)
    if getattr(a, 'ctouch', 0) >= 2:
        a('s_cmp_eq_u32 s3, 6')
        a(f's_cbranch_scc0 {l}_7')
        code_touch(a, 'ln_sig', 18, 68, 70)
        code_touch(a, 'w_firstH', 30, 68, 70)
        a.label(l + '_7')
        a('s_cmp_eq_u32 s3, 7')
        a(f's_cbranch_scc0 {l}_8')
        code_touch(a, 'w_first16', 60, 68, 70)
        a.label(l + '_8')
        a('s_waitcnt lgkmcnt(0)')
```

```python
import heapq, random, json, os, math
from layout4 import *
import k_gemm5 as G
import k_fin5 as F
CQ_TAB = WS_CNT + 512
CA_TAB = WS_CNT + 3072
CQ2_TAB = WS_CNT + 4096
NW = 32
DEF = dict(T0=21.0, P=2.5, PH=2.9, ts=9.7, dh0=10.0, dh=8.2, nhb=1, lw=0.5, dq=22.2, dg=23.3, cold=dict(g=5.0, d=5.0, o=1.0), dd=20.2, do=21.6, da=11.3, df=4.2, dfw=6.0, dp=9.0, dp2=6.0, gap=0.8, margin=3.0, rm=1.0, tgt=172.0)

def make_jobs(nlb, p):
    T0, P = p['T0'], p['P']
    s1 = p.get('s1', 8 * nlb)
    ct = lambda st: T0 + min(st, s1) * P + max(0, st - s1) * p['PH']
    jobs = []
    def add(**k): k['id'] = len(jobs); k.setdefault('rel', 0); k.setdefault('dl', None); k.setdefault('deps', []); jobs.append(k); return k['id']
    dl = lambda seg: ct(seg - 2) - p['margin'] if seg else T0
    Q = {}; Gj = {}; A = {}; DO = {}; nb0 = p.get('nb0', nlb)
    for b in range(8):
        for mat in (1, 2, 0):
            lq = mat == 0 and b < nb0
            if b < p['nhb'] and not lq:
                for hb in (2 * b, 2 * b + 1):
                    for i in range(8): add(kind='h', mb=hb, mat=mat, i=i, dur=p['dh'], dl=dl(4 * hb))
            else:
                for i in range(4):
                    n = add(kind='q', mb=b, mat=mat, i=i, dur=p['dq'], dl=None if lq else dl(8 * b) + (p['margin'] if b == 1 else 0))
                    if lq: Q.setdefault((b, i // 2), []).append(n)
    for mb in range(8):
        for i in range(7): Gj.setdefault(mb, []).append(add(kind='g', mb=mb, i=i, dur=p['dg']))
        for i in range(4): DO.setdefault(mb, []).append(add(kind='d', mb=mb, i=i, dur=p['dd'], deps=Gj[mb]))
    for b in range(nlb):
        for hf in range(2 if b < nb0 else 0):
            for i in range(2): A.setdefault(b, []).append(add(kind='a', mb=b, i=i, hf=hf, dur=p['da'], rel=ct(8 * b + 4 * hf + 5.6) + p['rm'], deps=Q[(b, i)]))
        for i in range(4): DO[b].append(add(kind='o', mb=b, i=i, dur=p['do'], deps=A.get(b, []), rel=0 if b < nb0 else ct(8 * b + 9.6) + p['rm']))
    PH = {}
    for hb in range(2 * nlb, s1 // 4):
        two = hb >= 14
        for i in range(16 if two else 8):
            PH.setdefault(hb >> 1, []).append(add(kind='p', mb=hb, i=i, two=two, dur=p['dp2'] if two else p['dp'], rel=ct(4 * hb + 5.6) + p['rm']))
    for seg in range(64 - NTAIL):
        rel = ct(seg + 2.6 + ((3 - seg) % 4 if seg < 56 else 0)) if seg >= s1 else 0
        b = seg >> 3
        if seg < p.get('nwide', 0):
            if seg & 3 == 0: add(kind='f', mb=b, i=seg, wide=True, dur=p['dfw'], deps=DO[b], otgt=16, four=1)
            continue
        add(kind='f', mb=b, i=seg, dur=p['df'], rel=rel, deps=DO[b] + (PH.get(b, []) if seg < s1 else []),
            otgt=0 if seg >= s1 else 16 if b < nlb else 4 * len(PH[b]), four=int(seg < min(s1, 56)))
    for sg in range(NTAIL):
        for i in range(4): add(kind='t', mb=7, seg=64 - NTAIL + sg, i=i, dur=1.5, rel=ct(64 - NTAIL + sg + 1.4) + (0.3 if sg == NTAIL - 1 else 2.0), deps=DO[7])
    for j in jobs: j['pan'] = panels(j)
    return jobs, ct

def simulate(jobs, lists, p, sc=None, detail=False):
    n = len(jobs); end = [None] * n; start = [0] * n
    pos = [0] * NW
    durs, rs = sc if sc else ([j['dur'] for j in jobs], 1.0)
    T0 = p['T0']; gap = p['gap']; tgt = p['tgt']
    waiting = {}; heap = [(p['ts'], w, p['ts']) for w in range(NW)]; ndone = 0; pen = 0.0
    first = {}
    while heap:
        t, w, fr = heapq.heappop(heap); l = lists[w]
        if pos[w] >= len(l): continue
        i = l[pos[w]]; j = jobs[i]
        blk = None; rt = fr
        for d in j['deps']:
            e = end[d]
            if e is None: blk = d; break
            if e > rt: rt = e
        if blk is not None:
            waiting.setdefault(blk, []).append((w, fr)); continue
        rel = T0 + (j['rel'] - T0) * rs if j['rel'] else 0
        if rel > rt: rt = rel
        if rt > t + 1e-9:
            heapq.heappush(heap, (rt, w, fr)); continue
        k = j['kind']; dur = durs[i]
        if pos[w] == 0: dur += p['dh0'] - p['dh'] + (1.0 if k == 'q' else 0)
        if k in 'gdo':
            f = first.setdefault(k, rt)
            if rt < f + 12: dur += p['cold'][k]
        if not (rt == fr and k in 'qgdo' and pos[w] and jobs[l[pos[w] - 1]]['kind'] in 'qgdo'): rt += gap
        e = rt + dur
        x = e - max(tgt, rel + gap + dur)
        if x > 0: pen += x * x
        start[i] = rt; end[i] = e; pos[w] += 1; ndone += 1
        heapq.heappush(heap, (e, w, e))
        for w2, f2 in waiting.pop(i, ()): heapq.heappush(heap, (rt, w2, f2))
    if ndone < n: return None
    if detail: return start, end
    late = {}
    for j in jobs:
        if j['dl'] is not None:
            x = end[j['id']] - (T0 + (j['dl'] - T0) * rs)
            if x > late.get(j['dl'], 0): late[j['dl']] = x
    return max(end), sum(late.values()), pen, start

def scenarios(jobs, seed=5):
    r = random.Random(seed); out = [None]
    for g, rs in ((1.05, 0.99), (0.98, 1.04), (1.03, 1.01), (1.0, 1.0)):
        ks = {k: r.uniform(0.97, 1.05) for k in 'hqgdaoftp'}
        out.append(([j['dur'] * g * ks[j['kind']] * r.uniform(0.95, 1.08) for j in jobs], rs))
    return out

def panels(j):
    k = j['kind']
    if k == 'q': return (('X', j['mb']), ('W', j['mat'], j['i']))
    if k == 'g': return (('X', j['mb']), ('G', j['i']))
    if k == 'd': return (('H', j['mb']), ('D', j['i']))
    if k == 'o': return (('O', j['mb']), ('Wo', j['i']))
    return ()

def unshared(jobs, start, win):
    by = {}
    for j in jobs:
        for pn in j['pan']: by.setdefault(pn, []).append(start[j['id']])
    n = 0
    for l in by.values():
        l.sort(); last = -1e9
        for t in l:
            if t - last > win: n += 1; last = t
    return n

def score(jobs, lists, p, scs):
    tot = 0.0
    for sc in scs:
        r = simulate(jobs, lists, p, sc)
        if r is None: return 1e9
        tot += r[0] + 3 * r[1] + 0.004 * r[2]
        if sc is None: tot += p['lw'] * len(scs) / 2 * unshared(jobs, r[3], 2.5)
    return tot / len(scs) * 2

def initial(jobs, nlb, p):
    lists = [[] for _ in range(NW)]
    h = {(j['mb'], j['mat'], j['i']): j['id'] for j in jobs if j['kind'] == 'h'}
    pre = set()
    for k in range(NW):
        mat, i = 1 + ((k >> 3) & 1), k & 7
        if (2, 1, 0) in h: lists[k] = [h[(k >> 4, mat, i)], h[(2 + (k >> 4), mat, i)]]
        elif k < 16: lists[k] = [h[(0, mat, i)], h[(1, mat, i)]]
        else:
            mb, mt = ((1, 1 + ((k >> 2) & 1)) if k < 24 else ((k >> 2) & 1, 0)) if p.get('cln') else (1 + ((k >> 3) & 1), 1 + ((k >> 2) & 1))
            lists[k] = [[j['id'] for j in jobs if j['kind'] == 'q' and j['mb'] == mb and j['mat'] == mt and j['i'] == k & 3][0]]
            pre.add(lists[k][0])
    def key(j):
        k, b = j['kind'], j['mb']
        if k == 'q': return j['dl'] - 45 if j['dl'] is not None else 20 * b + 5
        return {'g': 30 + 12 * b, 'd': 120 + 5 * b, 'a': j['rel'] + 8, 'o': max(75 + 20 * b, j['rel'] + 5), 'p': j['rel'] + 2, 'f': max(170 + b, j['rel'], 185 if any(jobs[d]['kind'] == 'p' for d in j['deps']) else 0), 't': 300}[k]
    rest = sorted((j for j in jobs if j['kind'] not in 'ht' and j['id'] not in pre), key=key)
    load = [(0.0 if len(lists[w]) == 2 else 5.0, w) for w in range(NW)]
    for j in rest:
        t, w = heapq.heappop(load); lists[w].append(j['id']); heapq.heappush(load, (t + j['dur'], w))
    for n, j in enumerate(j for j in jobs if j['kind'] == 't'): lists[(n * 5) % NW].append(j['id'])
    return lists

def optimise(jobs, lists, p, iters, seed=1, t0=3.0):
    rnd = random.Random(seed); scs = scenarios(jobs); cur = score(jobs, lists, p, scs); best = (cur, [list(l) for l in lists])
    for it in range(iters):
        temp = t0 * (1 - it / iters) ** 2 + 0.01
        w1 = rnd.randrange(NW); w2 = rnd.randrange(NW)
        l1, l2 = lists[w1], lists[w2]
        n1 = len(l1) - (jobs[l1[-1]]['kind'] == 't'); n2 = len(l2) - (jobs[l2[-1]]['kind'] == 't')
        f1 = 2 if jobs[l1[0]]['kind'] == 'h' else 1; f2 = 2 if jobs[l2[0]]['kind'] == 'h' else 1
        if n1 <= f1: continue
        i1 = rnd.randrange(f1, n1); o1, o2 = list(l1), list(l2)
        m = rnd.random()
        if m < 0.4 and n2 > f2:
            i2 = min(max(f2, i1 + rnd.randint(-2, 2)), n2 - 1)
            if w1 == w2 and i1 == i2: continue
            l1[i1], l2[i2] = l2[i2], l1[i1]
        elif m < 0.8:
            j = l1.pop(i1)
            if w1 == w2: n2 -= 1
            l2.insert(min(max(f2, i1 + rnd.randint(-2, 2)), n2), j)
        else:
            if w1 == w2: continue
            i2 = min(max(f2, i1 + rnd.randint(-1, 1)), n2)
            l1[:], l2[:] = o1[:i1] + o2[i2:], o2[:i2] + o1[i1:]
        sc = score(jobs, lists, p, scs)
        if sc <= cur or rnd.random() < math.exp((cur - sc) / temp):
            cur = sc
            if sc < best[0]: best = (sc, [list(l) for l in lists])
        else:
            l1[:] = o1; l2[:] = o2
        if it % 20000 == 0: r = simulate(jobs, lists, p); print(it, round(cur, 2), r[:3], unshared(jobs, r[3], 2.5), flush=True)
    return best[1]

def report(jobs, lists, p, ct):
    st, en = simulate(jobs, lists, p, detail=True)
    print('fetches', unshared(jobs, st, 2.5), 'scen', [[round(x, 1) for x in simulate(jobs, lists, p, sc)[:2]] for sc in scenarios(jobs) + scenarios(jobs, 77)[1:]], 'chain end', ct(64))
    for k in 'hqgdaopft': print(k, [round(max(en[j['id']] for j in jobs if j['kind'] == k and j['mb'] == mb)) for mb in range(16) if any(j['kind'] == k and j['mb'] == mb for j in jobs)])
    for w in range(NW): print(w, ' '.join(f"{jobs[i]['kind']}{jobs[i]['mb']}@{st[i]:.0f}" for i in lists[w]))

def path(nlb, tag): return os.path.join(os.path.dirname(os.path.abspath(__file__)), f'plan_{nlb}{tag}.json')

def descriptor(j, x, nb0):
    o = []
    k, mb, i = j['kind'], j['mb'], j['i']
    q2 = lambda base: (base + 16 * (x >> 1), 4 if x & 1 else 1)
    if k == 'q':
        t = 4 * x + i
        o.append(G.job_qkv(j['mat'], mb, t, sig=((CQ2_TAB if j['mat'] == 0 and mb < nb0 else CQ_TAB) + mb * 256 + (t // 2) * 16) | 10))
    elif k == 'h':
        t = 8 * x + i
        o.append(G.job_qkv_half(j['mat'], mb, t, sig=(CQ_TAB + (mb >> 1) * 256 + (t // 4) * 16) | (4 if mb & 1 else 1)))
    elif k == 'g': ad, inc = q2(WS_CNT + 64 * mb); o.append(G.job_glu(mb, 7 * x + i, sig=ad | inc))
    elif k == 'd': ad, inc = q2(WS_CNT + 64 * mb); o.append(G.job_down_h(mb, i, x, wait=ad + 4 * (x & 1), wtgt=7, sig=(F.CD_TAB + 64 * mb) | 1))
    elif k == 'f' and j.get('wide'): o.append(G.job_fin(i + x, 0, otgt=16, four=1, wide=True))
    elif k == 'f': o.append(G.job_fin(i, x, otgt=j.get('otgt', 0), four=j.get('four', 0)))
    elif k == 'p': o.append(G.job_wo_half(mb, i & 7, 2 * x + (i >> 3) if j['two'] else x, 512 if j['two'] else 1024, wait=F.CS_TAB + 128 * x, wtgt=4 * mb + 4, sig=(F.CD_TAB + 64 * (mb >> 1)) | 4))
    elif k == 't': o.append(G.job_fin(j['seg'], 4 * x + i, True))
    elif k == 'a':
        ad, inc = q2(CA_TAB + 64 * mb); hg = 2 * x + i
        o.append(G.job_att(2 * mb + j['hf'], hg, wait=F.CS_TAB + 128 * x, wtgt=8 * mb + 4 * j['hf'] + 3, sig=ad | inc, wq=CQ2_TAB + mb * 256 + hg * 16))
    elif mb >= nb0: o.append(G.job_wo(mb, i, x, wait=F.CS_TAB + 128 * x, wtgt=8 * mb + 8, sig=(F.CD_TAB + 64 * mb) | 4))
    else: ad, inc = q2(CA_TAB + 64 * mb); o.append(G.job_wo(mb, i, x, wait=ad + 4 * (x & 1), wtgt=4, sig=(F.CD_TAB + 64 * mb) | 4))
    return o[0]

def build(nlb=6, tag='', nb0=None):
    global PLAN
    d = json.load(open(path(nlb, tag))); p = d['p']; lists = d['lists']
    assert p.get('nb0', nlb) == nb0
    jobs, ct = make_jobs(nlb, p)
    assert sorted(i for l in lists for i in l) == list(range(len(jobs)))
    st, en = simulate(jobs, lists, p, detail=True)
    out = []; PLAN = []
    for wk in range(128):
        x = wk & 3; o = []
        PLAN.append([(jobs[i]['kind'], jobs[i]['mb'], round(st[i], 1)) for i in lists[wk >> 2]])
        for n in lists[wk >> 2]:
            o.append(descriptor(jobs[n], x, nb0))
        out.append(o)
    return out

if __name__ == '__main__':
    import sys
    nlb = int(sys.argv[1]); iters = int(sys.argv[2]); tag = sys.argv[3] if len(sys.argv) > 3 else ''
    p = dict(DEF); p.update(eval(sys.argv[4]) if len(sys.argv) > 4 else {})
    jobs, ct = make_jobs(nlb, p)
    lists = optimise(jobs, initial(jobs, nlb, p), p, iters, seed=p.get('seed', 1))
    report(jobs, lists, p, ct)
    json.dump(dict(p=p, lists=lists), open(path(nlb, tag), 'w'))
```

```python
import heapq, random, json, os, math
import sched6 as S
from sched6 import make_jobs, scenarios, unshared, DEF, NW
from layout4 import *

def simulate(jobs, order, p, sc=None, detail=False):
    n = len(jobs); end = [None] * n; start = [0] * n; who = [0] * n
    durs, rs = sc if sc else ([j['dur'] for j in jobs], 1.0)
    T0 = p['T0']; gap = p['gap']; tgt = p['tgt']
    head = NW; nxt = [None] * NW; free = [None] * NW; prevk = [''] * NW
    ev = [(p['ts'], 1, w, order[w]) for w in range(NW)]
    fr = [p['ts']] * NW; waiting = {}; first = {}; pen = 0.0; nd = 0
    while ev:
        t, kind, w, i = heapq.heappop(ev)
        if kind == 0:
            if head < n:
                heapq.heappush(ev, (fr[w], 1, w, order[head])); head += 1
            continue
        j = jobs[i]; blk = None; rt = fr[w]
        for d in j['deps']:
            e = end[d]
            if e is None: blk = d; break
            if e > rt: rt = e
        if blk is not None:
            waiting.setdefault(blk, []).append((w, i)); continue
        rel = T0 + (j['rel'] - T0) * rs if j['rel'] else 0
        if rel > rt: rt = rel
        if rt > t + 1e-9:
            heapq.heappush(ev, (rt, 1, w, i)); continue
        k = j['kind']; dur = durs[i]
        if not prevk[w]: dur += p['dh0'] - p['dh'] + (1.0 if k == 'q' else 0)
        if k in 'gdo':
            f = first.setdefault(k, rt)
            if rt < f + 12: dur += p['cold'][k]
        if not (rt == fr[w] and k in 'qgdo' and prevk[w] in 'qgdo' and prevk[w]): rt += gap
        e = rt + dur
        x = e - max(tgt, rel + gap + dur)
        if x > 0: pen += x * x
        start[i] = rt; end[i] = e; who[i] = w; fr[w] = e; prevk[w] = k; nd += 1
        lead = 0 if j.get('two') else dur * 0.75 if k in 'hp' else 8.2 if k in 'qgdo' else dur
        heapq.heappush(ev, (e - lead, 0, w, -1))
        for w2, i2 in waiting.pop(i, ()): heapq.heappush(ev, (max(rt, fr[w2]), 1, w2, i2))
    if nd < n: return None
    if detail: return start, end, who
    late = {}
    for j in jobs:
        if j['dl'] is not None:
            x = end[j['id']] - (T0 + (j['dl'] - T0) * rs)
            if x > late.get(j['dl'], 0): late[j['dl']] = x
    return max(end), sum(late.values()), pen, start

def valid(jobs, order):
    pos = {i: k for k, i in enumerate(order)}
    return all(pos[d] < pos[j['id']] for j in jobs for d in j['deps'])

def score(jobs, order, p, scs):
    tot = 0.0
    for sc in scs:
        r = simulate(jobs, order, p, sc)
        if r is None: return 1e9
        tot += r[0] + 3 * r[1] + 0.004 * r[2]
        if sc is None: tot += p['lw'] * len(scs) / 2 * unshared(jobs, r[3], 2.5)
    return tot / len(scs) * 2

def optimise(jobs, order, p, iters, seed, t0=2.0):
    rnd = random.Random(seed); scs = scenarios(jobs); cur = score(jobs, order, p, scs); best = (cur, list(order)); n = len(order)
    nt = sum(j['kind'] == 't' for j in jobs)
    pos = {i: k for k, i in enumerate(order)}
    users = {}
    for j in jobs:
        for d in j['deps']: users.setdefault(d, []).append(j['id'])
    for it in range(iters):
        temp = t0 * (1 - it / iters) ** 2 + 0.01
        a = rnd.randrange(NW, n - nt); b = min(max(NW, a + rnd.choice((-1, 1)) * int(rnd.expovariate(1 / 14) + 1)), n - nt - 1)
        if a == b: continue
        old = list(order)
        if rnd.random() < 0.5: order[a], order[b] = order[b], order[a]
        else: order.insert(b, order.pop(a))
        if jobs[old[a]]['kind'] == jobs[old[b]]['kind'] == 'f' or not valid(jobs, order): order[:] = old; continue
        sc = score(jobs, order, p, scs)
        if sc <= cur or rnd.random() < math.exp((cur - sc) / temp):
            cur = sc
            if sc < best[0]: best = (sc, list(order))
        else: order[:] = old
        if it % 20000 == 0: r = simulate(jobs, order, p); print(it, round(cur, 2), r[:3], unshared(jobs, r[3], 2.5), flush=True)
    return best[1]

def path(nlb, tag): return os.path.join(os.path.dirname(os.path.abspath(__file__)), f'order_{nlb}{tag}.json')

def build(nlb=6, tag='', nb0=None, s1=None, scb=64):
    global PLAN
    d = json.load(open(path(nlb, tag))); p = d['p']; order = d['order']
    assert p.get('nb0', nlb) == nb0 and p.get('s1', 8 * nlb) == s1 and p.get('scb', 64) == scb
    jobs, ct = make_jobs(nlb, p)
    assert sorted(order) == list(range(len(jobs))) and valid(jobs, order)
    st, en, who = simulate(jobs, order, p, detail=True)
    PLAN = [(jobs[i]['kind'], jobs[i]['mb'], round(st[i], 1)) for i in order]
    return [[S.descriptor(jobs[i], x, nb0) for i in order] for x in range(4)]

if __name__ == '__main__':
    import sys
    nlb = int(sys.argv[1]); iters = int(sys.argv[2]); tag = sys.argv[3]; src = sys.argv[4]
    d = json.load(open(S.path(nlb, src))); p = d['p']; p.update(eval(sys.argv[5]) if len(sys.argv) > 5 else {})
    jobs, ct = make_jobs(nlb, p)
    st, en = S.simulate(jobs, d['lists'], p, detail=True)
    first = [l[0] for l in d['lists']]
    rest = sorted((j['id'] for j in jobs if j['id'] not in first), key=lambda i: (jobs[i]['kind'] == 't', st[i] if jobs[i]['kind'] != 't' else jobs[i]['rel'], jobs[i]['pan']))
    order = optimise(jobs, first + rest, p, iters, p.get('seed', 1))
    st, en, who = simulate(jobs, order, p, detail=True)
    print('fetches', unshared(jobs, st, 2.5), 'scen', [[round(x, 1) for x in simulate(jobs, order, p, sc)[:2]] for sc in scenarios(jobs) + scenarios(jobs, 77)[1:]], 'chain end', ct(64))
    for k in 'hqgdaopft': print(k, [round(max(en[j['id']] for j in jobs if j['kind'] == k and j['mb'] == mb)) for mb in range(16) if any(j['kind'] == k and j['mb'] == mb for j in jobs)])
    print(' '.join(f"{jobs[i]['kind']}{jobs[i]['mb']}@{st[i]:.0f}" for i in order))
    json.dump(dict(p=p, order=order), open(path(nlb, tag), 'w'))
```

```python
from asmlib import *
from layout4 import *
import k_fin5 as F

SRD_WS = 4
SRD_T = 8
S_W = 3
S_X, S_I, S_G, S_H, S_S = 12, 13, 14, 15, 16
S_T0, S_T1, S_T2, S_T3, S_T4 = 17, 18, 19, 20, 21
S_TO = 22
S_MLD, S_MST, S_MRS, S_QST, S_QRS, S_PLD, S_OK, S_SP, S_TCH, S_RDG, S_RDY, S_C, S_CQG = range(23, 36)
S_MO, S_MSO, S_QO, S_PO, S_X1, S_KG, S_KL = range(36, 43)
S_QLD, S_QLD2, S_PSTC, S_PRS, S_PRG, S_CS, S_CST, S_DW, S_DU, S_U2, S_QT = range(23, 34)
S_M0 = 44
S_ID = 52
S_J = 53
S_SP0 = 54
S_KMX = 55
S_RTG = 58
S_OF, S_OB = 59, 60
S_XB, S_XBX, S_SCO, S_XG = 101, 68, 69, 43
LDS_SCP = 36864
S_MEX = 56
S_PROF = 70
LDS_RED1 = 0
LDS_FLG = 15872
LDS_PUB = 15968
LDS_RED2 = 16384
LDS_SEG = 32768
LDS_BULK = 65536
PSLOT = 18
CHAIN_LDS = 163840
CQ_TAB = WS_CNT + 512
TIMEOUT = 1 << 17

def red_gq(vs, vt, op):
    return [f'v_mov_b32 {v(vt)}, {v(vs)}', 's_nop 1', f'v_permlane16_swap_b32 {v(vt)}, {v(vs)}', f'{op} {v(vs)}, {v(vs)}, {v(vt)}',
            f'v_mov_b32 {v(vt)}, {v(vs)}', 's_nop 1', f'v_permlane32_swap_b32 {v(vt)}, {v(vs)}', f'{op} {v(vs)}, {v(vs)}, {v(vt)}']

def chk(regs, vt, target):
    r = list(regs); o = []
    if len(r) == 1:
        return [f'v_cmp_eq_u32 vcc, -1, {v(r[0])}', f's_cbranch_vccnz {target}']
    if len(r) == 2:
        o.append(f'v_max_u32 {v(vt)}, {v(r[0])}, {v(r[1])}'); r = []
    else:
        o.append(f'v_max3_u32 {v(vt)}, {v(r[0])}, {v(r[1])}, {v(r[2])}'); r = r[3:]
    while len(r) >= 2:
        o.append(f'v_max3_u32 {v(vt)}, {v(vt)}, {v(r[0])}, {v(r[1])}'); r = r[2:]
    if r: o.append(f'v_max_u32 {v(vt)}, {v(vt)}, {v(r[0])}')
    o.append(f'v_cmp_eq_u32 vcc, -1, {v(vt)}')
    o.append(f's_cbranch_vccnz {target}')
    return o

def retry_block(a, label, again, giveup):
    a.label(label)
    a('s_waitcnt vmcnt(0)')
    if a.rsleep: a(f's_sleep {a.rsleep}')
    a(f's_sub_u32 {s(S_TO)}, {s(S_TO)}, 1')
    a(f's_cbranch_scc0 {again}')
    a(f's_mov_b32 {s(S_TO)}, 0')
    a(f's_branch {giveup}')

def spin_block(a, label, loads, regs, vt, ok, giveup):
    a.label(label)
    a(f's_sub_u32 {s(S_TO)}, {s(S_TO)}, 1')
    a(f's_cbranch_scc1 {label}_g')
    for x in loads: a(x)
    a(f's_waitcnt vmcnt({len(loads)-1})')
    for x in chk(regs, vt, label): a(x)
    a(f's_branch {ok}')
    a.label(label + '_g')
    a(f's_mov_b32 {s(S_TO)}, 0')
    a('s_waitcnt vmcnt(0)')
    a(f's_branch {giveup}')

class Prof:
    def __init__(self, on): self.on = on; self.n = 0; self.names = []
    def stamp(self, a, name, lvl=0):
        if self.on and (lvl == 0 or lvl == a.fine or (lvl < 0 and -lvl != a.fine)):
            a(f's_memtime {s(S_PROF + 2*self.n, 2)}'); self.n += 1; self.names.append(name)
    def flush(self, a, vtmp, tag):
        if not self.on: return
        a(f's_memrealtime {s(S_PROF + 2*self.n, 2)}'); self.n += 1; self.names.append('rt')
        a(f's_sub_u32 {s(S_PROF + 2*self.n)}, s100, {s(S_TO)}'); self.n += 1; self.names.append('retries')
        a(f's_mov_b32 s100, {s(S_TO)}')
        assert self.n <= 15
        a('s_waitcnt lgkmcnt(0)')
        a(f's_lshl_b32 {s(S_T0)}, {s(S_ID)}, 3')
        a(f's_add_u32 {s(S_T0)}, {s(S_T0)}, {s(S_W)}')
        a(f's_lshl_b32 {s(S_T0)}, {s(S_T0)}, 6')
        a(f's_add_u32 {s(S_T0)}, {s(S_T0)}, {s(S_S)}')
        a(f's_lshl_b32 {s(S_T0)}, {s(S_T0)}, 6')
        a(f's_add_u32 {s(S_T0)}, {s(S_T0)}, {WS_YP}')
        for i in range(self.n):
            a(f'v_writelane_b32 {v(vtmp)}, {s(S_PROF+2*i)}, {i}')
        a(f's_mov_b64 exec, {(1<<self.n)-1}')
        a(f'v_mbcnt_lo_u32_b32 {v(vtmp+1)}, -1, 0')
        a(f'v_lshlrev_b32 {v(vtmp+1)}, 2, {v(vtmp+1)}')
        a(f'buffer_store_dword {v(vtmp)}, {v(vtmp+1)}, {s(SRD_WS,4)}, {s(S_T0)} offen')
        a('s_mov_b64 exec, -1')
        a.raw(f'; PROF {tag} ' + ' '.join(self.names))
        self.n = 0; self.names = []

def merge_fill(seq, fill, every=2, start=1):
    out = []; fi = 0
    for k, x in enumerate(seq):
        out.append(x)
        if k >= start and (k - start) % every == 0 and fi < len(fill):
            out.append(fill[fi]); fi += 1
    out += fill[fi:]
    return out

def flag_wait(a, tag, vaddr, off, vt, st, sl=1, one=False):
    a.label(tag)
    if one:
        a(f'ds_read_b32 {v(vt)}, {v(vaddr)} offset:{off}')
        a('s_waitcnt lgkmcnt(0)')
    else:
        a(f'ds_read_b128 {v(vt,4)}, {v(vaddr)} offset:{off}')
        a('s_waitcnt lgkmcnt(0)')
        a(f'v_min3_i32 {v(vt)}, {v(vt)}, {v(vt+1)}, {v(vt+2)}')
        a(f'v_min_i32 {v(vt)}, {v(vt)}, {v(vt+3)}')
        a('s_nop 0')
    a(f'v_readfirstlane_b32 {s(st)}, {v(vt)}')
    a(f's_cmp_ge_i32 {s(st)}, {s(S_S)}')
    a(f's_cbranch_scc1 {tag}ok')
    a(f's_sleep {sl}')
    a(f's_branch {tag}')
    a.label(tag + 'ok')

def ring(a, d, add, sh, base):
    if add: a(f's_add_u32 {s(d)}, {s(S_S)}, {add}')
    a(f's_and_b32 {s(d)}, {s(d if add else S_S)}, 3')
    a(f's_lshl_b32 {s(d)}, {s(d)}, {sh}')
    a(f's_add_u32 {s(d)}, {s(d)}, {s(base)}')

def sel_init(a, sel, vl, t1, t2):
    a(f'v_and_b32 {v(t1)}, 15, {v(vl)}')
    a(f'v_and_b32 {v(t2)}, 1, {v(t1)}')
    a(f'v_lshlrev_b32 {v(t2)}, 4, {v(t2)}')
    a(f'v_lshlrev_b32 {v(t2)}, {v(t2)}, 0x3f80' if False else f'v_mov_b32 {v(sel)}, 0x3f80')
    a(f'v_lshlrev_b32 {v(t2)}, {v(t2)}, {v(sel)}')
    a(f'v_lshrrev_b32 {v(t1)}, 1, {v(t1)}')
    for d in range(4):
        a(f'v_cmp_eq_u32 vcc, {d}, {v(t1)}')
        a('s_nop 1')
        a(f'v_cndmask_b32 {v(sel+d)}, 0, {v(t2)}, vcc')

PV_L16, PV_QST, PV_R1W, PV_R1R, PV_MST, PV_SGR, PV_SPS, PV_IDX = 1, 2, 3, 4, 5, 6, 7, 8
PV_PFA, PV_PFD, PV_FLGR = 0, 9, 58
PV_T, PV_NEG, PV_SEL = 9, 10, 12
PV_M, PV_ACC, PV_W = 16, 32, 64
PV_FV, PV_RDY, PV_R1W1, PV_R1W2, PV_FLGW = 59, 60, 61, 62, 63
def pw(b, t): return PV_W + (b * 6 + t) * 8

def mem0_issue(a):
    a(f'''
    s_load_dwordx2 {s(SRD_T,2)}, s[0:1], {KA_MEM0}
    s_mov_b32 {s(SRD_T+2)}, 16384
    v_bfe_u32 v57, v20, 2, 2
    v_and_b32 v58, 1, v20
    v_lshl_add_u32 v57, v57, 1, v58           ; token
    v_lshlrev_b32 v57, 11, v57
    v_lshrrev_b32 v58, 4, v20
    v_lshl_add_u32 v57, v58, 5, v57           ; + 32 g
    v_bfe_u32 v58, v20, 1, 1                  ; p
    v_lshl_add_u32 v57, v58, 4, v57
    v_lshl_add_u32 v59, v58, 3, v57
    v_xor_b32 v60, 8, v59
    s_lshl_b32 {s(S_T3)}, {s(S_W)}, 9
    s_waitcnt lgkmcnt(0)
    ''')
    for b in range(4):
        a(f'buffer_load_dwordx2 {v(32+4*b,2)}, v59, {s(SRD_T,4)}, {s(S_T3)} offen offset:{128*b}')
        a(f'buffer_load_dwordx2 {v(34+4*b,2)}, v60, {s(SRD_T,4)}, {s(S_T3)} offen offset:{128*b}')

def p_prologue(a):
    a(f'''
    v_and_b32 v20, 63, v0
    v_lshlrev_b32 {v(PV_L16)}, 4, v20
    v_mov_b32 {v(PV_NEG)}, -1
    v_mov_b32 {v(PV_NEG+1)}, -1
    v_lshrrev_b32 v21, 2, v20
    v_and_b32 v22, 3, v20
    v_lshlrev_b32 v21, 13, v21
    v_lshl_add_u32 v21, v22, 4, v21
    s_lshl_b32 {s(S_T0)}, {s(S_W)}, 21
    s_lshl_b32 {s(S_T1)}, {s(S_ID)}, 6
    s_add_u32 {s(S_T0)}, {s(S_T0)}, {s(S_T1)}
    s_lshl_b32 {s(S_T2)}, {s(S_W)}, 15
    s_mov_b32 {s(SRD_T+2)}, {8*MB}
    s_mov_b32 {s(SRD_T+3)}, {SRD3}
    v_lshrrev_b32 v24, 5, v20                 ; gB>>1
    v_bfe_u32 v25, v20, 3, 1                  ; r>>1
    v_lshl_add_u32 v24, v24, 1, v25           ; 2(gB>>1) + (r>>1)
    v_bfe_u32 v26, v20, 4, 1                  ; gB&1
    v_xor_b32 v26, v26, v25
    v_lshl_add_u32 v24, v24, 1, v26
    v_bfe_u32 v25, v20, 2, 1                  ; r&1
    v_lshl_add_u32 v24, v24, 2, v25           ; row
    v_lshlrev_b32 v24, 6, v24
    v_lshl_add_u32 v24, v22, 3, v24           ; + cc*8
    v_add_u32 v24, {s(S_T2)}, v24
    ''')
    if a.fl:
        a(f'''
        v_lshrrev_b32 v21, 3, v20
        v_and_b32 v23, 7, v20
        v_lshlrev_b32 v21, 14, v21
        v_lshl_add_u32 v21, v23, 4, v21
        s_and_b32 {s(S_T1)}, {s(S_I)}, 1
        s_mul_i32 {s(S_T1)}, {s(S_T1)}, {8192 - 64}
        s_add_u32 {s(S_T0)}, {s(S_T0)}, {s(S_T1)}
        ''')
    def src(p):
        a(f's_load_dwordx2 {s(SRD_T,2)}, s[0:1], {KA_WQ + 8*p}')
        a(f's_add_u32 {s(S_T3)}, {s(S_T0)}, s72')
        a('s_waitcnt lgkmcnt(0)')
    a(f's_and_b32 s70, {s(S_I)}, {1 if a.stag else 0}')
    a('s_lshl_b32 s72, s70, 20')
    a('s_lshl_b32 s73, s70, 21')
    a('s_lshl_b32 s70, s70, 13')
    a(f's_sub_u32 s71, {s(S_T2)}, s70')
    a(f's_add_u32 s70, {s(S_T2)}, s70')
    def issue(p, half):
        src(p)
        for n in range(16):
            a(f's_add_u32 m0, {"s70" if n < 8 else "s71"}, {half*16384 + n*1024}')
            a('s_nop 0')
            a(f'buffer_load_dwordx4 v21, {s(SRD_T,4)}, {s(S_T3)} offen{a.wnt[p]} lds')
            a(f's_add_u32 {s(S_T3)}, {s(S_T3)}, {16*8192}')
            if n == 7: a(f's_sub_u32 {s(S_T3)}, {s(S_T3)}, s73')
    def fetch(p, half):
        for b in range(4):
            for T in range(2):
                for t4 in range(4):
                    a(f'ds_read_b64_tr_b16 {v(pw(b, 2*p+T)+2*t4, 2)}, v24 offset:{half*16384 + b*4096 + (32*(t4>>1) + 2*(t4&1))*64 + T*32}')
            a('s_waitcnt lgkmcnt(0)')
    issue(0, 0); issue(1, 1)
    src(2)
    land = [pw(n // 4, 4) + 4 * (n & 3) for n in range(16)]
    for n in range(16):
        a(f'buffer_load_dwordx4 {v(land[n],4)}, v21, {s(SRD_T,4)}, {s(S_T3)} offen{a.wnt[2]}')
        a(f's_add_u32 {s(S_T3)}, {s(S_T3)}, {16*8192}')
        if n == 7: a(f's_sub_u32 {s(S_T3)}, {s(S_T3)}, s73')
    mem0_issue(a)
    a('s_barrier')
    a(f'v_add_u32 v56, s70, {v(PV_L16)}')
    a(f'v_add_u32 v26, s71, {v(PV_L16)}')
    a('s_waitcnt vmcnt(40)'); fetch(0, 0)
    a('s_waitcnt vmcnt(24)'); fetch(1, 1)
    a('s_waitcnt vmcnt(8)')
    for n in range(16):
        a(f'ds_write_b128 {"v56" if n < 8 else "v26"}, {v(land[n],4)} offset:{n*1024}')
    a('s_waitcnt lgkmcnt(0)')
    fetch(2, 0)
    a(f'''
    v_mov_b32 v21, 0x44444444
    v_mov_b32 v22, 0xeeeeeeee
    v_and_b32 v23, 2, v20
    v_cmp_eq_u32 vcc, 0, v23
    s_nop 1
    v_cndmask_b32 {v(PV_IDX)}, v22, v21, vcc
    ''')
    a(f'''
    v_bfe_u32 v21, v20, 2, 3                  ; t
    v_lshrrev_b32 v22, 5, v20                 ; isk
    v_mul_u32_u24 v23, 160, v21
    v_mul_u32_u24 v24, 1280, v22
    v_add_u32 v23, v23, v24
    v_and_b32 v24, 3, v20
    v_lshl_add_u32 v27, v24, 4, v23
    v_lshrrev_b32 v23, 1, v21
    v_and_b32 v21, 1, v21
    v_lshl_add_u32 v21, v23, 2, v21           ; row0
    v_xor_b32 v22, 1, v22
    v_lshl_add_u32 v21, v22, 1, v21           ; row
    v_bfe_u32 v22, v20, 1, 1                  ; gq&1
    v_lshl_add_u32 v21, v22, 4, v21
    v_xor_b32 v22, v20, v22
    v_and_b32 v22, 1, v22                     ; hs
    v_lshlrev_b32 v21, 4, v21
    v_lshl_add_u32 v25, v22, 3, v21
    v_lshrrev_b32 v21, 3, v20                 ; t
    v_mul_u32_u24 v23, 160, v21
    v_and_b32 v24, 7, v20
    v_lshl_add_u32 v28, v24, 4, v23
    v_lshrrev_b32 v23, 1, v21
    v_and_b32 v21, 1, v21
    v_lshl_add_u32 v21, v23, 2, v21
    v_and_b32 v22, 1, v20                     ; p
    v_lshl_add_u32 v21, v22, 1, v21
    v_bfe_u32 v22, v20, 2, 1                  ; gq>>1
    v_lshl_add_u32 v21, v22, 4, v21
    v_bfe_u32 v22, v20, 1, 1                  ; gq&1
    v_lshlrev_b32 v21, 4, v21
    v_lshl_add_u32 v26, v22, 3, v21
    s_lshl_b32 {s(S_T0)}, {s(S_J)}, 10
    s_lshl_b32 {s(S_T1)}, {s(S_W)}, 9
    s_add_u32 {s(S_T0)}, {s(S_T0)}, {s(S_T1)}
    s_lshl_b32 {s(S_T1)}, {s(S_W)}, 6
    s_lshl_b32 {s(S_T2)}, {s(S_J)}, 9
    s_add_u32 {s(S_T2)}, {s(S_T2)}, 4096
    s_cmp_ge_u32 {s(S_W)}, 2
    s_cselect_b32 {s(S_T0)}, {s(S_T2)}, {s(S_T0)}
    s_cselect_b32 {s(S_T1)}, 2560, {s(S_T1)}
    s_cselect_b64 vcc, -1, 0
    v_cndmask_b32 v22, v25, v26, vcc
    v_cndmask_b32 v23, v27, v28, vcc
    v_add_u32 {v(PV_QST)}, {s(S_T0)}, v22
    v_add_u32 {v(PV_R1R)}, {s(S_T1)}, v23
    v_lshrrev_b32 v21, 4, v20                 ; g
    v_and_b32 v22, 15, v20                    ; n
    v_mul_u32_u24 v23, 320, v21
    v_lshl_add_u32 v23, v22, 2, v23
    s_mul_i32 {s(S_T0)}, {s(S_W)}, 3840
    v_add_u32 {v(PV_R1W)}, {s(S_T0)}, v23
    v_add_u32 {v(PV_R1W1)}, 1280, {v(PV_R1W)}
    v_bfe_u32 v24, v20, 3, 1
    v_bfe_u32 v25, v20, 2, 1
    v_xor_b32 v25, v25, v24                   ; hs
    v_bfe_u32 v26, v20, 1, 1                  ; p
    v_lshl_add_u32 v25, v26, 1, v25
    v_lshl_add_u32 v25, v24, 2, v25
    v_and_b32 v26, 1, v20
    v_lshl_add_u32 v25, v25, 1, v26           ; pos(n)
    v_sub_u32 v25, v25, v22
    v_lshl_add_u32 v25, v25, 2, {v(PV_R1W)}
    v_add_u32 {v(PV_R1W2)}, 2560, v25
    v_lshlrev_b32 v23, 4, v22
    v_lshl_add_u32 {v(PV_SGR)}, v21, 12, v23
    s_lshl_b32 {s(S_T0)}, {s(S_W)}, 10
    s_add_u32 {s(S_T0)}, {s(S_T0)}, {LDS_SEG}
    v_add_u32 {v(PV_SGR)}, {s(S_T0)}, {v(PV_SGR)}
    v_lshrrev_b32 v24, 1, v21
    v_lshl_add_u32 v23, v24, 15, v23
    v_and_b32 v24, 1, v21
    v_lshl_add_u32 {v(PV_SPS)}, v24, 8, v23
    v_mov_b32 {v(PV_FLGR)}, {LDS_FLG}
    v_bfe_u32 v23, v20, 1, 2                  ; t>>1
    v_lshlrev_b32 v23, 6, v23
    v_and_b32 v25, 1, v20
    v_lshl_add_u32 v23, v25, 4, v23
    v_lshrrev_b32 v24, 5, v20
    v_lshl_add_u32 {v(PV_MST)}, v24, 5, v23
    v_and_b32 v23, 7, v20
    v_lshlrev_b32 v23, 7, v23
    v_bfe_u32 v24, v20, 3, 1
    v_lshl_add_u32 v23, v24, 17, v23
    v_lshrrev_b32 v24, 4, v20
    v_add_u32 v24, 1, v24
    v_cmp_le_u32 vcc, 3, v24
    s_nop 1
    v_cndmask_b32 v24, v24, 0, vcc
    v_lshl_add_u32 v23, v24, 24, v23
    s_lshl_b32 {s(S_T0)}, {s(S_G)}, 14
    s_lshl_b32 {s(S_T1)}, {s(S_C)}, 10
    s_add_u32 {s(S_T0)}, {s(S_T0)}, {s(S_T1)}
    s_add_u32 {s(S_T0)}, {s(S_T0)}, {WS_QS}
    v_add_u32 {v(PV_PFA)}, {s(S_T0)}, v23
    s_lshl_b32 {s(S_T0)}, {s(S_W)}, 2
    s_add_u32 {s(S_T0)}, {s(S_T0)}, {LDS_FLG}
    v_mov_b32 {v(PV_FLGW)}, {s(S_T0)}
    ''')
    sel_init(a, PV_SEL, 20, 21, 22)
    a('s_waitcnt vmcnt(0)')
    for i in range(16): a(f'v_mov_b32 {v(PV_M+i)}, {v(32+i)}')

def gate_addr(a, d, add, tg):
    a(f's_add_u32 {s(S_T4)}, {s(S_S)}, {add}')
    a(f's_min_u32 {s(S_T4)}, {s(S_T4)}, 63')
    a(f's_cmp_ge_u32 {s(S_T4)}, {a.s0}')
    a(f's_cselect_b32 {s(tg)}, 12, 8')
    if a.scb < 64:
        a(f's_cmp_ge_u32 {s(S_T4)}, {a.scb}')
        a(f's_cselect_b32 {s(tg)}, 0, {s(tg)}')
    a(f's_and_b32 {s(d)}, {s(S_T4)}, 4')
    a(f's_lshr_b32 {s(S_T4)}, {s(S_T4)}, 3')
    a(f's_lshl_b32 {s(S_T4)}, {s(S_T4)}, 8')
    a(f's_add_u32 {s(d)}, {s(d)}, {s(S_T4)}')
    a(f's_add_u32 {s(d)}, {s(d)}, {s(S_CQG)}')

def p_gate(a, k):
    l = a.uid('gate')
    a(f's_bitcmp1_b32 {s(S_OK)}, {k}')
    a(f's_cbranch_scc1 {l}_ok')
    gate_addr(a, S_RDG, 1 + k, S_T2)
    a.label(l)
    a(f'buffer_load_dword {v(PV_T)}, off, {s(SRD_WS,4)}, {s(S_RDG)} sc1')
    a('s_waitcnt vmcnt(0)')
    a(f'v_readfirstlane_b32 {s(S_T4)}, {v(PV_T)}')
    a(f's_cmp_ge_u32 {s(S_T4)}, {s(S_T2)}')
    a(f's_cbranch_scc1 {l}_set')
    a('s_sleep 8')
    a(f's_sub_u32 {s(S_TO)}, {s(S_TO)}, 1')
    a(f's_cbranch_scc0 {l}')
    a(f's_mov_b32 {s(S_TO)}, 0')
    a.label(l + '_set')
    a(f's_bitset1_b32 {s(S_OK)}, {k}')
    a.label(l + '_ok')

def dma_list(a, m, vl16, st, S_KG=S_KG, S_KL=S_KL, hd=0):
    base = (WS_KS, WS_VS, WS_QS)[m] + 4096 * hd
    o = []
    for kt in range(2):
        for u in range(4):
            pre = f's_add_u32 m0, {s(S_KL)}, {8192*m + 4096*kt + 24576*hd}\ns_add_u32 {s(st)}, {s(S_KG)}, {base + 131072*kt}\n' if u == 0 else ''
            o.append(pre + f'buffer_load_dwordx4 {v(vl16)}, {s(SRD_WS,4)}, {s(st)} offen offset:{1024*u} sc1{a.bnt} lds')
    return o

def reg_list(a, m, reg, st):
    base = (WS_KS, WS_VS, WS_QS)[m]
    o = []
    for kt in range(2):
        for u in range(4):
            pre = f's_add_u32 {s(st+kt)}, {s(S_KG)}, {base + 131072*kt}\n' if u == 0 else ''
            o.append(pre + f'buffer_load_dwordx4 {v(reg+(kt*4+u)*4,4)}, {v(AV_L16)}, {s(SRD_WS,4)}, {s(st+kt)} offen offset:{1024*u} sc1{a.bnt}')
    return o

def p_segreduce(a, part=3):
    if part & 1: p_segcalc(a)
    if part & 2: p_segstore(a)

def p_segcalc(a):
    S1 = 48
    for ul in range(2):
        for rt in range(2):
            a(f'ds_read_b128 {v(PV_M+4*(2*ul+rt),4)}, {v(PV_SGR)} offset:{512*ul+256*rt}')
    a(f'v_xor_b32 {v(PV_SGR)}, 0x4000, {v(PV_SGR)}')
    for ul in range(2):
        D = 40 + 4 * ul
        a(f's_waitcnt lgkmcnt({2-2*ul})')
        a(f'v_mfma_f32_16x16x32_bf16 {v(D,4)}, {v(PV_SEL,4)}, {v(PV_M+8*ul,4)}, 0')
        a(f'v_mfma_f32_16x16x32_bf16 {v(D,4)}, {v(S1,4)}, {v(PV_M+8*ul+4,4)}, {v(D,4)}')
    a('s_nop 7')
    a('v_cvt_pk_bf16_f32 v40, v40, v41')
    a('v_cvt_pk_bf16_f32 v41, v42, v43')
    a('v_cvt_pk_bf16_f32 v42, v44, v45')
    a('v_cvt_pk_bf16_f32 v43, v46, v47')
    a('s_nop 1')
    a('v_permlane16_swap_b32 v40, v42')
    a('v_permlane16_swap_b32 v41, v43')
    a('s_nop 1')
    a('v_min_u32 v40, -2, v40')

def p_segstore(a):
    a(f'buffer_store_dwordx4 v[40:43], {v(PV_SPS)}, {s(SRD_WS,4)}, {s(S_SP)} offen sc1{a.spnt}')
    a(f's_add_u32 {s(S_SP)}, {s(S_SP)}, 65536')

def p_loop(a, loc, prof, done):
    LH = a.uid('ploopH')
    for i in range(24): a(f'v_mov_b32 {v(PV_ACC+i)}, 0')
    a(f'v_mov_b32 {v(PV_FV)}, 0')
    a('s_nop 1')
    if a.s1:
        LL = a.uid('ploopL')
        a(f's_branch {LL}_nc')
        p_body(a, loc, Prof(prof), done, LL, True, LH, True)
    else: a(f's_branch {LH}_nc')
    p_body(a, loc, Prof(prof), done, LH, False, None, not a.s1)

def p_body(a, loc, pf, done, L, light, nxt, entry):
    Lrm = L + '_rm'; Lrp = L + '_rp'
    mld = [f'buffer_load_dwordx4 {v(PV_M+4*j,4)}, {v(PV_L16)}, {s(SRD_WS,4)}, {s(S_MLD)} offen offset:{1024*j} sc1' for j in range(4)]
    mreg = lambda b: [PV_M + 4 * b]
    def mm(check):
        if check:
            a('s_waitcnt vmcnt(3)')
            for x in chk(mreg(0), PV_T, f'{Lrm}_0'): a(x)
            a.label(f'{Lrm}_0ok')
            pf.stamp(a, 'b0ok')
        for b in range(4):
            ms = [f'v_smfmac_f32_16x16x64_bf16 {v(PV_ACC+4*t,4)}, {v(PV_M+4*b,4)}, {v(pw(b,t),8)}, {v(PV_IDX)}' for t in range(4 if a.qkf else 6)]
            if check and b < 3:
                c = chk(mreg(b + 1), PV_T, f'{Lrm}_{b+1}')
                ms = ms[:a.mck] + [f's_waitcnt vmcnt({2-b})'] + c[:-1] + ms[a.mck:] + c[-1:]
            if b == 3:
                ms = ms[:1] + [f'ds_write_b32 {v(PV_FLGW)}, {v(PV_FV)} offset:32'] + ms[1:]
            for x in ms: a(x)
            if check and b < 3: a.label(f'{Lrm}_{b+1}ok')
    if a.al: a.raw(f'.p2align {a.al}')
    for i in range(a.alo): a('s_nop 0')
    a.label(L)
    pf.stamp(a, 'top')
    for i in range(24): a(f'v_mov_b32 {v(PV_ACC+i)}, 0')
    if light and a.jit: p_gate(a, 0)
    if a.md: a(f's_sleep {a.md}')
    for x in mld: a(x)
    mm(True)
    if entry:
        a(f's_branch {L}_mmd')
        a.label(L + '_nc')
        if pf.on:
            a(f's_memtime {s(S_PROF, 2)}'); a(f's_memtime {s(S_PROF+2, 2)}')
        mm(False)
        a.label(L + '_mmd')
    pf.stamp(a, 'mmdone')
    def wr(t):
        A = PV_ACC + 4 * t
        a(f'v_add_f32 {v(A)}, {v(A)}, {v(A+2)}'); a(f'v_add_f32 {v(A+1)}, {v(A+1)}, {v(A+3)}')
        a(f'ds_write2_b32 {v((PV_R1W, PV_R1W1, PV_R1W2)[t>>1])}, {v(A)}, {v(A+1)} offset0:{16*(t&1)} offset1:{16*(t&1)+40}')
    R = 32
    def add4(d, x):
        for e in range(4): a(f'v_add_f32 {v(d+e)}, {v(d+e)}, {v(x+e)}')
    def reduce(fill=()):
        for h in range(4):
            a(f'ds_read_b128 {v(R+4*h,4)}, {v(PV_R1R)} offset:{LDS_RED1+3840*h}')
        for x in fill: a(x)
        a('s_waitcnt lgkmcnt(2)')
        add4(R, R + 4)
        a('s_waitcnt lgkmcnt(0)')
        add4(R + 8, R + 12)
        add4(R, R + 8)
        a(f'v_cvt_pk_bf16_f32 v56, {v(R)}, {v(R+1)}')
        a(f'v_cvt_pk_bf16_f32 v57, {v(R+2)}, {v(R+3)}')
        a('v_min_u32 v56, -2, v56')
        a(f'buffer_store_dwordx2 v[56:57], {v(PV_QST)}, {s(SRD_WS,4)}, {s(S_QST)} offen{loc}')
    def qreset():
        ring(a, S_QRS, 2, 18, S_QO)
        a(f'buffer_store_dwordx2 {v(PV_NEG,2)}, {v(PV_QST)}, {s(SRD_WS,4)}, {s(S_QRS)} offen{loc}')
    if a.qkf:
        vm = [f'v_smfmac_f32_16x16x64_bf16 {v(PV_ACC+4*t,4)}, {v(PV_M+4*b,4)}, {v(pw(b,t),8)}, {v(PV_IDX)}' for b in range(4) for t in (4, 5)]
        a(f's_cmp_ge_u32 {s(S_W)}, 2')
        for x in vm[:2]: a(x)
        a('s_nop 1')
        for t in range(4): wr(t)
        for x in vm[2:4]: a(x)
        a('s_waitcnt lgkmcnt(0)')
        pf.stamp(a, 'b1rdy', -2)
        a('s_barrier')
        pf.stamp(a, 'b1')
        a(f's_cbranch_scc1 {L}_sk0')
        reduce(vm[4:])
        a(f's_branch {L}_sk0b')
        a.label(L + '_sk0')
        for x in vm[4:]: a(x)
        a('s_nop 6')
        a.label(L + '_sk0b')
        a(f's_cmp_lg_u32 {s(S_W)}, 2')
        wr(4); wr(5)
        a('s_waitcnt lgkmcnt(0)')
        a('s_barrier')
        a(f's_cbranch_scc1 {L}_sk2')
        reduce()
        a.label(L + '_sk2')
        a(f's_cmp_eq_u32 {s(S_W)}, 3')
        a(f's_cbranch_scc1 {L}_sk1')
        qreset()
    else:
        a(f's_cmp_eq_u32 {s(S_W)}, 3')
        a('s_nop 1')
        for t in range(6): wr(t)
        a('s_waitcnt lgkmcnt(0)')
        pf.stamp(a, 'b1rdy', -2)
        a('s_barrier')
        pf.stamp(a, 'b1')
        a(f's_cbranch_scc1 {L}_sk1')
        reduce()
        qreset()
    a.label(L + '_sk1')
    pf.stamp(a, 'qpub', -2)
    a('s_setprio 0')
    sc = light and a.scb < 64
    NU = 2 * (64 - a.scb)
    def sc_cond(lo, lab):
        a(f's_sub_u32 {s(S_T0)}, {s(S_S)}, {lo}')
        a(f's_cmp_ge_u32 {s(S_T0)}, {NU}')
        a(f's_cbranch_scc1 {lab}')
    if sc:
        assert a.sc0 + NU + 1 < a.s1 and a.sc0 + NU + 2 < 63 and a.sc0 + 4 < a.scb
        sc_cond(a.sc0 + 1, L + '_nsc')
        a(f's_setprio {a.scp}')
        a(f'v_add_u32 {v(PV_T)}, {s(S_XB)}, {v(PV_L16)}')
        if not a.xpos: a(f's_xor_b32 {s(S_XB)}, {s(S_XB)}, {s(S_XBX)}')
        rd = lambda k: f'ds_read_b128 {v(PV_M+4*(k&3),4)}, {v(PV_T)} offset:{1024*k}'
        for k in range(4): a(rd(k))
        for k in range(8):
            a(f's_waitcnt lgkmcnt({min(3, 7-k) if k < 4 or True else 0})' if k == 0 else f's_waitcnt lgkmcnt({min(2, 7-k)})')
            for t in range(6):
                d = v(PV_ACC + 4 * t, 4)
                a(f'v_mfma_f32_16x16x32_bf16 {d}, {v(PV_M+4*(k&3),4)}, {v(pw(k>>1,t)+4*(k&1),4)}, {"0" if k == 0 else d}')
                if t == 2 and 1 <= k and k + 3 < 8: a(rd(k + 3))
        a(f"""
        v_lshrrev_b32 {v(PV_M)}, 8, {v(PV_L16)}
        v_mul_u32_u24 {v(PV_M)}, 576, {v(PV_M)}
        v_bfe_u32 {v(PV_M+1)}, {v(PV_L16)}, 4, 4
        v_lshl_add_u32 {v(PV_M)}, {v(PV_M+1)}, 2, {v(PV_M)}
        s_mul_i32 {s(S_T0)}, {s(S_W)}, 6912
        s_add_u32 {s(S_T0)}, {s(S_T0)}, {LDS_SCP}
        v_add_u32 {v(PV_M)}, {s(S_T0)}, {v(PV_M)}
        v_add_u32 {v(PV_M+1)}, 2304, {v(PV_M)}
        v_add_u32 {v(PV_M+2)}, 4608, {v(PV_M)}
        """)
        for t in range(6):
            for i in (0, 2):
                a(f'ds_write2_b32 {v(PV_M+(t>>1))}, {v(PV_ACC+4*t+i)}, {v(PV_ACC+4*t+i+1)} offset0:{36*i+16*(t&1)} offset1:{36*i+36+16*(t&1)}')
        a('s_waitcnt lgkmcnt(0)')
        a('s_setprio 0')
        a.label(L + '_nsc')
    ring(a, S_MRS, 3, a.msh, S_MSO)
    mex = f's_mov_b64 exec, {s(S_MEX,2)}'
    for d in range(4): a(f'v_mov_b32 {v(44+d)}, -1')
    a(mex)
    a(f'buffer_store_dwordx4 v[44:47], {v(PV_MST)}, {s(SRD_WS,4)}, {s(S_MRS)} offen{loc}')
    a('s_mov_b64 exec, -1')
    for d in range(4): a(f'v_mov_b32_dpp {v(48+d)}, {v(PV_SEL+d)} row_ror:8 row_mask:0xf bank_mask:0xf')
    ring(a, S_PLD, 0, PSLOT, S_PO)
    ring(a, S_MST, 1, a.msh, S_MSO)
    ring(a, S_MLD, 1, a.msh, S_MO)
    ring(a, S_QST, 1, 18, S_QO)
    def seg(part):
        if 's' in a.abl: return
        Lh = a.uid('pnoseg')
        a(f's_cmp_eq_u32 {s(S_SP)}, {s(S_SP0)}')
        a(f's_cbranch_scc1 {Lh}')
        p_segreduce(a, part)
        a.label(Lh)
    def oflush(part):
        l = a.uid('ofl')
        a(f's_cmp_eq_u32 {s(S_OF)}, 0')
        a(f's_cbranch_scc1 {l}')
        if part == 1:
            a(f's_lshl_b32 {s(S_T0)}, {s(S_W)}, 10')
            a(f'v_add_u32 v39, {s(S_T0)}, {v(PV_L16)}')
            a(f'ds_read_b128 v[40:43], v39 offset:{LDS_SEG}')
        else:
            a(f's_lshl_b32 {s(S_T0)}, {s(S_S)}, 18')
            a(f's_add_u32 {s(S_T0)}, {s(S_T0)}, {s(S_OB)}')
            if 'o' not in a.abl: a(f'buffer_store_dwordx4 v[40:43], {v(PV_L16)}, {s(SRD_WS,4)}, {s(S_T0)} offen sc1')
            a(f's_mov_b32 {s(S_OF)}, 0')
        a.label(l)
    unit = a.s0 < a.s1
    if unit: oflush(1)
    if light:
        a(f"""
        s_cmp_ge_u32 {s(S_S)}, {a.s0}
        s_cbranch_scc1 {L}_nx
        v_mov_b32 v40, {v(PV_QST)}
        v_mov_b32 v42, v56
        v_mov_b32 v43, v57
        s_cmp_lg_u32 {s(S_W)}, 2
        s_cbranch_scc1 {L}_nx
        v_and_b32 v40, 0x60, {v(PV_L16)}
        v_lshlrev_b32 v40, 2, v40
        v_lshrrev_b32 v41, 3, {v(PV_L16)}
        v_and_b32 v41, 0x70, v41
        v_or_b32 v40, v40, v41
        v_bfe_u32 v41, {v(PV_L16)}, 4, 1
        v_lshl_or_b32 v40, v41, 3, v40
        s_lshl_b32 {s(S_T0)}, {s(S_J)}, 9
        s_add_u32 {s(S_T0)}, {s(S_T0)}, 4096
        v_add_u32 v40, {s(S_T0)}, v40
        s_mov_b32 vcc_lo, 0x55555555
        s_mov_b32 vcc_hi, 0x55555555
        v_cndmask_b32_dpp v42, v57, v56, vcc quad_perm:[1,0,3,2] row_mask:0xf bank_mask:0xf
        s_not_b64 vcc, vcc
        v_cndmask_b32_dpp v43, v56, v57, vcc quad_perm:[1,0,3,2] row_mask:0xf bank_mask:0xf
        """)
        a.label(L + '_nx')
    else:
        a(f's_cmp_eq_u32 {s(S_S)}, {a.last}')
        a(f's_cbranch_scc1 {L}_tail')
        seg(1)
    if not (light and a.jit): p_gate(a, 1 if light else 0)
    a(f'v_readfirstlane_b32 {s(S_T4)}, {v(PV_RDY)}')
    a(f's_lshr_b32 {s(S_OK)}, {s(S_OK)}, 1')
    a(f's_cmp_ge_u32 {s(S_T4)}, {s(S_RTG)}')
    a(f's_cselect_b32 {s(S_T4)}, 2, 0')
    a(f's_or_b32 {s(S_OK)}, {s(S_OK)}, {s(S_T4)}')
    a(f's_cmp_eq_u32 {s(S_W)}, 3')
    a(f's_cselect_b32 {s(S_T3)}, {s(S_T4)}, 0')
    gate_addr(a, S_RDY, 4, S_RTG)
    dl = []
    for m, ch in (((1, 'v'),) if a.hk and not light else ((0, 'k'), (1, 'v'))[:1 if light else 2]):
        if ch not in a.abl and not (light and a.lr & 2): dl += dma_list(a, m, PV_L16, S_T0)
    nd1 = a.ndl if light else a.nd1
    a(f's_setprio {a.fprio}')
    flag_wait(a, L + '_fs', PV_FLGR, 0, 32, S_T1, sl=a.fsl)
    pf.stamp(a, 'flag')
    a(f's_setprio {a.dprio}')
    for x in dl[:nd1]: a(x)
    def xdma(lo, hi, tag):
        if lo == hi: return
        sc_cond(a.sc0, L + tag)
        for k in range(lo, hi):
            if k == lo or k == 4:
                a(f's_add_u32 m0, {s(S_XB)}, {4096*(k>>2)}')
                a(f's_add_u32 {s(S_T0)}, {s(S_XG)}, {4096*(k>>2)}')
            a(f'buffer_load_dwordx4 {v(PV_L16)}, {s(SRD_WS,4)}, {s(S_T0)} offen offset:{1024*(k&3)} sc1 lds')
        if hi == 8: a(f's_add_u32 {s(S_XG)}, {s(S_XG)}, 32768')
        a.label(L + tag)
    if sc and a.xpos: xdma(0, a.nx1, '_x1')
    if light and a.ofd:
        if sc:
            a(f's_sub_u32 {s(S_T0)}, {s(S_S)}, {a.sc0}')
            a(f's_cmp_le_u32 {s(S_T0)}, {NU}')
            a(f's_cbranch_scc1 {L}_nofd')
        a(f's_sleep {a.ofd}')
        a.label(L + '_nofd')
    if 't' not in a.abl:
        a(f's_cmp_eq_u32 {s(S_T3)}, 0')
        a(f's_cbranch_scc1 {L}_nt')
        if light:
            a(f's_cmp_ge_u32 {s(S_S)}, {max(a.s0 - 3, 0)}')
            a('s_cselect_b32 exec_hi, 0xffff, 0')
        else: a('s_mov_b32 exec_hi, 0xffff')
        a(f'buffer_load_dword {v(PV_RDY)}, {v(PV_PFA)}, {s(SRD_WS,4)}, {s(S_TCH)} offen sc1')
        a('s_mov_b32 exec_hi, -1')
        if a.ctch:
            for n, (st, lab, nl) in enumerate(((a.s1 - 2, nxt, 18), (a.s1 - 2, 'ct_aH', 30)) if light else ((a.last - 2, 'ct_tail', 2), (a.last - 2, L + '_tail', 4))):
                a(f's_cmp_lg_u32 {s(S_S)}, {st}')
                a(f's_cbranch_scc1 {L}_nt')
                vcode_touch(a, lab, nl, 62, PV_L16, 38, PV_RDY)
        a.label(L + '_nt')
    if sc:
        a(f's_cmp_lg_u32 {s(S_W)}, 2')
        a(f's_cbranch_scc1 {L}_nxt')
        sc_cond(a.sc0 - 2, L + '_nxt')
        a(f's_lshl_b32 {s(S_T0)}, {s(S_T0)}, 15')
        a(f's_lshl_b32 {s(S_T1)}, {s(S_I)}, 10')
        a(f's_add_u32 {s(S_T0)}, {s(S_T0)}, {s(S_T1)}')
        a(f's_add_u32 {s(S_T0)}, {s(S_T0)}, {WS_XN2 + a.scb * 65536}')
        a(f'v_lshlrev_b32 v39, 3, {v(PV_L16)}')
        a('s_mov_b64 exec, 0xff')
        a(f'buffer_load_dword {v(PV_RDY)}, v39, {s(SRD_WS,4)}, {s(S_T0)} offen sc1')
        a('s_mov_b64 exec, -1')
        a.label(L + '_nxt')
    if unit: oflush(2)
    if light:
        if unit:
            a(f's_lshr_b32 {s(S_T0)}, {s(S_C)}, 3')
            a(f's_xor_b32 {s(S_T0)}, {s(S_T0)}, {s(S_S)}')
            a(f's_andn2_b32 {s(S_OF)}, 1, {s(S_T0)}')
            a(f's_cmp_ge_u32 {s(S_S)}, {a.s0}')
            a(f's_cselect_b32 {s(S_OF)}, {s(S_OF)}, 0')
            a(f's_cbranch_scc1 {L}_nx2')
        a(f's_cmp_eq_u32 {s(S_W)}, 3')
        a(f's_cbranch_scc1 {L}_nx2')
        if 'x' not in a.abl: a(f'buffer_store_dwordx2 v[42:43], v40, {s(SRD_WS,4)}, {s(S_KMX)} offen sc1')
        a.label(L + '_nx2')
        a(f's_add_u32 {s(S_KMX)}, {s(S_KMX)}, 262144')
    else: seg(2)
    if a.pgp:
        a(f's_or_b32 {s(S_T0)}, {s(S_I)}, {s(S_W)}')
        a(f's_cmp_lg_u32 {s(S_T0)}, 0')
        a(f's_cbranch_scc1 {L}_npg')
        a(f's_sub_u32 {s(S_T4)}, {s(S_S)}, 1')
        a(f's_cbranch_scc1 {L}_npg')
        a(f's_and_b32 {s(S_T0)}, {s(S_T4)}, 3')
        a(f's_cmp_ge_u32 {s(S_S)}, 58')
        a(f's_cselect_b32 {s(S_T0)}, 0, {s(S_T0)}')
        a(f's_cmp_lg_u32 {s(S_T0)}, 0')
        a(f's_cbranch_scc1 {L}_npg')
        a(f's_lshl_b32 {s(S_T0)}, {s(S_X)}, 7')
        a(f's_add_u32 {s(S_T0)}, {s(S_T0)}, {F.CS_TAB}')
        a(f'v_mov_b32 {v(PV_T)}, {s(S_T4)}')
        a('s_mov_b64 exec, 1')
        a(f'buffer_store_dword {v(PV_T)}, off, {s(SRD_WS,4)}, {s(S_T0)} sc1')
        a('s_mov_b64 exec, -1')
        a.label(L + '_npg')
    if a.rdp: a(f'buffer_load_dword {v(PV_RDY)}, off, {s(SRD_WS,4)}, {s(S_RDY)} sc1')
    pf.stamp(a, 'b2rdy')
    a('s_barrier')
    pf.stamp(a, 'b2')
    if not a.rdp: a(f'buffer_load_dword {v(PV_RDY)}, off, {s(SRD_WS,4)}, {s(S_RDY)} sc1')
    if sc:
        a(f's_cmp_eq_u32 {s(S_W)}, 3')
        a(f's_cbranch_scc1 {L}_nsr')
        sc_cond(a.sc0 + 1, L + '_nsr')
        a(f"""
        v_bfe_u32 v56, {v(PV_L16)}, 4, 4
        v_mul_u32_u24 v56, 144, v56
        v_lshrrev_b32 v57, 8, {v(PV_L16)}
        v_lshl_add_u32 v56, v57, 5, v56
        v_and_b32 v57, 1, v57
        s_mul_i32 {s(S_T0)}, {s(S_W)}, 2304
        s_add_u32 {s(S_T0)}, {s(S_T0)}, {LDS_SCP}
        v_add_u32 v56, {s(S_T0)}, v56
        v_sub_u32 {v(PV_T)}, 1, v57
        v_lshl_add_u32 {v(PV_T)}, {v(PV_T)}, 4, v56
        v_lshl_add_u32 v56, v57, 4, v56
        """)
        for h in range(4):
            a(f'ds_read_b128 {v(16+8*h,4)}, v56 offset:{6912*h}')
            a(f'ds_read_b128 {v(20+8*h,4)}, {v(PV_T)} offset:{6912*h}')
        a('s_waitcnt lgkmcnt(4)')
        for e in range(8): a(f'v_add_f32 {v(16+e)}, {v(16+e)}, {v(24+e)}')
        a('s_waitcnt lgkmcnt(0)')
        for e in range(8): a(f'v_add_f32 {v(32+e)}, {v(32+e)}, {v(40+e)}')
        for e in range(8): a(f'v_add_f32 {v(16+e)}, {v(16+e)}, {v(32+e)}')
        for d in range(4): a(f'v_cvt_pk_bf16_f32 {v(44+d)}, {v(16+2*d)}, {v(17+2*d)}')
        a(f'buffer_store_dwordx4 v[44:47], {v(PV_L16)}, {s(SRD_WS,4)}, {s(S_SCO)} offen{loc}')
        a(f's_add_u32 {s(S_SCO)}, {s(S_SCO)}, 131072')
        a(f's_branch {L}_nsr2')
        a.label(L + '_nsr')
        a(f's_sleep {a.scd}')
        a.label(L + '_nsr2')
        if a.xpos: xdma(a.nx1, 8, '_x2')
        a(f's_sleep {max(a.cdl - a.scd - a.scx, 0)}')
    if dl[nd1:]:
        if a.d2: a(f's_sleep {a.d2}')
        for x in dl[nd1:]: a(x)
    a(f's_add_u32 {s(S_S)}, {s(S_S)}, 1')
    a(f'v_mov_b32 {v(PV_FV)}, {s(S_S)}')
    a(f's_add_u32 {s(S_KG)}, {s(S_KG)}, 262144')
    a(f's_add_u32 {s(S_TCH)}, {s(S_TCH)}, 262144')
    if not light: a(f's_mov_b32 {s(S_SP0)}, 0')
    a('s_setprio 3')
    cd = 0 if sc else a.cdl if light else a.cdh if a.hk else a.cd
    if cd: a(f's_sleep {cd}')
    pf.stamp(a, 'poll')
    a.label(L + '_pagain')
    for i in range(2): a(f'buffer_load_dwordx4 {v(PV_M+4*i,4)}, {v(PV_L16)}, {s(SRD_WS,4)}, {s(S_PLD)} offen offset:{1024*i} sc1')
    D = 32
    a('s_waitcnt vmcnt(1)')
    a(f'v_mfma_f32_16x16x32_bf16 {v(D,4)}, {v(PV_SEL,4)}, {v(PV_M,4)}, 0')
    a('s_waitcnt vmcnt(0)')
    pf.stamp(a, 'p1')
    a(f'v_mfma_f32_16x16x32_bf16 {v(D,4)}, v[48:51], {v(PV_M+4,4)}, {v(D,4)}')
    for x in chk([PV_M, PV_M + 4], PV_T, Lrp): a(x)
    a.label(L + '_pgo')
    if light: a(f's_cmp_lt_u32 {s(S_S)}, {a.s1}')
    a(f's_nop {3 if light else 4}')
    for e in range(4): a(f'v_add_f32_dpp {v(D+4+e)}, {v(D+e)}, {v(D+e)} row_ror:8 row_mask:0xf bank_mask:0xf')
    a(f'v_cvt_pk_bf16_f32 v52, {v(D+4)}, {v(D+5)}')
    a(f'v_cvt_pk_bf16_f32 v53, {v(D+6)}, {v(D+7)}')
    a('s_nop 0')
    a('v_permlane16_swap_b32 v52, v54')
    a('v_permlane16_swap_b32 v53, v55')
    a(mex)
    a('v_min_u32 v52, -2, v52')
    a(f'buffer_store_dwordx4 v[52:55], {v(PV_MST)}, {s(SRD_WS,4)}, {s(S_MST)} offen{loc}')
    a('s_mov_b64 exec, -1')
    a(f'ds_write_b32 {v(PV_FLGW)}, {v(PV_FV)} offset:16')
    pf.stamp(a, 'mpub')
    if pf.on:
        a(f's_sub_u32 {s(S_S)}, {s(S_S)}, 1')
        pf.flush(a, 56, 'P')
        a(f's_add_u32 {s(S_S)}, {s(S_S)}, 1')
        if light: a(f's_cmp_lt_u32 {s(S_S)}, {a.s1}')
    if light:
        a(f's_cbranch_scc1 {L}')
        a(f's_branch {nxt}')
    else: a(f's_branch {L}')
    for b in range(4):
        spin_block(a, f'{Lrm}_{b}', mld[b:], mreg(b), PV_T, f'{Lrm}_{b}ok', f'{Lrm}_{b}ok')
    a.label(Lrp)
    if a.rsleep: a(f's_sleep {a.rsleep}')
    a(f's_sub_u32 {s(S_TO)}, {s(S_TO)}, 1')
    a(f's_cbranch_scc0 {L}_pagain')
    a(f's_mov_b32 {s(S_TO)}, 0')
    a(f's_branch {L}_pgo')
    if not light:
        a.label(L + '_tail')
        p_segreduce(a)
        a('s_barrier')
        p_segreduce(a)
        a(f's_branch {done}')

AV_L16, AV_PST, AV_MX, AV_T = 0, 1, 2, 3
AV_ONE = 4
AV_HALF = 8
AV_IDX = 166
AV_FLGR = 167
AV_VMW, AV_TRV, AV_TRM = 180, 181, 182
S_QM = 56
AV_S = 12
AV_O = 24
AV_VWM = 40
AV_Y, AV_X = 48, 64
AV_VWS = 80
AV_KS, AV_TB = 96, 128
AV_NEG, AV_R2W, AV_R2R, AV_SGW, AV_LB, AV_FLGW, AV_FV = 176, 160, 161, 162, 163, 164, 165
AV_PK = 168
AV_SEL = 184
AV_FT = 188
AV_WO = 192
def wo(u, ct): return AV_WO + (ct * 4 + u) * 4
def xk(u): return AV_Y + 4 * u

def tr_addr(a, vd, vl, rowbytes, T, hh, t1, t2):
    sh = rowbytes.bit_length() - 1
    a(f'''
    v_lshrrev_b32 {v(t1)}, 4, {v(vl)}
    v_and_b32 {v(t2)}, 1, {v(t1)}
    v_xor_b32 {v(t2)}, {hh}, {v(t2)}
    v_lshlrev_b32 {v(t2)}, 2, {v(t2)}
    v_lshl_add_u32 {v(t2)}, {v(t1)}, 3, {v(t2)}
    v_bfe_u32 {v(t1)}, {v(vl)}, 2, 2
    v_add_u32 {v(t2)}, {v(t2)}, {v(t1)}
    v_lshlrev_b32 {v(t2)}, {sh}, {v(t2)}
    v_and_b32 {v(t1)}, 3, {v(vl)}
    v_lshl_add_u32 {v(t2)}, {v(t1)}, 4, {v(t2)}
    v_and_b32 {v(t1)}, 1, {v(t1)}
    v_xor_b32 {v(t1)}, {T}, {v(t1)}
    v_lshl_add_u32 {v(vd)}, {v(t1)}, 3, {v(t2)}
    ''')

def vw_list(AV_TB):
    m = []
    for u in range(4):
        for kt in range(2):
            for ct in range(4):
                d = AV_Y + (kt * 4 + ct) * 4
                m.append(f'v_mfma_f32_16x16x32_bf16 {v(d,4)}, {v(AV_TB+(kt*4+u)*4,4)}, {v(wo(u,ct),4)}, {"0" if u==0 else v(d,4)}')
    return m
def vw_pack():
    o = []
    for ct in range(4):
        for kt in range(2):
            d = AV_Y + (kt * 4 + ct) * 4
            o.append(f'v_cvt_pk_bf16_f32 {v(AV_VWS+4*ct+2*kt)}, {v(d)}, {v(d+1)}')
            o.append(f'v_cvt_pk_bf16_f32 {v(AV_VWS+4*ct+2*kt+1)}, {v(d+2)}, {v(d+3)}')
    return o

def a_prologue(a):
    a(f'''
    v_and_b32 v20, 63, v0
    v_lshlrev_b32 {v(AV_L16)}, 4, v20
    s_lshl_b32 {s(S_T0)}, {s(S_H)}, 18
    s_lshl_b32 {s(S_T1)}, {s(S_C)}, 7
    s_add_u32 {s(S_T0)}, {s(S_T0)}, {s(S_T1)}
    s_lshl_b32 {s(S_T2)}, {s(S_T4)}, 13
    s_add_u32 {s(S_T2)}, {s(S_T2)}, 131072
    s_load_dwordx2 {s(SRD_T,2)}, s[0:1], {KA_WO}
    s_mov_b32 {s(SRD_T+2)}, {8*MB}
    s_mov_b32 {s(SRD_T+3)}, {SRD3}
    v_lshrrev_b32 v21, 3, v20
    v_and_b32 v22, 7, v20
    v_lshlrev_b32 v21, 11, v21
    v_lshl_add_u32 v21, v22, 4, v21
    ''')
    for T in range(2):
        for hh in range(2):
            tr_addr(a, 24 + T * 2 + hh, 20, 128, T, hh, 28, 29)
            a(f'v_add_u32 {v(24+T*2+hh)}, {s(S_T2)}, {v(24+T*2+hh)}')
    a('s_waitcnt lgkmcnt(0)')
    for n in range(8):
        a(f's_add_u32 m0, {s(S_T2)}, {n*1024}')
        a('s_nop 0')
        a(f'buffer_load_dwordx4 v21, {s(SRD_T,4)}, {s(S_T0)} offen{a.wnt[3]} lds')
        a(f's_add_u32 {s(S_T0)}, {s(S_T0)}, {8*2048}')
    for n in range(8):
        a(f'buffer_load_dwordx4 {v(AV_KS+4*n,4)}, v21, {s(SRD_T,4)}, {s(S_T0)} offen{a.wnt[3]}')
        a(f's_add_u32 {s(S_T0)}, {s(S_T0)}, {8*2048}')

def a_prologue2(a):
    a(f's_lshl_b32 {s(S_T2)}, {s(S_T4)}, 13')
    a(f's_add_u32 {s(S_T2)}, {s(S_T2)}, 131072')
    a(f'v_add_u32 v30, {s(S_T2)}, {v(AV_L16)}')
    for half in range(2):
        a(f's_waitcnt vmcnt({8 - 8*half})')
        if half:
            for n in range(8): a(f'ds_write_b128 v30, {v(AV_KS+4*n,4)} offset:{n*1024}')
            a('s_waitcnt lgkmcnt(0)')
        for uu in range(2):
            for p in range(2):
                for T in range(2):
                    for hh in range(2):
                        a(f'ds_read_b64_tr_b16 {v(wo(2*half+uu, 2*p+T)+2*hh,2)}, {v(24+T*2+hh)} offset:{uu*4096+p*64}')
            a('s_waitcnt lgkmcnt(0)')
    a(f'''
    v_lshrrev_b32 v21, 4, v20
    v_and_b32 v22, 2, v20
    v_cmp_eq_u32 {s(S_QM,2)}, 2, v22
    v_and_b32 v23, 15, v20
    v_lshlrev_b32 v21, 2, v21
    v_mov_b32 v8, 0x44444444
    v_mov_b32 v9, 0xeeeeeeee
    v_cndmask_b32 {v(AV_IDX)}, v8, v9, {s(S_QM,2)}
    v_mov_b32 v8, 0x3f803f80
    v_mov_b32 v9, 0
    v_mov_b32 v10, 0
    v_mov_b32 v11, 0
    v_mov_b32 v4, 0x3f803f80
    v_mov_b32 v5, 0x3f803f80
    v_mov_b32 v6, 0x3f803f80
    v_mov_b32 v7, 0x3f803f80
    s_mov_b32 {s(S_CST)}, 0x3e0293ee
    s_lshl_b32 {s(S_PRG)}, {s(S_I)}, 2
    s_add_u32 {s(S_PRG)}, {s(S_PRG)}, {s(S_T4)}
    s_lshl_b32 {s(S_CS)}, {s(S_X)}, 7
    s_add_u32 {s(S_CS)}, {s(S_CS)}, {F.CS_TAB}
    v_add_u32 {v(AV_LB)}, {s(S_KL)}, {v(AV_L16)}
    s_lshl_b32 {s(S_T0)}, {s(S_T4)}, 2
    s_add_u32 {s(S_T0)}, {s(S_T0)}, {LDS_FLG}
    v_mov_b32 {v(AV_FLGW)}, {s(S_T0)}
    v_mov_b32 {v(AV_FLGR)}, {LDS_FLG}
    ''')
    sel_init(a, AV_SEL, 20, 24, 25)
    a(f'''
    v_lshrrev_b32 v24, 4, v20                 ; g
    v_bfe_u32 v25, v20, 2, 2
    v_and_b32 v26, 1, v20
    v_lshl_add_u32 v26, v25, 1, v26           ; t
    v_lshlrev_b32 v26, 4, v26
    v_lshl_add_u32 v26, v24, 8, v26
    v_bfe_u32 v27, v20, 1, 1
    v_lshl_add_u32 v26, v27, 2, v26
    s_add_u32 {s(S_T0)}, {s(S_KL)}, 20480
    v_add_u32 {v(AV_VMW)}, {s(S_T0)}, v26
    v_and_b32 v26, 3, v20                     ; cc
    v_lshl_add_u32 v27, v24, 2, v25
    v_lshl_add_u32 v27, v26, 4, v27
    v_lshlrev_b32 v27, 4, v27
    v_add_u32 {v(AV_TRV)}, {s(S_KL)}, v27
    v_and_b32 v25, 1, v25
    v_lshl_add_u32 v25, v24, 1, v25
    v_lshl_add_u32 v25, v26, 3, v25
    v_lshlrev_b32 v25, 4, v25
    v_add_u32 {v(AV_TRM)}, {s(S_T0)}, v25
    s_bfe_u32 {s(S_T0)}, {s(S_C)}, 0x20001
    s_lshr_b32 {s(S_DW)}, {s(S_C)}, 3
    s_cmp_eq_u32 {s(S_T0)}, {s(S_T4)}
    s_cselect_b32 {s(S_DW)}, {2 if 'u' in a.abl else s(S_DW)}, 2
    s_and_b32 {s(S_QT)}, {s(S_C)}, 1
    s_lshl_b32 {s(S_QT)}, {s(S_QT)}, 17
    s_mov_b32 {s(S_U2)}, 0
    ''')
    for i in range(4):
        a(f'v_add_u32 v24, {i}, v21')
        a(f'v_cmp_gt_u32 {s(S_M0+2*i,2)}, v24, v23')

def a_static(a):
    a(f"""
    v_and_b32 v20, 63, v0
    v_lshrrev_b32 v21, 4, v20                 ; g
    v_bfe_u32 v22, v20, 1, 1
    v_xor_b32 v22, 1, v22                     ; p = !(n&2)
    v_lshl_add_u32 v23, v22, 2, v21           ; uu
    v_bfe_u32 v22, v20, 2, 2
    v_and_b32 v24, 1, v20
    v_lshl_add_u32 v22, v22, 1, v24           ; t
    v_lshl_add_u32 v23, v23, 3, v22
    v_and_b32 v22, 7, v20
    v_lshlrev_b32 v23, 4, v23
    s_lshl_b32 {s(S_T0)}, {s(S_T4)}, 10
    s_add_u32 {s(S_T0)}, {s(S_T0)}, {LDS_RED2}
    v_add_u32 {v(AV_R2W)}, {s(S_T0)}, v23
    v_and_b32 v24, 15, v20
    v_lshlrev_b32 v24, 4, v24                 ; n*16
    v_lshl_add_u32 v23, v21, 10, v24
    s_lshl_b32 {s(S_T0)}, {s(S_T4)}, 8
    s_add_u32 {s(S_T0)}, {s(S_T0)}, {LDS_RED2}
    v_add_u32 {v(AV_R2R)}, {s(S_T0)}, v23
    v_lshl_add_u32 v23, v21, 9, v24
    s_lshl_b32 {s(S_T0)}, {s(S_T4)}, 12
    s_add_u32 {s(S_T0)}, {s(S_T0)}, {LDS_SEG}
    v_add_u32 {v(AV_SGW)}, {s(S_T0)}, v23
    v_bfe_u32 v23, v20, 3, 1
    v_lshlrev_b32 v23, 10, v23
    v_lshl_add_u32 v23, v22, 4, v23
    v_mov_b32 {v(AV_PST)}, v23
    s_lshl_b32 {s(S_PO)}, {s(S_C)}, 14
    s_lshl_b32 {s(S_T0)}, {s(S_T4)}, 11
    s_add_u32 {s(S_PO)}, {s(S_PO)}, {s(S_T0)}
    s_lshl_b32 {s(S_T0)}, {s(S_G)}, 7
    s_add_u32 {s(S_PO)}, {s(S_PO)}, {s(S_T0)}
    s_add_u32 {s(S_PO)}, {s(S_PO)}, {WS_PART}
    """)
    for i in range(4): a(f'v_mov_b32 {v(AV_NEG+i)}, -1')

def exp_seq(r):
    seq = []
    n = len(r)
    seq.append(f'v_max3_f32 {v(AV_MX)}, {v(r[0])}, {v(r[1])}, {v(r[2])}')
    seq.append(f'v_max3_f32 {v(AV_T)}, {v(r[3])}, {v(r[4])}, {v(r[5])}')
    rr = r[6:]; k = 0
    while len(rr) >= 2:
        d = (AV_MX, AV_T)[k & 1]; k += 1
        seq.append(f'v_max3_f32 {v(d)}, {v(d)}, {v(rr[0])}, {v(rr[1])}'); rr = rr[2:]
    seq.append(f'v_max_f32 {v(AV_MX)}, {v(AV_MX)}, {v(AV_T)}')
    seq += red_gq(AV_MX, AV_T, 'v_max_f32')
    seq.append(f'v_mul_f32 {v(AV_MX)}, {s(S_CST)}, {v(AV_MX)}')
    fm = [f'v_fma_f32 {v(x)}, {v(x)}, {s(S_CST)}, -{v(AV_MX)}' for x in r]
    ex = [f'v_exp_f32 {v(x)}, {v(x)}' for x in r]
    seq += fm[:2]
    for i in range(n):
        if i + 2 < n: seq.append(fm[i + 2])
        seq.append(ex[i])
    return seq

def packP(S, t1zero=False):
    T0, T1, TM = S, S + 4, S + 8
    o = [f'v_cvt_pk_bf16_f32 {v(T0)}, {v(T0)}, {v(T0+1)}', f'v_cvt_pk_bf16_f32 {v(T0+1)}, {v(T0+2)}, {v(T0+3)}']
    if t1zero: o += [f'v_mov_b32 {v(T0+2)}, 0', f'v_mov_b32 {v(T0+3)}, 0']
    else: o += [f'v_cvt_pk_bf16_f32 {v(T0+2)}, {v(T1)}, {v(T1+1)}', f'v_cvt_pk_bf16_f32 {v(T0+3)}, {v(T1+2)}, {v(T1+3)}']
    o += [f'v_cvt_pk_bf16_f32 {v(TM)}, {v(TM)}, {v(TM+1)}', f'v_mov_b32 {v(TM+2)}, 0',
          f'v_mov_b32 {v(TM+1)}, {v(TM)}', f'v_mov_b32 {v(TM+3)}, 0']
    return o

def pv_seq(S, qt, rc):
    SM = S + 4
    o = [f'v_mfma_f32_16x16x32_bf16 {v(SM,4)}, {v(AV_ONE,4)}, {v(S,4)}, 0',
         f'v_mfma_f32_16x16x32_bf16 {v(SM,4)}, {v(AV_HALF,4)}, {v(S+8,4)}, {v(SM,4)}']
    for ct in range(4):
        o.append(f'v_mfma_f32_16x16x32_bf16 {v(AV_O+4*ct,4)}, {v(AV_VWS+4*ct,4)}, {v(S,4)}, 0')
        o.append(f'v_mfma_f32_16x16x32_bf16 {v(AV_O+4*ct,4)}, {v(AV_VWM+2*ct,4)}, {v(S+8,4)}, {v(AV_O+4*ct,4)}')
    o.append(f'v_rcp_f32 {v(rc)}, {v(SM)}')
    o.append('s_nop 0')
    P = AV_PK
    for ct in range(4):
        for i in range(4): o.append(f'v_mul_f32 {v(AV_O+4*ct+i)}, {v(AV_O+4*ct+i)}, {v(rc)}')
        o.append(f'v_cvt_pk_bf16_f32 {v(P+2*ct)}, {v(AV_O+4*ct)}, {v(AV_O+4*ct+1)}')
        o.append(f'v_cvt_pk_bf16_f32 {v(P+2*ct+1)}, {v(AV_O+4*ct+2)}, {v(AV_O+4*ct+3)}')
    for p in range(2): o.append(f'ds_write_b128 {v(AV_SGW)}, {v(P+4*p,4)} offset:{2048*p+256*qt}')
    return o

def a_loop(a, prof, done):
    LH = a.uid('aloopH')
    if a.s1 and a.swp:
        assert a.s1 % 2 == 0 and a.lr == 3 and a.vpos and not a.kpos
        L0, L1 = a.uid('aloopL'), a.uid('aloopM')
        a_body(a, Prof(prof), done, L0, True, None, L1)
        a_body(a, Prof(prof), done, L1, True, LH, L0, 1)
    elif a.s1: a_body(a, Prof(prof), done, a.uid('aloopL'), True, LH)
    a.label('ct_aH')
    a_body(a, Prof(prof), done, LH, False, None)

def a_body(a, pf, done, L, light, nxt, other=None, ph=0):
    Lr = L + '_rq'
    AV_KS, AV_TB = (128, 96) if ph else (96, 128)
    swp = other is not None
    SA = AV_S; SB = AV_X + 4
    if a.al: a.raw(f'.p2align {a.al}')
    for i in range(a.aloa): a('s_nop 0')
    a.label(L)
    pf.stamp(a, 'top')
    ring(a, S_QLD, 0, 18, S_QO)
    a(f's_add_u32 {s(S_QLD2)}, {s(S_QLD)}, 4096')
    ring(a, S_PSTC, 0, PSLOT, S_PO)
    ring(a, S_PRS, 2, PSLOT, S_PO)
    a(f'v_mov_b32 {v(AV_FV)}, {s(S_S)}')
    vw = vw_list(AV_TB)
    kr = [f'ds_read_b128 {v(AV_KS+4*i,4)}, {v(AV_LB)} offset:{1024*i}' for i in range(8)]
    vr = [f'ds_read_b128 {v(AV_TB+4*(kt*4+u),4)}, {v(AV_LB)} offset:{8192+1024*(kt*4+u)}' for u in range(4) for kt in range(2)]
    zo = [f'v_mov_b32 {v(AV_O+i)}, 0' for i in range(16)]
    unit = light and a.s0 < a.s1
    def part2(tag, AV_TB=AV_TB):
        a(f's_cmp_eq_u32 {s(S_U2)}, 0')
        a(f's_cbranch_scc1 {L}_{tag}')
        a(f's_mov_b32 {s(S_U2)}, 0')
        for p in range(4):
            for Tt in range(2):
                t = 2 * p + Tt
                for kt in range(2):
                    a(f'ds_read_b64_tr_b16 {v(AV_TB+4*t+2*kt,2)}, {v(AV_TRV)} offset:{4096*kt + 1024*p + 8*Tt}')
                a(f'ds_read_b64_tr_b16 {v(AV_X+2*t,2)}, {v(AV_TRM)} offset:{512*p + 8*Tt}')
        a(f'v_mov_b32 {v(AV_FT)}, 0xff61b1e6')
        a(f's_cmp_eq_u32 {s(S_QT)}, 0')
        for i in range(4):
            a(f's_cselect_b64 vcc, {s(S_M0+2*i,2)}, 0')
            a(f'v_cndmask_b32 {v(SA+i)}, {v(SA+i)}, {v(AV_FT)}, vcc')
            a(f's_cselect_b64 vcc, -1, {s(S_M0+2*i,2)}')
            a(f'v_cndmask_b32 {v(SA+4+i)}, {v(SA+4+i)}, {v(AV_FT)}, vcc')
        for x in exp_seq(list(range(SA, SA + 10))): a(x)
        pk = packP(SA); pk[6] = f'v_mov_b32 {v(SA+9)}, 0'
        for x in pk: a(x)
        a('s_waitcnt lgkmcnt(0)')
        a('s_nop 0')
        SM = SA + 4
        a(f'v_mfma_f32_16x16x32_bf16 {v(SM,4)}, {v(AV_ONE,4)}, {v(SA,4)}, 0')
        a(f'v_mfma_f32_16x16x32_bf16 {v(SM,4)}, {v(AV_ONE,4)}, {v(SA+8,4)}, {v(SM,4)}')
        oa = lambda t: (AV_O if t < 4 else AV_Y - 16) + 4 * t
        for t in range(8):
            a(f'v_mfma_f32_16x16x32_bf16 {v(oa(t),4)}, {v(AV_TB+4*t,4)}, {v(SA,4)}, 0')
            a(f'v_mfma_f32_16x16x32_bf16 {v(oa(t),4)}, {v(AV_X+2*t,4)}, {v(SA+8,4)}, {v(oa(t),4)}')
        a(f'v_rcp_f32 {v(AV_T)}, {v(SM)}')
        a('s_nop 0')
        for p in range(4):
            o = oa(2 * p)
            for i in range(8): a(f'v_mul_f32 {v(o+i)}, {v(o+i)}, {v(AV_T)}')
            for d in range(4): a(f'v_cvt_pk_bf16_f32 {v(o+d)}, {v(o+2*d)}, {v(o+2*d+1)}')
            a(f'ds_write_b128 {v(AV_L16)}, {v(o,4)} offset:{LDS_SEG + 1024*p}')
        a.label(f'{L}_{tag}')
    if light and a.vpos: a(f's_waitcnt vmcnt({0 if swp else 8 - a.ksp})')
    if unit:
        assert a.lr == 3
        a(f's_and_b32 {s(S_DU)}, {s(S_S)}, 1')
        a(f's_cmp_lt_u32 {s(S_S)}, {a.s0}')
        a(f's_cselect_b32 {s(S_DU)}, 3, {s(S_DU)}')
        a(f's_cmp_lg_u32 {s(S_DU)}, {s(S_DW)}')
        a(f's_cbranch_scc1 {L}_nd0')
        for i in range(8): a(f'ds_write_b128 {v(AV_LB)}, {v(AV_TB+4*i,4)} offset:{1024*i}')
        a.label(L + '_nd0')
    if light:
        if not a.lr & 1:
            for x in vr: a(x)
            for u in range(4): vw[8*u] = f's_waitcnt lgkmcnt({6 - 2*u})\n' + vw[8*u]
        for x in vw: a(x)
        if unit:
            a('s_nop 2')
            for x in vw_pack(): a(x)
            if not a.p2e: part2('p2a')
            for x in zo: a(x)
        else:
            for x in zo: a(x)
            for x in vw_pack(): a(x)
        if not a.lr & 2:
            flag_wait(a, L + '_wkv', AV_FLGW, 16, AV_FT, S_T2, sl=a.kvsl, one=True)
            for x in kr: a(x)
        pf.stamp(a, 'kv', -3)
    else:
        flag_wait(a, L + '_wkv', AV_FLGW, 16, AV_FT, S_T2, sl=a.kvsl, one=True)
        pf.stamp(a, 'kv', -3)
        for x in vr + ([] if a.hk else kr): a(x)
        for u in range(4): vw[8*u] = f's_waitcnt lgkmcnt({(6 if a.hk else 14) - 2*u})\n' + vw[8*u]
        for x in vw[:a.vwp]: a(x)
    vp = light and a.vpos
    a('s_setprio 2')
    if not vp or swp: flag_wait(a, L + '_wm', AV_FLGW, 32, AV_FT, S_T2, sl=a.kvsl, one=True)
    if light and a.scb < 64 and not a.xpos:
        a(f's_sub_u32 {s(S_T0)}, {s(S_S)}, {a.sc0}')
        a(f's_cmp_ge_u32 {s(S_T0)}, {2 * (64 - a.scb)}')
        a(f's_cbranch_scc1 {L}_nxd')
        if vp and not swp: flag_wait(a, L + '_wm2', AV_FLGW, 32, AV_FT, S_T2, sl=a.kvsl, one=True)
        for hf in range(2):
            a(f's_add_u32 m0, {s(S_XB)}, {4096*hf}')
            a(f's_add_u32 {s(S_T0)}, {s(S_XG)}, {4096*hf}')
            for u in range(4): a(f'buffer_load_dwordx4 {v(AV_L16)}, {s(SRD_WS,4)}, {s(S_T0)} offen offset:{1024*u} sc1 lds')
        a(f's_xor_b32 {s(S_XB)}, {s(S_XB)}, {s(S_XBX)}')
        a(f's_add_u32 {s(S_XG)}, {s(S_XG)}, 32768')
        a.label(L + '_nxd')
    pf.stamp(a, 'fm', -3)
    if unit:
        a(f's_cmp_lg_u32 {s(S_DU)}, {s(S_DW)}')
        a(f's_cbranch_scc1 {L}_nd1')
        a(f's_add_u32 m0, {s(S_KL)}, 16384')
        a(f's_add_u32 {s(S_T0)}, {s(S_KG)}, {s(S_QT)}')
        a(f's_add_u32 {s(S_T0)}, {s(S_T0)}, {WS_QS}')
        for u in range(4): a(f'buffer_load_dwordx4 {v(AV_L16)}, {s(SRD_WS,4)}, {s(S_T0)} offen offset:{1024*u} sc1 lds')
        a.label(L + '_nd1')
    if light: a(f's_add_u32 {s(S_KG)}, {s(S_KG)}, 262144')
    if swp:
        for x in reg_list(a, 0, AV_TB, S_T0): a(x)
    if ('v' if light else 'q') not in a.abl and not vp:
        for x in (reg_list(a, 1, AV_TB, S_T0) if light and a.lr & 1 else dma_list(a, 1 if light else 2, AV_L16, S_T0)): a(x)
    if not light: a(f's_add_u32 {s(S_KG)}, {s(S_KG)}, 262144')
    if light: a('s_waitcnt lgkmcnt(0)')
    pf.stamp(a, 'b1rdy', -3)
    a('s_barrier')
    pf.stamp(a, 'b1')
    qr = [f'ds_read_b128 {v(AV_TB+4*i,4)}, {v(AV_LB)} offset:{16384+1024*i}' for i in range(8)]
    if not light:
        for x in vw[a.vwp:]: a(x)
        a('s_nop 2')
        for x in vw_pack(): a(x)
        for x in zo: a(x)
    if a.qkf: a('s_barrier')
    qd = a.qdl if light else a.qd
    if qd: a(f's_sleep {qd}')
    a('s_waitcnt lgkmcnt(0)')
    pf.stamp(a, 'poll')
    qm = [f'buffer_load_dwordx4 {v(AV_Y+4*u,4)}, {v(AV_L16)}, {s(SRD_WS,4)}, {s(S_QLD)} offen offset:{1024*u} sc1' for u in range(4)]
    qm += [f'buffer_load_dwordx4 {v(AV_X+4*u2,4)}, {v(AV_L16)}, {s(SRD_WS,4)}, {s(S_QLD2)} offen offset:{1024*u2} sc1' for u2 in range(2)]
    qreg = [[AV_Y + 4 * u + i for i in (0, 2)] for u in range(4)]
    vreg = [AV_X + i for i in range(0, 8, 2)]
    for x in qm[:4]: a(x)
    if a.vdel: a(f's_sleep {a.vdel}' if a.vdel > 0 else f's_nop {-a.vdel}')
    for x in qm[4:]: a(x)
    def crit_s(check, first=False):
        for u in range(4):
            if check: a(f's_waitcnt vmcnt({5-u})')
            if first and u == 0: pf.stamp(a, 'z0')
            z = v(AV_Y + 4 * u, 4)
            for kt in range(2):
                d = SA + 4 * kt
                a(f'v_mfma_f32_16x16x32_bf16 {v(d,4)}, {v(AV_KS+(kt*4+u)*4,4)}, {z}, {"0" if u==0 else v(d,4)}')
            if check:
                c = chk(qreg[u], AV_T, f'{Lr}_{u}')
                for x in c[:-1]: a(x)
            a(f'v_mfma_f32_16x16x32_bf16 {v(SA+8,4)}, {z}, {z}, {"0" if u==0 else v(SA+8,4)}')
            if check: a(c[-1])
    crit_s(True, True)
    a.label(L + '_sdone')
    pf.stamp(a, 'sdone')
    if light: a('s_nop 1')
    else:
        a(f's_cmp_eq_u32 {s(S_S)}, {a.last}')
        a(f's_cbranch_scc1 {L}_lsk')
    vwm = [f'v_smfmac_f32_16x16x64_bf16 {v(AV_O+4*ct,4)}, {v(AV_X+4*c2,4)}, {v(wo(2*c2,ct),8)}, {v(AV_IDX)}' for c2 in range(2) for ct in (0, 2, 1, 3)]
    vc = chk(vreg, AV_FT, f'{Lr}_v')
    M, T = v(AV_MX), v(AV_T)
    a(f"""
    ds_write_b32 {v(AV_FLGW)}, {v(AV_FV)}
    s_nop 0
    v_max3_f32 {M}, {v(SA)}, {v(SA+1)}, {v(SA+2)}
    v_max3_f32 {T}, {v(SA+3)}, {v(SA+4)}, {v(SA+5)}
    v_max3_f32 {M}, {M}, {v(SA+6)}, {v(SA+7)}
    v_max3_f32 {T}, {T}, {v(SA+8)}, {v(SA+9)}
    v_max_f32 {M}, {M}, {T}
    v_mov_b32 {T}, {M}
    s_nop 1
    v_permlane16_swap_b32 {T}, {M}
    v_max_f32 {M}, {M}, {T}
    v_mov_b32 {T}, {M}
    s_waitcnt vmcnt(0)
    {vc[0]}
    v_permlane32_swap_b32 {T}, {M}
    v_max_f32 {M}, {M}, {T}
    {vc[1]}
    v_mul_f32 {M}, {s(S_CST)}, {M}
    {vc[2]}
    """)
    r = list(range(SA, SA + 10))
    fm = [f'v_fma_f32 {v(x)}, {v(x)}, {s(S_CST)}, -{M}' for x in r]
    ex = [f'v_exp_f32 {v(x)}, {v(x)}' for x in r]
    a(fm[0]); a(fm[1])
    a(vc[3])
    a.label(L + '_vok')
    pf.stamp(a, 'max', 3)
    vwc = []
    for ct in range(4):
        d = AV_O + 4 * ct
        vwc += [f'v_cvt_pk_bf16_f32 {v(AV_VWM+2*ct)}, {v(d)}, {v(d+1)}', f'v_cvt_pk_bf16_f32 {v(AV_VWM+2*ct+1)}, {v(d+2)}, {v(d+3)}']
    SM = SA + 4
    def mid(kin, st):
        a(vwm[0])
        for i in range(10):
            if i + 2 < 10: a(fm[i + 2])
            a(ex[i])
            if i + 1 < 8: a(vwm[i + 1])
            if kin and (a.kpos + a.vpos == 1 or i & 1): a(kin.pop(0))
        if st: pf.stamp(a, 'exp', 3)
        pk = packP(SA)
        for x in pk[:4]: a(x)
        mA = f'v_mfma_f32_16x16x32_bf16 {v(SM,4)}, {v(AV_ONE,4)}, {v(SA,4)}, 0'
        mB = f'v_mfma_f32_16x16x32_bf16 {v(SM,4)}, {v(AV_HALF,4)}, {v(SA+8,4)}, {v(SM,4)}'
        for x in pk[4:6]: a(x)
        a(mA)
        for x in pk[6:]: a(x)
        for n, ct in enumerate((0, 2, 1, 3)):
            a(vwc[2*ct]); a(vwc[2*ct+1])
            if n == 0: a(mB)
            a(f'v_mfma_f32_16x16x32_bf16 {v(AV_O+4*ct,4)}, {v(AV_VWS+4*ct,4)}, {v(SA,4)}, 0')
            if kin: a(kin.pop(0))
        assert not kin
    kp = light and a.lr & 2 and a.kpos and 'k' not in a.abl
    assert not (kp and vp)
    ks = a.ksp if vp and not swp else 0
    if (kp or swp or ks) and unit:
        a(f's_cmp_eq_u32 {s(S_DU)}, {s(S_DW)}')
        a(f's_cbranch_scc1 {L}_midD')
    mid(reg_list(a, 0, AV_KS, S_T0) if kp else reg_list(a, 1, AV_KS if swp else AV_TB, S_T0) + reg_list(a, 0, AV_KS, S_T2)[:ks] if vp else [], True)
    a.label(L + '_midE')
    a(f's_mov_b64 vcc, {s(S_QM,2)}')
    a(f'v_rcp_f32 {T}, {v(SM)}')
    for ct in (0, 2, 1, 3):
        a(f'v_mfma_f32_16x16x32_bf16 {v(AV_O+4*ct,4)}, {v(AV_VWM+2*ct,4)}, {v(SA+8,4)}, {v(AV_O+4*ct,4)}')
    pf.stamp(a, 'pv', 3)
    qp = 'quad_perm:[2,3,2,3] row_mask:0xf bank_mask:0xf'
    a(f'v_mov_b32_dpp {T}, {T} {qp}')
    a('s_nop 4')
    for h in range(2):
        for i in range(4*h, 4*h+4): a(f'v_cndmask_b32_dpp {v(AV_O+i)}, {v(AV_O+8+i)}, {v(AV_O+i)}, vcc {qp}')
    for i in range(8): a(f'v_mul_f32 {v(AV_O+i)}, {v(AV_O+i)}, {T}')
    for d in range(4): a(f'v_cvt_pk_bf16_f32 {v(AV_PK+d)}, {v(AV_O+2*d)}, {v(AV_O+2*d+1)}')
    a(f'ds_write_b128 {v(AV_R2W)}, {v(AV_PK,4)}')
    a('s_waitcnt lgkmcnt(0)')
    pf.stamp(a, 'b2rdy')
    a('s_barrier')
    pf.stamp(a, 'b2')
    a(f'ds_read_b128 {v(AV_PK+4,4)}, {v(AV_R2R)}')
    a('s_waitcnt lgkmcnt(0)')
    a(f'v_mfma_f32_16x16x32_bf16 {v(AV_O,4)}, {v(AV_SEL,4)}, {v(AV_PK+4,4)}, 0')
    a('s_nop 7')
    a(f'v_cvt_pk_bf16_f32 {v(AV_PK)}, {v(AV_O)}, {v(AV_O+1)}')
    a(f'v_cvt_pk_bf16_f32 {v(AV_PK+1)}, {v(AV_O+2)}, {v(AV_O+3)}')
    a('s_nop 0')
    a(f'v_permlane16_swap_b32 {v(AV_PK)}, {v(AV_PK+2)}')
    a(f'v_permlane16_swap_b32 {v(AV_PK+1)}, {v(AV_PK+3)}')
    a('s_mov_b64 exec, 0xffff')
    a(f'v_min_u32 {v(AV_PK)}, -2, {v(AV_PK)}')
    a(f'buffer_store_dwordx4 {v(AV_PK,4)}, {v(AV_PST)}, {s(SRD_WS,4)}, {s(S_PSTC)} offen sc1')
    a('s_setprio 0')
    pf.stamp(a, 'ppub')
    a(f'buffer_store_dwordx4 {v(AV_NEG,4)}, {v(AV_PST)}, {s(SRD_WS,4)}, {s(S_PRS)} offen sc1')
    a('s_mov_b64 exec, -1')
    l = a.uid('pg')
    if a.pgp: a(f's_branch {l}')
    a(f's_cmp_lg_u32 {s(S_PRG)}, 0')
    a(f's_cbranch_scc1 {l}')
    a(f's_sub_u32 {s(S_T4)}, {s(S_S)}, 1')
    a(f's_cbranch_scc1 {l}')
    a(f's_and_b32 {s(S_T0)}, {s(S_T4)}, 3')
    a(f's_cmp_ge_u32 {s(S_S)}, 58')
    a(f's_cselect_b32 {s(S_T0)}, 0, {s(S_T0)}')
    a(f's_cmp_lg_u32 {s(S_T0)}, 0')
    a(f's_cbranch_scc1 {l}')
    a(f'v_mov_b32 {v(AV_T)}, {s(S_T4)}')
    a('s_mov_b64 exec, 1')
    a(f'buffer_store_dword {v(AV_T)}, off, {s(SRD_WS,4)}, {s(S_CS)} sc1')
    a('s_mov_b64 exec, -1')
    a.label(l)
    if unit:
        a(f's_cmp_lg_u32 {s(S_DU)}, {s(S_DW)}')
        a(f's_cbranch_scc1 {L}_nd2')
        for u in range(4): a(f'ds_read_b128 {v(AV_O+4*u,4)}, {v(AV_LB)} offset:{16384+1024*u}')
        for c2 in range(2):
            for i in range(4): a(f'ds_write_b32 {v(AV_VMW)}, {v(AV_X+4*c2+i)} offset:{1024*c2 + 128*(i>>1) + 8*(i&1)}')
        a(f's_mov_b32 {s(S_U2)}, 1')
        for u in range(4):
            a(f's_waitcnt lgkmcnt({8+3-u})')
            q = v(AV_O + 4 * u, 4)
            for kt in range(2): a(f'v_mfma_f32_16x16x32_bf16 {v(SA+4*kt,4)}, {v(AV_KS+(kt*4+u)*4,4)}, {q}, {"0" if u==0 else v(SA+4*kt,4)}')
            a(f'v_mfma_f32_16x16x32_bf16 {v(SA+8,4)}, {v(xk(u),4)}, {q}, {"0" if u==0 else v(SA+8,4)}')
        a('s_waitcnt lgkmcnt(0)')
        a('s_nop 3')
        if a.p2e:
            assert not (a.kpos or swp or ks)
            a('s_nop 3')
            part2('p2e', AV_KS)
            a('s_nop 3')
        if a.kpos or swp:
            for x in reg_list(a, 1 if swp else 0, AV_KS, S_T0): a(x)
        if ks:
            for x in reg_list(a, 0, AV_KS, S_T2)[:ks]: a(x)
        a.label(L + '_nd2')
    if light:
        if a.lr & 2 and 'k' not in a.abl and not a.kpos and not swp:
            if a.kdl: a(f's_sleep {a.kdl}')
            assert ks in (0, 4)
            for x in reg_list(a, 0, AV_KS, S_T2)[ks:]: a(x)
        pf.stamp(a, 'bg')
        pf.flush(a, AV_MX, 'A')
        a(f's_add_u32 {s(S_S)}, {s(S_S)}, 1')
        if swp and not ph: a(f's_branch {other}')
        if swp: AV_KS, AV_TB = AV_TB, AV_KS
        a(f's_cmp_lt_u32 {s(S_S)}, {a.s1}')
        a(f's_cbranch_scc1 {other or L}')
        a('s_waitcnt vmcnt(0)')
        for i in range(8):
            if a.lr & 1: a(f'ds_write_b128 {v(AV_LB)}, {v(AV_TB+4*i,4)} offset:{8192+1024*i}')
        if unit and not a.p2e:
            a('s_waitcnt lgkmcnt(0)')
            part2('p2b', AV_TB)
        for i in range(8):
            if a.lr & 2 and not a.hk: a(f'ds_write_b128 {v(AV_LB)}, {v(AV_KS+4*i,4)} offset:{1024*i}')
        a('s_waitcnt lgkmcnt(0)')
        a(f's_branch {nxt or L}')
        if swp: AV_KS, AV_TB = AV_TB, AV_KS
    else:
        a.label(L + '_lskb')
        a(f'v_mov_b32 {v(AV_X)}, 0xff61b1e6')
        def s_mf(qt, S):
            m = []
            for u in range(4):
                q = v(AV_TB + (qt * 4 + u) * 4, 4)
                for kt in range(qt + 1):
                    d = S + 4 * kt
                    m.append(f'v_mfma_f32_16x16x32_bf16 {v(d,4)}, {v(AV_KS+(kt*4+u)*4,4)}, {q}, {"0" if u==0 else v(d,4)}')
                m.append(f'v_mfma_f32_16x16x32_bf16 {v(S+8,4)}, {v(xk(u),4)}, {q}, {"0" if u==0 else v(S+8,4)}')
            return m
        bg = qr + ['s_waitcnt lgkmcnt(4)'] + s_mf(0, SA) + ['s_waitcnt lgkmcnt(0)'] + s_mf(1, SB)
        seq = [f'v_cndmask_b32 {v(SA+i)}, {v(SA+i)}, {v(AV_X)}, {s(S_M0+2*i,2)}' for i in range(4)]
        seq += exp_seq([SA + i for i in range(4)] + [SA + 8, SA + 9]) + packP(SA, True)
        if a.hk: seq = merge_fill(seq, reg_list(a, 0, AV_KS, S_T0), every=a.hk, start=3)
        bg += seq + ['s_nop 1']
        pv0 = pv_seq(SA, 0, AV_X + 2)
        seq = [f'v_cndmask_b32 {v(SB+4+i)}, {v(SB+4+i)}, {v(AV_X)}, {s(S_M0+2*i,2)}' for i in range(4)]
        seq += exp_seq(list(range(SB, SB + 10))) + packP(SB)
        seq = merge_fill(seq, pv0[:10], every=2, start=0)
        bg += seq + pv0[10:] + pv_seq(SB, 1, AV_T)
        if 'b' in a.abl: bg = []
        for x in bg: a(x)
        a(f'v_xor_b32 {v(AV_SGW)}, 0x4000, {v(AV_SGW)}')
        pf.stamp(a, 'bg')
        pf.flush(a, AV_MX, 'A')
        a(f's_add_u32 {s(S_S)}, {s(S_S)}, 1')
        a(f's_cmp_le_u32 {s(S_S)}, {a.last}')
        a(f's_cbranch_scc1 {L}')
        a('s_waitcnt lgkmcnt(0)')
        a('s_barrier')
        a('s_waitcnt vmcnt(0)')
        a(f's_branch {done}')
    if (kp or swp or ks) and unit:
        a.label(L + '_midD')
        mid(reg_list(a, 1, AV_TB, S_T0) if ks else [], False)
        a(f's_branch {L}_midE')
    for i in range(4):
        spin_block(a, f'{Lr}_{i}', qm[i:], qreg[i], AV_T, L + '_again', L + '_nochk')
    a.label(L + '_again')
    crit_s(True)
    a(f's_branch {L}_sdone')
    def vretry(lab, ok):
        a.label(lab)
        a(f's_sub_u32 {s(S_TO)}, {s(S_TO)}, 1')
        a(f's_cbranch_scc1 {lab}g')
        for x in qm[4:]: a(x)
        a('s_waitcnt vmcnt(0)')
        for x in chk(vreg, AV_FT, lab): a(x)
        a(f's_branch {ok}')
        a.label(lab + 'g')
        a(f's_mov_b32 {s(S_TO)}, 0')
        a(f's_branch {ok}')
    vretry(f'{Lr}_v', L + '_vok')
    a.label(L + '_nochk')
    crit_s(False)
    a('s_nop 1')
    a(f's_branch {L}_sdone')
    if light: return
    vretry(f'{Lr}_v2', L + '_lsk3')
    a.label('ct_tail')
    a.label(f'{L}_lsk')
    a(f's_cmp_lg_u32 {s(S_PRG)}, 0')
    a(f's_cbranch_scc1 {L}_lsk2')
    a(f'v_mov_b32 {v(AV_T)}, {a.last - 1}')
    a('s_mov_b64 exec, 1')
    a(f'buffer_store_dword {v(AV_T)}, off, {s(SRD_WS,4)}, {s(S_CS)} sc1')
    a('s_mov_b64 exec, -1')
    a.label(f'{L}_lsk2')
    a('s_waitcnt vmcnt(0)')
    for x in chk(vreg, AV_FT, f'{Lr}_v2'): a(x)
    a.label(f'{L}_lsk3')
    for x in vwm: a(x)
    a('s_nop 7')
    a('s_nop 1')
    for x in vwc: a(x)
    a('s_waitcnt lgkmcnt(0)')
    a(f's_branch {L}_lskb')

def emit_chain(a, done, prof=False):
    if prof: a('s_memrealtime s[94:95]')
    a(f"""
    s_lshl_b32 {s(S_ID)}, {s(S_X)}, 5
    s_add_u32 {s(S_ID)}, {s(S_ID)}, {s(S_I)}
    s_lshr_b32 {s(S_H)}, {s(S_ID)}, 2
    s_lshr_b32 {s(S_G)}, {s(S_ID)}, 4
    s_and_b32 {s(S_C)}, {s(S_I)}, 15
    s_and_b32 {s(S_J)}, {s(S_I)}, 3
    s_mov_b32 {s(S_S)}, 0
    s_mov_b32 {s(S_TO)}, {TIMEOUT}
    s_mov_b32 s100, {TIMEOUT}
    s_getreg_b32 {s(S_X1)}, hwreg(HW_REG_XCC_ID)
    s_and_b32 {s(S_X1)}, {s(S_X1)}, 15
    s_mul_i32 {s(S_T2)}, {s(S_X1)}, {s(S_X1)}
    s_lshl_b32 {s(S_T2)}, {s(S_T2)}, 18
    s_lshl_b32 {s(S_X1)}, {s(S_X1)}, 8
    s_add_u32 {s(S_X1)}, {s(S_X1)}, {s(S_T2)}
    s_add_u32 {s(S_X1)}, {s(S_X1)}, 1
    s_lshl_b32 {s(S_CQG)}, {s(S_G)}, 4
    s_add_u32 {s(S_CQG)}, {s(S_CQG)}, {CQ_TAB}
    s_and_b32 {s(S_T4)}, {s(S_W)}, 3
    s_mul_i32 {s(S_KL)}, {s(S_T4)}, 24576
    s_add_u32 {s(S_KL)}, {s(S_KL)}, {LDS_BULK}
    s_lshl_b32 {s(S_KG)}, {s(S_G)}, 2
    s_add_u32 {s(S_KG)}, {s(S_KG)}, {s(S_T4)}
    s_lshl_b32 {s(S_KG)}, {s(S_KG)}, 12
    s_add_u32 {s(S_XB)}, {s(S_KL)}, 8192
    s_bfe_u32 {s(S_T0)}, {s(S_C)}, 0x20001
    s_cmp_eq_u32 {s(S_T0)}, {s(S_T4)}
    s_cselect_b32 {s(S_XBX)}, 20480, {s(S_KL)}
    s_xor_b32 {s(S_XBX)}, {s(S_XBX)}, {s(S_XB)}
    s_lshl_b32 {s(S_XG)}, {s(S_T4)}, 13
    s_add_u32 {s(S_XG)}, {s(S_XG)}, {WS_XN2 + a.scb * 65536}
    s_lshl_b32 {s(S_SCO)}, {s(S_T4)}, 24
    s_lshl_b32 {s(S_T0)}, {s(S_ID)}, 10
    s_add_u32 {s(S_SCO)}, {s(S_SCO)}, {s(S_T0)}
    s_add_u32 {s(S_SCO)}, {s(S_SCO)}, {WS_QS + a.scb * 262144}
    s_cmp_ge_u32 {s(S_W)}, 4
    s_cbranch_scc1 ch_a_pro
    s_add_u32 {s(S_KG)}, {s(S_KG)}, 262144
    s_lshl_b32 {s(S_QO)}, {s(S_H)}, 13
    s_add_u32 {s(S_QO)}, {s(S_QO)}, {WS_QKV}
    s_lshl_b32 {s(S_T0)}, {s(S_I)}, 1
    s_and_b32 {s(S_T1)}, {s(S_W)}, 1
    s_add_u32 {s(S_T0)}, {s(S_T0)}, {s(S_T1)}
    s_lshl_b32 {s(S_T0)}, {s(S_T0)}, 1       ; first u
    s_cmp_lt_u32 {s(S_W)}, 2
    s_cselect_b32 {s(S_MEX)}, 0xff, 0
    s_mov_b32 {s(S_MEX+1)}, {s(S_MEX)}
    s_lshr_b32 {s(S_T1)}, {s(S_T0)}, 1
    s_and_b32 {s(S_T2)}, {s(S_T0)}, 1
    s_lshl_b32 {s(S_T3)}, {s(S_X)}, 14
    s_add_u32 {s(S_T3)}, {s(S_T3)}, {WS_MEM}
    s_lshl_b32 {s(S_MO)}, {s(S_W)}, 12
    s_add_u32 {s(S_MO)}, {s(S_MO)}, {s(S_T3)}
    s_lshl_b32 {s(S_MSO)}, {s(S_T1)}, 8
    s_add_u32 {s(S_MSO)}, {s(S_MSO)}, {s(S_T3)}
    s_lshl_b32 {s(S_T3)}, {s(S_T2)}, 5
    s_add_u32 {s(S_MSO)}, {s(S_MSO)}, {s(S_T3)}
    s_lshr_b32 {s(S_PO)}, {s(S_T0)}, 3
    s_lshl_b32 {s(S_PO)}, {s(S_PO)}, 14
    s_and_b32 {s(S_T3)}, {s(S_T0)}, 7
    s_lshl_b32 {s(S_T3)}, {s(S_T3)}, 10
    s_add_u32 {s(S_PO)}, {s(S_PO)}, {s(S_T3)}
    s_add_u32 {s(S_PO)}, {s(S_PO)}, {WS_PART}
    s_lshl_b32 {s(S_SP)}, {s(S_G)}, 22
    s_lshl_b32 {s(S_T3)}, {s(S_C)}, 11
    s_add_u32 {s(S_SP)}, {s(S_SP)}, {s(S_T3)}
    s_lshl_b32 {s(S_T3)}, {s(S_W)}, 9
    s_add_u32 {s(S_SP)}, {s(S_SP)}, {s(S_T3)}
    s_add_u32 {s(S_SP)}, {s(S_SP)}, {WS_SP + a.s1 * 65536}
    s_lshl_b32 {s(S_KMX)}, {s(S_H)}, 13
    s_add_u32 {s(S_KMX)}, {s(S_KMX)}, {WS_KM}
    s_mov_b32 {s(S_QST)}, {s(S_QO)}
    s_mov_b32 {s(S_SP0)}, {s(S_SP)}
    s_mov_b32 {s(S_OK)}, 2
    s_mov_b32 {s(S_RTG)}, 0
    s_mov_b32 {s(S_OF)}, 0
    s_bfe_u32 {s(S_T0)}, {s(S_C)}, 0x20001
    s_lshl_b32 {s(S_OB)}, {s(S_G)}, 2
    s_add_u32 {s(S_OB)}, {s(S_OB)}, {s(S_T0)}
    s_lshl_b32 {s(S_OB)}, {s(S_OB)}, 2
    s_add_u32 {s(S_OB)}, {s(S_OB)}, {s(S_W)}
    s_lshl_b32 {s(S_OB)}, {s(S_OB)}, 10
    s_and_b32 {s(S_T0)}, {s(S_C)}, 1
    s_lshl_b32 {s(S_T0)}, {s(S_T0)}, 17
    s_add_u32 {s(S_OB)}, {s(S_OB)}, {s(S_T0)}
    s_add_u32 {s(S_OB)}, {s(S_OB)}, {WS_OO - 262144}
    s_mov_b32 {s(S_TCH)}, {3 * 262144}
    """)
    p_prologue(a)
    for i in range(4): a(f'v_mov_b32 {v(52+i)}, -1')
    for sg in range(64 - NTAIL, 64):
        a(f's_add_u32 {s(S_T0)}, {s(S_SP)}, {(sg - a.s1)*65536}')
        a(f'buffer_store_dwordx4 v[52:55], {v(PV_SPS)}, {s(SRD_WS,4)}, {s(S_T0)} offen sc1')
    if prof: a('s_memrealtime s[96:97]')
    a(f's_lshl_b32 {s(S_X1)}, {s(S_X1)}, 5')
    a('s_barrier')
    a(f'ds_write_b32 {v(PV_FLGW)}, {v(PV_NEG)}')
    a(f'ds_write_b32 {v(PV_FLGW)}, {v(PV_NEG)} offset:16')
    a(f'ds_write_b32 {v(PV_FLGW)}, {v(PV_NEG)} offset:32')
    a(f'ds_write_b32 {v(PV_FLGW)}, {v(PV_NEG)} offset:48')
    a(f'v_mov_b32 {v(PV_RDY)}, 12')
    a(f"""
    v_mov_b32 v56, {LDS_PUB}
    s_waitcnt lgkmcnt(0)
    s_barrier
    ds_read_b64 v[32:33], v56
    s_waitcnt lgkmcnt(0)
    v_cmp_ne_u32 vcc, {s(S_X1)}, v32
    s_setprio 3
    v_readfirstlane_b32 {s(S_T0)}, v33
    s_add_u32 {s(S_PO)}, {s(S_PO)}, {s(S_T0)}
    s_cbranch_vccnz ch_p_slow
    """)
    if prof:
        a(f"""
        v_mov_b32 v33, {s(S_T0)}
        s_memrealtime s[98:99]
        s_waitcnt lgkmcnt(0)
        s_lshl_b32 {s(S_T0)}, {s(S_ID)}, 3
        s_add_u32 {s(S_T0)}, {s(S_T0)}, {s(S_W)}
        s_lshl_b32 {s(S_T0)}, {s(S_T0)}, 12
        s_add_u32 {s(S_T0)}, {s(S_T0)}, {WS_YP + 63*64}
        v_mov_b32 v56, s94
        v_mov_b32 v57, s96
        v_mov_b32 v32, s98
        s_mov_b64 exec, 1
        buffer_store_dwordx2 v[56:57], off, {s(SRD_WS,4)}, {s(S_T0)}
        buffer_store_dwordx2 v[32:33], off, {s(SRD_WS,4)}, {s(S_T0)} offset:8
        s_mov_b64 exec, -1
        s_nop 1
        """)
    if a.force_slow: a('s_branch ch_p_slow')
    p_loop(a, '', prof, done)
    a.label('ch_p_slow')
    p_loop(a, ' sc1', prof, done)
    a.label('ch_a_pro')
    a(f"""
    s_sub_u32 {s(S_T4)}, {s(S_W)}, 4
    s_lshl_b32 {s(S_H)}, {s(S_G)}, 2
    s_add_u32 {s(S_H)}, {s(S_H)}, {s(S_T4)}
    s_lshl_b32 {s(S_QO)}, {s(S_H)}, 13
    s_add_u32 {s(S_QO)}, {s(S_QO)}, {WS_QKV}
    """)
    if a.stouch:
        a(f"""
        s_min_u32 {s(S_T3)}, {s(S_T4)}, 2
        s_lshl_b32 {s(S_T1)}, {s(S_T3)}, 3
        s_add_u32 {s(S_T1)}, {s(S_T1)}, {KA_WQ}
        s_load_dwordx2 {s(SRD_T,2)}, s[0:1], {s(S_T1)}
        s_mov_b32 {s(SRD_T+2)}, {8*MB}
        s_mov_b32 {s(SRD_T+3)}, {SRD3}
        v_and_b32 v20, 63, v0
        v_lshlrev_b32 v21, 13, v20
        s_lshl_b32 {s(S_T0)}, {s(S_C)}, 19
        s_lshl_b32 {s(S_T1)}, {s(S_G)}, 10
        s_add_u32 {s(S_T0)}, {s(S_T0)}, {s(S_T1)}
        s_waitcnt lgkmcnt(0)
        buffer_load_dword v26, v21, {s(SRD_T,4)}, {s(S_T0)} offen offset:384
        """)
    a_static(a)
    a(f"""
    v_lshlrev_b32 v24, 4, v0
    s_lshl_b32 {s(S_T0)}, {s(S_ID)}, 13
    s_add_u32 {s(S_T2)}, {s(S_T0)}, {WS_PART - 4096}
    s_add_u32 {s(S_T0)}, {s(S_T0)}, {WS_QKV - 4096}
    s_lshl_b32 {s(S_T1)}, {s(S_ID)}, 12
    s_add_u32 {s(S_T1)}, {s(S_T1)}, {WS_MEM - 4096}
    buffer_store_dwordx4 {v(AV_NEG,4)}, v24, {s(SRD_WS,4)}, {s(S_T2)} offen sc1
    s_add_u32 {s(S_T2)}, {s(S_T2)}, 4096
    buffer_store_dwordx4 {v(AV_NEG,4)}, v24, {s(SRD_WS,4)}, {s(S_T2)} offen sc1
    buffer_store_dwordx4 {v(AV_NEG,4)}, v24, {s(SRD_WS,4)}, {s(S_T0)} offen sc1
    s_add_u32 {s(S_T0)}, {s(S_T0)}, 4096
    buffer_store_dwordx4 {v(AV_NEG,4)}, v24, {s(SRD_WS,4)}, {s(S_T0)} offen sc1
    buffer_store_dwordx4 {v(AV_NEG,4)}, v24, {s(SRD_WS,4)}, {s(S_T1)} offen sc1
    """)
    a(f"""
    s_and_b32 {s(S_T0)}, {s(S_I)}, 7
    s_sub_u32 {s(S_T1)}, {s(S_T4)}, 1
    s_cmp_lt_u32 {s(S_T1)}, 2
    s_cselect_b32 s54, {s(S_T0)}, 1
    s_lshr_b32 {s(S_T2)}, {s(S_ID)}, 3
    s_lshl_b32 {s(S_T2)}, {s(S_T2)}, 8
    s_lshl_b32 {s(S_T1)}, {s(S_T1)}, 7
    s_add_u32 {s(S_T2)}, {s(S_T2)}, {s(S_T1)}
    s_add_u32 s55, {s(S_T2)}, {WS_PART + MB}
    s_cmp_lg_u32 s54, 0
    s_cbranch_scc1 ch_nv0
    v_lshlrev_b32 v24, 13, v20
    s_mov_b64 exec, 0xffff
    buffer_store_dword {v(AV_NEG)}, v24, {s(SRD_WS,4)}, s55 offen sc1
    s_mov_b64 exec, -1
    """)
    a.label('ch_nv0')
    a(f"""
    v_mov_b32 v2, {s(S_X1)}
    s_lshl_b32 {s(S_T0)}, {s(S_X)}, 2
    s_add_u32 {s(S_T0)}, {s(S_T0)}, {F.DBG_XCC}
    s_waitcnt vmcnt(0)
    s_barrier
    s_cmp_lg_u32 {s(S_W)}, 4
    s_cbranch_scc1 ch_nox
    s_mov_b64 exec, 1
    buffer_atomic_add v2, off, {s(F.SRD_DBG,4)}, {s(S_T0)} sc1
    s_mov_b64 exec, -1
    """)
    a.label('ch_nox')
    a_prologue(a)
    a('s_cmp_lg_u32 s54, 0')
    a('s_cbranch_scc1 ch_nv1')
    a('s_mov_b32 s58, -1')
    a('s_mov_b32 s59, -1')
    for k in range(8):
        for ph in range(2):
            a('s_memtime s[60:61]')
            a(f's_add_u32 s56, s55, {k*16384 + ph*8192}')
            a('s_waitcnt lgkmcnt(0)')
            a('s_load_dword s57, s[4:5], s56 glc')
            a('s_waitcnt lgkmcnt(0)')
            a('s_memtime s[62:63]')
            a('s_waitcnt lgkmcnt(0)')
            a('s_sub_u32 s57, s62, s60')
            a(f's_min_u32 s{58+ph}, s{58+ph}, s57')
    a(f"""
    s_sub_i32 s57, s58, s59
    s_min_i32 s57, s57, {a.vote}
    s_max_i32 s57, s57, {-a.vote}
    s_add_u32 s57, s57, {a.vote + (1 << 24)}
    s_getreg_b32 s56, hwreg(HW_REG_XCC_ID)
    s_and_b32 s56, s56, 0
    v_mov_b32 v2, s57
    s_mov_b64 exec, 1
    buffer_atomic_add v2, off, {s(F.SRD_DBG,4)}, s56 offset:{F.DBG_VOTE} sc1
    s_mov_b64 exec, -1
    """)
    a('s_waitcnt vmcnt(0)')
    a.label('ch_nv1')
    a_prologue2(a)
    a(f"""
    s_cmp_lg_u32 {s(S_W)}, 4
    s_cbranch_scc1 ch_xcc_skip
    v_lshrrev_b32 v56, 2, {v(AV_L16)}
    v_add_u32 v56, {F.DBG_XCC}, v56
    v_writelane_b32 v56, 0, 10
    v_mov_b32 v59, 63
    v_mov_b32 v60, 32
    v_writelane_b32 v59, 0, 8
    v_writelane_b32 v60, 0, 8
    v_writelane_b32 v59, 0, 9
    v_writelane_b32 v60, 0, 9
    v_writelane_b32 v59, -1, 10
    s_movk_i32 {s(S_T0)}, 128
    v_writelane_b32 v60, {s(S_T0)}, 10
    s_mov_b64 exec, 0x70f
    """)
    a.label('ch_xcc')
    a(f"""
    buffer_load_dword v57, v56, {s(F.SRD_DBG,4)}, 0 offen sc1
    s_waitcnt vmcnt(0)
    v_and_b32 v62, v59, v57
    v_cmp_ne_u32 vcc, v62, v60
    v_readlane_b32 {s(S_T1)}, v57, 8
    v_readlane_b32 {s(S_T2)}, v57, 9
    s_add_u32 {s(S_T0)}, {s(S_T1)}, {s(S_T2)}
    s_lshr_b32 {s(S_T0)}, {s(S_T0)}, 24
    s_cmp_lg_u32 {s(S_T0)}, 32
    s_cbranch_scc1 ch_xcc_w
    s_cbranch_vccz ch_xcc_ok
    """)
    a.label('ch_xcc_w')
    a(f"""
    s_sleep 16
    s_sub_u32 {s(S_TO)}, {s(S_TO)}, 1
    s_cbranch_scc0 ch_xcc
    s_mov_b32 {s(S_TO)}, 0
    """)
    a.label('ch_xcc_ok')
    a(f"""
    s_getreg_b32 {s(S_T0)}, hwreg(HW_REG_XCC_ID)
    s_bitcmp1_b32 {s(S_T0)}, 2
    s_cselect_b32 {s(S_T1)}, {s(S_T1)}, {s(S_T1)}
    v_readlane_b32 {s(S_T0)}, v57, {s(S_X)}
    s_mov_b64 exec, -1
    s_lshr_b32 {s(S_T2)}, {s(S_T1)}, 24
    s_mul_i32 {s(S_T2)}, {s(S_T2)}, {a.vote}
    s_and_b32 {s(S_T1)}, {s(S_T1)}, 0xffffff
    s_cmp_gt_u32 {s(S_T1)}, {s(S_T2)}
    s_cselect_b32 {s(S_T1)}, {0 if a.pgf else 0x2000}, {0x2000 if a.pgf else 0}
    v_mov_b32 v58, {LDS_PUB}
    v_mov_b32 v60, {s(S_T0)}
    v_mov_b32 v61, {s(S_T1)}
    s_barrier
    ds_write_b64 v58, v[60:61]
    s_waitcnt lgkmcnt(0)
    s_branch ch_xcc_b3
    """)
    a.label('ch_xcc_skip')
    a('s_barrier')
    a.label('ch_xcc_b3')
    a(f"""
    s_barrier
    v_mov_b32 v58, {LDS_PUB}
    ds_read_b64 v[60:61], v58
    v_and_b32 v23, 7, v20
    v_lshlrev_b32 v23, 7, v23
    v_bfe_u32 v24, v20, 3, 1
    v_lshl_add_u32 v23, v24, 17, v23
    v_lshrrev_b32 v24, 4, v20
    v_lshl_add_u32 v23, v24, 24, v23
    s_lshl_b32 {s(S_T2)}, {s(S_G)}, 14
    s_lshl_b32 {s(S_T1)}, {s(S_C)}, 10
    s_add_u32 {s(S_T2)}, {s(S_T2)}, {s(S_T1)}
    s_and_b32 {s(S_T1)}, {s(S_T4)}, 1
    s_lshl_b32 {s(S_T1)}, {s(S_T1)}, 18
    s_add_u32 {s(S_T2)}, {s(S_T2)}, {s(S_T1)}
    s_add_u32 {s(S_T2)}, {s(S_T2)}, {WS_QS + 262144}
    s_waitcnt lgkmcnt(0)
    v_readfirstlane_b32 {s(S_T0)}, v61
    s_add_u32 {s(S_PO)}, {s(S_PO)}, {s(S_T0)}
    """)
    a.label('ch_g0')
    a(f"""
    buffer_load_dword v57, off, {s(SRD_WS,4)}, {s(S_CQG)} sc1
    s_waitcnt vmcnt(0)
    v_readfirstlane_b32 {s(S_T0)}, v57
    s_cmp_ge_u32 {s(S_T0)}, {8 if a.s0 else 12}
    s_cbranch_scc1 ch_g0b
    s_sleep {a.g0sl}
    s_sub_u32 {s(S_TO)}, {s(S_TO)}, 1
    s_cbranch_scc0 ch_g0
    s_mov_b32 {s(S_TO)}, 0
    """)
    a.label('ch_g0b')
    for m in (1, 0):
        for x in (reg_list(a, m, AV_TB if m else AV_KS, S_QLD) if a.s1 and a.lr & (1 if m else 2) else dma_list(a, m, AV_L16, S_T1)): a(x)
    a('s_mov_b32 exec_hi, 0xffff')
    a(f'buffer_load_dword {v(AV_PK+7)}, v23, {s(SRD_WS,4)}, {s(S_T2)} offen sc1')
    a('s_mov_b32 exec_hi, -1')
    a(f'v_mov_b32 {v(AV_FV)}, 0')
    a('s_waitcnt vmcnt(1)')
    a(f'ds_write_b32 {v(AV_FLGW)}, {v(AV_FV)} offset:16')
    a_loop(a, prof, done)
```

```python
from asmlib import *
from layout4 import *
from k_prep import red_gq, rnd_bf16

SRD_WS = 4
SRD_DBG = 64
CS_TAB = WS_CNT + 8192
CD_TAB = WS_CNT + 2560
DBG_INIT = 0
DBG_INIT2 = 64
DBG_XCC = 128
DBG_INITA = 192
DBG_VOTE = 160
DBG_ROT = 224
S_EARLY = 70
TIMEOUT = 1 << 16

def emit_ln_init(a, swk, touch):
    a(f'''
    s_cmp_ge_u32 s3, 4
    s_cbranch_scc1 ln_touch
    {f's_cmp_lt_u32 {s(swk)}, 32' if a.cln else ''}
    {'s_cbranch_scc1 ln_short' if a.cln else ''}
    s_load_dwordx2 s[8:9], s[0:1], {KA_X}
    v_and_b32 v1, 63, v0
    s_mov_b32 s10, {4*MB}
    s_mov_b32 s11, {SRD3}
    v_and_b32 v3, 15, v1
    v_lshrrev_b32 v4, 4, v1
    v_lshlrev_b32 v5, 11, v3
    v_lshl_add_u32 v5, v4, 4, v5
    s_lshl_b32 s12, {s(swk)}, 15
    s_lshl_b32 s13, s3, 9
    s_add_u32 s12, s12, s13
    s_waitcnt lgkmcnt(0)
    ''')
    NB = 8; ND = NB * 4; NF = ND * 2
    P = 16; F = 48; T = 112; C = 176
    for j in range(NB):
        a(f'buffer_load_dwordx4 {v(P+4*j,4)}, v5, s[8:11], s12 offen offset:{64*j}{a.xnt}')
    if a.cln: a('s_barrier')
    a(f'''
    v_mov_b32 v14, 0
    s_lshl_b32 s13, {s(swk)}, 7
    s_add_u32 s13, s13, {WS_CNT}
    v_lshlrev_b32 v13, 2, v0
    v_cmp_gt_u32 vcc, 32, v0
    s_and_saveexec_b64 s[22:23], vcc
    s_cbranch_execz ln_nz
    buffer_store_dword v14, v13, s[4:7], s13 offen sc1
    ''')
    a.label('ln_nz')
    a(f'''
    s_mov_b64 exec, -1
    v_lshlrev_b32 v6, 4, v3
    s_lshl_b32 s14, s3, 2
    v_add_u32 v7, s14, v6
    v_lshlrev_b32 v8, 4, v1
    s_lshl_b32 s15, {s(swk)}, 15
    s_lshl_b32 s16, s3, 13
    s_add_u32 s15, s15, s16
    s_add_u32 s16, s15, 4096
    v_and_b32 v9, 1, v4
    v_cmp_eq_u32 s[20:21], 1, v9
    s_waitcnt vmcnt(1)
    ''')
    for d in range(ND):
        a(f'v_lshlrev_b32 {v(F+2*d)}, 16, {v(P+d)}')
        a(f'v_and_b32 {v(F+2*d+1)}, 0xffff0000, {v(P+d)}')
    def tree(n):
        while n > 1:
            n //= 2
            for i in range(n): a(f'v_add_f32 {v(T+i)}, {v(T+i)}, {v(T+n+i)}')
    for i in range(ND): a(f'v_add_f32 {v(T+i)}, {v(F+i)}, {v(F+ND+i)}')
    tree(ND); red_gq(a, T, T+1)
    a(f'''
    ds_write_b32 v7, {v(T)}
    s_waitcnt lgkmcnt(0)
    s_barrier
    ds_read_b128 {v(T,4)}, v6
    s_waitcnt lgkmcnt(0)
    ''')
    tree(4)
    a(f'v_mul_f32 v10, 0x3a800000, {v(T)}')
    for i in range(NF): a(f'v_sub_f32 {v(C+i)}, {v(F+i)}, v10')
    for i in range(ND):
        a(f'v_mul_f32 {v(T+i)}, {v(C+i)}, {v(C+i)}')
        a(f'v_fmac_f32 {v(T+i)}, {v(C+ND+i)}, {v(C+ND+i)}')
    tree(ND); red_gq(a, T, T+1)
    a(f'''
    ds_write_b32 v7, {v(T)} offset:512
    s_waitcnt lgkmcnt(0)
    s_barrier
    ds_read_b128 {v(T,4)}, v6 offset:512
    s_waitcnt lgkmcnt(0)
    ''')
    tree(4)
    a(f'v_mul_f32 v11, 0x3a800000, {v(T)}')
    rnd_bf16(a, 10, 10); rnd_bf16(a, 11, 11)
    a('v_add_f32 v11, 0x3727c5ac, v11')
    rnd_bf16(a, 11, 11)
    a('v_sqrt_f32 v11, v11'); a('s_nop 0')
    rnd_bf16(a, 11, 11)
    a('v_rcp_f32 v11, v11'); a('s_nop 0')
    for j in range(NB):
        for d in range(4*j, 4*j+4):
            a(f'v_sub_f32 {v(F+2*d)}, {v(F+2*d)}, v10')
            a(f'v_sub_f32 {v(F+2*d+1)}, {v(F+2*d+1)}, v10')
            a(f'v_cvt_pk_bf16_f32 {v(P+d)}, {v(F+2*d)}, {v(F+2*d+1)}')
            a(f'v_lshlrev_b32 {v(F+2*d)}, 16, {v(P+d)}')
            a(f'v_and_b32 {v(F+2*d+1)}, 0xffff0000, {v(P+d)}')
            a(f'v_mul_f32 {v(F+2*d)}, {v(F+2*d)}, v11')
            a(f'v_mul_f32 {v(F+2*d+1)}, {v(F+2*d+1)}, v11')
            a(f'v_cvt_pk_bf16_f32 {v(P+d)}, {v(F+2*d)}, {v(F+2*d+1)}')
        b = P + 4 * j; o = T + 4 * j
        a(f'v_cndmask_b32 {v(o)}, {v(b)}, {v(b+2)}, s[20:21]')
        a(f'v_cndmask_b32 {v(o+1)}, {v(b+1)}, {v(b+3)}, s[20:21]')
        a(f'v_cndmask_b32 {v(o+2)}, {v(b+2)}, {v(b)}, s[20:21]')
        a(f'v_cndmask_b32 {v(o+3)}, {v(b+3)}, {v(b+1)}, s[20:21]')
        a(f'buffer_store_dwordx4 {v(o,4)}, v8, s[4:7], s{15 + j//4} offen offset:{1024*(j&3)} sc1')
    if a.scb < 64:
        a(f's_cmp_lt_u32 {s(swk)}, {2 * a.scb}')
        a('s_cbranch_scc1 ln_n2')
        a(f's_add_u32 s15, s15, {WS_XN2}')
        a(f's_add_u32 s16, s16, {WS_XN2}')
        for j in range(NB):
            o = T + 4 * j; t = C + 4 * j
            for d, x in enumerate((0, 2, 1, 3)): a(f'v_mov_b32 {v(t+d)}, {v(o+x)}')
            a('s_nop 1')
            a(f'v_permlane16_swap_b32 {v(t)}, {v(t+1)}')
            a(f'v_permlane16_swap_b32 {v(t+2)}, {v(t+3)}')
            a('s_nop 0')
            a(f'buffer_store_dwordx4 {v(t,4)}, v8, s[4:7], s{15 + j//4} offen offset:{1024*(j&3)} sc1')
        a.label('ln_n2')
    a(f'''
    s_waitcnt vmcnt(0)
    s_barrier
    s_cmp_lg_u32 s3, 0
    s_cbranch_scc1 ln_sig
    v_mov_b32 v2, 1
    s_mov_b64 exec, 1
    s_cmp_ge_u32 {s(swk)}, {0 if a.cln else 8}
    s_cbranch_scc1 ln_sb
    buffer_atomic_add v2, off, {s(SRD_DBG,4)}, 0 offset:{DBG_INITA} sc1
    ''')
    a.label('ln_sb')
    a(f'''
    buffer_atomic_add v2, off, {s(SRD_DBG,4)}, 0 offset:{DBG_INIT} sc1
    s_mov_b64 exec, -1
    s_branch ln_sig
    ''')
    a.label('ln_touch')
    if a.cln:
        a(f's_lshl_b32 s16, {s(swk)}, 2')
        a('s_add_u32 s16, s16, s3')
        a('s_sub_u32 s16, s16, 4')
        ln2 = emit_row_ln(a, 16, 8, 17, 18)
        a('''
        v_mov_b32 v64, 2048
        v_mov_b32 v65, 0
        ds_write_b32 v64, v65
        s_waitcnt lgkmcnt(0)
        s_barrier
        s_waitcnt vmcnt(0)
        ''')
        ln2()
        a(f'''
        v_mov_b32 v65, 1
        s_waitcnt vmcnt(0)
        s_mov_b64 exec, 1
        ds_add_rtn_u32 v66, v64, v65
        s_waitcnt lgkmcnt(0)
        v_readfirstlane_b32 s17, v66
        s_cmp_lg_u32 s17, 3
        s_cbranch_scc1 ln_r2
        buffer_atomic_add v65, off, {s(SRD_DBG,4)}, 0 offset:{DBG_INITA} sc1
        ''')
        a.label('ln_r2')
        a('s_mov_b64 exec, -1')
    touch()
    if a.cln:
        a(f's_cmp_lt_u32 {s(swk)}, 32')
        a('s_cbranch_scc1 ln_sig')
    a('s_barrier')
    if a.bt1: a.late_touch()
    a('s_barrier'); a('s_barrier')
    if a.cln:
        a('s_branch ln_sig')
        a.label('ln_short')
        a(f'''
        s_barrier
        s_cmp_lg_u32 s3, 0
        s_cbranch_scc1 ln_sig
        v_mov_b32 v14, 0
        v_mov_b32 v2, 1
        s_lshl_b32 s13, {s(swk)}, 7
        s_add_u32 s13, s13, {WS_CNT}
        v_lshlrev_b32 v13, 2, v0
        s_mov_b32 exec_hi, 0
        buffer_store_dword v14, v13, s[4:7], s13 offen sc1
        s_waitcnt vmcnt(0)
        s_mov_b64 exec, 1
        buffer_atomic_add v2, off, {s(SRD_DBG,4)}, 0 offset:{DBG_INIT} sc1
        s_mov_b64 exec, -1
        ''')
    a.label('ln_sig')

def emit_row_ln(a, s_row, srd, t0, t1):
    P, Fl, T = 24, 32, 48
    a(f"""
    s_load_dwordx2 {s(srd,2)}, s[0:1], {KA_X}
    s_mov_b32 {s(srd+2)}, {4*MB}
    s_mov_b32 {s(srd+3)}, {SRD3}
    v_and_b32 v20, 63, v0
    v_lshlrev_b32 v21, 4, v20
    s_lshl_b32 {s(t0)}, {s(s_row)}, 11
    s_waitcnt lgkmcnt(0)
    buffer_load_dwordx4 {v(P,4)}, v21, {s(srd,4)}, {s(t0)} offen
    buffer_load_dwordx4 {v(P+4,4)}, v21, {s(srd,4)}, {s(t0)} offen offset:1024
    """)
    return lambda: _row_ln2(a, s_row, t0, t1, P, Fl, T)

def _row_ln2(a, s_row, t0, t1, P, Fl, T):
    a(f"""
    v_lshrrev_b32 v22, 2, v20
    v_lshlrev_b32 v22, 10, v22
    v_and_b32 v23, 3, v20
    v_lshl_add_u32 v22, v23, 8, v22
    v_and_b32 v23, 1, v20
    v_cmp_eq_u32 vcc, 1, v23
    s_lshr_b32 {s(t0)}, {s(s_row)}, 4
    s_lshl_b32 {s(t0)}, {s(t0)}, 15
    s_and_b32 {s(t1)}, {s(s_row)}, 15
    s_lshl_b32 {s(t1)}, {s(t1)}, 4
    s_add_u32 {s(t0)}, {s(t0)}, {s(t1)}
    s_add_u32 {s(t1)}, {s(t0)}, 16384
    """)
    for d in range(8):
        a(f'v_lshlrev_b32 {v(Fl+2*d)}, 16, {v(P+d)}')
        a(f'v_and_b32 {v(Fl+2*d+1)}, 0xffff0000, {v(P+d)}')
    def wave_sum():
        n = 8
        while n > 1:
            n //= 2
            for i in range(n): a(f'v_add_f32 {v(T+i)}, {v(T+i)}, {v(T+n+i)}')
        for r in (1, 2, 4, 8):
            a('s_nop 1')
            a(f'v_add_f32_dpp {v(T)}, {v(T)}, {v(T)} row_ror:{r} row_mask:0xf bank_mask:0xf')
        red_gq(a, T, T + 1)
    for i in range(8): a(f'v_add_f32 {v(T+i)}, {v(Fl+i)}, {v(Fl+8+i)}')
    wave_sum()
    a(f'v_mul_f32 v21, 0x3a800000, {v(T)}')
    for i in range(8):
        a(f'v_sub_f32 {v(T+8)}, {v(Fl+i)}, v21')
        a(f'v_sub_f32 {v(T+9)}, {v(Fl+8+i)}, v21')
        a(f'v_mul_f32 {v(T+i)}, {v(T+8)}, {v(T+8)}')
        a(f'v_fmac_f32 {v(T+i)}, {v(T+9)}, {v(T+9)}')
    wave_sum()
    a(f'v_mul_f32 v23, 0x3a800000, {v(T)}')
    rnd_bf16(a, 21, 21); rnd_bf16(a, 23, 23)
    a('v_add_f32 v23, 0x3727c5ac, v23')
    rnd_bf16(a, 23, 23)
    a('v_sqrt_f32 v23, v23'); a('s_nop 0')
    rnd_bf16(a, 23, 23)
    a('v_rcp_f32 v23, v23'); a('s_nop 0')
    for d in range(8):
        a(f'v_sub_f32 {v(Fl+2*d)}, {v(Fl+2*d)}, v21')
        a(f'v_sub_f32 {v(Fl+2*d+1)}, {v(Fl+2*d+1)}, v21')
        a(f'v_cvt_pk_bf16_f32 {v(P+d)}, {v(Fl+2*d)}, {v(Fl+2*d+1)}')
        a(f'v_lshlrev_b32 {v(Fl+2*d)}, 16, {v(P+d)}')
        a(f'v_and_b32 {v(Fl+2*d+1)}, 0xffff0000, {v(P+d)}')
        a(f'v_mul_f32 {v(Fl+2*d)}, {v(Fl+2*d)}, v23')
        a(f'v_mul_f32 {v(Fl+2*d+1)}, {v(Fl+2*d+1)}, v23')
        a(f'v_cvt_pk_bf16_f32 {v(P+d)}, {v(Fl+2*d)}, {v(Fl+2*d+1)}')
    for j in range(2):
        b = P + 4 * j; o = T + 4 * j
        a(f'v_cndmask_b32 {v(o)}, {v(b)}, {v(b+2)}, vcc')
        a(f'v_cndmask_b32 {v(o+1)}, {v(b+1)}, {v(b+3)}, vcc')
        a(f'v_cndmask_b32 {v(o+2)}, {v(b+2)}, {v(b)}, vcc')
        a(f'v_cndmask_b32 {v(o+3)}, {v(b+3)}, {v(b+1)}, vcc')
        a(f'buffer_store_dwordx4 {v(o,4)}, v22, s[4:7], {s((t0, t1)[j])} offen sc1')

def emit_ln_wait(a, s_type, s_aoff, t_fh, x=''):
    if a.cln:
        a(f's_cmp_lt_u32 {s(s_aoff)}, {WS_XN + MB}')
        a(f's_cselect_b32 {s(S_EARLY)}, 1, 0')
    else:
        a(f's_cmp_eq_u32 {s(s_type)}, {t_fh}')
        a(f's_cselect_b32 {s(S_EARLY)}, {1 if a.early else 0}, 0')
        a(f's_cmp_eq_u32 {s(s_aoff)}, {WS_XN}')
        a(f's_cselect_b32 {s(S_EARLY)}, {s(S_EARLY)}, 0')
    a('s_cmp_lg_u32 s3, 0')
    a(f's_cbranch_scc1 lnw{x}_ok')
    a(f's_cmp_eq_u32 {s(S_EARLY)}, 0')
    a(f's_cbranch_scc1 lnw{x}_full')
    emit_wait_init(a, f'lnwa{x}', 20, 68, 69, DBG_INITA, 128 if a.cln else 8)
    a(f's_branch lnw{x}_ok')
    a.label(f'lnw{x}_full')
    emit_wait_init(a, f'lnw{x}', 20, 68, 69)
    a('s_barrier')

def emit_drain_hook(a):
    a(f's_cmp_eq_u32 {s(S_EARLY)}, 0')
    a('s_cbranch_scc1 drw_ok')
    a(f's_mov_b32 {s(S_EARLY)}, 0')
    a('s_cmp_lg_u32 s3, 0')
    a('s_cbranch_scc1 drw_ok')
    a('v_readfirstlane_b32 s68, v22')
    a('s_cmp_ge_u32 s68, 128')
    a('s_cbranch_scc1 drw_ok')
    emit_wait_init(a, 'drw', 20, 68, 69)

def emit_wait_init(a, tag, vt, st, sto, off=DBG_INIT, tgt=128):
    a(f's_mov_b32 {s(sto)}, {TIMEOUT}')
    a.label(tag)
    a(f'''
    buffer_load_dword {v(vt)}, off, {s(SRD_DBG,4)}, 0 offset:{off} sc1
    s_waitcnt vmcnt(0)
    v_readfirstlane_b32 {s(st)}, {v(vt)}
    s_cmp_ge_u32 {s(st)}, {tgt}
    s_cbranch_scc1 {tag}_ok
    s_sleep 8
    s_sub_u32 {s(sto)}, {s(sto)}, 1
    s_cbranch_scc0 {tag}
    ''')
    a.label(tag + '_ok')


def silu8(a, gs, n, T):
    g0, g1 = gs[0], gs[1]
    for d in range(n):
        a(f'v_lshlrev_b32 {v(T+2*d)}, 16, {v(g0+d)}')
        a(f'v_and_b32 {v(T+2*d+1)}, 0xffff0000, {v(g0+d)}')
        for g in gs[1:]:
            a(f'v_lshlrev_b32 {v(g0+d)}, 16, {v(g+d)}')
            a(f'v_and_b32 {v(g+d)}, 0xffff0000, {v(g+d)}')
            a(f'v_add_f32 {v(T+2*d)}, {v(T+2*d)}, {v(g0+d)}')
            a(f'v_add_f32 {v(T+2*d+1)}, {v(T+2*d+1)}, {v(g+d)}')
        a(f'v_cvt_pk_bf16_f32 {v(g0+d)}, {v(T+2*d)}, {v(T+2*d+1)}')
        a(f'v_lshlrev_b32 {v(T+2*d)}, 16, {v(g0+d)}')
        a(f'v_and_b32 {v(T+2*d+1)}, 0xffff0000, {v(g0+d)}')
        a(f'v_mul_f32 {v(g0+d)}, s89, {v(T+2*d)}')
        a(f'v_mul_f32 {v(g1+d)}, s89, {v(T+2*d+1)}')
    for d in range(n):
        a(f'v_exp_f32 {v(g0+d)}, {v(g0+d)}')
        a(f'v_exp_f32 {v(g1+d)}, {v(g1+d)}')
    a('s_nop 0')
    for d in range(n):
        a(f'v_add_f32 {v(g0+d)}, 1.0, {v(g0+d)}')
        a(f'v_add_f32 {v(g1+d)}, 1.0, {v(g1+d)}')
    for d in range(n):
        a(f'v_rcp_f32 {v(g0+d)}, {v(g0+d)}')
        a(f'v_rcp_f32 {v(g1+d)}, {v(g1+d)}')
    a('s_nop 0')
    for d in range(n):
        a(f'v_mul_f32 {v(T+2*d)}, {v(T+2*d)}, {v(g0+d)}')
        a(f'v_mul_f32 {v(T+2*d+1)}, {v(T+2*d+1)}, {v(g1+d)}')
        a(f'v_cvt_pk_bf16_f32 {v(g0+d)}, {v(T+2*d)}, {v(T+2*d+1)}')

def finish(a, A, G, X, O, n, t):
    for d in range(n):
        a(f'v_cvt_pk_bf16_f32 {v(t)}, {v(A+2*d)}, {v(A+2*d+1)}')
        a(f'v_lshlrev_b32 {v(A+2*d)}, 16, {v(t)}')
        a(f'v_and_b32 {v(A+2*d+1)}, 0xffff0000, {v(t)}')
        a(f'v_lshlrev_b32 {v(t)}, 16, {v(G+d)}')
        a(f'v_and_b32 {v(t+1)}, 0xffff0000, {v(G+d)}')
        a(f'v_mul_f32 {v(A+2*d)}, {v(A+2*d)}, {v(t)}')
        a(f'v_mul_f32 {v(A+2*d+1)}, {v(A+2*d+1)}, {v(t+1)}')
        a(f'v_cvt_pk_bf16_f32 {v(t)}, {v(A+2*d)}, {v(A+2*d+1)}')
        a(f'v_lshlrev_b32 {v(A+2*d)}, 16, {v(t)}')
        a(f'v_and_b32 {v(A+2*d+1)}, 0xffff0000, {v(t)}')
        a(f'v_lshlrev_b32 {v(t)}, 16, {v(X+d)}')
        a(f'v_and_b32 {v(t+1)}, 0xffff0000, {v(X+d)}')
        a(f'v_add_f32 {v(A+2*d)}, {v(A+2*d)}, {v(t)}')
        a(f'v_add_f32 {v(A+2*d+1)}, {v(A+2*d+1)}, {v(t+1)}')
        a(f'v_cvt_pk_bf16_f32 {v(O+d)}, {v(A+2*d)}, {v(A+2*d+1)}')

def emit_fin(a, s_type, s_a, s_b, t_tail, done, s_otgt, s_four, s_g2):
    a(f"""
    s_load_dwordx2 s[8:9], s[0:1], {KA_X}
    s_load_dwordx2 s[12:13], s[0:1], {KA_OUT}
    v_mbcnt_lo_u32_b32 v1, -1, 0
    v_mbcnt_hi_u32_b32 v1, -1, v1
    s_mov_b32 s10, {4*MB}
    s_mov_b32 s11, {SRD3}
    s_mov_b32 s14, {4*MB}
    s_mov_b32 s15, {SRD3}
    s_mov_b32 s89, 0xbfb8aa3b
    v_lshlrev_b32 v3, 4, v1
    v_and_b32 v4, 15, v1
    v_lshrrev_b32 v5, 4, v1
    v_lshlrev_b32 v4, 11, v4
    v_lshl_add_u32 v4, v5, 4, v4
    v_and_b32 v5, 1, v5
    v_cmp_eq_u32 s[76:77], 1, v5
    v_and_b32 v6, 3, v1
    v_lshlrev_b32 v6, 7, v6
    s_mov_b32 s80, {s(s_a)}
    s_lshl_b32 s81, {s(s_b)}, 2
    s_and_b32 s82, s3, 3
    s_add_u32 s81, s81, s82
    s_lshr_b32 s82, s3, 2               ; rb & 1
    s_mov_b32 s84, {TIMEOUT}
    s_mov_b32 s85, {CS_TAB}
    s_waitcnt lgkmcnt(0)
    s_cmp_eq_u32 {s(s_type)}, {t_tail}
    s_cbranch_scc1 fin_tail
    """)
    a.label('fin_job')
    a(f"""
    s_lshl_b32 s72, s80, 1
    s_add_u32 s72, s72, s82             ; rb
    s_lshl_b32 s74, s72, 15
    s_lshl_b32 s73, s81, 11
    s_add_u32 s73, s73, s74             ; F offset
    s_lshl_b32 s75, s81, 7
    s_add_u32 s74, s74, s75
    s_add_u32 s78, s73, {WS_GG}
    s_add_u32 s79, s73, {WS_SP}
    s_lshr_b32 s83, s80, 3
    s_lshl_b32 s83, s83, 6
    s_add_u32 s83, s83, {CD_TAB}
    s_add_u32 s87, s80, 1
    """)
    for b in range(2):
        a(f'buffer_load_dwordx4 {v(88+4*b,4)}, v4, s[8:11], s74 offen offset:{64*b}')
    a('s_cmp_lg_u32 s3, 0')
    a('s_cbranch_scc1 fin_ws_ok')
    a.label('fin_wd')
    a(f"""
    buffer_load_dwordx2 v[8:9], off, s[4:7], s83 sc1
    s_waitcnt vmcnt(0)
    v_readfirstlane_b32 s86, v8
    v_readfirstlane_b32 s88, v9
    s_cmp_ge_u32 s88, {s(s_otgt)}
    s_cselect_b32 s86, s86, 0
    s_cmp_ge_u32 s86, 16
    s_cbranch_scc1 fin_wd2
    s_sleep 64
    s_sub_u32 s84, s84, 1
    s_cbranch_scc0 fin_wd
    s_mov_b32 s84, 0
    """)
    a.label('fin_wd2')
    a(f's_cmp_lg_u32 {s(s_otgt)}, 0')
    a('s_cbranch_scc1 fin_ws_ok')
    a.label('fin_ws')
    a(f"""
    buffer_load_dword v7, v6, s[4:7], s85 offen sc1
    s_waitcnt vmcnt(0)
    v_cmp_gt_u32 vcc, s87, v7
    s_cbranch_vccz fin_ws_ok
    s_sleep {a.fin_sleep}
    s_sub_u32 s86, s87, 2
    v_cmp_gt_i32 vcc, s86, v7
    s_cbranch_vccz fin_ws_f
    s_sleep 64
    s_sub_u32 s86, s87, 6
    v_cmp_gt_i32 vcc, s86, v7
    s_cbranch_vccz fin_ws_f
    s_sleep 127
    s_sleep 127
    """)
    a.label('fin_ws_f')
    a(f"""
    s_sub_u32 s84, s84, 1
    s_cbranch_scc0 fin_ws
    s_mov_b32 s84, 0
    """)
    a.label('fin_ws_ok')
    a.fin_claim()
    a('s_barrier')
    for k in range(4):
        if k == 2:
            a(f's_cmp_lg_u32 {s(s_g2)}, 0')
            a('s_cbranch_scc1 fin_g2')
        for b in range(2):
            a(f'buffer_load_dwordx4 {v(136+8*k+4*b,4)}, v3, s[4:7], s78 offen offset:{1024*b} sc1')
        a(f's_add_u32 s78, s78, {4*MB}')
    a('s_branch fin_g4')
    a.label('fin_g2')
    for i in range(16): a(f'v_mov_b32 {v(152+i)}, 0')
    a.label('fin_g4')
    for g in range(8):
        if g in (2, 4):
            a(f's_cmp_ge_u32 {s(s_four)}, {2 if g == 2 else 1}')
            a(f's_cbranch_scc1 fin_{g}p')
        for b in range(2):
            a(f'buffer_load_dwordx4 {v(16+(b*8+g)*4,4)}, v3, s[4:7], s79 offen offset:{1024*b} sc1')
        a(f's_add_u32 s79, s79, {4*MB}')
    a('s_waitcnt vmcnt(16)')
    a('s_branch fin_8p')
    a.label('fin_2p')
    for b in range(2):
        for i in range(24): a(f'v_mov_b32 {v(16+(b*8+2)*4+i)}, 0')
    a('s_waitcnt vmcnt(4)')
    a('s_branch fin_8p')
    a.label('fin_4p')
    for b in range(2):
        for i in range(16): a(f'v_mov_b32 {v(16+(b*8+4)*4+i)}, 0')
    a('s_waitcnt vmcnt(8)')
    a.label('fin_8p')
    for b in range(2): silu8(a, [136 + 8 * k + 4 * b for k in range(4)], 4, 120)
    a('s_waitcnt vmcnt(0)')
    def combine(b):
        A = 96
        for d in range(4):
            r = 16 + b * 32 + d
            a(f'v_lshlrev_b32 {v(A+2*d)}, 16, {v(r)}')
            a(f'v_and_b32 {v(A+2*d+1)}, 0xffff0000, {v(r)}')
        for g in range(1, 8):
            for d in range(4):
                r = 16 + (b * 8 + g) * 4 + d
                a(f'v_lshlrev_b32 {v(120+2*d)}, 16, {v(r)}')
                a(f'v_and_b32 {v(121+2*d)}, 0xffff0000, {v(r)}')
            for e in range(8):
                a(f'v_add_f32 {v(A+e)}, {v(A+e)}, {v(120+e)}')
        X = 88 + 4 * b
        a(f'v_cndmask_b32 v108, {v(X)}, {v(X+2)}, s[76:77]')
        a(f'v_cndmask_b32 v109, {v(X+1)}, {v(X+3)}, s[76:77]')
        a(f'v_cndmask_b32 v110, {v(X+2)}, {v(X)}, s[76:77]')
        a(f'v_cndmask_b32 v111, {v(X+3)}, {v(X+1)}, s[76:77]')
        finish(a, A, 136 + 4 * b, 108, 112, 4, 104)
        O = 128 + 4 * b
        a(f'v_cndmask_b32 {v(O)}, v112, v114, s[76:77]')
        a(f'v_cndmask_b32 {v(O+1)}, v113, v115, s[76:77]')
        a(f'v_cndmask_b32 {v(O+2)}, v114, v112, s[76:77]')
        a(f'v_cndmask_b32 {v(O+3)}, v115, v113, s[76:77]')
        a(f'buffer_store_dwordx4 {v(O,4)}, v4, s[12:15], s74 offen offset:{64*b}')
    for b in range(2): combine(b)
    if a.wprof:
        import k_gemm5
        a('s_waitcnt vmcnt(0)')
        k_gemm5.prof_stamp(a, 1)
    a(f's_branch {done}')
    a.label('fin_tail')
    a(f"""
    s_mov_b32 s81, {s(s_b)}
    s_lshl_b32 s81, s81, 2
    s_and_b32 s82, s3, 3
    s_add_u32 s81, s81, s82             ; blk 0..63
    s_lshr_b32 s82, s81, 5
    s_and_b32 s81, s81, 31              ; cb
    s_lshl_b32 s72, s80, 1
    s_add_u32 s72, s72, s82             ; rb
    s_lshl_b32 s74, s72, 15
    s_lshl_b32 s73, s81, 10
    s_add_u32 s73, s73, s74
    s_lshl_b32 s75, s81, 6
    s_add_u32 s74, s74, s75
    s_add_u32 s78, s73, {WS_GG}
    s_add_u32 s79, s73, {WS_SP}
    s_mov_b32 s83, {CD_TAB + 7 * 64}
    s_mov_b32 s84, {TIMEOUT}
    s_min_u32 s87, s80, 62
    v_and_b32 v8, 7, v1
    v_lshlrev_b32 v8, 22, v8
    s_cmp_lg_u32 s3, 0
    s_cbranch_scc1 ft_ok
    """)
    a.label('ft_wd')
    a(f"""
    buffer_load_dword v7, off, s[4:7], s83 sc1
    s_waitcnt vmcnt(0)
    v_readfirstlane_b32 s86, v7
    s_cmp_ge_u32 s86, 16
    s_cbranch_scc1 ft_wdok
    s_sleep 32
    s_sub_u32 s84, s84, 1
    s_cbranch_scc0 ft_wd
    s_mov_b32 s84, 0
    """)
    a.label('ft_wdok')
    a.label('ft_ok')
    a(f"""
    s_barrier
    s_cmp_ge_u32 s3, 4
    s_cbranch_scc1 {done}
    buffer_load_dwordx4 v[88:91], v4, s[8:11], s74 offen
    """)
    for k in range(4):
        a(f'buffer_load_dwordx4 {v(136+8*k,4)}, v3, s[4:7], s78 offen sc1')
        a(f's_add_u32 s78, s78, {4*MB}')
    if a.ctch: vcode_touch(a, 'ft_l0', 10, 72, 3, 9, 10)
    a('s_waitcnt vmcnt(0)')
    silu8(a, [136 + 8 * k for k in range(4)], 4, 120)
    a.label('ft_ws')
    a(f"""
    buffer_load_dword v7, v6, s[4:7], s85 offen sc1
    s_waitcnt vmcnt(0)
    v_cmp_gt_u32 vcc, s87, v7
    s_cbranch_vccz ft_p
    s_sleep {a.fin_sleep}
    v_cmp_gt_u32 vcc, 59, v7
    s_cbranch_vccz ft_wsf
    s_sleep 64
    v_cmp_gt_u32 vcc, 56, v7
    s_cbranch_vccz ft_wsf
    s_sleep 127
    s_sleep 127
    """)
    a.label('ft_wsf')
    a(f"""
    s_sub_u32 s84, s84, 1
    s_cbranch_scc0 ft_ws
    s_mov_b32 s84, 0
    """)
    a.label('ft_p')
    a(f"""
    buffer_load_dword v7, v8, s[4:7], s79 offen offset:1008 sc1
    s_waitcnt vmcnt(0)
    v_cmp_eq_u32 vcc, -1, v7
    s_cbranch_vccz ft_l0
    s_sleep {a.ft_sleep}
    s_sub_u32 s84, s84, 1
    s_cbranch_scc0 ft_p
    s_mov_b32 s84, 0
    """)
    a.label('ft_l0')
    a.fin_claim()
    a.label('ft_l')
    a('s_mov_b32 s86, s79')
    for g in range(8):
        a(f'buffer_load_dwordx4 {v(16+g*4,4)}, v3, s[4:7], s86 offen sc1')
        if g < 7: a(f's_add_u32 s86, s86, {4*MB}')
    a('s_waitcnt vmcnt(0)')
    a('v_max3_u32 v7, v16, v20, v24')
    a('v_max3_u32 v7, v7, v28, v32')
    a('v_max3_u32 v7, v7, v36, v40')
    a('v_max_u32 v7, v7, v44')
    a(f"""
    v_cmp_eq_u32 vcc, -1, v7
    s_cbranch_vccz ft_go
    s_sub_u32 s84, s84, 1
    s_cbranch_scc0 ft_l
    """)
    a.label('ft_go')
    combine(0)
    if a.wprof:
        import k_gemm5
        a('s_waitcnt vmcnt(0)')
        k_gemm5.prof_stamp(a, 1)
    a(f's_branch {done}')
```

```python
from asmlib import *
from layout4 import *

S_W = 3
SRD_WS = 4
SRD_B0 = 8
SRD_B1 = 12
S_A0, S_A1, S_B0, S_B1, S_BSTEP = 16, 17, 18, 19, 20
S_MA, S_MB = 21, 22
S_LEFT = 23
S_TAB = 24
S_WM, S_WN = 26, 27
S_PEND = 28
S_T0, S_T1, S_T2, S_T3 = 29, 30, 31, 56
S_ND = 32
S_CT, S_COUT, S_CSTR, S_CSIG = 48, 49, 50, 51
S_RDY = 52
S_K0, S_K1 = 54, 55
S_PF = 58
D_TYPE, D_KB0, D_KB1, D_LDB, D_B0, D_B1, D_BSZ, D_A, D_ASTR, D_NB, D_OUT, D_OSTR, D_WAIT, D_WTGT, D_SIG, D_X = range(16)
T_END, T_F, T_GLU, T_SILU, T_FH, T_ATT, T_FIN, T_FINT = 0, 1, 2, 3, 4, 5, 6, 7
S_ASTEP = 62
S_QH, S_JI = 71, 59
V_NX = 26
LDS_NX = 131072 + 64
V_L16, V_OFFB, V_SWZ, V_GQ, V_AA, V_AAH = 1, 2, 3, 4, 5, 6
V_AW = 8
V_POLL, V_ZERO, V_ONE, V_L16B, V_FLAG = 16, 17, 18, 19, 7
V_TMP = 20
SETS = [(32, 64), (80, 112)]
ACC = 128
LDS_FLAG = 131072
GEMM_LDS = 131072 + 256

NTA = ''
NTB = ''
ENT = ''
def acc(i, t):
    return ACC + (i * 4 + t) * 4

def emit_worker_init(a):
    a(f'''
    v_and_b32 v20, 63, v0
    v_lshlrev_b32 {v(V_L16)}, 4, v20
    v_add_u32 {v(V_L16B)}, 0x1000, {v(V_L16)}
    v_lshrrev_b32 {v(V_GQ)}, 4, v20
    v_mov_b32 {v(V_ZERO)}, 0
    v_mov_b32 {v(V_ONE)}, 1
    s_lshr_b32 {s(S_WM)}, {s(S_W)}, 2
    s_and_b32 {s(S_WN)}, {s(S_W)}, 3
    s_lshl_b32 {s(S_MA)}, {s(S_W)}, 11
    s_lshl_b32 {s(S_MB)}, {s(S_W)}, 10
    s_add_u32 {s(S_MB)}, {s(S_MB)}, 16384
    s_mov_b32 {s(SRD_B0+3)}, {SRD3}
    s_mov_b32 {s(SRD_B1+3)}, {SRD3}
    s_mov_b32 {s(S_PEND)}, 0
    ''')
    a(f'''
    v_and_b32 v21, 15, v20
    v_lshlrev_b32 v22, 2, {v(V_GQ)}
    v_xor_b32 v21, v21, v22
    s_lshr_b32 {s(S_T1)}, {s(S_W)}, 1
    s_and_b32 {s(S_T1)}, {s(S_T1)}, 1
    v_xor_b32 v21, {s(S_T1)}, v21
    v_lshlrev_b32 {v(V_SWZ)}, 4, v21
    ''')
    a(f'''
    s_lshl_b32 {s(S_T1)}, {s(S_WM)}, 13
    v_add_u32 {v(V_AA)}, {s(S_T1)}, {v(V_L16)}
    v_add_u32 {v(V_AAH)}, 0x10000, {v(V_AA)}
    ''')
    a(f'''
    v_bfe_u32 v21, v20, 2, 2          ; r
    v_and_b32 v22, 3, v20             ; c
    v_and_b32 v23, 1, {v(V_GQ)}       ; gq&1
    v_xor_b32 v24, {s(S_WN)}, v21     ; p^r
    v_xor_b32 v25, v22, v23           ; c^(gq&1)
    v_lshl_add_u32 v24, v24, 2, v25   ; unit
    v_lshlrev_b32 v24, 4, v24         ; unit*16
    v_lshl_add_u32 v25, {v(V_GQ)}, 3, v21   ; 8gq + r
    v_lshl_add_u32 v24, v25, 8, v24
    v_and_b32 v22, 1, v22             ; c&1
    ''')
    for T in range(2):
        for hh in range(2):
            d = V_AW + T * 2 + hh
            a(f'v_xor_b32 v25, {hh}, v23')
            a(f'v_lshl_add_u32 {v(d)}, v25, 10, v24')
            a(f'v_xor_b32 v25, {T}, v22')
            a(f'v_lshl_add_u32 {v(d)}, v25, 3, {v(d)}')
            a(f'v_add_u32 {v(d+4)}, 0x10000, {v(d)}')
    a(f'''
    s_lshl_b32 {s(S_T1)}, {s(S_W)}, 2
    s_add_u32 {s(S_T1)}, {s(S_T1)}, {LDS_FLAG}
    v_mov_b32 {v(V_FLAG)}, {s(S_T1)}
    ''')

def dma_group(slot):
    base = slot * 32768
    items = []
    items.append([f's_add_u32 m0, {s(S_MA)}, {base}', 's_nop 0',
                  f'buffer_load_dwordx4 {v(V_L16)}, {s(SRD_WS,4)}, {s(S_A0)} offen sc1{NTA} lds',
                  f's_add_u32 {s(S_A0)}, {s(S_A0)}, {s(S_ASTEP)}'])
    items.append([f's_add_u32 m0, {s(S_MA)}, {base+1024}', 's_nop 0',
                  f'buffer_load_dwordx4 {v(V_L16)}, {s(SRD_WS,4)}, {s(S_A1)} offen sc1{NTA} lds',
                  f's_add_u32 {s(S_A1)}, {s(S_A1)}, {s(S_ASTEP)}'])
    items.append([f's_add_u32 m0, {s(S_MB)}, {base}', 's_nop 0',
                  f'buffer_load_dwordx4 {v(V_OFFB)}, {s(SRD_B0,4)}, {s(S_B0)} offen{NTB} lds',
                  f's_add_u32 {s(S_B0)}, {s(S_B0)}, {s(S_BSTEP)}'])
    items.append([f's_add_u32 m0, {s(S_MB)}, {base+8192}', 's_nop 0',
                  f'buffer_load_dwordx4 {v(V_OFFB)}, {s(SRD_B1,4)}, {s(S_B1)} offen{NTB} lds',
                  f's_add_u32 {s(S_B1)}, {s(S_B1)}, {s(S_BSTEP)}'])
    return items

def frag_reads(slot, fset):
    av, wv = SETS[fset]
    hi = slot >> 1
    base = (slot & 1) * 32768
    items = []
    for hf in range(2):
        for T in range(2):
            t = hf * 2 + T
            for hh in range(2):
                ad = V_AW + hi * 4 + T * 2 + hh
                items.append([f'ds_read_b64_tr_b16 {v(wv+4*t+2*hh,2)}, {v(ad)} offset:{base+16384+hf*8192}'])
    for i in range(8):
        items.append([f'ds_read_b128 {v(av+4*i,4)}, {v(V_AAH if hi else V_AA)} offset:{base+i*1024}'])
    return items

def iteration(a, q, vm, zero_c=False, extra_after_barrier=None, poll=False, mt=8, full_reads=False):
    cur = q & 1
    av, wv = SETS[cur]
    a(f's_waitcnt vmcnt({vm})')
    a('s_barrier')
    if extra_after_barrier:
        extra_after_barrier()
    mf = []
    if mt == 8:
        for i in range(8):
            for t in range(4):
                c = '0' if zero_c else v(acc(i, t), 4)
                mf.append(f'v_mfma_f32_16x16x32_bf16 {v(acc(i,t),4)}, {v(wv+4*t,4)}, {v(av+4*i,4)}, {c}')
    else:
        for kc in range(2):
            for i in range(4):
                for T in range(2):
                    c = '0' if (zero_c and kc == 0) else v(acc(i, T), 4)
                    mf.append(f'v_mfma_f32_16x16x32_bf16 {v(acc(i,T),4)}, {v(wv+4*(2*kc+T),4)}, {v(av+4*(2*i+kc),4)}, {c}')
    reads = frag_reads((q + 1) & 3, cur ^ 1)
    dmas = dma_group(q)
    if poll:
        a(f'buffer_load_dword {v(V_POLL)}, {v(V_ZERO)}, {s(SRD_WS,4)}, {s(S_ND+D_WAIT)} offen sc1')
    seq = []
    ri = 0; di = 0
    if mt == 4:
        for d in dmas[:4]: seq.extend(d)
        di = 4
    gdp, gde, grs, gr0 = (getattr(a, n, d) for n, d in (('gdp', 17), ('gde', 3), ('grs', 1), ('gr0', 0)))
    for k, m in enumerate(mf):
        seq.append(m)
        if mt == 4:
            if ri < len(reads): seq.extend(reads[ri]); ri += 1
            continue
        if k >= gdp and (k - gdp) % gde == 0 and di < len(dmas):
            seq.extend(dmas[di]); di += 1
        elif k >= gr0 and ri < len(reads) and (grs == 1 or (k - gr0) % 3 != 2):
            seq.extend(reads[ri]); ri += 1
    assert ri == len(reads)
    while di < len(dmas):
        seq.extend(dmas[di]); di += 1
    for ln in seq:
        a(ln)
    a('s_waitcnt lgkmcnt(0)')

def emit_loader_setup(a):
    a(f'''
    s_load_dwordx2 {s(SRD_B0,2)}, s[0:1], {s(S_ND+D_KB0)}
    s_load_dwordx2 {s(SRD_B1,2)}, s[0:1], {s(S_ND+D_KB1)}
    s_mov_b32 {s(SRD_B0+2)}, {s(S_ND+D_BSZ)}
    s_mov_b32 {s(SRD_B1+2)}, {s(S_ND+D_BSZ)}
    s_cmp_eq_u32 {s(S_ND+D_TYPE)}, {T_FH}
    s_cselect_b32 {s(S_T2)}, 0, 1
    s_lshl_b32 {s(S_T1)}, {s(S_W)}, {s(S_T2)}
    s_mul_i32 {s(S_T1)}, {s(S_T1)}, {s(S_ND+D_ASTR)}
    s_add_u32 {s(S_A0)}, {s(S_ND+D_A)}, {s(S_T1)}
    s_cmp_eq_u32 {s(S_ND+D_TYPE)}, {T_FH}
    s_cselect_b32 {s(S_T1)}, 1024, {s(S_ND+D_ASTR)}
    s_cselect_b32 {s(S_T2)}, 6, 5
    s_lshl_b32 {s(S_ASTEP)}, 32, {s(S_T2)}
    s_add_u32 {s(S_A1)}, {s(S_A0)}, {s(S_T1)}
    s_lshl_b32 {s(S_T1)}, {s(S_W)}, 2
    s_mul_i32 {s(S_T1)}, {s(S_T1)}, {s(S_ND+D_LDB)}
    s_add_u32 {s(S_B0)}, {s(S_ND+D_B0)}, {s(S_T1)}
    s_add_u32 {s(S_B1)}, {s(S_ND+D_B1)}, {s(S_T1)}
    s_lshl_b32 {s(S_BSTEP)}, {s(S_ND+D_LDB)}, {s(S_T2)}
    v_mul_u32_u24 {v(V_OFFB)}, {s(S_ND+D_LDB)}, {v(V_GQ)}
    v_add_u32 {v(V_OFFB)}, {v(V_OFFB)}, {v(V_SWZ)}
    s_waitcnt lgkmcnt(0)
    ''')

def prof_stamp(a, mark=0):
    if not getattr(a, 'wprof', False): return
    a(f'''
    s_memrealtime s[60:61]
    s_memtime s[92:93]
    s_waitcnt lgkmcnt(0)
    s_andn2_b32 s60, s60, 1
    s_or_b32 s60, s60, {mark}
    v_mov_b32 v21, s60
    v_mov_b32 v23, s92
    v_mov_b32 v27, {s(S_JI)}
    s_add_u32 s92, {s(S_PF)}, {MB}
    s_add_u32 s93, {s(S_PF)}, {2*MB}
    s_mov_b64 exec, 1
    buffer_store_dword v21, off, {s(SRD_WS,4)}, {s(S_PF)}
    buffer_store_dword v23, off, {s(SRD_WS,4)}, s92
    buffer_store_dword v27, off, {s(SRD_WS,4)}, s93
    s_mov_b64 exec, -1
    s_add_u32 {s(S_PF)}, {s(S_PF)}, 4
    ''')

def emit_adopt(a, with_load=True):
    prof_stamp(a)
    a(f'''
    s_mov_b32 {s(S_CT)}, {s(S_ND+D_TYPE)}
    s_cmp_eq_u32 {s(S_ND+D_TYPE)}, {T_FH}
    s_cselect_b32 {s(S_T1)}, 2, 3
    s_lshl_b32 {s(S_T1)}, {s(S_WM)}, {s(S_T1)}
    s_mul_i32 {s(S_T1)}, {s(S_T1)}, {s(S_ND+D_OSTR)}
    s_add_u32 {s(S_COUT)}, {s(S_ND+D_OUT)}, {s(S_T1)}
    s_mov_b32 {s(S_CSTR)}, {s(S_ND+D_OSTR)}
    s_mov_b32 {s(S_CSIG)}, {s(S_ND+D_SIG)}
    s_mov_b32 {s(S_LEFT)}, {s(S_ND+D_NB)}
    s_mov_b32 s53, {s(S_ND+D_NB)}
    ''')

def claim(a, vr):
    l = a.uid('clm')
    a(f'''
    s_cmp_lg_u32 {s(S_W)}, 0
    s_cbranch_scc1 {l}
    v_mov_b32 {v(vr)}, 1
    s_mov_b64 exec, 1
    buffer_atomic_add {v(vr)}, off, s[64:67], {s(S_QH)} sc0 sc1
    s_mov_b64 exec, -1
    ''')
    a.label(l)

def publish(a, vr):
    l = a.uid('pub')
    a(f'''
    s_cmp_lg_u32 {s(S_W)}, 0
    s_cbranch_scc1 {l}
    v_mov_b32 v20, {LDS_NX}
    s_mov_b64 exec, 1
    ds_write_b32 v20, {v(vr)}
    s_mov_b64 exec, -1
    s_waitcnt lgkmcnt(0)
    ''')
    a.label(l)

def fetch(a, nj):
    a(f'''
    v_mov_b32 v20, {LDS_NX}
    ds_read_b32 v20, v20
    s_waitcnt lgkmcnt(0)
    v_readfirstlane_b32 {s(S_JI)}, v20
    s_add_u32 {s(S_JI)}, {s(S_JI)}, 32
    s_min_u32 {s(S_JI)}, {s(S_JI)}, {nj - 1}
    s_lshl_b32 s57, {s(S_JI)}, 6
    s_load_dwordx16 {s(S_ND,16)}, {s(S_TAB,2)}, s57
    ''')

def emit_signal(a, sreg):
    l = a.uid('sig')
    a(f'''
    s_cmp_eq_u32 {s(sreg)}, 0
    s_cbranch_scc1 {l}
    s_cmp_lg_u32 {s(S_W)}, 0
    s_cbranch_scc1 {l}
    s_and_b32 s57, {s(sreg)}, 3
    v_mov_b32 v24, s57
    s_bfe_u32 s57, {s(sreg)}, 0x20002
    v_mov_b32 v25, s57
    s_andn2_b32 {s(sreg)}, {s(sreg)}, 15
    s_mov_b64 exec, 1
    buffer_atomic_add_x2 v[24:25], {v(V_ZERO)}, {s(SRD_WS,4)}, {s(sreg)} offen sc1
    s_mov_b64 exec, -1
    ''')
    a.label(l)
    a(f's_mov_b32 {s(sreg)}, 0')

def fused_first(a, glu):
    av, wv = SETS[0]
    a('s_waitcnt vmcnt(8)')
    a('s_barrier')
    for d in dma_group(0):
        for ln in d: a(ln)
    reads = [r[0] for r in frag_reads(1, 1)]
    if glu: a('s_mov_b32 s55, 0xbfb8aa3b')
    n = 0
    for i in range(8):
        if glu:
            tq, w = 28, 20; g = acc(i, 0); u = acc(i, 2)
            for d in range(4): a(f'v_cvt_pk_bf16_f32 {v(tq+d)}, {v(g+2*d)}, {v(g+2*d+1)}')
            for d in range(4):
                a(f'v_lshlrev_b32 {v(w+2*d)}, 16, {v(tq+d)}')
                a(f'v_and_b32 {v(w+2*d+1)}, 0xffff0000, {v(tq+d)}')
            for e in range(8): a(f'v_mul_f32 {v(w+e)}, s55, {v(w+e)}')
            for e in range(8): a(f'v_exp_f32 {v(w+e)}, {v(w+e)}')
            for e in range(8): a(f'v_add_f32 {v(w+e)}, 1.0, {v(w+e)}')
            for e in range(8): a(f'v_rcp_f32 {v(w+e)}, {v(w+e)}')
            for e in range(8): a(f'v_mul_f32 {v(w+e)}, {v(w+e)}, {v(u+e)}')
            for d in range(4): a(f'v_cvt_pk_bf16_f32 {v(tq+d)}, {v(w+2*d)}, {v(w+2*d+1)}')
            a(f'buffer_store_dwordx4 {v(tq,4)}, {v(V_L16)}, {s(SRD_WS,4)}, s54 offen sc1{ENT}')
        else:
            for hf in range(2):
                tq = 20 + 4 * (n % 3); n += 1
                src = acc(i, 2 * hf)
                for d in range(4): a(f'v_cvt_pk_bf16_f32 {v(tq+d)}, {v(src+2*d)}, {v(src+2*d+1)}')
                a(f'buffer_store_dwordx4 {v(tq,4)}, {v(V_L16B if hf else V_L16)}, {s(SRD_WS,4)}, s54 offen sc1{ENT}')
        a('s_add_u32 s54, s54, s56')
        for t in range(4):
            a(f'v_mfma_f32_16x16x32_bf16 {v(acc(i,t),4)}, {v(wv+4*t,4)}, {v(av+4*i,4)}, 0')
            if t & 1: a(reads.pop(0))
    a('s_waitcnt lgkmcnt(0)')

def first_body(a, nst, mt=8, sq=3):
    for q in range(4):
        if q == 1 and mt == 8: a.label(f'w_first{nst}_q1')
        vm = min(8 + nst, 63) if q < sq else (4 * q if q == sq and q < 2 else 8)
        iteration(a, q, vm, zero_c=(q == 0), mt=mt,
                  extra_after_barrier=(lambda: emit_signal(a, S_PEND)) if q == sq else None)

EPI_TMP = 80

def epi_F(a, silu=False, mt=8):
    a(f's_lshl_b32 {s(S_T1)}, {s(S_WN)}, 10')
    a(f's_add_u32 {s(S_T1)}, {s(S_T1)}, {s(S_COUT)}')
    if silu:
        a(f's_mov_b32 {s(S_K0)}, 0xbfb8aa3b')
    a('s_nop 7')
    n = 0
    for i in range(mt):
        for hf in range(2 if mt == 8 else 1):
            tq = EPI_TMP + 4 * (n % 4); n += 1
            src = acc(i, 2 * hf)
            if silu:
                w = EPI_TMP + 16 + 8 * (n % 2)
                for d in range(4):
                    a(f'v_cvt_pk_bf16_f32 {v(tq+d)}, {v(src+2*d)}, {v(src+2*d+1)}')
                for d in range(4):
                    a(f'v_lshlrev_b32 {v(src+2*d)}, 16, {v(tq+d)}')
                    a(f'v_and_b32 {v(src+2*d+1)}, 0xffff0000, {v(tq+d)}')
                for e in range(8):
                    a(f'v_mul_f32 {v(w+e)}, {s(S_K0)}, {v(src+e)}')
                for e in range(8):
                    a(f'v_exp_f32 {v(w+e)}, {v(w+e)}')
                for e in range(8):
                    a(f'v_add_f32 {v(w+e)}, 1.0, {v(w+e)}')
                for e in range(8):
                    a(f'v_rcp_f32 {v(w+e)}, {v(w+e)}')
                for e in range(8):
                    a(f'v_mul_f32 {v(src+e)}, {v(src+e)}, {v(w+e)}')
            for d in range(4):
                a(f'v_cvt_pk_bf16_f32 {v(tq+d)}, {v(src+2*d)}, {v(src+2*d+1)}')
            a(f'buffer_store_dwordx4 {v(tq,4)}, {v(V_L16B if hf else V_L16)}, {s(SRD_WS,4)}, {s(S_T1)} offen sc1{ENT}')
        if i < 7:
            a(f's_add_u32 {s(S_T1)}, {s(S_T1)}, {s(S_CSTR)}')
    return 16 if mt == 8 else 4

def epi_GLU(a):
    a(f's_lshl_b32 {s(S_T1)}, {s(S_WN)}, 10')
    a(f's_add_u32 {s(S_T1)}, {s(S_T1)}, {s(S_COUT)}')
    a(f's_mov_b32 {s(S_K0)}, 0xbfb8aa3b')
    a('s_nop 7')
    for i in range(8):
        tq = EPI_TMP + 4 * (i % 4)
        w = EPI_TMP + 16 + 8 * (i % 2)
        g = acc(i, 0); u = acc(i, 2)
        for d in range(4):
            a(f'v_cvt_pk_bf16_f32 {v(tq+d)}, {v(g+2*d)}, {v(g+2*d+1)}')
        for d in range(4):
            a(f'v_lshlrev_b32 {v(w+2*d)}, 16, {v(tq+d)}')
            a(f'v_and_b32 {v(w+2*d+1)}, 0xffff0000, {v(tq+d)}')
        for e in range(8):
            a(f'v_mul_f32 {v(w+e)}, {s(S_K0)}, {v(w+e)}')
        for e in range(8):
            a(f'v_exp_f32 {v(w+e)}, {v(w+e)}')
        for e in range(8):
            a(f'v_add_f32 {v(w+e)}, 1.0, {v(w+e)}')
        for e in range(8):
            a(f'v_rcp_f32 {v(w+e)}, {v(w+e)}')
        for e in range(8):
            a(f'v_mul_f32 {v(w+e)}, {v(w+e)}, {v(u+e)}')
        for d in range(4):
            a(f'v_cvt_pk_bf16_f32 {v(tq+d)}, {v(w+2*d)}, {v(w+2*d+1)}')
        a(f'buffer_store_dwordx4 {v(tq,4)}, {v(V_L16)}, {s(SRD_WS,4)}, {s(S_T1)} offen sc1{ENT}')
        if i < 7:
            a(f's_add_u32 {s(S_T1)}, {s(S_T1)}, {s(S_CSTR)}')
    return 8

def emit_worker(a, table_label, jobs_per_worker, done_label):
    emit_worker_init(a)
    if getattr(a, 'gprio', 0):
        a(f's_cmp_ge_u32 {s(S_W)}, 4')
        a(f's_cbranch_scc{0 if a.gprio == 1 else 1} w_np')
        a('s_setprio 1')
        a.label('w_np')
    if getattr(a, 'wprof', False):
        a(f's_lshl_b32 {s(S_PF)}, {s(S_T0)}, 3')
        a(f's_add_u32 {s(S_PF)}, {s(S_PF)}, {s(S_W)}')
        a(f's_lshl_b32 {s(S_PF)}, {s(S_PF)}, 7')
        a(f's_add_u32 {s(S_PF)}, {s(S_PF)}, {WS_YP + 8*MB}')
        prof_stamp(a)
    a(f'''
    s_getpc_b64 {s(S_TAB,2)}
    s_add_u32 {s(S_TAB)}, {s(S_TAB)}, {table_label}@rel32@lo+4
    s_addc_u32 {s(S_TAB+1)}, {s(S_TAB+1)}, {table_label}@rel32@hi+12
    s_and_b32 {s(S_T2)}, {s(S_T0)}, 3
    s_mul_i32 {s(S_T1)}, {s(S_T2)}, {jobs_per_worker*64}
    s_add_u32 {s(S_TAB)}, {s(S_TAB)}, {s(S_T1)}
    s_addc_u32 {s(S_TAB+1)}, {s(S_TAB+1)}, 0
    s_lshl_b32 {s(S_QH)}, {s(S_T2)}, 2
    s_add_u32 {s(S_QH)}, {s(S_QH)}, 64
    s_lshr_b32 {s(S_JI)}, {s(S_T0)}, 2
    s_lshl_b32 {s(S_T1)}, {s(S_JI)}, 6
    s_load_dwordx16 {s(S_ND,16)}, {s(S_TAB,2)}, {s(S_T1)}
    s_waitcnt lgkmcnt(0)
    ''')
    bpre = getattr(a, 'bpre', 0)
    if bpre:
        a(f's_cmp_lg_u32 {s(S_ND+D_TYPE)}, {T_FH}')
        a('s_cbranch_scc1 w_nopre')
        emit_loader_setup(a)
        for q in range(bpre):
            for it in dma_group(q)[2:]:
                for ln in it: a(ln)
        a.pre_cold('p')
        for q in range(4):
            for it in (dma_group(q)[:2] if q < bpre else dma_group(q)):
                for ln in it: a(ln)
        a('s_branch w_adopt')
        a.label('w_nopre')
    if getattr(a, 'pre_cold', None): a.pre_cold()
    a.label('w_cold')
    a(f'''
    s_cmp_eq_u32 {s(S_ND+D_TYPE)}, {T_END}
    s_cbranch_scc1 {done_label}
    s_cmp_ge_u32 {s(S_ND+D_TYPE)}, {T_FIN}
    s_cbranch_scc1 w_fin
    ''')
    a(f's_cmp_lg_u32 {s(S_W)}, 0')
    a('s_cbranch_scc1 w_depok')
    if getattr(a, 'nodep', 0):
        a(f's_cmp_eq_u32 {s(S_ND+D_WTGT)}, 0')
        a('s_cbranch_scc1 w_depok')
    a(f's_mov_b32 {s(S_T2)}, 0x40000')
    a.label('w_waitdep')
    a(f'''
    buffer_load_dword {v(V_POLL)}, {v(V_ZERO)}, {s(SRD_WS,4)}, {s(S_ND+D_WAIT)} offen sc1
    s_waitcnt vmcnt(0)
    v_readfirstlane_b32 {s(S_T1)}, {v(V_POLL)}
    s_cmp_ge_u32 {s(S_T1)}, {s(S_ND+D_WTGT)}
    s_cbranch_scc1 w_depok
    s_sleep 16
    s_sub_u32 {s(S_T2)}, {s(S_T2)}, 1
    s_cbranch_scc0 w_waitdep
    ''')
    a.label('w_depok')
    if getattr(a, 'dbgt', False):
        a('s_mov_b32 s96, s94')
        a('s_memrealtime s[94:95]')
    a(f's_cmp_eq_u32 {s(S_ND+D_TYPE)}, {T_ATT}')
    a('s_cbranch_scc1 w_att')
    emit_loader_setup(a)
    a('s_barrier')
    for q in range(4):
        for it in dma_group(q):
            for ln in it:
                a(ln)
    a.label('w_adopt')
    emit_adopt(a)
    a('s_waitcnt vmcnt(0)')
    a('s_barrier')
    for it in frag_reads(0, 0):
        for ln in it:
            a(ln)
    a('s_waitcnt lgkmcnt(0)')
    a(f's_cmp_eq_u32 {s(S_CT)}, {T_FH}')
    a('s_cbranch_scc1 w_firstH')
    a('s_branch w_first16')
    for nst in (4, 8, 16):
        a.label(f'w_first{nst}')
        first_body(a, nst, sq=getattr(a, 'fsq', 3))
        if nst != 16:
            a('s_branch w_loop_chk')
    def loop(sfx, mt):
        a.label('w_loop_chk' + sfx)
        a(f's_sub_u32 {s(S_LEFT)}, {s(S_LEFT)}, 1')
        a.label('w_loop' + sfx)
        a(f's_cmp_gt_u32 {s(S_LEFT)}, 3')
        a(f's_cbranch_scc1 w_body{sfx}')
        a(f's_cmp_lg_u32 {s(S_LEFT)}, 3')
        a(f's_cbranch_scc1 w_l2{sfx}')
        claim(a, V_NX)
        a(f's_branch w_body{sfx}')
        a.label('w_l2' + sfx)
        a(f's_cmp_lg_u32 {s(S_LEFT)}, 2')
        a(f's_cbranch_scc1 w_l1{sfx}')
        publish(a, V_NX)
        a(f's_branch w_body{sfx}')
        a.label('w_l1' + sfx)
        a('s_waitcnt vmcnt(8)')
        hh = sfx == 'H' and getattr(a, 'hh', 0)
        if hh:
            a('v_readfirstlane_b32 s68, v22')
            a('s_cmp_ge_u32 s68, 128')
            a('s_cselect_b32 s70, 0, s70')
        a(f'''
        {'buffer_load_dword v22, off, s[64:67], 0 sc1' if sfx == 'H' and not hh else ''}
        v_readfirstlane_b32 {s(S_T1)}, {v(V_POLL)}
        s_cmp_ge_u32 {s(S_T1)}, {s(S_ND+D_WTGT)}
        s_cselect_b32 {s(S_T1)}, 0, 1
        s_or_b32 {s(S_T1)}, {s(S_T1)}, s70
        s_cmp_eq_u32 {s(S_ND+D_TYPE)}, {T_END if hh else T_FH}
        s_cselect_b32 {s(S_T1)}, 1, {s(S_T1)}
        s_sub_u32 s57, {s(S_ND+D_TYPE)}, 1
        s_cmp_ge_u32 s57, 4
        s_cselect_b32 {s(S_T1)}, 1, {s(S_T1)}
        v_mov_b32 v20, {s(S_T1)}
        ds_write_b32 {v(V_FLAG)}, v20
        s_cbranch_scc1 w_body{sfx}
        ''')
        emit_loader_setup(a)
        a.label('w_body' + sfx)
        if hh: a('buffer_load_dword v22, off, s[64:67], 0 sc1')
        for q in range(4):
            def hook():
                a(f's_cmp_lg_u32 {s(S_LEFT)}, 2')
                a(f's_cbranch_scc1 w_nf{sfx}')
                fetch(a, jobs_per_worker)
                a.label('w_nf' + sfx)
            iteration(a, q, 8, poll=(q == 1), mt=mt, full_reads=(q == 3), extra_after_barrier=hook if q == 0 else None)
        a(f'''
        s_sub_u32 {s(S_LEFT)}, {s(S_LEFT)}, 1
        s_cmp_lg_u32 {s(S_LEFT)}, 0
        s_cbranch_scc1 w_loop{sfx}
        ''')
    loop('', 8)
    a(f'''
    v_mov_b32 v20, {LDS_FLAG}
    ds_read_b128 v[24:27], v20
    ds_read_b128 v[28:31], v20 offset:16
    ''')
    if getattr(a, 'fuse', 0):
        a(f'''
        s_lshl_b32 s54, {s(S_WN)}, 10
        s_add_u32 s54, s54, {s(S_COUT)}
        s_mov_b32 s56, {s(S_CSTR)}
        s_mov_b32 s55, {s(S_CT)}
        s_waitcnt lgkmcnt(0)
        v_or3_b32 v21, v24, v25, v26
        v_or3_b32 v23, v28, v29, v30
        v_or3_b32 v21, v21, v27, v31
        v_or_b32 v21, v21, v23
        s_nop 0
        v_readfirstlane_b32 {s(S_T1)}, v21
        s_cmp_lg_u32 {s(S_T1)}, 0
        s_cbranch_scc1 w_nofuse
        s_mov_b32 {s(S_PEND)}, {s(S_CSIG)}
        ''')
        emit_adopt(a)
        a(f's_cmp_eq_u32 s55, {T_GLU}')
        a('s_cbranch_scc1 w_fuse_glu')
        fused_first(a, False)
        a('s_branch w_first16_q1')
        a.label('w_fuse_glu')
        fused_first(a, True)
        a('s_branch w_first8_q1')
        a.label('w_nofuse')
    a(f'''
    s_cmp_eq_u32 {s(S_CT)}, {T_GLU}
    s_cbranch_scc1 w_epi_glu
    ''')
    def tail(nst, h=False):
        a(f'''
        s_waitcnt lgkmcnt(0)
        v_or3_b32 v24, v24, v25, v26
        v_or3_b32 v28, v28, v29, v30
        v_or3_b32 v24, v24, v27, v31
        v_or_b32 v24, v24, v28
        s_mov_b32 {s(S_PEND)}, {s(S_CSIG)}
        v_readfirstlane_b32 {s(S_T1)}, v24
        s_cmp_lg_u32 {s(S_T1)}, 0
        s_cbranch_scc1 w_drain
        ''')
        emit_adopt(a)
        if h and getattr(a, 'hh', 0):
            a(f's_cmp_eq_u32 {s(S_CT)}, {T_FH}')
            a('s_cbranch_scc1 w_firstH4')
        a(f's_branch w_first{nst}')
    tail(epi_F(a))
    a.label('w_epi_glu')
    tail(epi_GLU(a))
    if getattr(a, 'hh', 0):
        a.label('w_firstH4')
        first_body(a, 4, mt=4, sq=a.hh)
        a('s_branch w_loop_chkH')
    a.label('w_firstH')
    for q in range(4):
        iteration(a, q, 8, zero_c=(q == 0), mt=4)
    loop('H', 4)
    a(f'''
    v_mov_b32 v20, {LDS_FLAG}
    ds_read_b128 v[24:27], v20
    ds_read_b128 v[28:31], v20 offset:16
    ''')
    tail(epi_F(a, mt=4), True)
    a.label('w_drain')
    a('s_waitcnt vmcnt(0)')
    a('s_barrier')
    if getattr(a, 'drain_hook', None): a.drain_hook()
    emit_signal(a, S_PEND)
    prof_stamp(a, 1)
    a('s_cmp_ge_u32 s53, 4')
    a('s_cbranch_scc1 w_cold')
    claim(a, V_NX)
    a('s_waitcnt vmcnt(0)')
    publish(a, V_NX)
    a('s_barrier')
    fetch(a, jobs_per_worker)
    a('s_waitcnt lgkmcnt(0)')
    a('s_barrier')
    a('s_branch w_cold')
    a.label('w_att')
    a(f's_cmp_lg_u32 {s(S_W)}, 0')
    a('s_cbranch_scc1 w_att_go')
    a(f's_mov_b32 {s(S_T2)}, 0x40000')
    a.label('w_att_w')
    a(f'''
    buffer_load_dwordx2 v[20:21], off, {s(SRD_WS,4)}, {s(S_ND+D_KB0)} sc1
    s_waitcnt vmcnt(0)
    v_add_u32 v20, v20, v21
    s_nop 0
    v_readfirstlane_b32 {s(S_T1)}, v20
    s_cmp_ge_u32 {s(S_T1)}, 8
    s_cbranch_scc1 w_att_go
    s_sleep 16
    s_sub_u32 {s(S_T2)}, {s(S_T2)}, 1
    s_cbranch_scc0 w_att_w
    ''')
    a.label('w_att_go')
    claim(a, 250)
    a('s_barrier')
    prof_stamp(a)
    import k_att
    k_att.emit_att(a, S_ND + D_A, S_ND + D_B0, S_W)
    a(f'''
    s_mov_b32 {s(S_PEND)}, {s(S_ND+D_SIG)}
    s_waitcnt vmcnt(0)
    s_barrier
    ''')
    emit_signal(a, S_PEND)
    prof_stamp(a, 1)
    publish(a, 250)
    a('s_barrier')
    fetch(a, jobs_per_worker)
    a('s_waitcnt lgkmcnt(0)')
    a('s_branch w_cold')
    a.label('w_fin')
    a.fin_claim = lambda: claim(a, 250)
    prof_stamp(a)
    a.fin_hook(S_ND + D_TYPE, S_ND + D_A, S_ND + D_B0, T_FINT, 'w_fin_done', S_ND + D_B1, S_ND + D_LDB, S_ND + D_KB0)
    a.label('w_fin_done')
    publish(a, 250)
    a('s_barrier')
    fetch(a, jobs_per_worker)
    a(f'''
    s_waitcnt lgkmcnt(0)
    s_barrier
    s_sub_u32 s57, {s(S_ND+D_TYPE)}, 1
    s_cmp_ge_u32 s57, 5
    s_cbranch_scc1 w_cold
    ''')
    emit_worker_init(a)
    a('s_branch w_cold')

def job(type, kb0, kb1, ldb, b0, b1, bsz, aoff, astr, nb, out, ostr, wait=0, wtgt=0, sig=0):
    return [type, kb0, kb1, ldb, b0, b1, bsz, aoff, astr, nb, out, ostr, wait, wtgt, sig, 0]

def job_qkv(mat, mb, nt, sig=0):
    ka = [KA_WQ, KA_WK, KA_WV][mat]; o = [WS_QS, WS_KS, WS_VS][mat]
    return job(T_F, ka, ka, 8192, nt * 512, nt * 512 + 256, 8 * MB, WS_XN + mb * 16 * 32 * 1024, 32 * 1024, 8,
               o + (mb * 16 * 128 + nt * 8) * 1024, 128 * 1024, sig=sig)

def job_qkv_half(mat, hb, nt, sig=0):
    ka = [KA_WQ, KA_WK, KA_WV][mat]; o = [WS_QS, WS_KS, WS_VS][mat]
    return job(T_FH, ka, ka, 8192, nt * 256, nt * 256 + 32 * 8192, 8 * MB, WS_XN + hb * 8 * 32 * 1024, 32 * 1024, 4,
               o + (hb * 8 * 128 + nt * 4) * 1024, 128 * 1024, sig=sig)

def job_glu(mb, ft, sig=0):
    return job(T_GLU, KA_WG, KA_WU, 7168, ft * 256, ft * 256, 7 * MB, WS_XN + mb * 16 * 32 * 1024, 32 * 1024, 8,
               WS_HH + (mb * 16 * 112 + ft * 4) * 1024, 112 * 1024, sig=sig)

def job_down_h(mb, nt, kh, wait=0, wtgt=0, sig=0, m=1):
    return job(T_F, KA_WD, KA_WD, 2048, nt * 512 + kh * m * 896 * 2048, nt * 512 + 256 + kh * m * 896 * 2048, 7 * MB,
               WS_HH + (mb * 16 * 112 + kh * m * 28) * 1024, 112 * 1024, 7 * m,
               WS_GG + kh * 4 * MB + (mb * 16 * 32 + nt * 8) * 1024, 32 * 1024, wait=wait, wtgt=wtgt, sig=sig)

def job_att(hb, hg, wait, wtgt, sig, wq):
    return job(T_ATT, wq, 0, 0, 4 * hg, 0, 0, 4 * hb, 0, 0, 0, 0, wait=wait, wtgt=wtgt, sig=sig)

def job_wo(mb, nt, kq, wait=0, wtgt=0, sig=0, m=1):
    return job(T_F, KA_WO, KA_WO, 2048, nt * 512 + kq * m * 1024 * 2048, nt * 512 + 256 + kq * m * 1024 * 2048, 8 * MB,
               WS_OO + (mb * 16 * 128 + kq * m * 32) * 1024, 128 * 1024, 8 * m,
               WS_SP + kq * 4 * MB + (mb * 16 * 32 + nt * 8) * 1024, 32 * 1024, wait=wait, wtgt=wtgt, sig=sig)

def job_wo_half(hb, nt, kp, kl, wait, wtgt, sig):
    return job(T_FH, KA_WO, KA_WO, 2048, nt * 256 + kp * kl * 2048, nt * 256 + (kp * kl + 32) * 2048, 8 * MB,
               WS_OO + (hb * 8 * 128 + kp * kl // 32) * 1024, 128 * 1024, kl // 256,
               WS_SP + kp * 4 * MB + (hb * 8 * 32 + nt * 4) * 1024, 32 * 1024, wait=wait, wtgt=wtgt, sig=sig)

def job_fin(seg, quarter, tail=False, otgt=0, four=0, wide=False, g2=0):
    return job(T_FINT + 1 if wide else T_FINT if tail else T_FIN, g2, 0, four, quarter, otgt, 0, seg, 0, 0, 0, 0)

END_JOB = [0] * 16

def emit_table(a, label, lists, per):
    a.raw('.p2align 6')
    a.label(label)
    for l in lists:
        assert len(l) < per
        l = l + [END_JOB] * (per - len(l))
        for j in l:
            a.raw('    .long ' + ', '.join(str(x) for x in j))

def emit_touch_first(a, table_label, jobs_per_worker, swk):
    l = a.uid('tch')
    a(f'''
    s_getpc_b64 {s(S_TAB,2)}
    s_add_u32 {s(S_TAB)}, {s(S_TAB)}, {table_label}@rel32@lo+4
    s_addc_u32 {s(S_TAB+1)}, {s(S_TAB+1)}, {table_label}@rel32@hi+12
    s_mul_i32 {s(S_T1)}, {s(swk)}, {jobs_per_worker*64}
    s_add_u32 {s(S_TAB)}, {s(S_TAB)}, {s(S_T1)}
    s_addc_u32 {s(S_TAB+1)}, {s(S_TAB+1)}, 0
    s_load_dwordx16 {s(S_ND,16)}, {s(S_TAB,2)}, 0
    s_mov_b32 {s(SRD_B0+3)}, {SRD3}
    s_waitcnt lgkmcnt(0)
    s_cmp_eq_u32 {s(S_ND+D_TYPE)}, {T_END}
    s_cbranch_scc1 {l}
    s_load_dwordx2 {s(SRD_B0,2)}, s[0:1], {s(S_ND+D_KB0)}
    s_mov_b32 {s(SRD_B0+2)}, {s(S_ND+D_BSZ)}
    v_bfe_u32 v20, v0, 2, 6
    v_mul_u32_u24 v20, {s(S_ND+D_LDB)}, v20
    v_and_b32 v21, 3, v0
    v_lshl_add_u32 v20, v21, 6, v20
    s_lshl_b32 {s(S_T1)}, {s(S_ND+D_LDB)}, 6
    s_mov_b32 {s(S_T2)}, {s(S_ND+D_B0)}
    s_waitcnt lgkmcnt(0)
    ''')
    for j in range(16):
        a(f'buffer_load_dword v22, v20, {s(SRD_B0,4)}, {s(S_T2)} offen')
        a(f's_add_u32 {s(S_T2)}, {s(S_T2)}, {s(S_T1)}')
    a.label(l)

def emit_tlb_touch(a, table_label, jobs_per_worker, swk):
    l = a.uid('tlb')
    a(f'''
    s_getpc_b64 {s(S_TAB,2)}
    s_add_u32 {s(S_TAB)}, {s(S_TAB)}, {table_label}@rel32@lo+4
    s_addc_u32 {s(S_TAB+1)}, {s(S_TAB+1)}, {table_label}@rel32@hi+12
    s_and_b32 {s(S_T1)}, {s(swk)}, 3
    s_mul_i32 {s(S_T1)}, {s(S_T1)}, {jobs_per_worker}
    s_lshr_b32 {s(S_T2)}, {s(swk)}, 2
    s_add_u32 {s(S_T1)}, {s(S_T1)}, {s(S_T2)}
    s_lshl_b32 {s(S_T1)}, {s(S_T1)}, 6
    s_add_u32 {s(S_TAB)}, {s(S_TAB)}, {s(S_T1)}
    s_addc_u32 {s(S_TAB+1)}, {s(S_TAB+1)}, 0
    s_load_dwordx16 {s(S_ND,16)}, {s(S_TAB,2)}, 0
    s_mov_b32 {s(SRD_B0+3)}, {SRD3}
    v_and_b32 v20, 63, v0
    s_waitcnt lgkmcnt(0)
    s_load_dwordx2 {s(SRD_B0,2)}, s[0:1], {s(S_ND+D_KB0)}
    s_mov_b32 {s(SRD_B0+2)}, {s(S_ND+D_BSZ)}
    s_lshl_b32 {s(S_T1)}, {s(S_ND+D_LDB)}, 4
    v_mul_lo_u32 v21, {s(S_T1)}, v20
    v_and_b32 v22, 15, v20
    v_mul_lo_u32 v22, {s(S_ND+D_OSTR)}, v22
    s_waitcnt lgkmcnt(0)
    s_cmp_eq_u32 s3, 4
    s_cbranch_scc0 {l}_1
    buffer_load_dword v23, v21, {s(SRD_B0,4)}, {s(S_ND+D_B0)} offen
    s_branch {l}
    ''')
    a.label(l + '_1')
    a(f'''
    s_cmp_eq_u32 s3, 5
    s_cbranch_scc0 {l}
    buffer_load_dword v23, v22, {s(SRD_WS,4)}, {s(S_ND+D_OUT)} offen
    buffer_load_dword v23, off, {s(SRD_WS,4)}, {s(S_ND+D_SIG)}
    ''')
    a.label(l)
    if getattr(a, 'ctouch', 0) >= 2:
        a('s_cmp_eq_u32 s3, 6')
        a(f's_cbranch_scc0 {l}_7')
        code_touch(a, 'ln_sig', 18, 68, 70)
        code_touch(a, 'w_firstH', 30, 68, 70)
        a.label(l + '_7')
        a('s_cmp_eq_u32 s3, 7')
        a(f's_cbranch_scc0 {l}_8')
        code_touch(a, 'w_first16', 60, 68, 70)
        a.label(l + '_8')
        a('s_waitcnt lgkmcnt(0)')


def emit_late_touch(a, r0, r1):
    a(f'''
    v_bfe_u32 v20, v0, 1, 7
    v_mul_u32_u24 v20, {s(S_ND+D_LDB)}, v20
    v_and_b32 v21, 1, v0
    v_lshl_add_u32 v20, v21, 7, v20
    s_mul_i32 {s(S_T2)}, {s(S_ND+D_LDB)}, {r0}
    s_add_u32 {s(S_T2)}, {s(S_T2)}, {s(S_ND+D_B0)}
    s_lshl_b32 {s(S_T1)}, {s(S_ND+D_LDB)}, 7
    ''')
    for r in range(r0, r1, 128):
        a(f'buffer_load_dword v255, v20, {s(SRD_B0,4)}, {s(S_T2)} offen')
        a(f's_add_u32 {s(S_T2)}, {s(S_T2)}, {s(S_T1)}')
```

```python
import heapq, random, json, os, math
from layout4 import *
import k_gemm5 as G
import k_fin5 as F
CQ_TAB = WS_CNT + 512
CA_TAB = WS_CNT + 3072
CQ2_TAB = WS_CNT + 4096
NW = 32
DEF = dict(T0=21.0, P=2.5, PH=2.9, ts=9.7, dh0=10.0, dh=8.2, nhb=1, lw=0.5, dq=22.2, dg=23.3, cold=dict(g=5.0, d=5.0, o=1.0), dd=20.2, do=21.6, da=11.3, df=4.2, dfw=6.0, dp=9.0, dp2=6.0, gap=0.8, margin=3.0, rm=1.0, tgt=172.0)

def make_jobs(nlb, p):
    T0, P = p['T0'], p['P']
    s1 = p.get('s1', 8 * nlb)
    ct = lambda st: T0 + min(st, s1) * P + max(0, st - s1) * p['PH']
    jobs = []
    def add(**k): k['id'] = len(jobs); k.setdefault('rel', 0); k.setdefault('dl', None); k.setdefault('deps', []); jobs.append(k); return k['id']
    dl = lambda seg: ct(seg - 2) - p['margin'] if seg else T0
    Q = {}; Gj = {}; A = {}; DO = {}; nb0 = p.get('nb0', nlb)
    for b in range(p.get('scb', 64) // 8):
        for mat in (1, 2, 0):
            lq = mat == 0 and b < nb0
            if b < p['nhb'] and not lq:
                for hb in (2 * b, 2 * b + 1):
                    for i in range(8): add(kind='h', mb=hb, mat=mat, i=i, dur=p['dh'], dl=dl(4 * hb))
            else:
                for i in range(4):
                    n = add(kind='q', mb=b, mat=mat, i=i, dur=p['dq'], dl=None if lq else dl(8 * b) + (p['margin'] if b == 1 else 0))
                    if lq: Q.setdefault((b, i // 2), []).append(n)
    for mb in range(8):
        for i in range(7): Gj.setdefault(mb, []).append(add(kind='g', mb=mb, i=i, m=2 if mb < p.get('nd2', 0) else 1, dur=p['dg']))
        m = 2 if mb < p.get('nd2', 0) else 1
        for i in range(4 // m): DO.setdefault(mb, []).append(add(kind='d', mb=mb, i=i, m=m, dur=p['dd'] * m - 1.0 * (m - 1), deps=Gj[mb]))
    for b in range(nlb):
        m = 2 if b < p.get('no2', 0) else 1
        for hf in range(2 if b < nb0 else 0):
            for i in range(2): A.setdefault(b, []).append(add(kind='a', mb=b, i=i, hf=hf, m=m, dur=p['da'], rel=ct(8 * b + 4 * hf + 5.6) + p['rm'], deps=Q[(b, i)]))
        for i in range(4 // m): DO[b].append(add(kind='o', mb=b, i=i, m=m, dur=p['do'] * m - 1.0 * (m - 1), deps=A.get(b, []), rel=0 if b < nb0 else ct(8 * b + 9.6 + 4 * (m - 1)) + p['rm']))
    PH = {}
    for hb in range(2 * nlb, s1 // 4):
        two = hb >= 14
        for i in range(16 if two else 8):
            PH.setdefault(hb >> 1, []).append(add(kind='p', mb=hb, i=i, two=two, dur=p['dp2'] if two else p['dp'], rel=ct(4 * hb + 5.6) + p['rm']))
    for seg in range(64 - NTAIL):
        rel = ct(seg + 2.6 + ((3 - seg) % 4 if seg < 56 else 0)) if seg >= s1 else 0
        b = seg >> 3
        add(kind='f', mb=b, i=seg, dur=p['df'] - (0.5 if b < p.get('no2', 0) else 0) - (0.5 if b < p.get('nd2', 0) else 0), rel=rel, deps=DO[b] + (PH.get(b, []) if seg < s1 else []),
            otgt=0 if seg >= s1 else 16 if b < nlb else 4 * len(PH[b]), four=2 if b < p.get('no2', 0) else int(seg < min(s1, 56)), g2=int(b < p.get('nd2', 0)))
    for sg in range(NTAIL):
        for i in range(4): add(kind='t', mb=7, seg=64 - NTAIL + sg, i=i, dur=1.5, rel=ct(64 - NTAIL + sg + 1.4) + (0.3 if sg == NTAIL - 1 else 2.0), deps=DO[7])
    for j in jobs: j['pan'] = panels(j)
    return jobs, ct

def simulate(jobs, lists, p, sc=None, detail=False):
    n = len(jobs); end = [None] * n; start = [0] * n
    pos = [0] * NW
    durs, rs = sc if sc else ([j['dur'] for j in jobs], 1.0)
    T0 = p['T0']; gap = p['gap']; tgt = p['tgt']
    waiting = {}; heap = [(p['ts'], w, p['ts']) for w in range(NW)]; ndone = 0; pen = 0.0
    first = {}
    while heap:
        t, w, fr = heapq.heappop(heap); l = lists[w]
        if pos[w] >= len(l): continue
        i = l[pos[w]]; j = jobs[i]
        blk = None; rt = fr
        for d in j['deps']:
            e = end[d]
            if e is None: blk = d; break
            if e > rt: rt = e
        if blk is not None:
            waiting.setdefault(blk, []).append((w, fr)); continue
        rel = T0 + (j['rel'] - T0) * rs if j['rel'] else 0
        if rel > rt: rt = rel
        if rt > t + 1e-9:
            heapq.heappush(heap, (rt, w, fr)); continue
        k = j['kind']; dur = durs[i]
        if pos[w] == 0: dur += p['dh0'] - p['dh'] + (1.0 if k == 'q' else 0)
        if k in 'gdo':
            f = first.setdefault(k, rt)
            if rt < f + 12: dur += p['cold'][k]
        if not (rt == fr and k in 'qgdo' and pos[w] and jobs[l[pos[w] - 1]]['kind'] in 'qgdo'): rt += gap
        e = rt + dur
        x = e - max(tgt, rel + gap + dur)
        if x > 0: pen += x * x
        start[i] = rt; end[i] = e; pos[w] += 1; ndone += 1
        heapq.heappush(heap, (e, w, e))
        for w2, f2 in waiting.pop(i, ()): heapq.heappush(heap, (rt, w2, f2))
    if ndone < n: return None
    if detail: return start, end
    late = {}
    for j in jobs:
        if j['dl'] is not None:
            x = end[j['id']] - (T0 + (j['dl'] - T0) * rs)
            if x > late.get(j['dl'], 0): late[j['dl']] = x
    return max(end), sum(late.values()), pen, start

def scenarios(jobs, seed=5):
    r = random.Random(seed); out = [None]
    for g, rs in ((1.05, 0.99), (0.98, 1.04), (1.03, 1.01), (1.0, 1.0)):
        ks = {k: r.uniform(0.97, 1.05) for k in 'hqgdaoftp'}
        out.append(([j['dur'] * g * ks[j['kind']] * r.uniform(0.95, 1.08) for j in jobs], rs))
    return out

def panels(j):
    k = j['kind']
    if k == 'q': return (('X', j['mb']), ('W', j['mat'], j['i']))
    if k == 'g': return (('X', j['mb']), ('G', j['i']))
    if k == 'd': return (('H', j['mb']), ('D', j['i']))
    if k == 'o': return (('O', j['mb']), ('Wo', j['i']))
    return ()

def unshared(jobs, start, win):
    by = {}
    for j in jobs:
        for pn in j['pan']: by.setdefault(pn, []).append(start[j['id']])
    n = 0
    for l in by.values():
        l.sort(); last = -1e9
        for t in l:
            if t - last > win: n += 1; last = t
    return n

def score(jobs, lists, p, scs):
    tot = 0.0
    for sc in scs:
        r = simulate(jobs, lists, p, sc)
        if r is None: return 1e9
        tot += r[0] + 3 * r[1] + 0.004 * r[2]
        if sc is None: tot += p['lw'] * len(scs) / 2 * unshared(jobs, r[3], 2.5)
    return tot / len(scs) * 2

def initial(jobs, nlb, p):
    lists = [[] for _ in range(NW)]
    h = {(j['mb'], j['mat'], j['i']): j['id'] for j in jobs if j['kind'] == 'h'}
    pre = set()
    for k in range(NW):
        mat, i = 1 + ((k >> 3) & 1), k & 7
        if (2, 1, 0) in h: lists[k] = [h[(k >> 4, mat, i)], h[(2 + (k >> 4), mat, i)]]
        elif k < 16: lists[k] = [h[(0, mat, i)], h[(1, mat, i)]]
        else:
            mb, mt = ((1, 1 + ((k >> 2) & 1)) if k < 24 else ((k >> 2) & 1, 0)) if p.get('cln') else (1 + ((k >> 3) & 1), 1 + ((k >> 2) & 1))
            lists[k] = [[j['id'] for j in jobs if j['kind'] == 'q' and j['mb'] == mb and j['mat'] == mt and j['i'] == k & 3][0]]
            pre.add(lists[k][0])
    def key(j):
        k, b = j['kind'], j['mb']
        if k == 'q': return j['dl'] - 45 if j['dl'] is not None else 20 * b + 5
        return {'g': 30 + 12 * b, 'd': 120 + 5 * b, 'a': j['rel'] + 8, 'o': max(75 + 20 * b, j['rel'] + 5), 'p': j['rel'] + 2, 'f': max(170 + b, j['rel'], 185 if any(jobs[d]['kind'] == 'p' for d in j['deps']) else 0), 't': 300}[k]
    rest = sorted((j for j in jobs if j['kind'] not in 'ht' and j['id'] not in pre), key=key)
    load = [(0.0 if len(lists[w]) == 2 else 5.0, w) for w in range(NW)]
    for j in rest:
        t, w = heapq.heappop(load); lists[w].append(j['id']); heapq.heappush(load, (t + j['dur'], w))
    for n, j in enumerate(j for j in jobs if j['kind'] == 't'): lists[(n * 5) % NW].append(j['id'])
    return lists

def optimise(jobs, lists, p, iters, seed=1, t0=3.0):
    rnd = random.Random(seed); scs = scenarios(jobs); cur = score(jobs, lists, p, scs); best = (cur, [list(l) for l in lists])
    for it in range(iters):
        temp = t0 * (1 - it / iters) ** 2 + 0.01
        w1 = rnd.randrange(NW); w2 = rnd.randrange(NW)
        l1, l2 = lists[w1], lists[w2]
        n1 = len(l1) - (jobs[l1[-1]]['kind'] == 't'); n2 = len(l2) - (jobs[l2[-1]]['kind'] == 't')
        f1 = 2 if jobs[l1[0]]['kind'] == 'h' else 1; f2 = 2 if jobs[l2[0]]['kind'] == 'h' else 1
        if n1 <= f1: continue
        i1 = rnd.randrange(f1, n1); o1, o2 = list(l1), list(l2)
        m = rnd.random()
        if m < 0.4 and n2 > f2:
            i2 = min(max(f2, i1 + rnd.randint(-2, 2)), n2 - 1)
            if w1 == w2 and i1 == i2: continue
            l1[i1], l2[i2] = l2[i2], l1[i1]
        elif m < 0.8:
            j = l1.pop(i1)
            if w1 == w2: n2 -= 1
            l2.insert(min(max(f2, i1 + rnd.randint(-2, 2)), n2), j)
        else:
            if w1 == w2: continue
            i2 = min(max(f2, i1 + rnd.randint(-1, 1)), n2)
            l1[:], l2[:] = o1[:i1] + o2[i2:], o2[:i2] + o1[i1:]
        sc = score(jobs, lists, p, scs)
        if sc <= cur or rnd.random() < math.exp((cur - sc) / temp):
            cur = sc
            if sc < best[0]: best = (sc, [list(l) for l in lists])
        else:
            l1[:] = o1; l2[:] = o2
        if it % 20000 == 0: r = simulate(jobs, lists, p); print(it, round(cur, 2), r[:3], unshared(jobs, r[3], 2.5), flush=True)
    return best[1]

def report(jobs, lists, p, ct):
    st, en = simulate(jobs, lists, p, detail=True)
    print('fetches', unshared(jobs, st, 2.5), 'scen', [[round(x, 1) for x in simulate(jobs, lists, p, sc)[:2]] for sc in scenarios(jobs) + scenarios(jobs, 77)[1:]], 'chain end', ct(64))
    for k in 'hqgdaopft': print(k, [round(max(en[j['id']] for j in jobs if j['kind'] == k and j['mb'] == mb)) for mb in range(16) if any(j['kind'] == k and j['mb'] == mb for j in jobs)])
    for w in range(NW): print(w, ' '.join(f"{jobs[i]['kind']}{jobs[i]['mb']}@{st[i]:.0f}" for i in lists[w]))

def path(nlb, tag): return os.path.join(os.path.dirname(os.path.abspath(__file__)), f'plan_{nlb}{tag}.json')

def descriptor(j, x, nb0):
    o = []; m = j.get('m', 1)
    k, mb, i = j['kind'], j['mb'], j['i']
    q2 = lambda base: (base + 16 * (x >> 1), 4 if x & 1 else 1)
    if k == 'q':
        t = 4 * x + i
        o.append(G.job_qkv(j['mat'], mb, t, sig=((CQ2_TAB if j['mat'] == 0 and mb < nb0 else CQ_TAB) + mb * 256 + (t // 2) * 16) | 10))
    elif k == 'h':
        t = 8 * x + i
        o.append(G.job_qkv_half(j['mat'], mb, t, sig=(CQ_TAB + (mb >> 1) * 256 + (t // 4) * 16) | (4 if mb & 1 else 1)))
    elif k == 'g': ad, inc = q2(WS_CNT + 64 * mb); o.append(G.job_glu(mb, 7 * x + i, sig=ad | (1 if m == 2 else inc)))
    elif k == 'd' and m == 2: o.append(G.job_down_h(mb, 2 * (x & 1) + i, x >> 1, wait=q2(WS_CNT + 64 * mb)[0], wtgt=14, sig=(F.CD_TAB + 64 * mb) | 2, m=2))
    elif k == 'd': ad, inc = q2(WS_CNT + 64 * mb); o.append(G.job_down_h(mb, i, x, wait=ad + 4 * (x & 1), wtgt=7, sig=(F.CD_TAB + 64 * mb) | 1))
    elif k == 'f': o.append(G.job_fin(i, x, otgt=j.get('otgt', 0), four=j.get('four', 0), g2=j.get('g2', 0)))
    elif k == 'p': o.append(G.job_wo_half(mb, i & 7, 2 * x + (i >> 3) if j['two'] else x, 512 if j['two'] else 1024, wait=F.CS_TAB + 128 * x, wtgt=4 * mb + 4, sig=(F.CD_TAB + 64 * (mb >> 1)) | 4))
    elif k == 't': o.append(G.job_fin(j['seg'], 4 * x + i, True))
    elif k == 'a':
        ad, inc = q2(CA_TAB + 64 * mb); hg = 2 * x + i
        o.append(G.job_att(2 * mb + j['hf'], hg, wait=F.CS_TAB + 128 * x, wtgt=8 * mb + 4 * j['hf'] + 3, sig=ad | (1 if m == 2 else inc), wq=CQ2_TAB + mb * 256 + hg * 16))
    elif m == 2:
        w_, t_ = (F.CS_TAB + 128 * x, 8 * mb + 9) if mb >= nb0 else (q2(CA_TAB + 64 * mb)[0], 8)
        o.append(G.job_wo(mb, 2 * (x & 1) + i, x >> 1, wait=w_, wtgt=t_, sig=(F.CD_TAB + 64 * mb) | 8, m=2))
    elif mb >= nb0: o.append(G.job_wo(mb, i, x, wait=F.CS_TAB + 128 * x, wtgt=8 * mb + 8, sig=(F.CD_TAB + 64 * mb) | 4))
    else: ad, inc = q2(CA_TAB + 64 * mb); o.append(G.job_wo(mb, i, x, wait=ad + 4 * (x & 1), wtgt=4, sig=(F.CD_TAB + 64 * mb) | 4))
    return o[0]

def build(nlb=6, tag='', nb0=None):
    global PLAN
    d = json.load(open(path(nlb, tag))); p = d['p']; lists = d['lists']
    assert p.get('nb0', nlb) == nb0
    jobs, ct = make_jobs(nlb, p)
    assert sorted(i for l in lists for i in l) == list(range(len(jobs)))
    st, en = simulate(jobs, lists, p, detail=True)
    out = []; PLAN = []
    for wk in range(128):
        x = wk & 3; o = []
        PLAN.append([(jobs[i]['kind'], jobs[i]['mb'], round(st[i], 1)) for i in lists[wk >> 2]])
        for n in lists[wk >> 2]:
            o.append(descriptor(jobs[n], x, nb0))
        out.append(o)
    return out

if __name__ == '__main__':
    import sys
    nlb = int(sys.argv[1]); iters = int(sys.argv[2]); tag = sys.argv[3] if len(sys.argv) > 3 else ''
    p = dict(DEF); p.update(eval(sys.argv[4]) if len(sys.argv) > 4 else {})
    jobs, ct = make_jobs(nlb, p)
    lists = optimise(jobs, initial(jobs, nlb, p), p, iters, seed=p.get('seed', 1))
    report(jobs, lists, p, ct)
    json.dump(dict(p=p, lists=lists), open(path(nlb, tag), 'w'))
```

```python
import sys, argparse, os
from asmlib import *
from layout4 import *
import k_gemm5 as G
import k_chain5 as C
import k_fin5 as F
import sched7 as sched5

ap = argparse.ArgumentParser()
ap.add_argument('out')
ap.add_argument('--prof', action='store_true')
ap.add_argument('--wprof', action='store_true')
ap.add_argument('--slow', action='store_true')
ap.add_argument('--tim', action='store_true')
ap.add_argument('--list', action='store_true', help='emit as launch list (dev harness)')
OPTS = dict(gdp=0, gde=4, grs=1, gr0=0, gprio=1, wdel=0, stag=0, wnt=2222, xnt=0, p2e=1, ksp=0, g0sl=3, fuse=0, pgp=1, rdp=0, bt0=256, bt1=0, hk=1, cdh=13, scb=64, sc0=12, scp=1, scd=8, scx=0, xpos=1, nx1=4, ct0=0, ctn=500, ctch=0, fl=0, swp=0, nlb=6, vpos=1, qkf=0, ofd=4, s0=16, jit=1, cln=0, ent=0, kpos=0, lr=3, kdl=0, s1=48, cd=1, cdl=13, qd=0, qdl=9, md=1, last=63, vwp=8, fine=0, finsleep=12, touch=2, ntb=0, nta=0, ftsleep=4, nodep=1, bpre=4, vote=400,
            al=6, alo=11, aloa=0, hh=0, fsq=3, pgf=0, early=1, stouch=1, mck=2, dprio=1, nd1=8, ndl=8, d2=6, fprio=3, fsl=1, kvsl=1, rsleep=0,
            bnt=0, xflip=0, vdel=2, spnt=0)
for n, d in OPTS.items():
    ap.add_argument('--' + n, type=int, default=d)
ap.add_argument('--sp', default='r2')
ap.add_argument('--abl', default='')
args = ap.parse_args()

a = Asm()
G.ENT = ' nt' if args.ent else ''
G.NTA = ' nt' if args.nta else ''; G.NTB = ' nt' if args.ntb else ''
for n in OPTS: setattr(a, n, getattr(args, n))
a.force_slow = args.slow; a.abl = args.abl; a.wprof = args.prof or args.wprof; a.fin_sleep = args.finsleep; a.ft_sleep = args.ftsleep
a.msh = 16
a.wnt = [['', ' nt', ' sc1', ' sc1 nt'][int(c)] for c in '%04d' % args.wnt]; a.xnt = ' nt' if args.xnt else ''
a.spnt = ' nt' if args.spnt else ''
a.bnt = ' nt' if args.bnt else ''
name = NAME + '_kernel'
hdr = open(os.path.join(os.path.dirname(os.path.abspath(__file__)), '..', NAME + '.s.ref')).read().split('; Override launch')[0]
a.raw(hdr.rstrip())
if args.list:
    a.raw(f'; @launch kernel={name} grid=(256,1,1) block=(512,1,1) lds={C.CHAIN_LDS}')
else:
    a.raw(f'; @launch grid=(256,1,1) block=(512,1,1) lds={C.CHAIN_LDS}')
a.raw('.amdgcn_target "amdgcn-amd-amdhsa--gfx950"\n.text')
a.s0 = min(args.s0, args.s1)
lists = sched5.build(nlb=args.nlb, tag=args.sp, nb0=a.s0 // 8, s1=args.s1, scb=args.scb)
per = len(lists[0]) + 1
a.raw(f'.globl {name}\n.p2align 8\n.type {name},@function')
a.label(name)
S_WK = 63
a(f'''
s_cmp_ge_u32 s2, 256
s_cbranch_scc1 k_exit
{'s_memrealtime s[90:91]' if args.tim else ''}
s_mov_b32 s99, s2
s_load_dwordx2 s[4:5], s[0:1], {KA_WS}
s_load_dwordx2 {s(F.SRD_DBG,2)}, s[0:1], {KA_DBG}
v_lshrrev_b32 v2, 6, v0
s_mov_b32 s6, {WS_SIZE}
s_mov_b32 s7, {SRD3}
s_mov_b32 {s(F.SRD_DBG+2)}, 256
s_mov_b32 {s(F.SRD_DBG+3)}, {SRD3}
v_readfirstlane_b32 s3, v2
s_lshr_b32 {s(C.S_I)}, s2, 3
s_and_b32 {s(C.S_X)}, s2, 3
''')
if args.ct0:
    a(f's_cmp_lg_u32 s3, 7')
    a('s_cbranch_scc1 k_nct')
    a(f's_cmp_ge_u32 {s(C.S_I)}, {args.ct0}')
    a('s_cbranch_scc1 k_nct')
    a('v_and_b32 v3, 63, v0')
    a('v_lshlrev_b32 v3, 4, v3')
    vcode_touch(a, name, args.ctn, 16, 3, 4, 255)
    a.label('k_nct')
a(f'''
s_waitcnt lgkmcnt(0)
s_bitcmp{args.xflip}_b32 s2, 2
s_cbranch_scc1 chain_map
s_lshl_b32 {s(S_WK)}, {s(C.S_I)}, 2
s_add_u32 {s(S_WK)}, {s(S_WK)}, {s(C.S_X)}
''')
a.late_touch = lambda: G.emit_late_touch(a, args.bt0, args.bt1)
F.emit_ln_init(a, S_WK, [(lambda: None), (lambda: G.emit_touch_first(a, 'jobtab', per, S_WK)), (lambda: G.emit_tlb_touch(a, 'jobtab', per, S_WK))][args.touch])
for i in range(args.wdel): a('s_sleep 127')
a(f's_mov_b32 {s(G.S_T0)}, {s(S_WK)}')
def pre_cold(x=''):
    F.emit_ln_wait(a, G.S_ND + G.D_TYPE, G.S_ND + G.D_A, G.T_FH, x)
a.pre_cold = pre_cold
a.drain_hook = lambda: F.emit_drain_hook(a)
a.fin_hook = lambda *x: F.emit_fin(a, *x)
G.emit_worker(a, 'jobtab', per, 'k_end')
a.label('chain_map')
C.emit_chain(a, 'k_end', prof=args.prof)
a.label('k_end')
if args.tim:
    a(f'''
    s_waitcnt vmcnt(0)
    s_memrealtime s[96:97]
    s_lshl_b32 s98, s99, 3
    s_add_u32 s98, s98, s3
    s_lshl_b32 s98, s98, 3
    s_add_u32 s98, s98, {WS_YP + 13*MB}
    s_waitcnt lgkmcnt(0)
    v_mov_b32 v2, s90
    v_mov_b32 v3, s96
    s_mov_b64 exec, 1
    buffer_store_dwordx2 v[2:3], off, s[4:7], s98
    ''')
a.label('k_exit')
a('s_endpgm')
a.raw('.section .rodata,"a"')
G.emit_table(a, 'jobtab', lists, per)
a.raw('.p2align 6')
a.raw(kernel_desc(name, 256, 102))
a.raw('; PLAN ' + repr(sched5.PLAN))
open(args.out, 'w').write(a.text())
```

```python
from asmlib import *
from layout4 import *
import k_fin5 as F

SRD_WS = 4
SRD_T = 8
S_W = 3
S_X, S_I, S_G, S_H, S_S = 12, 13, 14, 15, 16
S_T0, S_T1, S_T2, S_T3, S_T4 = 17, 18, 19, 20, 21
S_TO = 22
S_MLD, S_MST, S_MRS, S_QST, S_QRS, S_PLD, S_OK, S_SP, S_TCH, S_RDG, S_RDY, S_C, S_CQG = range(23, 36)
S_MO, S_MSO, S_QO, S_PO, S_X1, S_KG, S_KL = range(36, 43)
S_QLD, S_QLD2, S_PSTC, S_PRS, S_PRG, S_CS, S_CST, S_DW, S_DU, S_U2, S_QT = range(23, 34)
S_M0 = 44
S_ID = 52
S_J = 53
S_SP0 = 54
S_KMX = 55
S_RTG = 58
S_OF, S_OB = 59, 60
S_XB, S_XBX, S_SCO, S_XG = 101, 68, 69, 43
LDS_SCP = 36864
S_MEX = 56
S_PROF = 70
LDS_RED1 = 0
LDS_FLG = 15872
LDS_PUB = 15968
LDS_RED2 = 16384
LDS_SEG = 32768
LDS_BULK = 65536
PSLOT = 18
CHAIN_LDS = 163840
CQ_TAB = WS_CNT + 512
TIMEOUT = 1 << 17

def red_gq(vs, vt, op):
    return [f'v_mov_b32 {v(vt)}, {v(vs)}', 's_nop 1', f'v_permlane16_swap_b32 {v(vt)}, {v(vs)}', f'{op} {v(vs)}, {v(vs)}, {v(vt)}',
            f'v_mov_b32 {v(vt)}, {v(vs)}', 's_nop 1', f'v_permlane32_swap_b32 {v(vt)}, {v(vs)}', f'{op} {v(vs)}, {v(vs)}, {v(vt)}']

def chk(regs, vt, target):
    r = list(regs); o = []
    if len(r) == 1:
        return [f'v_cmp_eq_u32 vcc, -1, {v(r[0])}', f's_cbranch_vccnz {target}']
    if len(r) == 2:
        o.append(f'v_max_u32 {v(vt)}, {v(r[0])}, {v(r[1])}'); r = []
    else:
        o.append(f'v_max3_u32 {v(vt)}, {v(r[0])}, {v(r[1])}, {v(r[2])}'); r = r[3:]
    while len(r) >= 2:
        o.append(f'v_max3_u32 {v(vt)}, {v(vt)}, {v(r[0])}, {v(r[1])}'); r = r[2:]
    if r: o.append(f'v_max_u32 {v(vt)}, {v(vt)}, {v(r[0])}')
    o.append(f'v_cmp_eq_u32 vcc, -1, {v(vt)}')
    o.append(f's_cbranch_vccnz {target}')
    return o

def retry_block(a, label, again, giveup):
    a.label(label)
    a('s_waitcnt vmcnt(0)')
    if a.rsleep: a(f's_sleep {a.rsleep}')
    a(f's_sub_u32 {s(S_TO)}, {s(S_TO)}, 1')
    a(f's_cbranch_scc0 {again}')
    a(f's_mov_b32 {s(S_TO)}, 0')
    a(f's_branch {giveup}')

def spin_block(a, label, loads, regs, vt, ok, giveup):
    a.label(label)
    a(f's_sub_u32 {s(S_TO)}, {s(S_TO)}, 1')
    a(f's_cbranch_scc1 {label}_g')
    for x in loads: a(x)
    a(f's_waitcnt vmcnt({len(loads)-1})')
    for x in chk(regs, vt, label): a(x)
    a(f's_branch {ok}')
    a.label(label + '_g')
    a(f's_mov_b32 {s(S_TO)}, 0')
    a('s_waitcnt vmcnt(0)')
    a(f's_branch {giveup}')

class Prof:
    def __init__(self, on): self.on = on; self.n = 0; self.names = []
    def stamp(self, a, name, lvl=0):
        if self.on and (lvl == 0 or lvl == a.fine or (lvl < 0 and -lvl != a.fine)):
            a(f's_memtime {s(S_PROF + 2*self.n, 2)}'); self.n += 1; self.names.append(name)
    def flush(self, a, vtmp, tag):
        if not self.on: return
        a(f's_memrealtime {s(S_PROF + 2*self.n, 2)}'); self.n += 1; self.names.append('rt')
        a(f's_sub_u32 {s(S_PROF + 2*self.n)}, s100, {s(S_TO)}'); self.n += 1; self.names.append('retries')
        a(f's_mov_b32 s100, {s(S_TO)}')
        assert self.n <= 15
        a('s_waitcnt lgkmcnt(0)')
        a(f's_lshl_b32 {s(S_T0)}, {s(S_ID)}, 3')
        a(f's_add_u32 {s(S_T0)}, {s(S_T0)}, {s(S_W)}')
        a(f's_lshl_b32 {s(S_T0)}, {s(S_T0)}, 6')
        a(f's_add_u32 {s(S_T0)}, {s(S_T0)}, {s(S_S)}')
        a(f's_lshl_b32 {s(S_T0)}, {s(S_T0)}, 6')
        a(f's_add_u32 {s(S_T0)}, {s(S_T0)}, {WS_YP}')
        for i in range(self.n):
            a(f'v_writelane_b32 {v(vtmp)}, {s(S_PROF+2*i)}, {i}')
        a(f's_mov_b64 exec, {(1<<self.n)-1}')
        a(f'v_mbcnt_lo_u32_b32 {v(vtmp+1)}, -1, 0')
        a(f'v_lshlrev_b32 {v(vtmp+1)}, 2, {v(vtmp+1)}')
        a(f'buffer_store_dword {v(vtmp)}, {v(vtmp+1)}, {s(SRD_WS,4)}, {s(S_T0)} offen')
        a('s_mov_b64 exec, -1')
        a.raw(f'; PROF {tag} ' + ' '.join(self.names))
        self.n = 0; self.names = []

def merge_fill(seq, fill, every=2, start=1):
    out = []; fi = 0
    for k, x in enumerate(seq):
        out.append(x)
        if k >= start and (k - start) % every == 0 and fi < len(fill):
            out.append(fill[fi]); fi += 1
    out += fill[fi:]
    return out

def flag_wait(a, tag, vaddr, off, vt, st, sl=1, one=False):
    a.label(tag)
    if one:
        a(f'ds_read_b32 {v(vt)}, {v(vaddr)} offset:{off}')
        a('s_waitcnt lgkmcnt(0)')
    else:
        a(f'ds_read_b128 {v(vt,4)}, {v(vaddr)} offset:{off}')
        a('s_waitcnt lgkmcnt(0)')
        a(f'v_min3_i32 {v(vt)}, {v(vt)}, {v(vt+1)}, {v(vt+2)}')
        a(f'v_min_i32 {v(vt)}, {v(vt)}, {v(vt+3)}')
        a('s_nop 0')
    a(f'v_readfirstlane_b32 {s(st)}, {v(vt)}')
    a(f's_cmp_ge_i32 {s(st)}, {s(S_S)}')
    a(f's_cbranch_scc1 {tag}ok')
    a(f's_sleep {sl}')
    a(f's_branch {tag}')
    a.label(tag + 'ok')

def ring(a, d, add, sh, base):
    if add: a(f's_add_u32 {s(d)}, {s(S_S)}, {add}')
    a(f's_and_b32 {s(d)}, {s(d if add else S_S)}, 3')
    a(f's_lshl_b32 {s(d)}, {s(d)}, {sh}')
    a(f's_add_u32 {s(d)}, {s(d)}, {s(base)}')

def sel_init(a, sel, vl, t1, t2):
    a(f'v_and_b32 {v(t1)}, 15, {v(vl)}')
    a(f'v_and_b32 {v(t2)}, 1, {v(t1)}')
    a(f'v_lshlrev_b32 {v(t2)}, 4, {v(t2)}')
    a(f'v_lshlrev_b32 {v(t2)}, {v(t2)}, 0x3f80' if False else f'v_mov_b32 {v(sel)}, 0x3f80')
    a(f'v_lshlrev_b32 {v(t2)}, {v(t2)}, {v(sel)}')
    a(f'v_lshrrev_b32 {v(t1)}, 1, {v(t1)}')
    for d in range(4):
        a(f'v_cmp_eq_u32 vcc, {d}, {v(t1)}')
        a('s_nop 1')
        a(f'v_cndmask_b32 {v(sel+d)}, 0, {v(t2)}, vcc')

PV_L16, PV_QST, PV_R1W, PV_R1R, PV_MST, PV_SGR, PV_SPS, PV_IDX = 1, 2, 3, 4, 5, 6, 7, 8
PV_PFA, PV_PFD, PV_FLGR = 0, 9, 58
PV_T, PV_NEG, PV_SEL = 9, 10, 12
PV_M, PV_ACC, PV_W = 16, 32, 64
PV_FV, PV_RDY, PV_R1W1, PV_R1W2, PV_FLGW = 59, 60, 61, 62, 63
def pw(b, t): return PV_W + (b * 6 + t) * 8

def mem0_issue(a):
    a(f'''
    s_load_dwordx2 {s(SRD_T,2)}, s[0:1], {KA_MEM0}
    s_mov_b32 {s(SRD_T+2)}, 16384
    v_bfe_u32 v57, v20, 2, 2
    v_and_b32 v58, 1, v20
    v_lshl_add_u32 v57, v57, 1, v58           ; token
    v_lshlrev_b32 v57, 11, v57
    v_lshrrev_b32 v58, 4, v20
    v_lshl_add_u32 v57, v58, 5, v57           ; + 32 g
    v_bfe_u32 v58, v20, 1, 1                  ; p
    v_lshl_add_u32 v57, v58, 4, v57
    v_lshl_add_u32 v59, v58, 3, v57
    v_xor_b32 v60, 8, v59
    s_lshl_b32 {s(S_T3)}, {s(S_W)}, 9
    s_waitcnt lgkmcnt(0)
    ''')
    for b in range(4):
        a(f'buffer_load_dwordx2 {v(32+4*b,2)}, v59, {s(SRD_T,4)}, {s(S_T3)} offen offset:{128*b}')
        a(f'buffer_load_dwordx2 {v(34+4*b,2)}, v60, {s(SRD_T,4)}, {s(S_T3)} offen offset:{128*b}')

def p_prologue(a):
    a(f'''
    v_and_b32 v20, 63, v0
    v_lshlrev_b32 {v(PV_L16)}, 4, v20
    v_mov_b32 {v(PV_NEG)}, -1
    v_mov_b32 {v(PV_NEG+1)}, -1
    v_lshrrev_b32 v21, 2, v20
    v_and_b32 v22, 3, v20
    v_lshlrev_b32 v21, 13, v21
    v_lshl_add_u32 v21, v22, 4, v21
    s_lshl_b32 {s(S_T0)}, {s(S_W)}, 21
    s_lshl_b32 {s(S_T1)}, {s(S_ID)}, 6
    s_add_u32 {s(S_T0)}, {s(S_T0)}, {s(S_T1)}
    s_lshl_b32 {s(S_T2)}, {s(S_W)}, 15
    s_mov_b32 {s(SRD_T+2)}, {8*MB}
    s_mov_b32 {s(SRD_T+3)}, {SRD3}
    v_lshrrev_b32 v24, 5, v20                 ; gB>>1
    v_bfe_u32 v25, v20, 3, 1                  ; r>>1
    v_lshl_add_u32 v24, v24, 1, v25           ; 2(gB>>1) + (r>>1)
    v_bfe_u32 v26, v20, 4, 1                  ; gB&1
    v_xor_b32 v26, v26, v25
    v_lshl_add_u32 v24, v24, 1, v26
    v_bfe_u32 v25, v20, 2, 1                  ; r&1
    v_lshl_add_u32 v24, v24, 2, v25           ; row
    v_lshlrev_b32 v24, 6, v24
    v_lshl_add_u32 v24, v22, 3, v24           ; + cc*8
    v_add_u32 v24, {s(S_T2)}, v24
    ''')
    if a.fl:
        a(f'''
        v_lshrrev_b32 v21, 3, v20
        v_and_b32 v23, 7, v20
        v_lshlrev_b32 v21, 14, v21
        v_lshl_add_u32 v21, v23, 4, v21
        s_and_b32 {s(S_T1)}, {s(S_I)}, 1
        s_mul_i32 {s(S_T1)}, {s(S_T1)}, {8192 - 64}
        s_add_u32 {s(S_T0)}, {s(S_T0)}, {s(S_T1)}
        ''')
    def src(p):
        a(f's_load_dwordx2 {s(SRD_T,2)}, s[0:1], {KA_WQ + 8*p}')
        a(f's_add_u32 {s(S_T3)}, {s(S_T0)}, s72')
        a('s_waitcnt lgkmcnt(0)')
    a(f's_and_b32 s70, {s(S_I)}, {1 if a.stag else 0}')
    a('s_lshl_b32 s72, s70, 20')
    a('s_lshl_b32 s73, s70, 21')
    a('s_lshl_b32 s70, s70, 13')
    a(f's_sub_u32 s71, {s(S_T2)}, s70')
    a(f's_add_u32 s70, {s(S_T2)}, s70')
    def issue(p, half):
        src(p)
        for n in range(16):
            a(f's_add_u32 m0, {"s70" if n < 8 else "s71"}, {half*16384 + n*1024}')
            a('s_nop 0')
            a(f'buffer_load_dwordx4 v21, {s(SRD_T,4)}, {s(S_T3)} offen{a.wnt[p]} lds')
            a(f's_add_u32 {s(S_T3)}, {s(S_T3)}, {16*8192}')
            if n == 7: a(f's_sub_u32 {s(S_T3)}, {s(S_T3)}, s73')
    def fetch(p, half):
        for b in range(4):
            for T in range(2):
                for t4 in range(4):
                    a(f'ds_read_b64_tr_b16 {v(pw(b, 2*p+T)+2*t4, 2)}, v24 offset:{half*16384 + b*4096 + (32*(t4>>1) + 2*(t4&1))*64 + T*32}')
            a('s_waitcnt lgkmcnt(0)')
    issue(0, 0); issue(1, 1)
    src(2)
    land = [pw(n // 4, 4) + 4 * (n & 3) for n in range(16)]
    for n in range(16):
        a(f'buffer_load_dwordx4 {v(land[n],4)}, v21, {s(SRD_T,4)}, {s(S_T3)} offen{a.wnt[2]}')
        a(f's_add_u32 {s(S_T3)}, {s(S_T3)}, {16*8192}')
        if n == 7: a(f's_sub_u32 {s(S_T3)}, {s(S_T3)}, s73')
    mem0_issue(a)
    a('s_barrier')
    a(f'v_add_u32 v56, s70, {v(PV_L16)}')
    a(f'v_add_u32 v26, s71, {v(PV_L16)}')
    a('s_waitcnt vmcnt(40)'); fetch(0, 0)
    a('s_waitcnt vmcnt(24)'); fetch(1, 1)
    a('s_waitcnt vmcnt(8)')
    for n in range(16):
        a(f'ds_write_b128 {"v56" if n < 8 else "v26"}, {v(land[n],4)} offset:{n*1024}')
    a('s_waitcnt lgkmcnt(0)')
    fetch(2, 0)
    a(f'''
    v_mov_b32 v21, 0x44444444
    v_mov_b32 v22, 0xeeeeeeee
    v_and_b32 v23, 2, v20
    v_cmp_eq_u32 vcc, 0, v23
    s_nop 1
    v_cndmask_b32 {v(PV_IDX)}, v22, v21, vcc
    ''')
    a(f'''
    v_bfe_u32 v21, v20, 2, 3                  ; t
    v_lshrrev_b32 v22, 5, v20                 ; isk
    v_mul_u32_u24 v23, 160, v21
    v_mul_u32_u24 v24, 1280, v22
    v_add_u32 v23, v23, v24
    v_and_b32 v24, 3, v20
    v_lshl_add_u32 v27, v24, 4, v23
    v_lshrrev_b32 v23, 1, v21
    v_and_b32 v21, 1, v21
    v_lshl_add_u32 v21, v23, 2, v21           ; row0
    v_xor_b32 v22, 1, v22
    v_lshl_add_u32 v21, v22, 1, v21           ; row
    v_bfe_u32 v22, v20, 1, 1                  ; gq&1
    v_lshl_add_u32 v21, v22, 4, v21
    v_xor_b32 v22, v20, v22
    v_and_b32 v22, 1, v22                     ; hs
    v_lshlrev_b32 v21, 4, v21
    v_lshl_add_u32 v25, v22, 3, v21
    v_lshrrev_b32 v21, 3, v20                 ; t
    v_mul_u32_u24 v23, 160, v21
    v_and_b32 v24, 7, v20
    v_lshl_add_u32 v28, v24, 4, v23
    v_lshrrev_b32 v23, 1, v21
    v_and_b32 v21, 1, v21
    v_lshl_add_u32 v21, v23, 2, v21
    v_and_b32 v22, 1, v20                     ; p
    v_lshl_add_u32 v21, v22, 1, v21
    v_bfe_u32 v22, v20, 2, 1                  ; gq>>1
    v_lshl_add_u32 v21, v22, 4, v21
    v_bfe_u32 v22, v20, 1, 1                  ; gq&1
    v_lshlrev_b32 v21, 4, v21
    v_lshl_add_u32 v26, v22, 3, v21
    s_lshl_b32 {s(S_T0)}, {s(S_J)}, 10
    s_lshl_b32 {s(S_T1)}, {s(S_W)}, 9
    s_add_u32 {s(S_T0)}, {s(S_T0)}, {s(S_T1)}
    s_lshl_b32 {s(S_T1)}, {s(S_W)}, 6
    s_lshl_b32 {s(S_T2)}, {s(S_J)}, 9
    s_add_u32 {s(S_T2)}, {s(S_T2)}, 4096
    s_cmp_ge_u32 {s(S_W)}, 2
    s_cselect_b32 {s(S_T0)}, {s(S_T2)}, {s(S_T0)}
    s_cselect_b32 {s(S_T1)}, 2560, {s(S_T1)}
    s_cselect_b64 vcc, -1, 0
    v_cndmask_b32 v22, v25, v26, vcc
    v_cndmask_b32 v23, v27, v28, vcc
    v_add_u32 {v(PV_QST)}, {s(S_T0)}, v22
    v_add_u32 {v(PV_R1R)}, {s(S_T1)}, v23
    v_lshrrev_b32 v21, 4, v20                 ; g
    v_and_b32 v22, 15, v20                    ; n
    v_mul_u32_u24 v23, 320, v21
    v_lshl_add_u32 v23, v22, 2, v23
    s_mul_i32 {s(S_T0)}, {s(S_W)}, 3840
    v_add_u32 {v(PV_R1W)}, {s(S_T0)}, v23
    v_add_u32 {v(PV_R1W1)}, 1280, {v(PV_R1W)}
    v_bfe_u32 v24, v20, 3, 1
    v_bfe_u32 v25, v20, 2, 1
    v_xor_b32 v25, v25, v24                   ; hs
    v_bfe_u32 v26, v20, 1, 1                  ; p
    v_lshl_add_u32 v25, v26, 1, v25
    v_lshl_add_u32 v25, v24, 2, v25
    v_and_b32 v26, 1, v20
    v_lshl_add_u32 v25, v25, 1, v26           ; pos(n)
    v_sub_u32 v25, v25, v22
    v_lshl_add_u32 v25, v25, 2, {v(PV_R1W)}
    v_add_u32 {v(PV_R1W2)}, 2560, v25
    v_lshlrev_b32 v23, 4, v22
    v_lshl_add_u32 {v(PV_SGR)}, v21, 12, v23
    s_lshl_b32 {s(S_T0)}, {s(S_W)}, 10
    s_add_u32 {s(S_T0)}, {s(S_T0)}, {LDS_SEG}
    v_add_u32 {v(PV_SGR)}, {s(S_T0)}, {v(PV_SGR)}
    v_lshrrev_b32 v24, 1, v21
    v_lshl_add_u32 v23, v24, 15, v23
    v_and_b32 v24, 1, v21
    v_lshl_add_u32 {v(PV_SPS)}, v24, 8, v23
    v_mov_b32 {v(PV_FLGR)}, {LDS_FLG}
    v_bfe_u32 v23, v20, 1, 2                  ; t>>1
    v_lshlrev_b32 v23, 6, v23
    v_and_b32 v25, 1, v20
    v_lshl_add_u32 v23, v25, 4, v23
    v_lshrrev_b32 v24, 5, v20
    v_lshl_add_u32 {v(PV_MST)}, v24, 5, v23
    v_and_b32 v23, 7, v20
    v_lshlrev_b32 v23, 7, v23
    v_bfe_u32 v24, v20, 3, 1
    v_lshl_add_u32 v23, v24, 17, v23
    v_lshrrev_b32 v24, 4, v20
    v_add_u32 v24, 1, v24
    v_cmp_le_u32 vcc, 3, v24
    s_nop 1
    v_cndmask_b32 v24, v24, 0, vcc
    v_lshl_add_u32 v23, v24, 24, v23
    s_lshl_b32 {s(S_T0)}, {s(S_G)}, 14
    s_lshl_b32 {s(S_T1)}, {s(S_C)}, 10
    s_add_u32 {s(S_T0)}, {s(S_T0)}, {s(S_T1)}
    s_add_u32 {s(S_T0)}, {s(S_T0)}, {WS_QS}
    v_add_u32 {v(PV_PFA)}, {s(S_T0)}, v23
    s_lshl_b32 {s(S_T0)}, {s(S_W)}, 2
    s_add_u32 {s(S_T0)}, {s(S_T0)}, {LDS_FLG}
    v_mov_b32 {v(PV_FLGW)}, {s(S_T0)}
    ''')
    sel_init(a, PV_SEL, 20, 21, 22)
    a('s_waitcnt vmcnt(0)')
    for i in range(16): a(f'v_mov_b32 {v(PV_M+i)}, {v(32+i)}')

def gate_addr(a, d, add, tg):
    a(f's_add_u32 {s(S_T4)}, {s(S_S)}, {add}')
    a(f's_min_u32 {s(S_T4)}, {s(S_T4)}, 63')
    a(f's_cmp_ge_u32 {s(S_T4)}, {a.s0}')
    a(f's_cselect_b32 {s(tg)}, 12, 8')
    if a.scb < 64:
        a(f's_cmp_ge_u32 {s(S_T4)}, {a.scb}')
        a(f's_cselect_b32 {s(tg)}, 0, {s(tg)}')
    a(f's_and_b32 {s(d)}, {s(S_T4)}, 4')
    a(f's_lshr_b32 {s(S_T4)}, {s(S_T4)}, 3')
    a(f's_lshl_b32 {s(S_T4)}, {s(S_T4)}, 8')
    a(f's_add_u32 {s(d)}, {s(d)}, {s(S_T4)}')
    a(f's_add_u32 {s(d)}, {s(d)}, {s(S_CQG)}')

def p_gate(a, k):
    l = a.uid('gate')
    a(f's_bitcmp1_b32 {s(S_OK)}, {k}')
    a(f's_cbranch_scc1 {l}_ok')
    gate_addr(a, S_RDG, 1 + k, S_T2)
    a.label(l)
    a(f'buffer_load_dword {v(PV_T)}, off, {s(SRD_WS,4)}, {s(S_RDG)} sc1')
    a('s_waitcnt vmcnt(0)')
    a(f'v_readfirstlane_b32 {s(S_T4)}, {v(PV_T)}')
    a(f's_cmp_ge_u32 {s(S_T4)}, {s(S_T2)}')
    a(f's_cbranch_scc1 {l}_set')
    a('s_sleep 8')
    a(f's_sub_u32 {s(S_TO)}, {s(S_TO)}, 1')
    a(f's_cbranch_scc0 {l}')
    a(f's_mov_b32 {s(S_TO)}, 0')
    a.label(l + '_set')
    a(f's_bitset1_b32 {s(S_OK)}, {k}')
    a.label(l + '_ok')

def dma_list(a, m, vl16, st, S_KG=S_KG, S_KL=S_KL, hd=0):
    base = (WS_KS, WS_VS, WS_QS)[m] + 4096 * hd
    o = []
    for kt in range(2):
        for u in range(4):
            pre = f's_add_u32 m0, {s(S_KL)}, {8192*m + 4096*kt + 24576*hd}\ns_add_u32 {s(st)}, {s(S_KG)}, {base + 131072*kt}\n' if u == 0 else ''
            o.append(pre + f'buffer_load_dwordx4 {v(vl16)}, {s(SRD_WS,4)}, {s(st)} offen offset:{1024*u} sc1{a.bnt} lds')
    return o

def reg_list(a, m, reg, st):
    base = (WS_KS, WS_VS, WS_QS)[m]
    o = []
    for kt in range(2):
        for u in range(4):
            pre = f's_add_u32 {s(st+kt)}, {s(S_KG)}, {base + 131072*kt}\n' if u == 0 else ''
            o.append(pre + f'buffer_load_dwordx4 {v(reg+(kt*4+u)*4,4)}, {v(AV_L16)}, {s(SRD_WS,4)}, {s(st+kt)} offen offset:{1024*u} sc1{a.bnt}')
    return o

def p_segreduce(a, part=3):
    if part & 1: p_segcalc(a)
    if part & 2: p_segstore(a)

def p_segcalc(a):
    S1 = 48
    for ul in range(2):
        for rt in range(2):
            a(f'ds_read_b128 {v(PV_M+4*(2*ul+rt),4)}, {v(PV_SGR)} offset:{512*ul+256*rt}')
    a(f'v_xor_b32 {v(PV_SGR)}, 0x4000, {v(PV_SGR)}')
    for ul in range(2):
        D = 40 + 4 * ul
        a(f's_waitcnt lgkmcnt({2-2*ul})')
        a(f'v_mfma_f32_16x16x32_bf16 {v(D,4)}, {v(PV_SEL,4)}, {v(PV_M+8*ul,4)}, 0')
        a(f'v_mfma_f32_16x16x32_bf16 {v(D,4)}, {v(S1,4)}, {v(PV_M+8*ul+4,4)}, {v(D,4)}')
    a('s_nop 7')
    a('v_cvt_pk_bf16_f32 v40, v40, v41')
    a('v_cvt_pk_bf16_f32 v41, v42, v43')
    a('v_cvt_pk_bf16_f32 v42, v44, v45')
    a('v_cvt_pk_bf16_f32 v43, v46, v47')
    a('s_nop 1')
    a('v_permlane16_swap_b32 v40, v42')
    a('v_permlane16_swap_b32 v41, v43')
    a('s_nop 1')
    a('v_min_u32 v40, -2, v40')

def p_segstore(a):
    a(f'buffer_store_dwordx4 v[40:43], {v(PV_SPS)}, {s(SRD_WS,4)}, {s(S_SP)} offen sc1{a.spnt}')
    a(f's_add_u32 {s(S_SP)}, {s(S_SP)}, 65536')

def p_loop(a, loc, prof, done):
    LH = a.uid('ploopH')
    for i in range(24): a(f'v_mov_b32 {v(PV_ACC+i)}, 0')
    a(f'v_mov_b32 {v(PV_FV)}, 0')
    a('s_nop 1')
    if a.s1:
        LL = a.uid('ploopL')
        a(f's_branch {LL}_nc')
        p_body(a, loc, Prof(prof), done, LL, True, LH, True)
    else: a(f's_branch {LH}_nc')
    p_body(a, loc, Prof(prof), done, LH, False, None, not a.s1)

def p_body(a, loc, pf, done, L, light, nxt, entry):
    Lrm = L + '_rm'; Lrp = L + '_rp'
    mld = [f'buffer_load_dwordx4 {v(PV_M+4*j,4)}, {v(PV_L16)}, {s(SRD_WS,4)}, {s(S_MLD)} offen offset:{1024*j} sc1' for j in range(4)]
    mreg = lambda b: [PV_M + 4 * b]
    def mm(check):
        if check:
            a('s_waitcnt vmcnt(3)')
            for x in chk(mreg(0), PV_T, f'{Lrm}_0'): a(x)
            a.label(f'{Lrm}_0ok')
            pf.stamp(a, 'b0ok')
        for b in range(4):
            ms = [f'v_smfmac_f32_16x16x64_bf16 {v(PV_ACC+4*t,4)}, {v(PV_M+4*b,4)}, {v(pw(b,t),8)}, {v(PV_IDX)}' for t in range(4 if a.qkf else 6)]
            if check and b < 3:
                c = chk(mreg(b + 1), PV_T, f'{Lrm}_{b+1}')
                ms = ms[:a.mck] + [f's_waitcnt vmcnt({2-b})'] + c[:-1] + ms[a.mck:] + c[-1:]
            if b == 3:
                ms = ms[:1] + [f'ds_write_b32 {v(PV_FLGW)}, {v(PV_FV)} offset:32'] + ms[1:]
            for x in ms: a(x)
            if check and b < 3: a.label(f'{Lrm}_{b+1}ok')
    if a.al: a.raw(f'.p2align {a.al}')
    for i in range(a.alo): a('s_nop 0')
    a.label(L)
    pf.stamp(a, 'top')
    for i in range(24): a(f'v_mov_b32 {v(PV_ACC+i)}, 0')
    if light and a.jit: p_gate(a, 0)
    if a.md: a(f's_sleep {a.md}')
    for x in mld: a(x)
    mm(True)
    if entry:
        a(f's_branch {L}_mmd')
        a.label(L + '_nc')
        if pf.on:
            a(f's_memtime {s(S_PROF, 2)}'); a(f's_memtime {s(S_PROF+2, 2)}')
        mm(False)
        a.label(L + '_mmd')
    pf.stamp(a, 'mmdone')
    def wr(t):
        A = PV_ACC + 4 * t
        a(f'v_add_f32 {v(A)}, {v(A)}, {v(A+2)}'); a(f'v_add_f32 {v(A+1)}, {v(A+1)}, {v(A+3)}')
        a(f'ds_write2_b32 {v((PV_R1W, PV_R1W1, PV_R1W2)[t>>1])}, {v(A)}, {v(A+1)} offset0:{16*(t&1)} offset1:{16*(t&1)+40}')
    R = 32
    def add4(d, x):
        for e in range(4): a(f'v_add_f32 {v(d+e)}, {v(d+e)}, {v(x+e)}')
    def reduce(fill=()):
        for h in range(4):
            a(f'ds_read_b128 {v(R+4*h,4)}, {v(PV_R1R)} offset:{LDS_RED1+3840*h}')
        for x in fill: a(x)
        a('s_waitcnt lgkmcnt(2)')
        add4(R, R + 4)
        a('s_waitcnt lgkmcnt(0)')
        add4(R + 8, R + 12)
        add4(R, R + 8)
        a(f'v_cvt_pk_bf16_f32 v56, {v(R)}, {v(R+1)}')
        a(f'v_cvt_pk_bf16_f32 v57, {v(R+2)}, {v(R+3)}')
        a('v_min_u32 v56, -2, v56')
        a(f'buffer_store_dwordx2 v[56:57], {v(PV_QST)}, {s(SRD_WS,4)}, {s(S_QST)} offen{loc}')
    def qreset():
        ring(a, S_QRS, 2, 18, S_QO)
        a(f'buffer_store_dwordx2 {v(PV_NEG,2)}, {v(PV_QST)}, {s(SRD_WS,4)}, {s(S_QRS)} offen{loc}')
    if a.qkf:
        vm = [f'v_smfmac_f32_16x16x64_bf16 {v(PV_ACC+4*t,4)}, {v(PV_M+4*b,4)}, {v(pw(b,t),8)}, {v(PV_IDX)}' for b in range(4) for t in (4, 5)]
        a(f's_cmp_ge_u32 {s(S_W)}, 2')
        for x in vm[:2]: a(x)
        a('s_nop 1')
        for t in range(4): wr(t)
        for x in vm[2:4]: a(x)
        a('s_waitcnt lgkmcnt(0)')
        pf.stamp(a, 'b1rdy', -2)
        a('s_barrier')
        pf.stamp(a, 'b1')
        a(f's_cbranch_scc1 {L}_sk0')
        reduce(vm[4:])
        a(f's_branch {L}_sk0b')
        a.label(L + '_sk0')
        for x in vm[4:]: a(x)
        a('s_nop 6')
        a.label(L + '_sk0b')
        a(f's_cmp_lg_u32 {s(S_W)}, 2')
        wr(4); wr(5)
        a('s_waitcnt lgkmcnt(0)')
        a('s_barrier')
        a(f's_cbranch_scc1 {L}_sk2')
        reduce()
        a.label(L + '_sk2')
        a(f's_cmp_eq_u32 {s(S_W)}, 3')
        a(f's_cbranch_scc1 {L}_sk1')
        qreset()
    else:
        a(f's_cmp_eq_u32 {s(S_W)}, 3')
        a('s_nop 1')
        for t in range(6): wr(t)
        a('s_waitcnt lgkmcnt(0)')
        pf.stamp(a, 'b1rdy', -2)
        a('s_barrier')
        pf.stamp(a, 'b1')
        a(f's_cbranch_scc1 {L}_sk1')
        reduce()
        qreset()
    a.label(L + '_sk1')
    pf.stamp(a, 'qpub', -2)
    a('s_setprio 0')
    sc = light and a.scb < 64
    NU = 2 * (64 - a.scb)
    def sc_cond(lo, lab):
        a(f's_sub_u32 {s(S_T0)}, {s(S_S)}, {lo}')
        a(f's_cmp_ge_u32 {s(S_T0)}, {NU}')
        a(f's_cbranch_scc1 {lab}')
    if sc:
        assert a.sc0 + NU + 1 < a.s1 and a.sc0 + NU + 2 < 63 and a.sc0 + 4 < a.scb
        sc_cond(a.sc0 + 1, L + '_nsc')
        a(f's_setprio {a.scp}')
        a(f'v_add_u32 {v(PV_T)}, {s(S_XB)}, {v(PV_L16)}')
        if not a.xpos: a(f's_xor_b32 {s(S_XB)}, {s(S_XB)}, {s(S_XBX)}')
        rd = lambda k: f'ds_read_b128 {v(PV_M+4*(k&3),4)}, {v(PV_T)} offset:{1024*k}'
        for k in range(4): a(rd(k))
        for k in range(8):
            a(f's_waitcnt lgkmcnt({min(3, 7-k) if k < 4 or True else 0})' if k == 0 else f's_waitcnt lgkmcnt({min(2, 7-k)})')
            for t in range(6):
                d = v(PV_ACC + 4 * t, 4)
                a(f'v_mfma_f32_16x16x32_bf16 {d}, {v(PV_M+4*(k&3),4)}, {v(pw(k>>1,t)+4*(k&1),4)}, {"0" if k == 0 else d}')
                if t == 2 and 1 <= k and k + 3 < 8: a(rd(k + 3))
        a(f"""
        v_lshrrev_b32 {v(PV_M)}, 8, {v(PV_L16)}
        v_mul_u32_u24 {v(PV_M)}, 576, {v(PV_M)}
        v_bfe_u32 {v(PV_M+1)}, {v(PV_L16)}, 4, 4
        v_lshl_add_u32 {v(PV_M)}, {v(PV_M+1)}, 2, {v(PV_M)}
        s_mul_i32 {s(S_T0)}, {s(S_W)}, 6912
        s_add_u32 {s(S_T0)}, {s(S_T0)}, {LDS_SCP}
        v_add_u32 {v(PV_M)}, {s(S_T0)}, {v(PV_M)}
        v_add_u32 {v(PV_M+1)}, 2304, {v(PV_M)}
        v_add_u32 {v(PV_M+2)}, 4608, {v(PV_M)}
        """)
        for t in range(6):
            for i in (0, 2):
                a(f'ds_write2_b32 {v(PV_M+(t>>1))}, {v(PV_ACC+4*t+i)}, {v(PV_ACC+4*t+i+1)} offset0:{36*i+16*(t&1)} offset1:{36*i+36+16*(t&1)}')
        a('s_waitcnt lgkmcnt(0)')
        a('s_setprio 0')
        a.label(L + '_nsc')
    ring(a, S_MRS, 3, a.msh, S_MSO)
    mex = f's_mov_b64 exec, {s(S_MEX,2)}'
    for d in range(4): a(f'v_mov_b32 {v(44+d)}, -1')
    a(mex)
    a(f'buffer_store_dwordx4 v[44:47], {v(PV_MST)}, {s(SRD_WS,4)}, {s(S_MRS)} offen{loc}')
    a('s_mov_b64 exec, -1')
    for d in range(4): a(f'v_mov_b32_dpp {v(48+d)}, {v(PV_SEL+d)} row_ror:8 row_mask:0xf bank_mask:0xf')
    ring(a, S_PLD, 0, PSLOT, S_PO)
    ring(a, S_MST, 1, a.msh, S_MSO)
    ring(a, S_MLD, 1, a.msh, S_MO)
    ring(a, S_QST, 1, 18, S_QO)
    def seg(part):
        if 's' in a.abl: return
        Lh = a.uid('pnoseg')
        a(f's_cmp_eq_u32 {s(S_SP)}, {s(S_SP0)}')
        a(f's_cbranch_scc1 {Lh}')
        p_segreduce(a, part)
        a.label(Lh)
    def oflush(part):
        l = a.uid('ofl')
        a(f's_cmp_eq_u32 {s(S_OF)}, 0')
        a(f's_cbranch_scc1 {l}')
        if part == 1:
            a(f's_lshl_b32 {s(S_T0)}, {s(S_W)}, 10')
            a(f'v_add_u32 v39, {s(S_T0)}, {v(PV_L16)}')
            a(f'ds_read_b128 v[40:43], v39 offset:{LDS_SEG}')
        else:
            a(f's_lshl_b32 {s(S_T0)}, {s(S_S)}, 18')
            a(f's_add_u32 {s(S_T0)}, {s(S_T0)}, {s(S_OB)}')
            if 'o' not in a.abl: a(f'buffer_store_dwordx4 v[40:43], {v(PV_L16)}, {s(SRD_WS,4)}, {s(S_T0)} offen sc1')
            a(f's_mov_b32 {s(S_OF)}, 0')
        a.label(l)
    unit = a.s0 < a.s1
    if unit: oflush(1)
    if light:
        a(f"""
        s_cmp_ge_u32 {s(S_S)}, {a.s0}
        s_cbranch_scc1 {L}_nx
        v_mov_b32 v40, {v(PV_QST)}
        v_mov_b32 v42, v56
        v_mov_b32 v43, v57
        s_cmp_lg_u32 {s(S_W)}, 2
        s_cbranch_scc1 {L}_nx
        v_and_b32 v40, 0x60, {v(PV_L16)}
        v_lshlrev_b32 v40, 2, v40
        v_lshrrev_b32 v41, 3, {v(PV_L16)}
        v_and_b32 v41, 0x70, v41
        v_or_b32 v40, v40, v41
        v_bfe_u32 v41, {v(PV_L16)}, 4, 1
        v_lshl_or_b32 v40, v41, 3, v40
        s_lshl_b32 {s(S_T0)}, {s(S_J)}, 9
        s_add_u32 {s(S_T0)}, {s(S_T0)}, 4096
        v_add_u32 v40, {s(S_T0)}, v40
        s_mov_b32 vcc_lo, 0x55555555
        s_mov_b32 vcc_hi, 0x55555555
        v_cndmask_b32_dpp v42, v57, v56, vcc quad_perm:[1,0,3,2] row_mask:0xf bank_mask:0xf
        s_not_b64 vcc, vcc
        v_cndmask_b32_dpp v43, v56, v57, vcc quad_perm:[1,0,3,2] row_mask:0xf bank_mask:0xf
        """)
        a.label(L + '_nx')
    else:
        a(f's_cmp_eq_u32 {s(S_S)}, {a.last}')
        a(f's_cbranch_scc1 {L}_tail')
        seg(1)
    if not (light and a.jit): p_gate(a, 1 if light else 0)
    a(f'v_readfirstlane_b32 {s(S_T4)}, {v(PV_RDY)}')
    a(f's_lshr_b32 {s(S_OK)}, {s(S_OK)}, 1')
    a(f's_cmp_ge_u32 {s(S_T4)}, {s(S_RTG)}')
    a(f's_cselect_b32 {s(S_T4)}, 2, 0')
    a(f's_or_b32 {s(S_OK)}, {s(S_OK)}, {s(S_T4)}')
    a(f's_cmp_eq_u32 {s(S_W)}, 3')
    a(f's_cselect_b32 {s(S_T3)}, {s(S_T4)}, 0')
    gate_addr(a, S_RDY, 4, S_RTG)
    dl = []
    for m, ch in (((1, 'v'),) if a.hk and not light else ((0, 'k'), (1, 'v'))[:1 if light else 2]):
        if ch not in a.abl and not (light and a.lr & 2): dl += dma_list(a, m, PV_L16, S_T0)
    nd1 = a.ndl if light else a.nd1
    a(f's_setprio {a.fprio}')
    flag_wait(a, L + '_fs', PV_FLGR, 0, 32, S_T1, sl=a.fsl)
    pf.stamp(a, 'flag')
    a(f's_setprio {a.dprio}')
    for x in dl[:nd1]: a(x)
    def xdma(lo, hi, tag):
        if lo == hi: return
        sc_cond(a.sc0, L + tag)
        for k in range(lo, hi):
            if k == lo or k == 4:
                a(f's_add_u32 m0, {s(S_XB)}, {4096*(k>>2)}')
                a(f's_add_u32 {s(S_T0)}, {s(S_XG)}, {4096*(k>>2)}')
            a(f'buffer_load_dwordx4 {v(PV_L16)}, {s(SRD_WS,4)}, {s(S_T0)} offen offset:{1024*(k&3)} sc1 lds')
        if hi == 8: a(f's_add_u32 {s(S_XG)}, {s(S_XG)}, 32768')
        a.label(L + tag)
    if sc and a.xpos: xdma(0, a.nx1, '_x1')
    if light and a.ofd:
        if sc:
            a(f's_sub_u32 {s(S_T0)}, {s(S_S)}, {a.sc0}')
            a(f's_cmp_le_u32 {s(S_T0)}, {NU}')
            a(f's_cbranch_scc1 {L}_nofd')
        a(f's_sleep {a.ofd}')
        a.label(L + '_nofd')
    if 't' not in a.abl:
        a(f's_cmp_eq_u32 {s(S_T3)}, 0')
        a(f's_cbranch_scc1 {L}_nt')
        if light:
            a(f's_cmp_ge_u32 {s(S_S)}, {max(a.s0 - 3, 0)}')
            a('s_cselect_b32 exec_hi, 0xffff, 0')
        else: a('s_mov_b32 exec_hi, 0xffff')
        a(f'buffer_load_dword {v(PV_RDY)}, {v(PV_PFA)}, {s(SRD_WS,4)}, {s(S_TCH)} offen sc1')
        a('s_mov_b32 exec_hi, -1')
        if a.ctch:
            for n, (st, lab, nl) in enumerate(((a.s1 - 2, nxt, 18), (a.s1 - 2, 'ct_aH', 30)) if light else ((a.last - 2, 'ct_tail', 2), (a.last - 2, L + '_tail', 4))):
                a(f's_cmp_lg_u32 {s(S_S)}, {st}')
                a(f's_cbranch_scc1 {L}_nt')
                vcode_touch(a, lab, nl, 62, PV_L16, 38, PV_RDY)
        a.label(L + '_nt')
    if sc:
        a(f's_cmp_lg_u32 {s(S_W)}, 2')
        a(f's_cbranch_scc1 {L}_nxt')
        sc_cond(a.sc0 - 2, L + '_nxt')
        a(f's_lshl_b32 {s(S_T0)}, {s(S_T0)}, 15')
        a(f's_lshl_b32 {s(S_T1)}, {s(S_I)}, 10')
        a(f's_add_u32 {s(S_T0)}, {s(S_T0)}, {s(S_T1)}')
        a(f's_add_u32 {s(S_T0)}, {s(S_T0)}, {WS_XN2 + a.scb * 65536}')
        a(f'v_lshlrev_b32 v39, 3, {v(PV_L16)}')
        a('s_mov_b64 exec, 0xff')
        a(f'buffer_load_dword {v(PV_RDY)}, v39, {s(SRD_WS,4)}, {s(S_T0)} offen sc1')
        a('s_mov_b64 exec, -1')
        a.label(L + '_nxt')
    if unit: oflush(2)
    if light:
        if unit:
            a(f's_lshr_b32 {s(S_T0)}, {s(S_C)}, 3')
            a(f's_xor_b32 {s(S_T0)}, {s(S_T0)}, {s(S_S)}')
            a(f's_andn2_b32 {s(S_OF)}, 1, {s(S_T0)}')
            a(f's_cmp_ge_u32 {s(S_S)}, {a.s0}')
            a(f's_cselect_b32 {s(S_OF)}, {s(S_OF)}, 0')
            a(f's_cbranch_scc1 {L}_nx2')
        a(f's_cmp_eq_u32 {s(S_W)}, 3')
        a(f's_cbranch_scc1 {L}_nx2')
        if 'x' not in a.abl: a(f'buffer_store_dwordx2 v[42:43], v40, {s(SRD_WS,4)}, {s(S_KMX)} offen sc1')
        a.label(L + '_nx2')
        a(f's_add_u32 {s(S_KMX)}, {s(S_KMX)}, 262144')
    else: seg(2)
    if a.pgp:
        a(f's_or_b32 {s(S_T0)}, {s(S_I)}, {s(S_W)}')
        a(f's_cmp_lg_u32 {s(S_T0)}, 0')
        a(f's_cbranch_scc1 {L}_npg')
        a(f's_sub_u32 {s(S_T4)}, {s(S_S)}, 1')
        a(f's_cbranch_scc1 {L}_npg')
        a(f's_and_b32 {s(S_T0)}, {s(S_T4)}, 3')
        a(f's_cmp_ge_u32 {s(S_S)}, 58')
        a(f's_cselect_b32 {s(S_T0)}, 0, {s(S_T0)}')
        a(f's_cmp_lg_u32 {s(S_T0)}, 0')
        a(f's_cbranch_scc1 {L}_npg')
        a(f's_lshl_b32 {s(S_T0)}, {s(S_X)}, 7')
        a(f's_add_u32 {s(S_T0)}, {s(S_T0)}, {F.CS_TAB}')
        a(f'v_mov_b32 {v(PV_T)}, {s(S_T4)}')
        a('s_mov_b64 exec, 1')
        a(f'buffer_store_dword {v(PV_T)}, off, {s(SRD_WS,4)}, {s(S_T0)} sc1')
        a('s_mov_b64 exec, -1')
        a.label(L + '_npg')
    if a.rdp: a(f'buffer_load_dword {v(PV_RDY)}, off, {s(SRD_WS,4)}, {s(S_RDY)} sc1')
    pf.stamp(a, 'b2rdy')
    a('s_barrier')
    pf.stamp(a, 'b2')
    if a.dtim:
        a(f's_or_b32 {s(S_T0)}, {s(S_ID)}, {s(S_W)}')
        a(f's_and_b32 {s(S_T1)}, {s(S_S)}, 7')
        a(f's_or_b32 {s(S_T0)}, {s(S_T0)}, {s(S_T1)}')
        a(f's_cmp_lg_u32 {s(S_T0)}, 0')
        a(f's_cbranch_scc1 {L}_ndt')
        a('s_memrealtime s[96:97]')
        a(f's_lshr_b32 {s(S_T0)}, {s(S_S)}, 1')
        a('s_waitcnt lgkmcnt(0)')
        a(f'v_mov_b32 {v(PV_T)}, s96')
        a('s_mov_b64 exec, 1')
        a(f'buffer_store_dword {v(PV_T)}, off, {s(F.SRD_DBG,4)}, {s(S_T0)} offset:24')
        a('s_mov_b64 exec, -1')
        a.label(L + '_ndt')
    if not a.rdp: a(f'buffer_load_dword {v(PV_RDY)}, off, {s(SRD_WS,4)}, {s(S_RDY)} sc1')
    if sc:
        a(f's_cmp_eq_u32 {s(S_W)}, 3')
        a(f's_cbranch_scc1 {L}_nsr')
        sc_cond(a.sc0 + 1, L + '_nsr')
        a(f"""
        v_bfe_u32 v56, {v(PV_L16)}, 4, 4
        v_mul_u32_u24 v56, 144, v56
        v_lshrrev_b32 v57, 8, {v(PV_L16)}
        v_lshl_add_u32 v56, v57, 5, v56
        v_and_b32 v57, 1, v57
        s_mul_i32 {s(S_T0)}, {s(S_W)}, 2304
        s_add_u32 {s(S_T0)}, {s(S_T0)}, {LDS_SCP}
        v_add_u32 v56, {s(S_T0)}, v56
        v_sub_u32 {v(PV_T)}, 1, v57
        v_lshl_add_u32 {v(PV_T)}, {v(PV_T)}, 4, v56
        v_lshl_add_u32 v56, v57, 4, v56
        """)
        for h in range(4):
            a(f'ds_read_b128 {v(16+8*h,4)}, v56 offset:{6912*h}')
            a(f'ds_read_b128 {v(20+8*h,4)}, {v(PV_T)} offset:{6912*h}')
        a('s_waitcnt lgkmcnt(4)')
        for e in range(8): a(f'v_add_f32 {v(16+e)}, {v(16+e)}, {v(24+e)}')
        a('s_waitcnt lgkmcnt(0)')
        for e in range(8): a(f'v_add_f32 {v(32+e)}, {v(32+e)}, {v(40+e)}')
        for e in range(8): a(f'v_add_f32 {v(16+e)}, {v(16+e)}, {v(32+e)}')
        for d in range(4): a(f'v_cvt_pk_bf16_f32 {v(44+d)}, {v(16+2*d)}, {v(17+2*d)}')
        a(f'buffer_store_dwordx4 v[44:47], {v(PV_L16)}, {s(SRD_WS,4)}, {s(S_SCO)} offen{loc}')
        a(f's_add_u32 {s(S_SCO)}, {s(S_SCO)}, 131072')
        a(f's_branch {L}_nsr2')
        a.label(L + '_nsr')
        a(f's_sleep {a.scd}')
        a.label(L + '_nsr2')
        if a.xpos: xdma(a.nx1, 8, '_x2')
        a(f's_sleep {max(a.cdl - a.scd - a.scx, 0)}')
    if dl[nd1:]:
        if a.d2: a(f's_sleep {a.d2}')
        for x in dl[nd1:]: a(x)
    a(f's_add_u32 {s(S_S)}, {s(S_S)}, 1')
    a(f'v_mov_b32 {v(PV_FV)}, {s(S_S)}')
    a(f's_add_u32 {s(S_KG)}, {s(S_KG)}, 262144')
    a(f's_add_u32 {s(S_TCH)}, {s(S_TCH)}, 262144')
    if not light: a(f's_mov_b32 {s(S_SP0)}, 0')
    a('s_setprio 3')
    cd = 0 if sc else a.cdl if light else a.cdh if a.hk else a.cd
    if cd: a(f's_sleep {cd}')
    pf.stamp(a, 'poll')
    a.label(L + '_pagain')
    for i in range(2): a(f'buffer_load_dwordx4 {v(PV_M+4*i,4)}, {v(PV_L16)}, {s(SRD_WS,4)}, {s(S_PLD)} offen offset:{1024*i} sc1')
    D = 32
    a('s_waitcnt vmcnt(1)')
    a(f'v_mfma_f32_16x16x32_bf16 {v(D,4)}, {v(PV_SEL,4)}, {v(PV_M,4)}, 0')
    a('s_waitcnt vmcnt(0)')
    pf.stamp(a, 'p1')
    a(f'v_mfma_f32_16x16x32_bf16 {v(D,4)}, v[48:51], {v(PV_M+4,4)}, {v(D,4)}')
    for x in chk([PV_M, PV_M + 4], PV_T, Lrp): a(x)
    a.label(L + '_pgo')
    if light: a(f's_cmp_lt_u32 {s(S_S)}, {a.s1}')
    a(f's_nop {3 if light else 4}')
    for e in range(4): a(f'v_add_f32_dpp {v(D+4+e)}, {v(D+e)}, {v(D+e)} row_ror:8 row_mask:0xf bank_mask:0xf')
    a(f'v_cvt_pk_bf16_f32 v52, {v(D+4)}, {v(D+5)}')
    a(f'v_cvt_pk_bf16_f32 v53, {v(D+6)}, {v(D+7)}')
    a('s_nop 0')
    a('v_permlane16_swap_b32 v52, v54')
    a('v_permlane16_swap_b32 v53, v55')
    a(mex)
    a('v_min_u32 v52, -2, v52')
    a(f'buffer_store_dwordx4 v[52:55], {v(PV_MST)}, {s(SRD_WS,4)}, {s(S_MST)} offen{loc}')
    a('s_mov_b64 exec, -1')
    a(f'ds_write_b32 {v(PV_FLGW)}, {v(PV_FV)} offset:16')
    pf.stamp(a, 'mpub')
    if pf.on:
        a(f's_sub_u32 {s(S_S)}, {s(S_S)}, 1')
        pf.flush(a, 56, 'P')
        a(f's_add_u32 {s(S_S)}, {s(S_S)}, 1')
        if light: a(f's_cmp_lt_u32 {s(S_S)}, {a.s1}')
    if light:
        a(f's_cbranch_scc1 {L}')
        a(f's_branch {nxt}')
    else: a(f's_branch {L}')
    for b in range(4):
        spin_block(a, f'{Lrm}_{b}', mld[b:], mreg(b), PV_T, f'{Lrm}_{b}ok', f'{Lrm}_{b}ok')
    a.label(Lrp)
    if a.rsleep: a(f's_sleep {a.rsleep}')
    a(f's_sub_u32 {s(S_TO)}, {s(S_TO)}, 1')
    a(f's_cbranch_scc0 {L}_pagain')
    a(f's_mov_b32 {s(S_TO)}, 0')
    a(f's_branch {L}_pgo')
    if not light:
        a.label(L + '_tail')
        p_segreduce(a)
        a('s_barrier')
        p_segreduce(a)
        a(f's_branch {done}')

AV_L16, AV_PST, AV_MX, AV_T = 0, 1, 2, 3
AV_ONE = 4
AV_HALF = 8
AV_IDX = 166
AV_FLGR = 167
AV_VMW, AV_TRV, AV_TRM = 180, 181, 182
S_QM = 56
AV_S = 12
AV_O = 24
AV_VWM = 40
AV_Y, AV_X = 48, 64
AV_VWS = 80
AV_KS, AV_TB = 96, 128
AV_NEG, AV_R2W, AV_R2R, AV_SGW, AV_LB, AV_FLGW, AV_FV = 176, 160, 161, 162, 163, 164, 165
AV_PK = 168
AV_SEL = 184
AV_FT = 188
AV_WO = 192
def wo(u, ct): return AV_WO + (ct * 4 + u) * 4
def xk(u): return AV_Y + 4 * u

def tr_addr(a, vd, vl, rowbytes, T, hh, t1, t2):
    sh = rowbytes.bit_length() - 1
    a(f'''
    v_lshrrev_b32 {v(t1)}, 4, {v(vl)}
    v_and_b32 {v(t2)}, 1, {v(t1)}
    v_xor_b32 {v(t2)}, {hh}, {v(t2)}
    v_lshlrev_b32 {v(t2)}, 2, {v(t2)}
    v_lshl_add_u32 {v(t2)}, {v(t1)}, 3, {v(t2)}
    v_bfe_u32 {v(t1)}, {v(vl)}, 2, 2
    v_add_u32 {v(t2)}, {v(t2)}, {v(t1)}
    v_lshlrev_b32 {v(t2)}, {sh}, {v(t2)}
    v_and_b32 {v(t1)}, 3, {v(vl)}
    v_lshl_add_u32 {v(t2)}, {v(t1)}, 4, {v(t2)}
    v_and_b32 {v(t1)}, 1, {v(t1)}
    v_xor_b32 {v(t1)}, {T}, {v(t1)}
    v_lshl_add_u32 {v(vd)}, {v(t1)}, 3, {v(t2)}
    ''')

def vw_list(AV_TB):
    m = []
    for u in range(4):
        for kt in range(2):
            for ct in range(4):
                d = AV_Y + (kt * 4 + ct) * 4
                m.append(f'v_mfma_f32_16x16x32_bf16 {v(d,4)}, {v(AV_TB+(kt*4+u)*4,4)}, {v(wo(u,ct),4)}, {"0" if u==0 else v(d,4)}')
    return m
def vw_pack():
    o = []
    for ct in range(4):
        for kt in range(2):
            d = AV_Y + (kt * 4 + ct) * 4
            o.append(f'v_cvt_pk_bf16_f32 {v(AV_VWS+4*ct+2*kt)}, {v(d)}, {v(d+1)}')
            o.append(f'v_cvt_pk_bf16_f32 {v(AV_VWS+4*ct+2*kt+1)}, {v(d+2)}, {v(d+3)}')
    return o

def a_prologue(a):
    a(f'''
    v_and_b32 v20, 63, v0
    v_lshlrev_b32 {v(AV_L16)}, 4, v20
    s_lshl_b32 {s(S_T0)}, {s(S_H)}, 18
    s_lshl_b32 {s(S_T1)}, {s(S_C)}, 7
    s_add_u32 {s(S_T0)}, {s(S_T0)}, {s(S_T1)}
    s_lshl_b32 {s(S_T2)}, {s(S_T4)}, 13
    s_add_u32 {s(S_T2)}, {s(S_T2)}, 131072
    s_load_dwordx2 {s(SRD_T,2)}, s[0:1], {KA_WO}
    s_mov_b32 {s(SRD_T+2)}, {8*MB}
    s_mov_b32 {s(SRD_T+3)}, {SRD3}
    v_lshrrev_b32 v21, 3, v20
    v_and_b32 v22, 7, v20
    v_lshlrev_b32 v21, 11, v21
    v_lshl_add_u32 v21, v22, 4, v21
    ''')
    for T in range(2):
        for hh in range(2):
            tr_addr(a, 24 + T * 2 + hh, 20, 128, T, hh, 28, 29)
            a(f'v_add_u32 {v(24+T*2+hh)}, {s(S_T2)}, {v(24+T*2+hh)}')
    a('s_waitcnt lgkmcnt(0)')
    for n in range(8):
        a(f's_add_u32 m0, {s(S_T2)}, {n*1024}')
        a('s_nop 0')
        a(f'buffer_load_dwordx4 v21, {s(SRD_T,4)}, {s(S_T0)} offen{a.wnt[3]} lds')
        a(f's_add_u32 {s(S_T0)}, {s(S_T0)}, {8*2048}')
    for n in range(8):
        a(f'buffer_load_dwordx4 {v(AV_KS+4*n,4)}, v21, {s(SRD_T,4)}, {s(S_T0)} offen{a.wnt[3]}')
        a(f's_add_u32 {s(S_T0)}, {s(S_T0)}, {8*2048}')

def a_prologue2(a):
    a(f's_lshl_b32 {s(S_T2)}, {s(S_T4)}, 13')
    a(f's_add_u32 {s(S_T2)}, {s(S_T2)}, 131072')
    a(f'v_add_u32 v30, {s(S_T2)}, {v(AV_L16)}')
    for half in range(2):
        a(f's_waitcnt vmcnt({8 - 8*half})')
        if half:
            for n in range(8): a(f'ds_write_b128 v30, {v(AV_KS+4*n,4)} offset:{n*1024}')
            a('s_waitcnt lgkmcnt(0)')
        for uu in range(2):
            for p in range(2):
                for T in range(2):
                    for hh in range(2):
                        a(f'ds_read_b64_tr_b16 {v(wo(2*half+uu, 2*p+T)+2*hh,2)}, {v(24+T*2+hh)} offset:{uu*4096+p*64}')
            a('s_waitcnt lgkmcnt(0)')
    a(f'''
    v_lshrrev_b32 v21, 4, v20
    v_and_b32 v22, 2, v20
    v_cmp_eq_u32 {s(S_QM,2)}, 2, v22
    v_and_b32 v23, 15, v20
    v_lshlrev_b32 v21, 2, v21
    v_mov_b32 v8, 0x44444444
    v_mov_b32 v9, 0xeeeeeeee
    v_cndmask_b32 {v(AV_IDX)}, v8, v9, {s(S_QM,2)}
    v_mov_b32 v8, 0x3f803f80
    v_mov_b32 v9, 0
    v_mov_b32 v10, 0
    v_mov_b32 v11, 0
    v_mov_b32 v4, 0x3f803f80
    v_mov_b32 v5, 0x3f803f80
    v_mov_b32 v6, 0x3f803f80
    v_mov_b32 v7, 0x3f803f80
    s_mov_b32 {s(S_CST)}, 0x3e0293ee
    s_lshl_b32 {s(S_PRG)}, {s(S_I)}, 2
    s_add_u32 {s(S_PRG)}, {s(S_PRG)}, {s(S_T4)}
    s_lshl_b32 {s(S_CS)}, {s(S_X)}, 7
    s_add_u32 {s(S_CS)}, {s(S_CS)}, {F.CS_TAB}
    v_add_u32 {v(AV_LB)}, {s(S_KL)}, {v(AV_L16)}
    s_lshl_b32 {s(S_T0)}, {s(S_T4)}, 2
    s_add_u32 {s(S_T0)}, {s(S_T0)}, {LDS_FLG}
    v_mov_b32 {v(AV_FLGW)}, {s(S_T0)}
    v_mov_b32 {v(AV_FLGR)}, {LDS_FLG}
    ''')
    sel_init(a, AV_SEL, 20, 24, 25)
    a(f'''
    v_lshrrev_b32 v24, 4, v20                 ; g
    v_bfe_u32 v25, v20, 2, 2
    v_and_b32 v26, 1, v20
    v_lshl_add_u32 v26, v25, 1, v26           ; t
    v_lshlrev_b32 v26, 4, v26
    v_lshl_add_u32 v26, v24, 8, v26
    v_bfe_u32 v27, v20, 1, 1
    v_lshl_add_u32 v26, v27, 2, v26
    s_add_u32 {s(S_T0)}, {s(S_KL)}, 20480
    v_add_u32 {v(AV_VMW)}, {s(S_T0)}, v26
    v_and_b32 v26, 3, v20                     ; cc
    v_lshl_add_u32 v27, v24, 2, v25
    v_lshl_add_u32 v27, v26, 4, v27
    v_lshlrev_b32 v27, 4, v27
    v_add_u32 {v(AV_TRV)}, {s(S_KL)}, v27
    v_and_b32 v25, 1, v25
    v_lshl_add_u32 v25, v24, 1, v25
    v_lshl_add_u32 v25, v26, 3, v25
    v_lshlrev_b32 v25, 4, v25
    v_add_u32 {v(AV_TRM)}, {s(S_T0)}, v25
    s_bfe_u32 {s(S_T0)}, {s(S_C)}, 0x20001
    s_lshr_b32 {s(S_DW)}, {s(S_C)}, 3
    s_cmp_eq_u32 {s(S_T0)}, {s(S_T4)}
    s_cselect_b32 {s(S_DW)}, {2 if 'u' in a.abl else s(S_DW)}, 2
    s_and_b32 {s(S_QT)}, {s(S_C)}, 1
    s_lshl_b32 {s(S_QT)}, {s(S_QT)}, 17
    s_mov_b32 {s(S_U2)}, 0
    ''')
    for i in range(4):
        a(f'v_add_u32 v24, {i}, v21')
        a(f'v_cmp_gt_u32 {s(S_M0+2*i,2)}, v24, v23')

def a_static(a):
    a(f"""
    v_and_b32 v20, 63, v0
    v_lshrrev_b32 v21, 4, v20                 ; g
    v_bfe_u32 v22, v20, 1, 1
    v_xor_b32 v22, 1, v22                     ; p = !(n&2)
    v_lshl_add_u32 v23, v22, 2, v21           ; uu
    v_bfe_u32 v22, v20, 2, 2
    v_and_b32 v24, 1, v20
    v_lshl_add_u32 v22, v22, 1, v24           ; t
    v_lshl_add_u32 v23, v23, 3, v22
    v_and_b32 v22, 7, v20
    v_lshlrev_b32 v23, 4, v23
    s_lshl_b32 {s(S_T0)}, {s(S_T4)}, 10
    s_add_u32 {s(S_T0)}, {s(S_T0)}, {LDS_RED2}
    v_add_u32 {v(AV_R2W)}, {s(S_T0)}, v23
    v_and_b32 v24, 15, v20
    v_lshlrev_b32 v24, 4, v24                 ; n*16
    v_lshl_add_u32 v23, v21, 10, v24
    s_lshl_b32 {s(S_T0)}, {s(S_T4)}, 8
    s_add_u32 {s(S_T0)}, {s(S_T0)}, {LDS_RED2}
    v_add_u32 {v(AV_R2R)}, {s(S_T0)}, v23
    v_lshl_add_u32 v23, v21, 9, v24
    s_lshl_b32 {s(S_T0)}, {s(S_T4)}, 12
    s_add_u32 {s(S_T0)}, {s(S_T0)}, {LDS_SEG}
    v_add_u32 {v(AV_SGW)}, {s(S_T0)}, v23
    v_bfe_u32 v23, v20, 3, 1
    v_lshlrev_b32 v23, 10, v23
    v_lshl_add_u32 v23, v22, 4, v23
    v_mov_b32 {v(AV_PST)}, v23
    s_lshl_b32 {s(S_PO)}, {s(S_C)}, 14
    s_lshl_b32 {s(S_T0)}, {s(S_T4)}, 11
    s_add_u32 {s(S_PO)}, {s(S_PO)}, {s(S_T0)}
    s_lshl_b32 {s(S_T0)}, {s(S_G)}, 7
    s_add_u32 {s(S_PO)}, {s(S_PO)}, {s(S_T0)}
    s_add_u32 {s(S_PO)}, {s(S_PO)}, {WS_PART}
    """)
    for i in range(4): a(f'v_mov_b32 {v(AV_NEG+i)}, -1')

def exp_seq(r):
    seq = []
    n = len(r)
    seq.append(f'v_max3_f32 {v(AV_MX)}, {v(r[0])}, {v(r[1])}, {v(r[2])}')
    seq.append(f'v_max3_f32 {v(AV_T)}, {v(r[3])}, {v(r[4])}, {v(r[5])}')
    rr = r[6:]; k = 0
    while len(rr) >= 2:
        d = (AV_MX, AV_T)[k & 1]; k += 1
        seq.append(f'v_max3_f32 {v(d)}, {v(d)}, {v(rr[0])}, {v(rr[1])}'); rr = rr[2:]
    seq.append(f'v_max_f32 {v(AV_MX)}, {v(AV_MX)}, {v(AV_T)}')
    seq += red_gq(AV_MX, AV_T, 'v_max_f32')
    seq.append(f'v_mul_f32 {v(AV_MX)}, {s(S_CST)}, {v(AV_MX)}')
    fm = [f'v_fma_f32 {v(x)}, {v(x)}, {s(S_CST)}, -{v(AV_MX)}' for x in r]
    ex = [f'v_exp_f32 {v(x)}, {v(x)}' for x in r]
    seq += fm[:2]
    for i in range(n):
        if i + 2 < n: seq.append(fm[i + 2])
        seq.append(ex[i])
    return seq

def packP(S, t1zero=False):
    T0, T1, TM = S, S + 4, S + 8
    o = [f'v_cvt_pk_bf16_f32 {v(T0)}, {v(T0)}, {v(T0+1)}', f'v_cvt_pk_bf16_f32 {v(T0+1)}, {v(T0+2)}, {v(T0+3)}']
    if t1zero: o += [f'v_mov_b32 {v(T0+2)}, 0', f'v_mov_b32 {v(T0+3)}, 0']
    else: o += [f'v_cvt_pk_bf16_f32 {v(T0+2)}, {v(T1)}, {v(T1+1)}', f'v_cvt_pk_bf16_f32 {v(T0+3)}, {v(T1+2)}, {v(T1+3)}']
    o += [f'v_cvt_pk_bf16_f32 {v(TM)}, {v(TM)}, {v(TM+1)}', f'v_mov_b32 {v(TM+2)}, 0',
          f'v_mov_b32 {v(TM+1)}, {v(TM)}', f'v_mov_b32 {v(TM+3)}, 0']
    return o

def pv_seq(S, qt, rc):
    SM = S + 4
    o = [f'v_mfma_f32_16x16x32_bf16 {v(SM,4)}, {v(AV_ONE,4)}, {v(S,4)}, 0',
         f'v_mfma_f32_16x16x32_bf16 {v(SM,4)}, {v(AV_HALF,4)}, {v(S+8,4)}, {v(SM,4)}']
    for ct in range(4):
        o.append(f'v_mfma_f32_16x16x32_bf16 {v(AV_O+4*ct,4)}, {v(AV_VWS+4*ct,4)}, {v(S,4)}, 0')
        o.append(f'v_mfma_f32_16x16x32_bf16 {v(AV_O+4*ct,4)}, {v(AV_VWM+2*ct,4)}, {v(S+8,4)}, {v(AV_O+4*ct,4)}')
    o.append(f'v_rcp_f32 {v(rc)}, {v(SM)}')
    o.append('s_nop 0')
    P = AV_PK
    for ct in range(4):
        for i in range(4): o.append(f'v_mul_f32 {v(AV_O+4*ct+i)}, {v(AV_O+4*ct+i)}, {v(rc)}')
        o.append(f'v_cvt_pk_bf16_f32 {v(P+2*ct)}, {v(AV_O+4*ct)}, {v(AV_O+4*ct+1)}')
        o.append(f'v_cvt_pk_bf16_f32 {v(P+2*ct+1)}, {v(AV_O+4*ct+2)}, {v(AV_O+4*ct+3)}')
    for p in range(2): o.append(f'ds_write_b128 {v(AV_SGW)}, {v(P+4*p,4)} offset:{2048*p+256*qt}')
    return o

def a_loop(a, prof, done):
    LH = a.uid('aloopH')
    if a.s1 and a.swp:
        assert a.s1 % 2 == 0 and a.lr == 3 and a.vpos and not a.kpos
        L0, L1 = a.uid('aloopL'), a.uid('aloopM')
        a_body(a, Prof(prof), done, L0, True, None, L1)
        a_body(a, Prof(prof), done, L1, True, LH, L0, 1)
    elif a.s1: a_body(a, Prof(prof), done, a.uid('aloopL'), True, LH)
    a.label('ct_aH')
    a_body(a, Prof(prof), done, LH, False, None)

def a_body(a, pf, done, L, light, nxt, other=None, ph=0):
    Lr = L + '_rq'
    AV_KS, AV_TB = (128, 96) if ph else (96, 128)
    swp = other is not None
    SA = AV_S; SB = AV_X + 4
    if a.al: a.raw(f'.p2align {a.al}')
    for i in range(a.aloa): a('s_nop 0')
    a.label(L)
    pf.stamp(a, 'top')
    ring(a, S_QLD, 0, 18, S_QO)
    a(f's_add_u32 {s(S_QLD2)}, {s(S_QLD)}, 4096')
    ring(a, S_PSTC, 0, PSLOT, S_PO)
    ring(a, S_PRS, 2, PSLOT, S_PO)
    a(f'v_mov_b32 {v(AV_FV)}, {s(S_S)}')
    vw = vw_list(AV_TB)
    kr = [f'ds_read_b128 {v(AV_KS+4*i,4)}, {v(AV_LB)} offset:{1024*i}' for i in range(8)]
    vr = [f'ds_read_b128 {v(AV_TB+4*(kt*4+u),4)}, {v(AV_LB)} offset:{8192+1024*(kt*4+u)}' for u in range(4) for kt in range(2)]
    zo = [f'v_mov_b32 {v(AV_O+i)}, 0' for i in range(16)]
    unit = light and a.s0 < a.s1
    def part2(tag, AV_TB=AV_TB):
        a(f's_cmp_eq_u32 {s(S_U2)}, 0')
        a(f's_cbranch_scc1 {L}_{tag}')
        a(f's_mov_b32 {s(S_U2)}, 0')
        for p in range(4):
            for Tt in range(2):
                t = 2 * p + Tt
                for kt in range(2):
                    a(f'ds_read_b64_tr_b16 {v(AV_TB+4*t+2*kt,2)}, {v(AV_TRV)} offset:{4096*kt + 1024*p + 8*Tt}')
                a(f'ds_read_b64_tr_b16 {v(AV_X+2*t,2)}, {v(AV_TRM)} offset:{512*p + 8*Tt}')
        a(f'v_mov_b32 {v(AV_FT)}, 0xff61b1e6')
        a(f's_cmp_eq_u32 {s(S_QT)}, 0')
        for i in range(4):
            a(f's_cselect_b64 vcc, {s(S_M0+2*i,2)}, 0')
            a(f'v_cndmask_b32 {v(SA+i)}, {v(SA+i)}, {v(AV_FT)}, vcc')
            a(f's_cselect_b64 vcc, -1, {s(S_M0+2*i,2)}')
            a(f'v_cndmask_b32 {v(SA+4+i)}, {v(SA+4+i)}, {v(AV_FT)}, vcc')
        for x in exp_seq(list(range(SA, SA + 10))): a(x)
        pk = packP(SA); pk[6] = f'v_mov_b32 {v(SA+9)}, 0'
        for x in pk: a(x)
        a('s_waitcnt lgkmcnt(0)')
        a('s_nop 0')
        SM = SA + 4
        a(f'v_mfma_f32_16x16x32_bf16 {v(SM,4)}, {v(AV_ONE,4)}, {v(SA,4)}, 0')
        a(f'v_mfma_f32_16x16x32_bf16 {v(SM,4)}, {v(AV_ONE,4)}, {v(SA+8,4)}, {v(SM,4)}')
        oa = lambda t: (AV_O if t < 4 else AV_Y - 16) + 4 * t
        for t in range(8):
            a(f'v_mfma_f32_16x16x32_bf16 {v(oa(t),4)}, {v(AV_TB+4*t,4)}, {v(SA,4)}, 0')
            a(f'v_mfma_f32_16x16x32_bf16 {v(oa(t),4)}, {v(AV_X+2*t,4)}, {v(SA+8,4)}, {v(oa(t),4)}')
        a(f'v_rcp_f32 {v(AV_T)}, {v(SM)}')
        a('s_nop 0')
        for p in range(4):
            o = oa(2 * p)
            for i in range(8): a(f'v_mul_f32 {v(o+i)}, {v(o+i)}, {v(AV_T)}')
            for d in range(4): a(f'v_cvt_pk_bf16_f32 {v(o+d)}, {v(o+2*d)}, {v(o+2*d+1)}')
            a(f'ds_write_b128 {v(AV_L16)}, {v(o,4)} offset:{LDS_SEG + 1024*p}')
        a.label(f'{L}_{tag}')
    if light and a.vpos: a(f's_waitcnt vmcnt({0 if swp else 8 - a.ksp})')
    if unit:
        assert a.lr == 3
        a(f's_and_b32 {s(S_DU)}, {s(S_S)}, 1')
        a(f's_cmp_lt_u32 {s(S_S)}, {a.s0}')
        a(f's_cselect_b32 {s(S_DU)}, 3, {s(S_DU)}')
        a(f's_cmp_lg_u32 {s(S_DU)}, {s(S_DW)}')
        a(f's_cbranch_scc1 {L}_nd0')
        for i in range(8): a(f'ds_write_b128 {v(AV_LB)}, {v(AV_TB+4*i,4)} offset:{1024*i}')
        a.label(L + '_nd0')
    if light:
        if not a.lr & 1:
            for x in vr: a(x)
            for u in range(4): vw[8*u] = f's_waitcnt lgkmcnt({6 - 2*u})\n' + vw[8*u]
        for x in vw: a(x)
        if unit:
            a('s_nop 2')
            for x in vw_pack(): a(x)
            if not a.p2e: part2('p2a')
            for x in zo: a(x)
        else:
            for x in zo: a(x)
            for x in vw_pack(): a(x)
        if not a.lr & 2:
            flag_wait(a, L + '_wkv', AV_FLGW, 16, AV_FT, S_T2, sl=a.kvsl, one=True)
            for x in kr: a(x)
        pf.stamp(a, 'kv', -3)
    else:
        flag_wait(a, L + '_wkv', AV_FLGW, 16, AV_FT, S_T2, sl=a.kvsl, one=True)
        pf.stamp(a, 'kv', -3)
        for x in vr + ([] if a.hk else kr): a(x)
        for u in range(4): vw[8*u] = f's_waitcnt lgkmcnt({(6 if a.hk else 14) - 2*u})\n' + vw[8*u]
        for x in vw[:a.vwp]: a(x)
    vp = light and a.vpos
    a('s_setprio 2')
    if not vp or swp: flag_wait(a, L + '_wm', AV_FLGW, 32, AV_FT, S_T2, sl=a.kvsl, one=True)
    if light and a.scb < 64 and not a.xpos:
        a(f's_sub_u32 {s(S_T0)}, {s(S_S)}, {a.sc0}')
        a(f's_cmp_ge_u32 {s(S_T0)}, {2 * (64 - a.scb)}')
        a(f's_cbranch_scc1 {L}_nxd')
        if vp and not swp: flag_wait(a, L + '_wm2', AV_FLGW, 32, AV_FT, S_T2, sl=a.kvsl, one=True)
        for hf in range(2):
            a(f's_add_u32 m0, {s(S_XB)}, {4096*hf}')
            a(f's_add_u32 {s(S_T0)}, {s(S_XG)}, {4096*hf}')
            for u in range(4): a(f'buffer_load_dwordx4 {v(AV_L16)}, {s(SRD_WS,4)}, {s(S_T0)} offen offset:{1024*u} sc1 lds')
        a(f's_xor_b32 {s(S_XB)}, {s(S_XB)}, {s(S_XBX)}')
        a(f's_add_u32 {s(S_XG)}, {s(S_XG)}, 32768')
        a.label(L + '_nxd')
    pf.stamp(a, 'fm', -3)
    if unit:
        a(f's_cmp_lg_u32 {s(S_DU)}, {s(S_DW)}')
        a(f's_cbranch_scc1 {L}_nd1')
        a(f's_add_u32 m0, {s(S_KL)}, 16384')
        a(f's_add_u32 {s(S_T0)}, {s(S_KG)}, {s(S_QT)}')
        a(f's_add_u32 {s(S_T0)}, {s(S_T0)}, {WS_QS}')
        for u in range(4): a(f'buffer_load_dwordx4 {v(AV_L16)}, {s(SRD_WS,4)}, {s(S_T0)} offen offset:{1024*u} sc1 lds')
        a.label(L + '_nd1')
    if light: a(f's_add_u32 {s(S_KG)}, {s(S_KG)}, 262144')
    if swp:
        for x in reg_list(a, 0, AV_TB, S_T0): a(x)
    if ('v' if light else 'q') not in a.abl and not vp:
        for x in (reg_list(a, 1, AV_TB, S_T0) if light and a.lr & 1 else dma_list(a, 1 if light else 2, AV_L16, S_T0)): a(x)
    if not light: a(f's_add_u32 {s(S_KG)}, {s(S_KG)}, 262144')
    if light: a('s_waitcnt lgkmcnt(0)')
    pf.stamp(a, 'b1rdy', -3)
    a('s_barrier')
    pf.stamp(a, 'b1')
    qr = [f'ds_read_b128 {v(AV_TB+4*i,4)}, {v(AV_LB)} offset:{16384+1024*i}' for i in range(8)]
    if not light:
        for x in vw[a.vwp:]: a(x)
        a('s_nop 2')
        for x in vw_pack(): a(x)
        for x in zo: a(x)
    if a.qkf: a('s_barrier')
    qd = a.qdl if light else a.qd
    if qd: a(f's_sleep {qd}')
    a('s_waitcnt lgkmcnt(0)')
    pf.stamp(a, 'poll')
    qm = [f'buffer_load_dwordx4 {v(AV_Y+4*u,4)}, {v(AV_L16)}, {s(SRD_WS,4)}, {s(S_QLD)} offen offset:{1024*u} sc1' for u in range(4)]
    qm += [f'buffer_load_dwordx4 {v(AV_X+4*u2,4)}, {v(AV_L16)}, {s(SRD_WS,4)}, {s(S_QLD2)} offen offset:{1024*u2} sc1' for u2 in range(2)]
    qreg = [[AV_Y + 4 * u + i for i in (0, 2)] for u in range(4)]
    vreg = [AV_X + i for i in range(0, 8, 2)]
    for x in qm[:4]: a(x)
    if a.vdel: a(f's_sleep {a.vdel}' if a.vdel > 0 else f's_nop {-a.vdel}')
    for x in qm[4:]: a(x)
    def crit_s(check, first=False):
        for u in range(4):
            if check: a(f's_waitcnt vmcnt({5-u})')
            if first and u == 0: pf.stamp(a, 'z0')
            z = v(AV_Y + 4 * u, 4)
            for kt in range(2):
                d = SA + 4 * kt
                a(f'v_mfma_f32_16x16x32_bf16 {v(d,4)}, {v(AV_KS+(kt*4+u)*4,4)}, {z}, {"0" if u==0 else v(d,4)}')
            if check:
                c = chk(qreg[u], AV_T, f'{Lr}_{u}')
                for x in c[:-1]: a(x)
            a(f'v_mfma_f32_16x16x32_bf16 {v(SA+8,4)}, {z}, {z}, {"0" if u==0 else v(SA+8,4)}')
            if check: a(c[-1])
    crit_s(True, True)
    a.label(L + '_sdone')
    pf.stamp(a, 'sdone')
    if light: a('s_nop 1')
    else:
        a(f's_cmp_eq_u32 {s(S_S)}, {a.last}')
        a(f's_cbranch_scc1 {L}_lsk')
    vwm = [f'v_smfmac_f32_16x16x64_bf16 {v(AV_O+4*ct,4)}, {v(AV_X+4*c2,4)}, {v(wo(2*c2,ct),8)}, {v(AV_IDX)}' for c2 in range(2) for ct in (0, 2, 1, 3)]
    vc = chk(vreg, AV_FT, f'{Lr}_v')
    M, T = v(AV_MX), v(AV_T)
    a(f"""
    ds_write_b32 {v(AV_FLGW)}, {v(AV_FV)}
    s_nop 0
    v_max3_f32 {M}, {v(SA)}, {v(SA+1)}, {v(SA+2)}
    v_max3_f32 {T}, {v(SA+3)}, {v(SA+4)}, {v(SA+5)}
    v_max3_f32 {M}, {M}, {v(SA+6)}, {v(SA+7)}
    v_max3_f32 {T}, {T}, {v(SA+8)}, {v(SA+9)}
    v_max_f32 {M}, {M}, {T}
    v_mov_b32 {T}, {M}
    s_nop 1
    v_permlane16_swap_b32 {T}, {M}
    v_max_f32 {M}, {M}, {T}
    v_mov_b32 {T}, {M}
    s_waitcnt vmcnt(0)
    {vc[0]}
    v_permlane32_swap_b32 {T}, {M}
    v_max_f32 {M}, {M}, {T}
    {vc[1]}
    v_mul_f32 {M}, {s(S_CST)}, {M}
    {vc[2]}
    """)
    r = list(range(SA, SA + 10))
    fm = [f'v_fma_f32 {v(x)}, {v(x)}, {s(S_CST)}, -{M}' for x in r]
    ex = [f'v_exp_f32 {v(x)}, {v(x)}' for x in r]
    a(fm[0]); a(fm[1])
    a(vc[3])
    a.label(L + '_vok')
    pf.stamp(a, 'max', 3)
    vwc = []
    for ct in range(4):
        d = AV_O + 4 * ct
        vwc += [f'v_cvt_pk_bf16_f32 {v(AV_VWM+2*ct)}, {v(d)}, {v(d+1)}', f'v_cvt_pk_bf16_f32 {v(AV_VWM+2*ct+1)}, {v(d+2)}, {v(d+3)}']
    SM = SA + 4
    def mid(kin, st):
        a(vwm[0])
        for i in range(10):
            if i + 2 < 10: a(fm[i + 2])
            a(ex[i])
            if i + 1 < 8: a(vwm[i + 1])
            if kin and (a.kpos + a.vpos == 1 or i & 1): a(kin.pop(0))
        if st: pf.stamp(a, 'exp', 3)
        pk = packP(SA)
        for x in pk[:4]: a(x)
        mA = f'v_mfma_f32_16x16x32_bf16 {v(SM,4)}, {v(AV_ONE,4)}, {v(SA,4)}, 0'
        mB = f'v_mfma_f32_16x16x32_bf16 {v(SM,4)}, {v(AV_HALF,4)}, {v(SA+8,4)}, {v(SM,4)}'
        for x in pk[4:6]: a(x)
        a(mA)
        for x in pk[6:]: a(x)
        for n, ct in enumerate((0, 2, 1, 3)):
            a(vwc[2*ct]); a(vwc[2*ct+1])
            if n == 0: a(mB)
            a(f'v_mfma_f32_16x16x32_bf16 {v(AV_O+4*ct,4)}, {v(AV_VWS+4*ct,4)}, {v(SA,4)}, 0')
            if kin: a(kin.pop(0))
        assert not kin
    kp = light and a.lr & 2 and a.kpos and 'k' not in a.abl
    assert not (kp and vp)
    ks = a.ksp if vp and not swp else 0
    if (kp or swp or ks) and unit:
        a(f's_cmp_eq_u32 {s(S_DU)}, {s(S_DW)}')
        a(f's_cbranch_scc1 {L}_midD')
    mid(reg_list(a, 0, AV_KS, S_T0) if kp else reg_list(a, 1, AV_KS if swp else AV_TB, S_T0) + reg_list(a, 0, AV_KS, S_T2)[:ks] if vp else [], True)
    a.label(L + '_midE')
    a(f's_mov_b64 vcc, {s(S_QM,2)}')
    a(f'v_rcp_f32 {T}, {v(SM)}')
    for ct in (0, 2, 1, 3):
        a(f'v_mfma_f32_16x16x32_bf16 {v(AV_O+4*ct,4)}, {v(AV_VWM+2*ct,4)}, {v(SA+8,4)}, {v(AV_O+4*ct,4)}')
    pf.stamp(a, 'pv', 3)
    qp = 'quad_perm:[2,3,2,3] row_mask:0xf bank_mask:0xf'
    a(f'v_mov_b32_dpp {T}, {T} {qp}')
    a('s_nop 4')
    for h in range(2):
        for i in range(4*h, 4*h+4): a(f'v_cndmask_b32_dpp {v(AV_O+i)}, {v(AV_O+8+i)}, {v(AV_O+i)}, vcc {qp}')
    for i in range(8): a(f'v_mul_f32 {v(AV_O+i)}, {v(AV_O+i)}, {T}')
    for d in range(4): a(f'v_cvt_pk_bf16_f32 {v(AV_PK+d)}, {v(AV_O+2*d)}, {v(AV_O+2*d+1)}')
    a(f'ds_write_b128 {v(AV_R2W)}, {v(AV_PK,4)}')
    a('s_waitcnt lgkmcnt(0)')
    pf.stamp(a, 'b2rdy')
    a('s_barrier')
    pf.stamp(a, 'b2')
    a(f'ds_read_b128 {v(AV_PK+4,4)}, {v(AV_R2R)}')
    a('s_waitcnt lgkmcnt(0)')
    a(f'v_mfma_f32_16x16x32_bf16 {v(AV_O,4)}, {v(AV_SEL,4)}, {v(AV_PK+4,4)}, 0')
    a('s_nop 7')
    a(f'v_cvt_pk_bf16_f32 {v(AV_PK)}, {v(AV_O)}, {v(AV_O+1)}')
    a(f'v_cvt_pk_bf16_f32 {v(AV_PK+1)}, {v(AV_O+2)}, {v(AV_O+3)}')
    a('s_nop 0')
    a(f'v_permlane16_swap_b32 {v(AV_PK)}, {v(AV_PK+2)}')
    a(f'v_permlane16_swap_b32 {v(AV_PK+1)}, {v(AV_PK+3)}')
    a('s_mov_b64 exec, 0xffff')
    a(f'v_min_u32 {v(AV_PK)}, -2, {v(AV_PK)}')
    a(f'buffer_store_dwordx4 {v(AV_PK,4)}, {v(AV_PST)}, {s(SRD_WS,4)}, {s(S_PSTC)} offen sc1')
    a('s_setprio 0')
    pf.stamp(a, 'ppub')
    a(f'buffer_store_dwordx4 {v(AV_NEG,4)}, {v(AV_PST)}, {s(SRD_WS,4)}, {s(S_PRS)} offen sc1')
    a('s_mov_b64 exec, -1')
    l = a.uid('pg')
    if a.pgp: a(f's_branch {l}')
    a(f's_cmp_lg_u32 {s(S_PRG)}, 0')
    a(f's_cbranch_scc1 {l}')
    a(f's_sub_u32 {s(S_T4)}, {s(S_S)}, 1')
    a(f's_cbranch_scc1 {l}')
    a(f's_and_b32 {s(S_T0)}, {s(S_T4)}, 3')
    a(f's_cmp_ge_u32 {s(S_S)}, 58')
    a(f's_cselect_b32 {s(S_T0)}, 0, {s(S_T0)}')
    a(f's_cmp_lg_u32 {s(S_T0)}, 0')
    a(f's_cbranch_scc1 {l}')
    a(f'v_mov_b32 {v(AV_T)}, {s(S_T4)}')
    a('s_mov_b64 exec, 1')
    a(f'buffer_store_dword {v(AV_T)}, off, {s(SRD_WS,4)}, {s(S_CS)} sc1')
    a('s_mov_b64 exec, -1')
    a.label(l)
    if unit:
        a(f's_cmp_lg_u32 {s(S_DU)}, {s(S_DW)}')
        a(f's_cbranch_scc1 {L}_nd2')
        for u in range(4): a(f'ds_read_b128 {v(AV_O+4*u,4)}, {v(AV_LB)} offset:{16384+1024*u}')
        for c2 in range(2):
            for i in range(4): a(f'ds_write_b32 {v(AV_VMW)}, {v(AV_X+4*c2+i)} offset:{1024*c2 + 128*(i>>1) + 8*(i&1)}')
        a(f's_mov_b32 {s(S_U2)}, 1')
        for u in range(4):
            a(f's_waitcnt lgkmcnt({8+3-u})')
            q = v(AV_O + 4 * u, 4)
            for kt in range(2): a(f'v_mfma_f32_16x16x32_bf16 {v(SA+4*kt,4)}, {v(AV_KS+(kt*4+u)*4,4)}, {q}, {"0" if u==0 else v(SA+4*kt,4)}')
            a(f'v_mfma_f32_16x16x32_bf16 {v(SA+8,4)}, {v(xk(u),4)}, {q}, {"0" if u==0 else v(SA+8,4)}')
        a('s_waitcnt lgkmcnt(0)')
        a('s_nop 3')
        if a.p2e:
            assert not (a.kpos or swp or ks)
            a('s_nop 3')
            part2('p2e', AV_KS)
            a('s_nop 3')
        if a.kpos or swp:
            for x in reg_list(a, 1 if swp else 0, AV_KS, S_T0): a(x)
        if ks:
            for x in reg_list(a, 0, AV_KS, S_T2)[:ks]: a(x)
        a.label(L + '_nd2')
    if light:
        if a.lr & 2 and 'k' not in a.abl and not a.kpos and not swp:
            if a.kdl: a(f's_sleep {a.kdl}')
            assert ks in (0, 4)
            for x in reg_list(a, 0, AV_KS, S_T2)[ks:]: a(x)
        pf.stamp(a, 'bg')
        pf.flush(a, AV_MX, 'A')
        a(f's_add_u32 {s(S_S)}, {s(S_S)}, 1')
        if swp and not ph: a(f's_branch {other}')
        if swp: AV_KS, AV_TB = AV_TB, AV_KS
        a(f's_cmp_lt_u32 {s(S_S)}, {a.s1}')
        a(f's_cbranch_scc1 {other or L}')
        a('s_waitcnt vmcnt(0)')
        for i in range(8):
            if a.lr & 1: a(f'ds_write_b128 {v(AV_LB)}, {v(AV_TB+4*i,4)} offset:{8192+1024*i}')
        if unit and not a.p2e:
            a('s_waitcnt lgkmcnt(0)')
            part2('p2b', AV_TB)
        for i in range(8):
            if a.lr & 2 and not a.hk: a(f'ds_write_b128 {v(AV_LB)}, {v(AV_KS+4*i,4)} offset:{1024*i}')
        a('s_waitcnt lgkmcnt(0)')
        a(f's_branch {nxt or L}')
        if swp: AV_KS, AV_TB = AV_TB, AV_KS
    else:
        a.label(L + '_lskb')
        a(f'v_mov_b32 {v(AV_X)}, 0xff61b1e6')
        def s_mf(qt, S):
            m = []
            for u in range(4):
                q = v(AV_TB + (qt * 4 + u) * 4, 4)
                for kt in range(qt + 1):
                    d = S + 4 * kt
                    m.append(f'v_mfma_f32_16x16x32_bf16 {v(d,4)}, {v(AV_KS+(kt*4+u)*4,4)}, {q}, {"0" if u==0 else v(d,4)}')
                m.append(f'v_mfma_f32_16x16x32_bf16 {v(S+8,4)}, {v(xk(u),4)}, {q}, {"0" if u==0 else v(S+8,4)}')
            return m
        bg = qr + ['s_waitcnt lgkmcnt(4)'] + s_mf(0, SA) + ['s_waitcnt lgkmcnt(0)'] + s_mf(1, SB)
        seq = [f'v_cndmask_b32 {v(SA+i)}, {v(SA+i)}, {v(AV_X)}, {s(S_M0+2*i,2)}' for i in range(4)]
        seq += exp_seq([SA + i for i in range(4)] + [SA + 8, SA + 9]) + packP(SA, True)
        if a.hk: seq = merge_fill(seq, reg_list(a, 0, AV_KS, S_T0), every=a.hk, start=3)
        bg += seq + ['s_nop 1']
        pv0 = pv_seq(SA, 0, AV_X + 2)
        seq = [f'v_cndmask_b32 {v(SB+4+i)}, {v(SB+4+i)}, {v(AV_X)}, {s(S_M0+2*i,2)}' for i in range(4)]
        seq += exp_seq(list(range(SB, SB + 10))) + packP(SB)
        seq = merge_fill(seq, pv0[:10], every=2, start=0)
        bg += seq + pv0[10:] + pv_seq(SB, 1, AV_T)
        if 'b' in a.abl: bg = []
        for x in bg: a(x)
        a(f'v_xor_b32 {v(AV_SGW)}, 0x4000, {v(AV_SGW)}')
        pf.stamp(a, 'bg')
        pf.flush(a, AV_MX, 'A')
        a(f's_add_u32 {s(S_S)}, {s(S_S)}, 1')
        a(f's_cmp_le_u32 {s(S_S)}, {a.last}')
        a(f's_cbranch_scc1 {L}')
        a('s_waitcnt lgkmcnt(0)')
        a('s_barrier')
        a('s_waitcnt vmcnt(0)')
        a(f's_branch {done}')
    if (kp or swp or ks) and unit:
        a.label(L + '_midD')
        mid(reg_list(a, 1, AV_TB, S_T0) if ks else [], False)
        a(f's_branch {L}_midE')
    for i in range(4):
        spin_block(a, f'{Lr}_{i}', qm[i:], qreg[i], AV_T, L + '_again', L + '_nochk')
    a.label(L + '_again')
    crit_s(True)
    a(f's_branch {L}_sdone')
    def vretry(lab, ok):
        a.label(lab)
        a(f's_sub_u32 {s(S_TO)}, {s(S_TO)}, 1')
        a(f's_cbranch_scc1 {lab}g')
        for x in qm[4:]: a(x)
        a('s_waitcnt vmcnt(0)')
        for x in chk(vreg, AV_FT, lab): a(x)
        a(f's_branch {ok}')
        a.label(lab + 'g')
        a(f's_mov_b32 {s(S_TO)}, 0')
        a(f's_branch {ok}')
    vretry(f'{Lr}_v', L + '_vok')
    a.label(L + '_nochk')
    crit_s(False)
    a('s_nop 1')
    a(f's_branch {L}_sdone')
    if light: return
    vretry(f'{Lr}_v2', L + '_lsk3')
    a.label('ct_tail')
    a.label(f'{L}_lsk')
    a(f's_cmp_lg_u32 {s(S_PRG)}, 0')
    a(f's_cbranch_scc1 {L}_lsk2')
    a(f'v_mov_b32 {v(AV_T)}, {a.last - 1}')
    a('s_mov_b64 exec, 1')
    a(f'buffer_store_dword {v(AV_T)}, off, {s(SRD_WS,4)}, {s(S_CS)} sc1')
    a('s_mov_b64 exec, -1')
    a.label(f'{L}_lsk2')
    a('s_waitcnt vmcnt(0)')
    for x in chk(vreg, AV_FT, f'{Lr}_v2'): a(x)
    a.label(f'{L}_lsk3')
    for x in vwm: a(x)
    a('s_nop 7')
    a('s_nop 1')
    for x in vwc: a(x)
    a('s_waitcnt lgkmcnt(0)')
    a(f's_branch {L}_lskb')

def emit_chain(a, done, prof=False):
    if prof: a('s_memrealtime s[94:95]')
    a(f"""
    s_lshl_b32 {s(S_ID)}, {s(S_X)}, 5
    s_add_u32 {s(S_ID)}, {s(S_ID)}, {s(S_I)}
    s_lshr_b32 {s(S_H)}, {s(S_ID)}, 2
    s_lshr_b32 {s(S_G)}, {s(S_ID)}, 4
    s_and_b32 {s(S_C)}, {s(S_I)}, 15
    s_and_b32 {s(S_J)}, {s(S_I)}, 3
    s_mov_b32 {s(S_S)}, 0
    s_mov_b32 {s(S_TO)}, {TIMEOUT}
    s_mov_b32 s100, {TIMEOUT}
    s_getreg_b32 {s(S_X1)}, hwreg(HW_REG_XCC_ID)
    s_and_b32 {s(S_X1)}, {s(S_X1)}, 15
    s_mul_i32 {s(S_T2)}, {s(S_X1)}, {s(S_X1)}
    s_lshl_b32 {s(S_T2)}, {s(S_T2)}, 18
    s_lshl_b32 {s(S_X1)}, {s(S_X1)}, 8
    s_add_u32 {s(S_X1)}, {s(S_X1)}, {s(S_T2)}
    s_add_u32 {s(S_X1)}, {s(S_X1)}, 1
    s_lshl_b32 {s(S_CQG)}, {s(S_G)}, 4
    s_add_u32 {s(S_CQG)}, {s(S_CQG)}, {CQ_TAB}
    s_and_b32 {s(S_T4)}, {s(S_W)}, 3
    s_mul_i32 {s(S_KL)}, {s(S_T4)}, 24576
    s_add_u32 {s(S_KL)}, {s(S_KL)}, {LDS_BULK}
    s_lshl_b32 {s(S_KG)}, {s(S_G)}, 2
    s_add_u32 {s(S_KG)}, {s(S_KG)}, {s(S_T4)}
    s_lshl_b32 {s(S_KG)}, {s(S_KG)}, 12
    s_add_u32 {s(S_XB)}, {s(S_KL)}, 8192
    s_bfe_u32 {s(S_T0)}, {s(S_C)}, 0x20001
    s_cmp_eq_u32 {s(S_T0)}, {s(S_T4)}
    s_cselect_b32 {s(S_XBX)}, 20480, {s(S_KL)}
    s_xor_b32 {s(S_XBX)}, {s(S_XBX)}, {s(S_XB)}
    s_lshl_b32 {s(S_XG)}, {s(S_T4)}, 13
    s_add_u32 {s(S_XG)}, {s(S_XG)}, {WS_XN2 + a.scb * 65536}
    s_lshl_b32 {s(S_SCO)}, {s(S_T4)}, 24
    s_lshl_b32 {s(S_T0)}, {s(S_ID)}, 10
    s_add_u32 {s(S_SCO)}, {s(S_SCO)}, {s(S_T0)}
    s_add_u32 {s(S_SCO)}, {s(S_SCO)}, {WS_QS + a.scb * 262144}
    s_cmp_ge_u32 {s(S_W)}, 4
    s_cbranch_scc1 ch_a_pro
    s_add_u32 {s(S_KG)}, {s(S_KG)}, 262144
    s_lshl_b32 {s(S_QO)}, {s(S_H)}, 13
    s_add_u32 {s(S_QO)}, {s(S_QO)}, {WS_QKV}
    s_lshl_b32 {s(S_T0)}, {s(S_I)}, 1
    s_and_b32 {s(S_T1)}, {s(S_W)}, 1
    s_add_u32 {s(S_T0)}, {s(S_T0)}, {s(S_T1)}
    s_lshl_b32 {s(S_T0)}, {s(S_T0)}, 1       ; first u
    s_cmp_lt_u32 {s(S_W)}, 2
    s_cselect_b32 {s(S_MEX)}, 0xff, 0
    s_mov_b32 {s(S_MEX+1)}, {s(S_MEX)}
    s_lshr_b32 {s(S_T1)}, {s(S_T0)}, 1
    s_and_b32 {s(S_T2)}, {s(S_T0)}, 1
    s_lshl_b32 {s(S_T3)}, {s(S_X)}, 14
    s_add_u32 {s(S_T3)}, {s(S_T3)}, {WS_MEM}
    s_lshl_b32 {s(S_MO)}, {s(S_W)}, 12
    s_add_u32 {s(S_MO)}, {s(S_MO)}, {s(S_T3)}
    s_lshl_b32 {s(S_MSO)}, {s(S_T1)}, 8
    s_add_u32 {s(S_MSO)}, {s(S_MSO)}, {s(S_T3)}
    s_lshl_b32 {s(S_T3)}, {s(S_T2)}, 5
    s_add_u32 {s(S_MSO)}, {s(S_MSO)}, {s(S_T3)}
    s_lshr_b32 {s(S_PO)}, {s(S_T0)}, 3
    s_lshl_b32 {s(S_PO)}, {s(S_PO)}, 14
    s_and_b32 {s(S_T3)}, {s(S_T0)}, 7
    s_lshl_b32 {s(S_T3)}, {s(S_T3)}, 10
    s_add_u32 {s(S_PO)}, {s(S_PO)}, {s(S_T3)}
    s_add_u32 {s(S_PO)}, {s(S_PO)}, {WS_PART}
    s_lshl_b32 {s(S_SP)}, {s(S_G)}, 22
    s_lshl_b32 {s(S_T3)}, {s(S_C)}, 11
    s_add_u32 {s(S_SP)}, {s(S_SP)}, {s(S_T3)}
    s_lshl_b32 {s(S_T3)}, {s(S_W)}, 9
    s_add_u32 {s(S_SP)}, {s(S_SP)}, {s(S_T3)}
    s_add_u32 {s(S_SP)}, {s(S_SP)}, {WS_SP + a.s1 * 65536}
    s_lshl_b32 {s(S_KMX)}, {s(S_H)}, 13
    s_add_u32 {s(S_KMX)}, {s(S_KMX)}, {WS_KM}
    s_mov_b32 {s(S_QST)}, {s(S_QO)}
    s_mov_b32 {s(S_SP0)}, {s(S_SP)}
    s_mov_b32 {s(S_OK)}, 2
    s_mov_b32 {s(S_RTG)}, 0
    s_mov_b32 {s(S_OF)}, 0
    s_bfe_u32 {s(S_T0)}, {s(S_C)}, 0x20001
    s_lshl_b32 {s(S_OB)}, {s(S_G)}, 2
    s_add_u32 {s(S_OB)}, {s(S_OB)}, {s(S_T0)}
    s_lshl_b32 {s(S_OB)}, {s(S_OB)}, 2
    s_add_u32 {s(S_OB)}, {s(S_OB)}, {s(S_W)}
    s_lshl_b32 {s(S_OB)}, {s(S_OB)}, 10
    s_and_b32 {s(S_T0)}, {s(S_C)}, 1
    s_lshl_b32 {s(S_T0)}, {s(S_T0)}, 17
    s_add_u32 {s(S_OB)}, {s(S_OB)}, {s(S_T0)}
    s_add_u32 {s(S_OB)}, {s(S_OB)}, {WS_OO - 262144}
    s_mov_b32 {s(S_TCH)}, {3 * 262144}
    """)
    p_prologue(a)
    for i in range(4): a(f'v_mov_b32 {v(52+i)}, -1')
    for sg in range(64 - NTAIL, 64):
        a(f's_add_u32 {s(S_T0)}, {s(S_SP)}, {(sg - a.s1)*65536}')
        a(f'buffer_store_dwordx4 v[52:55], {v(PV_SPS)}, {s(SRD_WS,4)}, {s(S_T0)} offen sc1')
    if prof: a('s_memrealtime s[96:97]')
    a(f's_lshl_b32 {s(S_X1)}, {s(S_X1)}, 5')
    a('s_barrier')
    a(f'ds_write_b32 {v(PV_FLGW)}, {v(PV_NEG)}')
    a(f'ds_write_b32 {v(PV_FLGW)}, {v(PV_NEG)} offset:16')
    a(f'ds_write_b32 {v(PV_FLGW)}, {v(PV_NEG)} offset:32')
    a(f'ds_write_b32 {v(PV_FLGW)}, {v(PV_NEG)} offset:48')
    a(f'v_mov_b32 {v(PV_RDY)}, 12')
    a(f"""
    v_mov_b32 v56, {LDS_PUB}
    s_waitcnt lgkmcnt(0)
    s_barrier
    ds_read_b64 v[32:33], v56
    s_waitcnt lgkmcnt(0)
    v_cmp_ne_u32 vcc, {s(S_X1)}, v32
    s_setprio 3
    v_readfirstlane_b32 {s(S_T0)}, v33
    s_add_u32 {s(S_PO)}, {s(S_PO)}, {s(S_T0)}
    s_cbranch_vccnz ch_p_slow
    """)
    if prof:
        a(f"""
        v_mov_b32 v33, {s(S_T0)}
        s_memrealtime s[98:99]
        s_waitcnt lgkmcnt(0)
        s_lshl_b32 {s(S_T0)}, {s(S_ID)}, 3
        s_add_u32 {s(S_T0)}, {s(S_T0)}, {s(S_W)}
        s_lshl_b32 {s(S_T0)}, {s(S_T0)}, 12
        s_add_u32 {s(S_T0)}, {s(S_T0)}, {WS_YP + 63*64}
        v_mov_b32 v56, s94
        v_mov_b32 v57, s96
        v_mov_b32 v32, s98
        s_mov_b64 exec, 1
        buffer_store_dwordx2 v[56:57], off, {s(SRD_WS,4)}, {s(S_T0)}
        buffer_store_dwordx2 v[32:33], off, {s(SRD_WS,4)}, {s(S_T0)} offset:8
        s_mov_b64 exec, -1
        s_nop 1
        """)
    if a.force_slow: a('s_branch ch_p_slow')
    p_loop(a, '', prof, done)
    a.label('ch_p_slow')
    p_loop(a, ' sc1', prof, done)
    a.label('ch_a_pro')
    a(f"""
    s_sub_u32 {s(S_T4)}, {s(S_W)}, 4
    s_lshl_b32 {s(S_H)}, {s(S_G)}, 2
    s_add_u32 {s(S_H)}, {s(S_H)}, {s(S_T4)}
    s_lshl_b32 {s(S_QO)}, {s(S_H)}, 13
    s_add_u32 {s(S_QO)}, {s(S_QO)}, {WS_QKV}
    """)
    if a.stouch:
        a(f"""
        s_min_u32 {s(S_T3)}, {s(S_T4)}, 2
        s_lshl_b32 {s(S_T1)}, {s(S_T3)}, 3
        s_add_u32 {s(S_T1)}, {s(S_T1)}, {KA_WQ}
        s_load_dwordx2 {s(SRD_T,2)}, s[0:1], {s(S_T1)}
        s_mov_b32 {s(SRD_T+2)}, {8*MB}
        s_mov_b32 {s(SRD_T+3)}, {SRD3}
        v_and_b32 v20, 63, v0
        v_lshlrev_b32 v21, 13, v20
        s_lshl_b32 {s(S_T0)}, {s(S_C)}, 19
        s_lshl_b32 {s(S_T1)}, {s(S_G)}, 10
        s_add_u32 {s(S_T0)}, {s(S_T0)}, {s(S_T1)}
        s_waitcnt lgkmcnt(0)
        buffer_load_dword v26, v21, {s(SRD_T,4)}, {s(S_T0)} offen offset:384
        """)
    a_static(a)
    a(f"""
    v_lshlrev_b32 v24, 4, v0
    s_lshl_b32 {s(S_T0)}, {s(S_ID)}, 13
    s_add_u32 {s(S_T2)}, {s(S_T0)}, {WS_PART - 4096}
    s_add_u32 {s(S_T0)}, {s(S_T0)}, {WS_QKV - 4096}
    s_lshl_b32 {s(S_T1)}, {s(S_ID)}, 12
    s_add_u32 {s(S_T1)}, {s(S_T1)}, {WS_MEM - 4096}
    buffer_store_dwordx4 {v(AV_NEG,4)}, v24, {s(SRD_WS,4)}, {s(S_T2)} offen sc1
    s_add_u32 {s(S_T2)}, {s(S_T2)}, 4096
    buffer_store_dwordx4 {v(AV_NEG,4)}, v24, {s(SRD_WS,4)}, {s(S_T2)} offen sc1
    buffer_store_dwordx4 {v(AV_NEG,4)}, v24, {s(SRD_WS,4)}, {s(S_T0)} offen sc1
    s_add_u32 {s(S_T0)}, {s(S_T0)}, 4096
    buffer_store_dwordx4 {v(AV_NEG,4)}, v24, {s(SRD_WS,4)}, {s(S_T0)} offen sc1
    buffer_store_dwordx4 {v(AV_NEG,4)}, v24, {s(SRD_WS,4)}, {s(S_T1)} offen sc1
    """)
    a(f"""
    s_and_b32 {s(S_T0)}, {s(S_I)}, 7
    s_sub_u32 {s(S_T1)}, {s(S_T4)}, 1
    s_cmp_lt_u32 {s(S_T1)}, 2
    s_cselect_b32 s54, {s(S_T0)}, 1
    s_lshr_b32 {s(S_T2)}, {s(S_ID)}, 3
    s_lshl_b32 {s(S_T2)}, {s(S_T2)}, 8
    s_lshl_b32 {s(S_T1)}, {s(S_T1)}, 7
    s_add_u32 {s(S_T2)}, {s(S_T2)}, {s(S_T1)}
    s_add_u32 s55, {s(S_T2)}, {WS_PART + MB}
    s_cmp_lg_u32 s54, 0
    s_cbranch_scc1 ch_nv0
    v_lshlrev_b32 v24, 13, v20
    s_mov_b64 exec, 0xffff
    buffer_store_dword {v(AV_NEG)}, v24, {s(SRD_WS,4)}, s55 offen sc1
    s_mov_b64 exec, -1
    """)
    a.label('ch_nv0')
    a(f"""
    v_mov_b32 v2, {s(S_X1)}
    s_lshl_b32 {s(S_T0)}, {s(S_X)}, 2
    s_add_u32 {s(S_T0)}, {s(S_T0)}, {F.DBG_XCC}
    s_waitcnt vmcnt(0)
    s_barrier
    s_cmp_lg_u32 {s(S_W)}, 4
    s_cbranch_scc1 ch_nox
    s_mov_b64 exec, 1
    buffer_atomic_add v2, off, {s(F.SRD_DBG,4)}, {s(S_T0)} sc1
    s_mov_b64 exec, -1
    """)
    a.label('ch_nox')
    a_prologue(a)
    a('s_cmp_lg_u32 s54, 0')
    a('s_cbranch_scc1 ch_nv1')
    a('s_mov_b32 s58, -1')
    a('s_mov_b32 s59, -1')
    for k in range(8):
        for ph in range(2):
            a('s_memtime s[60:61]')
            a(f's_add_u32 s56, s55, {k*16384 + ph*8192}')
            a('s_waitcnt lgkmcnt(0)')
            a('s_load_dword s57, s[4:5], s56 glc')
            a('s_waitcnt lgkmcnt(0)')
            a('s_memtime s[62:63]')
            a('s_waitcnt lgkmcnt(0)')
            a('s_sub_u32 s57, s62, s60')
            a(f's_min_u32 s{58+ph}, s{58+ph}, s57')
    a(f"""
    s_sub_i32 s57, s58, s59
    s_min_i32 s57, s57, {a.vote}
    s_max_i32 s57, s57, {-a.vote}
    s_add_u32 s57, s57, {a.vote + (1 << 24)}
    s_getreg_b32 s56, hwreg(HW_REG_XCC_ID)
    s_and_b32 s56, s56, 0
    v_mov_b32 v2, s57
    s_mov_b64 exec, 1
    buffer_atomic_add v2, off, {s(F.SRD_DBG,4)}, s56 offset:{F.DBG_VOTE} sc1
    s_mov_b64 exec, -1
    """)
    a('s_waitcnt vmcnt(0)')
    a.label('ch_nv1')
    a_prologue2(a)
    a(f"""
    s_cmp_lg_u32 {s(S_W)}, 4
    s_cbranch_scc1 ch_xcc_skip
    v_lshrrev_b32 v56, 2, {v(AV_L16)}
    v_add_u32 v56, {F.DBG_XCC}, v56
    v_writelane_b32 v56, 0, 10
    v_mov_b32 v59, 63
    v_mov_b32 v60, 32
    v_writelane_b32 v59, 0, 8
    v_writelane_b32 v60, 0, 8
    v_writelane_b32 v59, 0, 9
    v_writelane_b32 v60, 0, 9
    v_writelane_b32 v59, -1, 10
    s_movk_i32 {s(S_T0)}, 128
    v_writelane_b32 v60, {s(S_T0)}, 10
    s_mov_b64 exec, 0x70f
    """)
    a.label('ch_xcc')
    a(f"""
    buffer_load_dword v57, v56, {s(F.SRD_DBG,4)}, 0 offen sc1
    s_waitcnt vmcnt(0)
    v_and_b32 v62, v59, v57
    v_cmp_ne_u32 vcc, v62, v60
    v_readlane_b32 {s(S_T1)}, v57, 8
    v_readlane_b32 {s(S_T2)}, v57, 9
    s_add_u32 {s(S_T0)}, {s(S_T1)}, {s(S_T2)}
    s_lshr_b32 {s(S_T0)}, {s(S_T0)}, 24
    s_cmp_lg_u32 {s(S_T0)}, 32
    s_cbranch_scc1 ch_xcc_w
    s_cbranch_vccz ch_xcc_ok
    """)
    a.label('ch_xcc_w')
    a(f"""
    s_sleep 16
    s_sub_u32 {s(S_TO)}, {s(S_TO)}, 1
    s_cbranch_scc0 ch_xcc
    s_mov_b32 {s(S_TO)}, 0
    """)
    a.label('ch_xcc_ok')
    a(f"""
    s_getreg_b32 {s(S_T0)}, hwreg(HW_REG_XCC_ID)
    s_bitcmp1_b32 {s(S_T0)}, 2
    s_cselect_b32 {s(S_T1)}, {s(S_T1)}, {s(S_T1)}
    v_readlane_b32 {s(S_T0)}, v57, {s(S_X)}
    s_mov_b64 exec, -1
    s_lshr_b32 {s(S_T2)}, {s(S_T1)}, 24
    s_mul_i32 {s(S_T2)}, {s(S_T2)}, {a.vote}
    s_and_b32 {s(S_T1)}, {s(S_T1)}, 0xffffff
    s_cmp_gt_u32 {s(S_T1)}, {s(S_T2)}
    s_cselect_b32 {s(S_T1)}, {0 if a.pgf else 0x2000}, {0x2000 if a.pgf else 0}
    v_mov_b32 v58, {LDS_PUB}
    v_mov_b32 v60, {s(S_T0)}
    v_mov_b32 v61, {s(S_T1)}
    s_barrier
    ds_write_b64 v58, v[60:61]
    s_waitcnt lgkmcnt(0)
    s_branch ch_xcc_b3
    """)
    a.label('ch_xcc_skip')
    a('s_barrier')
    a.label('ch_xcc_b3')
    a(f"""
    s_barrier
    v_mov_b32 v58, {LDS_PUB}
    ds_read_b64 v[60:61], v58
    v_and_b32 v23, 7, v20
    v_lshlrev_b32 v23, 7, v23
    v_bfe_u32 v24, v20, 3, 1
    v_lshl_add_u32 v23, v24, 17, v23
    v_lshrrev_b32 v24, 4, v20
    v_lshl_add_u32 v23, v24, 24, v23
    s_lshl_b32 {s(S_T2)}, {s(S_G)}, 14
    s_lshl_b32 {s(S_T1)}, {s(S_C)}, 10
    s_add_u32 {s(S_T2)}, {s(S_T2)}, {s(S_T1)}
    s_and_b32 {s(S_T1)}, {s(S_T4)}, 1
    s_lshl_b32 {s(S_T1)}, {s(S_T1)}, 18
    s_add_u32 {s(S_T2)}, {s(S_T2)}, {s(S_T1)}
    s_add_u32 {s(S_T2)}, {s(S_T2)}, {WS_QS + 262144}
    s_waitcnt lgkmcnt(0)
    v_readfirstlane_b32 {s(S_T0)}, v61
    s_add_u32 {s(S_PO)}, {s(S_PO)}, {s(S_T0)}
    """)
    a.label('ch_g0')
    a(f"""
    buffer_load_dword v57, off, {s(SRD_WS,4)}, {s(S_CQG)} sc1
    s_waitcnt vmcnt(0)
    v_readfirstlane_b32 {s(S_T0)}, v57
    s_cmp_ge_u32 {s(S_T0)}, {8 if a.s0 else 12}
    s_cbranch_scc1 ch_g0b
    s_sleep {a.g0sl}
    s_sub_u32 {s(S_TO)}, {s(S_TO)}, 1
    s_cbranch_scc0 ch_g0
    s_mov_b32 {s(S_TO)}, 0
    """)
    a.label('ch_g0b')
    for m in (1, 0):
        for x in (reg_list(a, m, AV_TB if m else AV_KS, S_QLD) if a.s1 and a.lr & (1 if m else 2) else dma_list(a, m, AV_L16, S_T1)): a(x)
    a('s_mov_b32 exec_hi, 0xffff')
    a(f'buffer_load_dword {v(AV_PK+7)}, v23, {s(SRD_WS,4)}, {s(S_T2)} offen sc1')
    a('s_mov_b32 exec_hi, -1')
    a(f'v_mov_b32 {v(AV_FV)}, 0')
    a('s_waitcnt vmcnt(1)')
    a(f'ds_write_b32 {v(AV_FLGW)}, {v(AV_FV)} offset:16')
    a_loop(a, prof, done)
```

```python
import sys, argparse, os
from asmlib import *
from layout4 import *
import k_gemm5 as G
import k_chain5 as C
import k_fin5 as F
import sched7 as sched5

ap = argparse.ArgumentParser()
ap.add_argument('out')
ap.add_argument('--prof', action='store_true')
ap.add_argument('--wprof', action='store_true')
ap.add_argument('--dtim', action='store_true')
ap.add_argument('--slow', action='store_true')
ap.add_argument('--tim', action='store_true')
ap.add_argument('--list', action='store_true', help='emit as launch list (dev harness)')
OPTS = dict(gdp=0, gde=4, grs=1, gr0=0, gprio=1, wdel=0, stag=0, wnt=0, xnt=0, p2e=1, ksp=0, g0sl=3, fuse=0, pgp=1, rdp=0, bt0=256, bt1=0, hk=1, cdh=13, scb=64, sc0=12, scp=1, scd=8, scx=0, xpos=1, nx1=4, ct0=0, ctn=500, ctch=0, fl=0, swp=0, nlb=6, vpos=1, qkf=0, ofd=4, s0=16, jit=1, cln=0, ent=0, kpos=0, lr=3, kdl=0, s1=48, cd=1, cdl=13, qd=0, qdl=9, md=1, last=63, vwp=8, fine=0, finsleep=12, touch=2, ntb=0, nta=0, ftsleep=4, nodep=1, bpre=4, vote=400,
            al=6, alo=11, aloa=0, hh=0, fsq=3, pgf=0, early=1, stouch=1, mck=2, dprio=1, nd1=8, ndl=8, d2=6, fprio=3, fsl=1, kvsl=1, rsleep=0,
            bnt=0, xflip=0, vdel=2, spnt=0)
for n, d in OPTS.items():
    ap.add_argument('--' + n, type=int, default=d)
ap.add_argument('--sp', default='r2')
ap.add_argument('--abl', default='')
args = ap.parse_args()

a = Asm()
G.ENT = ' nt' if args.ent else ''
G.NTA = ' nt' if args.nta else ''; G.NTB = ' nt' if args.ntb else ''
for n in OPTS: setattr(a, n, getattr(args, n))
a.force_slow = args.slow; a.abl = args.abl; a.wprof = args.prof or args.wprof; a.fin_sleep = args.finsleep; a.ft_sleep = args.ftsleep
a.dtim = args.dtim
a.msh = 16
a.wnt = [['', ' nt', ' sc1', ' sc1 nt'][int(c)] for c in '%04d' % args.wnt]; a.xnt = ' nt' if args.xnt else ''
a.spnt = ' nt' if args.spnt else ''
a.bnt = ' nt' if args.bnt else ''
name = NAME + '_kernel'
hdr = open(os.path.join(os.path.dirname(os.path.abspath(__file__)), '..', NAME + '.s.ref')).read().split('; Override launch')[0]
a.raw(hdr.rstrip())
if args.list:
    a.raw(f'; @launch kernel={name} grid=(256,1,1) block=(512,1,1) lds={C.CHAIN_LDS}')
else:
    a.raw(f'; @launch grid=(256,1,1) block=(512,1,1) lds={C.CHAIN_LDS}')
a.raw('.amdgcn_target "amdgcn-amd-amdhsa--gfx950"\n.text')
a.s0 = min(args.s0, args.s1)
lists = sched5.build(nlb=args.nlb, tag=args.sp, nb0=a.s0 // 8, s1=args.s1, scb=args.scb)
per = len(lists[0]) + 1
a.raw(f'.globl {name}\n.p2align 8\n.type {name},@function')
a.label(name)
S_WK = 63
a(f'''
s_cmp_ge_u32 s2, 256
s_cbranch_scc1 k_exit
{'s_memrealtime s[90:91]' if args.tim or args.dtim else ''}
s_mov_b32 s99, s2
s_load_dwordx2 s[4:5], s[0:1], {KA_WS}
s_load_dwordx2 {s(F.SRD_DBG,2)}, s[0:1], {KA_DBG}
v_lshrrev_b32 v2, 6, v0
s_mov_b32 s6, {WS_SIZE}
s_mov_b32 s7, {SRD3}
s_mov_b32 {s(F.SRD_DBG+2)}, 256
s_mov_b32 {s(F.SRD_DBG+3)}, {SRD3}
v_readfirstlane_b32 s3, v2
s_lshr_b32 {s(C.S_I)}, s2, 3
s_and_b32 {s(C.S_X)}, s2, 3
''')
if args.ct0:
    a(f's_cmp_lg_u32 s3, 7')
    a('s_cbranch_scc1 k_nct')
    a(f's_cmp_ge_u32 {s(C.S_I)}, {args.ct0}')
    a('s_cbranch_scc1 k_nct')
    a('v_and_b32 v3, 63, v0')
    a('v_lshlrev_b32 v3, 4, v3')
    vcode_touch(a, name, args.ctn, 16, 3, 4, 255)
    a.label('k_nct')
a(f'''
s_waitcnt lgkmcnt(0)
s_bitcmp{args.xflip}_b32 s2, 2
s_cbranch_scc1 chain_map
s_lshl_b32 {s(S_WK)}, {s(C.S_I)}, 2
s_add_u32 {s(S_WK)}, {s(S_WK)}, {s(C.S_X)}
''')
a.late_touch = lambda: G.emit_late_touch(a, args.bt0, args.bt1)
F.emit_ln_init(a, S_WK, [(lambda: None), (lambda: G.emit_touch_first(a, 'jobtab', per, S_WK)), (lambda: G.emit_tlb_touch(a, 'jobtab', per, S_WK))][args.touch])
for i in range(args.wdel): a('s_sleep 127')
a(f's_mov_b32 {s(G.S_T0)}, {s(S_WK)}')
def pre_cold(x=''):
    F.emit_ln_wait(a, G.S_ND + G.D_TYPE, G.S_ND + G.D_A, G.T_FH, x)
a.pre_cold = pre_cold
a.drain_hook = lambda: F.emit_drain_hook(a)
a.fin_hook = lambda *x: F.emit_fin(a, *x)
G.emit_worker(a, 'jobtab', per, 'k_end')
a.label('chain_map')
C.emit_chain(a, 'k_end', prof=args.prof)
a.label('k_end')
if args.tim:
    a(f'''
    s_waitcnt vmcnt(0)
    s_memrealtime s[96:97]
    s_lshl_b32 s98, s99, 3
    s_add_u32 s98, s98, s3
    s_lshl_b32 s98, s98, 3
    s_add_u32 s98, s98, {WS_YP + 13*MB}
    s_waitcnt lgkmcnt(0)
    v_mov_b32 v2, s90
    v_mov_b32 v3, s96
    s_mov_b64 exec, 1
    buffer_store_dwordx2 v[2:3], off, s[4:7], s98
    ''')
if args.dtim:
    a(f'''
    s_waitcnt vmcnt(0)
    s_memrealtime s[96:97]
    s_waitcnt lgkmcnt(0)
    s_not_b32 s90, s90
    v_mov_b32 v2, s90
    v_mov_b32 v3, s96
    s_mov_b64 exec, 1
    s_cmp_lg_u32 s3, 0
    s_cbranch_scc1 k_exit
    buffer_atomic_umax v2, off, {s(F.SRD_DBG,4)}, 0 offset:8 sc1
    buffer_atomic_umax v3, off, {s(F.SRD_DBG,4)}, 0 offset:12 sc1
    s_bitcmp1_b32 s99, 2
    s_cbranch_scc1 k_exit
    buffer_atomic_umax v3, off, {s(F.SRD_DBG,4)}, 0 offset:16 sc1
    ''')
a.label('k_exit')
a('s_endpgm')
a.raw('.section .rodata,"a"')
G.emit_table(a, 'jobtab', lists, per)
a.raw('.p2align 6')
a.raw(kernel_desc(name, 256, 102))
a.raw('; PLAN ' + repr(sched5.PLAN))
open(args.out, 'w').write(a.text())
```

```python
import sys, argparse, os
from asmlib import *
from layout4 import *
import k_gemm5 as G
import k_chain5 as C
import k_fin5 as F
import sched7 as sched5

ap = argparse.ArgumentParser()
ap.add_argument('out')
ap.add_argument('--prof', action='store_true')
ap.add_argument('--wprof', action='store_true')
ap.add_argument('--dtim', action='store_true')
ap.add_argument('--slow', action='store_true')
ap.add_argument('--tim', action='store_true')
ap.add_argument('--list', action='store_true', help='emit as launch list (dev harness)')
OPTS = dict(gdp=0, gde=4, grs=1, gr0=0, gprio=1, wdel=0, stag=0, wnt=0, xnt=0, p2e=1, ksp=0, g0sl=3, fuse=0, pgp=1, rdp=0, bt0=256, bt1=0, hk=1, cdh=13, scb=64, sc0=12, scp=1, scd=8, scx=0, xpos=1, nx1=4, ct0=0, ctn=500, ctch=0, fl=0, swp=0, nlb=6, vpos=1, qkf=0, ofd=4, s0=16, jit=1, cln=0, ent=0, kpos=0, lr=3, kdl=0, s1=48, cd=1, cdl=13, qd=0, qdl=9, md=1, last=63, vwp=8, fine=0, finsleep=12, touch=2, ntb=0, nta=0, ftsleep=4, nodep=1, bpre=4, vote=400,
            al=6, alo=11, aloa=0, hh=0, fsq=3, pgf=0, early=1, stouch=1, mck=2, dprio=1, nd1=8, ndl=8, d2=6, fprio=3, fsl=1, kvsl=1, rsleep=0,
            bnt=0, xflip=0, vdel=2, spnt=0)
for n, d in OPTS.items():
    ap.add_argument('--' + n, type=int, default=d)
ap.add_argument('--sp', default='r2')
ap.add_argument('--abl', default='')
args = ap.parse_args()

a = Asm()
G.ENT = ' nt' if args.ent else ''
G.NTA = ' nt' if args.nta else ''; G.NTB = ' nt' if args.ntb else ''
for n in OPTS: setattr(a, n, getattr(args, n))
a.force_slow = args.slow; a.abl = args.abl; a.wprof = args.prof or args.wprof; a.fin_sleep = args.finsleep; a.ft_sleep = args.ftsleep
a.dtim = args.dtim
a.msh = 16
a.wnt = [['', ' nt', ' sc1', ' sc1 nt'][int(c)] for c in '%04d' % args.wnt]; a.xnt = ' nt' if args.xnt else ''
a.spnt = ' nt' if args.spnt else ''
a.bnt = ' nt' if args.bnt else ''
name = NAME + '_kernel'
hdr = open(os.path.join(os.path.dirname(os.path.abspath(__file__)), '..', NAME + '.s.ref')).read().split('; Override launch')[0]
a.raw(hdr.rstrip())
if args.list:
    a.raw(f'; @launch kernel={name} grid=(256,1,1) block=(512,1,1) lds={C.CHAIN_LDS}')
else:
    a.raw(f'; @launch grid=(256,1,1) block=(512,1,1) lds={C.CHAIN_LDS}')
a.raw('.amdgcn_target "amdgcn-amd-amdhsa--gfx950"\n.text')
a.s0 = min(args.s0, args.s1)
lists = sched5.build(nlb=args.nlb, tag=args.sp, nb0=a.s0 // 8, s1=args.s1, scb=args.scb)
per = len(lists[0]) + 1
a.raw(f'.globl {name}\n.p2align 8\n.type {name},@function')
a.label(name)
S_WK = 63
a(f'''
s_cmp_ge_u32 s2, 256
s_cbranch_scc1 k_exit
{'s_memrealtime s[90:91]' if args.tim or args.dtim else ''}
s_mov_b32 s99, s2
s_load_dwordx2 s[4:5], s[0:1], {KA_WS}
s_load_dwordx2 {s(F.SRD_DBG,2)}, s[0:1], {KA_DBG}
v_lshrrev_b32 v2, 6, v0
s_mov_b32 s6, {WS_SIZE}
s_mov_b32 s7, {SRD3}
s_mov_b32 {s(F.SRD_DBG+2)}, 256
s_mov_b32 {s(F.SRD_DBG+3)}, {SRD3}
v_readfirstlane_b32 s3, v2
s_lshr_b32 {s(C.S_I)}, s2, 3
s_and_b32 {s(C.S_X)}, s2, 3
''')
if args.ct0:
    a(f's_cmp_lg_u32 s3, 7')
    a('s_cbranch_scc1 k_nct')
    a(f's_cmp_ge_u32 {s(C.S_I)}, {args.ct0}')
    a('s_cbranch_scc1 k_nct')
    a('v_and_b32 v3, 63, v0')
    a('v_lshlrev_b32 v3, 4, v3')
    vcode_touch(a, name, args.ctn, 16, 3, 4, 255)
    a.label('k_nct')
a(f'''
s_waitcnt lgkmcnt(0)
s_bitcmp{args.xflip}_b32 s2, 2
s_cbranch_scc1 chain_map
s_lshl_b32 {s(S_WK)}, {s(C.S_I)}, 2
s_add_u32 {s(S_WK)}, {s(S_WK)}, {s(C.S_X)}
''')
a.late_touch = lambda: G.emit_late_touch(a, args.bt0, args.bt1)
F.emit_ln_init(a, S_WK, [(lambda: None), (lambda: G.emit_touch_first(a, 'jobtab', per, S_WK)), (lambda: G.emit_tlb_touch(a, 'jobtab', per, S_WK))][args.touch])
for i in range(args.wdel): a('s_sleep 127')
a(f's_mov_b32 {s(G.S_T0)}, {s(S_WK)}')
def pre_cold(x=''):
    F.emit_ln_wait(a, G.S_ND + G.D_TYPE, G.S_ND + G.D_A, G.T_FH, x)
a.pre_cold = pre_cold
a.drain_hook = lambda: F.emit_drain_hook(a)
a.fin_hook = lambda *x: F.emit_fin(a, *x)
G.emit_worker(a, 'jobtab', per, 'k_end')
a.label('chain_map')
C.emit_chain(a, 'k_end', prof=args.prof)
a.label('k_end')
if args.tim:
    a(f'''
    s_waitcnt vmcnt(0)
    s_memrealtime s[96:97]
    s_lshl_b32 s98, s99, 3
    s_add_u32 s98, s98, s3
    s_lshl_b32 s98, s98, 3
    s_add_u32 s98, s98, {WS_YP + 13*MB}
    s_waitcnt lgkmcnt(0)
    v_mov_b32 v2, s90
    v_mov_b32 v3, s96
    s_mov_b64 exec, 1
    buffer_store_dwordx2 v[2:3], off, s[4:7], s98
    ''')
if args.dtim:
    a(f'''
    s_waitcnt vmcnt(0)
    s_memrealtime s[96:97]
    s_waitcnt lgkmcnt(0)
    s_not_b32 s90, s90
    v_mov_b32 v2, s90
    v_mov_b32 v3, s96
    s_mov_b64 exec, 1
    s_cmp_lg_u32 s3, 0
    s_cbranch_scc1 k_exit
    buffer_atomic_umax v2, off, {s(F.SRD_DBG,4)}, 0 offset:8 sc1
    buffer_atomic_umax v3, off, {s(F.SRD_DBG,4)}, 0 offset:12 sc1
    s_bitcmp1_b32 s99, 2
    s_cbranch_scc1 k_exit
    buffer_atomic_umax v3, off, {s(F.SRD_DBG,4)}, 0 offset:16 sc1
    s_cmp_lg_u32 s99, 0
    s_cbranch_scc1 k_exit
    s_getreg_b32 s96, hwreg(HW_REG_XCC_ID)
    s_add_u32 s96, s96, 100
    v_mov_b32 v3, s96
    v_mov_b32 v2, {s(C.S_PO)}
    buffer_store_dword v3, off, {s(F.SRD_DBG,4)}, 0 offset:4
    buffer_store_dword v2, off, {s(F.SRD_DBG,4)}, 0 offset:20
    buffer_load_dwordx2 v[4:5], off, {s(F.SRD_DBG,4)}, 0 offset:{F.DBG_VOTE} sc1
    s_waitcnt vmcnt(0)
    buffer_store_dword v4, off, {s(F.SRD_DBG,4)}, 0 offset:56
    ''')
a.label('k_exit')
a('s_endpgm')
a.raw('.section .rodata,"a"')
G.emit_table(a, 'jobtab', lists, per)
a.raw('.p2align 6')
a.raw(kernel_desc(name, 256, 102))
a.raw('; PLAN ' + repr(sched5.PLAN))
open(args.out, 'w').write(a.text())
```

```python
import sys, argparse, os
from asmlib import *
from layout4 import *
import k_gemm5 as G
import k_chain5 as C
import k_fin5 as F
import sched7 as sched5

ap = argparse.ArgumentParser()
ap.add_argument('out')
ap.add_argument('--prof', action='store_true')
ap.add_argument('--wprof', action='store_true')
ap.add_argument('--dtim', action='store_true')
ap.add_argument('--slow', action='store_true')
ap.add_argument('--tim', action='store_true')
ap.add_argument('--list', action='store_true', help='emit as launch list (dev harness)')
OPTS = dict(gdp=0, gde=4, grs=1, gr0=0, gprio=1, wdel=0, stag=0, rot=1, wnt=0, xnt=0, p2e=1, ksp=0, g0sl=3, fuse=0, pgp=1, rdp=0, bt0=256, bt1=0, hk=1, cdh=13, scb=64, sc0=12, scp=1, scd=8, scx=0, xpos=1, nx1=4, ct0=0, ctn=500, ctch=0, fl=0, swp=0, nlb=6, vpos=1, qkf=0, ofd=4, s0=16, jit=1, cln=0, ent=0, kpos=0, lr=3, kdl=0, s1=48, cd=1, cdl=13, qd=0, qdl=9, md=1, last=63, vwp=8, fine=0, finsleep=12, touch=2, ntb=0, nta=0, ftsleep=4, nodep=1, bpre=4, vote=400,
            al=6, alo=11, aloa=0, hh=0, fsq=3, pgf=0, early=1, stouch=1, mck=2, dprio=1, nd1=8, ndl=8, d2=6, fprio=3, fsl=1, kvsl=1, rsleep=0,
            bnt=0, xflip=0, vdel=2, spnt=0)
for n, d in OPTS.items():
    ap.add_argument('--' + n, type=int, default=d)
ap.add_argument('--sp', default='r2')
ap.add_argument('--abl', default='')
args = ap.parse_args()

a = Asm()
G.ENT = ' nt' if args.ent else ''
G.NTA = ' nt' if args.nta else ''; G.NTB = ' nt' if args.ntb else ''
for n in OPTS: setattr(a, n, getattr(args, n))
a.force_slow = args.slow; a.abl = args.abl; a.wprof = args.prof or args.wprof; a.fin_sleep = args.finsleep; a.ft_sleep = args.ftsleep
a.dtim = args.dtim
a.msh = 16
a.wnt = [['', ' nt', ' sc1', ' sc1 nt'][int(c)] for c in '%04d' % args.wnt]; a.xnt = ' nt' if args.xnt else ''
a.spnt = ' nt' if args.spnt else ''
a.bnt = ' nt' if args.bnt else ''
name = NAME + '_kernel'
hdr = open(os.path.join(os.path.dirname(os.path.abspath(__file__)), '..', NAME + '.s.ref')).read().split('; Override launch')[0]
a.raw(hdr.rstrip())
if args.list:
    a.raw(f'; @launch kernel={name} grid=(256,1,1) block=(512,1,1) lds={C.CHAIN_LDS}')
else:
    a.raw(f'; @launch grid=(256,1,1) block=(512,1,1) lds={C.CHAIN_LDS}')
a.raw('.amdgcn_target "amdgcn-amd-amdhsa--gfx950"\n.text')
a.s0 = min(args.s0, args.s1)
lists = sched5.build(nlb=args.nlb, tag=args.sp, nb0=a.s0 // 8, s1=args.s1, scb=args.scb)
per = len(lists[0]) + 1
a.raw(f'.globl {name}\n.p2align 8\n.type {name},@function')
a.label(name)
S_WK = 63
a(f'''
s_cmp_ge_u32 s2, 256
s_cbranch_scc1 k_exit
{'s_memrealtime s[90:91]' if args.tim or args.dtim else ''}
s_mov_b32 s99, s2
s_load_dwordx2 s[4:5], s[0:1], {KA_WS}
s_load_dwordx2 {s(F.SRD_DBG,2)}, s[0:1], {KA_DBG}
v_lshrrev_b32 v2, 6, v0
s_mov_b32 s6, {WS_SIZE}
s_mov_b32 s7, {SRD3}
s_mov_b32 {s(F.SRD_DBG+2)}, 256
s_mov_b32 {s(F.SRD_DBG+3)}, {SRD3}
v_readfirstlane_b32 s3, v2
s_getreg_b32 s14, hwreg(HW_REG_XCC_ID)
s_waitcnt lgkmcnt(0)
''')
if args.rot:
    a(f'''
    s_or_b32 s15, s2, s3
    s_cmp_lg_u32 s15, 0
    s_cbranch_scc1 k_rw
    s_and_b32 s14, s14, 7
    s_add_u32 s14, s14, 1
    v_mov_b32 v2, s14
    s_mov_b64 exec, 1
    buffer_store_dword v2, off, {s(F.SRD_DBG,4)}, 0 offset:{F.DBG_ROT} sc1
    s_mov_b64 exec, -1
    s_branch k_rok
    ''')
    a.label('k_rw')
    a('s_mov_b32 s15, 0x10000')
    a.label('k_rl')
    a(f'''
    buffer_load_dword v2, off, {s(F.SRD_DBG,4)}, 0 offset:{F.DBG_ROT} sc1
    s_waitcnt vmcnt(0)
    v_readfirstlane_b32 s14, v2
    s_cmp_lg_u32 s14, 0
    s_cbranch_scc1 k_rok
    s_sub_u32 s15, s15, 1
    s_cbranch_scc0 k_rl
    ''')
    a.label('k_rok')
    a(f'''
    s_add_u32 s14, s14, s2
    s_sub_u32 s14, s14, 1
    s_and_b32 s14, s14, 7
    s_andn2_b32 s2, s2, 7
    s_or_b32 s2, s2, s14
    s_mov_b32 s99, s2
    ''')
a(f'''
s_lshr_b32 {s(C.S_I)}, s2, 3
s_and_b32 {s(C.S_X)}, s2, 3
''')
if args.ct0:
    a(f's_cmp_lg_u32 s3, 7')
    a('s_cbranch_scc1 k_nct')
    a(f's_cmp_ge_u32 {s(C.S_I)}, {args.ct0}')
    a('s_cbranch_scc1 k_nct')
    a('v_and_b32 v3, 63, v0')
    a('v_lshlrev_b32 v3, 4, v3')
    vcode_touch(a, name, args.ctn, 16, 3, 4, 255)
    a.label('k_nct')
a(f'''
s_waitcnt lgkmcnt(0)
s_bitcmp{args.xflip}_b32 s2, 2
s_cbranch_scc1 chain_map
s_lshl_b32 {s(S_WK)}, {s(C.S_I)}, 2
s_add_u32 {s(S_WK)}, {s(S_WK)}, {s(C.S_X)}
''')
a.late_touch = lambda: G.emit_late_touch(a, args.bt0, args.bt1)
F.emit_ln_init(a, S_WK, [(lambda: None), (lambda: G.emit_touch_first(a, 'jobtab', per, S_WK)), (lambda: G.emit_tlb_touch(a, 'jobtab', per, S_WK))][args.touch])
for i in range(args.wdel): a('s_sleep 127')
a(f's_mov_b32 {s(G.S_T0)}, {s(S_WK)}')
def pre_cold(x=''):
    F.emit_ln_wait(a, G.S_ND + G.D_TYPE, G.S_ND + G.D_A, G.T_FH, x)
a.pre_cold = pre_cold
a.drain_hook = lambda: F.emit_drain_hook(a)
a.fin_hook = lambda *x: F.emit_fin(a, *x)
G.emit_worker(a, 'jobtab', per, 'k_end')
a.label('chain_map')
C.emit_chain(a, 'k_end', prof=args.prof)
a.label('k_end')
if args.tim:
    a(f'''
    s_waitcnt vmcnt(0)
    s_memrealtime s[96:97]
    s_lshl_b32 s98, s99, 3
    s_add_u32 s98, s98, s3
    s_lshl_b32 s98, s98, 3
    s_add_u32 s98, s98, {WS_YP + 13*MB}
    s_waitcnt lgkmcnt(0)
    v_mov_b32 v2, s90
    v_mov_b32 v3, s96
    s_mov_b64 exec, 1
    buffer_store_dwordx2 v[2:3], off, s[4:7], s98
    ''')
if args.dtim:
    a(f'''
    s_waitcnt vmcnt(0)
    s_memrealtime s[96:97]
    s_waitcnt lgkmcnt(0)
    s_not_b32 s90, s90
    v_mov_b32 v2, s90
    v_mov_b32 v3, s96
    s_mov_b64 exec, 1
    s_cmp_lg_u32 s3, 0
    s_cbranch_scc1 k_exit
    buffer_atomic_umax v2, off, {s(F.SRD_DBG,4)}, 0 offset:8 sc1
    buffer_atomic_umax v3, off, {s(F.SRD_DBG,4)}, 0 offset:12 sc1
    s_bitcmp1_b32 s99, 2
    s_cbranch_scc1 k_exit
    buffer_atomic_umax v3, off, {s(F.SRD_DBG,4)}, 0 offset:16 sc1
    s_cmp_lg_u32 s99, 0
    s_cbranch_scc1 k_exit
    s_getreg_b32 s96, hwreg(HW_REG_XCC_ID)
    s_add_u32 s96, s96, 100
    v_mov_b32 v3, s96
    v_mov_b32 v2, {s(C.S_PO)}
    buffer_store_dword v3, off, {s(F.SRD_DBG,4)}, 0 offset:4
    buffer_store_dword v2, off, {s(F.SRD_DBG,4)}, 0 offset:20
    buffer_load_dwordx2 v[4:5], off, {s(F.SRD_DBG,4)}, 0 offset:{F.DBG_VOTE} sc1
    s_waitcnt vmcnt(0)
    buffer_store_dword v4, off, {s(F.SRD_DBG,4)}, 0 offset:56
    ''')
a.label('k_exit')
a('s_endpgm')
a.raw('.section .rodata,"a"')
G.emit_table(a, 'jobtab', lists, per)
a.raw('.p2align 6')
a.raw(kernel_desc(name, 256, 102))
a.raw('; PLAN ' + repr(sched5.PLAN))
open(args.out, 'w').write(a.text())
```

```python
from asmlib import *
from layout4 import *
import k_fin5 as F

SRD_WS = 4
SRD_T = 8
S_W = 3
S_X, S_I, S_G, S_H, S_S = 12, 13, 14, 15, 16
S_T0, S_T1, S_T2, S_T3, S_T4 = 17, 18, 19, 20, 21
S_TO = 22
S_MLD, S_MST, S_MRS, S_QST, S_QRS, S_PLD, S_OK, S_SP, S_TCH, S_RDG, S_RDY, S_C, S_CQG = range(23, 36)
S_MO, S_MSO, S_QO, S_PO, S_X1, S_KG, S_KL = range(36, 43)
S_QLD, S_QLD2, S_PSTC, S_PRS, S_PRG, S_CS, S_CST, S_DW, S_DU, S_U2, S_QT = range(23, 34)
S_M0 = 44
S_ID = 52
S_J = 53
S_SP0 = 54
S_KMX = 55
S_RTG = 58
S_OF, S_OB = 59, 60
S_XB, S_XBX, S_SCO, S_XG = 101, 68, 69, 43
LDS_SCP = 36864
S_MEX = 56
S_PROF = 70
LDS_RED1 = 0
LDS_FLG = 15872
LDS_PUB = 15968
LDS_RED2 = 16384
LDS_SEG = 32768
LDS_BULK = 65536
PSLOT = 18
CHAIN_LDS = 163840
CQ_TAB = WS_CNT + 512
TIMEOUT = 1 << 17

def red_gq(vs, vt, op):
    return [f'v_mov_b32 {v(vt)}, {v(vs)}', 's_nop 1', f'v_permlane16_swap_b32 {v(vt)}, {v(vs)}', f'{op} {v(vs)}, {v(vs)}, {v(vt)}',
            f'v_mov_b32 {v(vt)}, {v(vs)}', 's_nop 1', f'v_permlane32_swap_b32 {v(vt)}, {v(vs)}', f'{op} {v(vs)}, {v(vs)}, {v(vt)}']

def chk(regs, vt, target):
    r = list(regs); o = []
    if len(r) == 1:
        return [f'v_cmp_eq_u32 vcc, -1, {v(r[0])}', f's_cbranch_vccnz {target}']
    if len(r) == 2:
        o.append(f'v_max_u32 {v(vt)}, {v(r[0])}, {v(r[1])}'); r = []
    else:
        o.append(f'v_max3_u32 {v(vt)}, {v(r[0])}, {v(r[1])}, {v(r[2])}'); r = r[3:]
    while len(r) >= 2:
        o.append(f'v_max3_u32 {v(vt)}, {v(vt)}, {v(r[0])}, {v(r[1])}'); r = r[2:]
    if r: o.append(f'v_max_u32 {v(vt)}, {v(vt)}, {v(r[0])}')
    o.append(f'v_cmp_eq_u32 vcc, -1, {v(vt)}')
    o.append(f's_cbranch_vccnz {target}')
    return o

def retry_block(a, label, again, giveup):
    a.label(label)
    a('s_waitcnt vmcnt(0)')
    if a.rsleep: a(f's_sleep {a.rsleep}')
    a(f's_sub_u32 {s(S_TO)}, {s(S_TO)}, 1')
    a(f's_cbranch_scc0 {again}')
    a(f's_mov_b32 {s(S_TO)}, 0')
    a(f's_branch {giveup}')

def spin_block(a, label, loads, regs, vt, ok, giveup):
    a.label(label)
    a(f's_sub_u32 {s(S_TO)}, {s(S_TO)}, 1')
    a(f's_cbranch_scc1 {label}_g')
    for x in loads: a(x)
    a(f's_waitcnt vmcnt({len(loads)-1})')
    for x in chk(regs, vt, label): a(x)
    a(f's_branch {ok}')
    a.label(label + '_g')
    a(f's_mov_b32 {s(S_TO)}, 0')
    a('s_waitcnt vmcnt(0)')
    a(f's_branch {giveup}')

class Prof:
    def __init__(self, on): self.on = on; self.n = 0; self.names = []
    def stamp(self, a, name, lvl=0):
        if self.on and (lvl == 0 or lvl == a.fine or (lvl < 0 and -lvl != a.fine)):
            a(f's_memtime {s(S_PROF + 2*self.n, 2)}'); self.n += 1; self.names.append(name)
    def flush(self, a, vtmp, tag):
        if not self.on: return
        a(f's_memrealtime {s(S_PROF + 2*self.n, 2)}'); self.n += 1; self.names.append('rt')
        a(f's_sub_u32 {s(S_PROF + 2*self.n)}, s100, {s(S_TO)}'); self.n += 1; self.names.append('retries')
        a(f's_mov_b32 s100, {s(S_TO)}')
        assert self.n <= 15
        a('s_waitcnt lgkmcnt(0)')
        a(f's_lshl_b32 {s(S_T0)}, {s(S_ID)}, 3')
        a(f's_add_u32 {s(S_T0)}, {s(S_T0)}, {s(S_W)}')
        a(f's_lshl_b32 {s(S_T0)}, {s(S_T0)}, 6')
        a(f's_add_u32 {s(S_T0)}, {s(S_T0)}, {s(S_S)}')
        a(f's_lshl_b32 {s(S_T0)}, {s(S_T0)}, 6')
        a(f's_add_u32 {s(S_T0)}, {s(S_T0)}, {WS_YP}')
        for i in range(self.n):
            a(f'v_writelane_b32 {v(vtmp)}, {s(S_PROF+2*i)}, {i}')
        a(f's_mov_b64 exec, {(1<<self.n)-1}')
        a(f'v_mbcnt_lo_u32_b32 {v(vtmp+1)}, -1, 0')
        a(f'v_lshlrev_b32 {v(vtmp+1)}, 2, {v(vtmp+1)}')
        a(f'buffer_store_dword {v(vtmp)}, {v(vtmp+1)}, {s(SRD_WS,4)}, {s(S_T0)} offen')
        a('s_mov_b64 exec, -1')
        a.raw(f'; PROF {tag} ' + ' '.join(self.names))
        self.n = 0; self.names = []

def merge_fill(seq, fill, every=2, start=1):
    out = []; fi = 0
    for k, x in enumerate(seq):
        out.append(x)
        if k >= start and (k - start) % every == 0 and fi < len(fill):
            out.append(fill[fi]); fi += 1
    out += fill[fi:]
    return out

def flag_wait(a, tag, vaddr, off, vt, st, sl=1, one=False):
    a.label(tag)
    if one:
        a(f'ds_read_b32 {v(vt)}, {v(vaddr)} offset:{off}')
        a('s_waitcnt lgkmcnt(0)')
    else:
        a(f'ds_read_b128 {v(vt,4)}, {v(vaddr)} offset:{off}')
        a('s_waitcnt lgkmcnt(0)')
        a(f'v_min3_i32 {v(vt)}, {v(vt)}, {v(vt+1)}, {v(vt+2)}')
        a(f'v_min_i32 {v(vt)}, {v(vt)}, {v(vt+3)}')
        a('s_nop 0')
    a(f'v_readfirstlane_b32 {s(st)}, {v(vt)}')
    a(f's_cmp_ge_i32 {s(st)}, {s(S_S)}')
    a(f's_cbranch_scc1 {tag}ok')
    a(f's_sleep {sl}')
    a(f's_branch {tag}')
    a.label(tag + 'ok')

def ring(a, d, add, sh, base):
    if add: a(f's_add_u32 {s(d)}, {s(S_S)}, {add}')
    a(f's_and_b32 {s(d)}, {s(d if add else S_S)}, 3')
    a(f's_lshl_b32 {s(d)}, {s(d)}, {sh}')
    a(f's_add_u32 {s(d)}, {s(d)}, {s(base)}')

def sel_init(a, sel, vl, t1, t2):
    a(f'v_and_b32 {v(t1)}, 15, {v(vl)}')
    a(f'v_and_b32 {v(t2)}, 1, {v(t1)}')
    a(f'v_lshlrev_b32 {v(t2)}, 4, {v(t2)}')
    a(f'v_lshlrev_b32 {v(t2)}, {v(t2)}, 0x3f80' if False else f'v_mov_b32 {v(sel)}, 0x3f80')
    a(f'v_lshlrev_b32 {v(t2)}, {v(t2)}, {v(sel)}')
    a(f'v_lshrrev_b32 {v(t1)}, 1, {v(t1)}')
    for d in range(4):
        a(f'v_cmp_eq_u32 vcc, {d}, {v(t1)}')
        a('s_nop 1')
        a(f'v_cndmask_b32 {v(sel+d)}, 0, {v(t2)}, vcc')

PV_L16, PV_QST, PV_R1W, PV_R1R, PV_MST, PV_SGR, PV_SPS, PV_IDX = 1, 2, 3, 4, 5, 6, 7, 8
PV_PFA, PV_PFD, PV_FLGR = 0, 9, 58
PV_T, PV_NEG, PV_SEL = 9, 10, 12
PV_M, PV_ACC, PV_W = 16, 32, 64
PV_FV, PV_RDY, PV_R1W1, PV_R1W2, PV_FLGW = 59, 60, 61, 62, 63
def pw(b, t): return PV_W + (b * 6 + t) * 8

def mem0_issue(a):
    a(f'''
    s_load_dwordx2 {s(SRD_T,2)}, s[0:1], {KA_MEM0}
    s_mov_b32 {s(SRD_T+2)}, 16384
    v_bfe_u32 v57, v20, 2, 2
    v_and_b32 v58, 1, v20
    v_lshl_add_u32 v57, v57, 1, v58           ; token
    v_lshlrev_b32 v57, 11, v57
    v_lshrrev_b32 v58, 4, v20
    v_lshl_add_u32 v57, v58, 5, v57           ; + 32 g
    v_bfe_u32 v58, v20, 1, 1                  ; p
    v_lshl_add_u32 v57, v58, 4, v57
    v_lshl_add_u32 v59, v58, 3, v57
    v_xor_b32 v60, 8, v59
    s_lshl_b32 {s(S_T3)}, {s(S_W)}, 9
    s_waitcnt lgkmcnt(0)
    ''')
    for b in range(4):
        a(f'buffer_load_dwordx2 {v(32+4*b,2)}, v59, {s(SRD_T,4)}, {s(S_T3)} offen offset:{128*b}')
        a(f'buffer_load_dwordx2 {v(34+4*b,2)}, v60, {s(SRD_T,4)}, {s(S_T3)} offen offset:{128*b}')

def p_prologue(a):
    a(f'''
    v_and_b32 v20, 63, v0
    v_lshlrev_b32 {v(PV_L16)}, 4, v20
    v_mov_b32 {v(PV_NEG)}, -1
    v_mov_b32 {v(PV_NEG+1)}, -1
    v_lshrrev_b32 v21, 2, v20
    v_and_b32 v22, 3, v20
    v_lshlrev_b32 v21, 13, v21
    v_lshl_add_u32 v21, v22, 4, v21
    s_lshl_b32 {s(S_T0)}, {s(S_W)}, 21
    s_lshl_b32 {s(S_T1)}, {s(S_ID)}, 6
    s_add_u32 {s(S_T0)}, {s(S_T0)}, {s(S_T1)}
    s_lshl_b32 {s(S_T2)}, {s(S_W)}, 15
    s_mov_b32 {s(SRD_T+2)}, {8*MB}
    s_mov_b32 {s(SRD_T+3)}, {SRD3}
    v_lshrrev_b32 v24, 5, v20                 ; gB>>1
    v_bfe_u32 v25, v20, 3, 1                  ; r>>1
    v_lshl_add_u32 v24, v24, 1, v25           ; 2(gB>>1) + (r>>1)
    v_bfe_u32 v26, v20, 4, 1                  ; gB&1
    v_xor_b32 v26, v26, v25
    v_lshl_add_u32 v24, v24, 1, v26
    v_bfe_u32 v25, v20, 2, 1                  ; r&1
    v_lshl_add_u32 v24, v24, 2, v25           ; row
    v_lshlrev_b32 v24, 6, v24
    v_lshl_add_u32 v24, v22, 3, v24           ; + cc*8
    v_add_u32 v24, {s(S_T2)}, v24
    ''')
    if a.fl:
        a(f'''
        v_lshrrev_b32 v21, 3, v20
        v_and_b32 v23, 7, v20
        v_lshlrev_b32 v21, 14, v21
        v_lshl_add_u32 v21, v23, 4, v21
        s_and_b32 {s(S_T1)}, {s(S_I)}, 1
        s_mul_i32 {s(S_T1)}, {s(S_T1)}, {8192 - 64}
        s_add_u32 {s(S_T0)}, {s(S_T0)}, {s(S_T1)}
        ''')
    def src(p):
        a(f's_load_dwordx2 {s(SRD_T,2)}, s[0:1], {KA_WQ + 8*p}')
        a(f's_add_u32 {s(S_T3)}, {s(S_T0)}, s72')
        a('s_waitcnt lgkmcnt(0)')
    a(f's_and_b32 s70, {s(S_I)}, {1 if a.stag else 0}')
    a('s_lshl_b32 s72, s70, 20')
    a('s_lshl_b32 s73, s70, 21')
    a('s_lshl_b32 s70, s70, 13')
    a(f's_sub_u32 s71, {s(S_T2)}, s70')
    a(f's_add_u32 s70, {s(S_T2)}, s70')
    def issue(p, half):
        src(p)
        for n in range(16):
            if a.rot and p == 0 and n == a.rotn:
                a('s_barrier')
                a.rot_check(131072 + 64, 27)
            a(f's_add_u32 m0, {"s70" if n < 8 else "s71"}, {half*16384 + n*1024}')
            a('s_nop 0')
            a(f'buffer_load_dwordx4 v21, {s(SRD_T,4)}, {s(S_T3)} offen{a.wnt[p]} lds')
            a(f's_add_u32 {s(S_T3)}, {s(S_T3)}, {16*8192}')
            if n == 7: a(f's_sub_u32 {s(S_T3)}, {s(S_T3)}, s73')
    def fetch(p, half):
        for b in range(4):
            for T in range(2):
                for t4 in range(4):
                    a(f'ds_read_b64_tr_b16 {v(pw(b, 2*p+T)+2*t4, 2)}, v24 offset:{half*16384 + b*4096 + (32*(t4>>1) + 2*(t4&1))*64 + T*32}')
            a('s_waitcnt lgkmcnt(0)')
    issue(0, 0); issue(1, 1)
    src(2)
    land = [pw(n // 4, 4) + 4 * (n & 3) for n in range(16)]
    for n in range(16):
        a(f'buffer_load_dwordx4 {v(land[n],4)}, v21, {s(SRD_T,4)}, {s(S_T3)} offen{a.wnt[2]}')
        a(f's_add_u32 {s(S_T3)}, {s(S_T3)}, {16*8192}')
        if n == 7: a(f's_sub_u32 {s(S_T3)}, {s(S_T3)}, s73')
    mem0_issue(a)
    a('s_barrier')
    a(f'v_add_u32 v56, s70, {v(PV_L16)}')
    a(f'v_add_u32 v26, s71, {v(PV_L16)}')
    a('s_waitcnt vmcnt(40)'); fetch(0, 0)
    a('s_waitcnt vmcnt(24)'); fetch(1, 1)
    a('s_waitcnt vmcnt(8)')
    for n in range(16):
        a(f'ds_write_b128 {"v56" if n < 8 else "v26"}, {v(land[n],4)} offset:{n*1024}')
    a('s_waitcnt lgkmcnt(0)')
    fetch(2, 0)
    a(f'''
    v_mov_b32 v21, 0x44444444
    v_mov_b32 v22, 0xeeeeeeee
    v_and_b32 v23, 2, v20
    v_cmp_eq_u32 vcc, 0, v23
    s_nop 1
    v_cndmask_b32 {v(PV_IDX)}, v22, v21, vcc
    ''')
    a(f'''
    v_bfe_u32 v21, v20, 2, 3                  ; t
    v_lshrrev_b32 v22, 5, v20                 ; isk
    v_mul_u32_u24 v23, 160, v21
    v_mul_u32_u24 v24, 1280, v22
    v_add_u32 v23, v23, v24
    v_and_b32 v24, 3, v20
    v_lshl_add_u32 v27, v24, 4, v23
    v_lshrrev_b32 v23, 1, v21
    v_and_b32 v21, 1, v21
    v_lshl_add_u32 v21, v23, 2, v21           ; row0
    v_xor_b32 v22, 1, v22
    v_lshl_add_u32 v21, v22, 1, v21           ; row
    v_bfe_u32 v22, v20, 1, 1                  ; gq&1
    v_lshl_add_u32 v21, v22, 4, v21
    v_xor_b32 v22, v20, v22
    v_and_b32 v22, 1, v22                     ; hs
    v_lshlrev_b32 v21, 4, v21
    v_lshl_add_u32 v25, v22, 3, v21
    v_lshrrev_b32 v21, 3, v20                 ; t
    v_mul_u32_u24 v23, 160, v21
    v_and_b32 v24, 7, v20
    v_lshl_add_u32 v28, v24, 4, v23
    v_lshrrev_b32 v23, 1, v21
    v_and_b32 v21, 1, v21
    v_lshl_add_u32 v21, v23, 2, v21
    v_and_b32 v22, 1, v20                     ; p
    v_lshl_add_u32 v21, v22, 1, v21
    v_bfe_u32 v22, v20, 2, 1                  ; gq>>1
    v_lshl_add_u32 v21, v22, 4, v21
    v_bfe_u32 v22, v20, 1, 1                  ; gq&1
    v_lshlrev_b32 v21, 4, v21
    v_lshl_add_u32 v26, v22, 3, v21
    s_lshl_b32 {s(S_T0)}, {s(S_J)}, 10
    s_lshl_b32 {s(S_T1)}, {s(S_W)}, 9
    s_add_u32 {s(S_T0)}, {s(S_T0)}, {s(S_T1)}
    s_lshl_b32 {s(S_T1)}, {s(S_W)}, 6
    s_lshl_b32 {s(S_T2)}, {s(S_J)}, 9
    s_add_u32 {s(S_T2)}, {s(S_T2)}, 4096
    s_cmp_ge_u32 {s(S_W)}, 2
    s_cselect_b32 {s(S_T0)}, {s(S_T2)}, {s(S_T0)}
    s_cselect_b32 {s(S_T1)}, 2560, {s(S_T1)}
    s_cselect_b64 vcc, -1, 0
    v_cndmask_b32 v22, v25, v26, vcc
    v_cndmask_b32 v23, v27, v28, vcc
    v_add_u32 {v(PV_QST)}, {s(S_T0)}, v22
    v_add_u32 {v(PV_R1R)}, {s(S_T1)}, v23
    v_lshrrev_b32 v21, 4, v20                 ; g
    v_and_b32 v22, 15, v20                    ; n
    v_mul_u32_u24 v23, 320, v21
    v_lshl_add_u32 v23, v22, 2, v23
    s_mul_i32 {s(S_T0)}, {s(S_W)}, 3840
    v_add_u32 {v(PV_R1W)}, {s(S_T0)}, v23
    v_add_u32 {v(PV_R1W1)}, 1280, {v(PV_R1W)}
    v_bfe_u32 v24, v20, 3, 1
    v_bfe_u32 v25, v20, 2, 1
    v_xor_b32 v25, v25, v24                   ; hs
    v_bfe_u32 v26, v20, 1, 1                  ; p
    v_lshl_add_u32 v25, v26, 1, v25
    v_lshl_add_u32 v25, v24, 2, v25
    v_and_b32 v26, 1, v20
    v_lshl_add_u32 v25, v25, 1, v26           ; pos(n)
    v_sub_u32 v25, v25, v22
    v_lshl_add_u32 v25, v25, 2, {v(PV_R1W)}
    v_add_u32 {v(PV_R1W2)}, 2560, v25
    v_lshlrev_b32 v23, 4, v22
    v_lshl_add_u32 {v(PV_SGR)}, v21, 12, v23
    s_lshl_b32 {s(S_T0)}, {s(S_W)}, 10
    s_add_u32 {s(S_T0)}, {s(S_T0)}, {LDS_SEG}
    v_add_u32 {v(PV_SGR)}, {s(S_T0)}, {v(PV_SGR)}
    v_lshrrev_b32 v24, 1, v21
    v_lshl_add_u32 v23, v24, 15, v23
    v_and_b32 v24, 1, v21
    v_lshl_add_u32 {v(PV_SPS)}, v24, 8, v23
    v_mov_b32 {v(PV_FLGR)}, {LDS_FLG}
    v_bfe_u32 v23, v20, 1, 2                  ; t>>1
    v_lshlrev_b32 v23, 6, v23
    v_and_b32 v25, 1, v20
    v_lshl_add_u32 v23, v25, 4, v23
    v_lshrrev_b32 v24, 5, v20
    v_lshl_add_u32 {v(PV_MST)}, v24, 5, v23
    v_and_b32 v23, 7, v20
    v_lshlrev_b32 v23, 7, v23
    v_bfe_u32 v24, v20, 3, 1
    v_lshl_add_u32 v23, v24, 17, v23
    v_lshrrev_b32 v24, 4, v20
    v_add_u32 v24, 1, v24
    v_cmp_le_u32 vcc, 3, v24
    s_nop 1
    v_cndmask_b32 v24, v24, 0, vcc
    v_lshl_add_u32 v23, v24, 24, v23
    s_lshl_b32 {s(S_T0)}, {s(S_G)}, 14
    s_lshl_b32 {s(S_T1)}, {s(S_C)}, 10
    s_add_u32 {s(S_T0)}, {s(S_T0)}, {s(S_T1)}
    s_add_u32 {s(S_T0)}, {s(S_T0)}, {WS_QS}
    v_add_u32 {v(PV_PFA)}, {s(S_T0)}, v23
    s_lshl_b32 {s(S_T0)}, {s(S_W)}, 2
    s_add_u32 {s(S_T0)}, {s(S_T0)}, {LDS_FLG}
    v_mov_b32 {v(PV_FLGW)}, {s(S_T0)}
    ''')
    sel_init(a, PV_SEL, 20, 21, 22)
    a('s_waitcnt vmcnt(0)')
    for i in range(16): a(f'v_mov_b32 {v(PV_M+i)}, {v(32+i)}')

def gate_addr(a, d, add, tg):
    a(f's_add_u32 {s(S_T4)}, {s(S_S)}, {add}')
    a(f's_min_u32 {s(S_T4)}, {s(S_T4)}, 63')
    a(f's_cmp_ge_u32 {s(S_T4)}, {a.s0}')
    a(f's_cselect_b32 {s(tg)}, 12, 8')
    if a.scb < 64:
        a(f's_cmp_ge_u32 {s(S_T4)}, {a.scb}')
        a(f's_cselect_b32 {s(tg)}, 0, {s(tg)}')
    a(f's_and_b32 {s(d)}, {s(S_T4)}, 4')
    a(f's_lshr_b32 {s(S_T4)}, {s(S_T4)}, 3')
    a(f's_lshl_b32 {s(S_T4)}, {s(S_T4)}, 8')
    a(f's_add_u32 {s(d)}, {s(d)}, {s(S_T4)}')
    a(f's_add_u32 {s(d)}, {s(d)}, {s(S_CQG)}')

def p_gate(a, k):
    l = a.uid('gate')
    a(f's_bitcmp1_b32 {s(S_OK)}, {k}')
    a(f's_cbranch_scc1 {l}_ok')
    gate_addr(a, S_RDG, 1 + k, S_T2)
    a.label(l)
    a(f'buffer_load_dword {v(PV_T)}, off, {s(SRD_WS,4)}, {s(S_RDG)} sc1')
    a('s_waitcnt vmcnt(0)')
    a(f'v_readfirstlane_b32 {s(S_T4)}, {v(PV_T)}')
    a(f's_cmp_ge_u32 {s(S_T4)}, {s(S_T2)}')
    a(f's_cbranch_scc1 {l}_set')
    a('s_sleep 8')
    a(f's_sub_u32 {s(S_TO)}, {s(S_TO)}, 1')
    a(f's_cbranch_scc0 {l}')
    a(f's_mov_b32 {s(S_TO)}, 0')
    a.label(l + '_set')
    a(f's_bitset1_b32 {s(S_OK)}, {k}')
    a.label(l + '_ok')

def dma_list(a, m, vl16, st, S_KG=S_KG, S_KL=S_KL, hd=0):
    base = (WS_KS, WS_VS, WS_QS)[m] + 4096 * hd
    o = []
    for kt in range(2):
        for u in range(4):
            pre = f's_add_u32 m0, {s(S_KL)}, {8192*m + 4096*kt + 24576*hd}\ns_add_u32 {s(st)}, {s(S_KG)}, {base + 131072*kt}\n' if u == 0 else ''
            o.append(pre + f'buffer_load_dwordx4 {v(vl16)}, {s(SRD_WS,4)}, {s(st)} offen offset:{1024*u} sc1{a.bnt} lds')
    return o

def reg_list(a, m, reg, st):
    base = (WS_KS, WS_VS, WS_QS)[m]
    o = []
    for kt in range(2):
        for u in range(4):
            pre = f's_add_u32 {s(st+kt)}, {s(S_KG)}, {base + 131072*kt}\n' if u == 0 else ''
            o.append(pre + f'buffer_load_dwordx4 {v(reg+(kt*4+u)*4,4)}, {v(AV_L16)}, {s(SRD_WS,4)}, {s(st+kt)} offen offset:{1024*u} sc1{a.bnt}')
    return o

def p_segreduce(a, part=3):
    if part & 1: p_segcalc(a)
    if part & 2: p_segstore(a)

def p_segcalc(a):
    S1 = 48
    for ul in range(2):
        for rt in range(2):
            a(f'ds_read_b128 {v(PV_M+4*(2*ul+rt),4)}, {v(PV_SGR)} offset:{512*ul+256*rt}')
    a(f'v_xor_b32 {v(PV_SGR)}, 0x4000, {v(PV_SGR)}')
    for ul in range(2):
        D = 40 + 4 * ul
        a(f's_waitcnt lgkmcnt({2-2*ul})')
        a(f'v_mfma_f32_16x16x32_bf16 {v(D,4)}, {v(PV_SEL,4)}, {v(PV_M+8*ul,4)}, 0')
        a(f'v_mfma_f32_16x16x32_bf16 {v(D,4)}, {v(S1,4)}, {v(PV_M+8*ul+4,4)}, {v(D,4)}')
    a('s_nop 7')
    a('v_cvt_pk_bf16_f32 v40, v40, v41')
    a('v_cvt_pk_bf16_f32 v41, v42, v43')
    a('v_cvt_pk_bf16_f32 v42, v44, v45')
    a('v_cvt_pk_bf16_f32 v43, v46, v47')
    a('s_nop 1')
    a('v_permlane16_swap_b32 v40, v42')
    a('v_permlane16_swap_b32 v41, v43')
    a('s_nop 1')
    a('v_min_u32 v40, -2, v40')

def p_segstore(a):
    a(f'buffer_store_dwordx4 v[40:43], {v(PV_SPS)}, {s(SRD_WS,4)}, {s(S_SP)} offen sc1{a.spnt}')
    a(f's_add_u32 {s(S_SP)}, {s(S_SP)}, 65536')

def p_loop(a, loc, prof, done):
    LH = a.uid('ploopH')
    for i in range(24): a(f'v_mov_b32 {v(PV_ACC+i)}, 0')
    a(f'v_mov_b32 {v(PV_FV)}, 0')
    a('s_nop 1')
    if a.s1:
        LL = a.uid('ploopL')
        a(f's_branch {LL}_nc')
        p_body(a, loc, Prof(prof), done, LL, True, LH, True)
    else: a(f's_branch {LH}_nc')
    p_body(a, loc, Prof(prof), done, LH, False, None, not a.s1)

def p_body(a, loc, pf, done, L, light, nxt, entry):
    Lrm = L + '_rm'; Lrp = L + '_rp'
    mld = [f'buffer_load_dwordx4 {v(PV_M+4*j,4)}, {v(PV_L16)}, {s(SRD_WS,4)}, {s(S_MLD)} offen offset:{1024*j} sc1' for j in range(4)]
    mreg = lambda b: [PV_M + 4 * b]
    def mm(check):
        if check:
            a('s_waitcnt vmcnt(3)')
            for x in chk(mreg(0), PV_T, f'{Lrm}_0'): a(x)
            a.label(f'{Lrm}_0ok')
            pf.stamp(a, 'b0ok')
        for b in range(4):
            ms = [f'v_smfmac_f32_16x16x64_bf16 {v(PV_ACC+4*t,4)}, {v(PV_M+4*b,4)}, {v(pw(b,t),8)}, {v(PV_IDX)}' for t in range(4 if a.qkf else 6)]
            if check and b < 3:
                c = chk(mreg(b + 1), PV_T, f'{Lrm}_{b+1}')
                ms = ms[:a.mck] + [f's_waitcnt vmcnt({2-b})'] + c[:-1] + ms[a.mck:] + c[-1:]
            if b == 3:
                ms = ms[:1] + [f'ds_write_b32 {v(PV_FLGW)}, {v(PV_FV)} offset:32'] + ms[1:]
            for x in ms: a(x)
            if check and b < 3: a.label(f'{Lrm}_{b+1}ok')
    if a.al: a.raw(f'.p2align {a.al}')
    for i in range(a.alo): a('s_nop 0')
    a.label(L)
    pf.stamp(a, 'top')
    for i in range(24): a(f'v_mov_b32 {v(PV_ACC+i)}, 0')
    if light and a.jit: p_gate(a, 0)
    if a.md: a(f's_sleep {a.md}')
    for x in mld: a(x)
    mm(True)
    if entry:
        a(f's_branch {L}_mmd')
        a.label(L + '_nc')
        if pf.on:
            a(f's_memtime {s(S_PROF, 2)}'); a(f's_memtime {s(S_PROF+2, 2)}')
        mm(False)
        a.label(L + '_mmd')
    pf.stamp(a, 'mmdone')
    def wr(t):
        A = PV_ACC + 4 * t
        a(f'v_add_f32 {v(A)}, {v(A)}, {v(A+2)}'); a(f'v_add_f32 {v(A+1)}, {v(A+1)}, {v(A+3)}')
        a(f'ds_write2_b32 {v((PV_R1W, PV_R1W1, PV_R1W2)[t>>1])}, {v(A)}, {v(A+1)} offset0:{16*(t&1)} offset1:{16*(t&1)+40}')
    R = 32
    def add4(d, x):
        for e in range(4): a(f'v_add_f32 {v(d+e)}, {v(d+e)}, {v(x+e)}')
    def reduce(fill=()):
        for h in range(4):
            a(f'ds_read_b128 {v(R+4*h,4)}, {v(PV_R1R)} offset:{LDS_RED1+3840*h}')
        for x in fill: a(x)
        a('s_waitcnt lgkmcnt(2)')
        add4(R, R + 4)
        a('s_waitcnt lgkmcnt(0)')
        add4(R + 8, R + 12)
        add4(R, R + 8)
        a(f'v_cvt_pk_bf16_f32 v56, {v(R)}, {v(R+1)}')
        a(f'v_cvt_pk_bf16_f32 v57, {v(R+2)}, {v(R+3)}')
        a('v_min_u32 v56, -2, v56')
        a(f'buffer_store_dwordx2 v[56:57], {v(PV_QST)}, {s(SRD_WS,4)}, {s(S_QST)} offen{loc}')
    def qreset():
        ring(a, S_QRS, 2, 18, S_QO)
        a(f'buffer_store_dwordx2 {v(PV_NEG,2)}, {v(PV_QST)}, {s(SRD_WS,4)}, {s(S_QRS)} offen{loc}')
    if a.qkf:
        vm = [f'v_smfmac_f32_16x16x64_bf16 {v(PV_ACC+4*t,4)}, {v(PV_M+4*b,4)}, {v(pw(b,t),8)}, {v(PV_IDX)}' for b in range(4) for t in (4, 5)]
        a(f's_cmp_ge_u32 {s(S_W)}, 2')
        for x in vm[:2]: a(x)
        a('s_nop 1')
        for t in range(4): wr(t)
        for x in vm[2:4]: a(x)
        a('s_waitcnt lgkmcnt(0)')
        pf.stamp(a, 'b1rdy', -2)
        a('s_barrier')
        pf.stamp(a, 'b1')
        a(f's_cbranch_scc1 {L}_sk0')
        reduce(vm[4:])
        a(f's_branch {L}_sk0b')
        a.label(L + '_sk0')
        for x in vm[4:]: a(x)
        a('s_nop 6')
        a.label(L + '_sk0b')
        a(f's_cmp_lg_u32 {s(S_W)}, 2')
        wr(4); wr(5)
        a('s_waitcnt lgkmcnt(0)')
        a('s_barrier')
        a(f's_cbranch_scc1 {L}_sk2')
        reduce()
        a.label(L + '_sk2')
        a(f's_cmp_eq_u32 {s(S_W)}, 3')
        a(f's_cbranch_scc1 {L}_sk1')
        qreset()
    else:
        a(f's_cmp_eq_u32 {s(S_W)}, 3')
        a('s_nop 1')
        for t in range(6): wr(t)
        a('s_waitcnt lgkmcnt(0)')
        pf.stamp(a, 'b1rdy', -2)
        a('s_barrier')
        pf.stamp(a, 'b1')
        a(f's_cbranch_scc1 {L}_sk1')
        reduce()
        qreset()
    a.label(L + '_sk1')
    pf.stamp(a, 'qpub', -2)
    a('s_setprio 0')
    sc = light and a.scb < 64
    NU = 2 * (64 - a.scb)
    def sc_cond(lo, lab):
        a(f's_sub_u32 {s(S_T0)}, {s(S_S)}, {lo}')
        a(f's_cmp_ge_u32 {s(S_T0)}, {NU}')
        a(f's_cbranch_scc1 {lab}')
    if sc:
        assert a.sc0 + NU + 1 < a.s1 and a.sc0 + NU + 2 < 63 and a.sc0 + 4 < a.scb
        sc_cond(a.sc0 + 1, L + '_nsc')
        a(f's_setprio {a.scp}')
        a(f'v_add_u32 {v(PV_T)}, {s(S_XB)}, {v(PV_L16)}')
        if not a.xpos: a(f's_xor_b32 {s(S_XB)}, {s(S_XB)}, {s(S_XBX)}')
        rd = lambda k: f'ds_read_b128 {v(PV_M+4*(k&3),4)}, {v(PV_T)} offset:{1024*k}'
        for k in range(4): a(rd(k))
        for k in range(8):
            a(f's_waitcnt lgkmcnt({min(3, 7-k) if k < 4 or True else 0})' if k == 0 else f's_waitcnt lgkmcnt({min(2, 7-k)})')
            for t in range(6):
                d = v(PV_ACC + 4 * t, 4)
                a(f'v_mfma_f32_16x16x32_bf16 {d}, {v(PV_M+4*(k&3),4)}, {v(pw(k>>1,t)+4*(k&1),4)}, {"0" if k == 0 else d}')
                if t == 2 and 1 <= k and k + 3 < 8: a(rd(k + 3))
        a(f"""
        v_lshrrev_b32 {v(PV_M)}, 8, {v(PV_L16)}
        v_mul_u32_u24 {v(PV_M)}, 576, {v(PV_M)}
        v_bfe_u32 {v(PV_M+1)}, {v(PV_L16)}, 4, 4
        v_lshl_add_u32 {v(PV_M)}, {v(PV_M+1)}, 2, {v(PV_M)}
        s_mul_i32 {s(S_T0)}, {s(S_W)}, 6912
        s_add_u32 {s(S_T0)}, {s(S_T0)}, {LDS_SCP}
        v_add_u32 {v(PV_M)}, {s(S_T0)}, {v(PV_M)}
        v_add_u32 {v(PV_M+1)}, 2304, {v(PV_M)}
        v_add_u32 {v(PV_M+2)}, 4608, {v(PV_M)}
        """)
        for t in range(6):
            for i in (0, 2):
                a(f'ds_write2_b32 {v(PV_M+(t>>1))}, {v(PV_ACC+4*t+i)}, {v(PV_ACC+4*t+i+1)} offset0:{36*i+16*(t&1)} offset1:{36*i+36+16*(t&1)}')
        a('s_waitcnt lgkmcnt(0)')
        a('s_setprio 0')
        a.label(L + '_nsc')
    ring(a, S_MRS, 3, a.msh, S_MSO)
    mex = f's_mov_b64 exec, {s(S_MEX,2)}'
    for d in range(4): a(f'v_mov_b32 {v(44+d)}, -1')
    a(mex)
    a(f'buffer_store_dwordx4 v[44:47], {v(PV_MST)}, {s(SRD_WS,4)}, {s(S_MRS)} offen{loc}')
    a('s_mov_b64 exec, -1')
    for d in range(4): a(f'v_mov_b32_dpp {v(48+d)}, {v(PV_SEL+d)} row_ror:8 row_mask:0xf bank_mask:0xf')
    ring(a, S_PLD, 0, PSLOT, S_PO)
    ring(a, S_MST, 1, a.msh, S_MSO)
    ring(a, S_MLD, 1, a.msh, S_MO)
    ring(a, S_QST, 1, 18, S_QO)
    def seg(part):
        if 's' in a.abl: return
        Lh = a.uid('pnoseg')
        a(f's_cmp_eq_u32 {s(S_SP)}, {s(S_SP0)}')
        a(f's_cbranch_scc1 {Lh}')
        p_segreduce(a, part)
        a.label(Lh)
    def oflush(part):
        l = a.uid('ofl')
        a(f's_cmp_eq_u32 {s(S_OF)}, 0')
        a(f's_cbranch_scc1 {l}')
        if part == 1:
            a(f's_lshl_b32 {s(S_T0)}, {s(S_W)}, 10')
            a(f'v_add_u32 v39, {s(S_T0)}, {v(PV_L16)}')
            a(f'ds_read_b128 v[40:43], v39 offset:{LDS_SEG}')
        else:
            a(f's_lshl_b32 {s(S_T0)}, {s(S_S)}, 18')
            a(f's_add_u32 {s(S_T0)}, {s(S_T0)}, {s(S_OB)}')
            if 'o' not in a.abl: a(f'buffer_store_dwordx4 v[40:43], {v(PV_L16)}, {s(SRD_WS,4)}, {s(S_T0)} offen sc1')
            a(f's_mov_b32 {s(S_OF)}, 0')
        a.label(l)
    unit = a.s0 < a.s1
    if unit: oflush(1)
    if light:
        a(f"""
        s_cmp_ge_u32 {s(S_S)}, {a.s0}
        s_cbranch_scc1 {L}_nx
        v_mov_b32 v40, {v(PV_QST)}
        v_mov_b32 v42, v56
        v_mov_b32 v43, v57
        s_cmp_lg_u32 {s(S_W)}, 2
        s_cbranch_scc1 {L}_nx
        v_and_b32 v40, 0x60, {v(PV_L16)}
        v_lshlrev_b32 v40, 2, v40
        v_lshrrev_b32 v41, 3, {v(PV_L16)}
        v_and_b32 v41, 0x70, v41
        v_or_b32 v40, v40, v41
        v_bfe_u32 v41, {v(PV_L16)}, 4, 1
        v_lshl_or_b32 v40, v41, 3, v40
        s_lshl_b32 {s(S_T0)}, {s(S_J)}, 9
        s_add_u32 {s(S_T0)}, {s(S_T0)}, 4096
        v_add_u32 v40, {s(S_T0)}, v40
        s_mov_b32 vcc_lo, 0x55555555
        s_mov_b32 vcc_hi, 0x55555555
        v_cndmask_b32_dpp v42, v57, v56, vcc quad_perm:[1,0,3,2] row_mask:0xf bank_mask:0xf
        s_not_b64 vcc, vcc
        v_cndmask_b32_dpp v43, v56, v57, vcc quad_perm:[1,0,3,2] row_mask:0xf bank_mask:0xf
        """)
        a.label(L + '_nx')
    else:
        a(f's_cmp_eq_u32 {s(S_S)}, {a.last}')
        a(f's_cbranch_scc1 {L}_tail')
        seg(1)
    if not (light and a.jit): p_gate(a, 1 if light else 0)
    a(f'v_readfirstlane_b32 {s(S_T4)}, {v(PV_RDY)}')
    a(f's_lshr_b32 {s(S_OK)}, {s(S_OK)}, 1')
    a(f's_cmp_ge_u32 {s(S_T4)}, {s(S_RTG)}')
    a(f's_cselect_b32 {s(S_T4)}, 2, 0')
    a(f's_or_b32 {s(S_OK)}, {s(S_OK)}, {s(S_T4)}')
    a(f's_cmp_eq_u32 {s(S_W)}, 3')
    a(f's_cselect_b32 {s(S_T3)}, {s(S_T4)}, 0')
    gate_addr(a, S_RDY, 4, S_RTG)
    dl = []
    for m, ch in (((1, 'v'),) if a.hk and not light else ((0, 'k'), (1, 'v'))[:1 if light else 2]):
        if ch not in a.abl and not (light and a.lr & 2): dl += dma_list(a, m, PV_L16, S_T0)
    nd1 = a.ndl if light else a.nd1
    a(f's_setprio {a.fprio}')
    flag_wait(a, L + '_fs', PV_FLGR, 0, 32, S_T1, sl=a.fsl)
    pf.stamp(a, 'flag')
    a(f's_setprio {a.dprio}')
    for x in dl[:nd1]: a(x)
    def xdma(lo, hi, tag):
        if lo == hi: return
        sc_cond(a.sc0, L + tag)
        for k in range(lo, hi):
            if k == lo or k == 4:
                a(f's_add_u32 m0, {s(S_XB)}, {4096*(k>>2)}')
                a(f's_add_u32 {s(S_T0)}, {s(S_XG)}, {4096*(k>>2)}')
            a(f'buffer_load_dwordx4 {v(PV_L16)}, {s(SRD_WS,4)}, {s(S_T0)} offen offset:{1024*(k&3)} sc1 lds')
        if hi == 8: a(f's_add_u32 {s(S_XG)}, {s(S_XG)}, 32768')
        a.label(L + tag)
    if sc and a.xpos: xdma(0, a.nx1, '_x1')
    if light and a.ofd:
        if sc:
            a(f's_sub_u32 {s(S_T0)}, {s(S_S)}, {a.sc0}')
            a(f's_cmp_le_u32 {s(S_T0)}, {NU}')
            a(f's_cbranch_scc1 {L}_nofd')
        a(f's_sleep {a.ofd}')
        a.label(L + '_nofd')
    if 't' not in a.abl:
        a(f's_cmp_eq_u32 {s(S_T3)}, 0')
        a(f's_cbranch_scc1 {L}_nt')
        if light:
            a(f's_cmp_ge_u32 {s(S_S)}, {max(a.s0 - 3, 0)}')
            a('s_cselect_b32 exec_hi, 0xffff, 0')
        else: a('s_mov_b32 exec_hi, 0xffff')
        a(f'buffer_load_dword {v(PV_RDY)}, {v(PV_PFA)}, {s(SRD_WS,4)}, {s(S_TCH)} offen sc1')
        a('s_mov_b32 exec_hi, -1')
        if a.ctch:
            for n, (st, lab, nl) in enumerate(((a.s1 - 2, nxt, 18), (a.s1 - 2, 'ct_aH', 30)) if light else ((a.last - 2, 'ct_tail', 2), (a.last - 2, L + '_tail', 4))):
                a(f's_cmp_lg_u32 {s(S_S)}, {st}')
                a(f's_cbranch_scc1 {L}_nt')
                vcode_touch(a, lab, nl, 62, PV_L16, 38, PV_RDY)
        a.label(L + '_nt')
    if sc:
        a(f's_cmp_lg_u32 {s(S_W)}, 2')
        a(f's_cbranch_scc1 {L}_nxt')
        sc_cond(a.sc0 - 2, L + '_nxt')
        a(f's_lshl_b32 {s(S_T0)}, {s(S_T0)}, 15')
        a(f's_lshl_b32 {s(S_T1)}, {s(S_I)}, 10')
        a(f's_add_u32 {s(S_T0)}, {s(S_T0)}, {s(S_T1)}')
        a(f's_add_u32 {s(S_T0)}, {s(S_T0)}, {WS_XN2 + a.scb * 65536}')
        a(f'v_lshlrev_b32 v39, 3, {v(PV_L16)}')
        a('s_mov_b64 exec, 0xff')
        a(f'buffer_load_dword {v(PV_RDY)}, v39, {s(SRD_WS,4)}, {s(S_T0)} offen sc1')
        a('s_mov_b64 exec, -1')
        a.label(L + '_nxt')
    if unit: oflush(2)
    if light:
        if unit:
            a(f's_lshr_b32 {s(S_T0)}, {s(S_C)}, 3')
            a(f's_xor_b32 {s(S_T0)}, {s(S_T0)}, {s(S_S)}')
            a(f's_andn2_b32 {s(S_OF)}, 1, {s(S_T0)}')
            a(f's_cmp_ge_u32 {s(S_S)}, {a.s0}')
            a(f's_cselect_b32 {s(S_OF)}, {s(S_OF)}, 0')
            a(f's_cbranch_scc1 {L}_nx2')
        a(f's_cmp_eq_u32 {s(S_W)}, 3')
        a(f's_cbranch_scc1 {L}_nx2')
        if 'x' not in a.abl: a(f'buffer_store_dwordx2 v[42:43], v40, {s(SRD_WS,4)}, {s(S_KMX)} offen sc1')
        a.label(L + '_nx2')
        a(f's_add_u32 {s(S_KMX)}, {s(S_KMX)}, 262144')
    else: seg(2)
    if a.pgp:
        a(f's_or_b32 {s(S_T0)}, {s(S_I)}, {s(S_W)}')
        a(f's_cmp_lg_u32 {s(S_T0)}, 0')
        a(f's_cbranch_scc1 {L}_npg')
        a(f's_sub_u32 {s(S_T4)}, {s(S_S)}, 1')
        a(f's_cbranch_scc1 {L}_npg')
        a(f's_and_b32 {s(S_T0)}, {s(S_T4)}, 3')
        a(f's_cmp_ge_u32 {s(S_S)}, 58')
        a(f's_cselect_b32 {s(S_T0)}, 0, {s(S_T0)}')
        a(f's_cmp_lg_u32 {s(S_T0)}, 0')
        a(f's_cbranch_scc1 {L}_npg')
        a(f's_lshl_b32 {s(S_T0)}, {s(S_X)}, 7')
        a(f's_add_u32 {s(S_T0)}, {s(S_T0)}, {F.CS_TAB}')
        a(f'v_mov_b32 {v(PV_T)}, {s(S_T4)}')
        a('s_mov_b64 exec, 1')
        a(f'buffer_store_dword {v(PV_T)}, off, {s(SRD_WS,4)}, {s(S_T0)} sc1')
        a('s_mov_b64 exec, -1')
        a.label(L + '_npg')
    if a.rdp: a(f'buffer_load_dword {v(PV_RDY)}, off, {s(SRD_WS,4)}, {s(S_RDY)} sc1')
    pf.stamp(a, 'b2rdy')
    a('s_barrier')
    pf.stamp(a, 'b2')
    if a.dtim:
        a(f's_or_b32 {s(S_T0)}, {s(S_ID)}, {s(S_W)}')
        a(f's_and_b32 {s(S_T1)}, {s(S_S)}, 7')
        a(f's_or_b32 {s(S_T0)}, {s(S_T0)}, {s(S_T1)}')
        a(f's_cmp_lg_u32 {s(S_T0)}, 0')
        a(f's_cbranch_scc1 {L}_ndt')
        a('s_memrealtime s[96:97]')
        a(f's_lshr_b32 {s(S_T0)}, {s(S_S)}, 1')
        a('s_waitcnt lgkmcnt(0)')
        a(f'v_mov_b32 {v(PV_T)}, s96')
        a('s_mov_b64 exec, 1')
        a(f'buffer_store_dword {v(PV_T)}, off, {s(F.SRD_DBG,4)}, {s(S_T0)} offset:24')
        a('s_mov_b64 exec, -1')
        a.label(L + '_ndt')
    if not a.rdp: a(f'buffer_load_dword {v(PV_RDY)}, off, {s(SRD_WS,4)}, {s(S_RDY)} sc1')
    if sc:
        a(f's_cmp_eq_u32 {s(S_W)}, 3')
        a(f's_cbranch_scc1 {L}_nsr')
        sc_cond(a.sc0 + 1, L + '_nsr')
        a(f"""
        v_bfe_u32 v56, {v(PV_L16)}, 4, 4
        v_mul_u32_u24 v56, 144, v56
        v_lshrrev_b32 v57, 8, {v(PV_L16)}
        v_lshl_add_u32 v56, v57, 5, v56
        v_and_b32 v57, 1, v57
        s_mul_i32 {s(S_T0)}, {s(S_W)}, 2304
        s_add_u32 {s(S_T0)}, {s(S_T0)}, {LDS_SCP}
        v_add_u32 v56, {s(S_T0)}, v56
        v_sub_u32 {v(PV_T)}, 1, v57
        v_lshl_add_u32 {v(PV_T)}, {v(PV_T)}, 4, v56
        v_lshl_add_u32 v56, v57, 4, v56
        """)
        for h in range(4):
            a(f'ds_read_b128 {v(16+8*h,4)}, v56 offset:{6912*h}')
            a(f'ds_read_b128 {v(20+8*h,4)}, {v(PV_T)} offset:{6912*h}')
        a('s_waitcnt lgkmcnt(4)')
        for e in range(8): a(f'v_add_f32 {v(16+e)}, {v(16+e)}, {v(24+e)}')
        a('s_waitcnt lgkmcnt(0)')
        for e in range(8): a(f'v_add_f32 {v(32+e)}, {v(32+e)}, {v(40+e)}')
        for e in range(8): a(f'v_add_f32 {v(16+e)}, {v(16+e)}, {v(32+e)}')
        for d in range(4): a(f'v_cvt_pk_bf16_f32 {v(44+d)}, {v(16+2*d)}, {v(17+2*d)}')
        a(f'buffer_store_dwordx4 v[44:47], {v(PV_L16)}, {s(SRD_WS,4)}, {s(S_SCO)} offen{loc}')
        a(f's_add_u32 {s(S_SCO)}, {s(S_SCO)}, 131072')
        a(f's_branch {L}_nsr2')
        a.label(L + '_nsr')
        a(f's_sleep {a.scd}')
        a.label(L + '_nsr2')
        if a.xpos: xdma(a.nx1, 8, '_x2')
        a(f's_sleep {max(a.cdl - a.scd - a.scx, 0)}')
    if dl[nd1:]:
        if a.d2: a(f's_sleep {a.d2}')
        for x in dl[nd1:]: a(x)
    a(f's_add_u32 {s(S_S)}, {s(S_S)}, 1')
    a(f'v_mov_b32 {v(PV_FV)}, {s(S_S)}')
    a(f's_add_u32 {s(S_KG)}, {s(S_KG)}, 262144')
    a(f's_add_u32 {s(S_TCH)}, {s(S_TCH)}, 262144')
    if not light: a(f's_mov_b32 {s(S_SP0)}, 0')
    a('s_setprio 3')
    cd = 0 if sc else a.cdl if light else a.cdh if a.hk else a.cd
    if cd: a(f's_sleep {cd}')
    pf.stamp(a, 'poll')
    a.label(L + '_pagain')
    for i in range(2): a(f'buffer_load_dwordx4 {v(PV_M+4*i,4)}, {v(PV_L16)}, {s(SRD_WS,4)}, {s(S_PLD)} offen offset:{1024*i} sc1')
    D = 32
    a('s_waitcnt vmcnt(1)')
    a(f'v_mfma_f32_16x16x32_bf16 {v(D,4)}, {v(PV_SEL,4)}, {v(PV_M,4)}, 0')
    a('s_waitcnt vmcnt(0)')
    pf.stamp(a, 'p1')
    a(f'v_mfma_f32_16x16x32_bf16 {v(D,4)}, v[48:51], {v(PV_M+4,4)}, {v(D,4)}')
    for x in chk([PV_M, PV_M + 4], PV_T, Lrp): a(x)
    a.label(L + '_pgo')
    if light: a(f's_cmp_lt_u32 {s(S_S)}, {a.s1}')
    a(f's_nop {3 if light else 4}')
    for e in range(4): a(f'v_add_f32_dpp {v(D+4+e)}, {v(D+e)}, {v(D+e)} row_ror:8 row_mask:0xf bank_mask:0xf')
    a(f'v_cvt_pk_bf16_f32 v52, {v(D+4)}, {v(D+5)}')
    a(f'v_cvt_pk_bf16_f32 v53, {v(D+6)}, {v(D+7)}')
    a('s_nop 0')
    a('v_permlane16_swap_b32 v52, v54')
    a('v_permlane16_swap_b32 v53, v55')
    a(mex)
    a('v_min_u32 v52, -2, v52')
    a(f'buffer_store_dwordx4 v[52:55], {v(PV_MST)}, {s(SRD_WS,4)}, {s(S_MST)} offen{loc}')
    a('s_mov_b64 exec, -1')
    a(f'ds_write_b32 {v(PV_FLGW)}, {v(PV_FV)} offset:16')
    pf.stamp(a, 'mpub')
    if pf.on:
        a(f's_sub_u32 {s(S_S)}, {s(S_S)}, 1')
        pf.flush(a, 56, 'P')
        a(f's_add_u32 {s(S_S)}, {s(S_S)}, 1')
        if light: a(f's_cmp_lt_u32 {s(S_S)}, {a.s1}')
    if light:
        a(f's_cbranch_scc1 {L}')
        a(f's_branch {nxt}')
    else: a(f's_branch {L}')
    for b in range(4):
        spin_block(a, f'{Lrm}_{b}', mld[b:], mreg(b), PV_T, f'{Lrm}_{b}ok', f'{Lrm}_{b}ok')
    a.label(Lrp)
    if a.rsleep: a(f's_sleep {a.rsleep}')
    a(f's_sub_u32 {s(S_TO)}, {s(S_TO)}, 1')
    a(f's_cbranch_scc0 {L}_pagain')
    a(f's_mov_b32 {s(S_TO)}, 0')
    a(f's_branch {L}_pgo')
    if not light:
        a.label(L + '_tail')
        p_segreduce(a)
        a('s_barrier')
        p_segreduce(a)
        a(f's_branch {done}')

AV_L16, AV_PST, AV_MX, AV_T = 0, 1, 2, 3
AV_ONE = 4
AV_HALF = 8
AV_IDX = 166
AV_FLGR = 167
AV_VMW, AV_TRV, AV_TRM = 180, 181, 182
S_QM = 56
AV_S = 12
AV_O = 24
AV_VWM = 40
AV_Y, AV_X = 48, 64
AV_VWS = 80
AV_KS, AV_TB = 96, 128
AV_NEG, AV_R2W, AV_R2R, AV_SGW, AV_LB, AV_FLGW, AV_FV = 176, 160, 161, 162, 163, 164, 165
AV_PK = 168
AV_SEL = 184
AV_FT = 188
AV_WO = 192
def wo(u, ct): return AV_WO + (ct * 4 + u) * 4
def xk(u): return AV_Y + 4 * u

def tr_addr(a, vd, vl, rowbytes, T, hh, t1, t2):
    sh = rowbytes.bit_length() - 1
    a(f'''
    v_lshrrev_b32 {v(t1)}, 4, {v(vl)}
    v_and_b32 {v(t2)}, 1, {v(t1)}
    v_xor_b32 {v(t2)}, {hh}, {v(t2)}
    v_lshlrev_b32 {v(t2)}, 2, {v(t2)}
    v_lshl_add_u32 {v(t2)}, {v(t1)}, 3, {v(t2)}
    v_bfe_u32 {v(t1)}, {v(vl)}, 2, 2
    v_add_u32 {v(t2)}, {v(t2)}, {v(t1)}
    v_lshlrev_b32 {v(t2)}, {sh}, {v(t2)}
    v_and_b32 {v(t1)}, 3, {v(vl)}
    v_lshl_add_u32 {v(t2)}, {v(t1)}, 4, {v(t2)}
    v_and_b32 {v(t1)}, 1, {v(t1)}
    v_xor_b32 {v(t1)}, {T}, {v(t1)}
    v_lshl_add_u32 {v(vd)}, {v(t1)}, 3, {v(t2)}
    ''')

def vw_list(AV_TB):
    m = []
    for u in range(4):
        for kt in range(2):
            for ct in range(4):
                d = AV_Y + (kt * 4 + ct) * 4
                m.append(f'v_mfma_f32_16x16x32_bf16 {v(d,4)}, {v(AV_TB+(kt*4+u)*4,4)}, {v(wo(u,ct),4)}, {"0" if u==0 else v(d,4)}')
    return m
def vw_pack():
    o = []
    for ct in range(4):
        for kt in range(2):
            d = AV_Y + (kt * 4 + ct) * 4
            o.append(f'v_cvt_pk_bf16_f32 {v(AV_VWS+4*ct+2*kt)}, {v(d)}, {v(d+1)}')
            o.append(f'v_cvt_pk_bf16_f32 {v(AV_VWS+4*ct+2*kt+1)}, {v(d+2)}, {v(d+3)}')
    return o

def a_prologue(a):
    a(f'''
    v_and_b32 v20, 63, v0
    v_lshlrev_b32 {v(AV_L16)}, 4, v20
    s_lshl_b32 {s(S_T0)}, {s(S_H)}, 18
    s_lshl_b32 {s(S_T1)}, {s(S_C)}, 7
    s_add_u32 {s(S_T0)}, {s(S_T0)}, {s(S_T1)}
    s_lshl_b32 {s(S_T2)}, {s(S_T4)}, 13
    s_add_u32 {s(S_T2)}, {s(S_T2)}, 131072
    s_load_dwordx2 {s(SRD_T,2)}, s[0:1], {KA_WO}
    s_mov_b32 {s(SRD_T+2)}, {8*MB}
    s_mov_b32 {s(SRD_T+3)}, {SRD3}
    v_lshrrev_b32 v21, 3, v20
    v_and_b32 v22, 7, v20
    v_lshlrev_b32 v21, 11, v21
    v_lshl_add_u32 v21, v22, 4, v21
    ''')
    for T in range(2):
        for hh in range(2):
            tr_addr(a, 24 + T * 2 + hh, 20, 128, T, hh, 28, 29)
            a(f'v_add_u32 {v(24+T*2+hh)}, {s(S_T2)}, {v(24+T*2+hh)}')
    a('s_waitcnt lgkmcnt(0)')
    for n in range(8):
        a(f's_add_u32 m0, {s(S_T2)}, {n*1024}')
        a('s_nop 0')
        a(f'buffer_load_dwordx4 v21, {s(SRD_T,4)}, {s(S_T0)} offen{a.wnt[3]} lds')
        a(f's_add_u32 {s(S_T0)}, {s(S_T0)}, {8*2048}')
    for n in range(8):
        a(f'buffer_load_dwordx4 {v(AV_KS+4*n,4)}, v21, {s(SRD_T,4)}, {s(S_T0)} offen{a.wnt[3]}')
        a(f's_add_u32 {s(S_T0)}, {s(S_T0)}, {8*2048}')

def a_prologue2(a):
    a(f's_lshl_b32 {s(S_T2)}, {s(S_T4)}, 13')
    a(f's_add_u32 {s(S_T2)}, {s(S_T2)}, 131072')
    a(f'v_add_u32 v30, {s(S_T2)}, {v(AV_L16)}')
    for half in range(2):
        a(f's_waitcnt vmcnt({8 - 8*half})')
        if half:
            for n in range(8): a(f'ds_write_b128 v30, {v(AV_KS+4*n,4)} offset:{n*1024}')
            a('s_waitcnt lgkmcnt(0)')
        for uu in range(2):
            for p in range(2):
                for T in range(2):
                    for hh in range(2):
                        a(f'ds_read_b64_tr_b16 {v(wo(2*half+uu, 2*p+T)+2*hh,2)}, {v(24+T*2+hh)} offset:{uu*4096+p*64}')
            a('s_waitcnt lgkmcnt(0)')
    a(f'''
    v_lshrrev_b32 v21, 4, v20
    v_and_b32 v22, 2, v20
    v_cmp_eq_u32 {s(S_QM,2)}, 2, v22
    v_and_b32 v23, 15, v20
    v_lshlrev_b32 v21, 2, v21
    v_mov_b32 v8, 0x44444444
    v_mov_b32 v9, 0xeeeeeeee
    v_cndmask_b32 {v(AV_IDX)}, v8, v9, {s(S_QM,2)}
    v_mov_b32 v8, 0x3f803f80
    v_mov_b32 v9, 0
    v_mov_b32 v10, 0
    v_mov_b32 v11, 0
    v_mov_b32 v4, 0x3f803f80
    v_mov_b32 v5, 0x3f803f80
    v_mov_b32 v6, 0x3f803f80
    v_mov_b32 v7, 0x3f803f80
    s_mov_b32 {s(S_CST)}, 0x3e0293ee
    s_lshl_b32 {s(S_PRG)}, {s(S_I)}, 2
    s_add_u32 {s(S_PRG)}, {s(S_PRG)}, {s(S_T4)}
    s_lshl_b32 {s(S_CS)}, {s(S_X)}, 7
    s_add_u32 {s(S_CS)}, {s(S_CS)}, {F.CS_TAB}
    v_add_u32 {v(AV_LB)}, {s(S_KL)}, {v(AV_L16)}
    s_lshl_b32 {s(S_T0)}, {s(S_T4)}, 2
    s_add_u32 {s(S_T0)}, {s(S_T0)}, {LDS_FLG}
    v_mov_b32 {v(AV_FLGW)}, {s(S_T0)}
    v_mov_b32 {v(AV_FLGR)}, {LDS_FLG}
    ''')
    sel_init(a, AV_SEL, 20, 24, 25)
    a(f'''
    v_lshrrev_b32 v24, 4, v20                 ; g
    v_bfe_u32 v25, v20, 2, 2
    v_and_b32 v26, 1, v20
    v_lshl_add_u32 v26, v25, 1, v26           ; t
    v_lshlrev_b32 v26, 4, v26
    v_lshl_add_u32 v26, v24, 8, v26
    v_bfe_u32 v27, v20, 1, 1
    v_lshl_add_u32 v26, v27, 2, v26
    s_add_u32 {s(S_T0)}, {s(S_KL)}, 20480
    v_add_u32 {v(AV_VMW)}, {s(S_T0)}, v26
    v_and_b32 v26, 3, v20                     ; cc
    v_lshl_add_u32 v27, v24, 2, v25
    v_lshl_add_u32 v27, v26, 4, v27
    v_lshlrev_b32 v27, 4, v27
    v_add_u32 {v(AV_TRV)}, {s(S_KL)}, v27
    v_and_b32 v25, 1, v25
    v_lshl_add_u32 v25, v24, 1, v25
    v_lshl_add_u32 v25, v26, 3, v25
    v_lshlrev_b32 v25, 4, v25
    v_add_u32 {v(AV_TRM)}, {s(S_T0)}, v25
    s_bfe_u32 {s(S_T0)}, {s(S_C)}, 0x20001
    s_lshr_b32 {s(S_DW)}, {s(S_C)}, 3
    s_cmp_eq_u32 {s(S_T0)}, {s(S_T4)}
    s_cselect_b32 {s(S_DW)}, {2 if 'u' in a.abl else s(S_DW)}, 2
    s_and_b32 {s(S_QT)}, {s(S_C)}, 1
    s_lshl_b32 {s(S_QT)}, {s(S_QT)}, 17
    s_mov_b32 {s(S_U2)}, 0
    ''')
    for i in range(4):
        a(f'v_add_u32 v24, {i}, v21')
        a(f'v_cmp_gt_u32 {s(S_M0+2*i,2)}, v24, v23')

def a_static(a):
    a(f"""
    v_and_b32 v20, 63, v0
    v_lshrrev_b32 v21, 4, v20                 ; g
    v_bfe_u32 v22, v20, 1, 1
    v_xor_b32 v22, 1, v22                     ; p = !(n&2)
    v_lshl_add_u32 v23, v22, 2, v21           ; uu
    v_bfe_u32 v22, v20, 2, 2
    v_and_b32 v24, 1, v20
    v_lshl_add_u32 v22, v22, 1, v24           ; t
    v_lshl_add_u32 v23, v23, 3, v22
    v_and_b32 v22, 7, v20
    v_lshlrev_b32 v23, 4, v23
    s_lshl_b32 {s(S_T0)}, {s(S_T4)}, 10
    s_add_u32 {s(S_T0)}, {s(S_T0)}, {LDS_RED2}
    v_add_u32 {v(AV_R2W)}, {s(S_T0)}, v23
    v_and_b32 v24, 15, v20
    v_lshlrev_b32 v24, 4, v24                 ; n*16
    v_lshl_add_u32 v23, v21, 10, v24
    s_lshl_b32 {s(S_T0)}, {s(S_T4)}, 8
    s_add_u32 {s(S_T0)}, {s(S_T0)}, {LDS_RED2}
    v_add_u32 {v(AV_R2R)}, {s(S_T0)}, v23
    v_lshl_add_u32 v23, v21, 9, v24
    s_lshl_b32 {s(S_T0)}, {s(S_T4)}, 12
    s_add_u32 {s(S_T0)}, {s(S_T0)}, {LDS_SEG}
    v_add_u32 {v(AV_SGW)}, {s(S_T0)}, v23
    v_bfe_u32 v23, v20, 3, 1
    v_lshlrev_b32 v23, 10, v23
    v_lshl_add_u32 v23, v22, 4, v23
    v_mov_b32 {v(AV_PST)}, v23
    s_lshl_b32 {s(S_PO)}, {s(S_C)}, 14
    s_lshl_b32 {s(S_T0)}, {s(S_T4)}, 11
    s_add_u32 {s(S_PO)}, {s(S_PO)}, {s(S_T0)}
    s_lshl_b32 {s(S_T0)}, {s(S_G)}, 7
    s_add_u32 {s(S_PO)}, {s(S_PO)}, {s(S_T0)}
    s_add_u32 {s(S_PO)}, {s(S_PO)}, {WS_PART}
    """)
    for i in range(4): a(f'v_mov_b32 {v(AV_NEG+i)}, -1')

def exp_seq(r):
    seq = []
    n = len(r)
    seq.append(f'v_max3_f32 {v(AV_MX)}, {v(r[0])}, {v(r[1])}, {v(r[2])}')
    seq.append(f'v_max3_f32 {v(AV_T)}, {v(r[3])}, {v(r[4])}, {v(r[5])}')
    rr = r[6:]; k = 0
    while len(rr) >= 2:
        d = (AV_MX, AV_T)[k & 1]; k += 1
        seq.append(f'v_max3_f32 {v(d)}, {v(d)}, {v(rr[0])}, {v(rr[1])}'); rr = rr[2:]
    seq.append(f'v_max_f32 {v(AV_MX)}, {v(AV_MX)}, {v(AV_T)}')
    seq += red_gq(AV_MX, AV_T, 'v_max_f32')
    seq.append(f'v_mul_f32 {v(AV_MX)}, {s(S_CST)}, {v(AV_MX)}')
    fm = [f'v_fma_f32 {v(x)}, {v(x)}, {s(S_CST)}, -{v(AV_MX)}' for x in r]
    ex = [f'v_exp_f32 {v(x)}, {v(x)}' for x in r]
    seq += fm[:2]
    for i in range(n):
        if i + 2 < n: seq.append(fm[i + 2])
        seq.append(ex[i])
    return seq

def packP(S, t1zero=False):
    T0, T1, TM = S, S + 4, S + 8
    o = [f'v_cvt_pk_bf16_f32 {v(T0)}, {v(T0)}, {v(T0+1)}', f'v_cvt_pk_bf16_f32 {v(T0+1)}, {v(T0+2)}, {v(T0+3)}']
    if t1zero: o += [f'v_mov_b32 {v(T0+2)}, 0', f'v_mov_b32 {v(T0+3)}, 0']
    else: o += [f'v_cvt_pk_bf16_f32 {v(T0+2)}, {v(T1)}, {v(T1+1)}', f'v_cvt_pk_bf16_f32 {v(T0+3)}, {v(T1+2)}, {v(T1+3)}']
    o += [f'v_cvt_pk_bf16_f32 {v(TM)}, {v(TM)}, {v(TM+1)}', f'v_mov_b32 {v(TM+2)}, 0',
          f'v_mov_b32 {v(TM+1)}, {v(TM)}', f'v_mov_b32 {v(TM+3)}, 0']
    return o

def pv_seq(S, qt, rc):
    SM = S + 4
    o = [f'v_mfma_f32_16x16x32_bf16 {v(SM,4)}, {v(AV_ONE,4)}, {v(S,4)}, 0',
         f'v_mfma_f32_16x16x32_bf16 {v(SM,4)}, {v(AV_HALF,4)}, {v(S+8,4)}, {v(SM,4)}']
    for ct in range(4):
        o.append(f'v_mfma_f32_16x16x32_bf16 {v(AV_O+4*ct,4)}, {v(AV_VWS+4*ct,4)}, {v(S,4)}, 0')
        o.append(f'v_mfma_f32_16x16x32_bf16 {v(AV_O+4*ct,4)}, {v(AV_VWM+2*ct,4)}, {v(S+8,4)}, {v(AV_O+4*ct,4)}')
    o.append(f'v_rcp_f32 {v(rc)}, {v(SM)}')
    o.append('s_nop 0')
    P = AV_PK
    for ct in range(4):
        for i in range(4): o.append(f'v_mul_f32 {v(AV_O+4*ct+i)}, {v(AV_O+4*ct+i)}, {v(rc)}')
        o.append(f'v_cvt_pk_bf16_f32 {v(P+2*ct)}, {v(AV_O+4*ct)}, {v(AV_O+4*ct+1)}')
        o.append(f'v_cvt_pk_bf16_f32 {v(P+2*ct+1)}, {v(AV_O+4*ct+2)}, {v(AV_O+4*ct+3)}')
    for p in range(2): o.append(f'ds_write_b128 {v(AV_SGW)}, {v(P+4*p,4)} offset:{2048*p+256*qt}')
    return o

def a_loop(a, prof, done):
    LH = a.uid('aloopH')
    if a.s1 and a.swp:
        assert a.s1 % 2 == 0 and a.lr == 3 and a.vpos and not a.kpos
        L0, L1 = a.uid('aloopL'), a.uid('aloopM')
        a_body(a, Prof(prof), done, L0, True, None, L1)
        a_body(a, Prof(prof), done, L1, True, LH, L0, 1)
    elif a.s1: a_body(a, Prof(prof), done, a.uid('aloopL'), True, LH)
    a.label('ct_aH')
    a_body(a, Prof(prof), done, LH, False, None)

def a_body(a, pf, done, L, light, nxt, other=None, ph=0):
    Lr = L + '_rq'
    AV_KS, AV_TB = (128, 96) if ph else (96, 128)
    swp = other is not None
    SA = AV_S; SB = AV_X + 4
    if a.al: a.raw(f'.p2align {a.al}')
    for i in range(a.aloa): a('s_nop 0')
    a.label(L)
    pf.stamp(a, 'top')
    ring(a, S_QLD, 0, 18, S_QO)
    a(f's_add_u32 {s(S_QLD2)}, {s(S_QLD)}, 4096')
    ring(a, S_PSTC, 0, PSLOT, S_PO)
    ring(a, S_PRS, 2, PSLOT, S_PO)
    a(f'v_mov_b32 {v(AV_FV)}, {s(S_S)}')
    vw = vw_list(AV_TB)
    kr = [f'ds_read_b128 {v(AV_KS+4*i,4)}, {v(AV_LB)} offset:{1024*i}' for i in range(8)]
    vr = [f'ds_read_b128 {v(AV_TB+4*(kt*4+u),4)}, {v(AV_LB)} offset:{8192+1024*(kt*4+u)}' for u in range(4) for kt in range(2)]
    zo = [f'v_mov_b32 {v(AV_O+i)}, 0' for i in range(16)]
    unit = light and a.s0 < a.s1
    def part2(tag, AV_TB=AV_TB):
        a(f's_cmp_eq_u32 {s(S_U2)}, 0')
        a(f's_cbranch_scc1 {L}_{tag}')
        a(f's_mov_b32 {s(S_U2)}, 0')
        for p in range(4):
            for Tt in range(2):
                t = 2 * p + Tt
                for kt in range(2):
                    a(f'ds_read_b64_tr_b16 {v(AV_TB+4*t+2*kt,2)}, {v(AV_TRV)} offset:{4096*kt + 1024*p + 8*Tt}')
                a(f'ds_read_b64_tr_b16 {v(AV_X+2*t,2)}, {v(AV_TRM)} offset:{512*p + 8*Tt}')
        a(f'v_mov_b32 {v(AV_FT)}, 0xff61b1e6')
        a(f's_cmp_eq_u32 {s(S_QT)}, 0')
        for i in range(4):
            a(f's_cselect_b64 vcc, {s(S_M0+2*i,2)}, 0')
            a(f'v_cndmask_b32 {v(SA+i)}, {v(SA+i)}, {v(AV_FT)}, vcc')
            a(f's_cselect_b64 vcc, -1, {s(S_M0+2*i,2)}')
            a(f'v_cndmask_b32 {v(SA+4+i)}, {v(SA+4+i)}, {v(AV_FT)}, vcc')
        for x in exp_seq(list(range(SA, SA + 10))): a(x)
        pk = packP(SA); pk[6] = f'v_mov_b32 {v(SA+9)}, 0'
        for x in pk: a(x)
        a('s_waitcnt lgkmcnt(0)')
        a('s_nop 0')
        SM = SA + 4
        a(f'v_mfma_f32_16x16x32_bf16 {v(SM,4)}, {v(AV_ONE,4)}, {v(SA,4)}, 0')
        a(f'v_mfma_f32_16x16x32_bf16 {v(SM,4)}, {v(AV_ONE,4)}, {v(SA+8,4)}, {v(SM,4)}')
        oa = lambda t: (AV_O if t < 4 else AV_Y - 16) + 4 * t
        for t in range(8):
            a(f'v_mfma_f32_16x16x32_bf16 {v(oa(t),4)}, {v(AV_TB+4*t,4)}, {v(SA,4)}, 0')
            a(f'v_mfma_f32_16x16x32_bf16 {v(oa(t),4)}, {v(AV_X+2*t,4)}, {v(SA+8,4)}, {v(oa(t),4)}')
        a(f'v_rcp_f32 {v(AV_T)}, {v(SM)}')
        a('s_nop 0')
        for p in range(4):
            o = oa(2 * p)
            for i in range(8): a(f'v_mul_f32 {v(o+i)}, {v(o+i)}, {v(AV_T)}')
            for d in range(4): a(f'v_cvt_pk_bf16_f32 {v(o+d)}, {v(o+2*d)}, {v(o+2*d+1)}')
            a(f'ds_write_b128 {v(AV_L16)}, {v(o,4)} offset:{LDS_SEG + 1024*p}')
        a.label(f'{L}_{tag}')
    if light and a.vpos: a(f's_waitcnt vmcnt({0 if swp else 8 - a.ksp})')
    if unit:
        assert a.lr == 3
        a(f's_and_b32 {s(S_DU)}, {s(S_S)}, 1')
        a(f's_cmp_lt_u32 {s(S_S)}, {a.s0}')
        a(f's_cselect_b32 {s(S_DU)}, 3, {s(S_DU)}')
        a(f's_cmp_lg_u32 {s(S_DU)}, {s(S_DW)}')
        a(f's_cbranch_scc1 {L}_nd0')
        for i in range(8): a(f'ds_write_b128 {v(AV_LB)}, {v(AV_TB+4*i,4)} offset:{1024*i}')
        a.label(L + '_nd0')
    if light:
        if not a.lr & 1:
            for x in vr: a(x)
            for u in range(4): vw[8*u] = f's_waitcnt lgkmcnt({6 - 2*u})\n' + vw[8*u]
        for x in vw: a(x)
        if unit:
            a('s_nop 2')
            for x in vw_pack(): a(x)
            if not a.p2e: part2('p2a')
            for x in zo: a(x)
        else:
            for x in zo: a(x)
            for x in vw_pack(): a(x)
        if not a.lr & 2:
            flag_wait(a, L + '_wkv', AV_FLGW, 16, AV_FT, S_T2, sl=a.kvsl, one=True)
            for x in kr: a(x)
        pf.stamp(a, 'kv', -3)
    else:
        flag_wait(a, L + '_wkv', AV_FLGW, 16, AV_FT, S_T2, sl=a.kvsl, one=True)
        pf.stamp(a, 'kv', -3)
        for x in vr + ([] if a.hk else kr): a(x)
        for u in range(4): vw[8*u] = f's_waitcnt lgkmcnt({(6 if a.hk else 14) - 2*u})\n' + vw[8*u]
        for x in vw[:a.vwp]: a(x)
    vp = light and a.vpos
    a('s_setprio 2')
    if not vp or swp: flag_wait(a, L + '_wm', AV_FLGW, 32, AV_FT, S_T2, sl=a.kvsl, one=True)
    if light and a.scb < 64 and not a.xpos:
        a(f's_sub_u32 {s(S_T0)}, {s(S_S)}, {a.sc0}')
        a(f's_cmp_ge_u32 {s(S_T0)}, {2 * (64 - a.scb)}')
        a(f's_cbranch_scc1 {L}_nxd')
        if vp and not swp: flag_wait(a, L + '_wm2', AV_FLGW, 32, AV_FT, S_T2, sl=a.kvsl, one=True)
        for hf in range(2):
            a(f's_add_u32 m0, {s(S_XB)}, {4096*hf}')
            a(f's_add_u32 {s(S_T0)}, {s(S_XG)}, {4096*hf}')
            for u in range(4): a(f'buffer_load_dwordx4 {v(AV_L16)}, {s(SRD_WS,4)}, {s(S_T0)} offen offset:{1024*u} sc1 lds')
        a(f's_xor_b32 {s(S_XB)}, {s(S_XB)}, {s(S_XBX)}')
        a(f's_add_u32 {s(S_XG)}, {s(S_XG)}, 32768')
        a.label(L + '_nxd')
    pf.stamp(a, 'fm', -3)
    if unit:
        a(f's_cmp_lg_u32 {s(S_DU)}, {s(S_DW)}')
        a(f's_cbranch_scc1 {L}_nd1')
        a(f's_add_u32 m0, {s(S_KL)}, 16384')
        a(f's_add_u32 {s(S_T0)}, {s(S_KG)}, {s(S_QT)}')
        a(f's_add_u32 {s(S_T0)}, {s(S_T0)}, {WS_QS}')
        for u in range(4): a(f'buffer_load_dwordx4 {v(AV_L16)}, {s(SRD_WS,4)}, {s(S_T0)} offen offset:{1024*u} sc1 lds')
        a.label(L + '_nd1')
    if light: a(f's_add_u32 {s(S_KG)}, {s(S_KG)}, 262144')
    if swp:
        for x in reg_list(a, 0, AV_TB, S_T0): a(x)
    if ('v' if light else 'q') not in a.abl and not vp:
        for x in (reg_list(a, 1, AV_TB, S_T0) if light and a.lr & 1 else dma_list(a, 1 if light else 2, AV_L16, S_T0)): a(x)
    if not light: a(f's_add_u32 {s(S_KG)}, {s(S_KG)}, 262144')
    if light: a('s_waitcnt lgkmcnt(0)')
    pf.stamp(a, 'b1rdy', -3)
    a('s_barrier')
    pf.stamp(a, 'b1')
    qr = [f'ds_read_b128 {v(AV_TB+4*i,4)}, {v(AV_LB)} offset:{16384+1024*i}' for i in range(8)]
    if not light:
        for x in vw[a.vwp:]: a(x)
        a('s_nop 2')
        for x in vw_pack(): a(x)
        for x in zo: a(x)
    if a.qkf: a('s_barrier')
    qd = a.qdl if light else a.qd
    if qd: a(f's_sleep {qd}')
    a('s_waitcnt lgkmcnt(0)')
    pf.stamp(a, 'poll')
    qm = [f'buffer_load_dwordx4 {v(AV_Y+4*u,4)}, {v(AV_L16)}, {s(SRD_WS,4)}, {s(S_QLD)} offen offset:{1024*u} sc1' for u in range(4)]
    qm += [f'buffer_load_dwordx4 {v(AV_X+4*u2,4)}, {v(AV_L16)}, {s(SRD_WS,4)}, {s(S_QLD2)} offen offset:{1024*u2} sc1' for u2 in range(2)]
    qreg = [[AV_Y + 4 * u + i for i in (0, 2)] for u in range(4)]
    vreg = [AV_X + i for i in range(0, 8, 2)]
    for x in qm[:4]: a(x)
    if a.vdel: a(f's_sleep {a.vdel}' if a.vdel > 0 else f's_nop {-a.vdel}')
    for x in qm[4:]: a(x)
    def crit_s(check, first=False):
        for u in range(4):
            if check: a(f's_waitcnt vmcnt({5-u})')
            if first and u == 0: pf.stamp(a, 'z0')
            z = v(AV_Y + 4 * u, 4)
            for kt in range(2):
                d = SA + 4 * kt
                a(f'v_mfma_f32_16x16x32_bf16 {v(d,4)}, {v(AV_KS+(kt*4+u)*4,4)}, {z}, {"0" if u==0 else v(d,4)}')
            if check:
                c = chk(qreg[u], AV_T, f'{Lr}_{u}')
                for x in c[:-1]: a(x)
            a(f'v_mfma_f32_16x16x32_bf16 {v(SA+8,4)}, {z}, {z}, {"0" if u==0 else v(SA+8,4)}')
            if check: a(c[-1])
    crit_s(True, True)
    a.label(L + '_sdone')
    pf.stamp(a, 'sdone')
    if light: a('s_nop 1')
    else:
        a(f's_cmp_eq_u32 {s(S_S)}, {a.last}')
        a(f's_cbranch_scc1 {L}_lsk')
    vwm = [f'v_smfmac_f32_16x16x64_bf16 {v(AV_O+4*ct,4)}, {v(AV_X+4*c2,4)}, {v(wo(2*c2,ct),8)}, {v(AV_IDX)}' for c2 in range(2) for ct in (0, 2, 1, 3)]
    vc = chk(vreg, AV_FT, f'{Lr}_v')
    M, T = v(AV_MX), v(AV_T)
    a(f"""
    ds_write_b32 {v(AV_FLGW)}, {v(AV_FV)}
    s_nop 0
    v_max3_f32 {M}, {v(SA)}, {v(SA+1)}, {v(SA+2)}
    v_max3_f32 {T}, {v(SA+3)}, {v(SA+4)}, {v(SA+5)}
    v_max3_f32 {M}, {M}, {v(SA+6)}, {v(SA+7)}
    v_max3_f32 {T}, {T}, {v(SA+8)}, {v(SA+9)}
    v_max_f32 {M}, {M}, {T}
    v_mov_b32 {T}, {M}
    s_nop 1
    v_permlane16_swap_b32 {T}, {M}
    v_max_f32 {M}, {M}, {T}
    v_mov_b32 {T}, {M}
    s_waitcnt vmcnt(0)
    {vc[0]}
    v_permlane32_swap_b32 {T}, {M}
    v_max_f32 {M}, {M}, {T}
    {vc[1]}
    v_mul_f32 {M}, {s(S_CST)}, {M}
    {vc[2]}
    """)
    r = list(range(SA, SA + 10))
    fm = [f'v_fma_f32 {v(x)}, {v(x)}, {s(S_CST)}, -{M}' for x in r]
    ex = [f'v_exp_f32 {v(x)}, {v(x)}' for x in r]
    a(fm[0]); a(fm[1])
    a(vc[3])
    a.label(L + '_vok')
    pf.stamp(a, 'max', 3)
    vwc = []
    for ct in range(4):
        d = AV_O + 4 * ct
        vwc += [f'v_cvt_pk_bf16_f32 {v(AV_VWM+2*ct)}, {v(d)}, {v(d+1)}', f'v_cvt_pk_bf16_f32 {v(AV_VWM+2*ct+1)}, {v(d+2)}, {v(d+3)}']
    SM = SA + 4
    def mid(kin, st):
        a(vwm[0])
        for i in range(10):
            if i + 2 < 10: a(fm[i + 2])
            a(ex[i])
            if i + 1 < 8: a(vwm[i + 1])
            if kin and (a.kpos + a.vpos == 1 or i & 1): a(kin.pop(0))
        if st: pf.stamp(a, 'exp', 3)
        pk = packP(SA)
        for x in pk[:4]: a(x)
        mA = f'v_mfma_f32_16x16x32_bf16 {v(SM,4)}, {v(AV_ONE,4)}, {v(SA,4)}, 0'
        mB = f'v_mfma_f32_16x16x32_bf16 {v(SM,4)}, {v(AV_HALF,4)}, {v(SA+8,4)}, {v(SM,4)}'
        for x in pk[4:6]: a(x)
        a(mA)
        for x in pk[6:]: a(x)
        for n, ct in enumerate((0, 2, 1, 3)):
            a(vwc[2*ct]); a(vwc[2*ct+1])
            if n == 0: a(mB)
            a(f'v_mfma_f32_16x16x32_bf16 {v(AV_O+4*ct,4)}, {v(AV_VWS+4*ct,4)}, {v(SA,4)}, 0')
            if kin: a(kin.pop(0))
        assert not kin
    kp = light and a.lr & 2 and a.kpos and 'k' not in a.abl
    assert not (kp and vp)
    ks = a.ksp if vp and not swp else 0
    if (kp or swp or ks) and unit:
        a(f's_cmp_eq_u32 {s(S_DU)}, {s(S_DW)}')
        a(f's_cbranch_scc1 {L}_midD')
    mid(reg_list(a, 0, AV_KS, S_T0) if kp else reg_list(a, 1, AV_KS if swp else AV_TB, S_T0) + reg_list(a, 0, AV_KS, S_T2)[:ks] if vp else [], True)
    a.label(L + '_midE')
    a(f's_mov_b64 vcc, {s(S_QM,2)}')
    a(f'v_rcp_f32 {T}, {v(SM)}')
    for ct in (0, 2, 1, 3):
        a(f'v_mfma_f32_16x16x32_bf16 {v(AV_O+4*ct,4)}, {v(AV_VWM+2*ct,4)}, {v(SA+8,4)}, {v(AV_O+4*ct,4)}')
    pf.stamp(a, 'pv', 3)
    qp = 'quad_perm:[2,3,2,3] row_mask:0xf bank_mask:0xf'
    a(f'v_mov_b32_dpp {T}, {T} {qp}')
    a('s_nop 4')
    for h in range(2):
        for i in range(4*h, 4*h+4): a(f'v_cndmask_b32_dpp {v(AV_O+i)}, {v(AV_O+8+i)}, {v(AV_O+i)}, vcc {qp}')
    for i in range(8): a(f'v_mul_f32 {v(AV_O+i)}, {v(AV_O+i)}, {T}')
    for d in range(4): a(f'v_cvt_pk_bf16_f32 {v(AV_PK+d)}, {v(AV_O+2*d)}, {v(AV_O+2*d+1)}')
    a(f'ds_write_b128 {v(AV_R2W)}, {v(AV_PK,4)}')
    a('s_waitcnt lgkmcnt(0)')
    pf.stamp(a, 'b2rdy')
    a('s_barrier')
    pf.stamp(a, 'b2')
    a(f'ds_read_b128 {v(AV_PK+4,4)}, {v(AV_R2R)}')
    a('s_waitcnt lgkmcnt(0)')
    a(f'v_mfma_f32_16x16x32_bf16 {v(AV_O,4)}, {v(AV_SEL,4)}, {v(AV_PK+4,4)}, 0')
    a('s_nop 7')
    a(f'v_cvt_pk_bf16_f32 {v(AV_PK)}, {v(AV_O)}, {v(AV_O+1)}')
    a(f'v_cvt_pk_bf16_f32 {v(AV_PK+1)}, {v(AV_O+2)}, {v(AV_O+3)}')
    a('s_nop 0')
    a(f'v_permlane16_swap_b32 {v(AV_PK)}, {v(AV_PK+2)}')
    a(f'v_permlane16_swap_b32 {v(AV_PK+1)}, {v(AV_PK+3)}')
    a('s_mov_b64 exec, 0xffff')
    a(f'v_min_u32 {v(AV_PK)}, -2, {v(AV_PK)}')
    a(f'buffer_store_dwordx4 {v(AV_PK,4)}, {v(AV_PST)}, {s(SRD_WS,4)}, {s(S_PSTC)} offen sc1')
    a('s_setprio 0')
    pf.stamp(a, 'ppub')
    a(f'buffer_store_dwordx4 {v(AV_NEG,4)}, {v(AV_PST)}, {s(SRD_WS,4)}, {s(S_PRS)} offen sc1')
    a('s_mov_b64 exec, -1')
    l = a.uid('pg')
    if a.pgp: a(f's_branch {l}')
    a(f's_cmp_lg_u32 {s(S_PRG)}, 0')
    a(f's_cbranch_scc1 {l}')
    a(f's_sub_u32 {s(S_T4)}, {s(S_S)}, 1')
    a(f's_cbranch_scc1 {l}')
    a(f's_and_b32 {s(S_T0)}, {s(S_T4)}, 3')
    a(f's_cmp_ge_u32 {s(S_S)}, 58')
    a(f's_cselect_b32 {s(S_T0)}, 0, {s(S_T0)}')
    a(f's_cmp_lg_u32 {s(S_T0)}, 0')
    a(f's_cbranch_scc1 {l}')
    a(f'v_mov_b32 {v(AV_T)}, {s(S_T4)}')
    a('s_mov_b64 exec, 1')
    a(f'buffer_store_dword {v(AV_T)}, off, {s(SRD_WS,4)}, {s(S_CS)} sc1')
    a('s_mov_b64 exec, -1')
    a.label(l)
    if unit:
        a(f's_cmp_lg_u32 {s(S_DU)}, {s(S_DW)}')
        a(f's_cbranch_scc1 {L}_nd2')
        for u in range(4): a(f'ds_read_b128 {v(AV_O+4*u,4)}, {v(AV_LB)} offset:{16384+1024*u}')
        for c2 in range(2):
            for i in range(4): a(f'ds_write_b32 {v(AV_VMW)}, {v(AV_X+4*c2+i)} offset:{1024*c2 + 128*(i>>1) + 8*(i&1)}')
        a(f's_mov_b32 {s(S_U2)}, 1')
        for u in range(4):
            a(f's_waitcnt lgkmcnt({8+3-u})')
            q = v(AV_O + 4 * u, 4)
            for kt in range(2): a(f'v_mfma_f32_16x16x32_bf16 {v(SA+4*kt,4)}, {v(AV_KS+(kt*4+u)*4,4)}, {q}, {"0" if u==0 else v(SA+4*kt,4)}')
            a(f'v_mfma_f32_16x16x32_bf16 {v(SA+8,4)}, {v(xk(u),4)}, {q}, {"0" if u==0 else v(SA+8,4)}')
        a('s_waitcnt lgkmcnt(0)')
        a('s_nop 3')
        if a.p2e:
            assert not (a.kpos or swp or ks)
            a('s_nop 3')
            part2('p2e', AV_KS)
            a('s_nop 3')
        if a.kpos or swp:
            for x in reg_list(a, 1 if swp else 0, AV_KS, S_T0): a(x)
        if ks:
            for x in reg_list(a, 0, AV_KS, S_T2)[:ks]: a(x)
        a.label(L + '_nd2')
    if light:
        if a.lr & 2 and 'k' not in a.abl and not a.kpos and not swp:
            if a.kdl: a(f's_sleep {a.kdl}')
            assert ks in (0, 4)
            for x in reg_list(a, 0, AV_KS, S_T2)[ks:]: a(x)
        pf.stamp(a, 'bg')
        pf.flush(a, AV_MX, 'A')
        a(f's_add_u32 {s(S_S)}, {s(S_S)}, 1')
        if swp and not ph: a(f's_branch {other}')
        if swp: AV_KS, AV_TB = AV_TB, AV_KS
        a(f's_cmp_lt_u32 {s(S_S)}, {a.s1}')
        a(f's_cbranch_scc1 {other or L}')
        a('s_waitcnt vmcnt(0)')
        for i in range(8):
            if a.lr & 1: a(f'ds_write_b128 {v(AV_LB)}, {v(AV_TB+4*i,4)} offset:{8192+1024*i}')
        if unit and not a.p2e:
            a('s_waitcnt lgkmcnt(0)')
            part2('p2b', AV_TB)
        for i in range(8):
            if a.lr & 2 and not a.hk: a(f'ds_write_b128 {v(AV_LB)}, {v(AV_KS+4*i,4)} offset:{1024*i}')
        a('s_waitcnt lgkmcnt(0)')
        a(f's_branch {nxt or L}')
        if swp: AV_KS, AV_TB = AV_TB, AV_KS
    else:
        a.label(L + '_lskb')
        a(f'v_mov_b32 {v(AV_X)}, 0xff61b1e6')
        def s_mf(qt, S):
            m = []
            for u in range(4):
                q = v(AV_TB + (qt * 4 + u) * 4, 4)
                for kt in range(qt + 1):
                    d = S + 4 * kt
                    m.append(f'v_mfma_f32_16x16x32_bf16 {v(d,4)}, {v(AV_KS+(kt*4+u)*4,4)}, {q}, {"0" if u==0 else v(d,4)}')
                m.append(f'v_mfma_f32_16x16x32_bf16 {v(S+8,4)}, {v(xk(u),4)}, {q}, {"0" if u==0 else v(S+8,4)}')
            return m
        bg = qr + ['s_waitcnt lgkmcnt(4)'] + s_mf(0, SA) + ['s_waitcnt lgkmcnt(0)'] + s_mf(1, SB)
        seq = [f'v_cndmask_b32 {v(SA+i)}, {v(SA+i)}, {v(AV_X)}, {s(S_M0+2*i,2)}' for i in range(4)]
        seq += exp_seq([SA + i for i in range(4)] + [SA + 8, SA + 9]) + packP(SA, True)
        if a.hk: seq = merge_fill(seq, reg_list(a, 0, AV_KS, S_T0), every=a.hk, start=3)
        bg += seq + ['s_nop 1']
        pv0 = pv_seq(SA, 0, AV_X + 2)
        seq = [f'v_cndmask_b32 {v(SB+4+i)}, {v(SB+4+i)}, {v(AV_X)}, {s(S_M0+2*i,2)}' for i in range(4)]
        seq += exp_seq(list(range(SB, SB + 10))) + packP(SB)
        seq = merge_fill(seq, pv0[:10], every=2, start=0)
        bg += seq + pv0[10:] + pv_seq(SB, 1, AV_T)
        if 'b' in a.abl: bg = []
        for x in bg: a(x)
        a(f'v_xor_b32 {v(AV_SGW)}, 0x4000, {v(AV_SGW)}')
        pf.stamp(a, 'bg')
        pf.flush(a, AV_MX, 'A')
        a(f's_add_u32 {s(S_S)}, {s(S_S)}, 1')
        a(f's_cmp_le_u32 {s(S_S)}, {a.last}')
        a(f's_cbranch_scc1 {L}')
        a('s_waitcnt lgkmcnt(0)')
        a('s_barrier')
        a('s_waitcnt vmcnt(0)')
        a(f's_branch {done}')
    if (kp or swp or ks) and unit:
        a.label(L + '_midD')
        mid(reg_list(a, 1, AV_TB, S_T0) if ks else [], False)
        a(f's_branch {L}_midE')
    for i in range(4):
        spin_block(a, f'{Lr}_{i}', qm[i:], qreg[i], AV_T, L + '_again', L + '_nochk')
    a.label(L + '_again')
    crit_s(True)
    a(f's_branch {L}_sdone')
    def vretry(lab, ok):
        a.label(lab)
        a(f's_sub_u32 {s(S_TO)}, {s(S_TO)}, 1')
        a(f's_cbranch_scc1 {lab}g')
        for x in qm[4:]: a(x)
        a('s_waitcnt vmcnt(0)')
        for x in chk(vreg, AV_FT, lab): a(x)
        a(f's_branch {ok}')
        a.label(lab + 'g')
        a(f's_mov_b32 {s(S_TO)}, 0')
        a(f's_branch {ok}')
    vretry(f'{Lr}_v', L + '_vok')
    a.label(L + '_nochk')
    crit_s(False)
    a('s_nop 1')
    a(f's_branch {L}_sdone')
    if light: return
    vretry(f'{Lr}_v2', L + '_lsk3')
    a.label('ct_tail')
    a.label(f'{L}_lsk')
    a(f's_cmp_lg_u32 {s(S_PRG)}, 0')
    a(f's_cbranch_scc1 {L}_lsk2')
    a(f'v_mov_b32 {v(AV_T)}, {a.last - 1}')
    a('s_mov_b64 exec, 1')
    a(f'buffer_store_dword {v(AV_T)}, off, {s(SRD_WS,4)}, {s(S_CS)} sc1')
    a('s_mov_b64 exec, -1')
    a.label(f'{L}_lsk2')
    a('s_waitcnt vmcnt(0)')
    for x in chk(vreg, AV_FT, f'{Lr}_v2'): a(x)
    a.label(f'{L}_lsk3')
    for x in vwm: a(x)
    a('s_nop 7')
    a('s_nop 1')
    for x in vwc: a(x)
    a('s_waitcnt lgkmcnt(0)')
    a(f's_branch {L}_lskb')

def emit_chain(a, done, prof=False):
    if prof: a('s_memrealtime s[94:95]')
    a(f"""
    s_lshl_b32 {s(S_ID)}, {s(S_X)}, 5
    s_add_u32 {s(S_ID)}, {s(S_ID)}, {s(S_I)}
    s_lshr_b32 {s(S_H)}, {s(S_ID)}, 2
    s_lshr_b32 {s(S_G)}, {s(S_ID)}, 4
    s_and_b32 {s(S_C)}, {s(S_I)}, 15
    s_and_b32 {s(S_J)}, {s(S_I)}, 3
    s_mov_b32 {s(S_S)}, 0
    s_mov_b32 {s(S_TO)}, {TIMEOUT}
    s_mov_b32 s100, {TIMEOUT}
    s_getreg_b32 {s(S_X1)}, hwreg(HW_REG_XCC_ID)
    s_and_b32 {s(S_X1)}, {s(S_X1)}, 15
    s_mul_i32 {s(S_T2)}, {s(S_X1)}, {s(S_X1)}
    s_lshl_b32 {s(S_T2)}, {s(S_T2)}, 18
    s_lshl_b32 {s(S_X1)}, {s(S_X1)}, 8
    s_add_u32 {s(S_X1)}, {s(S_X1)}, {s(S_T2)}
    s_add_u32 {s(S_X1)}, {s(S_X1)}, 1
    s_lshl_b32 {s(S_CQG)}, {s(S_G)}, 4
    s_add_u32 {s(S_CQG)}, {s(S_CQG)}, {CQ_TAB}
    s_and_b32 {s(S_T4)}, {s(S_W)}, 3
    s_mul_i32 {s(S_KL)}, {s(S_T4)}, 24576
    s_add_u32 {s(S_KL)}, {s(S_KL)}, {LDS_BULK}
    s_lshl_b32 {s(S_KG)}, {s(S_G)}, 2
    s_add_u32 {s(S_KG)}, {s(S_KG)}, {s(S_T4)}
    s_lshl_b32 {s(S_KG)}, {s(S_KG)}, 12
    s_add_u32 {s(S_XB)}, {s(S_KL)}, 8192
    s_bfe_u32 {s(S_T0)}, {s(S_C)}, 0x20001
    s_cmp_eq_u32 {s(S_T0)}, {s(S_T4)}
    s_cselect_b32 {s(S_XBX)}, 20480, {s(S_KL)}
    s_xor_b32 {s(S_XBX)}, {s(S_XBX)}, {s(S_XB)}
    s_lshl_b32 {s(S_XG)}, {s(S_T4)}, 13
    s_add_u32 {s(S_XG)}, {s(S_XG)}, {WS_XN2 + a.scb * 65536}
    s_lshl_b32 {s(S_SCO)}, {s(S_T4)}, 24
    s_lshl_b32 {s(S_T0)}, {s(S_ID)}, 10
    s_add_u32 {s(S_SCO)}, {s(S_SCO)}, {s(S_T0)}
    s_add_u32 {s(S_SCO)}, {s(S_SCO)}, {WS_QS + a.scb * 262144}
    s_cmp_ge_u32 {s(S_W)}, 4
    s_cbranch_scc1 ch_a_pro
    s_add_u32 {s(S_KG)}, {s(S_KG)}, 262144
    s_lshl_b32 {s(S_QO)}, {s(S_H)}, 13
    s_add_u32 {s(S_QO)}, {s(S_QO)}, {WS_QKV}
    s_lshl_b32 {s(S_T0)}, {s(S_I)}, 1
    s_and_b32 {s(S_T1)}, {s(S_W)}, 1
    s_add_u32 {s(S_T0)}, {s(S_T0)}, {s(S_T1)}
    s_lshl_b32 {s(S_T0)}, {s(S_T0)}, 1       ; first u
    s_cmp_lt_u32 {s(S_W)}, 2
    s_cselect_b32 {s(S_MEX)}, 0xff, 0
    s_mov_b32 {s(S_MEX+1)}, {s(S_MEX)}
    s_lshr_b32 {s(S_T1)}, {s(S_T0)}, 1
    s_and_b32 {s(S_T2)}, {s(S_T0)}, 1
    s_lshl_b32 {s(S_T3)}, {s(S_X)}, 14
    s_add_u32 {s(S_T3)}, {s(S_T3)}, {WS_MEM}
    s_lshl_b32 {s(S_MO)}, {s(S_W)}, 12
    s_add_u32 {s(S_MO)}, {s(S_MO)}, {s(S_T3)}
    s_lshl_b32 {s(S_MSO)}, {s(S_T1)}, 8
    s_add_u32 {s(S_MSO)}, {s(S_MSO)}, {s(S_T3)}
    s_lshl_b32 {s(S_T3)}, {s(S_T2)}, 5
    s_add_u32 {s(S_MSO)}, {s(S_MSO)}, {s(S_T3)}
    s_lshr_b32 {s(S_PO)}, {s(S_T0)}, 3
    s_lshl_b32 {s(S_PO)}, {s(S_PO)}, 14
    s_and_b32 {s(S_T3)}, {s(S_T0)}, 7
    s_lshl_b32 {s(S_T3)}, {s(S_T3)}, 10
    s_add_u32 {s(S_PO)}, {s(S_PO)}, {s(S_T3)}
    s_add_u32 {s(S_PO)}, {s(S_PO)}, {WS_PART}
    s_lshl_b32 {s(S_SP)}, {s(S_G)}, 22
    s_lshl_b32 {s(S_T3)}, {s(S_C)}, 11
    s_add_u32 {s(S_SP)}, {s(S_SP)}, {s(S_T3)}
    s_lshl_b32 {s(S_T3)}, {s(S_W)}, 9
    s_add_u32 {s(S_SP)}, {s(S_SP)}, {s(S_T3)}
    s_add_u32 {s(S_SP)}, {s(S_SP)}, {WS_SP + a.s1 * 65536}
    s_lshl_b32 {s(S_KMX)}, {s(S_H)}, 13
    s_add_u32 {s(S_KMX)}, {s(S_KMX)}, {WS_KM}
    s_mov_b32 {s(S_QST)}, {s(S_QO)}
    s_mov_b32 {s(S_SP0)}, {s(S_SP)}
    s_mov_b32 {s(S_OK)}, 2
    s_mov_b32 {s(S_RTG)}, 0
    s_mov_b32 {s(S_OF)}, 0
    s_bfe_u32 {s(S_T0)}, {s(S_C)}, 0x20001
    s_lshl_b32 {s(S_OB)}, {s(S_G)}, 2
    s_add_u32 {s(S_OB)}, {s(S_OB)}, {s(S_T0)}
    s_lshl_b32 {s(S_OB)}, {s(S_OB)}, 2
    s_add_u32 {s(S_OB)}, {s(S_OB)}, {s(S_W)}
    s_lshl_b32 {s(S_OB)}, {s(S_OB)}, 10
    s_and_b32 {s(S_T0)}, {s(S_C)}, 1
    s_lshl_b32 {s(S_T0)}, {s(S_T0)}, 17
    s_add_u32 {s(S_OB)}, {s(S_OB)}, {s(S_T0)}
    s_add_u32 {s(S_OB)}, {s(S_OB)}, {WS_OO - 262144}
    s_mov_b32 {s(S_TCH)}, {3 * 262144}
    """)
    p_prologue(a)
    for i in range(4): a(f'v_mov_b32 {v(52+i)}, -1')
    for sg in range(64 - NTAIL, 64):
        a(f's_add_u32 {s(S_T0)}, {s(S_SP)}, {(sg - a.s1)*65536}')
        a(f'buffer_store_dwordx4 v[52:55], {v(PV_SPS)}, {s(SRD_WS,4)}, {s(S_T0)} offen sc1')
    if prof: a('s_memrealtime s[96:97]')
    a(f's_lshl_b32 {s(S_X1)}, {s(S_X1)}, 5')
    a('s_barrier')
    a(f'ds_write_b32 {v(PV_FLGW)}, {v(PV_NEG)}')
    a(f'ds_write_b32 {v(PV_FLGW)}, {v(PV_NEG)} offset:16')
    a(f'ds_write_b32 {v(PV_FLGW)}, {v(PV_NEG)} offset:32')
    a(f'ds_write_b32 {v(PV_FLGW)}, {v(PV_NEG)} offset:48')
    a(f'v_mov_b32 {v(PV_RDY)}, 12')
    a(f"""
    v_mov_b32 v56, {LDS_PUB}
    s_waitcnt lgkmcnt(0)
    s_barrier
    ds_read_b64 v[32:33], v56
    s_waitcnt lgkmcnt(0)
    v_cmp_ne_u32 vcc, {s(S_X1)}, v32
    s_setprio 3
    v_readfirstlane_b32 {s(S_T0)}, v33
    s_add_u32 {s(S_PO)}, {s(S_PO)}, {s(S_T0)}
    s_cbranch_vccnz ch_p_slow
    """)
    if prof:
        a(f"""
        v_mov_b32 v33, {s(S_T0)}
        s_memrealtime s[98:99]
        s_waitcnt lgkmcnt(0)
        s_lshl_b32 {s(S_T0)}, {s(S_ID)}, 3
        s_add_u32 {s(S_T0)}, {s(S_T0)}, {s(S_W)}
        s_lshl_b32 {s(S_T0)}, {s(S_T0)}, 12
        s_add_u32 {s(S_T0)}, {s(S_T0)}, {WS_YP + 63*64}
        v_mov_b32 v56, s94
        v_mov_b32 v57, s96
        v_mov_b32 v32, s98
        s_mov_b64 exec, 1
        buffer_store_dwordx2 v[56:57], off, {s(SRD_WS,4)}, {s(S_T0)}
        buffer_store_dwordx2 v[32:33], off, {s(SRD_WS,4)}, {s(S_T0)} offset:8
        s_mov_b64 exec, -1
        s_nop 1
        """)
    if a.force_slow: a('s_branch ch_p_slow')
    p_loop(a, '', prof, done)
    a.label('ch_p_slow')
    p_loop(a, ' sc1', prof, done)
    a.label('ch_a_pro')
    a(f"""
    s_sub_u32 {s(S_T4)}, {s(S_W)}, 4
    s_lshl_b32 {s(S_H)}, {s(S_G)}, 2
    s_add_u32 {s(S_H)}, {s(S_H)}, {s(S_T4)}
    s_lshl_b32 {s(S_QO)}, {s(S_H)}, 13
    s_add_u32 {s(S_QO)}, {s(S_QO)}, {WS_QKV}
    """)
    if a.rot:
        a(f's_cmp_lg_u32 {s(S_W)}, 7')
        a('s_cbranch_scc1 ch_nrp')
        a.rot_poll(131072 + 64, 27, 28)
        a.label('ch_nrp')
        a('s_barrier')
        a.rot_check(131072 + 64, 27)
    if a.stouch:
        a(f"""
        s_min_u32 {s(S_T3)}, {s(S_T4)}, 2
        s_lshl_b32 {s(S_T1)}, {s(S_T3)}, 3
        s_add_u32 {s(S_T1)}, {s(S_T1)}, {KA_WQ}
        s_load_dwordx2 {s(SRD_T,2)}, s[0:1], {s(S_T1)}
        s_mov_b32 {s(SRD_T+2)}, {8*MB}
        s_mov_b32 {s(SRD_T+3)}, {SRD3}
        v_and_b32 v20, 63, v0
        v_lshlrev_b32 v21, 13, v20
        s_lshl_b32 {s(S_T0)}, {s(S_C)}, 19
        s_lshl_b32 {s(S_T1)}, {s(S_G)}, 10
        s_add_u32 {s(S_T0)}, {s(S_T0)}, {s(S_T1)}
        s_waitcnt lgkmcnt(0)
        buffer_load_dword v26, v21, {s(SRD_T,4)}, {s(S_T0)} offen offset:384
        """)
    a_static(a)
    a(f"""
    v_lshlrev_b32 v24, 4, v0
    s_lshl_b32 {s(S_T0)}, {s(S_ID)}, 13
    s_add_u32 {s(S_T2)}, {s(S_T0)}, {WS_PART - 4096}
    s_add_u32 {s(S_T0)}, {s(S_T0)}, {WS_QKV - 4096}
    s_lshl_b32 {s(S_T1)}, {s(S_ID)}, 12
    s_add_u32 {s(S_T1)}, {s(S_T1)}, {WS_MEM - 4096}
    buffer_store_dwordx4 {v(AV_NEG,4)}, v24, {s(SRD_WS,4)}, {s(S_T2)} offen sc1
    s_add_u32 {s(S_T2)}, {s(S_T2)}, 4096
    buffer_store_dwordx4 {v(AV_NEG,4)}, v24, {s(SRD_WS,4)}, {s(S_T2)} offen sc1
    buffer_store_dwordx4 {v(AV_NEG,4)}, v24, {s(SRD_WS,4)}, {s(S_T0)} offen sc1
    s_add_u32 {s(S_T0)}, {s(S_T0)}, 4096
    buffer_store_dwordx4 {v(AV_NEG,4)}, v24, {s(SRD_WS,4)}, {s(S_T0)} offen sc1
    buffer_store_dwordx4 {v(AV_NEG,4)}, v24, {s(SRD_WS,4)}, {s(S_T1)} offen sc1
    """)
    a(f"""
    s_and_b32 {s(S_T0)}, {s(S_I)}, 7
    s_sub_u32 {s(S_T1)}, {s(S_T4)}, 1
    s_cmp_lt_u32 {s(S_T1)}, 2
    s_cselect_b32 s54, {s(S_T0)}, 1
    s_lshr_b32 {s(S_T2)}, {s(S_ID)}, 3
    s_lshl_b32 {s(S_T2)}, {s(S_T2)}, 8
    s_lshl_b32 {s(S_T1)}, {s(S_T1)}, 7
    s_add_u32 {s(S_T2)}, {s(S_T2)}, {s(S_T1)}
    s_add_u32 s55, {s(S_T2)}, {WS_PART + MB}
    s_cmp_lg_u32 s54, 0
    s_cbranch_scc1 ch_nv0
    v_lshlrev_b32 v24, 13, v20
    s_mov_b64 exec, 0xffff
    buffer_store_dword {v(AV_NEG)}, v24, {s(SRD_WS,4)}, s55 offen sc1
    s_mov_b64 exec, -1
    """)
    a.label('ch_nv0')
    a(f"""
    v_mov_b32 v2, {s(S_X1)}
    s_lshl_b32 {s(S_T0)}, {s(S_X)}, 2
    s_add_u32 {s(S_T0)}, {s(S_T0)}, {F.DBG_XCC}
    s_waitcnt vmcnt(0)
    s_barrier
    s_cmp_lg_u32 {s(S_W)}, 4
    s_cbranch_scc1 ch_nox
    s_mov_b64 exec, 1
    buffer_atomic_add v2, off, {s(F.SRD_DBG,4)}, {s(S_T0)} sc1
    s_mov_b64 exec, -1
    """)
    a.label('ch_nox')
    a_prologue(a)
    a('s_cmp_lg_u32 s54, 0')
    a('s_cbranch_scc1 ch_nv1')
    a('s_mov_b32 s58, -1')
    a('s_mov_b32 s59, -1')
    for k in range(8):
        for ph in range(2):
            a('s_memtime s[60:61]')
            a(f's_add_u32 s56, s55, {k*16384 + ph*8192}')
            a('s_waitcnt lgkmcnt(0)')
            a('s_load_dword s57, s[4:5], s56 glc')
            a('s_waitcnt lgkmcnt(0)')
            a('s_memtime s[62:63]')
            a('s_waitcnt lgkmcnt(0)')
            a('s_sub_u32 s57, s62, s60')
            a(f's_min_u32 s{58+ph}, s{58+ph}, s57')
    a(f"""
    s_sub_i32 s57, s58, s59
    s_min_i32 s57, s57, {a.vote}
    s_max_i32 s57, s57, {-a.vote}
    s_add_u32 s57, s57, {a.vote + (1 << 24)}
    s_getreg_b32 s56, hwreg(HW_REG_XCC_ID)
    s_and_b32 s56, s56, 0
    v_mov_b32 v2, s57
    s_mov_b64 exec, 1
    buffer_atomic_add v2, off, {s(F.SRD_DBG,4)}, s56 offset:{F.DBG_VOTE} sc1
    s_mov_b64 exec, -1
    """)
    a('s_waitcnt vmcnt(0)')
    a.label('ch_nv1')
    a_prologue2(a)
    a(f"""
    s_cmp_lg_u32 {s(S_W)}, 4
    s_cbranch_scc1 ch_xcc_skip
    v_lshrrev_b32 v56, 2, {v(AV_L16)}
    v_add_u32 v56, {F.DBG_XCC}, v56
    v_writelane_b32 v56, 0, 10
    v_mov_b32 v59, 63
    v_mov_b32 v60, 32
    v_writelane_b32 v59, 0, 8
    v_writelane_b32 v60, 0, 8
    v_writelane_b32 v59, 0, 9
    v_writelane_b32 v60, 0, 9
    v_writelane_b32 v59, -1, 10
    s_movk_i32 {s(S_T0)}, 128
    v_writelane_b32 v60, {s(S_T0)}, 10
    s_mov_b64 exec, 0x70f
    """)
    a.label('ch_xcc')
    a(f"""
    buffer_load_dword v57, v56, {s(F.SRD_DBG,4)}, 0 offen sc1
    s_waitcnt vmcnt(0)
    v_and_b32 v62, v59, v57
    v_cmp_ne_u32 vcc, v62, v60
    v_readlane_b32 {s(S_T1)}, v57, 8
    v_readlane_b32 {s(S_T2)}, v57, 9
    s_add_u32 {s(S_T0)}, {s(S_T1)}, {s(S_T2)}
    s_lshr_b32 {s(S_T0)}, {s(S_T0)}, 24
    s_cmp_lg_u32 {s(S_T0)}, 32
    s_cbranch_scc1 ch_xcc_w
    s_cbranch_vccz ch_xcc_ok
    """)
    a.label('ch_xcc_w')
    a(f"""
    s_sleep 16
    s_sub_u32 {s(S_TO)}, {s(S_TO)}, 1
    s_cbranch_scc0 ch_xcc
    s_mov_b32 {s(S_TO)}, 0
    """)
    a.label('ch_xcc_ok')
    a(f"""
    s_getreg_b32 {s(S_T0)}, hwreg(HW_REG_XCC_ID)
    s_bitcmp1_b32 {s(S_T0)}, 2
    s_cselect_b32 {s(S_T1)}, {s(S_T1)}, {s(S_T1)}
    v_readlane_b32 {s(S_T0)}, v57, {s(S_X)}
    s_mov_b64 exec, -1
    s_lshr_b32 {s(S_T2)}, {s(S_T1)}, 24
    s_mul_i32 {s(S_T2)}, {s(S_T2)}, {a.vote}
    s_and_b32 {s(S_T1)}, {s(S_T1)}, 0xffffff
    s_cmp_gt_u32 {s(S_T1)}, {s(S_T2)}
    s_cselect_b32 {s(S_T1)}, {0 if a.pgf else 0x2000}, {0x2000 if a.pgf else 0}
    v_mov_b32 v58, {LDS_PUB}
    v_mov_b32 v60, {s(S_T0)}
    v_mov_b32 v61, {s(S_T1)}
    s_barrier
    ds_write_b64 v58, v[60:61]
    s_waitcnt lgkmcnt(0)
    s_branch ch_xcc_b3
    """)
    a.label('ch_xcc_skip')
    a('s_barrier')
    a.label('ch_xcc_b3')
    a(f"""
    s_barrier
    v_mov_b32 v58, {LDS_PUB}
    ds_read_b64 v[60:61], v58
    v_and_b32 v23, 7, v20
    v_lshlrev_b32 v23, 7, v23
    v_bfe_u32 v24, v20, 3, 1
    v_lshl_add_u32 v23, v24, 17, v23
    v_lshrrev_b32 v24, 4, v20
    v_lshl_add_u32 v23, v24, 24, v23
    s_lshl_b32 {s(S_T2)}, {s(S_G)}, 14
    s_lshl_b32 {s(S_T1)}, {s(S_C)}, 10
    s_add_u32 {s(S_T2)}, {s(S_T2)}, {s(S_T1)}
    s_and_b32 {s(S_T1)}, {s(S_T4)}, 1
    s_lshl_b32 {s(S_T1)}, {s(S_T1)}, 18
    s_add_u32 {s(S_T2)}, {s(S_T2)}, {s(S_T1)}
    s_add_u32 {s(S_T2)}, {s(S_T2)}, {WS_QS + 262144}
    s_waitcnt lgkmcnt(0)
    v_readfirstlane_b32 {s(S_T0)}, v61
    s_add_u32 {s(S_PO)}, {s(S_PO)}, {s(S_T0)}
    """)
    a.label('ch_g0')
    a(f"""
    buffer_load_dword v57, off, {s(SRD_WS,4)}, {s(S_CQG)} sc1
    s_waitcnt vmcnt(0)
    v_readfirstlane_b32 {s(S_T0)}, v57
    s_cmp_ge_u32 {s(S_T0)}, {8 if a.s0 else 12}
    s_cbranch_scc1 ch_g0b
    s_sleep {a.g0sl}
    s_sub_u32 {s(S_TO)}, {s(S_TO)}, 1
    s_cbranch_scc0 ch_g0
    s_mov_b32 {s(S_TO)}, 0
    """)
    a.label('ch_g0b')
    for m in (1, 0):
        for x in (reg_list(a, m, AV_TB if m else AV_KS, S_QLD) if a.s1 and a.lr & (1 if m else 2) else dma_list(a, m, AV_L16, S_T1)): a(x)
    a('s_mov_b32 exec_hi, 0xffff')
    a(f'buffer_load_dword {v(AV_PK+7)}, v23, {s(SRD_WS,4)}, {s(S_T2)} offen sc1')
    a('s_mov_b32 exec_hi, -1')
    a(f'v_mov_b32 {v(AV_FV)}, 0')
    a('s_waitcnt vmcnt(1)')
    a(f'ds_write_b32 {v(AV_FLGW)}, {v(AV_FV)} offset:16')
    a_loop(a, prof, done)
```

```python
from asmlib import *
from layout4 import *
from k_prep import red_gq, rnd_bf16

SRD_WS = 4
SRD_DBG = 64
CS_TAB = WS_CNT + 8192
CD_TAB = WS_CNT + 2560
DBG_INIT = 0
DBG_INIT2 = 64
DBG_XCC = 128
DBG_INITA = 192
DBG_VOTE = 160
DBG_ROT = 224
S_EARLY = 70
TIMEOUT = 1 << 16

def emit_ln_init(a, swk, touch):
    a(f'''
    s_cmp_ge_u32 s3, 4
    s_cbranch_scc1 ln_touch
    {f's_cmp_lt_u32 {s(swk)}, 32' if a.cln else ''}
    {'s_cbranch_scc1 ln_short' if a.cln else ''}
    s_load_dwordx2 s[8:9], s[0:1], {KA_X}
    v_and_b32 v1, 63, v0
    s_mov_b32 s10, {4*MB}
    s_mov_b32 s11, {SRD3}
    v_and_b32 v3, 15, v1
    v_lshrrev_b32 v4, 4, v1
    v_lshlrev_b32 v5, 11, v3
    v_lshl_add_u32 v5, v4, 4, v5
    s_lshl_b32 s12, {s(swk)}, 15
    s_lshl_b32 s13, s3, 9
    s_add_u32 s12, s12, s13
    s_waitcnt lgkmcnt(0)
    ''')
    NB = 8; ND = NB * 4; NF = ND * 2
    P = 16; F = 48; T = 112; C = 176
    for j in range(NB):
        a(f'buffer_load_dwordx4 {v(P+4*j,4)}, v5, s[8:11], s12 offen offset:{64*j}{a.xnt}')
    if a.cln: a('s_barrier')
    a(f'''
    v_mov_b32 v14, 0
    s_lshl_b32 s13, {s(swk)}, 7
    s_add_u32 s13, s13, {WS_CNT}
    v_lshlrev_b32 v13, 2, v0
    v_lshlrev_b32 v6, 4, v3
    s_lshl_b32 s14, s3, 2
    v_add_u32 v7, s14, v6
    v_lshlrev_b32 v8, 4, v1
    s_lshl_b32 s15, {s(swk)}, 15
    s_lshl_b32 s16, s3, 13
    s_add_u32 s15, s15, s16
    s_add_u32 s16, s15, 4096
    v_and_b32 v9, 1, v4
    v_cmp_eq_u32 s[20:21], 1, v9
    s_waitcnt vmcnt(0)
    ''')
    for d in range(ND):
        a(f'v_lshlrev_b32 {v(F+2*d)}, 16, {v(P+d)}')
        a(f'v_and_b32 {v(F+2*d+1)}, 0xffff0000, {v(P+d)}')
    def tree(n):
        while n > 1:
            n //= 2
            for i in range(n): a(f'v_add_f32 {v(T+i)}, {v(T+i)}, {v(T+n+i)}')
    for i in range(ND): a(f'v_add_f32 {v(T+i)}, {v(F+i)}, {v(F+ND+i)}')
    tree(ND); red_gq(a, T, T+1)
    a(f'''
    ds_write_b32 v7, {v(T)}
    s_waitcnt lgkmcnt(0)
    s_barrier
    ds_read_b128 {v(T,4)}, v6
    s_waitcnt lgkmcnt(0)
    ''')
    tree(4)
    a(f'v_mul_f32 v10, 0x3a800000, {v(T)}')
    for i in range(NF): a(f'v_sub_f32 {v(C+i)}, {v(F+i)}, v10')
    for i in range(ND):
        a(f'v_mul_f32 {v(T+i)}, {v(C+i)}, {v(C+i)}')
        a(f'v_fmac_f32 {v(T+i)}, {v(C+ND+i)}, {v(C+ND+i)}')
    tree(ND); red_gq(a, T, T+1)
    a(f'''
    ds_write_b32 v7, {v(T)} offset:512
    s_waitcnt lgkmcnt(0)
    s_barrier
    ds_read_b128 {v(T,4)}, v6 offset:512
    ''')
    a.rot_check(2048, 12)
    a(f'''
    s_waitcnt lgkmcnt(0)
    v_cmp_gt_u32 vcc, 32, v0
    s_and_saveexec_b64 s[22:23], vcc
    s_cbranch_execz ln_nz
    buffer_store_dword v14, v13, s[4:7], s13 offen sc1
    ''')
    a.label('ln_nz')
    a('s_mov_b64 exec, -1')
    tree(4)
    a(f'v_mul_f32 v11, 0x3a800000, {v(T)}')
    rnd_bf16(a, 10, 10); rnd_bf16(a, 11, 11)
    a('v_add_f32 v11, 0x3727c5ac, v11')
    rnd_bf16(a, 11, 11)
    a('v_sqrt_f32 v11, v11'); a('s_nop 0')
    rnd_bf16(a, 11, 11)
    a('v_rcp_f32 v11, v11'); a('s_nop 0')
    for j in range(NB):
        for d in range(4*j, 4*j+4):
            a(f'v_sub_f32 {v(F+2*d)}, {v(F+2*d)}, v10')
            a(f'v_sub_f32 {v(F+2*d+1)}, {v(F+2*d+1)}, v10')
            a(f'v_cvt_pk_bf16_f32 {v(P+d)}, {v(F+2*d)}, {v(F+2*d+1)}')
            a(f'v_lshlrev_b32 {v(F+2*d)}, 16, {v(P+d)}')
            a(f'v_and_b32 {v(F+2*d+1)}, 0xffff0000, {v(P+d)}')
            a(f'v_mul_f32 {v(F+2*d)}, {v(F+2*d)}, v11')
            a(f'v_mul_f32 {v(F+2*d+1)}, {v(F+2*d+1)}, v11')
            a(f'v_cvt_pk_bf16_f32 {v(P+d)}, {v(F+2*d)}, {v(F+2*d+1)}')
        b = P + 4 * j; o = T + 4 * j
        a(f'v_cndmask_b32 {v(o)}, {v(b)}, {v(b+2)}, s[20:21]')
        a(f'v_cndmask_b32 {v(o+1)}, {v(b+1)}, {v(b+3)}, s[20:21]')
        a(f'v_cndmask_b32 {v(o+2)}, {v(b+2)}, {v(b)}, s[20:21]')
        a(f'v_cndmask_b32 {v(o+3)}, {v(b+3)}, {v(b+1)}, s[20:21]')
        a(f'buffer_store_dwordx4 {v(o,4)}, v8, s[4:7], s{15 + j//4} offen offset:{1024*(j&3)} sc1')
    if a.scb < 64:
        a(f's_cmp_lt_u32 {s(swk)}, {2 * a.scb}')
        a('s_cbranch_scc1 ln_n2')
        a(f's_add_u32 s15, s15, {WS_XN2}')
        a(f's_add_u32 s16, s16, {WS_XN2}')
        for j in range(NB):
            o = T + 4 * j; t = C + 4 * j
            for d, x in enumerate((0, 2, 1, 3)): a(f'v_mov_b32 {v(t+d)}, {v(o+x)}')
            a('s_nop 1')
            a(f'v_permlane16_swap_b32 {v(t)}, {v(t+1)}')
            a(f'v_permlane16_swap_b32 {v(t+2)}, {v(t+3)}')
            a('s_nop 0')
            a(f'buffer_store_dwordx4 {v(t,4)}, v8, s[4:7], s{15 + j//4} offen offset:{1024*(j&3)} sc1')
        a.label('ln_n2')
    a(f'''
    s_waitcnt vmcnt(0)
    s_barrier
    s_cmp_lg_u32 s3, 0
    s_cbranch_scc1 ln_sig
    v_mov_b32 v2, 1
    s_mov_b64 exec, 1
    s_cmp_ge_u32 {s(swk)}, {0 if a.cln else 8}
    s_cbranch_scc1 ln_sb
    buffer_atomic_add v2, off, {s(SRD_DBG,4)}, 0 offset:{DBG_INITA} sc1
    ''')
    a.label('ln_sb')
    a(f'''
    buffer_atomic_add v2, off, {s(SRD_DBG,4)}, 0 offset:{DBG_INIT} sc1
    s_mov_b64 exec, -1
    s_branch ln_sig
    ''')
    a.label('ln_touch')
    if a.cln:
        a(f's_lshl_b32 s16, {s(swk)}, 2')
        a('s_add_u32 s16, s16, s3')
        a('s_sub_u32 s16, s16, 4')
        ln2 = emit_row_ln(a, 16, 8, 17, 18)
        a('''
        v_mov_b32 v64, 2048
        v_mov_b32 v65, 0
        ds_write_b32 v64, v65
        s_waitcnt lgkmcnt(0)
        s_barrier
        s_waitcnt vmcnt(0)
        ''')
        ln2()
        a(f'''
        v_mov_b32 v65, 1
        s_waitcnt vmcnt(0)
        s_mov_b64 exec, 1
        ds_add_rtn_u32 v66, v64, v65
        s_waitcnt lgkmcnt(0)
        v_readfirstlane_b32 s17, v66
        s_cmp_lg_u32 s17, 3
        s_cbranch_scc1 ln_r2
        buffer_atomic_add v65, off, {s(SRD_DBG,4)}, 0 offset:{DBG_INITA} sc1
        ''')
        a.label('ln_r2')
        a('s_mov_b64 exec, -1')
    touch()
    if a.cln:
        a(f's_cmp_lt_u32 {s(swk)}, 32')
        a('s_cbranch_scc1 ln_sig')
    a('s_cmp_lg_u32 s3, 7')
    a('s_cbranch_scc1 ln_nrp')
    a.rot_poll(2048, 12, 13)
    a.label('ln_nrp')
    a('s_barrier')
    if a.bt1: a.late_touch()
    a('s_barrier')
    a.rot_check(2048, 12)
    a('s_barrier')
    if a.cln:
        a('s_branch ln_sig')
        a.label('ln_short')
        a(f'''
        s_barrier
        s_cmp_lg_u32 s3, 0
        s_cbranch_scc1 ln_sig
        v_mov_b32 v14, 0
        v_mov_b32 v2, 1
        s_lshl_b32 s13, {s(swk)}, 7
        s_add_u32 s13, s13, {WS_CNT}
        v_lshlrev_b32 v13, 2, v0
        s_mov_b32 exec_hi, 0
        buffer_store_dword v14, v13, s[4:7], s13 offen sc1
        s_waitcnt vmcnt(0)
        s_mov_b64 exec, 1
        buffer_atomic_add v2, off, {s(SRD_DBG,4)}, 0 offset:{DBG_INIT} sc1
        s_mov_b64 exec, -1
        ''')
    a.label('ln_sig')

def emit_row_ln(a, s_row, srd, t0, t1):
    P, Fl, T = 24, 32, 48
    a(f"""
    s_load_dwordx2 {s(srd,2)}, s[0:1], {KA_X}
    s_mov_b32 {s(srd+2)}, {4*MB}
    s_mov_b32 {s(srd+3)}, {SRD3}
    v_and_b32 v20, 63, v0
    v_lshlrev_b32 v21, 4, v20
    s_lshl_b32 {s(t0)}, {s(s_row)}, 11
    s_waitcnt lgkmcnt(0)
    buffer_load_dwordx4 {v(P,4)}, v21, {s(srd,4)}, {s(t0)} offen
    buffer_load_dwordx4 {v(P+4,4)}, v21, {s(srd,4)}, {s(t0)} offen offset:1024
    """)
    return lambda: _row_ln2(a, s_row, t0, t1, P, Fl, T)

def _row_ln2(a, s_row, t0, t1, P, Fl, T):
    a(f"""
    v_lshrrev_b32 v22, 2, v20
    v_lshlrev_b32 v22, 10, v22
    v_and_b32 v23, 3, v20
    v_lshl_add_u32 v22, v23, 8, v22
    v_and_b32 v23, 1, v20
    v_cmp_eq_u32 vcc, 1, v23
    s_lshr_b32 {s(t0)}, {s(s_row)}, 4
    s_lshl_b32 {s(t0)}, {s(t0)}, 15
    s_and_b32 {s(t1)}, {s(s_row)}, 15
    s_lshl_b32 {s(t1)}, {s(t1)}, 4
    s_add_u32 {s(t0)}, {s(t0)}, {s(t1)}
    s_add_u32 {s(t1)}, {s(t0)}, 16384
    """)
    for d in range(8):
        a(f'v_lshlrev_b32 {v(Fl+2*d)}, 16, {v(P+d)}')
        a(f'v_and_b32 {v(Fl+2*d+1)}, 0xffff0000, {v(P+d)}')
    def wave_sum():
        n = 8
        while n > 1:
            n //= 2
            for i in range(n): a(f'v_add_f32 {v(T+i)}, {v(T+i)}, {v(T+n+i)}')
        for r in (1, 2, 4, 8):
            a('s_nop 1')
            a(f'v_add_f32_dpp {v(T)}, {v(T)}, {v(T)} row_ror:{r} row_mask:0xf bank_mask:0xf')
        red_gq(a, T, T + 1)
    for i in range(8): a(f'v_add_f32 {v(T+i)}, {v(Fl+i)}, {v(Fl+8+i)}')
    wave_sum()
    a(f'v_mul_f32 v21, 0x3a800000, {v(T)}')
    for i in range(8):
        a(f'v_sub_f32 {v(T+8)}, {v(Fl+i)}, v21')
        a(f'v_sub_f32 {v(T+9)}, {v(Fl+8+i)}, v21')
        a(f'v_mul_f32 {v(T+i)}, {v(T+8)}, {v(T+8)}')
        a(f'v_fmac_f32 {v(T+i)}, {v(T+9)}, {v(T+9)}')
    wave_sum()
    a(f'v_mul_f32 v23, 0x3a800000, {v(T)}')
    rnd_bf16(a, 21, 21); rnd_bf16(a, 23, 23)
    a('v_add_f32 v23, 0x3727c5ac, v23')
    rnd_bf16(a, 23, 23)
    a('v_sqrt_f32 v23, v23'); a('s_nop 0')
    rnd_bf16(a, 23, 23)
    a('v_rcp_f32 v23, v23'); a('s_nop 0')
    for d in range(8):
        a(f'v_sub_f32 {v(Fl+2*d)}, {v(Fl+2*d)}, v21')
        a(f'v_sub_f32 {v(Fl+2*d+1)}, {v(Fl+2*d+1)}, v21')
        a(f'v_cvt_pk_bf16_f32 {v(P+d)}, {v(Fl+2*d)}, {v(Fl+2*d+1)}')
        a(f'v_lshlrev_b32 {v(Fl+2*d)}, 16, {v(P+d)}')
        a(f'v_and_b32 {v(Fl+2*d+1)}, 0xffff0000, {v(P+d)}')
        a(f'v_mul_f32 {v(Fl+2*d)}, {v(Fl+2*d)}, v23')
        a(f'v_mul_f32 {v(Fl+2*d+1)}, {v(Fl+2*d+1)}, v23')
        a(f'v_cvt_pk_bf16_f32 {v(P+d)}, {v(Fl+2*d)}, {v(Fl+2*d+1)}')
    for j in range(2):
        b = P + 4 * j; o = T + 4 * j
        a(f'v_cndmask_b32 {v(o)}, {v(b)}, {v(b+2)}, vcc')
        a(f'v_cndmask_b32 {v(o+1)}, {v(b+1)}, {v(b+3)}, vcc')
        a(f'v_cndmask_b32 {v(o+2)}, {v(b+2)}, {v(b)}, vcc')
        a(f'v_cndmask_b32 {v(o+3)}, {v(b+3)}, {v(b+1)}, vcc')
        a(f'buffer_store_dwordx4 {v(o,4)}, v22, s[4:7], {s((t0, t1)[j])} offen sc1')

def emit_ln_wait(a, s_type, s_aoff, t_fh, x=''):
    if a.cln:
        a(f's_cmp_lt_u32 {s(s_aoff)}, {WS_XN + MB}')
        a(f's_cselect_b32 {s(S_EARLY)}, 1, 0')
    else:
        a(f's_cmp_eq_u32 {s(s_type)}, {t_fh}')
        a(f's_cselect_b32 {s(S_EARLY)}, {1 if a.early else 0}, 0')
        a(f's_cmp_eq_u32 {s(s_aoff)}, {WS_XN}')
        a(f's_cselect_b32 {s(S_EARLY)}, {s(S_EARLY)}, 0')
    a('s_cmp_lg_u32 s3, 0')
    a(f's_cbranch_scc1 lnw{x}_ok')
    a(f's_cmp_eq_u32 {s(S_EARLY)}, 0')
    a(f's_cbranch_scc1 lnw{x}_full')
    emit_wait_init(a, f'lnwa{x}', 20, 68, 69, DBG_INITA, 128 if a.cln else 8)
    a(f's_branch lnw{x}_ok')
    a.label(f'lnw{x}_full')
    emit_wait_init(a, f'lnw{x}', 20, 68, 69)
    a('s_barrier')

def emit_drain_hook(a):
    a(f's_cmp_eq_u32 {s(S_EARLY)}, 0')
    a('s_cbranch_scc1 drw_ok')
    a(f's_mov_b32 {s(S_EARLY)}, 0')
    a('s_cmp_lg_u32 s3, 0')
    a('s_cbranch_scc1 drw_ok')
    a('v_readfirstlane_b32 s68, v22')
    a('s_cmp_ge_u32 s68, 128')
    a('s_cbranch_scc1 drw_ok')
    emit_wait_init(a, 'drw', 20, 68, 69)

def emit_wait_init(a, tag, vt, st, sto, off=DBG_INIT, tgt=128):
    a(f's_mov_b32 {s(sto)}, {TIMEOUT}')
    a.label(tag)
    a(f'''
    buffer_load_dword {v(vt)}, off, {s(SRD_DBG,4)}, 0 offset:{off} sc1
    s_waitcnt vmcnt(0)
    v_readfirstlane_b32 {s(st)}, {v(vt)}
    s_cmp_ge_u32 {s(st)}, {tgt}
    s_cbranch_scc1 {tag}_ok
    s_sleep 8
    s_sub_u32 {s(sto)}, {s(sto)}, 1
    s_cbranch_scc0 {tag}
    ''')
    a.label(tag + '_ok')


def silu8(a, gs, n, T):
    g0, g1 = gs[0], gs[1]
    for d in range(n):
        a(f'v_lshlrev_b32 {v(T+2*d)}, 16, {v(g0+d)}')
        a(f'v_and_b32 {v(T+2*d+1)}, 0xffff0000, {v(g0+d)}')
        for g in gs[1:]:
            a(f'v_lshlrev_b32 {v(g0+d)}, 16, {v(g+d)}')
            a(f'v_and_b32 {v(g+d)}, 0xffff0000, {v(g+d)}')
            a(f'v_add_f32 {v(T+2*d)}, {v(T+2*d)}, {v(g0+d)}')
            a(f'v_add_f32 {v(T+2*d+1)}, {v(T+2*d+1)}, {v(g+d)}')
        a(f'v_cvt_pk_bf16_f32 {v(g0+d)}, {v(T+2*d)}, {v(T+2*d+1)}')
        a(f'v_lshlrev_b32 {v(T+2*d)}, 16, {v(g0+d)}')
        a(f'v_and_b32 {v(T+2*d+1)}, 0xffff0000, {v(g0+d)}')
        a(f'v_mul_f32 {v(g0+d)}, s89, {v(T+2*d)}')
        a(f'v_mul_f32 {v(g1+d)}, s89, {v(T+2*d+1)}')
    for d in range(n):
        a(f'v_exp_f32 {v(g0+d)}, {v(g0+d)}')
        a(f'v_exp_f32 {v(g1+d)}, {v(g1+d)}')
    a('s_nop 0')
    for d in range(n):
        a(f'v_add_f32 {v(g0+d)}, 1.0, {v(g0+d)}')
        a(f'v_add_f32 {v(g1+d)}, 1.0, {v(g1+d)}')
    for d in range(n):
        a(f'v_rcp_f32 {v(g0+d)}, {v(g0+d)}')
        a(f'v_rcp_f32 {v(g1+d)}, {v(g1+d)}')
    a('s_nop 0')
    for d in range(n):
        a(f'v_mul_f32 {v(T+2*d)}, {v(T+2*d)}, {v(g0+d)}')
        a(f'v_mul_f32 {v(T+2*d+1)}, {v(T+2*d+1)}, {v(g1+d)}')
        a(f'v_cvt_pk_bf16_f32 {v(g0+d)}, {v(T+2*d)}, {v(T+2*d+1)}')

def finish(a, A, G, X, O, n, t):
    for d in range(n):
        a(f'v_cvt_pk_bf16_f32 {v(t)}, {v(A+2*d)}, {v(A+2*d+1)}')
        a(f'v_lshlrev_b32 {v(A+2*d)}, 16, {v(t)}')
        a(f'v_and_b32 {v(A+2*d+1)}, 0xffff0000, {v(t)}')
        a(f'v_lshlrev_b32 {v(t)}, 16, {v(G+d)}')
        a(f'v_and_b32 {v(t+1)}, 0xffff0000, {v(G+d)}')
        a(f'v_mul_f32 {v(A+2*d)}, {v(A+2*d)}, {v(t)}')
        a(f'v_mul_f32 {v(A+2*d+1)}, {v(A+2*d+1)}, {v(t+1)}')
        a(f'v_cvt_pk_bf16_f32 {v(t)}, {v(A+2*d)}, {v(A+2*d+1)}')
        a(f'v_lshlrev_b32 {v(A+2*d)}, 16, {v(t)}')
        a(f'v_and_b32 {v(A+2*d+1)}, 0xffff0000, {v(t)}')
        a(f'v_lshlrev_b32 {v(t)}, 16, {v(X+d)}')
        a(f'v_and_b32 {v(t+1)}, 0xffff0000, {v(X+d)}')
        a(f'v_add_f32 {v(A+2*d)}, {v(A+2*d)}, {v(t)}')
        a(f'v_add_f32 {v(A+2*d+1)}, {v(A+2*d+1)}, {v(t+1)}')
        a(f'v_cvt_pk_bf16_f32 {v(O+d)}, {v(A+2*d)}, {v(A+2*d+1)}')

def emit_fin(a, s_type, s_a, s_b, t_tail, done, s_otgt, s_four, s_g2):
    a(f"""
    s_load_dwordx2 s[8:9], s[0:1], {KA_X}
    s_load_dwordx2 s[12:13], s[0:1], {KA_OUT}
    v_mbcnt_lo_u32_b32 v1, -1, 0
    v_mbcnt_hi_u32_b32 v1, -1, v1
    s_mov_b32 s10, {4*MB}
    s_mov_b32 s11, {SRD3}
    s_mov_b32 s14, {4*MB}
    s_mov_b32 s15, {SRD3}
    s_mov_b32 s89, 0xbfb8aa3b
    v_lshlrev_b32 v3, 4, v1
    v_and_b32 v4, 15, v1
    v_lshrrev_b32 v5, 4, v1
    v_lshlrev_b32 v4, 11, v4
    v_lshl_add_u32 v4, v5, 4, v4
    v_and_b32 v5, 1, v5
    v_cmp_eq_u32 s[76:77], 1, v5
    v_and_b32 v6, 3, v1
    v_lshlrev_b32 v6, 7, v6
    s_mov_b32 s80, {s(s_a)}
    s_lshl_b32 s81, {s(s_b)}, 2
    s_and_b32 s82, s3, 3
    s_add_u32 s81, s81, s82
    s_lshr_b32 s82, s3, 2               ; rb & 1
    s_mov_b32 s84, {TIMEOUT}
    s_mov_b32 s85, {CS_TAB}
    s_waitcnt lgkmcnt(0)
    s_cmp_eq_u32 {s(s_type)}, {t_tail}
    s_cbranch_scc1 fin_tail
    """)
    a.label('fin_job')
    a(f"""
    s_lshl_b32 s72, s80, 1
    s_add_u32 s72, s72, s82             ; rb
    s_lshl_b32 s74, s72, 15
    s_lshl_b32 s73, s81, 11
    s_add_u32 s73, s73, s74             ; F offset
    s_lshl_b32 s75, s81, 7
    s_add_u32 s74, s74, s75
    s_add_u32 s78, s73, {WS_GG}
    s_add_u32 s79, s73, {WS_SP}
    s_lshr_b32 s83, s80, 3
    s_lshl_b32 s83, s83, 6
    s_add_u32 s83, s83, {CD_TAB}
    s_add_u32 s87, s80, 2
    """)
    for b in range(2):
        a(f'buffer_load_dwordx4 {v(88+4*b,4)}, v4, s[8:11], s74 offen offset:{64*b}')
    a('s_cmp_lg_u32 s3, 0')
    a('s_cbranch_scc1 fin_ws_ok')
    a.label('fin_wd')
    a(f"""
    buffer_load_dwordx2 v[8:9], off, s[4:7], s83 sc1
    s_waitcnt vmcnt(0)
    v_readfirstlane_b32 s86, v8
    v_readfirstlane_b32 s88, v9
    s_cmp_ge_u32 s88, {s(s_otgt)}
    s_cselect_b32 s86, s86, 0
    s_cmp_ge_u32 s86, 16
    s_cbranch_scc1 fin_wd2
    s_sleep 64
    s_sub_u32 s84, s84, 1
    s_cbranch_scc0 fin_wd
    s_mov_b32 s84, 0
    """)
    a.label('fin_wd2')
    a(f's_cmp_lg_u32 {s(s_otgt)}, 0')
    a('s_cbranch_scc1 fin_ws_ok')
    a.label('fin_ws')
    a(f"""
    buffer_load_dword v7, v6, s[4:7], s85 offen sc1
    s_waitcnt vmcnt(0)
    v_cmp_gt_u32 vcc, s87, v7
    s_cbranch_vccz fin_ws_ok
    s_sleep {a.fin_sleep}
    s_sub_u32 s86, s87, 2
    v_cmp_gt_i32 vcc, s86, v7
    s_cbranch_vccz fin_ws_f
    s_sleep 64
    s_sub_u32 s86, s87, 6
    v_cmp_gt_i32 vcc, s86, v7
    s_cbranch_vccz fin_ws_f
    s_sleep 127
    s_sleep 127
    """)
    a.label('fin_ws_f')
    a(f"""
    s_sub_u32 s84, s84, 1
    s_cbranch_scc0 fin_ws
    s_mov_b32 s84, 0
    """)
    a.label('fin_ws_ok')
    a.fin_claim()
    a('s_barrier')
    for k in range(4):
        if k == 2:
            a(f's_cmp_lg_u32 {s(s_g2)}, 0')
            a('s_cbranch_scc1 fin_g2')
        for b in range(2):
            a(f'buffer_load_dwordx4 {v(136+8*k+4*b,4)}, v3, s[4:7], s78 offen offset:{1024*b} sc1')
        a(f's_add_u32 s78, s78, {4*MB}')
    a('s_branch fin_g4')
    a.label('fin_g2')
    for i in range(16): a(f'v_mov_b32 {v(152+i)}, 0')
    a.label('fin_g4')
    for g in range(8):
        if g in (2, 4):
            a(f's_cmp_ge_u32 {s(s_four)}, {2 if g == 2 else 1}')
            a(f's_cbranch_scc1 fin_{g}p')
        for b in range(2):
            a(f'buffer_load_dwordx4 {v(16+(b*8+g)*4,4)}, v3, s[4:7], s79 offen offset:{1024*b} sc1')
        a(f's_add_u32 s79, s79, {4*MB}')
    a('s_waitcnt vmcnt(16)')
    a('s_branch fin_8p')
    a.label('fin_2p')
    for b in range(2):
        for i in range(24): a(f'v_mov_b32 {v(16+(b*8+2)*4+i)}, 0')
    a('s_waitcnt vmcnt(4)')
    a('s_branch fin_8p')
    a.label('fin_4p')
    for b in range(2):
        for i in range(16): a(f'v_mov_b32 {v(16+(b*8+4)*4+i)}, 0')
    a('s_waitcnt vmcnt(8)')
    a.label('fin_8p')
    for b in range(2): silu8(a, [136 + 8 * k + 4 * b for k in range(4)], 4, 120)
    a('s_waitcnt vmcnt(0)')
    def combine(b):
        A = 96
        for d in range(4):
            r = 16 + b * 32 + d
            a(f'v_lshlrev_b32 {v(A+2*d)}, 16, {v(r)}')
            a(f'v_and_b32 {v(A+2*d+1)}, 0xffff0000, {v(r)}')
        for g in range(1, 8):
            for d in range(4):
                r = 16 + (b * 8 + g) * 4 + d
                a(f'v_lshlrev_b32 {v(120+2*d)}, 16, {v(r)}')
                a(f'v_and_b32 {v(121+2*d)}, 0xffff0000, {v(r)}')
            for e in range(8):
                a(f'v_add_f32 {v(A+e)}, {v(A+e)}, {v(120+e)}')
        X = 88 + 4 * b
        a(f'v_cndmask_b32 v108, {v(X)}, {v(X+2)}, s[76:77]')
        a(f'v_cndmask_b32 v109, {v(X+1)}, {v(X+3)}, s[76:77]')
        a(f'v_cndmask_b32 v110, {v(X+2)}, {v(X)}, s[76:77]')
        a(f'v_cndmask_b32 v111, {v(X+3)}, {v(X+1)}, s[76:77]')
        finish(a, A, 136 + 4 * b, 108, 112, 4, 104)
        O = 128 + 4 * b
        a(f'v_cndmask_b32 {v(O)}, v112, v114, s[76:77]')
        a(f'v_cndmask_b32 {v(O+1)}, v113, v115, s[76:77]')
        a(f'v_cndmask_b32 {v(O+2)}, v114, v112, s[76:77]')
        a(f'v_cndmask_b32 {v(O+3)}, v115, v113, s[76:77]')
        a(f'buffer_store_dwordx4 {v(O,4)}, v4, s[12:15], s74 offen offset:{64*b}{a.osc}')
    for b in range(2): combine(b)
    if a.wprof:
        import k_gemm5
        a('s_waitcnt vmcnt(0)')
        k_gemm5.prof_stamp(a, 1)
    a(f's_branch {done}')
    a.label('fin_tail')
    a(f"""
    s_mov_b32 s81, {s(s_b)}
    s_lshl_b32 s81, s81, 2
    s_and_b32 s82, s3, 3
    s_add_u32 s81, s81, s82             ; blk 0..63
    s_lshr_b32 s82, s81, 5
    s_and_b32 s81, s81, 31              ; cb
    s_lshl_b32 s72, s80, 1
    s_add_u32 s72, s72, s82             ; rb
    s_lshl_b32 s74, s72, 15
    s_lshl_b32 s73, s81, 10
    s_add_u32 s73, s73, s74
    s_lshl_b32 s75, s81, 6
    s_add_u32 s74, s74, s75
    s_add_u32 s78, s73, {WS_GG}
    s_add_u32 s79, s73, {WS_SP}
    s_mov_b32 s83, {CD_TAB + 7 * 64}
    s_mov_b32 s84, {TIMEOUT}
    s_min_u32 s87, s80, 62
    v_and_b32 v8, 7, v1
    v_lshlrev_b32 v8, 22, v8
    s_cmp_lg_u32 s3, 0
    s_cbranch_scc1 ft_ok
    """)
    a.label('ft_wd')
    a(f"""
    buffer_load_dword v7, off, s[4:7], s83 sc1
    s_waitcnt vmcnt(0)
    v_readfirstlane_b32 s86, v7
    s_cmp_ge_u32 s86, 16
    s_cbranch_scc1 ft_wdok
    s_sleep 32
    s_sub_u32 s84, s84, 1
    s_cbranch_scc0 ft_wd
    s_mov_b32 s84, 0
    """)
    a.label('ft_wdok')
    a.label('ft_ok')
    a(f"""
    s_barrier
    s_cmp_ge_u32 s3, 4
    s_cbranch_scc1 {done}
    buffer_load_dwordx4 v[88:91], v4, s[8:11], s74 offen
    """)
    for k in range(4):
        a(f'buffer_load_dwordx4 {v(136+8*k,4)}, v3, s[4:7], s78 offen sc1')
        a(f's_add_u32 s78, s78, {4*MB}')
    if a.ctch: vcode_touch(a, 'ft_l0', 10, 72, 3, 9, 10)
    a('s_waitcnt vmcnt(0)')
    silu8(a, [136 + 8 * k for k in range(4)], 4, 120)
    a.label('ft_ws')
    a(f"""
    buffer_load_dword v7, v6, s[4:7], s85 offen sc1
    s_waitcnt vmcnt(0)
    v_cmp_gt_u32 vcc, s87, v7
    s_cbranch_vccz ft_p
    s_sleep {a.fin_sleep}
    v_cmp_gt_u32 vcc, 59, v7
    s_cbranch_vccz ft_wsf
    s_sleep 64
    v_cmp_gt_u32 vcc, 56, v7
    s_cbranch_vccz ft_wsf
    s_sleep 127
    s_sleep 127
    """)
    a.label('ft_wsf')
    a(f"""
    s_sub_u32 s84, s84, 1
    s_cbranch_scc0 ft_ws
    s_mov_b32 s84, 0
    """)
    a.label('ft_p')
    a(f"""
    buffer_load_dword v7, v8, s[4:7], s79 offen offset:1008 sc1
    s_waitcnt vmcnt(0)
    v_cmp_eq_u32 vcc, -1, v7
    s_cbranch_vccz ft_l0
    s_sleep {a.ft_sleep}
    s_sub_u32 s84, s84, 1
    s_cbranch_scc0 ft_p
    s_mov_b32 s84, 0
    """)
    a.label('ft_l0')
    a.fin_claim()
    a.label('ft_l')
    a('s_mov_b32 s86, s79')
    for g in range(8):
        a(f'buffer_load_dwordx4 {v(16+g*4,4)}, v3, s[4:7], s86 offen sc1')
        if g < 7: a(f's_add_u32 s86, s86, {4*MB}')
    a('s_waitcnt vmcnt(0)')
    a('v_max3_u32 v7, v16, v20, v24')
    a('v_max3_u32 v7, v7, v28, v32')
    a('v_max3_u32 v7, v7, v36, v40')
    a('v_max_u32 v7, v7, v44')
    a(f"""
    v_cmp_eq_u32 vcc, -1, v7
    s_cbranch_vccz ft_go
    s_sub_u32 s84, s84, 1
    s_cbranch_scc0 ft_l
    """)
    a.label('ft_go')
    combine(0)
    if a.wprof:
        import k_gemm5
        a('s_waitcnt vmcnt(0)')
        k_gemm5.prof_stamp(a, 1)
    a(f's_branch {done}')
```

```python
import sys, argparse, os
from asmlib import *
from layout4 import *
import k_gemm5 as G
import k_chain5 as C
import k_fin5 as F
import sched7 as sched5

ap = argparse.ArgumentParser()
ap.add_argument('out')
ap.add_argument('--prof', action='store_true')
ap.add_argument('--wprof', action='store_true')
ap.add_argument('--dtim', action='store_true')
ap.add_argument('--slow', action='store_true')
ap.add_argument('--tim', action='store_true')
ap.add_argument('--list', action='store_true', help='emit as launch list (dev harness)')
OPTS = dict(gdp=0, gde=4, grs=1, gr0=0, gprio=1, wdel=0, stag=0, dpr=2, dkl=1, s2=0, vwm=12, qdm=1, pdl=16, prs=1, wt=0, poll1=1, qpos=1, ln8=0, ftd=0, vu=2, vi=4, osc=0, rotn=2, rot=1, wnt=0, xnt=0, p2e=1, ksp=0, g0sl=3, fuse=0, pgp=1, rdp=0, bt0=256, bt1=0, hk=1, cdh=13, scb=64, sc0=12, scp=1, scd=8, scx=0, xpos=1, nx1=4, ct0=0, ctn=500, ctch=0, fl=0, swp=0, nlb=6, vpos=1, qkf=0, ofd=4, s0=16, jit=1, cln=0, ent=0, kpos=0, lr=3, kdl=0, s1=48, cd=1, cdl=13, qd=0, qdl=9, md=1, last=63, vwp=8, fine=0, finsleep=12, touch=2, ntb=0, nta=0, ftsleep=4, nodep=1, bpre=4, vote=400,
            al=6, alo=11, aloa=0, hh=0, fsq=3, pgf=0, early=1, stouch=1, mck=2, dprio=1, nd1=8, ndl=8, d2=6, fprio=3, fsl=1, kvsl=1, rsleep=0,
            bnt=0, xflip=0, vdel=2, spnt=0)
for n, d in OPTS.items():
    ap.add_argument('--' + n, type=int, default=d)
ap.add_argument('--sp', default='t31')
ap.add_argument('--abl', default='')
args = ap.parse_args()

a = Asm()
G.ENT = ' nt' if args.ent else ''
G.NTA = ' nt' if args.nta else ''; G.NTB = ' nt' if args.ntb else ''
for n in OPTS: setattr(a, n, getattr(args, n))
a.force_slow = args.slow; a.abl = args.abl; a.wprof = args.prof or args.wprof; a.fin_sleep = args.finsleep; a.ft_sleep = args.ftsleep
a.dtim = args.dtim
a.osc = ['', ' sc1', ' nt', ' sc0 sc1'][args.osc]
a.msh = 16
a.wnt = [['', ' nt', ' sc1', ' sc1 nt'][int(c)] for c in '%04d' % args.wnt]; a.xnt = ' nt' if args.xnt else ''
a.spnt = ' nt' if args.spnt else ''
a.bnt = ' nt' if args.bnt else ''
name = NAME + '_kernel'
hdr = open(os.path.join(os.path.dirname(os.path.abspath(__file__)), '..', NAME + '.s.ref')).read().split('; Override launch')[0]
a.raw(hdr.rstrip())
if args.list:
    a.raw(f'; @launch kernel={name} grid=(256,1,1) block=(512,1,1) lds={C.CHAIN_LDS}')
else:
    a.raw(f'; @launch grid=(256,1,1) block=(512,1,1) lds={C.CHAIN_LDS}')
a.raw('.amdgcn_target "amdgcn-amd-amdhsa--gfx950"\n.text')
a.s0 = min(args.s0, args.s1)
lists = sched5.build(nlb=args.nlb, tag=args.sp, nb0=a.s0 // 8, s1=args.s1, scb=args.scb, wt=args.wt)
per = len(lists[0]) + 1
a.raw(f'.globl {name}\n.p2align 8\n.type {name},@function')
a.label(name)
S_WK = 63
a(f'''
s_cmp_ge_u32 s2, 256
s_cbranch_scc1 k_exit
{'s_memrealtime s[90:91]' if args.tim or args.dtim else ''}
s_mov_b32 s99, s2
s_load_dwordx2 s[4:5], s[0:1], {KA_WS}
s_load_dwordx2 {s(F.SRD_DBG,2)}, s[0:1], {KA_DBG}
v_lshrrev_b32 v2, 6, v0
s_mov_b32 s6, {WS_SIZE}
s_mov_b32 s7, {SRD3}
s_mov_b32 {s(F.SRD_DBG+2)}, 256
s_mov_b32 {s(F.SRD_DBG+3)}, {SRD3}
v_readfirstlane_b32 s3, v2
s_getreg_b32 s14, hwreg(HW_REG_XCC_ID)
s_waitcnt lgkmcnt(0)
''')
if args.rot:
    a(f'''
    s_mov_b32 s98, s2
    s_sub_u32 s97, s14, s2
    s_and_b32 s97, s97, 7
    s_or_b32 s15, s2, s3
    s_cmp_lg_u32 s15, 0
    s_cbranch_scc1 k_disp
    s_add_u32 s14, s97, 1
    v_mov_b32 v2, s14
    s_mov_b64 exec, 1
    buffer_store_dword v2, off, {s(F.SRD_DBG,4)}, 0 offset:{F.DBG_ROT} sc1
    s_mov_b64 exec, -1
    s_branch k_disp
    ''')
    a.label('k_restart')
    a('s_waitcnt vmcnt(0) lgkmcnt(0)')
    a('s_barrier')
    a.label('k_disp')
    a(f'''
    s_add_u32 s14, s97, s98
    s_and_b32 s14, s14, 7
    s_andn2_b32 s2, s98, 7
    s_or_b32 s2, s2, s14
    s_mov_b32 s99, s2
    ''')
def rot_poll(addr, va, vd):
    if not args.rot: return
    l = a.uid('rp')
    a('s_mov_b32 s95, 0x10000')
    a.label(l)
    a(f'''
    buffer_load_dword {v(vd)}, off, {s(F.SRD_DBG,4)}, 0 offset:{F.DBG_ROT} sc1
    s_waitcnt vmcnt(0)
    v_readfirstlane_b32 s96, {v(vd)}
    s_cmp_lg_u32 s96, 0
    s_cbranch_scc1 {l}_ok
    s_sleep 2
    s_sub_u32 s95, s95, 1
    s_cbranch_scc0 {l}
    s_add_u32 s96, s97, 1
    ''')
    a.label(l + '_ok')
    a(f'''
    s_sub_u32 s96, s96, 1
    v_mov_b32 {v(va)}, {addr}
    v_mov_b32 {v(vd)}, s96
    ds_write_b32 {v(va)}, {v(vd)}
    s_waitcnt lgkmcnt(0)
    ''')
def rot_check(addr, va):
    if not args.rot: return
    a(f'''
    v_mov_b32 {v(va)}, {addr}
    ds_read_b32 {v(va)}, {v(va)}
    s_mov_b32 s96, s97
    s_waitcnt lgkmcnt(0)
    v_readfirstlane_b32 s97, {v(va)}
    s_cmp_lg_u32 s96, s97
    s_cbranch_scc1 k_restart
    ''')
a.rot_poll = rot_poll; a.rot_check = rot_check
a(f'''
s_lshr_b32 {s(C.S_I)}, s2, 3
s_and_b32 {s(C.S_X)}, s2, 3
''')
if args.ct0:
    a(f's_cmp_lg_u32 s3, 7')
    a('s_cbranch_scc1 k_nct')
    a(f's_cmp_ge_u32 {s(C.S_I)}, {args.ct0}')
    a('s_cbranch_scc1 k_nct')
    a('v_and_b32 v3, 63, v0')
    a('v_lshlrev_b32 v3, 4, v3')
    vcode_touch(a, name, args.ctn, 16, 3, 4, 255)
    a.label('k_nct')
a(f'''
s_waitcnt lgkmcnt(0)
s_bitcmp{args.xflip}_b32 s2, 2
s_cbranch_scc1 chain_map
s_lshl_b32 {s(S_WK)}, {s(C.S_I)}, 2
s_add_u32 {s(S_WK)}, {s(S_WK)}, {s(C.S_X)}
''')
a.late_touch = lambda: G.emit_late_touch(a, args.bt0, args.bt1)
F.emit_ln_init(a, S_WK, [(lambda: None), (lambda: G.emit_touch_first(a, 'jobtab', per, S_WK)), (lambda: G.emit_tlb_touch(a, 'jobtab', per, S_WK))][args.touch])
for i in range(args.wdel): a('s_sleep 127')
a(f's_mov_b32 {s(G.S_T0)}, {s(S_WK)}')
def pre_cold(x=''):
    F.emit_ln_wait(a, G.S_ND + G.D_TYPE, G.S_ND + G.D_A, G.T_FH, x)
a.pre_cold = pre_cold
a.drain_hook = lambda: F.emit_drain_hook(a)
a.fin_hook = lambda *x: F.emit_fin(a, *x)
G.emit_worker(a, 'jobtab', per, 'k_end')
a.label('chain_map')
C.emit_chain(a, 'k_end', prof=args.prof)
a.label('k_end')
if args.tim:
    a(f'''
    s_waitcnt vmcnt(0)
    s_memrealtime s[96:97]
    s_lshl_b32 s98, s99, 3
    s_add_u32 s98, s98, s3
    s_lshl_b32 s98, s98, 3
    s_add_u32 s98, s98, {WS_YP + 13*MB}
    s_waitcnt lgkmcnt(0)
    v_mov_b32 v2, s90
    v_mov_b32 v3, s96
    s_mov_b64 exec, 1
    buffer_store_dwordx2 v[2:3], off, s[4:7], s98
    ''')
if args.dtim:
    a(f'''
    s_waitcnt vmcnt(0)
    s_memrealtime s[96:97]
    s_waitcnt lgkmcnt(0)
    s_not_b32 s90, s90
    v_mov_b32 v2, s90
    v_mov_b32 v3, s96
    s_mov_b64 exec, 1
    s_cmp_lg_u32 s3, 0
    s_cbranch_scc1 k_exit
    buffer_atomic_umax v2, off, {s(F.SRD_DBG,4)}, 0 offset:8 sc1
    buffer_atomic_umax v3, off, {s(F.SRD_DBG,4)}, 0 offset:12 sc1
    s_bitcmp1_b32 s99, 2
    s_cbranch_scc1 k_exit
    buffer_atomic_umax v3, off, {s(F.SRD_DBG,4)}, 0 offset:16 sc1
    s_cmp_lg_u32 s99, 0
    s_cbranch_scc1 k_exit
    s_getreg_b32 s96, hwreg(HW_REG_XCC_ID)
    s_add_u32 s96, s96, 100
    v_mov_b32 v3, s96
    v_mov_b32 v2, {s(C.S_PO)}
    buffer_store_dword v3, off, {s(F.SRD_DBG,4)}, 0 offset:4
    buffer_store_dword v2, off, {s(F.SRD_DBG,4)}, 0 offset:20
    buffer_load_dwordx2 v[4:5], off, {s(F.SRD_DBG,4)}, 0 offset:{F.DBG_VOTE} sc1
    s_waitcnt vmcnt(0)
    buffer_store_dword v4, off, {s(F.SRD_DBG,4)}, 0 offset:56
    ''')
a.label('k_exit')
a('s_endpgm')
a.raw('.section .rodata,"a"')
G.emit_table(a, 'jobtab', lists, per)
a.raw('.p2align 6')
a.raw(kernel_desc(name, 256, 102))
a.raw('; PLAN ' + repr(sched5.PLAN))
open(args.out, 'w').write(a.text())
```

```python
from asmlib import *
from layout4 import *
import k_fin5 as F

SRD_WS = 4
SRD_T = 8
S_W = 3
S_X, S_I, S_G, S_H, S_S = 12, 13, 14, 15, 16
S_T0, S_T1, S_T2, S_T3, S_T4 = 17, 18, 19, 20, 21
S_TO = 22
S_MLD, S_MST, S_MRS, S_QST, S_QRS, S_PLD, S_OK, S_SP, S_TCH, S_RDG, S_RDY, S_C, S_CQG = range(23, 36)
S_MO, S_MSO, S_QO, S_PO, S_X1, S_KG, S_KL = range(36, 43)
S_QLD, S_QLD2, S_PSTC, S_PRS, S_PRG, S_CS, S_CST, S_DW, S_DU, S_U2, S_QT = range(23, 34)
S_M0 = 44
S_ID = 52
S_J = 53
S_SP0 = 54
S_KMX = 55
S_RTG = 58
S_OF, S_OB = 59, 60
S_XB, S_XBX, S_SCO, S_XG = 101, 68, 69, 43
LDS_SCP = 36864
S_MEX = 56
S_PROF = 70
LDS_RED1 = 0
LDS_FLG = 15872
LDS_PUB = 15968
LDS_RED2 = 16384
LDS_SEG = 32768
LDS_BULK = 65536
PSLOT = 18
CHAIN_LDS = 163840
CQ_TAB = WS_CNT + 512
TIMEOUT = 1 << 17

def red_gq(vs, vt, op):
    return [f'v_mov_b32 {v(vt)}, {v(vs)}', 's_nop 1', f'v_permlane16_swap_b32 {v(vt)}, {v(vs)}', f'{op} {v(vs)}, {v(vs)}, {v(vt)}',
            f'v_mov_b32 {v(vt)}, {v(vs)}', 's_nop 1', f'v_permlane32_swap_b32 {v(vt)}, {v(vs)}', f'{op} {v(vs)}, {v(vs)}, {v(vt)}']

def chk(regs, vt, target):
    r = list(regs); o = []
    if len(r) == 1:
        return [f'v_cmp_eq_u32 vcc, -1, {v(r[0])}', f's_cbranch_vccnz {target}']
    if len(r) == 2:
        o.append(f'v_max_u32 {v(vt)}, {v(r[0])}, {v(r[1])}'); r = []
    else:
        o.append(f'v_max3_u32 {v(vt)}, {v(r[0])}, {v(r[1])}, {v(r[2])}'); r = r[3:]
    while len(r) >= 2:
        o.append(f'v_max3_u32 {v(vt)}, {v(vt)}, {v(r[0])}, {v(r[1])}'); r = r[2:]
    if r: o.append(f'v_max_u32 {v(vt)}, {v(vt)}, {v(r[0])}')
    o.append(f'v_cmp_eq_u32 vcc, -1, {v(vt)}')
    o.append(f's_cbranch_vccnz {target}')
    return o

def retry_block(a, label, again, giveup):
    a.label(label)
    a('s_waitcnt vmcnt(0)')
    if a.rsleep: a(f's_sleep {a.rsleep}')
    a(f's_sub_u32 {s(S_TO)}, {s(S_TO)}, 1')
    a(f's_cbranch_scc0 {again}')
    a(f's_mov_b32 {s(S_TO)}, 0')
    a(f's_branch {giveup}')

def spin_block(a, label, loads, regs, vt, ok, giveup):
    a.label(label)
    a(f's_sub_u32 {s(S_TO)}, {s(S_TO)}, 1')
    a(f's_cbranch_scc1 {label}_g')
    for x in loads: a(x)
    a(f's_waitcnt vmcnt({len(loads)-1})')
    for x in chk(regs, vt, label): a(x)
    a(f's_branch {ok}')
    a.label(label + '_g')
    a(f's_mov_b32 {s(S_TO)}, 0')
    a('s_waitcnt vmcnt(0)')
    a(f's_branch {giveup}')

class Prof:
    def __init__(self, on): self.on = on; self.n = 0; self.names = []
    def stamp(self, a, name, lvl=0):
        if self.on and (lvl == 0 or lvl == a.fine or (lvl < 0 and -lvl != a.fine)):
            a(f's_memtime {s(S_PROF + 2*self.n, 2)}'); self.n += 1; self.names.append(name)
    def flush(self, a, vtmp, tag):
        if not self.on: return
        a(f's_memrealtime {s(S_PROF + 2*self.n, 2)}'); self.n += 1; self.names.append('rt')
        a(f's_sub_u32 {s(S_PROF + 2*self.n)}, s100, {s(S_TO)}'); self.n += 1; self.names.append('retries')
        a(f's_mov_b32 s100, {s(S_TO)}')
        assert self.n <= 15
        a('s_waitcnt lgkmcnt(0)')
        a(f's_lshl_b32 {s(S_T0)}, {s(S_ID)}, 3')
        a(f's_add_u32 {s(S_T0)}, {s(S_T0)}, {s(S_W)}')
        a(f's_lshl_b32 {s(S_T0)}, {s(S_T0)}, 6')
        a(f's_add_u32 {s(S_T0)}, {s(S_T0)}, {s(S_S)}')
        a(f's_lshl_b32 {s(S_T0)}, {s(S_T0)}, 6')
        a(f's_add_u32 {s(S_T0)}, {s(S_T0)}, {WS_YP}')
        for i in range(self.n):
            a(f'v_writelane_b32 {v(vtmp)}, {s(S_PROF+2*i)}, {i}')
        a(f's_mov_b64 exec, {(1<<self.n)-1}')
        a(f'v_mbcnt_lo_u32_b32 {v(vtmp+1)}, -1, 0')
        a(f'v_lshlrev_b32 {v(vtmp+1)}, 2, {v(vtmp+1)}')
        a(f'buffer_store_dword {v(vtmp)}, {v(vtmp+1)}, {s(SRD_WS,4)}, {s(S_T0)} offen')
        a('s_mov_b64 exec, -1')
        a.raw(f'; PROF {tag} ' + ' '.join(self.names))
        self.n = 0; self.names = []

def merge_fill(seq, fill, every=2, start=1):
    out = []; fi = 0
    for k, x in enumerate(seq):
        out.append(x)
        if k >= start and (k - start) % every == 0 and fi < len(fill):
            out.append(fill[fi]); fi += 1
    out += fill[fi:]
    return out

def flag_wait(a, tag, vaddr, off, vt, st, sl=1, one=False):
    a.label(tag)
    if one:
        a(f'ds_read_b32 {v(vt)}, {v(vaddr)} offset:{off}')
        a('s_waitcnt lgkmcnt(0)')
    else:
        a(f'ds_read_b128 {v(vt,4)}, {v(vaddr)} offset:{off}')
        a('s_waitcnt lgkmcnt(0)')
        a(f'v_min3_i32 {v(vt)}, {v(vt)}, {v(vt+1)}, {v(vt+2)}')
        a(f'v_min_i32 {v(vt)}, {v(vt)}, {v(vt+3)}')
        a('s_nop 0')
    a(f'v_readfirstlane_b32 {s(st)}, {v(vt)}')
    a(f's_cmp_ge_i32 {s(st)}, {s(S_S)}')
    a(f's_cbranch_scc1 {tag}ok')
    a(f's_sleep {sl}')
    a(f's_branch {tag}')
    a.label(tag + 'ok')

def ring(a, d, add, sh, base):
    if add: a(f's_add_u32 {s(d)}, {s(S_S)}, {add}')
    a(f's_and_b32 {s(d)}, {s(d if add else S_S)}, 3')
    a(f's_lshl_b32 {s(d)}, {s(d)}, {sh}')
    a(f's_add_u32 {s(d)}, {s(d)}, {s(base)}')

def sel_init(a, sel, vl, t1, t2):
    a(f'v_and_b32 {v(t1)}, 15, {v(vl)}')
    a(f'v_and_b32 {v(t2)}, 1, {v(t1)}')
    a(f'v_lshlrev_b32 {v(t2)}, 4, {v(t2)}')
    a(f'v_lshlrev_b32 {v(t2)}, {v(t2)}, 0x3f80' if False else f'v_mov_b32 {v(sel)}, 0x3f80')
    a(f'v_lshlrev_b32 {v(t2)}, {v(t2)}, {v(sel)}')
    a(f'v_lshrrev_b32 {v(t1)}, 1, {v(t1)}')
    for d in range(4):
        a(f'v_cmp_eq_u32 vcc, {d}, {v(t1)}')
        a('s_nop 1')
        a(f'v_cndmask_b32 {v(sel+d)}, 0, {v(t2)}, vcc')

PV_L16, PV_QST, PV_R1W, PV_R1R, PV_MST, PV_SGR, PV_SPS, PV_IDX = 1, 2, 3, 4, 5, 6, 7, 8
PV_PFA, PV_PFD, PV_FLGR = 0, 9, 58
PV_T, PV_NEG, PV_SEL = 9, 10, 12
PV_M, PV_ACC, PV_W = 16, 32, 64
PV_FV, PV_RDY, PV_R1W1, PV_R1W2, PV_FLGW = 59, 60, 61, 62, 63
def pw(b, t): return PV_W + (b * 6 + t) * 8

def mem0_issue(a):
    a(f'''
    s_load_dwordx2 {s(SRD_T,2)}, s[0:1], {KA_MEM0}
    s_mov_b32 {s(SRD_T+2)}, 16384
    v_bfe_u32 v57, v20, 2, 2
    v_and_b32 v58, 1, v20
    v_lshl_add_u32 v57, v57, 1, v58           ; token
    v_lshlrev_b32 v57, 11, v57
    v_lshrrev_b32 v58, 4, v20
    v_lshl_add_u32 v57, v58, 5, v57           ; + 32 g
    v_bfe_u32 v58, v20, 1, 1                  ; p
    v_lshl_add_u32 v57, v58, 4, v57
    v_lshl_add_u32 v59, v58, 3, v57
    v_xor_b32 v60, 8, v59
    s_lshl_b32 {s(S_T3)}, {s(S_W)}, 9
    s_waitcnt lgkmcnt(0)
    ''')
    for b in range(4):
        a(f'buffer_load_dwordx2 {v(32+4*b,2)}, v59, {s(SRD_T,4)}, {s(S_T3)} offen offset:{128*b}')
        a(f'buffer_load_dwordx2 {v(34+4*b,2)}, v60, {s(SRD_T,4)}, {s(S_T3)} offen offset:{128*b}')

def p_prologue(a):
    a(f'''
    v_and_b32 v20, 63, v0
    v_lshlrev_b32 {v(PV_L16)}, 4, v20
    v_mov_b32 {v(PV_NEG)}, -1
    v_mov_b32 {v(PV_NEG+1)}, -1
    v_lshrrev_b32 v21, 2, v20
    v_and_b32 v22, 3, v20
    v_lshlrev_b32 v21, 13, v21
    v_lshl_add_u32 v21, v22, 4, v21
    s_lshl_b32 {s(S_T0)}, {s(S_W)}, 21
    s_lshl_b32 {s(S_T1)}, {s(S_ID)}, 6
    s_add_u32 {s(S_T0)}, {s(S_T0)}, {s(S_T1)}
    s_lshl_b32 {s(S_T2)}, {s(S_W)}, 15
    s_mov_b32 {s(SRD_T+2)}, {8*MB}
    s_mov_b32 {s(SRD_T+3)}, {SRD3}
    v_lshrrev_b32 v24, 5, v20                 ; gB>>1
    v_bfe_u32 v25, v20, 3, 1                  ; r>>1
    v_lshl_add_u32 v24, v24, 1, v25           ; 2(gB>>1) + (r>>1)
    v_bfe_u32 v26, v20, 4, 1                  ; gB&1
    v_xor_b32 v26, v26, v25
    v_lshl_add_u32 v24, v24, 1, v26
    v_bfe_u32 v25, v20, 2, 1                  ; r&1
    v_lshl_add_u32 v24, v24, 2, v25           ; row
    v_lshlrev_b32 v24, 6, v24
    v_lshl_add_u32 v24, v22, 3, v24           ; + cc*8
    v_add_u32 v24, {s(S_T2)}, v24
    ''')
    if a.fl:
        a(f'''
        v_lshrrev_b32 v21, 3, v20
        v_and_b32 v23, 7, v20
        v_lshlrev_b32 v21, 14, v21
        v_lshl_add_u32 v21, v23, 4, v21
        s_and_b32 {s(S_T1)}, {s(S_I)}, 1
        s_mul_i32 {s(S_T1)}, {s(S_T1)}, {8192 - 64}
        s_add_u32 {s(S_T0)}, {s(S_T0)}, {s(S_T1)}
        ''')
    def src(p):
        a(f's_load_dwordx2 {s(SRD_T,2)}, s[0:1], {KA_WQ + 8*p}')
        a(f's_add_u32 {s(S_T3)}, {s(S_T0)}, s72')
        a('s_waitcnt lgkmcnt(0)')
    a(f's_and_b32 s70, {s(S_I)}, {1 if a.stag else 0}')
    a('s_lshl_b32 s72, s70, 20')
    a('s_lshl_b32 s73, s70, 21')
    a('s_lshl_b32 s70, s70, 13')
    a(f's_sub_u32 s71, {s(S_T2)}, s70')
    a(f's_add_u32 s70, {s(S_T2)}, s70')
    def issue(p, half):
        src(p)
        for n in range(16):
            if a.rot and p == 0 and n == a.rotn:
                a('s_barrier')
                a.rot_check(131072 + 64, 27)
            a(f's_add_u32 m0, {"s70" if n < 8 else "s71"}, {half*16384 + n*1024}')
            a('s_nop 0')
            a(f'buffer_load_dwordx4 v21, {s(SRD_T,4)}, {s(S_T3)} offen{a.wnt[p]} lds')
            a(f's_add_u32 {s(S_T3)}, {s(S_T3)}, {16*8192}')
            if n == 7: a(f's_sub_u32 {s(S_T3)}, {s(S_T3)}, s73')
    def fetch(p, half):
        for b in range(4):
            for T in range(2):
                for t4 in range(4):
                    a(f'ds_read_b64_tr_b16 {v(pw(b, 2*p+T)+2*t4, 2)}, v24 offset:{half*16384 + b*4096 + (32*(t4>>1) + 2*(t4&1))*64 + T*32}')
            a('s_waitcnt lgkmcnt(0)')
    issue(0, 0); issue(1, 1)
    src(2)
    land = [pw(n // 4, 4) + 4 * (n & 3) for n in range(16)]
    for n in range(16):
        a(f'buffer_load_dwordx4 {v(land[n],4)}, v21, {s(SRD_T,4)}, {s(S_T3)} offen{a.wnt[2]}')
        a(f's_add_u32 {s(S_T3)}, {s(S_T3)}, {16*8192}')
        if n == 7: a(f's_sub_u32 {s(S_T3)}, {s(S_T3)}, s73')
    mem0_issue(a)
    a('s_barrier')
    a(f'v_add_u32 v56, s70, {v(PV_L16)}')
    a(f'v_add_u32 v26, s71, {v(PV_L16)}')
    a('s_waitcnt vmcnt(40)'); fetch(0, 0)
    a('s_waitcnt vmcnt(24)'); fetch(1, 1)
    a('s_waitcnt vmcnt(8)')
    for n in range(16):
        a(f'ds_write_b128 {"v56" if n < 8 else "v26"}, {v(land[n],4)} offset:{n*1024}')
    a('s_waitcnt lgkmcnt(0)')
    fetch(2, 0)
    a(f'''
    v_mov_b32 v21, 0x44444444
    v_mov_b32 v22, 0xeeeeeeee
    v_and_b32 v23, 2, v20
    v_cmp_eq_u32 vcc, 0, v23
    s_nop 1
    v_cndmask_b32 {v(PV_IDX)}, v22, v21, vcc
    ''')
    a(f'''
    v_bfe_u32 v21, v20, 2, 3                  ; t
    v_lshrrev_b32 v22, 5, v20                 ; isk
    v_mul_u32_u24 v23, 160, v21
    v_mul_u32_u24 v24, 1280, v22
    v_add_u32 v23, v23, v24
    v_and_b32 v24, 3, v20
    v_lshl_add_u32 v27, v24, 4, v23
    v_lshrrev_b32 v23, 1, v21
    v_and_b32 v21, 1, v21
    v_lshl_add_u32 v21, v23, 2, v21           ; row0
    v_xor_b32 v22, 1, v22
    v_lshl_add_u32 v21, v22, 1, v21           ; row
    v_bfe_u32 v22, v20, 1, 1                  ; gq&1
    v_lshl_add_u32 v21, v22, 4, v21
    v_xor_b32 v22, v20, v22
    v_and_b32 v22, 1, v22                     ; hs
    v_lshlrev_b32 v21, 4, v21
    v_lshl_add_u32 v25, v22, 3, v21
    v_lshrrev_b32 v21, 3, v20                 ; t
    v_mul_u32_u24 v23, 160, v21
    v_and_b32 v24, 7, v20
    v_lshl_add_u32 v28, v24, 4, v23
    v_lshrrev_b32 v23, 1, v21
    v_and_b32 v21, 1, v21
    v_lshl_add_u32 v21, v23, 2, v21
    v_and_b32 v22, 1, v20                     ; p
    v_lshl_add_u32 v21, v22, 1, v21
    v_bfe_u32 v22, v20, 2, 1                  ; gq>>1
    v_lshl_add_u32 v21, v22, 4, v21
    v_bfe_u32 v22, v20, 1, 1                  ; gq&1
    v_lshlrev_b32 v21, 4, v21
    v_lshl_add_u32 v26, v22, 3, v21
    s_lshl_b32 {s(S_T0)}, {s(S_J)}, 10
    s_lshl_b32 {s(S_T1)}, {s(S_W)}, 9
    s_add_u32 {s(S_T0)}, {s(S_T0)}, {s(S_T1)}
    s_lshl_b32 {s(S_T1)}, {s(S_W)}, 6
    s_lshl_b32 {s(S_T2)}, {s(S_J)}, 9
    s_add_u32 {s(S_T2)}, {s(S_T2)}, 4096
    s_cmp_ge_u32 {s(S_W)}, 2
    s_cselect_b32 {s(S_T0)}, {s(S_T2)}, {s(S_T0)}
    s_cselect_b32 {s(S_T1)}, 2560, {s(S_T1)}
    s_cselect_b64 vcc, -1, 0
    v_cndmask_b32 v22, v25, v26, vcc
    v_cndmask_b32 v23, v27, v28, vcc
    v_add_u32 {v(PV_QST)}, {s(S_T0)}, v22
    v_add_u32 {v(PV_R1R)}, {s(S_T1)}, v23
    v_lshrrev_b32 v21, 4, v20                 ; g
    v_and_b32 v22, 15, v20                    ; n
    v_mul_u32_u24 v23, 320, v21
    v_lshl_add_u32 v23, v22, 2, v23
    s_mul_i32 {s(S_T0)}, {s(S_W)}, 3840
    v_add_u32 {v(PV_R1W)}, {s(S_T0)}, v23
    v_add_u32 {v(PV_R1W1)}, 1280, {v(PV_R1W)}
    v_bfe_u32 v24, v20, 3, 1
    v_bfe_u32 v25, v20, 2, 1
    v_xor_b32 v25, v25, v24                   ; hs
    v_bfe_u32 v26, v20, 1, 1                  ; p
    v_lshl_add_u32 v25, v26, 1, v25
    v_lshl_add_u32 v25, v24, 2, v25
    v_and_b32 v26, 1, v20
    v_lshl_add_u32 v25, v25, 1, v26           ; pos(n)
    v_sub_u32 v25, v25, v22
    v_lshl_add_u32 v25, v25, 2, {v(PV_R1W)}
    v_add_u32 {v(PV_R1W2)}, 2560, v25
    v_lshlrev_b32 v23, 4, v22
    v_lshl_add_u32 {v(PV_SGR)}, v21, 12, v23
    s_lshl_b32 {s(S_T0)}, {s(S_W)}, 10
    s_add_u32 {s(S_T0)}, {s(S_T0)}, {LDS_SEG}
    v_add_u32 {v(PV_SGR)}, {s(S_T0)}, {v(PV_SGR)}
    v_lshrrev_b32 v24, 1, v21
    v_lshl_add_u32 v23, v24, 15, v23
    v_and_b32 v24, 1, v21
    v_lshl_add_u32 {v(PV_SPS)}, v24, 8, v23
    v_mov_b32 {v(PV_FLGR)}, {LDS_FLG}
    v_bfe_u32 v23, v20, 1, 2                  ; t>>1
    v_lshlrev_b32 v23, 6, v23
    v_and_b32 v25, 1, v20
    v_lshl_add_u32 v23, v25, 4, v23
    v_lshrrev_b32 v24, 5, v20
    v_lshl_add_u32 {v(PV_MST)}, v24, 5, v23
    v_and_b32 v23, 7, v20
    v_lshlrev_b32 v23, 7, v23
    v_bfe_u32 v24, v20, 3, 1
    v_lshl_add_u32 v23, v24, 17, v23
    v_lshrrev_b32 v24, 4, v20
    v_add_u32 v24, 1, v24
    v_cmp_le_u32 vcc, 3, v24
    s_nop 1
    v_cndmask_b32 v24, v24, 0, vcc
    v_lshl_add_u32 v23, v24, 24, v23
    s_lshl_b32 {s(S_T0)}, {s(S_G)}, 14
    s_lshl_b32 {s(S_T1)}, {s(S_C)}, 10
    s_add_u32 {s(S_T0)}, {s(S_T0)}, {s(S_T1)}
    s_add_u32 {s(S_T0)}, {s(S_T0)}, {WS_QS}
    v_add_u32 {v(PV_PFA)}, {s(S_T0)}, v23
    s_lshl_b32 {s(S_T0)}, {s(S_W)}, 2
    s_add_u32 {s(S_T0)}, {s(S_T0)}, {LDS_FLG}
    v_mov_b32 {v(PV_FLGW)}, {s(S_T0)}
    ''')
    sel_init(a, PV_SEL, 20, 21, 22)
    a('s_waitcnt vmcnt(0)')
    for i in range(16): a(f'v_mov_b32 {v(PV_M+i)}, {v(32+i)}')

def gate_addr(a, d, add, tg):
    a(f's_add_u32 {s(S_T4)}, {s(S_S)}, {add}')
    a(f's_min_u32 {s(S_T4)}, {s(S_T4)}, 63')
    a(f's_cmp_ge_u32 {s(S_T4)}, {a.s0}')
    a(f's_cselect_b32 {s(tg)}, 12, 8')
    if a.scb < 64:
        a(f's_cmp_ge_u32 {s(S_T4)}, {a.scb}')
        a(f's_cselect_b32 {s(tg)}, 0, {s(tg)}')
    a(f's_and_b32 {s(d)}, {s(S_T4)}, 4')
    a(f's_lshr_b32 {s(S_T4)}, {s(S_T4)}, 3')
    a(f's_lshl_b32 {s(S_T4)}, {s(S_T4)}, 8')
    a(f's_add_u32 {s(d)}, {s(d)}, {s(S_T4)}')
    a(f's_add_u32 {s(d)}, {s(d)}, {s(S_CQG)}')

def p_gate(a, k):
    l = a.uid('gate')
    a(f's_bitcmp1_b32 {s(S_OK)}, {k}')
    a(f's_cbranch_scc1 {l}_ok')
    gate_addr(a, S_RDG, 1 + k, S_T2)
    a.label(l)
    a(f'buffer_load_dword {v(PV_T)}, off, {s(SRD_WS,4)}, {s(S_RDG)} sc1')
    a('s_waitcnt vmcnt(0)')
    a(f'v_readfirstlane_b32 {s(S_T4)}, {v(PV_T)}')
    a(f's_cmp_ge_u32 {s(S_T4)}, {s(S_T2)}')
    a(f's_cbranch_scc1 {l}_set')
    a('s_sleep 8')
    a(f's_sub_u32 {s(S_TO)}, {s(S_TO)}, 1')
    a(f's_cbranch_scc0 {l}')
    a(f's_mov_b32 {s(S_TO)}, 0')
    a.label(l + '_set')
    a(f's_bitset1_b32 {s(S_OK)}, {k}')
    a.label(l + '_ok')

def dma_list(a, m, vl16, st, S_KG=S_KG, S_KL=S_KL, hd=0):
    base = (WS_KS, WS_VS, WS_QS)[m] + 4096 * hd
    o = []
    for kt in range(2):
        for u in range(4):
            pre = f's_add_u32 m0, {s(S_KL)}, {8192*m + 4096*kt + 24576*hd}\ns_add_u32 {s(st)}, {s(S_KG)}, {base + 131072*kt}\n' if u == 0 else ''
            o.append(pre + f'buffer_load_dwordx4 {v(vl16)}, {s(SRD_WS,4)}, {s(st)} offen offset:{1024*u} sc1{a.bnt} lds')
    return o

def reg_list(a, m, reg, st):
    base = (WS_KS, WS_VS, WS_QS)[m]
    o = []
    for kt in range(2):
        for u in range(4):
            pre = f's_add_u32 {s(st+kt)}, {s(S_KG)}, {base + 131072*kt}\n' if u == 0 else ''
            o.append(pre + f'buffer_load_dwordx4 {v(reg+(kt*4+u)*4,4)}, {v(AV_L16)}, {s(SRD_WS,4)}, {s(st+kt)} offen offset:{1024*u} sc1{a.bnt}')
    return o

def p_segreduce(a, part=3):
    if part & 1: p_segcalc(a)
    if part & 2: p_segstore(a)

def p_segcalc(a):
    S1 = 48
    for ul in range(2):
        for rt in range(2):
            a(f'ds_read_b128 {v(PV_M+4*(2*ul+rt),4)}, {v(PV_SGR)} offset:{512*ul+256*rt}')
    a(f'v_xor_b32 {v(PV_SGR)}, 0x4000, {v(PV_SGR)}')
    for ul in range(2):
        D = 40 + 4 * ul
        a(f's_waitcnt lgkmcnt({2-2*ul})')
        a(f'v_mfma_f32_16x16x32_bf16 {v(D,4)}, {v(PV_SEL,4)}, {v(PV_M+8*ul,4)}, 0')
        a(f'v_mfma_f32_16x16x32_bf16 {v(D,4)}, {v(S1,4)}, {v(PV_M+8*ul+4,4)}, {v(D,4)}')
    a('s_nop 7')
    a('v_cvt_pk_bf16_f32 v40, v40, v41')
    a('v_cvt_pk_bf16_f32 v41, v42, v43')
    a('v_cvt_pk_bf16_f32 v42, v44, v45')
    a('v_cvt_pk_bf16_f32 v43, v46, v47')
    a('s_nop 1')
    a('v_permlane16_swap_b32 v40, v42')
    a('v_permlane16_swap_b32 v41, v43')
    a('s_nop 1')
    a('v_min_u32 v40, -2, v40')

def p_segstore(a):
    a(f'buffer_store_dwordx4 v[40:43], {v(PV_SPS)}, {s(SRD_WS,4)}, {s(S_SP)} offen sc1{a.spnt}')
    a(f's_add_u32 {s(S_SP)}, {s(S_SP)}, 65536')

def p_loop(a, loc, prof, done):
    LH = a.uid('ploopH')
    for i in range(24): a(f'v_mov_b32 {v(PV_ACC+i)}, 0')
    a(f'v_mov_b32 {v(PV_FV)}, 0')
    a('s_nop 1')
    if a.s1:
        LL = a.uid('ploopL')
        a(f's_branch {LL}_nc')
        p_body(a, loc, Prof(prof), done, LL, True, LH, True)
    else: a(f's_branch {LH}_nc')
    p_body(a, loc, Prof(prof), done, LH, False, None, not a.s1)

def p_body(a, loc, pf, done, L, light, nxt, entry):
    Lrm = L + '_rm'; Lrp = L + '_rp'
    mld = [f'buffer_load_dwordx4 {v(PV_M+4*j,4)}, {v(PV_L16)}, {s(SRD_WS,4)}, {s(S_MLD)} offen offset:{1024*j} sc1' for j in range(4)]
    mreg = lambda b: [PV_M + 4 * b]
    def mm(check):
        if check:
            a('s_waitcnt vmcnt(3)')
            for x in chk(mreg(0), PV_T, f'{Lrm}_0'): a(x)
            a.label(f'{Lrm}_0ok')
            pf.stamp(a, 'b0ok')
        for b in range(4):
            ms = [f'v_smfmac_f32_16x16x64_bf16 {v(PV_ACC+4*t,4)}, {v(PV_M+4*b,4)}, {v(pw(b,t),8)}, {v(PV_IDX)}' for t in range(4 if a.qkf else 6)]
            if check and b < 3:
                c = chk(mreg(b + 1), PV_T, f'{Lrm}_{b+1}')
                ms = ms[:a.mck] + [f's_waitcnt vmcnt({2-b})'] + c[:-1] + ms[a.mck:] + c[-1:]
            if b == 3:
                ms = ms[:1] + [f'ds_write_b32 {v(PV_FLGW)}, {v(PV_FV)} offset:32'] + ms[1:]
            for x in ms: a(x)
            if check and b < 3: a.label(f'{Lrm}_{b+1}ok')
    if a.al: a.raw(f'.p2align {a.al}')
    for i in range(a.alo): a('s_nop 0')
    a.label(L)
    pf.stamp(a, 'top')
    for i in range(24): a(f'v_mov_b32 {v(PV_ACC+i)}, 0')
    if light and a.jit: p_gate(a, 0)
    if a.md: a(f's_sleep {a.md}')
    for x in mld: a(x)
    mm(True)
    if entry:
        a(f's_branch {L}_mmd')
        a.label(L + '_nc')
        if pf.on:
            a(f's_memtime {s(S_PROF, 2)}'); a(f's_memtime {s(S_PROF+2, 2)}')
        mm(False)
        a.label(L + '_mmd')
    pf.stamp(a, 'mmdone')
    def wr(t):
        A = PV_ACC + 4 * t
        a(f'v_add_f32 {v(A)}, {v(A)}, {v(A+2)}'); a(f'v_add_f32 {v(A+1)}, {v(A+1)}, {v(A+3)}')
        a(f'ds_write2_b32 {v((PV_R1W, PV_R1W1, PV_R1W2)[t>>1])}, {v(A)}, {v(A+1)} offset0:{16*(t&1)} offset1:{16*(t&1)+40}')
    R = 32
    def add4(d, x):
        for e in range(4): a(f'v_add_f32 {v(d+e)}, {v(d+e)}, {v(x+e)}')
    def reduce(fill=()):
        for h in range(4):
            a(f'ds_read_b128 {v(R+4*h,4)}, {v(PV_R1R)} offset:{LDS_RED1+3840*h}')
        for x in fill: a(x)
        a('s_waitcnt lgkmcnt(2)')
        add4(R, R + 4)
        a('s_waitcnt lgkmcnt(0)')
        add4(R + 8, R + 12)
        add4(R, R + 8)
        a(f'v_cvt_pk_bf16_f32 v56, {v(R)}, {v(R+1)}')
        a(f'v_cvt_pk_bf16_f32 v57, {v(R+2)}, {v(R+3)}')
        a('v_min_u32 v56, -2, v56')
        a(f'buffer_store_dwordx2 v[56:57], {v(PV_QST)}, {s(SRD_WS,4)}, {s(S_QST)} offen{loc}')
    def qreset():
        ring(a, S_QRS, 2, 18, S_QO)
        a(f'buffer_store_dwordx2 {v(PV_NEG,2)}, {v(PV_QST)}, {s(SRD_WS,4)}, {s(S_QRS)} offen{loc}')
    if a.qkf:
        vm = [f'v_smfmac_f32_16x16x64_bf16 {v(PV_ACC+4*t,4)}, {v(PV_M+4*b,4)}, {v(pw(b,t),8)}, {v(PV_IDX)}' for b in range(4) for t in (4, 5)]
        a(f's_cmp_ge_u32 {s(S_W)}, 2')
        for x in vm[:2]: a(x)
        a('s_nop 1')
        for t in range(4): wr(t)
        for x in vm[2:4]: a(x)
        a('s_waitcnt lgkmcnt(0)')
        pf.stamp(a, 'b1rdy', -2)
        a('s_barrier')
        pf.stamp(a, 'b1')
        a(f's_cbranch_scc1 {L}_sk0')
        reduce(vm[4:])
        a(f's_branch {L}_sk0b')
        a.label(L + '_sk0')
        for x in vm[4:]: a(x)
        a('s_nop 6')
        a.label(L + '_sk0b')
        a(f's_cmp_lg_u32 {s(S_W)}, 2')
        wr(4); wr(5)
        a('s_waitcnt lgkmcnt(0)')
        a('s_barrier')
        a(f's_cbranch_scc1 {L}_sk2')
        reduce()
        a.label(L + '_sk2')
        a(f's_cmp_eq_u32 {s(S_W)}, 3')
        a(f's_cbranch_scc1 {L}_sk1')
        qreset()
    else:
        a(f's_cmp_eq_u32 {s(S_W)}, 3')
        a('s_nop 1')
        for t in range(6): wr(t)
        a('s_waitcnt lgkmcnt(0)')
        pf.stamp(a, 'b1rdy', -2)
        a('s_barrier')
        pf.stamp(a, 'b1')
        a(f's_cbranch_scc1 {L}_sk1')
        reduce()
        qreset()
    a.label(L + '_sk1')
    pf.stamp(a, 'qpub', -2)
    a('s_setprio 0')
    sc = light and a.scb < 64
    NU = 2 * (64 - a.scb)
    def sc_cond(lo, lab):
        a(f's_sub_u32 {s(S_T0)}, {s(S_S)}, {lo}')
        a(f's_cmp_ge_u32 {s(S_T0)}, {NU}')
        a(f's_cbranch_scc1 {lab}')
    if sc:
        assert a.sc0 + NU + 1 < a.s1 and a.sc0 + NU + 2 < 63 and a.sc0 + 4 < a.scb
        sc_cond(a.sc0 + 1, L + '_nsc')
        a(f's_setprio {a.scp}')
        a(f'v_add_u32 {v(PV_T)}, {s(S_XB)}, {v(PV_L16)}')
        if not a.xpos: a(f's_xor_b32 {s(S_XB)}, {s(S_XB)}, {s(S_XBX)}')
        rd = lambda k: f'ds_read_b128 {v(PV_M+4*(k&3),4)}, {v(PV_T)} offset:{1024*k}'
        for k in range(4): a(rd(k))
        for k in range(8):
            a(f's_waitcnt lgkmcnt({min(3, 7-k) if k < 4 or True else 0})' if k == 0 else f's_waitcnt lgkmcnt({min(2, 7-k)})')
            for t in range(6):
                d = v(PV_ACC + 4 * t, 4)
                a(f'v_mfma_f32_16x16x32_bf16 {d}, {v(PV_M+4*(k&3),4)}, {v(pw(k>>1,t)+4*(k&1),4)}, {"0" if k == 0 else d}')
                if t == 2 and 1 <= k and k + 3 < 8: a(rd(k + 3))
        a(f"""
        v_lshrrev_b32 {v(PV_M)}, 8, {v(PV_L16)}
        v_mul_u32_u24 {v(PV_M)}, 576, {v(PV_M)}
        v_bfe_u32 {v(PV_M+1)}, {v(PV_L16)}, 4, 4
        v_lshl_add_u32 {v(PV_M)}, {v(PV_M+1)}, 2, {v(PV_M)}
        s_mul_i32 {s(S_T0)}, {s(S_W)}, 6912
        s_add_u32 {s(S_T0)}, {s(S_T0)}, {LDS_SCP}
        v_add_u32 {v(PV_M)}, {s(S_T0)}, {v(PV_M)}
        v_add_u32 {v(PV_M+1)}, 2304, {v(PV_M)}
        v_add_u32 {v(PV_M+2)}, 4608, {v(PV_M)}
        """)
        for t in range(6):
            for i in (0, 2):
                a(f'ds_write2_b32 {v(PV_M+(t>>1))}, {v(PV_ACC+4*t+i)}, {v(PV_ACC+4*t+i+1)} offset0:{36*i+16*(t&1)} offset1:{36*i+36+16*(t&1)}')
        a('s_waitcnt lgkmcnt(0)')
        a('s_setprio 0')
        a.label(L + '_nsc')
    ring(a, S_MRS, 3, a.msh, S_MSO)
    mex = f's_mov_b64 exec, {s(S_MEX,2)}'
    for d in range(4): a(f'v_mov_b32 {v(44+d)}, -1')
    a(mex)
    a(f'buffer_store_dwordx4 v[44:47], {v(PV_MST)}, {s(SRD_WS,4)}, {s(S_MRS)} offen{loc}')
    a('s_mov_b64 exec, -1')
    for d in range(4): a(f'v_mov_b32_dpp {v(48+d)}, {v(PV_SEL+d)} row_ror:8 row_mask:0xf bank_mask:0xf')
    ring(a, S_PLD, 0, PSLOT, S_PO)
    ring(a, S_MST, 1, a.msh, S_MSO)
    ring(a, S_MLD, 1, a.msh, S_MO)
    ring(a, S_QST, 1, 18, S_QO)
    def seg(part):
        if 's' in a.abl: return
        Lh = a.uid('pnoseg')
        a(f's_cmp_eq_u32 {s(S_SP)}, {s(S_SP0)}')
        a(f's_cbranch_scc1 {Lh}')
        p_segreduce(a, part)
        a.label(Lh)
    def oflush(part):
        l = a.uid('ofl')
        a(f's_cmp_eq_u32 {s(S_OF)}, 0')
        a(f's_cbranch_scc1 {l}')
        if part == 1:
            a(f's_lshl_b32 {s(S_T0)}, {s(S_W)}, 10')
            a(f'v_add_u32 v39, {s(S_T0)}, {v(PV_L16)}')
            a(f'ds_read_b128 v[40:43], v39 offset:{LDS_SEG}')
        else:
            a(f's_lshl_b32 {s(S_T0)}, {s(S_S)}, 18')
            a(f's_add_u32 {s(S_T0)}, {s(S_T0)}, {s(S_OB)}')
            if 'o' not in a.abl: a(f'buffer_store_dwordx4 v[40:43], {v(PV_L16)}, {s(SRD_WS,4)}, {s(S_T0)} offen sc1')
            a(f's_mov_b32 {s(S_OF)}, 0')
        a.label(l)
    unit = a.s0 < a.s1
    if unit: oflush(1)
    if light:
        a(f"""
        s_cmp_ge_u32 {s(S_S)}, {a.s0}
        s_cbranch_scc1 {L}_nx
        v_mov_b32 v40, {v(PV_QST)}
        v_mov_b32 v42, v56
        v_mov_b32 v43, v57
        s_cmp_lg_u32 {s(S_W)}, 2
        s_cbranch_scc1 {L}_nx
        v_and_b32 v40, 0x60, {v(PV_L16)}
        v_lshlrev_b32 v40, 2, v40
        v_lshrrev_b32 v41, 3, {v(PV_L16)}
        v_and_b32 v41, 0x70, v41
        v_or_b32 v40, v40, v41
        v_bfe_u32 v41, {v(PV_L16)}, 4, 1
        v_lshl_or_b32 v40, v41, 3, v40
        s_lshl_b32 {s(S_T0)}, {s(S_J)}, 9
        s_add_u32 {s(S_T0)}, {s(S_T0)}, 4096
        v_add_u32 v40, {s(S_T0)}, v40
        s_mov_b32 vcc_lo, 0x55555555
        s_mov_b32 vcc_hi, 0x55555555
        v_cndmask_b32_dpp v42, v57, v56, vcc quad_perm:[1,0,3,2] row_mask:0xf bank_mask:0xf
        s_not_b64 vcc, vcc
        v_cndmask_b32_dpp v43, v56, v57, vcc quad_perm:[1,0,3,2] row_mask:0xf bank_mask:0xf
        """)
        a.label(L + '_nx')
    else:
        a(f's_cmp_eq_u32 {s(S_S)}, {a.last}')
        a(f's_cbranch_scc1 {L}_tail')
        seg(1)
    if not (light and a.jit): p_gate(a, 1 if light else 0)
    a(f'v_readfirstlane_b32 {s(S_T4)}, {v(PV_RDY)}')
    a(f's_lshr_b32 {s(S_OK)}, {s(S_OK)}, 1')
    a(f's_cmp_ge_u32 {s(S_T4)}, {s(S_RTG)}')
    a(f's_cselect_b32 {s(S_T4)}, 2, 0')
    a(f's_or_b32 {s(S_OK)}, {s(S_OK)}, {s(S_T4)}')
    a(f's_cmp_eq_u32 {s(S_W)}, 3')
    a(f's_cselect_b32 {s(S_T3)}, {s(S_T4)}, 0')
    gate_addr(a, S_RDY, 4, S_RTG)
    dl = []
    for m, ch in (((1, 'v'),) if a.hk and not light else ((0, 'k'), (1, 'v'))[:1 if light else 2]):
        if ch not in a.abl and not (light and a.lr & 2): dl += dma_list(a, m, PV_L16, S_T0)
    nd1 = a.ndl if light else a.nd1
    a(f's_setprio {a.fprio}')
    flag_wait(a, L + '_fs', PV_FLGR, 0, 32, S_T1, sl=a.fsl)
    pf.stamp(a, 'flag')
    a(f's_setprio {a.dprio}')
    for x in dl[:nd1]: a(x)
    def xdma(lo, hi, tag):
        if lo == hi: return
        sc_cond(a.sc0, L + tag)
        for k in range(lo, hi):
            if k == lo or k == 4:
                a(f's_add_u32 m0, {s(S_XB)}, {4096*(k>>2)}')
                a(f's_add_u32 {s(S_T0)}, {s(S_XG)}, {4096*(k>>2)}')
            a(f'buffer_load_dwordx4 {v(PV_L16)}, {s(SRD_WS,4)}, {s(S_T0)} offen offset:{1024*(k&3)} sc1 lds')
        if hi == 8: a(f's_add_u32 {s(S_XG)}, {s(S_XG)}, 32768')
        a.label(L + tag)
    if sc and a.xpos: xdma(0, a.nx1, '_x1')
    if light and a.ofd:
        if sc:
            a(f's_sub_u32 {s(S_T0)}, {s(S_S)}, {a.sc0}')
            a(f's_cmp_le_u32 {s(S_T0)}, {NU}')
            a(f's_cbranch_scc1 {L}_nofd')
        a(f's_sleep {a.ofd}')
        a.label(L + '_nofd')
    if 't' not in a.abl:
        a(f's_cmp_eq_u32 {s(S_T3)}, 0')
        a(f's_cbranch_scc1 {L}_nt')
        if light:
            a(f's_cmp_ge_u32 {s(S_S)}, {max(a.s0 - 3, 0)}')
            a('s_cselect_b32 exec_hi, 0xffff, 0')
        else: a('s_mov_b32 exec_hi, 0xffff')
        a(f'buffer_load_dword {v(PV_RDY)}, {v(PV_PFA)}, {s(SRD_WS,4)}, {s(S_TCH)} offen sc1')
        a('s_mov_b32 exec_hi, -1')
        if a.ctch:
            for n, (st, lab, nl) in enumerate(((a.s1 - 2, nxt, 18), (a.s1 - 2, 'ct_aH', 30)) if light else ((a.last - 2, 'ct_tail', 2), (a.last - 2, L + '_tail', 4))):
                a(f's_cmp_lg_u32 {s(S_S)}, {st}')
                a(f's_cbranch_scc1 {L}_nt')
                vcode_touch(a, lab, nl, 62, PV_L16, 38, PV_RDY)
        a.label(L + '_nt')
    if sc:
        a(f's_cmp_lg_u32 {s(S_W)}, 2')
        a(f's_cbranch_scc1 {L}_nxt')
        sc_cond(a.sc0 - 2, L + '_nxt')
        a(f's_lshl_b32 {s(S_T0)}, {s(S_T0)}, 15')
        a(f's_lshl_b32 {s(S_T1)}, {s(S_I)}, 10')
        a(f's_add_u32 {s(S_T0)}, {s(S_T0)}, {s(S_T1)}')
        a(f's_add_u32 {s(S_T0)}, {s(S_T0)}, {WS_XN2 + a.scb * 65536}')
        a(f'v_lshlrev_b32 v39, 3, {v(PV_L16)}')
        a('s_mov_b64 exec, 0xff')
        a(f'buffer_load_dword {v(PV_RDY)}, v39, {s(SRD_WS,4)}, {s(S_T0)} offen sc1')
        a('s_mov_b64 exec, -1')
        a.label(L + '_nxt')
    if unit: oflush(2)
    if light:
        if unit:
            a(f's_lshr_b32 {s(S_T0)}, {s(S_C)}, 3')
            a(f's_xor_b32 {s(S_T0)}, {s(S_T0)}, {s(S_S)}')
            a(f's_andn2_b32 {s(S_OF)}, 1, {s(S_T0)}')
            a(f's_cmp_ge_u32 {s(S_S)}, {a.s0}')
            a(f's_cselect_b32 {s(S_OF)}, {s(S_OF)}, 0')
            a(f's_cbranch_scc1 {L}_nx2')
        a(f's_cmp_eq_u32 {s(S_W)}, 3')
        a(f's_cbranch_scc1 {L}_nx2')
        if 'x' not in a.abl: a(f'buffer_store_dwordx2 v[42:43], v40, {s(SRD_WS,4)}, {s(S_KMX)} offen sc1')
        a.label(L + '_nx2')
        a(f's_add_u32 {s(S_KMX)}, {s(S_KMX)}, 262144')
    else: seg(2)
    if a.pgp:
        a(f's_or_b32 {s(S_T0)}, {s(S_I)}, {s(S_W)}')
        a(f's_cmp_lg_u32 {s(S_T0)}, 0')
        a(f's_cbranch_scc1 {L}_npg')
        a(f's_sub_u32 {s(S_T4)}, {s(S_S)}, 1')
        a(f's_cbranch_scc1 {L}_npg')
        a(f's_sub_u32 {s(S_T0)}, {s(S_T4)}, 1')
        a(f's_and_b32 {s(S_T0)}, {s(S_T0)}, 3')
        a(f's_cmp_ge_u32 {s(S_S)}, 58')
        a(f's_cselect_b32 {s(S_T0)}, 0, {s(S_T0)}')
        a(f's_cmp_lg_u32 {s(S_T0)}, 0')
        a(f's_cbranch_scc1 {L}_npg')
        a(f's_lshl_b32 {s(S_T0)}, {s(S_X)}, 7')
        a(f's_add_u32 {s(S_T0)}, {s(S_T0)}, {F.CS_TAB}')
        a(f'v_mov_b32 {v(PV_T)}, {s(S_T4)}')
        a('s_mov_b64 exec, 1')
        a(f'buffer_store_dword {v(PV_T)}, off, {s(SRD_WS,4)}, {s(S_T0)} sc1')
        a('s_mov_b64 exec, -1')
        a.label(L + '_npg')
    if a.rdp: a(f'buffer_load_dword {v(PV_RDY)}, off, {s(SRD_WS,4)}, {s(S_RDY)} sc1')
    pf.stamp(a, 'b2rdy')
    a('s_barrier')
    pf.stamp(a, 'b2')
    if a.dtim:
        a(f's_or_b32 {s(S_T0)}, {s(S_ID)}, {s(S_W)}')
        a(f's_and_b32 {s(S_T1)}, {s(S_S)}, 7')
        a(f's_or_b32 {s(S_T0)}, {s(S_T0)}, {s(S_T1)}')
        a(f's_cmp_lg_u32 {s(S_T0)}, 0')
        a(f's_cbranch_scc1 {L}_ndt')
        a('s_memrealtime s[96:97]')
        a(f's_lshr_b32 {s(S_T0)}, {s(S_S)}, 1')
        a('s_waitcnt lgkmcnt(0)')
        a(f'v_mov_b32 {v(PV_T)}, s96')
        a('s_mov_b64 exec, 1')
        a(f'buffer_store_dword {v(PV_T)}, off, {s(F.SRD_DBG,4)}, {s(S_T0)} offset:24')
        a('s_mov_b64 exec, -1')
        a.label(L + '_ndt')
    if not a.rdp: a(f'buffer_load_dword {v(PV_RDY)}, off, {s(SRD_WS,4)}, {s(S_RDY)} sc1')
    if sc:
        a(f's_cmp_eq_u32 {s(S_W)}, 3')
        a(f's_cbranch_scc1 {L}_nsr')
        sc_cond(a.sc0 + 1, L + '_nsr')
        a(f"""
        v_bfe_u32 v56, {v(PV_L16)}, 4, 4
        v_mul_u32_u24 v56, 144, v56
        v_lshrrev_b32 v57, 8, {v(PV_L16)}
        v_lshl_add_u32 v56, v57, 5, v56
        v_and_b32 v57, 1, v57
        s_mul_i32 {s(S_T0)}, {s(S_W)}, 2304
        s_add_u32 {s(S_T0)}, {s(S_T0)}, {LDS_SCP}
        v_add_u32 v56, {s(S_T0)}, v56
        v_sub_u32 {v(PV_T)}, 1, v57
        v_lshl_add_u32 {v(PV_T)}, {v(PV_T)}, 4, v56
        v_lshl_add_u32 v56, v57, 4, v56
        """)
        for h in range(4):
            a(f'ds_read_b128 {v(16+8*h,4)}, v56 offset:{6912*h}')
            a(f'ds_read_b128 {v(20+8*h,4)}, {v(PV_T)} offset:{6912*h}')
        a('s_waitcnt lgkmcnt(4)')
        for e in range(8): a(f'v_add_f32 {v(16+e)}, {v(16+e)}, {v(24+e)}')
        a('s_waitcnt lgkmcnt(0)')
        for e in range(8): a(f'v_add_f32 {v(32+e)}, {v(32+e)}, {v(40+e)}')
        for e in range(8): a(f'v_add_f32 {v(16+e)}, {v(16+e)}, {v(32+e)}')
        for d in range(4): a(f'v_cvt_pk_bf16_f32 {v(44+d)}, {v(16+2*d)}, {v(17+2*d)}')
        a(f'buffer_store_dwordx4 v[44:47], {v(PV_L16)}, {s(SRD_WS,4)}, {s(S_SCO)} offen{loc}')
        a(f's_add_u32 {s(S_SCO)}, {s(S_SCO)}, 131072')
        a(f's_branch {L}_nsr2')
        a.label(L + '_nsr')
        a(f's_sleep {a.scd}')
        a.label(L + '_nsr2')
        if a.xpos: xdma(a.nx1, 8, '_x2')
        a(f's_sleep {max(a.cdl - a.scd - a.scx, 0)}')
    if dl[nd1:]:
        if a.d2: a(f's_sleep {a.d2}')
        for x in dl[nd1:]: a(x)
    a(f's_add_u32 {s(S_S)}, {s(S_S)}, 1')
    a(f'v_mov_b32 {v(PV_FV)}, {s(S_S)}')
    a(f's_add_u32 {s(S_KG)}, {s(S_KG)}, 262144')
    a(f's_add_u32 {s(S_TCH)}, {s(S_TCH)}, 262144')
    if not light: a(f's_mov_b32 {s(S_SP0)}, 0')
    a('s_setprio 3')
    cd = 0 if sc else a.cdl if light else a.cdh if a.hk else a.cd
    if cd: a(f's_sleep {cd}')
    pf.stamp(a, 'poll')
    a.label(L + '_pagain')
    for i in range(2): a(f'buffer_load_dwordx4 {v(PV_M+4*i,4)}, {v(PV_L16)}, {s(SRD_WS,4)}, {s(S_PLD)} offen offset:{1024*i} sc1')
    D = 32
    a('s_waitcnt vmcnt(1)')
    a(f'v_mfma_f32_16x16x32_bf16 {v(D,4)}, {v(PV_SEL,4)}, {v(PV_M,4)}, 0')
    a('s_waitcnt vmcnt(0)')
    pf.stamp(a, 'p1')
    a(f'v_mfma_f32_16x16x32_bf16 {v(D,4)}, v[48:51], {v(PV_M+4,4)}, {v(D,4)}')
    for x in chk([PV_M, PV_M + 4], PV_T, Lrp): a(x)
    a.label(L + '_pgo')
    if light: a(f's_cmp_lt_u32 {s(S_S)}, {a.s1}')
    a(f's_nop {3 if light else 4}')
    for e in range(4): a(f'v_add_f32_dpp {v(D+4+e)}, {v(D+e)}, {v(D+e)} row_ror:8 row_mask:0xf bank_mask:0xf')
    a(f'v_cvt_pk_bf16_f32 v52, {v(D+4)}, {v(D+5)}')
    a(f'v_cvt_pk_bf16_f32 v53, {v(D+6)}, {v(D+7)}')
    a('s_nop 0')
    a('v_permlane16_swap_b32 v52, v54')
    a('v_permlane16_swap_b32 v53, v55')
    a(mex)
    a('v_min_u32 v52, -2, v52')
    a(f'buffer_store_dwordx4 v[52:55], {v(PV_MST)}, {s(SRD_WS,4)}, {s(S_MST)} offen{loc}')
    a('s_mov_b64 exec, -1')
    a(f'ds_write_b32 {v(PV_FLGW)}, {v(PV_FV)} offset:16')
    pf.stamp(a, 'mpub')
    if pf.on:
        a(f's_sub_u32 {s(S_S)}, {s(S_S)}, 1')
        pf.flush(a, 56, 'P')
        a(f's_add_u32 {s(S_S)}, {s(S_S)}, 1')
        if light: a(f's_cmp_lt_u32 {s(S_S)}, {a.s1}')
    if light:
        a(f's_cbranch_scc1 {L}')
        a(f's_branch {nxt}')
    else: a(f's_branch {L}')
    for b in range(4):
        spin_block(a, f'{Lrm}_{b}', mld[b:], mreg(b), PV_T, f'{Lrm}_{b}ok', f'{Lrm}_{b}ok')
    a.label(Lrp)
    if a.rsleep: a(f's_sleep {a.rsleep}')
    a(f's_sub_u32 {s(S_TO)}, {s(S_TO)}, 1')
    a(f's_cbranch_scc0 {L}_pagain')
    a(f's_mov_b32 {s(S_TO)}, 0')
    a(f's_branch {L}_pgo')
    if not light:
        a.label(L + '_tail')
        p_segreduce(a)
        a('s_barrier')
        p_segreduce(a)
        a(f's_branch {done}')

AV_L16, AV_PST, AV_MX, AV_T = 0, 1, 2, 3
AV_ONE = 4
AV_HALF = 8
AV_IDX = 166
AV_FLGR = 167
AV_VMW, AV_TRV, AV_TRM = 180, 181, 182
S_QM = 56
AV_S = 12
AV_O = 24
AV_VWM = 40
AV_Y, AV_X = 48, 64
AV_VWS = 80
AV_KS, AV_TB = 96, 128
AV_NEG, AV_R2W, AV_R2R, AV_SGW, AV_LB, AV_FLGW, AV_FV = 176, 160, 161, 162, 163, 164, 165
AV_PK = 168
AV_SEL = 184
AV_FT = 188
AV_WO = 192
def wo(u, ct): return AV_WO + (ct * 4 + u) * 4
def xk(u): return AV_Y + 4 * u

def tr_addr(a, vd, vl, rowbytes, T, hh, t1, t2):
    sh = rowbytes.bit_length() - 1
    a(f'''
    v_lshrrev_b32 {v(t1)}, 4, {v(vl)}
    v_and_b32 {v(t2)}, 1, {v(t1)}
    v_xor_b32 {v(t2)}, {hh}, {v(t2)}
    v_lshlrev_b32 {v(t2)}, 2, {v(t2)}
    v_lshl_add_u32 {v(t2)}, {v(t1)}, 3, {v(t2)}
    v_bfe_u32 {v(t1)}, {v(vl)}, 2, 2
    v_add_u32 {v(t2)}, {v(t2)}, {v(t1)}
    v_lshlrev_b32 {v(t2)}, {sh}, {v(t2)}
    v_and_b32 {v(t1)}, 3, {v(vl)}
    v_lshl_add_u32 {v(t2)}, {v(t1)}, 4, {v(t2)}
    v_and_b32 {v(t1)}, 1, {v(t1)}
    v_xor_b32 {v(t1)}, {T}, {v(t1)}
    v_lshl_add_u32 {v(vd)}, {v(t1)}, 3, {v(t2)}
    ''')

def vw_list(AV_TB):
    m = []
    for u in range(4):
        for kt in range(2):
            for ct in range(4):
                d = AV_Y + (kt * 4 + ct) * 4
                m.append(f'v_mfma_f32_16x16x32_bf16 {v(d,4)}, {v(AV_TB+(kt*4+u)*4,4)}, {v(wo(u,ct),4)}, {"0" if u==0 else v(d,4)}')
    return m
def vw_pack():
    o = []
    for ct in range(4):
        for kt in range(2):
            d = AV_Y + (kt * 4 + ct) * 4
            o.append(f'v_cvt_pk_bf16_f32 {v(AV_VWS+4*ct+2*kt)}, {v(d)}, {v(d+1)}')
            o.append(f'v_cvt_pk_bf16_f32 {v(AV_VWS+4*ct+2*kt+1)}, {v(d+2)}, {v(d+3)}')
    return o

def a_prologue(a):
    a(f'''
    v_and_b32 v20, 63, v0
    v_lshlrev_b32 {v(AV_L16)}, 4, v20
    s_lshl_b32 {s(S_T0)}, {s(S_H)}, 18
    s_lshl_b32 {s(S_T1)}, {s(S_C)}, 7
    s_add_u32 {s(S_T0)}, {s(S_T0)}, {s(S_T1)}
    s_lshl_b32 {s(S_T2)}, {s(S_T4)}, 13
    s_add_u32 {s(S_T2)}, {s(S_T2)}, 131072
    s_load_dwordx2 {s(SRD_T,2)}, s[0:1], {KA_WO}
    s_mov_b32 {s(SRD_T+2)}, {8*MB}
    s_mov_b32 {s(SRD_T+3)}, {SRD3}
    v_lshrrev_b32 v21, 3, v20
    v_and_b32 v22, 7, v20
    v_lshlrev_b32 v21, 11, v21
    v_lshl_add_u32 v21, v22, 4, v21
    ''')
    for T in range(2):
        for hh in range(2):
            tr_addr(a, 24 + T * 2 + hh, 20, 128, T, hh, 28, 29)
            a(f'v_add_u32 {v(24+T*2+hh)}, {s(S_T2)}, {v(24+T*2+hh)}')
    a('s_waitcnt lgkmcnt(0)')
    for n in range(8):
        a(f's_add_u32 m0, {s(S_T2)}, {n*1024}')
        a('s_nop 0')
        a(f'buffer_load_dwordx4 v21, {s(SRD_T,4)}, {s(S_T0)} offen{a.wnt[3]} lds')
        a(f's_add_u32 {s(S_T0)}, {s(S_T0)}, {8*2048}')
    for n in range(8):
        a(f'buffer_load_dwordx4 {v(AV_KS+4*n,4)}, v21, {s(SRD_T,4)}, {s(S_T0)} offen{a.wnt[3]}')
        a(f's_add_u32 {s(S_T0)}, {s(S_T0)}, {8*2048}')

def a_prologue2(a):
    a(f's_lshl_b32 {s(S_T2)}, {s(S_T4)}, 13')
    a(f's_add_u32 {s(S_T2)}, {s(S_T2)}, 131072')
    a(f'v_add_u32 v30, {s(S_T2)}, {v(AV_L16)}')
    for half in range(2):
        a(f's_waitcnt vmcnt({8 - 8*half})')
        if half:
            for n in range(8): a(f'ds_write_b128 v30, {v(AV_KS+4*n,4)} offset:{n*1024}')
            a('s_waitcnt lgkmcnt(0)')
        for uu in range(2):
            for p in range(2):
                for T in range(2):
                    for hh in range(2):
                        a(f'ds_read_b64_tr_b16 {v(wo(2*half+uu, 2*p+T)+2*hh,2)}, {v(24+T*2+hh)} offset:{uu*4096+p*64}')
            a('s_waitcnt lgkmcnt(0)')
    a(f'''
    v_lshrrev_b32 v21, 4, v20
    v_and_b32 v22, 2, v20
    v_cmp_eq_u32 {s(S_QM,2)}, 2, v22
    v_and_b32 v23, 15, v20
    v_lshlrev_b32 v21, 2, v21
    v_mov_b32 v8, 0x44444444
    v_mov_b32 v9, 0xeeeeeeee
    v_cndmask_b32 {v(AV_IDX)}, v8, v9, {s(S_QM,2)}
    v_mov_b32 v8, 0x3f803f80
    v_mov_b32 v9, 0
    v_mov_b32 v10, 0
    v_mov_b32 v11, 0
    v_mov_b32 v4, 0x3f803f80
    v_mov_b32 v5, 0x3f803f80
    v_mov_b32 v6, 0x3f803f80
    v_mov_b32 v7, 0x3f803f80
    s_mov_b32 {s(S_CST)}, 0x3e0293ee
    s_lshl_b32 {s(S_PRG)}, {s(S_I)}, 2
    s_add_u32 {s(S_PRG)}, {s(S_PRG)}, {s(S_T4)}
    s_lshl_b32 {s(S_CS)}, {s(S_X)}, 7
    s_add_u32 {s(S_CS)}, {s(S_CS)}, {F.CS_TAB}
    v_add_u32 {v(AV_LB)}, {s(S_KL)}, {v(AV_L16)}
    s_lshl_b32 {s(S_T0)}, {s(S_T4)}, 2
    s_add_u32 {s(S_T0)}, {s(S_T0)}, {LDS_FLG}
    v_mov_b32 {v(AV_FLGW)}, {s(S_T0)}
    v_mov_b32 {v(AV_FLGR)}, {LDS_FLG}
    ''')
    sel_init(a, AV_SEL, 20, 24, 25)
    a(f'''
    v_lshrrev_b32 v24, 4, v20                 ; g
    v_bfe_u32 v25, v20, 2, 2
    v_and_b32 v26, 1, v20
    v_lshl_add_u32 v26, v25, 1, v26           ; t
    v_lshlrev_b32 v26, 4, v26
    v_lshl_add_u32 v26, v24, 8, v26
    v_bfe_u32 v27, v20, 1, 1
    v_lshl_add_u32 v26, v27, 2, v26
    s_add_u32 {s(S_T0)}, {s(S_KL)}, 20480
    v_add_u32 {v(AV_VMW)}, {s(S_T0)}, v26
    v_and_b32 v26, 3, v20                     ; cc
    v_lshl_add_u32 v27, v24, 2, v25
    v_lshl_add_u32 v27, v26, 4, v27
    v_lshlrev_b32 v27, 4, v27
    v_add_u32 {v(AV_TRV)}, {s(S_KL)}, v27
    v_and_b32 v25, 1, v25
    v_lshl_add_u32 v25, v24, 1, v25
    v_lshl_add_u32 v25, v26, 3, v25
    v_lshlrev_b32 v25, 4, v25
    v_add_u32 {v(AV_TRM)}, {s(S_T0)}, v25
    s_bfe_u32 {s(S_T0)}, {s(S_C)}, 0x20001
    s_lshr_b32 {s(S_DW)}, {s(S_C)}, 3
    s_cmp_eq_u32 {s(S_T0)}, {s(S_T4)}
    s_cselect_b32 {s(S_DW)}, {2 if 'u' in a.abl else s(S_DW)}, 2
    s_and_b32 {s(S_QT)}, {s(S_C)}, 1
    s_lshl_b32 {s(S_QT)}, {s(S_QT)}, 17
    s_mov_b32 {s(S_U2)}, 0
    ''')
    for i in range(4):
        a(f'v_add_u32 v24, {i}, v21')
        a(f'v_cmp_gt_u32 {s(S_M0+2*i,2)}, v24, v23')

def a_static(a):
    a(f"""
    v_and_b32 v20, 63, v0
    v_lshrrev_b32 v21, 4, v20                 ; g
    v_bfe_u32 v22, v20, 1, 1
    v_xor_b32 v22, 1, v22                     ; p = !(n&2)
    v_lshl_add_u32 v23, v22, 2, v21           ; uu
    v_bfe_u32 v22, v20, 2, 2
    v_and_b32 v24, 1, v20
    v_lshl_add_u32 v22, v22, 1, v24           ; t
    v_lshl_add_u32 v23, v23, 3, v22
    v_and_b32 v22, 7, v20
    v_lshlrev_b32 v23, 4, v23
    s_lshl_b32 {s(S_T0)}, {s(S_T4)}, 10
    s_add_u32 {s(S_T0)}, {s(S_T0)}, {LDS_RED2}
    v_add_u32 {v(AV_R2W)}, {s(S_T0)}, v23
    v_and_b32 v24, 15, v20
    v_lshlrev_b32 v24, 4, v24                 ; n*16
    v_lshl_add_u32 v23, v21, 10, v24
    s_lshl_b32 {s(S_T0)}, {s(S_T4)}, 8
    s_add_u32 {s(S_T0)}, {s(S_T0)}, {LDS_RED2}
    v_add_u32 {v(AV_R2R)}, {s(S_T0)}, v23
    v_lshl_add_u32 v23, v21, 9, v24
    s_lshl_b32 {s(S_T0)}, {s(S_T4)}, 12
    s_add_u32 {s(S_T0)}, {s(S_T0)}, {LDS_SEG}
    v_add_u32 {v(AV_SGW)}, {s(S_T0)}, v23
    v_bfe_u32 v23, v20, 3, 1
    v_lshlrev_b32 v23, 10, v23
    v_lshl_add_u32 v23, v22, 4, v23
    v_mov_b32 {v(AV_PST)}, v23
    s_lshl_b32 {s(S_PO)}, {s(S_C)}, 14
    s_lshl_b32 {s(S_T0)}, {s(S_T4)}, 11
    s_add_u32 {s(S_PO)}, {s(S_PO)}, {s(S_T0)}
    s_lshl_b32 {s(S_T0)}, {s(S_G)}, 7
    s_add_u32 {s(S_PO)}, {s(S_PO)}, {s(S_T0)}
    s_add_u32 {s(S_PO)}, {s(S_PO)}, {WS_PART}
    """)
    for i in range(4): a(f'v_mov_b32 {v(AV_NEG+i)}, -1')

def exp_seq(r):
    seq = []
    n = len(r)
    seq.append(f'v_max3_f32 {v(AV_MX)}, {v(r[0])}, {v(r[1])}, {v(r[2])}')
    seq.append(f'v_max3_f32 {v(AV_T)}, {v(r[3])}, {v(r[4])}, {v(r[5])}')
    rr = r[6:]; k = 0
    while len(rr) >= 2:
        d = (AV_MX, AV_T)[k & 1]; k += 1
        seq.append(f'v_max3_f32 {v(d)}, {v(d)}, {v(rr[0])}, {v(rr[1])}'); rr = rr[2:]
    seq.append(f'v_max_f32 {v(AV_MX)}, {v(AV_MX)}, {v(AV_T)}')
    seq += red_gq(AV_MX, AV_T, 'v_max_f32')
    seq.append(f'v_mul_f32 {v(AV_MX)}, {s(S_CST)}, {v(AV_MX)}')
    fm = [f'v_fma_f32 {v(x)}, {v(x)}, {s(S_CST)}, -{v(AV_MX)}' for x in r]
    ex = [f'v_exp_f32 {v(x)}, {v(x)}' for x in r]
    seq += fm[:2]
    for i in range(n):
        if i + 2 < n: seq.append(fm[i + 2])
        seq.append(ex[i])
    return seq

def packP(S, t1zero=False):
    T0, T1, TM = S, S + 4, S + 8
    o = [f'v_cvt_pk_bf16_f32 {v(T0)}, {v(T0)}, {v(T0+1)}', f'v_cvt_pk_bf16_f32 {v(T0+1)}, {v(T0+2)}, {v(T0+3)}']
    if t1zero: o += [f'v_mov_b32 {v(T0+2)}, 0', f'v_mov_b32 {v(T0+3)}, 0']
    else: o += [f'v_cvt_pk_bf16_f32 {v(T0+2)}, {v(T1)}, {v(T1+1)}', f'v_cvt_pk_bf16_f32 {v(T0+3)}, {v(T1+2)}, {v(T1+3)}']
    o += [f'v_cvt_pk_bf16_f32 {v(TM)}, {v(TM)}, {v(TM+1)}', f'v_mov_b32 {v(TM+2)}, 0',
          f'v_mov_b32 {v(TM+1)}, {v(TM)}', f'v_mov_b32 {v(TM+3)}, 0']
    return o

def pv_seq(S, qt, rc):
    SM = S + 4
    o = [f'v_mfma_f32_16x16x32_bf16 {v(SM,4)}, {v(AV_ONE,4)}, {v(S,4)}, 0',
         f'v_mfma_f32_16x16x32_bf16 {v(SM,4)}, {v(AV_HALF,4)}, {v(S+8,4)}, {v(SM,4)}']
    for ct in range(4):
        o.append(f'v_mfma_f32_16x16x32_bf16 {v(AV_O+4*ct,4)}, {v(AV_VWS+4*ct,4)}, {v(S,4)}, 0')
        o.append(f'v_mfma_f32_16x16x32_bf16 {v(AV_O+4*ct,4)}, {v(AV_VWM+2*ct,4)}, {v(S+8,4)}, {v(AV_O+4*ct,4)}')
    o.append(f'v_rcp_f32 {v(rc)}, {v(SM)}')
    o.append('s_nop 0')
    P = AV_PK
    for ct in range(4):
        for i in range(4): o.append(f'v_mul_f32 {v(AV_O+4*ct+i)}, {v(AV_O+4*ct+i)}, {v(rc)}')
        o.append(f'v_cvt_pk_bf16_f32 {v(P+2*ct)}, {v(AV_O+4*ct)}, {v(AV_O+4*ct+1)}')
        o.append(f'v_cvt_pk_bf16_f32 {v(P+2*ct+1)}, {v(AV_O+4*ct+2)}, {v(AV_O+4*ct+3)}')
    for p in range(2): o.append(f'ds_write_b128 {v(AV_SGW)}, {v(P+4*p,4)} offset:{2048*p+256*qt}')
    return o

def a_loop(a, prof, done):
    LH = a.uid('aloopH')
    if a.s1 and a.swp:
        assert a.s1 % 2 == 0 and a.lr == 3 and a.vpos and not a.kpos
        L0, L1 = a.uid('aloopL'), a.uid('aloopM')
        a_body(a, Prof(prof), done, L0, True, None, L1)
        a_body(a, Prof(prof), done, L1, True, LH, L0, 1)
    elif a.s1: a_body(a, Prof(prof), done, a.uid('aloopL'), True, LH)
    a.label('ct_aH')
    a_body(a, Prof(prof), done, LH, False, None)

def a_body(a, pf, done, L, light, nxt, other=None, ph=0):
    Lr = L + '_rq'
    AV_KS, AV_TB = (128, 96) if ph else (96, 128)
    swp = other is not None
    SA = AV_S; SB = AV_X + 4
    if a.al: a.raw(f'.p2align {a.al}')
    for i in range(a.aloa): a('s_nop 0')
    a.label(L)
    pf.stamp(a, 'top')
    ring(a, S_QLD, 0, 18, S_QO)
    a(f's_add_u32 {s(S_QLD2)}, {s(S_QLD)}, 4096')
    ring(a, S_PSTC, 0, PSLOT, S_PO)
    ring(a, S_PRS, 2, PSLOT, S_PO)
    a(f'v_mov_b32 {v(AV_FV)}, {s(S_S)}')
    vw = vw_list(AV_TB)
    kr = [f'ds_read_b128 {v(AV_KS+4*i,4)}, {v(AV_LB)} offset:{1024*i}' for i in range(8)]
    vr = [f'ds_read_b128 {v(AV_TB+4*(kt*4+u),4)}, {v(AV_LB)} offset:{8192+1024*(kt*4+u)}' for u in range(4) for kt in range(2)]
    zo = [f'v_mov_b32 {v(AV_O+i)}, 0' for i in range(16)]
    unit = light and a.s0 < a.s1
    def part2(tag, AV_TB=AV_TB):
        a(f's_cmp_eq_u32 {s(S_U2)}, 0')
        a(f's_cbranch_scc1 {L}_{tag}')
        a(f's_mov_b32 {s(S_U2)}, 0')
        for p in range(4):
            for Tt in range(2):
                t = 2 * p + Tt
                for kt in range(2):
                    a(f'ds_read_b64_tr_b16 {v(AV_TB+4*t+2*kt,2)}, {v(AV_TRV)} offset:{4096*kt + 1024*p + 8*Tt}')
                a(f'ds_read_b64_tr_b16 {v(AV_X+2*t,2)}, {v(AV_TRM)} offset:{512*p + 8*Tt}')
        a(f'v_mov_b32 {v(AV_FT)}, 0xff61b1e6')
        a(f's_cmp_eq_u32 {s(S_QT)}, 0')
        for i in range(4):
            a(f's_cselect_b64 vcc, {s(S_M0+2*i,2)}, 0')
            a(f'v_cndmask_b32 {v(SA+i)}, {v(SA+i)}, {v(AV_FT)}, vcc')
            a(f's_cselect_b64 vcc, -1, {s(S_M0+2*i,2)}')
            a(f'v_cndmask_b32 {v(SA+4+i)}, {v(SA+4+i)}, {v(AV_FT)}, vcc')
        for x in exp_seq(list(range(SA, SA + 10))): a(x)
        pk = packP(SA); pk[6] = f'v_mov_b32 {v(SA+9)}, 0'
        for x in pk: a(x)
        a('s_waitcnt lgkmcnt(0)')
        a('s_nop 0')
        SM = SA + 4
        a(f'v_mfma_f32_16x16x32_bf16 {v(SM,4)}, {v(AV_ONE,4)}, {v(SA,4)}, 0')
        a(f'v_mfma_f32_16x16x32_bf16 {v(SM,4)}, {v(AV_ONE,4)}, {v(SA+8,4)}, {v(SM,4)}')
        oa = lambda t: (AV_O if t < 4 else AV_Y - 16) + 4 * t
        for t in range(8):
            a(f'v_mfma_f32_16x16x32_bf16 {v(oa(t),4)}, {v(AV_TB+4*t,4)}, {v(SA,4)}, 0')
            a(f'v_mfma_f32_16x16x32_bf16 {v(oa(t),4)}, {v(AV_X+2*t,4)}, {v(SA+8,4)}, {v(oa(t),4)}')
        a(f'v_rcp_f32 {v(AV_T)}, {v(SM)}')
        a('s_nop 0')
        for p in range(4):
            o = oa(2 * p)
            for i in range(8): a(f'v_mul_f32 {v(o+i)}, {v(o+i)}, {v(AV_T)}')
            for d in range(4): a(f'v_cvt_pk_bf16_f32 {v(o+d)}, {v(o+2*d)}, {v(o+2*d+1)}')
            a(f'ds_write_b128 {v(AV_L16)}, {v(o,4)} offset:{LDS_SEG + 1024*p}')
        a.label(f'{L}_{tag}')
    if light and a.vpos: a(f's_waitcnt vmcnt({0 if swp else 8 - a.ksp})')
    if unit:
        assert a.lr == 3
        a(f's_and_b32 {s(S_DU)}, {s(S_S)}, 1')
        a(f's_cmp_lt_u32 {s(S_S)}, {a.s0}')
        a(f's_cselect_b32 {s(S_DU)}, 3, {s(S_DU)}')
        a(f's_cmp_lg_u32 {s(S_DU)}, {s(S_DW)}')
        a(f's_cbranch_scc1 {L}_nd0')
        for i in range(8): a(f'ds_write_b128 {v(AV_LB)}, {v(AV_TB+4*i,4)} offset:{1024*i}')
        a.label(L + '_nd0')
    if light:
        if not a.lr & 1:
            for x in vr: a(x)
            for u in range(4): vw[8*u] = f's_waitcnt lgkmcnt({6 - 2*u})\n' + vw[8*u]
        for x in vw: a(x)
        if unit:
            a('s_nop 2')
            for x in vw_pack(): a(x)
            if not a.p2e: part2('p2a')
            for x in zo: a(x)
        else:
            for x in zo: a(x)
            for x in vw_pack(): a(x)
        if not a.lr & 2:
            flag_wait(a, L + '_wkv', AV_FLGW, 16, AV_FT, S_T2, sl=a.kvsl, one=True)
            for x in kr: a(x)
        pf.stamp(a, 'kv', -3)
    else:
        flag_wait(a, L + '_wkv', AV_FLGW, 16, AV_FT, S_T2, sl=a.kvsl, one=True)
        pf.stamp(a, 'kv', -3)
        for x in vr + ([] if a.hk else kr): a(x)
        for u in range(4): vw[8*u] = f's_waitcnt lgkmcnt({(6 if a.hk else 14) - 2*u})\n' + vw[8*u]
        for x in vw[:a.vwp]: a(x)
    vp = light and a.vpos
    a('s_setprio 2')
    if not vp or swp: flag_wait(a, L + '_wm', AV_FLGW, 32, AV_FT, S_T2, sl=a.kvsl, one=True)
    if light and a.scb < 64 and not a.xpos:
        a(f's_sub_u32 {s(S_T0)}, {s(S_S)}, {a.sc0}')
        a(f's_cmp_ge_u32 {s(S_T0)}, {2 * (64 - a.scb)}')
        a(f's_cbranch_scc1 {L}_nxd')
        if vp and not swp: flag_wait(a, L + '_wm2', AV_FLGW, 32, AV_FT, S_T2, sl=a.kvsl, one=True)
        for hf in range(2):
            a(f's_add_u32 m0, {s(S_XB)}, {4096*hf}')
            a(f's_add_u32 {s(S_T0)}, {s(S_XG)}, {4096*hf}')
            for u in range(4): a(f'buffer_load_dwordx4 {v(AV_L16)}, {s(SRD_WS,4)}, {s(S_T0)} offen offset:{1024*u} sc1 lds')
        a(f's_xor_b32 {s(S_XB)}, {s(S_XB)}, {s(S_XBX)}')
        a(f's_add_u32 {s(S_XG)}, {s(S_XG)}, 32768')
        a.label(L + '_nxd')
    pf.stamp(a, 'fm', -3)
    if unit:
        a(f's_cmp_lg_u32 {s(S_DU)}, {s(S_DW)}')
        a(f's_cbranch_scc1 {L}_nd1')
        a(f's_add_u32 m0, {s(S_KL)}, 16384')
        a(f's_add_u32 {s(S_T0)}, {s(S_KG)}, {s(S_QT)}')
        a(f's_add_u32 {s(S_T0)}, {s(S_T0)}, {WS_QS}')
        for u in range(4): a(f'buffer_load_dwordx4 {v(AV_L16)}, {s(SRD_WS,4)}, {s(S_T0)} offen offset:{1024*u} sc1 lds')
        a.label(L + '_nd1')
    if light: a(f's_add_u32 {s(S_KG)}, {s(S_KG)}, 262144')
    if swp:
        for x in reg_list(a, 0, AV_TB, S_T0): a(x)
    if ('v' if light else 'q') not in a.abl and not vp:
        for x in (reg_list(a, 1, AV_TB, S_T0) if light and a.lr & 1 else dma_list(a, 1 if light else 2, AV_L16, S_T0)): a(x)
    if not light: a(f's_add_u32 {s(S_KG)}, {s(S_KG)}, 262144')
    if light: a('s_waitcnt lgkmcnt(0)')
    pf.stamp(a, 'b1rdy', -3)
    a('s_barrier')
    pf.stamp(a, 'b1')
    qr = [f'ds_read_b128 {v(AV_TB+4*i,4)}, {v(AV_LB)} offset:{16384+1024*i}' for i in range(8)]
    if not light:
        for x in vw[a.vwp:]: a(x)
        a('s_nop 2')
        for x in vw_pack(): a(x)
        for x in zo: a(x)
    if a.qkf: a('s_barrier')
    qd = a.qdl if light else a.qd
    if qd: a(f's_sleep {qd}')
    a('s_waitcnt lgkmcnt(0)')
    pf.stamp(a, 'poll')
    qm = [f'buffer_load_dwordx4 {v(AV_Y+4*u,4)}, {v(AV_L16)}, {s(SRD_WS,4)}, {s(S_QLD)} offen offset:{1024*u} sc1' for u in range(4)]
    qm += [f'buffer_load_dwordx4 {v(AV_X+4*u2,4)}, {v(AV_L16)}, {s(SRD_WS,4)}, {s(S_QLD2)} offen offset:{1024*u2} sc1' for u2 in range(2)]
    qreg = [[AV_Y + 4 * u + i for i in (0, 2)] for u in range(4)]
    vreg = [AV_X + i for i in range(0, 8, 2)]
    for x in qm[:4]: a(x)
    if a.vdel: a(f's_sleep {a.vdel}' if a.vdel > 0 else f's_nop {-a.vdel}')
    for x in qm[4:]: a(x)
    def crit_s(check, first=False):
        for u in range(4):
            if check: a(f's_waitcnt vmcnt({5-u})')
            if first and u == 0: pf.stamp(a, 'z0')
            z = v(AV_Y + 4 * u, 4)
            for kt in range(2):
                d = SA + 4 * kt
                a(f'v_mfma_f32_16x16x32_bf16 {v(d,4)}, {v(AV_KS+(kt*4+u)*4,4)}, {z}, {"0" if u==0 else v(d,4)}')
            if check:
                c = chk(qreg[u], AV_T, f'{Lr}_{u}')
                for x in c[:-1]: a(x)
            a(f'v_mfma_f32_16x16x32_bf16 {v(SA+8,4)}, {z}, {z}, {"0" if u==0 else v(SA+8,4)}')
            if check: a(c[-1])
    crit_s(True, True)
    a.label(L + '_sdone')
    pf.stamp(a, 'sdone')
    if light: a('s_nop 1')
    else:
        a(f's_cmp_eq_u32 {s(S_S)}, {a.last}')
        a(f's_cbranch_scc1 {L}_lsk')
    vwm = [f'v_smfmac_f32_16x16x64_bf16 {v(AV_O+4*ct,4)}, {v(AV_X+4*c2,4)}, {v(wo(2*c2,ct),8)}, {v(AV_IDX)}' for c2 in range(2) for ct in (0, 2, 1, 3)]
    vc = chk(vreg, AV_FT, f'{Lr}_v')
    M, T = v(AV_MX), v(AV_T)
    a(f"""
    ds_write_b32 {v(AV_FLGW)}, {v(AV_FV)}
    s_nop 0
    v_max3_f32 {M}, {v(SA)}, {v(SA+1)}, {v(SA+2)}
    v_max3_f32 {T}, {v(SA+3)}, {v(SA+4)}, {v(SA+5)}
    v_max3_f32 {M}, {M}, {v(SA+6)}, {v(SA+7)}
    v_max3_f32 {T}, {T}, {v(SA+8)}, {v(SA+9)}
    v_max_f32 {M}, {M}, {T}
    v_mov_b32 {T}, {M}
    s_nop 1
    v_permlane16_swap_b32 {T}, {M}
    v_max_f32 {M}, {M}, {T}
    v_mov_b32 {T}, {M}
    s_waitcnt vmcnt(0)
    {vc[0]}
    v_permlane32_swap_b32 {T}, {M}
    v_max_f32 {M}, {M}, {T}
    {vc[1]}
    v_mul_f32 {M}, {s(S_CST)}, {M}
    {vc[2]}
    """)
    r = list(range(SA, SA + 10))
    fm = [f'v_fma_f32 {v(x)}, {v(x)}, {s(S_CST)}, -{M}' for x in r]
    ex = [f'v_exp_f32 {v(x)}, {v(x)}' for x in r]
    a(fm[0]); a(fm[1])
    a(vc[3])
    a.label(L + '_vok')
    pf.stamp(a, 'max', 3)
    vwc = []
    for ct in range(4):
        d = AV_O + 4 * ct
        vwc += [f'v_cvt_pk_bf16_f32 {v(AV_VWM+2*ct)}, {v(d)}, {v(d+1)}', f'v_cvt_pk_bf16_f32 {v(AV_VWM+2*ct+1)}, {v(d+2)}, {v(d+3)}']
    SM = SA + 4
    def mid(kin, st):
        a(vwm[0])
        for i in range(10):
            if i + 2 < 10: a(fm[i + 2])
            a(ex[i])
            if i + 1 < 8: a(vwm[i + 1])
            if kin and (a.kpos + a.vpos == 1 or i & 1): a(kin.pop(0))
        if st: pf.stamp(a, 'exp', 3)
        pk = packP(SA)
        for x in pk[:4]: a(x)
        mA = f'v_mfma_f32_16x16x32_bf16 {v(SM,4)}, {v(AV_ONE,4)}, {v(SA,4)}, 0'
        mB = f'v_mfma_f32_16x16x32_bf16 {v(SM,4)}, {v(AV_HALF,4)}, {v(SA+8,4)}, {v(SM,4)}'
        for x in pk[4:6]: a(x)
        a(mA)
        for x in pk[6:]: a(x)
        for n, ct in enumerate((0, 2, 1, 3)):
            a(vwc[2*ct]); a(vwc[2*ct+1])
            if n == 0: a(mB)
            a(f'v_mfma_f32_16x16x32_bf16 {v(AV_O+4*ct,4)}, {v(AV_VWS+4*ct,4)}, {v(SA,4)}, 0')
            if kin: a(kin.pop(0))
        assert not kin
    kp = light and a.lr & 2 and a.kpos and 'k' not in a.abl
    assert not (kp and vp)
    ks = a.ksp if vp and not swp else 0
    if (kp or swp or ks) and unit:
        a(f's_cmp_eq_u32 {s(S_DU)}, {s(S_DW)}')
        a(f's_cbranch_scc1 {L}_midD')
    mid(reg_list(a, 0, AV_KS, S_T0) if kp else reg_list(a, 1, AV_KS if swp else AV_TB, S_T0) + reg_list(a, 0, AV_KS, S_T2)[:ks] if vp else [], True)
    a.label(L + '_midE')
    a(f's_mov_b64 vcc, {s(S_QM,2)}')
    a(f'v_rcp_f32 {T}, {v(SM)}')
    for ct in (0, 2, 1, 3):
        a(f'v_mfma_f32_16x16x32_bf16 {v(AV_O+4*ct,4)}, {v(AV_VWM+2*ct,4)}, {v(SA+8,4)}, {v(AV_O+4*ct,4)}')
    pf.stamp(a, 'pv', 3)
    qp = 'quad_perm:[2,3,2,3] row_mask:0xf bank_mask:0xf'
    a(f'v_mov_b32_dpp {T}, {T} {qp}')
    a('s_nop 4')
    for h in range(2):
        for i in range(4*h, 4*h+4): a(f'v_cndmask_b32_dpp {v(AV_O+i)}, {v(AV_O+8+i)}, {v(AV_O+i)}, vcc {qp}')
    for i in range(8): a(f'v_mul_f32 {v(AV_O+i)}, {v(AV_O+i)}, {T}')
    for d in range(4): a(f'v_cvt_pk_bf16_f32 {v(AV_PK+d)}, {v(AV_O+2*d)}, {v(AV_O+2*d+1)}')
    a(f'ds_write_b128 {v(AV_R2W)}, {v(AV_PK,4)}')
    a('s_waitcnt lgkmcnt(0)')
    pf.stamp(a, 'b2rdy')
    a('s_barrier')
    pf.stamp(a, 'b2')
    a(f'ds_read_b128 {v(AV_PK+4,4)}, {v(AV_R2R)}')
    a('s_waitcnt lgkmcnt(0)')
    a(f'v_mfma_f32_16x16x32_bf16 {v(AV_O,4)}, {v(AV_SEL,4)}, {v(AV_PK+4,4)}, 0')
    a('s_nop 7')
    a(f'v_cvt_pk_bf16_f32 {v(AV_PK)}, {v(AV_O)}, {v(AV_O+1)}')
    a(f'v_cvt_pk_bf16_f32 {v(AV_PK+1)}, {v(AV_O+2)}, {v(AV_O+3)}')
    a('s_nop 0')
    a(f'v_permlane16_swap_b32 {v(AV_PK)}, {v(AV_PK+2)}')
    a(f'v_permlane16_swap_b32 {v(AV_PK+1)}, {v(AV_PK+3)}')
    a('s_mov_b64 exec, 0xffff')
    a(f'v_min_u32 {v(AV_PK)}, -2, {v(AV_PK)}')
    a(f'buffer_store_dwordx4 {v(AV_PK,4)}, {v(AV_PST)}, {s(SRD_WS,4)}, {s(S_PSTC)} offen sc1')
    a('s_setprio 0')
    pf.stamp(a, 'ppub')
    a(f'buffer_store_dwordx4 {v(AV_NEG,4)}, {v(AV_PST)}, {s(SRD_WS,4)}, {s(S_PRS)} offen sc1')
    a('s_mov_b64 exec, -1')
    l = a.uid('pg')
    if a.pgp: a(f's_branch {l}')
    a(f's_cmp_lg_u32 {s(S_PRG)}, 0')
    a(f's_cbranch_scc1 {l}')
    a(f's_sub_u32 {s(S_T4)}, {s(S_S)}, 1')
    a(f's_cbranch_scc1 {l}')
    a(f's_sub_u32 {s(S_T0)}, {s(S_T4)}, 1')
    a(f's_and_b32 {s(S_T0)}, {s(S_T0)}, 3')
    a(f's_cmp_ge_u32 {s(S_S)}, 58')
    a(f's_cselect_b32 {s(S_T0)}, 0, {s(S_T0)}')
    a(f's_cmp_lg_u32 {s(S_T0)}, 0')
    a(f's_cbranch_scc1 {l}')
    a(f'v_mov_b32 {v(AV_T)}, {s(S_T4)}')
    a('s_mov_b64 exec, 1')
    a(f'buffer_store_dword {v(AV_T)}, off, {s(SRD_WS,4)}, {s(S_CS)} sc1')
    a('s_mov_b64 exec, -1')
    a.label(l)
    if unit:
        a(f's_cmp_lg_u32 {s(S_DU)}, {s(S_DW)}')
        a(f's_cbranch_scc1 {L}_nd2')
        for u in range(4): a(f'ds_read_b128 {v(AV_O+4*u,4)}, {v(AV_LB)} offset:{16384+1024*u}')
        for c2 in range(2):
            for i in range(4): a(f'ds_write_b32 {v(AV_VMW)}, {v(AV_X+4*c2+i)} offset:{1024*c2 + 128*(i>>1) + 8*(i&1)}')
        a(f's_mov_b32 {s(S_U2)}, 1')
        for u in range(4):
            a(f's_waitcnt lgkmcnt({8+3-u})')
            q = v(AV_O + 4 * u, 4)
            for kt in range(2): a(f'v_mfma_f32_16x16x32_bf16 {v(SA+4*kt,4)}, {v(AV_KS+(kt*4+u)*4,4)}, {q}, {"0" if u==0 else v(SA+4*kt,4)}')
            a(f'v_mfma_f32_16x16x32_bf16 {v(SA+8,4)}, {v(xk(u),4)}, {q}, {"0" if u==0 else v(SA+8,4)}')
        a('s_waitcnt lgkmcnt(0)')
        a('s_nop 3')
        if a.p2e:
            assert not (a.kpos or swp or ks)
            a('s_nop 3')
            part2('p2e', AV_KS)
            a('s_nop 3')
        if a.kpos or swp:
            for x in reg_list(a, 1 if swp else 0, AV_KS, S_T0): a(x)
        if ks:
            for x in reg_list(a, 0, AV_KS, S_T2)[:ks]: a(x)
        a.label(L + '_nd2')
    if light:
        if a.lr & 2 and 'k' not in a.abl and not a.kpos and not swp:
            if a.kdl: a(f's_sleep {a.kdl}')
            assert ks in (0, 4)
            for x in reg_list(a, 0, AV_KS, S_T2)[ks:]: a(x)
        pf.stamp(a, 'bg')
        pf.flush(a, AV_MX, 'A')
        a(f's_add_u32 {s(S_S)}, {s(S_S)}, 1')
        if swp and not ph: a(f's_branch {other}')
        if swp: AV_KS, AV_TB = AV_TB, AV_KS
        a(f's_cmp_lt_u32 {s(S_S)}, {a.s1}')
        a(f's_cbranch_scc1 {other or L}')
        a('s_waitcnt vmcnt(0)')
        for i in range(8):
            if a.lr & 1: a(f'ds_write_b128 {v(AV_LB)}, {v(AV_TB+4*i,4)} offset:{8192+1024*i}')
        if unit and not a.p2e:
            a('s_waitcnt lgkmcnt(0)')
            part2('p2b', AV_TB)
        for i in range(8):
            if a.lr & 2 and not a.hk: a(f'ds_write_b128 {v(AV_LB)}, {v(AV_KS+4*i,4)} offset:{1024*i}')
        a('s_waitcnt lgkmcnt(0)')
        a(f's_branch {nxt or L}')
        if swp: AV_KS, AV_TB = AV_TB, AV_KS
    else:
        a.label(L + '_lskb')
        a(f'v_mov_b32 {v(AV_X)}, 0xff61b1e6')
        def s_mf(qt, S):
            m = []
            for u in range(4):
                q = v(AV_TB + (qt * 4 + u) * 4, 4)
                for kt in range(qt + 1):
                    d = S + 4 * kt
                    m.append(f'v_mfma_f32_16x16x32_bf16 {v(d,4)}, {v(AV_KS+(kt*4+u)*4,4)}, {q}, {"0" if u==0 else v(d,4)}')
                m.append(f'v_mfma_f32_16x16x32_bf16 {v(S+8,4)}, {v(xk(u),4)}, {q}, {"0" if u==0 else v(S+8,4)}')
            return m
        bg = qr + ['s_waitcnt lgkmcnt(4)'] + s_mf(0, SA) + ['s_waitcnt lgkmcnt(0)'] + s_mf(1, SB)
        seq = [f'v_cndmask_b32 {v(SA+i)}, {v(SA+i)}, {v(AV_X)}, {s(S_M0+2*i,2)}' for i in range(4)]
        seq += exp_seq([SA + i for i in range(4)] + [SA + 8, SA + 9]) + packP(SA, True)
        if a.hk: seq = merge_fill(seq, reg_list(a, 0, AV_KS, S_T0), every=a.hk, start=3)
        bg += seq + ['s_nop 1']
        pv0 = pv_seq(SA, 0, AV_X + 2)
        seq = [f'v_cndmask_b32 {v(SB+4+i)}, {v(SB+4+i)}, {v(AV_X)}, {s(S_M0+2*i,2)}' for i in range(4)]
        seq += exp_seq(list(range(SB, SB + 10))) + packP(SB)
        seq = merge_fill(seq, pv0[:10], every=2, start=0)
        bg += seq + pv0[10:] + pv_seq(SB, 1, AV_T)
        if 'b' in a.abl: bg = []
        for x in bg: a(x)
        a(f'v_xor_b32 {v(AV_SGW)}, 0x4000, {v(AV_SGW)}')
        pf.stamp(a, 'bg')
        pf.flush(a, AV_MX, 'A')
        a(f's_add_u32 {s(S_S)}, {s(S_S)}, 1')
        a(f's_cmp_le_u32 {s(S_S)}, {a.last}')
        a(f's_cbranch_scc1 {L}')
        a('s_waitcnt lgkmcnt(0)')
        a('s_barrier')
        a('s_waitcnt vmcnt(0)')
        a(f's_branch {done}')
    if (kp or swp or ks) and unit:
        a.label(L + '_midD')
        mid(reg_list(a, 1, AV_TB, S_T0) if ks else [], False)
        a(f's_branch {L}_midE')
    for i in range(4):
        spin_block(a, f'{Lr}_{i}', qm[i:], qreg[i], AV_T, L + '_again', L + '_nochk')
    a.label(L + '_again')
    crit_s(True)
    a(f's_branch {L}_sdone')
    def vretry(lab, ok):
        a.label(lab)
        a(f's_sub_u32 {s(S_TO)}, {s(S_TO)}, 1')
        a(f's_cbranch_scc1 {lab}g')
        for x in qm[4:]: a(x)
        a('s_waitcnt vmcnt(0)')
        for x in chk(vreg, AV_FT, lab): a(x)
        a(f's_branch {ok}')
        a.label(lab + 'g')
        a(f's_mov_b32 {s(S_TO)}, 0')
        a(f's_branch {ok}')
    vretry(f'{Lr}_v', L + '_vok')
    a.label(L + '_nochk')
    crit_s(False)
    a('s_nop 1')
    a(f's_branch {L}_sdone')
    if light: return
    vretry(f'{Lr}_v2', L + '_lsk3')
    a.label('ct_tail')
    a.label(f'{L}_lsk')
    a(f's_cmp_lg_u32 {s(S_PRG)}, 0')
    a(f's_cbranch_scc1 {L}_lsk2')
    a(f'v_mov_b32 {v(AV_T)}, {a.last - 1}')
    a('s_mov_b64 exec, 1')
    a(f'buffer_store_dword {v(AV_T)}, off, {s(SRD_WS,4)}, {s(S_CS)} sc1')
    a('s_mov_b64 exec, -1')
    a.label(f'{L}_lsk2')
    a('s_waitcnt vmcnt(0)')
    for x in chk(vreg, AV_FT, f'{Lr}_v2'): a(x)
    a.label(f'{L}_lsk3')
    for x in vwm: a(x)
    a('s_nop 7')
    a('s_nop 1')
    for x in vwc: a(x)
    a('s_waitcnt lgkmcnt(0)')
    a(f's_branch {L}_lskb')

def emit_chain(a, done, prof=False):
    if prof: a('s_memrealtime s[94:95]')
    a(f"""
    s_lshl_b32 {s(S_ID)}, {s(S_X)}, 5
    s_add_u32 {s(S_ID)}, {s(S_ID)}, {s(S_I)}
    s_lshr_b32 {s(S_H)}, {s(S_ID)}, 2
    s_lshr_b32 {s(S_G)}, {s(S_ID)}, 4
    s_and_b32 {s(S_C)}, {s(S_I)}, 15
    s_and_b32 {s(S_J)}, {s(S_I)}, 3
    s_mov_b32 {s(S_S)}, 0
    s_mov_b32 {s(S_TO)}, {TIMEOUT}
    s_mov_b32 s100, {TIMEOUT}
    s_getreg_b32 {s(S_X1)}, hwreg(HW_REG_XCC_ID)
    s_and_b32 {s(S_X1)}, {s(S_X1)}, 15
    s_mul_i32 {s(S_T2)}, {s(S_X1)}, {s(S_X1)}
    s_lshl_b32 {s(S_T2)}, {s(S_T2)}, 18
    s_lshl_b32 {s(S_X1)}, {s(S_X1)}, 8
    s_add_u32 {s(S_X1)}, {s(S_X1)}, {s(S_T2)}
    s_add_u32 {s(S_X1)}, {s(S_X1)}, 1
    s_lshl_b32 {s(S_CQG)}, {s(S_G)}, 4
    s_add_u32 {s(S_CQG)}, {s(S_CQG)}, {CQ_TAB}
    s_and_b32 {s(S_T4)}, {s(S_W)}, 3
    s_mul_i32 {s(S_KL)}, {s(S_T4)}, 24576
    s_add_u32 {s(S_KL)}, {s(S_KL)}, {LDS_BULK}
    s_lshl_b32 {s(S_KG)}, {s(S_G)}, 2
    s_add_u32 {s(S_KG)}, {s(S_KG)}, {s(S_T4)}
    s_lshl_b32 {s(S_KG)}, {s(S_KG)}, 12
    s_add_u32 {s(S_XB)}, {s(S_KL)}, 8192
    s_bfe_u32 {s(S_T0)}, {s(S_C)}, 0x20001
    s_cmp_eq_u32 {s(S_T0)}, {s(S_T4)}
    s_cselect_b32 {s(S_XBX)}, 20480, {s(S_KL)}
    s_xor_b32 {s(S_XBX)}, {s(S_XBX)}, {s(S_XB)}
    s_lshl_b32 {s(S_XG)}, {s(S_T4)}, 13
    s_add_u32 {s(S_XG)}, {s(S_XG)}, {WS_XN2 + a.scb * 65536}
    s_lshl_b32 {s(S_SCO)}, {s(S_T4)}, 24
    s_lshl_b32 {s(S_T0)}, {s(S_ID)}, 10
    s_add_u32 {s(S_SCO)}, {s(S_SCO)}, {s(S_T0)}
    s_add_u32 {s(S_SCO)}, {s(S_SCO)}, {WS_QS + a.scb * 262144}
    s_cmp_ge_u32 {s(S_W)}, 4
    s_cbranch_scc1 ch_a_pro
    s_add_u32 {s(S_KG)}, {s(S_KG)}, 262144
    s_lshl_b32 {s(S_QO)}, {s(S_H)}, 13
    s_add_u32 {s(S_QO)}, {s(S_QO)}, {WS_QKV}
    s_lshl_b32 {s(S_T0)}, {s(S_I)}, 1
    s_and_b32 {s(S_T1)}, {s(S_W)}, 1
    s_add_u32 {s(S_T0)}, {s(S_T0)}, {s(S_T1)}
    s_lshl_b32 {s(S_T0)}, {s(S_T0)}, 1       ; first u
    s_cmp_lt_u32 {s(S_W)}, 2
    s_cselect_b32 {s(S_MEX)}, 0xff, 0
    s_mov_b32 {s(S_MEX+1)}, {s(S_MEX)}
    s_lshr_b32 {s(S_T1)}, {s(S_T0)}, 1
    s_and_b32 {s(S_T2)}, {s(S_T0)}, 1
    s_lshl_b32 {s(S_T3)}, {s(S_X)}, 14
    s_add_u32 {s(S_T3)}, {s(S_T3)}, {WS_MEM}
    s_lshl_b32 {s(S_MO)}, {s(S_W)}, 12
    s_add_u32 {s(S_MO)}, {s(S_MO)}, {s(S_T3)}
    s_lshl_b32 {s(S_MSO)}, {s(S_T1)}, 8
    s_add_u32 {s(S_MSO)}, {s(S_MSO)}, {s(S_T3)}
    s_lshl_b32 {s(S_T3)}, {s(S_T2)}, 5
    s_add_u32 {s(S_MSO)}, {s(S_MSO)}, {s(S_T3)}
    s_lshr_b32 {s(S_PO)}, {s(S_T0)}, 3
    s_lshl_b32 {s(S_PO)}, {s(S_PO)}, 14
    s_and_b32 {s(S_T3)}, {s(S_T0)}, 7
    s_lshl_b32 {s(S_T3)}, {s(S_T3)}, 10
    s_add_u32 {s(S_PO)}, {s(S_PO)}, {s(S_T3)}
    s_add_u32 {s(S_PO)}, {s(S_PO)}, {WS_PART}
    s_lshl_b32 {s(S_SP)}, {s(S_G)}, 22
    s_lshl_b32 {s(S_T3)}, {s(S_C)}, 11
    s_add_u32 {s(S_SP)}, {s(S_SP)}, {s(S_T3)}
    s_lshl_b32 {s(S_T3)}, {s(S_W)}, 9
    s_add_u32 {s(S_SP)}, {s(S_SP)}, {s(S_T3)}
    s_add_u32 {s(S_SP)}, {s(S_SP)}, {WS_SP + a.s1 * 65536}
    s_lshl_b32 {s(S_KMX)}, {s(S_H)}, 13
    s_add_u32 {s(S_KMX)}, {s(S_KMX)}, {WS_KM}
    s_mov_b32 {s(S_QST)}, {s(S_QO)}
    s_mov_b32 {s(S_SP0)}, {s(S_SP)}
    s_mov_b32 {s(S_OK)}, 2
    s_mov_b32 {s(S_RTG)}, 0
    s_mov_b32 {s(S_OF)}, 0
    s_bfe_u32 {s(S_T0)}, {s(S_C)}, 0x20001
    s_lshl_b32 {s(S_OB)}, {s(S_G)}, 2
    s_add_u32 {s(S_OB)}, {s(S_OB)}, {s(S_T0)}
    s_lshl_b32 {s(S_OB)}, {s(S_OB)}, 2
    s_add_u32 {s(S_OB)}, {s(S_OB)}, {s(S_W)}
    s_lshl_b32 {s(S_OB)}, {s(S_OB)}, 10
    s_and_b32 {s(S_T0)}, {s(S_C)}, 1
    s_lshl_b32 {s(S_T0)}, {s(S_T0)}, 17
    s_add_u32 {s(S_OB)}, {s(S_OB)}, {s(S_T0)}
    s_add_u32 {s(S_OB)}, {s(S_OB)}, {WS_OO - 262144}
    s_mov_b32 {s(S_TCH)}, {3 * 262144}
    """)
    p_prologue(a)
    for i in range(4): a(f'v_mov_b32 {v(52+i)}, -1')
    for sg in range(64 - NTAIL, 64):
        a(f's_add_u32 {s(S_T0)}, {s(S_SP)}, {(sg - a.s1)*65536}')
        a(f'buffer_store_dwordx4 v[52:55], {v(PV_SPS)}, {s(SRD_WS,4)}, {s(S_T0)} offen sc1')
    if prof: a('s_memrealtime s[96:97]')
    a(f's_lshl_b32 {s(S_X1)}, {s(S_X1)}, 5')
    a('s_barrier')
    a(f'ds_write_b32 {v(PV_FLGW)}, {v(PV_NEG)}')
    a(f'ds_write_b32 {v(PV_FLGW)}, {v(PV_NEG)} offset:16')
    a(f'ds_write_b32 {v(PV_FLGW)}, {v(PV_NEG)} offset:32')
    a(f'ds_write_b32 {v(PV_FLGW)}, {v(PV_NEG)} offset:48')
    a(f'v_mov_b32 {v(PV_RDY)}, 12')
    a(f"""
    v_mov_b32 v56, {LDS_PUB}
    s_waitcnt lgkmcnt(0)
    s_barrier
    ds_read_b64 v[32:33], v56
    s_waitcnt lgkmcnt(0)
    v_cmp_ne_u32 vcc, {s(S_X1)}, v32
    s_setprio 3
    v_readfirstlane_b32 {s(S_T0)}, v33
    s_add_u32 {s(S_PO)}, {s(S_PO)}, {s(S_T0)}
    s_cbranch_vccnz ch_p_slow
    """)
    if prof:
        a(f"""
        v_mov_b32 v33, {s(S_T0)}
        s_memrealtime s[98:99]
        s_waitcnt lgkmcnt(0)
        s_lshl_b32 {s(S_T0)}, {s(S_ID)}, 3
        s_add_u32 {s(S_T0)}, {s(S_T0)}, {s(S_W)}
        s_lshl_b32 {s(S_T0)}, {s(S_T0)}, 12
        s_add_u32 {s(S_T0)}, {s(S_T0)}, {WS_YP + 63*64}
        v_mov_b32 v56, s94
        v_mov_b32 v57, s96
        v_mov_b32 v32, s98
        s_mov_b64 exec, 1
        buffer_store_dwordx2 v[56:57], off, {s(SRD_WS,4)}, {s(S_T0)}
        buffer_store_dwordx2 v[32:33], off, {s(SRD_WS,4)}, {s(S_T0)} offset:8
        s_mov_b64 exec, -1
        s_nop 1
        """)
    if a.force_slow: a('s_branch ch_p_slow')
    p_loop(a, '', prof, done)
    a.label('ch_p_slow')
    p_loop(a, ' sc1', prof, done)
    a.label('ch_a_pro')
    a(f"""
    s_sub_u32 {s(S_T4)}, {s(S_W)}, 4
    s_lshl_b32 {s(S_H)}, {s(S_G)}, 2
    s_add_u32 {s(S_H)}, {s(S_H)}, {s(S_T4)}
    s_lshl_b32 {s(S_QO)}, {s(S_H)}, 13
    s_add_u32 {s(S_QO)}, {s(S_QO)}, {WS_QKV}
    """)
    if a.rot:
        a(f's_cmp_lg_u32 {s(S_W)}, 7')
        a('s_cbranch_scc1 ch_nrp')
        a.rot_poll(131072 + 64, 27, 28)
        a.label('ch_nrp')
        a('s_barrier')
        a.rot_check(131072 + 64, 27)
    if a.stouch:
        a(f"""
        s_min_u32 {s(S_T3)}, {s(S_T4)}, 2
        s_lshl_b32 {s(S_T1)}, {s(S_T3)}, 3
        s_add_u32 {s(S_T1)}, {s(S_T1)}, {KA_WQ}
        s_load_dwordx2 {s(SRD_T,2)}, s[0:1], {s(S_T1)}
        s_mov_b32 {s(SRD_T+2)}, {8*MB}
        s_mov_b32 {s(SRD_T+3)}, {SRD3}
        v_and_b32 v20, 63, v0
        v_lshlrev_b32 v21, 13, v20
        s_lshl_b32 {s(S_T0)}, {s(S_C)}, 19
        s_lshl_b32 {s(S_T1)}, {s(S_G)}, 10
        s_add_u32 {s(S_T0)}, {s(S_T0)}, {s(S_T1)}
        s_waitcnt lgkmcnt(0)
        buffer_load_dword v26, v21, {s(SRD_T,4)}, {s(S_T0)} offen offset:384
        """)
    a_static(a)
    a(f"""
    v_lshlrev_b32 v24, 4, v0
    s_lshl_b32 {s(S_T0)}, {s(S_ID)}, 13
    s_add_u32 {s(S_T2)}, {s(S_T0)}, {WS_PART - 4096}
    s_add_u32 {s(S_T0)}, {s(S_T0)}, {WS_QKV - 4096}
    s_lshl_b32 {s(S_T1)}, {s(S_ID)}, 12
    s_add_u32 {s(S_T1)}, {s(S_T1)}, {WS_MEM - 4096}
    buffer_store_dwordx4 {v(AV_NEG,4)}, v24, {s(SRD_WS,4)}, {s(S_T2)} offen sc1
    s_add_u32 {s(S_T2)}, {s(S_T2)}, 4096
    buffer_store_dwordx4 {v(AV_NEG,4)}, v24, {s(SRD_WS,4)}, {s(S_T2)} offen sc1
    buffer_store_dwordx4 {v(AV_NEG,4)}, v24, {s(SRD_WS,4)}, {s(S_T0)} offen sc1
    s_add_u32 {s(S_T0)}, {s(S_T0)}, 4096
    buffer_store_dwordx4 {v(AV_NEG,4)}, v24, {s(SRD_WS,4)}, {s(S_T0)} offen sc1
    buffer_store_dwordx4 {v(AV_NEG,4)}, v24, {s(SRD_WS,4)}, {s(S_T1)} offen sc1
    """)
    a(f"""
    s_and_b32 {s(S_T0)}, {s(S_I)}, 7
    s_sub_u32 {s(S_T1)}, {s(S_T4)}, 1
    s_cmp_lt_u32 {s(S_T1)}, 2
    s_cselect_b32 s54, {s(S_T0)}, 1
    s_lshr_b32 {s(S_T2)}, {s(S_ID)}, 3
    s_lshl_b32 {s(S_T2)}, {s(S_T2)}, 8
    s_lshl_b32 {s(S_T1)}, {s(S_T1)}, 7
    s_add_u32 {s(S_T2)}, {s(S_T2)}, {s(S_T1)}
    s_add_u32 s55, {s(S_T2)}, {WS_PART + MB}
    s_cmp_lg_u32 s54, 0
    s_cbranch_scc1 ch_nv0
    v_lshlrev_b32 v24, 13, v20
    s_mov_b64 exec, 0xffff
    buffer_store_dword {v(AV_NEG)}, v24, {s(SRD_WS,4)}, s55 offen sc1
    s_mov_b64 exec, -1
    """)
    a.label('ch_nv0')
    a(f"""
    v_mov_b32 v2, {s(S_X1)}
    s_lshl_b32 {s(S_T0)}, {s(S_X)}, 2
    s_add_u32 {s(S_T0)}, {s(S_T0)}, {F.DBG_XCC}
    s_waitcnt vmcnt(0)
    s_barrier
    s_cmp_lg_u32 {s(S_W)}, 4
    s_cbranch_scc1 ch_nox
    s_mov_b64 exec, 1
    buffer_atomic_add v2, off, {s(F.SRD_DBG,4)}, {s(S_T0)} sc1
    s_mov_b64 exec, -1
    """)
    a.label('ch_nox')
    a_prologue(a)
    a('s_cmp_lg_u32 s54, 0')
    a('s_cbranch_scc1 ch_nv1')
    a('s_mov_b32 s58, -1')
    a('s_mov_b32 s59, -1')
    for k in range(8):
        for ph in range(2):
            a('s_memtime s[60:61]')
            a(f's_add_u32 s56, s55, {k*16384 + ph*8192}')
            a('s_waitcnt lgkmcnt(0)')
            a('s_load_dword s57, s[4:5], s56 glc')
            a('s_waitcnt lgkmcnt(0)')
            a('s_memtime s[62:63]')
            a('s_waitcnt lgkmcnt(0)')
            a('s_sub_u32 s57, s62, s60')
            a(f's_min_u32 s{58+ph}, s{58+ph}, s57')
    a(f"""
    s_sub_i32 s57, s58, s59
    s_min_i32 s57, s57, {a.vote}
    s_max_i32 s57, s57, {-a.vote}
    s_add_u32 s57, s57, {a.vote + (1 << 24)}
    s_getreg_b32 s56, hwreg(HW_REG_XCC_ID)
    s_and_b32 s56, s56, 0
    v_mov_b32 v2, s57
    s_mov_b64 exec, 1
    buffer_atomic_add v2, off, {s(F.SRD_DBG,4)}, s56 offset:{F.DBG_VOTE} sc1
    s_mov_b64 exec, -1
    """)
    a('s_waitcnt vmcnt(0)')
    a.label('ch_nv1')
    a_prologue2(a)
    a(f"""
    s_cmp_lg_u32 {s(S_W)}, 4
    s_cbranch_scc1 ch_xcc_skip
    v_lshrrev_b32 v56, 2, {v(AV_L16)}
    v_add_u32 v56, {F.DBG_XCC}, v56
    v_writelane_b32 v56, 0, 10
    v_mov_b32 v59, 63
    v_mov_b32 v60, 32
    v_writelane_b32 v59, 0, 8
    v_writelane_b32 v60, 0, 8
    v_writelane_b32 v59, 0, 9
    v_writelane_b32 v60, 0, 9
    v_writelane_b32 v59, -1, 10
    s_movk_i32 {s(S_T0)}, 128
    v_writelane_b32 v60, {s(S_T0)}, 10
    s_mov_b64 exec, 0x70f
    """)
    a.label('ch_xcc')
    a(f"""
    buffer_load_dword v57, v56, {s(F.SRD_DBG,4)}, 0 offen sc1
    s_waitcnt vmcnt(0)
    v_and_b32 v62, v59, v57
    v_cmp_ne_u32 vcc, v62, v60
    v_readlane_b32 {s(S_T1)}, v57, 8
    v_readlane_b32 {s(S_T2)}, v57, 9
    s_add_u32 {s(S_T0)}, {s(S_T1)}, {s(S_T2)}
    s_lshr_b32 {s(S_T0)}, {s(S_T0)}, 24
    s_cmp_lg_u32 {s(S_T0)}, 32
    s_cbranch_scc1 ch_xcc_w
    s_cbranch_vccz ch_xcc_ok
    """)
    a.label('ch_xcc_w')
    a(f"""
    s_sleep 16
    s_sub_u32 {s(S_TO)}, {s(S_TO)}, 1
    s_cbranch_scc0 ch_xcc
    s_mov_b32 {s(S_TO)}, 0
    """)
    a.label('ch_xcc_ok')
    a(f"""
    s_getreg_b32 {s(S_T0)}, hwreg(HW_REG_XCC_ID)
    s_bitcmp1_b32 {s(S_T0)}, 2
    s_cselect_b32 {s(S_T1)}, {s(S_T1)}, {s(S_T1)}
    v_readlane_b32 {s(S_T0)}, v57, {s(S_X)}
    s_mov_b64 exec, -1
    s_lshr_b32 {s(S_T2)}, {s(S_T1)}, 24
    s_mul_i32 {s(S_T2)}, {s(S_T2)}, {a.vote}
    s_and_b32 {s(S_T1)}, {s(S_T1)}, 0xffffff
    s_cmp_gt_u32 {s(S_T1)}, {s(S_T2)}
    s_cselect_b32 {s(S_T1)}, {0 if a.pgf else 0x2000}, {0x2000 if a.pgf else 0}
    v_mov_b32 v58, {LDS_PUB}
    v_mov_b32 v60, {s(S_T0)}
    v_mov_b32 v61, {s(S_T1)}
    s_barrier
    ds_write_b64 v58, v[60:61]
    s_waitcnt lgkmcnt(0)
    s_branch ch_xcc_b3
    """)
    a.label('ch_xcc_skip')
    a('s_barrier')
    a.label('ch_xcc_b3')
    a(f"""
    s_barrier
    v_mov_b32 v58, {LDS_PUB}
    ds_read_b64 v[60:61], v58
    v_and_b32 v23, 7, v20
    v_lshlrev_b32 v23, 7, v23
    v_bfe_u32 v24, v20, 3, 1
    v_lshl_add_u32 v23, v24, 17, v23
    v_lshrrev_b32 v24, 4, v20
    v_lshl_add_u32 v23, v24, 24, v23
    s_lshl_b32 {s(S_T2)}, {s(S_G)}, 14
    s_lshl_b32 {s(S_T1)}, {s(S_C)}, 10
    s_add_u32 {s(S_T2)}, {s(S_T2)}, {s(S_T1)}
    s_and_b32 {s(S_T1)}, {s(S_T4)}, 1
    s_lshl_b32 {s(S_T1)}, {s(S_T1)}, 18
    s_add_u32 {s(S_T2)}, {s(S_T2)}, {s(S_T1)}
    s_add_u32 {s(S_T2)}, {s(S_T2)}, {WS_QS + 262144}
    s_waitcnt lgkmcnt(0)
    v_readfirstlane_b32 {s(S_T0)}, v61
    s_add_u32 {s(S_PO)}, {s(S_PO)}, {s(S_T0)}
    """)
    a.label('ch_g0')
    a(f"""
    buffer_load_dword v57, off, {s(SRD_WS,4)}, {s(S_CQG)} sc1
    s_waitcnt vmcnt(0)
    v_readfirstlane_b32 {s(S_T0)}, v57
    s_cmp_ge_u32 {s(S_T0)}, {8 if a.s0 else 12}
    s_cbranch_scc1 ch_g0b
    s_sleep {a.g0sl}
    s_sub_u32 {s(S_TO)}, {s(S_TO)}, 1
    s_cbranch_scc0 ch_g0
    s_mov_b32 {s(S_TO)}, 0
    """)
    a.label('ch_g0b')
    for m in (1, 0):
        for x in (reg_list(a, m, AV_TB if m else AV_KS, S_QLD) if a.s1 and a.lr & (1 if m else 2) else dma_list(a, m, AV_L16, S_T1)): a(x)
    a('s_mov_b32 exec_hi, 0xffff')
    a(f'buffer_load_dword {v(AV_PK+7)}, v23, {s(SRD_WS,4)}, {s(S_T2)} offen sc1')
    a('s_mov_b32 exec_hi, -1')
    a(f'v_mov_b32 {v(AV_FV)}, 0')
    a('s_waitcnt vmcnt(1)')
    a(f'ds_write_b32 {v(AV_FLGW)}, {v(AV_FV)} offset:16')
    a_loop(a, prof, done)
```

```python
import heapq, random, json, os, math
from layout4 import *
import k_gemm5 as G
import k_fin5 as F
CQ_TAB = WS_CNT + 512
CA_TAB = WS_CNT + 3072
CQ2_TAB = WS_CNT + 4096
NW = 32
DEF = dict(T0=21.0, P=2.5, PH=2.9, ts=9.7, dh0=10.0, dh=8.2, nhb=1, lw=0.5, dq=22.2, dg=23.3, cold=dict(g=5.0, d=5.0, o=1.0), dd=20.2, do=21.6, da=11.3, df=4.2, dfw=6.0, dp=9.0, dp2=6.0, gap=0.8, margin=3.0, rm=1.0, tgt=172.0)

def make_jobs(nlb, p):
    T0, P = p['T0'], p['P']
    s1 = p.get('s1', 8 * nlb)
    ct = lambda st: T0 + min(st, s1) * P + max(0, st - s1) * p['PH']
    jobs = []
    def add(**k): k['id'] = len(jobs); k.setdefault('rel', 0); k.setdefault('dl', None); k.setdefault('deps', []); jobs.append(k); return k['id']
    dl = lambda seg: ct(seg - 2) - p['margin'] if seg else T0
    Q = {}; Gj = {}; A = {}; DO = {}; nb0 = p.get('nb0', nlb)
    for b in range(p.get('scb', 64) // 8):
        for mat in (1, 2, 0):
            lq = mat == 0 and b < nb0
            if b < p['nhb'] and not lq:
                for hb in (2 * b, 2 * b + 1):
                    for i in range(8): add(kind='h', mb=hb, mat=mat, i=i, dur=p['dh'], dl=dl(4 * hb))
            else:
                for i in range(4):
                    n = add(kind='q', mb=b, mat=mat, i=i, dur=p['dq'], dl=None if lq else dl(8 * b) + (p['margin'] if b == 1 else 0))
                    if lq: Q.setdefault((b, i // 2), []).append(n)
    for mb in range(8):
        for i in range(7): Gj.setdefault(mb, []).append(add(kind='g', mb=mb, i=i, m=2 if mb < p.get('nd2', 0) else 1, dur=p['dg']))
        m = 2 if mb < p.get('nd2', 0) else 1
        for i in range(4 // m): DO.setdefault(mb, []).append(add(kind='d', mb=mb, i=i, m=m, dur=p['dd'] * m - 1.0 * (m - 1), deps=Gj[mb]))
    for b in range(nlb):
        m = 2 if b < p.get('no2', 0) else 1
        for hf in range(2 if b < nb0 else 0):
            for i in range(2): A.setdefault(b, []).append(add(kind='a', mb=b, i=i, hf=hf, m=m, dur=p['da'], rel=ct(8 * b + 4 * hf + 6.5) + p['rm'], deps=Q[(b, i)]))
        for i in range(4 // m): DO[b].append(add(kind='o', mb=b, i=i, m=m, dur=p['do'] * m - 1.0 * (m - 1), deps=A.get(b, []), rel=0 if b < nb0 else ct(8 * b + 10.5) + p['rm']))
    PH = {}
    for hb in range(2 * nlb, s1 // 4):
        two = hb >= 14
        for i in range(16 if two else 8):
            PH.setdefault(hb >> 1, []).append(add(kind='p', mb=hb, i=i, two=two, dur=p['dp2'] if two else p['dp'], rel=ct(4 * hb + 6.5) + p['rm']))
    for seg in range(64 - NTAIL):
        rel = ct(seg + 3.5 + ((3 - seg) % 4 if seg < 55 else 0)) if seg >= s1 else 0
        b = seg >> 3
        add(kind='f', mb=b, i=seg, dur=p['df'] - (0.5 if b < p.get('no2', 0) else 0) - (0.5 if b < p.get('nd2', 0) else 0), rel=rel, deps=DO[b] + (PH.get(b, []) if seg < s1 else []),
            otgt=0 if seg >= s1 else 16 if b < nlb else 4 * len(PH[b]), four=2 if b < p.get('no2', 0) else int(seg < min(s1, 56)), g2=int(b < p.get('nd2', 0)))
    for sg in range(NTAIL):
        for i in range(4): add(kind='t', mb=7, seg=64 - NTAIL + sg, i=i, dur=1.5, rel=ct(64 - NTAIL + sg + 1.4) + (0.3 if sg == NTAIL - 1 else 2.0), deps=DO[7])
    for j in jobs: j['pan'] = panels(j)
    return jobs, ct

def simulate(jobs, lists, p, sc=None, detail=False):
    n = len(jobs); end = [None] * n; start = [0] * n
    pos = [0] * NW
    durs, rs = sc if sc else ([j['dur'] for j in jobs], 1.0)
    T0 = p['T0']; gap = p['gap']; tgt = p['tgt']
    waiting = {}; heap = [(p['ts'], w, p['ts']) for w in range(NW)]; ndone = 0; pen = 0.0
    first = {}
    while heap:
        t, w, fr = heapq.heappop(heap); l = lists[w]
        if pos[w] >= len(l): continue
        i = l[pos[w]]; j = jobs[i]
        blk = None; rt = fr
        for d in j['deps']:
            e = end[d]
            if e is None: blk = d; break
            if e > rt: rt = e
        if blk is not None:
            waiting.setdefault(blk, []).append((w, fr)); continue
        rel = T0 + (j['rel'] - T0) * rs if j['rel'] else 0
        if rel > rt: rt = rel
        if rt > t + 1e-9:
            heapq.heappush(heap, (rt, w, fr)); continue
        k = j['kind']; dur = durs[i]
        if pos[w] == 0: dur += p['dh0'] - p['dh'] + (1.0 if k == 'q' else 0)
        if k in 'gdo':
            f = first.setdefault(k, rt)
            if rt < f + 12: dur += p['cold'][k]
        if not (rt == fr and k in 'qgdo' and pos[w] and jobs[l[pos[w] - 1]]['kind'] in 'qgdo'): rt += gap
        e = rt + dur
        x = e - max(tgt, rel + gap + dur)
        if x > 0: pen += x * x
        start[i] = rt; end[i] = e; pos[w] += 1; ndone += 1
        heapq.heappush(heap, (e, w, e))
        for w2, f2 in waiting.pop(i, ()): heapq.heappush(heap, (rt, w2, f2))
    if ndone < n: return None
    if detail: return start, end
    late = {}
    for j in jobs:
        if j['dl'] is not None:
            x = end[j['id']] - (T0 + (j['dl'] - T0) * rs)
            if x > late.get(j['dl'], 0): late[j['dl']] = x
    return max(end), sum(late.values()), pen, start

def scenarios(jobs, seed=5):
    r = random.Random(seed); out = [None]
    for g, rs in ((1.05, 0.99), (0.98, 1.04), (1.03, 1.01), (1.0, 1.0)):
        ks = {k: r.uniform(0.97, 1.05) for k in 'hqgdaoftp'}
        out.append(([j['dur'] * g * ks[j['kind']] * r.uniform(0.95, 1.08) for j in jobs], rs))
    return out

def panels(j):
    k = j['kind']
    if k == 'q': return (('X', j['mb']), ('W', j['mat'], j['i']))
    if k == 'g': return (('X', j['mb']), ('G', j['i']))
    if k == 'd': return (('H', j['mb']), ('D', j['i']))
    if k == 'o': return (('O', j['mb']), ('Wo', j['i']))
    return ()

def unshared(jobs, start, win):
    by = {}
    for j in jobs:
        for pn in j['pan']: by.setdefault(pn, []).append(start[j['id']])
    n = 0
    for l in by.values():
        l.sort(); last = -1e9
        for t in l:
            if t - last > win: n += 1; last = t
    return n

def score(jobs, lists, p, scs):
    tot = 0.0
    for sc in scs:
        r = simulate(jobs, lists, p, sc)
        if r is None: return 1e9
        tot += r[0] + 3 * r[1] + 0.004 * r[2]
        if sc is None: tot += p['lw'] * len(scs) / 2 * unshared(jobs, r[3], 2.5)
    return tot / len(scs) * 2

def initial(jobs, nlb, p):
    lists = [[] for _ in range(NW)]
    h = {(j['mb'], j['mat'], j['i']): j['id'] for j in jobs if j['kind'] == 'h'}
    pre = set()
    for k in range(NW):
        mat, i = 1 + ((k >> 3) & 1), k & 7
        if (2, 1, 0) in h: lists[k] = [h[(k >> 4, mat, i)], h[(2 + (k >> 4), mat, i)]]
        elif k < 16: lists[k] = [h[(0, mat, i)], h[(1, mat, i)]]
        else:
            mb, mt = ((1, 1 + ((k >> 2) & 1)) if k < 24 else ((k >> 2) & 1, 0)) if p.get('cln') else (1 + ((k >> 3) & 1), 1 + ((k >> 2) & 1))
            lists[k] = [[j['id'] for j in jobs if j['kind'] == 'q' and j['mb'] == mb and j['mat'] == mt and j['i'] == k & 3][0]]
            pre.add(lists[k][0])
    def key(j):
        k, b = j['kind'], j['mb']
        if k == 'q': return j['dl'] - 45 if j['dl'] is not None else 20 * b + 5
        return {'g': 30 + 12 * b, 'd': 120 + 5 * b, 'a': j['rel'] + 8, 'o': max(75 + 20 * b, j['rel'] + 5), 'p': j['rel'] + 2, 'f': max(170 + b, j['rel'], 185 if any(jobs[d]['kind'] == 'p' for d in j['deps']) else 0), 't': 300}[k]
    rest = sorted((j for j in jobs if j['kind'] not in 'ht' and j['id'] not in pre), key=key)
    load = [(0.0 if len(lists[w]) == 2 else 5.0, w) for w in range(NW)]
    for j in rest:
        t, w = heapq.heappop(load); lists[w].append(j['id']); heapq.heappush(load, (t + j['dur'], w))
    for n, j in enumerate(j for j in jobs if j['kind'] == 't'): lists[(n * 5) % NW].append(j['id'])
    return lists

def optimise(jobs, lists, p, iters, seed=1, t0=3.0):
    rnd = random.Random(seed); scs = scenarios(jobs); cur = score(jobs, lists, p, scs); best = (cur, [list(l) for l in lists])
    for it in range(iters):
        temp = t0 * (1 - it / iters) ** 2 + 0.01
        w1 = rnd.randrange(NW); w2 = rnd.randrange(NW)
        l1, l2 = lists[w1], lists[w2]
        n1 = len(l1) - (jobs[l1[-1]]['kind'] == 't'); n2 = len(l2) - (jobs[l2[-1]]['kind'] == 't')
        f1 = 2 if jobs[l1[0]]['kind'] == 'h' else 1; f2 = 2 if jobs[l2[0]]['kind'] == 'h' else 1
        if n1 <= f1: continue
        i1 = rnd.randrange(f1, n1); o1, o2 = list(l1), list(l2)
        m = rnd.random()
        if m < 0.4 and n2 > f2:
            i2 = min(max(f2, i1 + rnd.randint(-2, 2)), n2 - 1)
            if w1 == w2 and i1 == i2: continue
            l1[i1], l2[i2] = l2[i2], l1[i1]
        elif m < 0.8:
            j = l1.pop(i1)
            if w1 == w2: n2 -= 1
            l2.insert(min(max(f2, i1 + rnd.randint(-2, 2)), n2), j)
        else:
            if w1 == w2: continue
            i2 = min(max(f2, i1 + rnd.randint(-1, 1)), n2)
            l1[:], l2[:] = o1[:i1] + o2[i2:], o2[:i2] + o1[i1:]
        sc = score(jobs, lists, p, scs)
        if sc <= cur or rnd.random() < math.exp((cur - sc) / temp):
            cur = sc
            if sc < best[0]: best = (sc, [list(l) for l in lists])
        else:
            l1[:] = o1; l2[:] = o2
        if it % 20000 == 0: r = simulate(jobs, lists, p); print(it, round(cur, 2), r[:3], unshared(jobs, r[3], 2.5), flush=True)
    return best[1]

def report(jobs, lists, p, ct):
    st, en = simulate(jobs, lists, p, detail=True)
    print('fetches', unshared(jobs, st, 2.5), 'scen', [[round(x, 1) for x in simulate(jobs, lists, p, sc)[:2]] for sc in scenarios(jobs) + scenarios(jobs, 77)[1:]], 'chain end', ct(64))
    for k in 'hqgdaopft': print(k, [round(max(en[j['id']] for j in jobs if j['kind'] == k and j['mb'] == mb)) for mb in range(16) if any(j['kind'] == k and j['mb'] == mb for j in jobs)])
    for w in range(NW): print(w, ' '.join(f"{jobs[i]['kind']}{jobs[i]['mb']}@{st[i]:.0f}" for i in lists[w]))

def path(nlb, tag): return os.path.join(os.path.dirname(os.path.abspath(__file__)), f'plan_{nlb}{tag}.json')

def descriptor(j, x, nb0):
    o = []; m = j.get('m', 1)
    k, mb, i = j['kind'], j['mb'], j['i']
    q2 = lambda base: (base + 16 * (x >> 1), 4 if x & 1 else 1)
    if k == 'q':
        t = 4 * x + i
        o.append(G.job_qkv(j['mat'], mb, t, sig=((CQ2_TAB if j['mat'] == 0 and mb < nb0 else CQ_TAB) + mb * 256 + (t // 2) * 16) | 10))
    elif k == 'h':
        t = 8 * x + i
        o.append(G.job_qkv_half(j['mat'], mb, t, sig=(CQ_TAB + (mb >> 1) * 256 + (t // 4) * 16) | (4 if mb & 1 else 1)))
    elif k == 'g': ad, inc = q2(WS_CNT + 64 * mb); o.append(G.job_glu(mb, 7 * x + i, sig=ad | (1 if m == 2 else inc)))
    elif k == 'd' and m == 2: o.append(G.job_down_h(mb, 2 * (x & 1) + i, x >> 1, wait=q2(WS_CNT + 64 * mb)[0], wtgt=14, sig=(F.CD_TAB + 64 * mb) | 2, m=2))
    elif k == 'd': ad, inc = q2(WS_CNT + 64 * mb); o.append(G.job_down_h(mb, i, x, wait=ad + 4 * (x & 1), wtgt=7, sig=(F.CD_TAB + 64 * mb) | 1))
    elif k == 'f': o.append(G.job_fin(i, x, otgt=j.get('otgt', 0), four=j.get('four', 0), g2=j.get('g2', 0)))
    elif k == 'p': o.append(G.job_wo_half(mb, i & 7, 2 * x + (i >> 3) if j['two'] else x, 512 if j['two'] else 1024, wait=F.CS_TAB + 128 * x, wtgt=4 * mb + 5, sig=(F.CD_TAB + 64 * (mb >> 1)) | 4))
    elif k == 't': o.append(G.job_fin(j['seg'], 4 * x + i, True))
    elif k == 'a':
        ad, inc = q2(CA_TAB + 64 * mb); hg = 2 * x + i
        o.append(G.job_att(2 * mb + j['hf'], hg, wait=F.CS_TAB + 128 * x, wtgt=8 * mb + 4 * j['hf'] + 4, sig=ad | (1 if m == 2 else inc), wq=CQ2_TAB + mb * 256 + hg * 16))
    elif m == 2:
        w_, t_ = (F.CS_TAB + 128 * x, 8 * mb + 9) if mb >= nb0 else (q2(CA_TAB + 64 * mb)[0], 8)
        o.append(G.job_wo(mb, 2 * (x & 1) + i, x >> 1, wait=w_, wtgt=t_, sig=(F.CD_TAB + 64 * mb) | 8, m=2))
    elif mb >= nb0: o.append(G.job_wo(mb, i, x, wait=F.CS_TAB + 128 * x, wtgt=8 * mb + 9, sig=(F.CD_TAB + 64 * mb) | 4))
    else: ad, inc = q2(CA_TAB + 64 * mb); o.append(G.job_wo(mb, i, x, wait=ad + 4 * (x & 1), wtgt=4, sig=(F.CD_TAB + 64 * mb) | 4))
    return o[0]

def build(nlb=6, tag='', nb0=None):
    global PLAN
    d = json.load(open(path(nlb, tag))); p = d['p']; lists = d['lists']
    assert p.get('nb0', nlb) == nb0
    jobs, ct = make_jobs(nlb, p)
    assert sorted(i for l in lists for i in l) == list(range(len(jobs)))
    st, en = simulate(jobs, lists, p, detail=True)
    out = []; PLAN = []
    for wk in range(128):
        x = wk & 3; o = []
        PLAN.append([(jobs[i]['kind'], jobs[i]['mb'], round(st[i], 1)) for i in lists[wk >> 2]])
        for n in lists[wk >> 2]:
            o.append(descriptor(jobs[n], x, nb0))
        out.append(o)
    return out

if __name__ == '__main__':
    import sys
    nlb = int(sys.argv[1]); iters = int(sys.argv[2]); tag = sys.argv[3] if len(sys.argv) > 3 else ''
    p = dict(DEF); p.update(eval(sys.argv[4]) if len(sys.argv) > 4 else {})
    jobs, ct = make_jobs(nlb, p)
    lists = optimise(jobs, initial(jobs, nlb, p), p, iters, seed=p.get('seed', 1))
    report(jobs, lists, p, ct)
    json.dump(dict(p=p, lists=lists), open(path(nlb, tag), 'w'))
```

```python
from asmlib import *
from layout4 import *
import k_fin5 as F

SRD_WS = 4
SRD_T = 8
S_W = 3
S_X, S_I, S_G, S_H, S_S = 12, 13, 14, 15, 16
S_T0, S_T1, S_T2, S_T3, S_T4 = 17, 18, 19, 20, 21
S_TO = 22
S_MLD, S_MST, S_MRS, S_QST, S_QRS, S_PLD, S_OK, S_SP, S_TCH, S_RDG, S_RDY, S_C, S_CQG = range(23, 36)
S_MO, S_MSO, S_QO, S_PO, S_X1, S_KG, S_KL = range(36, 43)
S_QLD, S_QLD2, S_PSTC, S_PRS, S_PRG, S_CS, S_CST, S_DW, S_DU, S_U2, S_QT = range(23, 34)
S_M0 = 44
S_ID = 52
S_J = 53
S_SP0 = 54
S_KMX = 55
S_RTG = 58
S_OF, S_OB = 59, 60
S_XB, S_XBX, S_SCO, S_XG = 101, 68, 69, 43
LDS_SCP = 36864
S_MEX = 56
S_PROF = 70
LDS_RED1 = 0
LDS_FLG = 15872
LDS_PUB = 15968
LDS_RED2 = 16384
LDS_SEG = 32768
LDS_BULK = 65536
PSLOT = 18
CHAIN_LDS = 163840
CQ_TAB = WS_CNT + 512
TIMEOUT = 1 << 17

def red_gq(vs, vt, op):
    return [f'v_mov_b32 {v(vt)}, {v(vs)}', 's_nop 1', f'v_permlane16_swap_b32 {v(vt)}, {v(vs)}', f'{op} {v(vs)}, {v(vs)}, {v(vt)}',
            f'v_mov_b32 {v(vt)}, {v(vs)}', 's_nop 1', f'v_permlane32_swap_b32 {v(vt)}, {v(vs)}', f'{op} {v(vs)}, {v(vs)}, {v(vt)}']

def chk(regs, vt, target):
    r = list(regs); o = []
    if len(r) == 1:
        return [f'v_cmp_eq_u32 vcc, -1, {v(r[0])}', f's_cbranch_vccnz {target}']
    if len(r) == 2:
        o.append(f'v_max_u32 {v(vt)}, {v(r[0])}, {v(r[1])}'); r = []
    else:
        o.append(f'v_max3_u32 {v(vt)}, {v(r[0])}, {v(r[1])}, {v(r[2])}'); r = r[3:]
    while len(r) >= 2:
        o.append(f'v_max3_u32 {v(vt)}, {v(vt)}, {v(r[0])}, {v(r[1])}'); r = r[2:]
    if r: o.append(f'v_max_u32 {v(vt)}, {v(vt)}, {v(r[0])}')
    o.append(f'v_cmp_eq_u32 vcc, -1, {v(vt)}')
    o.append(f's_cbranch_vccnz {target}')
    return o

def retry_block(a, label, again, giveup):
    a.label(label)
    a('s_waitcnt vmcnt(0)')
    if a.rsleep: a(f's_sleep {a.rsleep}')
    a(f's_sub_u32 {s(S_TO)}, {s(S_TO)}, 1')
    a(f's_cbranch_scc0 {again}')
    a(f's_mov_b32 {s(S_TO)}, 0')
    a(f's_branch {giveup}')

def spin_block(a, label, loads, regs, vt, ok, giveup):
    a.label(label)
    a(f's_sub_u32 {s(S_TO)}, {s(S_TO)}, 1')
    a(f's_cbranch_scc1 {label}_g')
    for x in loads: a(x)
    a(f's_waitcnt vmcnt({len(loads)-1})')
    for x in chk(regs, vt, label): a(x)
    a(f's_branch {ok}')
    a.label(label + '_g')
    a(f's_mov_b32 {s(S_TO)}, 0')
    a('s_waitcnt vmcnt(0)')
    a(f's_branch {giveup}')

class Prof:
    def __init__(self, on): self.on = on; self.n = 0; self.names = []
    def stamp(self, a, name, lvl=0):
        if self.on and (lvl == 0 or lvl == a.fine or (lvl < 0 and -lvl != a.fine)):
            a(f's_memtime {s(S_PROF + 2*self.n, 2)}'); self.n += 1; self.names.append(name)
    def flush(self, a, vtmp, tag):
        if not self.on: return
        a(f's_memrealtime {s(S_PROF + 2*self.n, 2)}'); self.n += 1; self.names.append('rt')
        a(f's_sub_u32 {s(S_PROF + 2*self.n)}, s100, {s(S_TO)}'); self.n += 1; self.names.append('retries')
        a(f's_mov_b32 s100, {s(S_TO)}')
        assert self.n <= 15
        a('s_waitcnt lgkmcnt(0)')
        a(f's_lshl_b32 {s(S_T0)}, {s(S_ID)}, 3')
        a(f's_add_u32 {s(S_T0)}, {s(S_T0)}, {s(S_W)}')
        a(f's_lshl_b32 {s(S_T0)}, {s(S_T0)}, 6')
        a(f's_add_u32 {s(S_T0)}, {s(S_T0)}, {s(S_S)}')
        a(f's_lshl_b32 {s(S_T0)}, {s(S_T0)}, 6')
        a(f's_add_u32 {s(S_T0)}, {s(S_T0)}, {WS_YP}')
        for i in range(self.n):
            a(f'v_writelane_b32 {v(vtmp)}, {s(S_PROF+2*i)}, {i}')
        a(f's_mov_b64 exec, {(1<<self.n)-1}')
        a(f'v_mbcnt_lo_u32_b32 {v(vtmp+1)}, -1, 0')
        a(f'v_lshlrev_b32 {v(vtmp+1)}, 2, {v(vtmp+1)}')
        a(f'buffer_store_dword {v(vtmp)}, {v(vtmp+1)}, {s(SRD_WS,4)}, {s(S_T0)} offen')
        a('s_mov_b64 exec, -1')
        a.raw(f'; PROF {tag} ' + ' '.join(self.names))
        self.n = 0; self.names = []

def merge_fill(seq, fill, every=2, start=1):
    out = []; fi = 0
    for k, x in enumerate(seq):
        out.append(x)
        if k >= start and (k - start) % every == 0 and fi < len(fill):
            out.append(fill[fi]); fi += 1
    out += fill[fi:]
    return out

def flag_wait(a, tag, vaddr, off, vt, st, sl=1, one=False):
    a.label(tag)
    if one:
        a(f'ds_read_b32 {v(vt)}, {v(vaddr)} offset:{off}')
        a('s_waitcnt lgkmcnt(0)')
    else:
        a(f'ds_read_b128 {v(vt,4)}, {v(vaddr)} offset:{off}')
        a('s_waitcnt lgkmcnt(0)')
        a(f'v_min3_i32 {v(vt)}, {v(vt)}, {v(vt+1)}, {v(vt+2)}')
        a(f'v_min_i32 {v(vt)}, {v(vt)}, {v(vt+3)}')
        a('s_nop 0')
    a(f'v_readfirstlane_b32 {s(st)}, {v(vt)}')
    a(f's_cmp_ge_i32 {s(st)}, {s(S_S)}')
    a(f's_cbranch_scc1 {tag}ok')
    a(f's_sleep {sl}')
    a(f's_branch {tag}')
    a.label(tag + 'ok')

def ring(a, d, add, sh, base):
    if add: a(f's_add_u32 {s(d)}, {s(S_S)}, {add}')
    a(f's_and_b32 {s(d)}, {s(d if add else S_S)}, 3')
    a(f's_lshl_b32 {s(d)}, {s(d)}, {sh}')
    a(f's_add_u32 {s(d)}, {s(d)}, {s(base)}')

def sel_init(a, sel, vl, t1, t2):
    a(f'v_and_b32 {v(t1)}, 15, {v(vl)}')
    a(f'v_and_b32 {v(t2)}, 1, {v(t1)}')
    a(f'v_lshlrev_b32 {v(t2)}, 4, {v(t2)}')
    a(f'v_lshlrev_b32 {v(t2)}, {v(t2)}, 0x3f80' if False else f'v_mov_b32 {v(sel)}, 0x3f80')
    a(f'v_lshlrev_b32 {v(t2)}, {v(t2)}, {v(sel)}')
    a(f'v_lshrrev_b32 {v(t1)}, 1, {v(t1)}')
    for d in range(4):
        a(f'v_cmp_eq_u32 vcc, {d}, {v(t1)}')
        a('s_nop 1')
        a(f'v_cndmask_b32 {v(sel+d)}, 0, {v(t2)}, vcc')

PV_L16, PV_QST, PV_R1W, PV_R1R, PV_MST, PV_SGR, PV_SPS, PV_IDX = 1, 2, 3, 4, 5, 6, 7, 8
PV_PFA, PV_PFD, PV_FLGR = 0, 9, 58
PV_T, PV_NEG, PV_SEL = 9, 10, 12
PV_M, PV_ACC, PV_W = 16, 32, 64
PV_FV, PV_RDY, PV_R1W1, PV_R1W2, PV_FLGW = 59, 60, 61, 62, 63
def pw(b, t): return PV_W + (b * 6 + t) * 8

def mem0_issue(a):
    a(f'''
    s_load_dwordx2 {s(SRD_T,2)}, s[0:1], {KA_MEM0}
    s_mov_b32 {s(SRD_T+2)}, 16384
    v_bfe_u32 v57, v20, 2, 2
    v_and_b32 v58, 1, v20
    v_lshl_add_u32 v57, v57, 1, v58           ; token
    v_lshlrev_b32 v57, 11, v57
    v_lshrrev_b32 v58, 4, v20
    v_lshl_add_u32 v57, v58, 5, v57           ; + 32 g
    v_bfe_u32 v58, v20, 1, 1                  ; p
    v_lshl_add_u32 v57, v58, 4, v57
    v_lshl_add_u32 v59, v58, 3, v57
    v_xor_b32 v60, 8, v59
    s_lshl_b32 {s(S_T3)}, {s(S_W)}, 9
    s_waitcnt lgkmcnt(0)
    ''')
    for b in range(4):
        a(f'buffer_load_dwordx2 {v(32+4*b,2)}, v59, {s(SRD_T,4)}, {s(S_T3)} offen offset:{128*b}')
        a(f'buffer_load_dwordx2 {v(34+4*b,2)}, v60, {s(SRD_T,4)}, {s(S_T3)} offen offset:{128*b}')

def p_prologue(a):
    a(f'''
    v_and_b32 v20, 63, v0
    v_lshlrev_b32 {v(PV_L16)}, 4, v20
    v_mov_b32 {v(PV_NEG)}, -1
    v_mov_b32 {v(PV_NEG+1)}, -1
    v_lshrrev_b32 v21, 2, v20
    v_and_b32 v22, 3, v20
    v_lshlrev_b32 v21, 13, v21
    v_lshl_add_u32 v21, v22, 4, v21
    s_lshl_b32 {s(S_T0)}, {s(S_W)}, 21
    s_lshl_b32 {s(S_T1)}, {s(S_ID)}, 6
    s_add_u32 {s(S_T0)}, {s(S_T0)}, {s(S_T1)}
    s_lshl_b32 {s(S_T2)}, {s(S_W)}, 15
    s_mov_b32 {s(SRD_T+2)}, {8*MB}
    s_mov_b32 {s(SRD_T+3)}, {SRD3}
    v_lshrrev_b32 v24, 5, v20                 ; gB>>1
    v_bfe_u32 v25, v20, 3, 1                  ; r>>1
    v_lshl_add_u32 v24, v24, 1, v25           ; 2(gB>>1) + (r>>1)
    v_bfe_u32 v26, v20, 4, 1                  ; gB&1
    v_xor_b32 v26, v26, v25
    v_lshl_add_u32 v24, v24, 1, v26
    v_bfe_u32 v25, v20, 2, 1                  ; r&1
    v_lshl_add_u32 v24, v24, 2, v25           ; row
    v_lshlrev_b32 v24, 6, v24
    v_lshl_add_u32 v24, v22, 3, v24           ; + cc*8
    v_add_u32 v24, {s(S_T2)}, v24
    ''')
    if a.fl:
        a(f'''
        v_lshrrev_b32 v21, 3, v20
        v_and_b32 v23, 7, v20
        v_lshlrev_b32 v21, 14, v21
        v_lshl_add_u32 v21, v23, 4, v21
        s_and_b32 {s(S_T1)}, {s(S_I)}, 1
        s_mul_i32 {s(S_T1)}, {s(S_T1)}, {8192 - 64}
        s_add_u32 {s(S_T0)}, {s(S_T0)}, {s(S_T1)}
        ''')
    def src(p):
        a(f's_load_dwordx2 {s(SRD_T,2)}, s[0:1], {KA_WQ + 8*p}')
        a(f's_add_u32 {s(S_T3)}, {s(S_T0)}, s72')
        a('s_waitcnt lgkmcnt(0)')
    a(f's_and_b32 s70, {s(S_I)}, {1 if a.stag else 0}')
    a('s_lshl_b32 s72, s70, 20')
    a('s_lshl_b32 s73, s70, 21')
    a('s_lshl_b32 s70, s70, 13')
    a(f's_sub_u32 s71, {s(S_T2)}, s70')
    a(f's_add_u32 s70, {s(S_T2)}, s70')
    def issue(p, half):
        src(p)
        for n in range(16):
            if a.rot and p == 0 and n == a.rotn:
                a('s_barrier')
                a.rot_check(131072 + 64, 27)
            a(f's_add_u32 m0, {"s70" if n < 8 else "s71"}, {half*16384 + n*1024}')
            a('s_nop 0')
            a(f'buffer_load_dwordx4 v21, {s(SRD_T,4)}, {s(S_T3)} offen{a.wnt[p]} lds')
            a(f's_add_u32 {s(S_T3)}, {s(S_T3)}, {16*8192}')
            if n == 7: a(f's_sub_u32 {s(S_T3)}, {s(S_T3)}, s73')
    def fetch(p, half):
        for b in range(4):
            for T in range(2):
                for t4 in range(4):
                    a(f'ds_read_b64_tr_b16 {v(pw(b, 2*p+T)+2*t4, 2)}, v24 offset:{half*16384 + b*4096 + (32*(t4>>1) + 2*(t4&1))*64 + T*32}')
            a('s_waitcnt lgkmcnt(0)')
    issue(0, 0); issue(1, 1)
    src(2)
    land = [pw(n // 4, 4) + 4 * (n & 3) for n in range(16)]
    for n in range(16):
        a(f'buffer_load_dwordx4 {v(land[n],4)}, v21, {s(SRD_T,4)}, {s(S_T3)} offen{a.wnt[2]}')
        a(f's_add_u32 {s(S_T3)}, {s(S_T3)}, {16*8192}')
        if n == 7: a(f's_sub_u32 {s(S_T3)}, {s(S_T3)}, s73')
    mem0_issue(a)
    a('s_barrier')
    a(f'v_add_u32 v56, s70, {v(PV_L16)}')
    a(f'v_add_u32 v26, s71, {v(PV_L16)}')
    a('s_waitcnt vmcnt(40)'); fetch(0, 0)
    a('s_waitcnt vmcnt(24)'); fetch(1, 1)
    a('s_waitcnt vmcnt(8)')
    for n in range(16):
        a(f'ds_write_b128 {"v56" if n < 8 else "v26"}, {v(land[n],4)} offset:{n*1024}')
    a('s_waitcnt lgkmcnt(0)')
    fetch(2, 0)
    a(f'''
    v_mov_b32 v21, 0x44444444
    v_mov_b32 v22, 0xeeeeeeee
    v_and_b32 v23, 2, v20
    v_cmp_eq_u32 vcc, 0, v23
    s_nop 1
    v_cndmask_b32 {v(PV_IDX)}, v22, v21, vcc
    ''')
    a(f'''
    v_bfe_u32 v21, v20, 2, 3                  ; t
    v_lshrrev_b32 v22, 5, v20                 ; isk
    v_mul_u32_u24 v23, 160, v21
    v_mul_u32_u24 v24, 1280, v22
    v_add_u32 v23, v23, v24
    v_and_b32 v24, 3, v20
    v_lshl_add_u32 v27, v24, 4, v23
    v_lshrrev_b32 v23, 1, v21
    v_and_b32 v21, 1, v21
    v_lshl_add_u32 v21, v23, 2, v21           ; row0
    v_xor_b32 v22, 1, v22
    v_lshl_add_u32 v21, v22, 1, v21           ; row
    v_bfe_u32 v22, v20, 1, 1                  ; gq&1
    v_lshl_add_u32 v21, v22, 4, v21
    v_xor_b32 v22, v20, v22
    v_and_b32 v22, 1, v22                     ; hs
    v_lshlrev_b32 v21, 4, v21
    v_lshl_add_u32 v25, v22, 3, v21
    v_lshrrev_b32 v21, 3, v20                 ; t
    v_mul_u32_u24 v23, 160, v21
    v_and_b32 v24, 7, v20
    v_lshl_add_u32 v28, v24, 4, v23
    v_lshrrev_b32 v23, 1, v21
    v_and_b32 v21, 1, v21
    v_lshl_add_u32 v21, v23, 2, v21
    v_and_b32 v22, 1, v20                     ; p
    v_lshl_add_u32 v21, v22, 1, v21
    v_bfe_u32 v22, v20, 2, 1                  ; gq>>1
    v_lshl_add_u32 v21, v22, 4, v21
    v_bfe_u32 v22, v20, 1, 1                  ; gq&1
    v_lshlrev_b32 v21, 4, v21
    v_lshl_add_u32 v26, v22, 3, v21
    s_lshl_b32 {s(S_T0)}, {s(S_J)}, 10
    s_lshl_b32 {s(S_T1)}, {s(S_W)}, 9
    s_add_u32 {s(S_T0)}, {s(S_T0)}, {s(S_T1)}
    s_lshl_b32 {s(S_T1)}, {s(S_W)}, 6
    s_lshl_b32 {s(S_T2)}, {s(S_J)}, 9
    s_add_u32 {s(S_T2)}, {s(S_T2)}, 4096
    s_cmp_ge_u32 {s(S_W)}, 2
    s_cselect_b32 {s(S_T0)}, {s(S_T2)}, {s(S_T0)}
    s_cselect_b32 {s(S_T1)}, 2560, {s(S_T1)}
    s_cselect_b64 vcc, -1, 0
    v_cndmask_b32 v22, v25, v26, vcc
    v_cndmask_b32 v23, v27, v28, vcc
    v_add_u32 {v(PV_QST)}, {s(S_T0)}, v22
    v_add_u32 {v(PV_R1R)}, {s(S_T1)}, v23
    v_lshrrev_b32 v21, 4, v20                 ; g
    v_and_b32 v22, 15, v20                    ; n
    v_mul_u32_u24 v23, 320, v21
    v_lshl_add_u32 v23, v22, 2, v23
    s_mul_i32 {s(S_T0)}, {s(S_W)}, 3840
    v_add_u32 {v(PV_R1W)}, {s(S_T0)}, v23
    v_add_u32 {v(PV_R1W1)}, 1280, {v(PV_R1W)}
    v_bfe_u32 v24, v20, 3, 1
    v_bfe_u32 v25, v20, 2, 1
    v_xor_b32 v25, v25, v24                   ; hs
    v_bfe_u32 v26, v20, 1, 1                  ; p
    v_lshl_add_u32 v25, v26, 1, v25
    v_lshl_add_u32 v25, v24, 2, v25
    v_and_b32 v26, 1, v20
    v_lshl_add_u32 v25, v25, 1, v26           ; pos(n)
    v_sub_u32 v25, v25, v22
    v_lshl_add_u32 v25, v25, 2, {v(PV_R1W)}
    v_add_u32 {v(PV_R1W2)}, 2560, v25
    v_lshlrev_b32 v23, 4, v22
    v_lshl_add_u32 {v(PV_SGR)}, v21, 12, v23
    s_lshl_b32 {s(S_T0)}, {s(S_W)}, 10
    s_add_u32 {s(S_T0)}, {s(S_T0)}, {LDS_SEG}
    v_add_u32 {v(PV_SGR)}, {s(S_T0)}, {v(PV_SGR)}
    v_lshrrev_b32 v24, 1, v21
    v_lshl_add_u32 v23, v24, 15, v23
    v_and_b32 v24, 1, v21
    v_lshl_add_u32 {v(PV_SPS)}, v24, 8, v23
    v_mov_b32 {v(PV_FLGR)}, {LDS_FLG}
    v_bfe_u32 v23, v20, 1, 2                  ; t>>1
    v_lshlrev_b32 v23, 6, v23
    v_and_b32 v25, 1, v20
    v_lshl_add_u32 v23, v25, 4, v23
    v_bfe_u32 v24, v20, 3, 1
    v_lshl_add_u32 {v(PV_MST)}, v24, 5, v23
    v_and_b32 v23, 7, v20
    v_lshlrev_b32 v23, 7, v23
    v_bfe_u32 v24, v20, 3, 1
    v_lshl_add_u32 v23, v24, 17, v23
    v_lshrrev_b32 v24, 4, v20
    v_add_u32 v24, 1, v24
    v_cmp_le_u32 vcc, 3, v24
    s_nop 1
    v_cndmask_b32 v24, v24, 0, vcc
    v_lshl_add_u32 v23, v24, 24, v23
    s_lshl_b32 {s(S_T0)}, {s(S_G)}, 14
    s_lshl_b32 {s(S_T1)}, {s(S_C)}, 10
    s_add_u32 {s(S_T0)}, {s(S_T0)}, {s(S_T1)}
    s_add_u32 {s(S_T0)}, {s(S_T0)}, {WS_QS}
    v_add_u32 {v(PV_PFA)}, {s(S_T0)}, v23
    s_lshl_b32 {s(S_T0)}, {s(S_W)}, 2
    s_add_u32 {s(S_T0)}, {s(S_T0)}, {LDS_FLG}
    v_mov_b32 {v(PV_FLGW)}, {s(S_T0)}
    ''')
    sel_init(a, PV_SEL, 20, 21, 22)
    a('s_waitcnt vmcnt(0)')
    for i in range(16): a(f'v_mov_b32 {v(PV_M+i)}, {v(32+i)}')

def gate_addr(a, d, add, tg):
    a(f's_add_u32 {s(S_T4)}, {s(S_S)}, {add}')
    a(f's_min_u32 {s(S_T4)}, {s(S_T4)}, 63')
    a(f's_cmp_ge_u32 {s(S_T4)}, {a.s0}')
    a(f's_cselect_b32 {s(tg)}, 12, 8')
    if a.scb < 64:
        a(f's_cmp_ge_u32 {s(S_T4)}, {a.scb}')
        a(f's_cselect_b32 {s(tg)}, 0, {s(tg)}')
    a(f's_and_b32 {s(d)}, {s(S_T4)}, 4')
    a(f's_lshr_b32 {s(S_T4)}, {s(S_T4)}, 3')
    a(f's_lshl_b32 {s(S_T4)}, {s(S_T4)}, 8')
    a(f's_add_u32 {s(d)}, {s(d)}, {s(S_T4)}')
    a(f's_add_u32 {s(d)}, {s(d)}, {s(S_CQG)}')

def p_gate(a, k):
    l = a.uid('gate')
    a(f's_bitcmp1_b32 {s(S_OK)}, {k}')
    a(f's_cbranch_scc1 {l}_ok')
    gate_addr(a, S_RDG, 1 + k, S_T2)
    a.label(l)
    a(f'buffer_load_dword {v(PV_T)}, off, {s(SRD_WS,4)}, {s(S_RDG)} sc1')
    a('s_waitcnt vmcnt(0)')
    a(f'v_readfirstlane_b32 {s(S_T4)}, {v(PV_T)}')
    a(f's_cmp_ge_u32 {s(S_T4)}, {s(S_T2)}')
    a(f's_cbranch_scc1 {l}_set')
    a('s_sleep 8')
    a(f's_sub_u32 {s(S_TO)}, {s(S_TO)}, 1')
    a(f's_cbranch_scc0 {l}')
    a(f's_mov_b32 {s(S_TO)}, 0')
    a.label(l + '_set')
    a(f's_bitset1_b32 {s(S_OK)}, {k}')
    a.label(l + '_ok')

def dma_list(a, m, vl16, st, S_KG=S_KG, S_KL=S_KL, hd=0):
    base = (WS_KS, WS_VS, WS_QS)[m] + 4096 * hd
    o = []
    for kt in range(2):
        for u in range(4):
            pre = f's_add_u32 m0, {s(S_KL)}, {8192*m + 4096*kt + 24576*hd}\ns_add_u32 {s(st)}, {s(S_KG)}, {base + 131072*kt}\n' if u == 0 else ''
            o.append(pre + f'buffer_load_dwordx4 {v(vl16)}, {s(SRD_WS,4)}, {s(st)} offen offset:{1024*u} sc1{a.bnt} lds')
    return o

def reg_list(a, m, reg, st):
    base = (WS_KS, WS_VS, WS_QS)[m]
    o = []
    for kt in range(2):
        for u in range(4):
            pre = f's_add_u32 {s(st+kt)}, {s(S_KG)}, {base + 131072*kt}\n' if u == 0 else ''
            o.append(pre + f'buffer_load_dwordx4 {v(reg+(kt*4+u)*4,4)}, {v(AV_L16)}, {s(SRD_WS,4)}, {s(st+kt)} offen offset:{1024*u} sc1{a.bnt}')
    return o

def p_segreduce(a, part=3):
    if part & 1: p_segcalc(a)
    if part & 2: p_segstore(a)

def p_segcalc(a):
    S1 = 48
    for ul in range(2):
        for rt in range(2):
            a(f'ds_read_b128 {v(PV_M+4*(2*ul+rt),4)}, {v(PV_SGR)} offset:{512*ul+256*rt}')
    a(f'v_xor_b32 {v(PV_SGR)}, 0x4000, {v(PV_SGR)}')
    for ul in range(2):
        D = 40 + 4 * ul
        a(f's_waitcnt lgkmcnt({2-2*ul})')
        a(f'v_mfma_f32_16x16x32_bf16 {v(D,4)}, {v(PV_SEL,4)}, {v(PV_M+8*ul,4)}, 0')
        a(f'v_mfma_f32_16x16x32_bf16 {v(D,4)}, {v(S1,4)}, {v(PV_M+8*ul+4,4)}, {v(D,4)}')
    a('s_nop 7')
    a('v_cvt_pk_bf16_f32 v40, v40, v41')
    a('v_cvt_pk_bf16_f32 v41, v42, v43')
    a('v_cvt_pk_bf16_f32 v42, v44, v45')
    a('v_cvt_pk_bf16_f32 v43, v46, v47')
    a('s_nop 1')
    a('v_permlane16_swap_b32 v40, v42')
    a('v_permlane16_swap_b32 v41, v43')
    a('s_nop 1')
    a('v_min_u32 v40, -2, v40')

def p_segstore(a):
    a(f'buffer_store_dwordx4 v[40:43], {v(PV_SPS)}, {s(SRD_WS,4)}, {s(S_SP)} offen sc1{a.spnt}')
    a(f's_add_u32 {s(S_SP)}, {s(S_SP)}, 65536')

def p_loop(a, loc, prof, done):
    LH = a.uid('ploopH')
    for i in range(24): a(f'v_mov_b32 {v(PV_ACC+i)}, 0')
    a(f'v_mov_b32 {v(PV_FV)}, 0')
    a('s_nop 1')
    if a.s1:
        LL = a.uid('ploopL')
        a(f's_branch {LL}_nc')
        p_body(a, loc, Prof(prof), done, LL, True, LH, True)
    else: a(f's_branch {LH}_nc')
    p_body(a, loc, Prof(prof), done, LH, False, None, not a.s1)

def p_body(a, loc, pf, done, L, light, nxt, entry):
    Lrm = L + '_rm'; Lrp = L + '_rp'
    mld = [f'buffer_load_dwordx4 {v(PV_M+4*j,4)}, {v(PV_L16)}, {s(SRD_WS,4)}, {s(S_MLD)} offen offset:{1024*j} sc1' for j in range(4)]
    mreg = lambda b: [PV_M + 4 * b]
    def mm(check):
        if check:
            a('s_waitcnt vmcnt(3)')
            for x in chk(mreg(0), PV_T, f'{Lrm}_0'): a(x)
            a.label(f'{Lrm}_0ok')
            pf.stamp(a, 'b0ok')
        for b in range(4):
            ms = [f'v_smfmac_f32_16x16x64_bf16 {v(PV_ACC+4*t,4)}, {v(PV_M+4*b,4)}, {v(pw(b,t),8)}, {v(PV_IDX)}' for t in range(4 if a.qkf else 6)]
            if check and b < 3:
                c = chk(mreg(b + 1), PV_T, f'{Lrm}_{b+1}')
                ms = ms[:a.mck] + [f's_waitcnt vmcnt({2-b})'] + c[:-1] + ms[a.mck:] + c[-1:]
            if b == 3:
                ms = ms[:1] + [f'ds_write_b32 {v(PV_FLGW)}, {v(PV_FV)} offset:32'] + ms[1:]
            for x in ms: a(x)
            if check and b < 3: a.label(f'{Lrm}_{b+1}ok')
    if a.al: a.raw(f'.p2align {a.al}')
    for i in range(a.alo): a('s_nop 0')
    a.label(L)
    pf.stamp(a, 'top')
    for i in range(24): a(f'v_mov_b32 {v(PV_ACC+i)}, 0')
    if light and a.jit: p_gate(a, 0)
    if a.md: a(f's_sleep {a.md}')
    for x in mld: a(x)
    mm(True)
    if entry:
        a(f's_branch {L}_mmd')
        a.label(L + '_nc')
        if pf.on:
            a(f's_memtime {s(S_PROF, 2)}'); a(f's_memtime {s(S_PROF+2, 2)}')
        mm(False)
        a.label(L + '_mmd')
    pf.stamp(a, 'mmdone')
    def wr(t):
        A = PV_ACC + 4 * t
        a(f'v_add_f32 {v(A)}, {v(A)}, {v(A+2)}'); a(f'v_add_f32 {v(A+1)}, {v(A+1)}, {v(A+3)}')
        a(f'ds_write2_b32 {v((PV_R1W, PV_R1W1, PV_R1W2)[t>>1])}, {v(A)}, {v(A+1)} offset0:{16*(t&1)} offset1:{16*(t&1)+40}')
    R = 32
    def add4(d, x):
        for e in range(4): a(f'v_add_f32 {v(d+e)}, {v(d+e)}, {v(x+e)}')
    def reduce(fill=()):
        for h in range(4):
            a(f'ds_read_b128 {v(R+4*h,4)}, {v(PV_R1R)} offset:{LDS_RED1+3840*h}')
        for x in fill: a(x)
        a('s_waitcnt lgkmcnt(2)')
        add4(R, R + 4)
        a('s_waitcnt lgkmcnt(0)')
        add4(R + 8, R + 12)
        add4(R, R + 8)
        a(f'v_cvt_pk_bf16_f32 v56, {v(R)}, {v(R+1)}')
        a(f'v_cvt_pk_bf16_f32 v57, {v(R+2)}, {v(R+3)}')
        a('v_min_u32 v56, -2, v56')
        a(f'buffer_store_dwordx2 v[56:57], {v(PV_QST)}, {s(SRD_WS,4)}, {s(S_QST)} offen{loc}')
    def qreset():
        ring(a, S_QRS, 2, 18, S_QO)
        a(f'buffer_store_dwordx2 {v(PV_NEG,2)}, {v(PV_QST)}, {s(SRD_WS,4)}, {s(S_QRS)} offen{loc}')
    if a.qkf:
        vm = [f'v_smfmac_f32_16x16x64_bf16 {v(PV_ACC+4*t,4)}, {v(PV_M+4*b,4)}, {v(pw(b,t),8)}, {v(PV_IDX)}' for b in range(4) for t in (4, 5)]
        a(f's_cmp_ge_u32 {s(S_W)}, 2')
        for x in vm[:2]: a(x)
        a('s_nop 1')
        for t in range(4): wr(t)
        for x in vm[2:4]: a(x)
        a('s_waitcnt lgkmcnt(0)')
        pf.stamp(a, 'b1rdy', -2)
        a('s_barrier')
        pf.stamp(a, 'b1')
        a(f's_cbranch_scc1 {L}_sk0')
        reduce(vm[4:])
        a(f's_branch {L}_sk0b')
        a.label(L + '_sk0')
        for x in vm[4:]: a(x)
        a('s_nop 6')
        a.label(L + '_sk0b')
        a(f's_cmp_lg_u32 {s(S_W)}, 2')
        wr(4); wr(5)
        a('s_waitcnt lgkmcnt(0)')
        a('s_barrier')
        a(f's_cbranch_scc1 {L}_sk2')
        reduce()
        a.label(L + '_sk2')
        a(f's_cmp_eq_u32 {s(S_W)}, 3')
        a(f's_cbranch_scc1 {L}_sk1')
        qreset()
    else:
        a(f's_cmp_eq_u32 {s(S_W)}, 3')
        a('s_nop 1')
        for t in range(6): wr(t)
        a('s_waitcnt lgkmcnt(0)')
        pf.stamp(a, 'b1rdy', -2)
        a('s_barrier')
        pf.stamp(a, 'b1')
        a(f's_cbranch_scc1 {L}_sk1')
        reduce()
        qreset()
    a.label(L + '_sk1')
    pf.stamp(a, 'qpub', -2)
    a('s_setprio 0')
    sc = light and a.scb < 64
    NU = 2 * (64 - a.scb)
    def sc_cond(lo, lab):
        a(f's_sub_u32 {s(S_T0)}, {s(S_S)}, {lo}')
        a(f's_cmp_ge_u32 {s(S_T0)}, {NU}')
        a(f's_cbranch_scc1 {lab}')
    if sc:
        assert a.sc0 + NU + 1 < a.s1 and a.sc0 + NU + 2 < 63 and a.sc0 + 4 < a.scb
        sc_cond(a.sc0 + 1, L + '_nsc')
        a(f's_setprio {a.scp}')
        a(f'v_add_u32 {v(PV_T)}, {s(S_XB)}, {v(PV_L16)}')
        if not a.xpos: a(f's_xor_b32 {s(S_XB)}, {s(S_XB)}, {s(S_XBX)}')
        rd = lambda k: f'ds_read_b128 {v(PV_M+4*(k&3),4)}, {v(PV_T)} offset:{1024*k}'
        for k in range(4): a(rd(k))
        for k in range(8):
            a(f's_waitcnt lgkmcnt({min(3, 7-k) if k < 4 or True else 0})' if k == 0 else f's_waitcnt lgkmcnt({min(2, 7-k)})')
            for t in range(6):
                d = v(PV_ACC + 4 * t, 4)
                a(f'v_mfma_f32_16x16x32_bf16 {d}, {v(PV_M+4*(k&3),4)}, {v(pw(k>>1,t)+4*(k&1),4)}, {"0" if k == 0 else d}')
                if t == 2 and 1 <= k and k + 3 < 8: a(rd(k + 3))
        a(f"""
        v_lshrrev_b32 {v(PV_M)}, 8, {v(PV_L16)}
        v_mul_u32_u24 {v(PV_M)}, 576, {v(PV_M)}
        v_bfe_u32 {v(PV_M+1)}, {v(PV_L16)}, 4, 4
        v_lshl_add_u32 {v(PV_M)}, {v(PV_M+1)}, 2, {v(PV_M)}
        s_mul_i32 {s(S_T0)}, {s(S_W)}, 6912
        s_add_u32 {s(S_T0)}, {s(S_T0)}, {LDS_SCP}
        v_add_u32 {v(PV_M)}, {s(S_T0)}, {v(PV_M)}
        v_add_u32 {v(PV_M+1)}, 2304, {v(PV_M)}
        v_add_u32 {v(PV_M+2)}, 4608, {v(PV_M)}
        """)
        for t in range(6):
            for i in (0, 2):
                a(f'ds_write2_b32 {v(PV_M+(t>>1))}, {v(PV_ACC+4*t+i)}, {v(PV_ACC+4*t+i+1)} offset0:{36*i+16*(t&1)} offset1:{36*i+36+16*(t&1)}')
        a('s_waitcnt lgkmcnt(0)')
        a('s_setprio 0')
        a.label(L + '_nsc')
    ring(a, S_MRS, 3, a.msh, S_MSO)
    mex = f's_mov_b64 exec, {s(S_MEX,2)}'
    for d in range(4): a(f'v_mov_b32 {v(44+d)}, -1')
    a(mex)
    a(f'buffer_store_dwordx4 v[44:47], {v(PV_MST)}, {s(SRD_WS,4)}, {s(S_MRS)} offen{loc}')
    a('s_mov_b64 exec, -1')
    if not light:
        for d in range(4): a(f'v_mov_b32_dpp {v(48+d)}, {v(PV_SEL+d)} row_ror:8 row_mask:0xf bank_mask:0xf')
    ring(a, S_PLD, 0, PSLOT, S_PO)
    ring(a, S_MST, 1, a.msh, S_MSO)
    ring(a, S_MLD, 1, a.msh, S_MO)
    ring(a, S_QST, 1, 18, S_QO)
    def seg(part):
        if 's' in a.abl: return
        Lh = a.uid('pnoseg')
        a(f's_cmp_eq_u32 {s(S_SP)}, {s(S_SP0)}')
        a(f's_cbranch_scc1 {Lh}')
        p_segreduce(a, part)
        a.label(Lh)
    def oflush(part):
        l = a.uid('ofl')
        a(f's_cmp_eq_u32 {s(S_OF)}, 0')
        a(f's_cbranch_scc1 {l}')
        if part == 1:
            a(f's_lshl_b32 {s(S_T0)}, {s(S_W)}, 10')
            a(f'v_add_u32 v39, {s(S_T0)}, {v(PV_L16)}')
            a(f'ds_read_b128 v[40:43], v39 offset:{LDS_SEG}')
        else:
            a(f's_lshl_b32 {s(S_T0)}, {s(S_S)}, 18')
            a(f's_add_u32 {s(S_T0)}, {s(S_T0)}, {s(S_OB)}')
            if 'o' not in a.abl: a(f'buffer_store_dwordx4 v[40:43], {v(PV_L16)}, {s(SRD_WS,4)}, {s(S_T0)} offen sc1')
            a(f's_mov_b32 {s(S_OF)}, 0')
        a.label(l)
    unit = a.s0 < a.s1
    if unit: oflush(1)
    if light:
        a(f"""
        s_cmp_ge_u32 {s(S_S)}, {a.s0}
        s_cbranch_scc1 {L}_nx
        v_mov_b32 v40, {v(PV_QST)}
        v_mov_b32 v42, v56
        v_mov_b32 v43, v57
        s_cmp_lg_u32 {s(S_W)}, 2
        s_cbranch_scc1 {L}_nx
        v_and_b32 v40, 0x60, {v(PV_L16)}
        v_lshlrev_b32 v40, 2, v40
        v_lshrrev_b32 v41, 3, {v(PV_L16)}
        v_and_b32 v41, 0x70, v41
        v_or_b32 v40, v40, v41
        v_bfe_u32 v41, {v(PV_L16)}, 4, 1
        v_lshl_or_b32 v40, v41, 3, v40
        s_lshl_b32 {s(S_T0)}, {s(S_J)}, 9
        s_add_u32 {s(S_T0)}, {s(S_T0)}, 4096
        v_add_u32 v40, {s(S_T0)}, v40
        s_mov_b32 vcc_lo, 0x55555555
        s_mov_b32 vcc_hi, 0x55555555
        v_cndmask_b32_dpp v42, v57, v56, vcc quad_perm:[1,0,3,2] row_mask:0xf bank_mask:0xf
        s_not_b64 vcc, vcc
        v_cndmask_b32_dpp v43, v56, v57, vcc quad_perm:[1,0,3,2] row_mask:0xf bank_mask:0xf
        """)
        a.label(L + '_nx')
    else:
        a(f's_cmp_eq_u32 {s(S_S)}, {a.last}')
        a(f's_cbranch_scc1 {L}_tail')
        seg(1)
    if not (light and a.jit): p_gate(a, 1 if light else 0)
    a(f'v_readfirstlane_b32 {s(S_T4)}, {v(PV_RDY)}')
    a(f's_lshr_b32 {s(S_OK)}, {s(S_OK)}, 1')
    a(f's_cmp_ge_u32 {s(S_T4)}, {s(S_RTG)}')
    a(f's_cselect_b32 {s(S_T4)}, 2, 0')
    a(f's_or_b32 {s(S_OK)}, {s(S_OK)}, {s(S_T4)}')
    a(f's_cmp_eq_u32 {s(S_W)}, 3')
    a(f's_cselect_b32 {s(S_T3)}, {s(S_T4)}, 0')
    gate_addr(a, S_RDY, 4, S_RTG)
    dl = []
    for m, ch in (((1, 'v'),) if a.hk and not light else ((0, 'k'), (1, 'v'))[:1 if light else 2]):
        if ch not in a.abl and not (light and a.lr & 2): dl += dma_list(a, m, PV_L16, S_T0)
    nd1 = a.ndl if light else a.nd1
    a(f's_setprio {a.fprio}')
    flag_wait(a, L + '_fs', PV_FLGR, 0, 32, S_T1, sl=a.fsl)
    pf.stamp(a, 'flag')
    a(f's_setprio {a.dprio}')
    for x in dl[:nd1]: a(x)
    def xdma(lo, hi, tag):
        if lo == hi: return
        sc_cond(a.sc0, L + tag)
        for k in range(lo, hi):
            if k == lo or k == 4:
                a(f's_add_u32 m0, {s(S_XB)}, {4096*(k>>2)}')
                a(f's_add_u32 {s(S_T0)}, {s(S_XG)}, {4096*(k>>2)}')
            a(f'buffer_load_dwordx4 {v(PV_L16)}, {s(SRD_WS,4)}, {s(S_T0)} offen offset:{1024*(k&3)} sc1 lds')
        if hi == 8: a(f's_add_u32 {s(S_XG)}, {s(S_XG)}, 32768')
        a.label(L + tag)
    if sc and a.xpos: xdma(0, a.nx1, '_x1')
    if light and a.ofd:
        if sc:
            a(f's_sub_u32 {s(S_T0)}, {s(S_S)}, {a.sc0}')
            a(f's_cmp_le_u32 {s(S_T0)}, {NU}')
            a(f's_cbranch_scc1 {L}_nofd')
        a(f's_sleep {a.ofd}')
        a.label(L + '_nofd')
    if 't' not in a.abl:
        a(f's_cmp_eq_u32 {s(S_T3)}, 0')
        a(f's_cbranch_scc1 {L}_nt')
        if light:
            a(f's_cmp_ge_u32 {s(S_S)}, {max(a.s0 - 3, 0)}')
            a('s_cselect_b32 exec_hi, 0xffff, 0')
        else: a('s_mov_b32 exec_hi, 0xffff')
        a(f'buffer_load_dword {v(PV_RDY)}, {v(PV_PFA)}, {s(SRD_WS,4)}, {s(S_TCH)} offen sc1')
        a('s_mov_b32 exec_hi, -1')
        if a.ctch:
            for n, (st, lab, nl) in enumerate(((a.s1 - 2, nxt, 18), (a.s1 - 2, 'ct_aH', 30)) if light else ((a.last - 2, 'ct_tail', 2), (a.last - 2, L + '_tail', 4))):
                a(f's_cmp_lg_u32 {s(S_S)}, {st}')
                a(f's_cbranch_scc1 {L}_nt')
                vcode_touch(a, lab, nl, 62, PV_L16, 38, PV_RDY)
        a.label(L + '_nt')
    if sc:
        a(f's_cmp_lg_u32 {s(S_W)}, 2')
        a(f's_cbranch_scc1 {L}_nxt')
        sc_cond(a.sc0 - 2, L + '_nxt')
        a(f's_lshl_b32 {s(S_T0)}, {s(S_T0)}, 15')
        a(f's_lshl_b32 {s(S_T1)}, {s(S_I)}, 10')
        a(f's_add_u32 {s(S_T0)}, {s(S_T0)}, {s(S_T1)}')
        a(f's_add_u32 {s(S_T0)}, {s(S_T0)}, {WS_XN2 + a.scb * 65536}')
        a(f'v_lshlrev_b32 v39, 3, {v(PV_L16)}')
        a('s_mov_b64 exec, 0xff')
        a(f'buffer_load_dword {v(PV_RDY)}, v39, {s(SRD_WS,4)}, {s(S_T0)} offen sc1')
        a('s_mov_b64 exec, -1')
        a.label(L + '_nxt')
    if unit: oflush(2)
    if light:
        if unit:
            a(f's_lshr_b32 {s(S_T0)}, {s(S_C)}, 3')
            a(f's_xor_b32 {s(S_T0)}, {s(S_T0)}, {s(S_S)}')
            a(f's_andn2_b32 {s(S_OF)}, 1, {s(S_T0)}')
            a(f's_cmp_ge_u32 {s(S_S)}, {a.s0}')
            a(f's_cselect_b32 {s(S_OF)}, {s(S_OF)}, 0')
            a(f's_cbranch_scc1 {L}_nx2')
        a(f's_cmp_eq_u32 {s(S_W)}, 3')
        a(f's_cbranch_scc1 {L}_nx2')
        if 'x' not in a.abl: a(f'buffer_store_dwordx2 v[42:43], v40, {s(SRD_WS,4)}, {s(S_KMX)} offen sc1')
        a.label(L + '_nx2')
        a(f's_add_u32 {s(S_KMX)}, {s(S_KMX)}, 262144')
    else: seg(2)
    if a.pgp:
        a(f's_or_b32 {s(S_T0)}, {s(S_I)}, {s(S_W)}')
        a(f's_cmp_lg_u32 {s(S_T0)}, 0')
        a(f's_cbranch_scc1 {L}_npg')
        a(f's_sub_u32 {s(S_T4)}, {s(S_S)}, 1')
        a(f's_cbranch_scc1 {L}_npg')
        a(f's_sub_u32 {s(S_T0)}, {s(S_T4)}, 1')
        a(f's_and_b32 {s(S_T0)}, {s(S_T0)}, 3')
        a(f's_cmp_ge_u32 {s(S_S)}, 58')
        a(f's_cselect_b32 {s(S_T0)}, 0, {s(S_T0)}')
        a(f's_cmp_lg_u32 {s(S_T0)}, 0')
        a(f's_cbranch_scc1 {L}_npg')
        a(f's_lshl_b32 {s(S_T0)}, {s(S_X)}, 7')
        a(f's_add_u32 {s(S_T0)}, {s(S_T0)}, {F.CS_TAB}')
        a(f'v_mov_b32 {v(PV_T)}, {s(S_T4)}')
        a('s_mov_b64 exec, 1')
        a(f'buffer_store_dword {v(PV_T)}, off, {s(SRD_WS,4)}, {s(S_T0)} sc1')
        a('s_mov_b64 exec, -1')
        a.label(L + '_npg')
    if a.rdp: a(f'buffer_load_dword {v(PV_RDY)}, off, {s(SRD_WS,4)}, {s(S_RDY)} sc1')
    pf.stamp(a, 'b2rdy')
    a('s_barrier')
    pf.stamp(a, 'b2')
    if a.dtim:
        a(f's_or_b32 {s(S_T0)}, {s(S_ID)}, {s(S_W)}')
        a(f's_and_b32 {s(S_T1)}, {s(S_S)}, 7')
        a(f's_or_b32 {s(S_T0)}, {s(S_T0)}, {s(S_T1)}')
        a(f's_cmp_lg_u32 {s(S_T0)}, 0')
        a(f's_cbranch_scc1 {L}_ndt')
        a('s_memrealtime s[96:97]')
        a(f's_lshr_b32 {s(S_T0)}, {s(S_S)}, 1')
        a('s_waitcnt lgkmcnt(0)')
        a(f'v_mov_b32 {v(PV_T)}, s96')
        a('s_mov_b64 exec, 1')
        a(f'buffer_store_dword {v(PV_T)}, off, {s(F.SRD_DBG,4)}, {s(S_T0)} offset:24')
        a('s_mov_b64 exec, -1')
        a.label(L + '_ndt')
    if not a.rdp: a(f'buffer_load_dword {v(PV_RDY)}, off, {s(SRD_WS,4)}, {s(S_RDY)} sc1')
    if sc:
        a(f's_cmp_eq_u32 {s(S_W)}, 3')
        a(f's_cbranch_scc1 {L}_nsr')
        sc_cond(a.sc0 + 1, L + '_nsr')
        a(f"""
        v_bfe_u32 v56, {v(PV_L16)}, 4, 4
        v_mul_u32_u24 v56, 144, v56
        v_lshrrev_b32 v57, 8, {v(PV_L16)}
        v_lshl_add_u32 v56, v57, 5, v56
        v_and_b32 v57, 1, v57
        s_mul_i32 {s(S_T0)}, {s(S_W)}, 2304
        s_add_u32 {s(S_T0)}, {s(S_T0)}, {LDS_SCP}
        v_add_u32 v56, {s(S_T0)}, v56
        v_sub_u32 {v(PV_T)}, 1, v57
        v_lshl_add_u32 {v(PV_T)}, {v(PV_T)}, 4, v56
        v_lshl_add_u32 v56, v57, 4, v56
        """)
        for h in range(4):
            a(f'ds_read_b128 {v(16+8*h,4)}, v56 offset:{6912*h}')
            a(f'ds_read_b128 {v(20+8*h,4)}, {v(PV_T)} offset:{6912*h}')
        a('s_waitcnt lgkmcnt(4)')
        for e in range(8): a(f'v_add_f32 {v(16+e)}, {v(16+e)}, {v(24+e)}')
        a('s_waitcnt lgkmcnt(0)')
        for e in range(8): a(f'v_add_f32 {v(32+e)}, {v(32+e)}, {v(40+e)}')
        for e in range(8): a(f'v_add_f32 {v(16+e)}, {v(16+e)}, {v(32+e)}')
        for d in range(4): a(f'v_cvt_pk_bf16_f32 {v(44+d)}, {v(16+2*d)}, {v(17+2*d)}')
        a(f'buffer_store_dwordx4 v[44:47], {v(PV_L16)}, {s(SRD_WS,4)}, {s(S_SCO)} offen{loc}')
        a(f's_add_u32 {s(S_SCO)}, {s(S_SCO)}, 131072')
        a(f's_branch {L}_nsr2')
        a.label(L + '_nsr')
        a(f's_sleep {a.scd}')
        a.label(L + '_nsr2')
        if a.xpos: xdma(a.nx1, 8, '_x2')
        a(f's_sleep {max(a.cdl - a.scd - a.scx, 0)}')
    if dl[nd1:]:
        if a.d2: a(f's_sleep {a.d2}')
        for x in dl[nd1:]: a(x)
    a(f's_add_u32 {s(S_S)}, {s(S_S)}, 1')
    a(f'v_mov_b32 {v(PV_FV)}, {s(S_S)}')
    a(f's_add_u32 {s(S_KG)}, {s(S_KG)}, 262144')
    a(f's_add_u32 {s(S_TCH)}, {s(S_TCH)}, 262144')
    if not light: a(f's_mov_b32 {s(S_SP0)}, 0')
    a('s_setprio 3')
    cd = 0 if sc else a.cdl if light else a.cdh if a.hk else a.cd
    if cd: a(f's_sleep {cd}')
    pf.stamp(a, 'poll')
    a.label(L + '_pagain')
    for i in range(2): a(f'buffer_load_dwordx4 {v(PV_M+4*i,4)}, {v(PV_L16)}, {s(SRD_WS,4)}, {s(S_PLD)} offen offset:{1024*i} sc1')
    D = 32
    a('s_waitcnt vmcnt(1)')
    a(f'v_mfma_f32_16x16x32_bf16 {v(D,4)}, {v(PV_SEL,4)}, {v(PV_M,4)}, 0')
    a('s_waitcnt vmcnt(0)')
    pf.stamp(a, 'p1')
    a(f'v_mfma_f32_16x16x32_bf16 {v(D,4)}, {v(PV_SEL,4)}, {v(PV_M+4,4)}, {v(D,4)}')
    for x in chk([PV_M, PV_M + 4], PV_T, Lrp): a(x)
    a.label(L + '_pgo')
    if light: a(f's_cmp_lt_u32 {s(S_S)}, {a.s1}')
    a(f's_nop {3 if light else 4}')
    a(f'v_cvt_pk_bf16_f32 v52, {v(D)}, {v(D+1)}')
    a(f'v_cvt_pk_bf16_f32 v53, {v(D+2)}, {v(D+3)}')
    a('s_nop 0')
    a('v_permlane16_swap_b32 v52, v54')
    a('v_permlane16_swap_b32 v53, v55')
    a(mex)
    a('v_min_u32 v52, -2, v52')
    a(f'buffer_store_dwordx4 v[52:55], {v(PV_MST)}, {s(SRD_WS,4)}, {s(S_MST)} offen{loc}')
    a('s_mov_b64 exec, -1')
    a(f'ds_write_b32 {v(PV_FLGW)}, {v(PV_FV)} offset:16')
    pf.stamp(a, 'mpub')
    if pf.on:
        a(f's_sub_u32 {s(S_S)}, {s(S_S)}, 1')
        pf.flush(a, 56, 'P')
        a(f's_add_u32 {s(S_S)}, {s(S_S)}, 1')
        if light: a(f's_cmp_lt_u32 {s(S_S)}, {a.s1}')
    if light:
        a(f's_cbranch_scc1 {L}')
        a(f's_branch {nxt}')
    else: a(f's_branch {L}')
    for b in range(4):
        spin_block(a, f'{Lrm}_{b}', mld[b:], mreg(b), PV_T, f'{Lrm}_{b}ok', f'{Lrm}_{b}ok')
    a.label(Lrp)
    if a.rsleep: a(f's_sleep {a.rsleep}')
    a(f's_sub_u32 {s(S_TO)}, {s(S_TO)}, 1')
    a(f's_cbranch_scc0 {L}_pagain')
    a(f's_mov_b32 {s(S_TO)}, 0')
    a(f's_branch {L}_pgo')
    if not light:
        a.label(L + '_tail')
        p_segreduce(a)
        a('s_barrier')
        p_segreduce(a)
        a(f's_branch {done}')

AV_L16, AV_PST, AV_MX, AV_T = 0, 1, 2, 3
AV_ONE = 4
AV_HALF = 8
AV_IDX = 166
AV_FLGR = 167
AV_VMW, AV_TRV, AV_TRM = 180, 181, 182
S_QM = 56
AV_S = 12
AV_O = 24
AV_VWM = 40
AV_Y, AV_X = 48, 64
AV_VWS = 80
AV_KS, AV_TB = 96, 128
AV_NEG, AV_R2W, AV_R2R, AV_SGW, AV_LB, AV_FLGW, AV_FV = 176, 160, 161, 162, 163, 164, 165
AV_PK = 168
AV_SEL = 184
AV_FT = 188
AV_WO = 192
def wo(u, ct): return AV_WO + (ct * 4 + u) * 4
def xk(u): return AV_Y + 4 * u

def tr_addr(a, vd, vl, rowbytes, T, hh, t1, t2):
    sh = rowbytes.bit_length() - 1
    a(f'''
    v_lshrrev_b32 {v(t1)}, 4, {v(vl)}
    v_and_b32 {v(t2)}, 1, {v(t1)}
    v_xor_b32 {v(t2)}, {hh}, {v(t2)}
    v_lshlrev_b32 {v(t2)}, 2, {v(t2)}
    v_lshl_add_u32 {v(t2)}, {v(t1)}, 3, {v(t2)}
    v_bfe_u32 {v(t1)}, {v(vl)}, 2, 2
    v_add_u32 {v(t2)}, {v(t2)}, {v(t1)}
    v_lshlrev_b32 {v(t2)}, {sh}, {v(t2)}
    v_and_b32 {v(t1)}, 3, {v(vl)}
    v_lshl_add_u32 {v(t2)}, {v(t1)}, 4, {v(t2)}
    v_and_b32 {v(t1)}, 1, {v(t1)}
    v_xor_b32 {v(t1)}, {T}, {v(t1)}
    v_lshl_add_u32 {v(vd)}, {v(t1)}, 3, {v(t2)}
    ''')

def vw_list(AV_TB):
    m = []
    for u in range(4):
        for kt in range(2):
            for ct in range(4):
                d = AV_Y + (kt * 4 + ct) * 4
                m.append(f'v_mfma_f32_16x16x32_bf16 {v(d,4)}, {v(AV_TB+(kt*4+u)*4,4)}, {v(wo(u,ct),4)}, {"0" if u==0 else v(d,4)}')
    return m
def vw_pack():
    o = []
    for ct in range(4):
        for kt in range(2):
            d = AV_Y + (kt * 4 + ct) * 4
            o.append(f'v_cvt_pk_bf16_f32 {v(AV_VWS+4*ct+2*kt)}, {v(d)}, {v(d+1)}')
            o.append(f'v_cvt_pk_bf16_f32 {v(AV_VWS+4*ct+2*kt+1)}, {v(d+2)}, {v(d+3)}')
    return o

def a_prologue(a):
    a(f'''
    v_and_b32 v20, 63, v0
    v_lshlrev_b32 {v(AV_L16)}, 4, v20
    s_lshl_b32 {s(S_T0)}, {s(S_H)}, 18
    s_lshl_b32 {s(S_T1)}, {s(S_C)}, 7
    s_add_u32 {s(S_T0)}, {s(S_T0)}, {s(S_T1)}
    s_lshl_b32 {s(S_T2)}, {s(S_T4)}, 13
    s_add_u32 {s(S_T2)}, {s(S_T2)}, 131072
    s_load_dwordx2 {s(SRD_T,2)}, s[0:1], {KA_WO}
    s_mov_b32 {s(SRD_T+2)}, {8*MB}
    s_mov_b32 {s(SRD_T+3)}, {SRD3}
    v_lshrrev_b32 v21, 3, v20
    v_and_b32 v22, 7, v20
    v_lshlrev_b32 v21, 11, v21
    v_lshl_add_u32 v21, v22, 4, v21
    ''')
    for T in range(2):
        for hh in range(2):
            tr_addr(a, 24 + T * 2 + hh, 20, 128, T, hh, 28, 29)
            a(f'v_add_u32 {v(24+T*2+hh)}, {s(S_T2)}, {v(24+T*2+hh)}')
    a('s_waitcnt lgkmcnt(0)')
    for n in range(8):
        a(f's_add_u32 m0, {s(S_T2)}, {n*1024}')
        a('s_nop 0')
        a(f'buffer_load_dwordx4 v21, {s(SRD_T,4)}, {s(S_T0)} offen{a.wnt[3]} lds')
        a(f's_add_u32 {s(S_T0)}, {s(S_T0)}, {8*2048}')
    for n in range(8):
        a(f'buffer_load_dwordx4 {v(AV_KS+4*n,4)}, v21, {s(SRD_T,4)}, {s(S_T0)} offen{a.wnt[3]}')
        a(f's_add_u32 {s(S_T0)}, {s(S_T0)}, {8*2048}')

def a_prologue2(a):
    a(f's_lshl_b32 {s(S_T2)}, {s(S_T4)}, 13')
    a(f's_add_u32 {s(S_T2)}, {s(S_T2)}, 131072')
    a(f'v_add_u32 v30, {s(S_T2)}, {v(AV_L16)}')
    for half in range(2):
        a(f's_waitcnt vmcnt({8 - 8*half})')
        if half:
            for n in range(8): a(f'ds_write_b128 v30, {v(AV_KS+4*n,4)} offset:{n*1024}')
            a('s_waitcnt lgkmcnt(0)')
        for uu in range(2):
            for p in range(2):
                for T in range(2):
                    for hh in range(2):
                        a(f'ds_read_b64_tr_b16 {v(wo(2*half+uu, 2*p+T)+2*hh,2)}, {v(24+T*2+hh)} offset:{uu*4096+p*64}')
            a('s_waitcnt lgkmcnt(0)')
    a(f'''
    v_lshrrev_b32 v21, 4, v20
    v_and_b32 v22, 2, v20
    v_cmp_eq_u32 {s(S_QM,2)}, 2, v22
    v_and_b32 v23, 15, v20
    v_lshlrev_b32 v21, 2, v21
    v_mov_b32 v8, 0x44444444
    v_mov_b32 v9, 0xeeeeeeee
    v_cndmask_b32 {v(AV_IDX)}, v8, v9, {s(S_QM,2)}
    v_mov_b32 v8, 0x3f803f80
    v_mov_b32 v9, 0
    v_mov_b32 v10, 0
    v_mov_b32 v11, 0
    v_mov_b32 v4, 0x3f803f80
    v_mov_b32 v5, 0x3f803f80
    v_mov_b32 v6, 0x3f803f80
    v_mov_b32 v7, 0x3f803f80
    s_mov_b32 {s(S_CST)}, 0x3e0293ee
    s_lshl_b32 {s(S_PRG)}, {s(S_I)}, 2
    s_add_u32 {s(S_PRG)}, {s(S_PRG)}, {s(S_T4)}
    s_lshl_b32 {s(S_CS)}, {s(S_X)}, 7
    s_add_u32 {s(S_CS)}, {s(S_CS)}, {F.CS_TAB}
    v_add_u32 {v(AV_LB)}, {s(S_KL)}, {v(AV_L16)}
    s_lshl_b32 {s(S_T0)}, {s(S_T4)}, 2
    s_add_u32 {s(S_T0)}, {s(S_T0)}, {LDS_FLG}
    v_mov_b32 {v(AV_FLGW)}, {s(S_T0)}
    v_mov_b32 {v(AV_FLGR)}, {LDS_FLG}
    ''')
    sel_init(a, AV_SEL, 20, 24, 25)
    a(f'''
    v_lshrrev_b32 v24, 4, v20                 ; g
    v_bfe_u32 v25, v20, 2, 2
    v_and_b32 v26, 1, v20
    v_lshl_add_u32 v26, v25, 1, v26           ; t
    v_lshlrev_b32 v26, 4, v26
    v_lshl_add_u32 v26, v24, 8, v26
    v_bfe_u32 v27, v20, 1, 1
    v_lshl_add_u32 v26, v27, 2, v26
    s_add_u32 {s(S_T0)}, {s(S_KL)}, 20480
    v_add_u32 {v(AV_VMW)}, {s(S_T0)}, v26
    v_and_b32 v26, 3, v20                     ; cc
    v_lshl_add_u32 v27, v24, 2, v25
    v_lshl_add_u32 v27, v26, 4, v27
    v_lshlrev_b32 v27, 4, v27
    v_add_u32 {v(AV_TRV)}, {s(S_KL)}, v27
    v_and_b32 v25, 1, v25
    v_lshl_add_u32 v25, v24, 1, v25
    v_lshl_add_u32 v25, v26, 3, v25
    v_lshlrev_b32 v25, 4, v25
    v_add_u32 {v(AV_TRM)}, {s(S_T0)}, v25
    s_bfe_u32 {s(S_T0)}, {s(S_C)}, 0x20001
    s_lshr_b32 {s(S_DW)}, {s(S_C)}, 3
    s_cmp_eq_u32 {s(S_T0)}, {s(S_T4)}
    s_cselect_b32 {s(S_DW)}, {2 if 'u' in a.abl else s(S_DW)}, 2
    s_and_b32 {s(S_QT)}, {s(S_C)}, 1
    s_lshl_b32 {s(S_QT)}, {s(S_QT)}, 17
    s_mov_b32 {s(S_U2)}, 0
    ''')
    for i in range(4):
        a(f'v_add_u32 v24, {i}, v21')
        a(f'v_cmp_gt_u32 {s(S_M0+2*i,2)}, v24, v23')

def a_static(a):
    a(f"""
    v_and_b32 v20, 63, v0
    v_lshrrev_b32 v21, 4, v20                 ; g
    v_bfe_u32 v22, v20, 1, 1
    v_xor_b32 v22, 1, v22                     ; p = !(n&2)
    v_lshl_add_u32 v23, v22, 2, v21           ; uu
    v_bfe_u32 v22, v20, 2, 2
    v_and_b32 v24, 1, v20
    v_lshl_add_u32 v22, v22, 1, v24           ; t
    v_lshl_add_u32 v23, v23, 3, v22
    v_and_b32 v22, 7, v20
    v_lshlrev_b32 v23, 4, v23
    s_lshl_b32 {s(S_T0)}, {s(S_T4)}, 10
    s_add_u32 {s(S_T0)}, {s(S_T0)}, {LDS_RED2}
    v_add_u32 {v(AV_R2W)}, {s(S_T0)}, v23
    v_and_b32 v24, 15, v20
    v_lshlrev_b32 v24, 4, v24                 ; n*16
    v_lshl_add_u32 v23, v21, 10, v24
    s_lshl_b32 {s(S_T0)}, {s(S_T4)}, 8
    s_add_u32 {s(S_T0)}, {s(S_T0)}, {LDS_RED2}
    v_add_u32 {v(AV_R2R)}, {s(S_T0)}, v23
    v_lshl_add_u32 v23, v21, 9, v24
    s_lshl_b32 {s(S_T0)}, {s(S_T4)}, 12
    s_add_u32 {s(S_T0)}, {s(S_T0)}, {LDS_SEG}
    v_add_u32 {v(AV_SGW)}, {s(S_T0)}, v23
    v_bfe_u32 v23, v20, 3, 1
    v_lshlrev_b32 v23, 10, v23
    v_lshl_add_u32 v23, v22, 4, v23
    v_lshlrev_b32 {v(AV_PST)}, 4, v20
    s_lshl_b32 {s(S_PO)}, {s(S_C)}, 14
    s_lshl_b32 {s(S_T0)}, {s(S_T4)}, 11
    s_add_u32 {s(S_PO)}, {s(S_PO)}, {s(S_T0)}
    s_lshl_b32 {s(S_T0)}, {s(S_G)}, 8
    s_add_u32 {s(S_PO)}, {s(S_PO)}, {s(S_T0)}
    s_add_u32 {s(S_PO)}, {s(S_PO)}, {WS_PART}
    """)
    for i in range(4): a(f'v_mov_b32 {v(AV_NEG+i)}, -1')

def exp_seq(r):
    seq = []
    n = len(r)
    seq.append(f'v_max3_f32 {v(AV_MX)}, {v(r[0])}, {v(r[1])}, {v(r[2])}')
    seq.append(f'v_max3_f32 {v(AV_T)}, {v(r[3])}, {v(r[4])}, {v(r[5])}')
    rr = r[6:]; k = 0
    while len(rr) >= 2:
        d = (AV_MX, AV_T)[k & 1]; k += 1
        seq.append(f'v_max3_f32 {v(d)}, {v(d)}, {v(rr[0])}, {v(rr[1])}'); rr = rr[2:]
    seq.append(f'v_max_f32 {v(AV_MX)}, {v(AV_MX)}, {v(AV_T)}')
    seq += red_gq(AV_MX, AV_T, 'v_max_f32')
    seq.append(f'v_mul_f32 {v(AV_MX)}, {s(S_CST)}, {v(AV_MX)}')
    fm = [f'v_fma_f32 {v(x)}, {v(x)}, {s(S_CST)}, -{v(AV_MX)}' for x in r]
    ex = [f'v_exp_f32 {v(x)}, {v(x)}' for x in r]
    seq += fm[:2]
    for i in range(n):
        if i + 2 < n: seq.append(fm[i + 2])
        seq.append(ex[i])
    return seq

def packP(S, t1zero=False):
    T0, T1, TM = S, S + 4, S + 8
    o = [f'v_cvt_pk_bf16_f32 {v(T0)}, {v(T0)}, {v(T0+1)}', f'v_cvt_pk_bf16_f32 {v(T0+1)}, {v(T0+2)}, {v(T0+3)}']
    if t1zero: o += [f'v_mov_b32 {v(T0+2)}, 0', f'v_mov_b32 {v(T0+3)}, 0']
    else: o += [f'v_cvt_pk_bf16_f32 {v(T0+2)}, {v(T1)}, {v(T1+1)}', f'v_cvt_pk_bf16_f32 {v(T0+3)}, {v(T1+2)}, {v(T1+3)}']
    o += [f'v_cvt_pk_bf16_f32 {v(TM)}, {v(TM)}, {v(TM+1)}', f'v_mov_b32 {v(TM+2)}, 0',
          f'v_mov_b32 {v(TM+1)}, {v(TM)}', f'v_mov_b32 {v(TM+3)}, 0']
    return o

def pv_seq(S, qt, rc):
    SM = S + 4
    o = [f'v_mfma_f32_16x16x32_bf16 {v(SM,4)}, {v(AV_ONE,4)}, {v(S,4)}, 0',
         f'v_mfma_f32_16x16x32_bf16 {v(SM,4)}, {v(AV_HALF,4)}, {v(S+8,4)}, {v(SM,4)}']
    for ct in range(4):
        o.append(f'v_mfma_f32_16x16x32_bf16 {v(AV_O+4*ct,4)}, {v(AV_VWS+4*ct,4)}, {v(S,4)}, 0')
        o.append(f'v_mfma_f32_16x16x32_bf16 {v(AV_O+4*ct,4)}, {v(AV_VWM+2*ct,4)}, {v(S+8,4)}, {v(AV_O+4*ct,4)}')
    o.append(f'v_rcp_f32 {v(rc)}, {v(SM)}')
    o.append('s_nop 0')
    P = AV_PK
    for ct in range(4):
        for i in range(4): o.append(f'v_mul_f32 {v(AV_O+4*ct+i)}, {v(AV_O+4*ct+i)}, {v(rc)}')
        o.append(f'v_cvt_pk_bf16_f32 {v(P+2*ct)}, {v(AV_O+4*ct)}, {v(AV_O+4*ct+1)}')
        o.append(f'v_cvt_pk_bf16_f32 {v(P+2*ct+1)}, {v(AV_O+4*ct+2)}, {v(AV_O+4*ct+3)}')
    for p in range(2): o.append(f'ds_write_b128 {v(AV_SGW)}, {v(P+4*p,4)} offset:{2048*p+256*qt}')
    return o

def a_loop(a, prof, done):
    LH = a.uid('aloopH')
    if a.s1 and a.swp:
        assert a.s1 % 2 == 0 and a.lr == 3 and a.vpos and not a.kpos
        L0, L1 = a.uid('aloopL'), a.uid('aloopM')
        a_body(a, Prof(prof), done, L0, True, None, L1)
        a_body(a, Prof(prof), done, L1, True, LH, L0, 1)
    elif a.s1: a_body(a, Prof(prof), done, a.uid('aloopL'), True, LH)
    a.label('ct_aH')
    a_body(a, Prof(prof), done, LH, False, None)

def a_body(a, pf, done, L, light, nxt, other=None, ph=0):
    Lr = L + '_rq'
    AV_KS, AV_TB = (128, 96) if ph else (96, 128)
    swp = other is not None
    SA = AV_S; SB = AV_X + 4
    if a.al: a.raw(f'.p2align {a.al}')
    for i in range(a.aloa): a('s_nop 0')
    a.label(L)
    pf.stamp(a, 'top')
    ring(a, S_QLD, 0, 18, S_QO)
    a(f's_add_u32 {s(S_QLD2)}, {s(S_QLD)}, 4096')
    ring(a, S_PSTC, 0, PSLOT, S_PO)
    ring(a, S_PRS, 2, PSLOT, S_PO)
    a(f'v_mov_b32 {v(AV_FV)}, {s(S_S)}')
    vw = vw_list(AV_TB)
    kr = [f'ds_read_b128 {v(AV_KS+4*i,4)}, {v(AV_LB)} offset:{1024*i}' for i in range(8)]
    vr = [f'ds_read_b128 {v(AV_TB+4*(kt*4+u),4)}, {v(AV_LB)} offset:{8192+1024*(kt*4+u)}' for u in range(4) for kt in range(2)]
    late = a.qkf == 2
    va = (lambda ct: (AV_X + 8, AV_X + 12, AV_PK, AV_PK + 4)[ct]) if late else (lambda ct: AV_O + 4 * ct)
    zo = [f'v_mov_b32 {v(va(i>>2)+(i&3))}, 0' for i in range(16)]
    unit = light and a.s0 < a.s1
    def part2(tag, AV_TB=AV_TB):
        a(f's_cmp_eq_u32 {s(S_U2)}, 0')
        a(f's_cbranch_scc1 {L}_{tag}')
        a(f's_mov_b32 {s(S_U2)}, 0')
        for p in range(4):
            for Tt in range(2):
                t = 2 * p + Tt
                for kt in range(2):
                    a(f'ds_read_b64_tr_b16 {v(AV_TB+4*t+2*kt,2)}, {v(AV_TRV)} offset:{4096*kt + 1024*p + 8*Tt}')
                a(f'ds_read_b64_tr_b16 {v(AV_X+2*t,2)}, {v(AV_TRM)} offset:{512*p + 8*Tt}')
        a(f'v_mov_b32 {v(AV_FT)}, 0xff61b1e6')
        a(f's_cmp_eq_u32 {s(S_QT)}, 0')
        for i in range(4):
            a(f's_cselect_b64 vcc, {s(S_M0+2*i,2)}, 0')
            a(f'v_cndmask_b32 {v(SA+i)}, {v(SA+i)}, {v(AV_FT)}, vcc')
            a(f's_cselect_b64 vcc, -1, {s(S_M0+2*i,2)}')
            a(f'v_cndmask_b32 {v(SA+4+i)}, {v(SA+4+i)}, {v(AV_FT)}, vcc')
        for x in exp_seq(list(range(SA, SA + 10))): a(x)
        pk = packP(SA); pk[6] = f'v_mov_b32 {v(SA+9)}, 0'
        for x in pk: a(x)
        a('s_waitcnt lgkmcnt(0)')
        a('s_nop 0')
        SM = SA + 4
        a(f'v_mfma_f32_16x16x32_bf16 {v(SM,4)}, {v(AV_ONE,4)}, {v(SA,4)}, 0')
        a(f'v_mfma_f32_16x16x32_bf16 {v(SM,4)}, {v(AV_ONE,4)}, {v(SA+8,4)}, {v(SM,4)}')
        oa = lambda t: (AV_O if t < 4 else AV_Y - 16) + 4 * t
        for t in range(8):
            a(f'v_mfma_f32_16x16x32_bf16 {v(oa(t),4)}, {v(AV_TB+4*t,4)}, {v(SA,4)}, 0')
            a(f'v_mfma_f32_16x16x32_bf16 {v(oa(t),4)}, {v(AV_X+2*t,4)}, {v(SA+8,4)}, {v(oa(t),4)}')
        a(f'v_rcp_f32 {v(AV_T)}, {v(SM)}')
        a('s_nop 0')
        for p in range(4):
            o = oa(2 * p)
            for i in range(8): a(f'v_mul_f32 {v(o+i)}, {v(o+i)}, {v(AV_T)}')
            for d in range(4): a(f'v_cvt_pk_bf16_f32 {v(o+d)}, {v(o+2*d)}, {v(o+2*d+1)}')
            a(f'ds_write_b128 {v(AV_L16)}, {v(o,4)} offset:{LDS_SEG + 1024*p}')
        a.label(f'{L}_{tag}')
    if light and a.vpos: a(f's_waitcnt vmcnt({0 if swp else 8 - a.ksp})')
    if unit:
        assert a.lr == 3
        a(f's_and_b32 {s(S_DU)}, {s(S_S)}, 1')
        a(f's_cmp_lt_u32 {s(S_S)}, {a.s0}')
        a(f's_cselect_b32 {s(S_DU)}, 3, {s(S_DU)}')
        a(f's_cmp_lg_u32 {s(S_DU)}, {s(S_DW)}')
        a(f's_cbranch_scc1 {L}_nd0')
        for i in range(8): a(f'ds_write_b128 {v(AV_LB)}, {v(AV_TB+4*i,4)} offset:{1024*i}')
        a.label(L + '_nd0')
    if light:
        if not a.lr & 1:
            for x in vr: a(x)
            for u in range(4): vw[8*u] = f's_waitcnt lgkmcnt({6 - 2*u})\n' + vw[8*u]
        for x in vw: a(x)
        if unit or late:
            a('s_nop 2')
            for x in vw_pack(): a(x)
            if unit and not a.p2e: part2('p2a')
            for x in zo: a(x)
        else:
            for x in zo: a(x)
            for x in vw_pack(): a(x)
        if not a.lr & 2:
            flag_wait(a, L + '_wkv', AV_FLGW, 16, AV_FT, S_T2, sl=a.kvsl, one=True)
            for x in kr: a(x)
        pf.stamp(a, 'kv', -3)
    else:
        flag_wait(a, L + '_wkv', AV_FLGW, 16, AV_FT, S_T2, sl=a.kvsl, one=True)
        pf.stamp(a, 'kv', -3)
        for x in vr + ([] if a.hk else kr): a(x)
        for u in range(4): vw[8*u] = f's_waitcnt lgkmcnt({(6 if a.hk else 14) - 2*u})\n' + vw[8*u]
        for x in vw[:a.vwp]: a(x)
    vp = light and a.vpos
    a('s_setprio 2')
    if not vp or swp: flag_wait(a, L + '_wm', AV_FLGW, 32, AV_FT, S_T2, sl=a.kvsl, one=True)
    if light and a.scb < 64 and not a.xpos:
        a(f's_sub_u32 {s(S_T0)}, {s(S_S)}, {a.sc0}')
        a(f's_cmp_ge_u32 {s(S_T0)}, {2 * (64 - a.scb)}')
        a(f's_cbranch_scc1 {L}_nxd')
        if vp and not swp: flag_wait(a, L + '_wm2', AV_FLGW, 32, AV_FT, S_T2, sl=a.kvsl, one=True)
        for hf in range(2):
            a(f's_add_u32 m0, {s(S_XB)}, {4096*hf}')
            a(f's_add_u32 {s(S_T0)}, {s(S_XG)}, {4096*hf}')
            for u in range(4): a(f'buffer_load_dwordx4 {v(AV_L16)}, {s(SRD_WS,4)}, {s(S_T0)} offen offset:{1024*u} sc1 lds')
        a(f's_xor_b32 {s(S_XB)}, {s(S_XB)}, {s(S_XBX)}')
        a(f's_add_u32 {s(S_XG)}, {s(S_XG)}, 32768')
        a.label(L + '_nxd')
    pf.stamp(a, 'fm', -3)
    if unit:
        a(f's_cmp_lg_u32 {s(S_DU)}, {s(S_DW)}')
        a(f's_cbranch_scc1 {L}_nd1')
        a(f's_add_u32 m0, {s(S_KL)}, 16384')
        a(f's_add_u32 {s(S_T0)}, {s(S_KG)}, {s(S_QT)}')
        a(f's_add_u32 {s(S_T0)}, {s(S_T0)}, {WS_QS}')
        for u in range(4): a(f'buffer_load_dwordx4 {v(AV_L16)}, {s(SRD_WS,4)}, {s(S_T0)} offen offset:{1024*u} sc1 lds')
        a.label(L + '_nd1')
    if light: a(f's_add_u32 {s(S_KG)}, {s(S_KG)}, 262144')
    if swp:
        for x in reg_list(a, 0, AV_TB, S_T0): a(x)
    if ('v' if light else 'q') not in a.abl and not vp:
        for x in (reg_list(a, 1, AV_TB, S_T0) if light and a.lr & 1 else dma_list(a, 1 if light else 2, AV_L16, S_T0)): a(x)
    if not light: a(f's_add_u32 {s(S_KG)}, {s(S_KG)}, 262144')
    if light: a('s_waitcnt lgkmcnt(0)')
    pf.stamp(a, 'b1rdy', -3)
    a('s_barrier')
    pf.stamp(a, 'b1')
    qr = [f'ds_read_b128 {v(AV_TB+4*i,4)}, {v(AV_LB)} offset:{16384+1024*i}' for i in range(8)]
    if not light:
        for x in vw[a.vwp:]: a(x)
        a('s_nop 2')
        for x in vw_pack(): a(x)
        for x in zo: a(x)
    if a.qkf: a('s_barrier')
    qd = a.qdl if light else a.qd
    if qd: a(f's_sleep {qd}')
    a('s_waitcnt lgkmcnt(0)')
    pf.stamp(a, 'poll')
    qm = [f'buffer_load_dwordx4 {v(AV_Y+4*u,4)}, {v(AV_L16)}, {s(SRD_WS,4)}, {s(S_QLD)} offen offset:{1024*u} sc1' for u in range(4)]
    qm += [f'buffer_load_dwordx4 {v(AV_X+4*u2,4)}, {v(AV_L16)}, {s(SRD_WS,4)}, {s(S_QLD2)} offen offset:{1024*u2} sc1' for u2 in range(2)]
    qreg = [[AV_Y + 4 * u + i for i in (0, 2)] for u in range(4)]
    vreg = [AV_X + i for i in range(0, 8, 2)]
    for x in qm[:4]: a(x)
    if not late:
        if a.vdel: a(f's_sleep {a.vdel}' if a.vdel > 0 else f's_nop {-a.vdel}')
        for x in qm[4:]: a(x)
    def crit_s(check, first=False):
        for u in range(4):
            if check: a(f's_waitcnt vmcnt({3-u if first and late and u <= a.vu else 5-u})')
            if first and u == 0: pf.stamp(a, 'z0')
            z = v(AV_Y + 4 * u, 4)
            for kt in range(2):
                d = SA + 4 * kt
                a(f'v_mfma_f32_16x16x32_bf16 {v(d,4)}, {v(AV_KS+(kt*4+u)*4,4)}, {z}, {"0" if u==0 else v(d,4)}')
            if check:
                c = chk(qreg[u], AV_T, f'{Lr}_{u}')
                for x in c[:-1]: a(x)
            a(f'v_mfma_f32_16x16x32_bf16 {v(SA+8,4)}, {z}, {z}, {"0" if u==0 else v(SA+8,4)}')
            if check: a(c[-1])
            if first and late and u == a.vu:
                for x in qm[4:]: a(x)
    crit_s(True, True)
    a.label(L + '_sdone')
    pf.stamp(a, 'sdone')
    if light: a('s_nop 1')
    else:
        a(f's_cmp_eq_u32 {s(S_S)}, {a.last}')
        a(f's_cbranch_scc1 {L}_lsk')
    vwm = [f'v_smfmac_f32_16x16x64_bf16 {v(va(ct),4)}, {v(AV_X+4*c2,4)}, {v(wo(2*c2,ct),8)}, {v(AV_IDX)}' for c2 in range(2) for ct in (0, 2, 1, 3)]
    vc = chk(vreg, AV_FT, f'{Lr}_v')
    M, T = v(AV_MX), v(AV_T)
    a(f"""
    ds_write_b32 {v(AV_FLGW)}, {v(AV_FV)}
    s_nop 0
    v_max3_f32 {M}, {v(SA)}, {v(SA+1)}, {v(SA+2)}
    v_max3_f32 {T}, {v(SA+3)}, {v(SA+4)}, {v(SA+5)}
    v_max3_f32 {M}, {M}, {v(SA+6)}, {v(SA+7)}
    v_max3_f32 {T}, {T}, {v(SA+8)}, {v(SA+9)}
    v_max_f32 {M}, {M}, {T}
    v_mov_b32 {T}, {M}
    s_nop 1
    v_permlane16_swap_b32 {T}, {M}
    v_max_f32 {M}, {M}, {T}
    v_mov_b32 {T}, {M}
    {'s_nop 1' if late else 's_waitcnt vmcnt(0)'}
    {'' if late else vc[0]}
    v_permlane32_swap_b32 {T}, {M}
    v_max_f32 {M}, {M}, {T}
    {'' if late else vc[1]}
    v_mul_f32 {M}, {s(S_CST)}, {M}
    {'' if late else vc[2]}
    """)
    r = list(range(SA, SA + 10))
    fm = [f'v_fma_f32 {v(x)}, {v(x)}, {s(S_CST)}, -{M}' for x in r]
    ex = [f'v_exp_f32 {v(x)}, {v(x)}' for x in r]
    a(fm[0]); a(fm[1])
    if late:
        for i in range(a.vi):
            a(fm[i + 2]); a(ex[i])
        a('s_waitcnt vmcnt(0)')
        for x in vc[:3]: a(x)
    a(vc[3])
    a.label(L + '_vok')
    pf.stamp(a, 'max', 3)
    vwc = []
    for ct in range(4):
        d = va(ct)
        vwc += [f'v_cvt_pk_bf16_f32 {v(AV_VWM+2*ct)}, {v(d)}, {v(d+1)}', f'v_cvt_pk_bf16_f32 {v(AV_VWM+2*ct+1)}, {v(d+2)}, {v(d+3)}']
    SM = SA + 4
    def mid2(kin, st):
        vw_ = list(vwm)
        for i in range(a.vi, 10):
            a(vw_.pop(0))
            if i + 2 < 10: a(fm[i + 2])
            a(ex[i])
            if kin: a(kin.pop(0))
        pk = packP(SA)
        for n, x in enumerate(pk[:6]):
            a(x)
            if n & 1 and vw_: a(vw_.pop(0))
        assert not vw_
        a(f'v_mfma_f32_16x16x32_bf16 {v(SM,4)}, {v(AV_ONE,4)}, {v(SA,4)}, 0')
        for x in pk[6:]: a(x)
        for n, ct in enumerate((0, 2, 1, 3)):
            a(f'v_mfma_f32_16x16x32_bf16 {v(AV_O+4*ct,4)}, {v(AV_VWS+4*ct,4)}, {v(SA,4)}, 0')
            if n == 1: a(f'v_mfma_f32_16x16x32_bf16 {v(SM,4)}, {v(AV_HALF,4)}, {v(SA+8,4)}, {v(SM,4)}')
            if kin: a(kin.pop(0))
        for ct in (0, 2, 1, 3): a(vwc[2*ct]); a(vwc[2*ct+1])
        assert not kin
    def mid(kin, st):
        if late: return mid2(kin, st)
        a(vwm[0])
        for i in range(10):
            if i + 2 < 10: a(fm[i + 2])
            a(ex[i])
            if i + 1 < 8: a(vwm[i + 1])
            if kin and (a.kpos + a.vpos == 1 or i & 1): a(kin.pop(0))
        if st: pf.stamp(a, 'exp', 3)
        pk = packP(SA)
        for x in pk[:4]: a(x)
        mA = f'v_mfma_f32_16x16x32_bf16 {v(SM,4)}, {v(AV_ONE,4)}, {v(SA,4)}, 0'
        mB = f'v_mfma_f32_16x16x32_bf16 {v(SM,4)}, {v(AV_HALF,4)}, {v(SA+8,4)}, {v(SM,4)}'
        for x in pk[4:6]: a(x)
        a(mA)
        for x in pk[6:]: a(x)
        for n, ct in enumerate((0, 2, 1, 3)):
            a(vwc[2*ct]); a(vwc[2*ct+1])
            if n == 0: a(mB)
            a(f'v_mfma_f32_16x16x32_bf16 {v(AV_O+4*ct,4)}, {v(AV_VWS+4*ct,4)}, {v(SA,4)}, 0')
            if kin: a(kin.pop(0))
        assert not kin
    kp = light and a.lr & 2 and a.kpos and 'k' not in a.abl
    assert not (kp and vp)
    ks = a.ksp if vp and not swp else 0
    if (kp or swp or ks) and unit:
        a(f's_cmp_eq_u32 {s(S_DU)}, {s(S_DW)}')
        a(f's_cbranch_scc1 {L}_midD')
    mid(reg_list(a, 0, AV_KS, S_T0) if kp else reg_list(a, 1, AV_KS if swp else AV_TB, S_T0) + reg_list(a, 0, AV_KS, S_T2)[:ks] if vp else [], True)
    a.label(L + '_midE')
    a(f's_mov_b64 vcc, {s(S_QM,2)}')
    a(f'v_rcp_f32 {T}, {v(SM)}')
    for ct in (0, 2, 1, 3):
        a(f'v_mfma_f32_16x16x32_bf16 {v(AV_O+4*ct,4)}, {v(AV_VWM+2*ct,4)}, {v(SA+8,4)}, {v(AV_O+4*ct,4)}')
    pf.stamp(a, 'pv', 3)
    qp = 'quad_perm:[2,3,2,3] row_mask:0xf bank_mask:0xf'
    a(f'v_mov_b32_dpp {T}, {T} {qp}')
    a('s_nop 4')
    for h in range(2):
        for i in range(4*h, 4*h+4): a(f'v_cndmask_b32_dpp {v(AV_O+i)}, {v(AV_O+8+i)}, {v(AV_O+i)}, vcc {qp}')
    for i in range(8): a(f'v_mul_f32 {v(AV_O+i)}, {v(AV_O+i)}, {T}')
    for d in range(4): a(f'v_cvt_pk_bf16_f32 {v(AV_PK+d)}, {v(AV_O+2*d)}, {v(AV_O+2*d+1)}')
    a(f'ds_write_b128 {v(AV_R2W)}, {v(AV_PK,4)}')
    a('s_waitcnt lgkmcnt(0)')
    pf.stamp(a, 'b2rdy')
    a('s_barrier')
    pf.stamp(a, 'b2')
    a(f'ds_read_b128 {v(AV_PK+4,4)}, {v(AV_R2R)}')
    a('s_waitcnt lgkmcnt(0)')
    a(f'v_mfma_f32_16x16x32_bf16 {v(AV_O,4)}, {v(AV_SEL,4)}, {v(AV_PK+4,4)}, 0')
    a('s_nop 7')
    a(f'v_cvt_pk_bf16_f32 {v(AV_PK)}, {v(AV_O)}, {v(AV_O+1)}')
    a(f'v_cvt_pk_bf16_f32 {v(AV_PK+1)}, {v(AV_O+2)}, {v(AV_O+3)}')
    a('s_nop 0')
    a(f'v_permlane16_swap_b32 {v(AV_PK)}, {v(AV_PK+2)}')
    a(f'v_permlane16_swap_b32 {v(AV_PK+1)}, {v(AV_PK+3)}')
    a('s_mov_b64 exec, 0xffff')
    a(f'v_min_u32 {v(AV_PK)}, -2, {v(AV_PK)}')
    a(f'buffer_store_dwordx4 {v(AV_PK,4)}, {v(AV_PST)}, {s(SRD_WS,4)}, {s(S_PSTC)} offen sc1')
    a('s_setprio 0')
    pf.stamp(a, 'ppub')
    a(f'buffer_store_dwordx4 {v(AV_NEG,4)}, {v(AV_PST)}, {s(SRD_WS,4)}, {s(S_PRS)} offen sc1')
    a('s_mov_b64 exec, -1')
    l = a.uid('pg')
    if a.pgp: a(f's_branch {l}')
    a(f's_cmp_lg_u32 {s(S_PRG)}, 0')
    a(f's_cbranch_scc1 {l}')
    a(f's_sub_u32 {s(S_T4)}, {s(S_S)}, 1')
    a(f's_cbranch_scc1 {l}')
    a(f's_sub_u32 {s(S_T0)}, {s(S_T4)}, 1')
    a(f's_and_b32 {s(S_T0)}, {s(S_T0)}, 3')
    a(f's_cmp_ge_u32 {s(S_S)}, 58')
    a(f's_cselect_b32 {s(S_T0)}, 0, {s(S_T0)}')
    a(f's_cmp_lg_u32 {s(S_T0)}, 0')
    a(f's_cbranch_scc1 {l}')
    a(f'v_mov_b32 {v(AV_T)}, {s(S_T4)}')
    a('s_mov_b64 exec, 1')
    a(f'buffer_store_dword {v(AV_T)}, off, {s(SRD_WS,4)}, {s(S_CS)} sc1')
    a('s_mov_b64 exec, -1')
    a.label(l)
    if unit:
        a(f's_cmp_lg_u32 {s(S_DU)}, {s(S_DW)}')
        a(f's_cbranch_scc1 {L}_nd2')
        for u in range(4): a(f'ds_read_b128 {v(AV_O+4*u,4)}, {v(AV_LB)} offset:{16384+1024*u}')
        for c2 in range(2):
            for i in range(4): a(f'ds_write_b32 {v(AV_VMW)}, {v(AV_X+4*c2+i)} offset:{1024*c2 + 128*(i>>1) + 8*(i&1)}')
        a(f's_mov_b32 {s(S_U2)}, 1')
        for u in range(4):
            a(f's_waitcnt lgkmcnt({8+3-u})')
            q = v(AV_O + 4 * u, 4)
            for kt in range(2): a(f'v_mfma_f32_16x16x32_bf16 {v(SA+4*kt,4)}, {v(AV_KS+(kt*4+u)*4,4)}, {q}, {"0" if u==0 else v(SA+4*kt,4)}')
            a(f'v_mfma_f32_16x16x32_bf16 {v(SA+8,4)}, {v(xk(u),4)}, {q}, {"0" if u==0 else v(SA+8,4)}')
        a('s_waitcnt lgkmcnt(0)')
        a('s_nop 3')
        if a.p2e:
            assert not (a.kpos or swp or ks)
            a('s_nop 3')
            part2('p2e', AV_KS)
            a('s_nop 3')
        if a.kpos or swp:
            for x in reg_list(a, 1 if swp else 0, AV_KS, S_T0): a(x)
        if ks:
            for x in reg_list(a, 0, AV_KS, S_T2)[:ks]: a(x)
        a.label(L + '_nd2')
    if light:
        if a.lr & 2 and 'k' not in a.abl and not a.kpos and not swp:
            if a.kdl: a(f's_sleep {a.kdl}')
            assert ks in (0, 4)
            for x in reg_list(a, 0, AV_KS, S_T2)[ks:]: a(x)
        pf.stamp(a, 'bg')
        pf.flush(a, AV_MX, 'A')
        a(f's_add_u32 {s(S_S)}, {s(S_S)}, 1')
        if swp and not ph: a(f's_branch {other}')
        if swp: AV_KS, AV_TB = AV_TB, AV_KS
        a(f's_cmp_lt_u32 {s(S_S)}, {a.s1}')
        a(f's_cbranch_scc1 {other or L}')
        a('s_waitcnt vmcnt(0)')
        for i in range(8):
            if a.lr & 1: a(f'ds_write_b128 {v(AV_LB)}, {v(AV_TB+4*i,4)} offset:{8192+1024*i}')
        if unit and not a.p2e:
            a('s_waitcnt lgkmcnt(0)')
            part2('p2b', AV_TB)
        for i in range(8):
            if a.lr & 2 and not a.hk: a(f'ds_write_b128 {v(AV_LB)}, {v(AV_KS+4*i,4)} offset:{1024*i}')
        a('s_waitcnt lgkmcnt(0)')
        a(f's_branch {nxt or L}')
        if swp: AV_KS, AV_TB = AV_TB, AV_KS
    else:
        a.label(L + '_lskb')
        a(f'v_mov_b32 {v(AV_X)}, 0xff61b1e6')
        def s_mf(qt, S):
            m = []
            for u in range(4):
                q = v(AV_TB + (qt * 4 + u) * 4, 4)
                for kt in range(qt + 1):
                    d = S + 4 * kt
                    m.append(f'v_mfma_f32_16x16x32_bf16 {v(d,4)}, {v(AV_KS+(kt*4+u)*4,4)}, {q}, {"0" if u==0 else v(d,4)}')
                m.append(f'v_mfma_f32_16x16x32_bf16 {v(S+8,4)}, {v(xk(u),4)}, {q}, {"0" if u==0 else v(S+8,4)}')
            return m
        bg = qr + ['s_waitcnt lgkmcnt(4)'] + s_mf(0, SA) + ['s_waitcnt lgkmcnt(0)'] + s_mf(1, SB)
        seq = [f'v_cndmask_b32 {v(SA+i)}, {v(SA+i)}, {v(AV_X)}, {s(S_M0+2*i,2)}' for i in range(4)]
        seq += exp_seq([SA + i for i in range(4)] + [SA + 8, SA + 9]) + packP(SA, True)
        if a.hk: seq = merge_fill(seq, reg_list(a, 0, AV_KS, S_T0), every=a.hk, start=3)
        bg += seq + ['s_nop 1']
        pv0 = pv_seq(SA, 0, AV_X + 2)
        seq = [f'v_cndmask_b32 {v(SB+4+i)}, {v(SB+4+i)}, {v(AV_X)}, {s(S_M0+2*i,2)}' for i in range(4)]
        seq += exp_seq(list(range(SB, SB + 10))) + packP(SB)
        seq = merge_fill(seq, pv0[:10], every=2, start=0)
        bg += seq + pv0[10:] + pv_seq(SB, 1, AV_T)
        if 'b' in a.abl: bg = []
        for x in bg: a(x)
        a(f'v_xor_b32 {v(AV_SGW)}, 0x4000, {v(AV_SGW)}')
        pf.stamp(a, 'bg')
        pf.flush(a, AV_MX, 'A')
        a(f's_add_u32 {s(S_S)}, {s(S_S)}, 1')
        a(f's_cmp_le_u32 {s(S_S)}, {a.last}')
        a(f's_cbranch_scc1 {L}')
        a('s_waitcnt lgkmcnt(0)')
        a('s_barrier')
        a('s_waitcnt vmcnt(0)')
        a(f's_branch {done}')
    if (kp or swp or ks) and unit:
        a.label(L + '_midD')
        mid(reg_list(a, 1, AV_TB, S_T0) if ks else [], False)
        a(f's_branch {L}_midE')
    for i in range(4):
        spin_block(a, f'{Lr}_{i}', qm[i:], qreg[i], AV_T, L + '_again', L + '_nochk')
    a.label(L + '_again')
    crit_s(True)
    a(f's_branch {L}_sdone')
    def vretry(lab, ok):
        a.label(lab)
        a(f's_sub_u32 {s(S_TO)}, {s(S_TO)}, 1')
        a(f's_cbranch_scc1 {lab}g')
        for x in qm[4:]: a(x)
        a('s_waitcnt vmcnt(0)')
        for x in chk(vreg, AV_FT, lab): a(x)
        a(f's_branch {ok}')
        a.label(lab + 'g')
        a(f's_mov_b32 {s(S_TO)}, 0')
        a(f's_branch {ok}')
    vretry(f'{Lr}_v', L + '_vok')
    a.label(L + '_nochk')
    crit_s(False)
    a('s_nop 1')
    a(f's_branch {L}_sdone')
    if light: return
    vretry(f'{Lr}_v2', L + '_lsk3')
    a.label('ct_tail')
    a.label(f'{L}_lsk')
    a(f's_cmp_lg_u32 {s(S_PRG)}, 0')
    a(f's_cbranch_scc1 {L}_lsk2')
    a(f'v_mov_b32 {v(AV_T)}, {a.last - 1}')
    a('s_mov_b64 exec, 1')
    a(f'buffer_store_dword {v(AV_T)}, off, {s(SRD_WS,4)}, {s(S_CS)} sc1')
    a('s_mov_b64 exec, -1')
    a.label(f'{L}_lsk2')
    a('s_waitcnt vmcnt(0)')
    for x in chk(vreg, AV_FT, f'{Lr}_v2'): a(x)
    a.label(f'{L}_lsk3')
    for x in vwm: a(x)
    a('s_nop 7')
    a('s_nop 1')
    for x in vwc: a(x)
    a('s_waitcnt lgkmcnt(0)')
    a(f's_branch {L}_lskb')

def emit_chain(a, done, prof=False):
    if prof: a('s_memrealtime s[94:95]')
    a(f"""
    s_lshl_b32 {s(S_ID)}, {s(S_X)}, 5
    s_add_u32 {s(S_ID)}, {s(S_ID)}, {s(S_I)}
    s_lshr_b32 {s(S_H)}, {s(S_ID)}, 2
    s_lshr_b32 {s(S_G)}, {s(S_ID)}, 4
    s_and_b32 {s(S_C)}, {s(S_I)}, 15
    s_and_b32 {s(S_J)}, {s(S_I)}, 3
    s_mov_b32 {s(S_S)}, 0
    s_mov_b32 {s(S_TO)}, {TIMEOUT}
    s_mov_b32 s100, {TIMEOUT}
    s_getreg_b32 {s(S_X1)}, hwreg(HW_REG_XCC_ID)
    s_and_b32 {s(S_X1)}, {s(S_X1)}, 15
    s_mul_i32 {s(S_T2)}, {s(S_X1)}, {s(S_X1)}
    s_lshl_b32 {s(S_T2)}, {s(S_T2)}, 18
    s_lshl_b32 {s(S_X1)}, {s(S_X1)}, 8
    s_add_u32 {s(S_X1)}, {s(S_X1)}, {s(S_T2)}
    s_add_u32 {s(S_X1)}, {s(S_X1)}, 1
    s_lshl_b32 {s(S_CQG)}, {s(S_G)}, 4
    s_add_u32 {s(S_CQG)}, {s(S_CQG)}, {CQ_TAB}
    s_and_b32 {s(S_T4)}, {s(S_W)}, 3
    s_mul_i32 {s(S_KL)}, {s(S_T4)}, 24576
    s_add_u32 {s(S_KL)}, {s(S_KL)}, {LDS_BULK}
    s_lshl_b32 {s(S_KG)}, {s(S_G)}, 2
    s_add_u32 {s(S_KG)}, {s(S_KG)}, {s(S_T4)}
    s_lshl_b32 {s(S_KG)}, {s(S_KG)}, 12
    s_add_u32 {s(S_XB)}, {s(S_KL)}, 8192
    s_bfe_u32 {s(S_T0)}, {s(S_C)}, 0x20001
    s_cmp_eq_u32 {s(S_T0)}, {s(S_T4)}
    s_cselect_b32 {s(S_XBX)}, 20480, {s(S_KL)}
    s_xor_b32 {s(S_XBX)}, {s(S_XBX)}, {s(S_XB)}
    s_lshl_b32 {s(S_XG)}, {s(S_T4)}, 13
    s_add_u32 {s(S_XG)}, {s(S_XG)}, {WS_XN2 + a.scb * 65536}
    s_lshl_b32 {s(S_SCO)}, {s(S_T4)}, 24
    s_lshl_b32 {s(S_T0)}, {s(S_ID)}, 10
    s_add_u32 {s(S_SCO)}, {s(S_SCO)}, {s(S_T0)}
    s_add_u32 {s(S_SCO)}, {s(S_SCO)}, {WS_QS + a.scb * 262144}
    s_cmp_ge_u32 {s(S_W)}, 4
    s_cbranch_scc1 ch_a_pro
    s_add_u32 {s(S_KG)}, {s(S_KG)}, 262144
    s_lshl_b32 {s(S_QO)}, {s(S_H)}, 13
    s_add_u32 {s(S_QO)}, {s(S_QO)}, {WS_QKV}
    s_lshl_b32 {s(S_T0)}, {s(S_I)}, 1
    s_and_b32 {s(S_T1)}, {s(S_W)}, 1
    s_add_u32 {s(S_T0)}, {s(S_T0)}, {s(S_T1)}
    s_lshl_b32 {s(S_T0)}, {s(S_T0)}, 1       ; first u
    s_cmp_lt_u32 {s(S_W)}, 2
    s_cselect_b32 {s(S_MEX)}, 0xffff, 0
    s_mov_b32 {s(S_MEX+1)}, 0
    s_lshr_b32 {s(S_T1)}, {s(S_T0)}, 1
    s_and_b32 {s(S_T2)}, {s(S_T0)}, 1
    s_lshl_b32 {s(S_T3)}, {s(S_X)}, 14
    s_add_u32 {s(S_T3)}, {s(S_T3)}, {WS_MEM}
    s_lshl_b32 {s(S_MO)}, {s(S_W)}, 12
    s_add_u32 {s(S_MO)}, {s(S_MO)}, {s(S_T3)}
    s_lshl_b32 {s(S_MSO)}, {s(S_T1)}, 8
    s_add_u32 {s(S_MSO)}, {s(S_MSO)}, {s(S_T3)}
    s_lshl_b32 {s(S_T3)}, {s(S_T2)}, 5
    s_add_u32 {s(S_MSO)}, {s(S_MSO)}, {s(S_T3)}
    s_lshr_b32 {s(S_PO)}, {s(S_T0)}, 3
    s_lshl_b32 {s(S_PO)}, {s(S_PO)}, 14
    s_and_b32 {s(S_T3)}, {s(S_T0)}, 7
    s_lshl_b32 {s(S_T3)}, {s(S_T3)}, 10
    s_add_u32 {s(S_PO)}, {s(S_PO)}, {s(S_T3)}
    s_add_u32 {s(S_PO)}, {s(S_PO)}, {WS_PART}
    s_lshl_b32 {s(S_SP)}, {s(S_G)}, 22
    s_lshl_b32 {s(S_T3)}, {s(S_C)}, 11
    s_add_u32 {s(S_SP)}, {s(S_SP)}, {s(S_T3)}
    s_lshl_b32 {s(S_T3)}, {s(S_W)}, 9
    s_add_u32 {s(S_SP)}, {s(S_SP)}, {s(S_T3)}
    s_add_u32 {s(S_SP)}, {s(S_SP)}, {WS_SP + a.s1 * 65536}
    s_lshl_b32 {s(S_KMX)}, {s(S_H)}, 13
    s_add_u32 {s(S_KMX)}, {s(S_KMX)}, {WS_KM}
    s_mov_b32 {s(S_QST)}, {s(S_QO)}
    s_mov_b32 {s(S_SP0)}, {s(S_SP)}
    s_mov_b32 {s(S_OK)}, 2
    s_mov_b32 {s(S_RTG)}, 0
    s_mov_b32 {s(S_OF)}, 0
    s_bfe_u32 {s(S_T0)}, {s(S_C)}, 0x20001
    s_lshl_b32 {s(S_OB)}, {s(S_G)}, 2
    s_add_u32 {s(S_OB)}, {s(S_OB)}, {s(S_T0)}
    s_lshl_b32 {s(S_OB)}, {s(S_OB)}, 2
    s_add_u32 {s(S_OB)}, {s(S_OB)}, {s(S_W)}
    s_lshl_b32 {s(S_OB)}, {s(S_OB)}, 10
    s_and_b32 {s(S_T0)}, {s(S_C)}, 1
    s_lshl_b32 {s(S_T0)}, {s(S_T0)}, 17
    s_add_u32 {s(S_OB)}, {s(S_OB)}, {s(S_T0)}
    s_add_u32 {s(S_OB)}, {s(S_OB)}, {WS_OO - 262144}
    s_mov_b32 {s(S_TCH)}, {3 * 262144}
    """)
    p_prologue(a)
    for i in range(4): a(f'v_mov_b32 {v(52+i)}, -1')
    for sg in range(64 - NTAIL, 64):
        a(f's_add_u32 {s(S_T0)}, {s(S_SP)}, {(sg - a.s1)*65536}')
        a(f'buffer_store_dwordx4 v[52:55], {v(PV_SPS)}, {s(SRD_WS,4)}, {s(S_T0)} offen sc1')
    if prof: a('s_memrealtime s[96:97]')
    a(f's_lshl_b32 {s(S_X1)}, {s(S_X1)}, 5')
    a('s_barrier')
    a(f'ds_write_b32 {v(PV_FLGW)}, {v(PV_NEG)}')
    a(f'ds_write_b32 {v(PV_FLGW)}, {v(PV_NEG)} offset:16')
    a(f'ds_write_b32 {v(PV_FLGW)}, {v(PV_NEG)} offset:32')
    a(f'ds_write_b32 {v(PV_FLGW)}, {v(PV_NEG)} offset:48')
    a(f'v_mov_b32 {v(PV_RDY)}, 12')
    a(f"""
    v_mov_b32 v56, {LDS_PUB}
    s_waitcnt lgkmcnt(0)
    s_barrier
    ds_read_b64 v[32:33], v56
    s_waitcnt lgkmcnt(0)
    v_cmp_ne_u32 vcc, {s(S_X1)}, v32
    s_setprio 3
    v_readfirstlane_b32 {s(S_T0)}, v33
    s_add_u32 {s(S_PO)}, {s(S_PO)}, {s(S_T0)}
    s_cbranch_vccnz ch_p_slow
    """)
    if prof:
        a(f"""
        v_mov_b32 v33, {s(S_T0)}
        s_memrealtime s[98:99]
        s_waitcnt lgkmcnt(0)
        s_lshl_b32 {s(S_T0)}, {s(S_ID)}, 3
        s_add_u32 {s(S_T0)}, {s(S_T0)}, {s(S_W)}
        s_lshl_b32 {s(S_T0)}, {s(S_T0)}, 12
        s_add_u32 {s(S_T0)}, {s(S_T0)}, {WS_YP + 63*64}
        v_mov_b32 v56, s94
        v_mov_b32 v57, s96
        v_mov_b32 v32, s98
        s_mov_b64 exec, 1
        buffer_store_dwordx2 v[56:57], off, {s(SRD_WS,4)}, {s(S_T0)}
        buffer_store_dwordx2 v[32:33], off, {s(SRD_WS,4)}, {s(S_T0)} offset:8
        s_mov_b64 exec, -1
        s_nop 1
        """)
    if a.force_slow: a('s_branch ch_p_slow')
    p_loop(a, '', prof, done)
    a.label('ch_p_slow')
    p_loop(a, ' sc1', prof, done)
    a.label('ch_a_pro')
    a(f"""
    s_sub_u32 {s(S_T4)}, {s(S_W)}, 4
    s_lshl_b32 {s(S_H)}, {s(S_G)}, 2
    s_add_u32 {s(S_H)}, {s(S_H)}, {s(S_T4)}
    s_lshl_b32 {s(S_QO)}, {s(S_H)}, 13
    s_add_u32 {s(S_QO)}, {s(S_QO)}, {WS_QKV}
    """)
    if a.rot:
        a(f's_cmp_lg_u32 {s(S_W)}, 7')
        a('s_cbranch_scc1 ch_nrp')
        a.rot_poll(131072 + 64, 27, 28)
        a.label('ch_nrp')
        a('s_barrier')
        a.rot_check(131072 + 64, 27)
    if a.stouch:
        a(f"""
        s_min_u32 {s(S_T3)}, {s(S_T4)}, 2
        s_lshl_b32 {s(S_T1)}, {s(S_T3)}, 3
        s_add_u32 {s(S_T1)}, {s(S_T1)}, {KA_WQ}
        s_load_dwordx2 {s(SRD_T,2)}, s[0:1], {s(S_T1)}
        s_mov_b32 {s(SRD_T+2)}, {8*MB}
        s_mov_b32 {s(SRD_T+3)}, {SRD3}
        v_and_b32 v20, 63, v0
        v_lshlrev_b32 v21, 13, v20
        s_lshl_b32 {s(S_T0)}, {s(S_C)}, 19
        s_lshl_b32 {s(S_T1)}, {s(S_G)}, 10
        s_add_u32 {s(S_T0)}, {s(S_T0)}, {s(S_T1)}
        s_waitcnt lgkmcnt(0)
        buffer_load_dword v26, v21, {s(SRD_T,4)}, {s(S_T0)} offen offset:384
        """)
    a_static(a)
    a(f"""
    v_lshlrev_b32 v24, 4, v0
    s_lshl_b32 {s(S_T0)}, {s(S_ID)}, 13
    s_add_u32 {s(S_T2)}, {s(S_T0)}, {WS_PART - 4096}
    s_add_u32 {s(S_T0)}, {s(S_T0)}, {WS_QKV - 4096}
    s_lshl_b32 {s(S_T1)}, {s(S_ID)}, 12
    s_add_u32 {s(S_T1)}, {s(S_T1)}, {WS_MEM - 4096}
    buffer_store_dwordx4 {v(AV_NEG,4)}, v24, {s(SRD_WS,4)}, {s(S_T2)} offen sc1
    s_add_u32 {s(S_T2)}, {s(S_T2)}, 4096
    buffer_store_dwordx4 {v(AV_NEG,4)}, v24, {s(SRD_WS,4)}, {s(S_T2)} offen sc1
    buffer_store_dwordx4 {v(AV_NEG,4)}, v24, {s(SRD_WS,4)}, {s(S_T0)} offen sc1
    s_add_u32 {s(S_T0)}, {s(S_T0)}, 4096
    buffer_store_dwordx4 {v(AV_NEG,4)}, v24, {s(SRD_WS,4)}, {s(S_T0)} offen sc1
    buffer_store_dwordx4 {v(AV_NEG,4)}, v24, {s(SRD_WS,4)}, {s(S_T1)} offen sc1
    """)
    a(f"""
    s_and_b32 {s(S_T0)}, {s(S_I)}, 7
    s_sub_u32 {s(S_T1)}, {s(S_T4)}, 1
    s_cmp_lt_u32 {s(S_T1)}, 2
    s_cselect_b32 s54, {s(S_T0)}, 1
    s_lshr_b32 {s(S_T2)}, {s(S_ID)}, 3
    s_lshl_b32 {s(S_T2)}, {s(S_T2)}, 8
    s_lshl_b32 {s(S_T1)}, {s(S_T1)}, 7
    s_add_u32 {s(S_T2)}, {s(S_T2)}, {s(S_T1)}
    s_add_u32 s55, {s(S_T2)}, {WS_PART + MB}
    s_cmp_lg_u32 s54, 0
    s_cbranch_scc1 ch_nv0
    v_lshlrev_b32 v24, 13, v20
    s_mov_b64 exec, 0xffff
    buffer_store_dword {v(AV_NEG)}, v24, {s(SRD_WS,4)}, s55 offen sc1
    s_mov_b64 exec, -1
    """)
    a.label('ch_nv0')
    a(f"""
    v_mov_b32 v2, {s(S_X1)}
    s_lshl_b32 {s(S_T0)}, {s(S_X)}, 2
    s_add_u32 {s(S_T0)}, {s(S_T0)}, {F.DBG_XCC}
    s_waitcnt vmcnt(0)
    s_barrier
    s_cmp_lg_u32 {s(S_W)}, 4
    s_cbranch_scc1 ch_nox
    s_mov_b64 exec, 1
    buffer_atomic_add v2, off, {s(F.SRD_DBG,4)}, {s(S_T0)} sc1
    s_mov_b64 exec, -1
    """)
    a.label('ch_nox')
    a_prologue(a)
    a('s_cmp_lg_u32 s54, 0')
    a('s_cbranch_scc1 ch_nv1')
    a('s_mov_b32 s58, -1')
    a('s_mov_b32 s59, -1')
    for k in range(8):
        for ph in range(2):
            a('s_memtime s[60:61]')
            a(f's_add_u32 s56, s55, {k*16384 + ph*8192}')
            a('s_waitcnt lgkmcnt(0)')
            a('s_load_dword s57, s[4:5], s56 glc')
            a('s_waitcnt lgkmcnt(0)')
            a('s_memtime s[62:63]')
            a('s_waitcnt lgkmcnt(0)')
            a('s_sub_u32 s57, s62, s60')
            a(f's_min_u32 s{58+ph}, s{58+ph}, s57')
    a(f"""
    s_sub_i32 s57, s58, s59
    s_min_i32 s57, s57, {a.vote}
    s_max_i32 s57, s57, {-a.vote}
    s_add_u32 s57, s57, {a.vote + (1 << 24)}
    s_getreg_b32 s56, hwreg(HW_REG_XCC_ID)
    s_and_b32 s56, s56, 0
    v_mov_b32 v2, s57
    s_mov_b64 exec, 1
    buffer_atomic_add v2, off, {s(F.SRD_DBG,4)}, s56 offset:{F.DBG_VOTE} sc1
    s_mov_b64 exec, -1
    """)
    a('s_waitcnt vmcnt(0)')
    a.label('ch_nv1')
    a_prologue2(a)
    a(f"""
    s_cmp_lg_u32 {s(S_W)}, 4
    s_cbranch_scc1 ch_xcc_skip
    v_lshrrev_b32 v56, 2, {v(AV_L16)}
    v_add_u32 v56, {F.DBG_XCC}, v56
    v_writelane_b32 v56, 0, 10
    v_mov_b32 v59, 63
    v_mov_b32 v60, 32
    v_writelane_b32 v59, 0, 8
    v_writelane_b32 v60, 0, 8
    v_writelane_b32 v59, 0, 9
    v_writelane_b32 v60, 0, 9
    v_writelane_b32 v59, -1, 10
    s_movk_i32 {s(S_T0)}, 128
    v_writelane_b32 v60, {s(S_T0)}, 10
    s_mov_b64 exec, 0x70f
    """)
    a.label('ch_xcc')
    a(f"""
    buffer_load_dword v57, v56, {s(F.SRD_DBG,4)}, 0 offen sc1
    s_waitcnt vmcnt(0)
    v_and_b32 v62, v59, v57
    v_cmp_ne_u32 vcc, v62, v60
    v_readlane_b32 {s(S_T1)}, v57, 8
    v_readlane_b32 {s(S_T2)}, v57, 9
    s_add_u32 {s(S_T0)}, {s(S_T1)}, {s(S_T2)}
    s_lshr_b32 {s(S_T0)}, {s(S_T0)}, 24
    s_cmp_lg_u32 {s(S_T0)}, 32
    s_cbranch_scc1 ch_xcc_w
    s_cbranch_vccz ch_xcc_ok
    """)
    a.label('ch_xcc_w')
    a(f"""
    s_sleep 16
    s_sub_u32 {s(S_TO)}, {s(S_TO)}, 1
    s_cbranch_scc0 ch_xcc
    s_mov_b32 {s(S_TO)}, 0
    """)
    a.label('ch_xcc_ok')
    a(f"""
    s_getreg_b32 {s(S_T0)}, hwreg(HW_REG_XCC_ID)
    s_bitcmp1_b32 {s(S_T0)}, 2
    s_cselect_b32 {s(S_T1)}, {s(S_T1)}, {s(S_T1)}
    v_readlane_b32 {s(S_T0)}, v57, {s(S_X)}
    s_mov_b64 exec, -1
    s_lshr_b32 {s(S_T2)}, {s(S_T1)}, 24
    s_mul_i32 {s(S_T2)}, {s(S_T2)}, {a.vote}
    s_and_b32 {s(S_T1)}, {s(S_T1)}, 0xffffff
    s_cmp_gt_u32 {s(S_T1)}, {s(S_T2)}
    s_cselect_b32 {s(S_T1)}, {0 if a.pgf else 0x2000}, {0x2000 if a.pgf else 0}
    v_mov_b32 v58, {LDS_PUB}
    v_mov_b32 v60, {s(S_T0)}
    v_mov_b32 v61, {s(S_T1)}
    s_barrier
    ds_write_b64 v58, v[60:61]
    s_waitcnt lgkmcnt(0)
    s_branch ch_xcc_b3
    """)
    a.label('ch_xcc_skip')
    a('s_barrier')
    a.label('ch_xcc_b3')
    a(f"""
    s_barrier
    v_mov_b32 v58, {LDS_PUB}
    ds_read_b64 v[60:61], v58
    v_and_b32 v23, 7, v20
    v_lshlrev_b32 v23, 7, v23
    v_bfe_u32 v24, v20, 3, 1
    v_lshl_add_u32 v23, v24, 17, v23
    v_lshrrev_b32 v24, 4, v20
    v_lshl_add_u32 v23, v24, 24, v23
    s_lshl_b32 {s(S_T2)}, {s(S_G)}, 14
    s_lshl_b32 {s(S_T1)}, {s(S_C)}, 10
    s_add_u32 {s(S_T2)}, {s(S_T2)}, {s(S_T1)}
    s_and_b32 {s(S_T1)}, {s(S_T4)}, 1
    s_lshl_b32 {s(S_T1)}, {s(S_T1)}, 18
    s_add_u32 {s(S_T2)}, {s(S_T2)}, {s(S_T1)}
    s_add_u32 {s(S_T2)}, {s(S_T2)}, {WS_QS + 262144}
    s_waitcnt lgkmcnt(0)
    v_readfirstlane_b32 {s(S_T0)}, v61
    s_add_u32 {s(S_PO)}, {s(S_PO)}, {s(S_T0)}
    """)
    a.label('ch_g0')
    a(f"""
    buffer_load_dword v57, off, {s(SRD_WS,4)}, {s(S_CQG)} sc1
    s_waitcnt vmcnt(0)
    v_readfirstlane_b32 {s(S_T0)}, v57
    s_cmp_ge_u32 {s(S_T0)}, {8 if a.s0 else 12}
    s_cbranch_scc1 ch_g0b
    s_sleep {a.g0sl}
    s_sub_u32 {s(S_TO)}, {s(S_TO)}, 1
    s_cbranch_scc0 ch_g0
    s_mov_b32 {s(S_TO)}, 0
    """)
    a.label('ch_g0b')
    for m in (1, 0):
        for x in (reg_list(a, m, AV_TB if m else AV_KS, S_QLD) if a.s1 and a.lr & (1 if m else 2) else dma_list(a, m, AV_L16, S_T1)): a(x)
    a('s_mov_b32 exec_hi, 0xffff')
    a(f'buffer_load_dword {v(AV_PK+7)}, v23, {s(SRD_WS,4)}, {s(S_T2)} offen sc1')
    a('s_mov_b32 exec_hi, -1')
    a(f'v_mov_b32 {v(AV_FV)}, 0')
    a('s_waitcnt vmcnt(1)')
    a(f'ds_write_b32 {v(AV_FLGW)}, {v(AV_FV)} offset:16')
    a_loop(a, prof, done)
```

```python
from asmlib import *
from layout4 import *
from k_prep import red_gq, rnd_bf16

SRD_WS = 4
SRD_DBG = 64
CS_TAB = WS_CNT + 8192
CD_TAB = WS_CNT + 2560
DBG_INIT = 0
DBG_INIT2 = 64
DBG_XCC = 128
DBG_INITA = 192
DBG_VOTE = 160
DBG_ROT = 224
S_EARLY = 70
TIMEOUT = 1 << 16

def emit_ln_init(a, swk, touch):
    if a.ln8:
        assert not a.cln and a.scb == 64
        a(f'''
        s_cmp_lt_u32 {s(swk)}, 64
        s_cbranch_scc1 ln8_short
        s_sub_u32 s17, {s(swk)}, 64
        s_lshl_b32 s17, s17, 1
        s_lshr_b32 s18, s3, 2
        s_add_u32 s17, s17, s18
        s_and_b32 s19, s3, 3
        ''')
    else:
        a(f's_mov_b32 s17, {s(swk)}')
        a('s_mov_b32 s19, s3')
        a('s_mov_b32 s18, 0')
    a(f'''
    {'' if a.ln8 else 's_cmp_ge_u32 s3, 4'}
    {'' if a.ln8 else 's_cbranch_scc1 ln_touch'}
    {f's_cmp_lt_u32 {s(swk)}, 32' if a.cln else ''}
    {'s_cbranch_scc1 ln_short' if a.cln else ''}
    s_load_dwordx2 s[8:9], s[0:1], {KA_X}
    v_and_b32 v1, 63, v0
    s_mov_b32 s10, {4*MB}
    s_mov_b32 s11, {SRD3}
    v_and_b32 v3, 15, v1
    v_lshrrev_b32 v4, 4, v1
    v_lshlrev_b32 v5, 11, v3
    v_lshl_add_u32 v5, v4, 4, v5
    s_lshl_b32 s12, s17, 15
    s_lshl_b32 s13, s19, 9
    s_add_u32 s12, s12, s13
    s_waitcnt lgkmcnt(0)
    ''')
    NB = 8; ND = NB * 4; NF = ND * 2
    P = 16; F = 48; T = 112; C = 176
    for j in range(NB):
        a(f'buffer_load_dwordx4 {v(P+4*j,4)}, v5, s[8:11], s12 offen offset:{64*j}{a.xnt}')
    if a.cln: a('s_barrier')
    if a.ln8:
        a('s_cmp_lg_u32 s3, 7')
        a('s_cbranch_scc1 ln8_nrp')
        a.rot_poll(2048, 12, 13)
        a.label('ln8_nrp')
    a(f'''
    v_mov_b32 v14, 0
    s_lshl_b32 s13, {s(swk)}, 7
    s_add_u32 s13, s13, {WS_CNT}
    v_lshlrev_b32 v13, 2, v0
    v_lshlrev_b32 v6, 4, v3
    s_lshl_b32 s14, s18, 10
    v_add_u32 v6, s14, v6
    s_lshl_b32 s14, s19, 2
    v_add_u32 v7, s14, v6
    v_lshlrev_b32 v8, 4, v1
    s_lshl_b32 s15, s17, 15
    s_lshl_b32 s16, s19, 13
    s_add_u32 s15, s15, s16
    s_add_u32 s16, s15, 4096
    v_and_b32 v9, 1, v4
    v_cmp_eq_u32 s[20:21], 1, v9
    s_waitcnt vmcnt(0)
    ''')
    for d in range(ND):
        a(f'v_lshlrev_b32 {v(F+2*d)}, 16, {v(P+d)}')
        a(f'v_and_b32 {v(F+2*d+1)}, 0xffff0000, {v(P+d)}')
    def tree(n):
        while n > 1:
            n //= 2
            for i in range(n): a(f'v_add_f32 {v(T+i)}, {v(T+i)}, {v(T+n+i)}')
    for i in range(ND): a(f'v_add_f32 {v(T+i)}, {v(F+i)}, {v(F+ND+i)}')
    tree(ND); red_gq(a, T, T+1)
    a(f'''
    ds_write_b32 v7, {v(T)}
    s_waitcnt lgkmcnt(0)
    s_barrier
    ds_read_b128 {v(T,4)}, v6
    s_waitcnt lgkmcnt(0)
    ''')
    tree(4)
    a(f'v_mul_f32 v10, 0x3a800000, {v(T)}')
    for i in range(NF): a(f'v_sub_f32 {v(C+i)}, {v(F+i)}, v10')
    for i in range(ND):
        a(f'v_mul_f32 {v(T+i)}, {v(C+i)}, {v(C+i)}')
        a(f'v_fmac_f32 {v(T+i)}, {v(C+ND+i)}, {v(C+ND+i)}')
    tree(ND); red_gq(a, T, T+1)
    a(f'''
    ds_write_b32 v7, {v(T)} offset:512
    s_waitcnt lgkmcnt(0)
    s_barrier
    ds_read_b128 {v(T,4)}, v6 offset:512
    ''')
    a.rot_check(2048, 12)
    a(f'''
    s_waitcnt lgkmcnt(0)
    v_cmp_gt_u32 vcc, 32, v0
    s_and_saveexec_b64 s[22:23], vcc
    s_cbranch_execz ln_nz
    buffer_store_dword v14, v13, s[4:7], s13 offen sc1
    ''')
    a.label('ln_nz')
    a('s_mov_b64 exec, -1')
    tree(4)
    a(f'v_mul_f32 v11, 0x3a800000, {v(T)}')
    rnd_bf16(a, 10, 10); rnd_bf16(a, 11, 11)
    a('v_add_f32 v11, 0x3727c5ac, v11')
    rnd_bf16(a, 11, 11)
    a('v_sqrt_f32 v11, v11'); a('s_nop 0')
    rnd_bf16(a, 11, 11)
    a('v_rcp_f32 v11, v11'); a('s_nop 0')
    for j in range(NB):
        for d in range(4*j, 4*j+4):
            a(f'v_sub_f32 {v(F+2*d)}, {v(F+2*d)}, v10')
            a(f'v_sub_f32 {v(F+2*d+1)}, {v(F+2*d+1)}, v10')
            a(f'v_cvt_pk_bf16_f32 {v(P+d)}, {v(F+2*d)}, {v(F+2*d+1)}')
            a(f'v_lshlrev_b32 {v(F+2*d)}, 16, {v(P+d)}')
            a(f'v_and_b32 {v(F+2*d+1)}, 0xffff0000, {v(P+d)}')
            a(f'v_mul_f32 {v(F+2*d)}, {v(F+2*d)}, v11')
            a(f'v_mul_f32 {v(F+2*d+1)}, {v(F+2*d+1)}, v11')
            a(f'v_cvt_pk_bf16_f32 {v(P+d)}, {v(F+2*d)}, {v(F+2*d+1)}')
        b = P + 4 * j; o = T + 4 * j
        a(f'v_cndmask_b32 {v(o)}, {v(b)}, {v(b+2)}, s[20:21]')
        a(f'v_cndmask_b32 {v(o+1)}, {v(b+1)}, {v(b+3)}, s[20:21]')
        a(f'v_cndmask_b32 {v(o+2)}, {v(b+2)}, {v(b)}, s[20:21]')
        a(f'v_cndmask_b32 {v(o+3)}, {v(b+3)}, {v(b+1)}, s[20:21]')
        a(f'buffer_store_dwordx4 {v(o,4)}, v8, s[4:7], s{15 + j//4} offen offset:{1024*(j&3)} sc1')
    if a.scb < 64:
        a(f's_cmp_lt_u32 {s(swk)}, {2 * a.scb}')
        a('s_cbranch_scc1 ln_n2')
        a(f's_add_u32 s15, s15, {WS_XN2}')
        a(f's_add_u32 s16, s16, {WS_XN2}')
        for j in range(NB):
            o = T + 4 * j; t = C + 4 * j
            for d, x in enumerate((0, 2, 1, 3)): a(f'v_mov_b32 {v(t+d)}, {v(o+x)}')
            a('s_nop 1')
            a(f'v_permlane16_swap_b32 {v(t)}, {v(t+1)}')
            a(f'v_permlane16_swap_b32 {v(t+2)}, {v(t+3)}')
            a('s_nop 0')
            a(f'buffer_store_dwordx4 {v(t,4)}, v8, s[4:7], s{15 + j//4} offen offset:{1024*(j&3)} sc1')
        a.label('ln_n2')
    a(f'''
    s_waitcnt vmcnt(0)
    s_barrier
    s_cmp_lg_u32 s3, 0
    s_cbranch_scc1 ln_sig
    v_mov_b32 v2, 1
    s_mov_b64 exec, 1
    s_cmp_ge_u32 {s(swk)}, {0 if a.cln else 68 if a.ln8 else 8}
    s_cbranch_scc1 ln_sb
    buffer_atomic_add v2, off, {s(SRD_DBG,4)}, 0 offset:{DBG_INITA} sc1
    ''')
    a.label('ln_sb')
    a(f'''
    buffer_atomic_add v2, off, {s(SRD_DBG,4)}, 0 offset:{DBG_INIT} sc1
    s_mov_b64 exec, -1
    s_branch ln_sig
    ''')
    if a.ln8:
        a.label('ln8_short')
        a('s_cmp_lt_u32 s3, 4')
        a('s_cbranch_scc1 ln8_s1')
        touch()
        a('s_cmp_lg_u32 s3, 7')
        a('s_cbranch_scc1 ln8_s1')
        a.rot_poll(2048, 12, 13)
        a.label('ln8_s1')
        a('s_barrier')
        a.rot_check(2048, 12)
        a(f'''
        s_cmp_lg_u32 s3, 0
        s_cbranch_scc1 ln_sig
        v_mov_b32 v14, 0
        v_mov_b32 v2, 1
        s_lshl_b32 s13, {s(swk)}, 7
        s_add_u32 s13, s13, {WS_CNT}
        v_lshlrev_b32 v13, 2, v0
        s_mov_b32 exec_hi, 0
        buffer_store_dword v14, v13, s[4:7], s13 offen sc1
        s_waitcnt vmcnt(0)
        s_mov_b64 exec, 1
        buffer_atomic_add v2, off, {s(SRD_DBG,4)}, 0 offset:{DBG_INIT} sc1
        s_mov_b64 exec, -1
        ''')
        a.label('ln_sig')
        return
    a.label('ln_touch')
    if a.cln:
        a(f's_lshl_b32 s16, {s(swk)}, 2')
        a('s_add_u32 s16, s16, s3')
        a('s_sub_u32 s16, s16, 4')
        ln2 = emit_row_ln(a, 16, 8, 17, 18)
        a('''
        v_mov_b32 v64, 2048
        v_mov_b32 v65, 0
        ds_write_b32 v64, v65
        s_waitcnt lgkmcnt(0)
        s_barrier
        s_waitcnt vmcnt(0)
        ''')
        ln2()
        a(f'''
        v_mov_b32 v65, 1
        s_waitcnt vmcnt(0)
        s_mov_b64 exec, 1
        ds_add_rtn_u32 v66, v64, v65
        s_waitcnt lgkmcnt(0)
        v_readfirstlane_b32 s17, v66
        s_cmp_lg_u32 s17, 3
        s_cbranch_scc1 ln_r2
        buffer_atomic_add v65, off, {s(SRD_DBG,4)}, 0 offset:{DBG_INITA} sc1
        ''')
        a.label('ln_r2')
        a('s_mov_b64 exec, -1')
    touch()
    if a.cln:
        a(f's_cmp_lt_u32 {s(swk)}, 32')
        a('s_cbranch_scc1 ln_sig')
    a('s_cmp_lg_u32 s3, 7')
    a('s_cbranch_scc1 ln_nrp')
    a.rot_poll(2048, 12, 13)
    a.label('ln_nrp')
    a('s_barrier')
    if a.bt1: a.late_touch()
    a('s_barrier')
    a.rot_check(2048, 12)
    a('s_barrier')
    if a.cln:
        a('s_branch ln_sig')
        a.label('ln_short')
        a(f'''
        s_barrier
        s_cmp_lg_u32 s3, 0
        s_cbranch_scc1 ln_sig
        v_mov_b32 v14, 0
        v_mov_b32 v2, 1
        s_lshl_b32 s13, {s(swk)}, 7
        s_add_u32 s13, s13, {WS_CNT}
        v_lshlrev_b32 v13, 2, v0
        s_mov_b32 exec_hi, 0
        buffer_store_dword v14, v13, s[4:7], s13 offen sc1
        s_waitcnt vmcnt(0)
        s_mov_b64 exec, 1
        buffer_atomic_add v2, off, {s(SRD_DBG,4)}, 0 offset:{DBG_INIT} sc1
        s_mov_b64 exec, -1
        ''')
    a.label('ln_sig')

def emit_row_ln(a, s_row, srd, t0, t1):
    P, Fl, T = 24, 32, 48
    a(f"""
    s_load_dwordx2 {s(srd,2)}, s[0:1], {KA_X}
    s_mov_b32 {s(srd+2)}, {4*MB}
    s_mov_b32 {s(srd+3)}, {SRD3}
    v_and_b32 v20, 63, v0
    v_lshlrev_b32 v21, 4, v20
    s_lshl_b32 {s(t0)}, {s(s_row)}, 11
    s_waitcnt lgkmcnt(0)
    buffer_load_dwordx4 {v(P,4)}, v21, {s(srd,4)}, {s(t0)} offen
    buffer_load_dwordx4 {v(P+4,4)}, v21, {s(srd,4)}, {s(t0)} offen offset:1024
    """)
    return lambda: _row_ln2(a, s_row, t0, t1, P, Fl, T)

def _row_ln2(a, s_row, t0, t1, P, Fl, T):
    a(f"""
    v_lshrrev_b32 v22, 2, v20
    v_lshlrev_b32 v22, 10, v22
    v_and_b32 v23, 3, v20
    v_lshl_add_u32 v22, v23, 8, v22
    v_and_b32 v23, 1, v20
    v_cmp_eq_u32 vcc, 1, v23
    s_lshr_b32 {s(t0)}, {s(s_row)}, 4
    s_lshl_b32 {s(t0)}, {s(t0)}, 15
    s_and_b32 {s(t1)}, {s(s_row)}, 15
    s_lshl_b32 {s(t1)}, {s(t1)}, 4
    s_add_u32 {s(t0)}, {s(t0)}, {s(t1)}
    s_add_u32 {s(t1)}, {s(t0)}, 16384
    """)
    for d in range(8):
        a(f'v_lshlrev_b32 {v(Fl+2*d)}, 16, {v(P+d)}')
        a(f'v_and_b32 {v(Fl+2*d+1)}, 0xffff0000, {v(P+d)}')
    def wave_sum():
        n = 8
        while n > 1:
            n //= 2
            for i in range(n): a(f'v_add_f32 {v(T+i)}, {v(T+i)}, {v(T+n+i)}')
        for r in (1, 2, 4, 8):
            a('s_nop 1')
            a(f'v_add_f32_dpp {v(T)}, {v(T)}, {v(T)} row_ror:{r} row_mask:0xf bank_mask:0xf')
        red_gq(a, T, T + 1)
    for i in range(8): a(f'v_add_f32 {v(T+i)}, {v(Fl+i)}, {v(Fl+8+i)}')
    wave_sum()
    a(f'v_mul_f32 v21, 0x3a800000, {v(T)}')
    for i in range(8):
        a(f'v_sub_f32 {v(T+8)}, {v(Fl+i)}, v21')
        a(f'v_sub_f32 {v(T+9)}, {v(Fl+8+i)}, v21')
        a(f'v_mul_f32 {v(T+i)}, {v(T+8)}, {v(T+8)}')
        a(f'v_fmac_f32 {v(T+i)}, {v(T+9)}, {v(T+9)}')
    wave_sum()
    a(f'v_mul_f32 v23, 0x3a800000, {v(T)}')
    rnd_bf16(a, 21, 21); rnd_bf16(a, 23, 23)
    a('v_add_f32 v23, 0x3727c5ac, v23')
    rnd_bf16(a, 23, 23)
    a('v_sqrt_f32 v23, v23'); a('s_nop 0')
    rnd_bf16(a, 23, 23)
    a('v_rcp_f32 v23, v23'); a('s_nop 0')
    for d in range(8):
        a(f'v_sub_f32 {v(Fl+2*d)}, {v(Fl+2*d)}, v21')
        a(f'v_sub_f32 {v(Fl+2*d+1)}, {v(Fl+2*d+1)}, v21')
        a(f'v_cvt_pk_bf16_f32 {v(P+d)}, {v(Fl+2*d)}, {v(Fl+2*d+1)}')
        a(f'v_lshlrev_b32 {v(Fl+2*d)}, 16, {v(P+d)}')
        a(f'v_and_b32 {v(Fl+2*d+1)}, 0xffff0000, {v(P+d)}')
        a(f'v_mul_f32 {v(Fl+2*d)}, {v(Fl+2*d)}, v23')
        a(f'v_mul_f32 {v(Fl+2*d+1)}, {v(Fl+2*d+1)}, v23')
        a(f'v_cvt_pk_bf16_f32 {v(P+d)}, {v(Fl+2*d)}, {v(Fl+2*d+1)}')
    for j in range(2):
        b = P + 4 * j; o = T + 4 * j
        a(f'v_cndmask_b32 {v(o)}, {v(b)}, {v(b+2)}, vcc')
        a(f'v_cndmask_b32 {v(o+1)}, {v(b+1)}, {v(b+3)}, vcc')
        a(f'v_cndmask_b32 {v(o+2)}, {v(b+2)}, {v(b)}, vcc')
        a(f'v_cndmask_b32 {v(o+3)}, {v(b+3)}, {v(b+1)}, vcc')
        a(f'buffer_store_dwordx4 {v(o,4)}, v22, s[4:7], {s((t0, t1)[j])} offen sc1')

def emit_ln_wait(a, s_type, s_aoff, t_fh, x=''):
    if a.cln:
        a(f's_cmp_lt_u32 {s(s_aoff)}, {WS_XN + MB}')
        a(f's_cselect_b32 {s(S_EARLY)}, 1, 0')
    else:
        a(f's_cmp_eq_u32 {s(s_type)}, {t_fh}')
        a(f's_cselect_b32 {s(S_EARLY)}, {1 if a.early else 0}, 0')
        a(f's_cmp_eq_u32 {s(s_aoff)}, {WS_XN}')
        a(f's_cselect_b32 {s(S_EARLY)}, {s(S_EARLY)}, 0')
    a('s_cmp_lg_u32 s3, 0')
    a(f's_cbranch_scc1 lnw{x}_ok')
    a(f's_cmp_eq_u32 {s(S_EARLY)}, 0')
    a(f's_cbranch_scc1 lnw{x}_full')
    emit_wait_init(a, f'lnwa{x}', 20, 68, 69, DBG_INITA, 128 if a.cln else 4 if a.ln8 else 8)
    a(f's_branch lnw{x}_ok')
    a.label(f'lnw{x}_full')
    emit_wait_init(a, f'lnw{x}', 20, 68, 69)
    a('s_barrier')

def emit_drain_hook(a):
    a(f's_cmp_eq_u32 {s(S_EARLY)}, 0')
    a('s_cbranch_scc1 drw_ok')
    a(f's_mov_b32 {s(S_EARLY)}, 0')
    a('s_cmp_lg_u32 s3, 0')
    a('s_cbranch_scc1 drw_ok')
    a('v_readfirstlane_b32 s68, v22')
    a('s_cmp_ge_u32 s68, 128')
    a('s_cbranch_scc1 drw_ok')
    emit_wait_init(a, 'drw', 20, 68, 69)

def emit_wait_init(a, tag, vt, st, sto, off=DBG_INIT, tgt=128):
    a(f's_mov_b32 {s(sto)}, {TIMEOUT}')
    a.label(tag)
    a(f'''
    buffer_load_dword {v(vt)}, off, {s(SRD_DBG,4)}, 0 offset:{off} sc1
    s_waitcnt vmcnt(0)
    v_readfirstlane_b32 {s(st)}, {v(vt)}
    s_cmp_ge_u32 {s(st)}, {tgt}
    s_cbranch_scc1 {tag}_ok
    s_sleep 8
    s_sub_u32 {s(sto)}, {s(sto)}, 1
    s_cbranch_scc0 {tag}
    ''')
    a.label(tag + '_ok')


def silu8(a, gs, n, T):
    g0, g1 = gs[0], gs[1]
    for d in range(n):
        a(f'v_lshlrev_b32 {v(T+2*d)}, 16, {v(g0+d)}')
        a(f'v_and_b32 {v(T+2*d+1)}, 0xffff0000, {v(g0+d)}')
        for g in gs[1:]:
            a(f'v_lshlrev_b32 {v(g0+d)}, 16, {v(g+d)}')
            a(f'v_and_b32 {v(g+d)}, 0xffff0000, {v(g+d)}')
            a(f'v_add_f32 {v(T+2*d)}, {v(T+2*d)}, {v(g0+d)}')
            a(f'v_add_f32 {v(T+2*d+1)}, {v(T+2*d+1)}, {v(g+d)}')
        a(f'v_cvt_pk_bf16_f32 {v(g0+d)}, {v(T+2*d)}, {v(T+2*d+1)}')
        a(f'v_lshlrev_b32 {v(T+2*d)}, 16, {v(g0+d)}')
        a(f'v_and_b32 {v(T+2*d+1)}, 0xffff0000, {v(g0+d)}')
        a(f'v_mul_f32 {v(g0+d)}, s89, {v(T+2*d)}')
        a(f'v_mul_f32 {v(g1+d)}, s89, {v(T+2*d+1)}')
    for d in range(n):
        a(f'v_exp_f32 {v(g0+d)}, {v(g0+d)}')
        a(f'v_exp_f32 {v(g1+d)}, {v(g1+d)}')
    a('s_nop 0')
    for d in range(n):
        a(f'v_add_f32 {v(g0+d)}, 1.0, {v(g0+d)}')
        a(f'v_add_f32 {v(g1+d)}, 1.0, {v(g1+d)}')
    for d in range(n):
        a(f'v_rcp_f32 {v(g0+d)}, {v(g0+d)}')
        a(f'v_rcp_f32 {v(g1+d)}, {v(g1+d)}')
    a('s_nop 0')
    for d in range(n):
        a(f'v_mul_f32 {v(T+2*d)}, {v(T+2*d)}, {v(g0+d)}')
        a(f'v_mul_f32 {v(T+2*d+1)}, {v(T+2*d+1)}, {v(g1+d)}')
        a(f'v_cvt_pk_bf16_f32 {v(g0+d)}, {v(T+2*d)}, {v(T+2*d+1)}')

def finish(a, A, G, X, O, n, t):
    for d in range(n):
        a(f'v_cvt_pk_bf16_f32 {v(t)}, {v(A+2*d)}, {v(A+2*d+1)}')
        a(f'v_lshlrev_b32 {v(A+2*d)}, 16, {v(t)}')
        a(f'v_and_b32 {v(A+2*d+1)}, 0xffff0000, {v(t)}')
        a(f'v_lshlrev_b32 {v(t)}, 16, {v(G+d)}')
        a(f'v_and_b32 {v(t+1)}, 0xffff0000, {v(G+d)}')
        a(f'v_mul_f32 {v(A+2*d)}, {v(A+2*d)}, {v(t)}')
        a(f'v_mul_f32 {v(A+2*d+1)}, {v(A+2*d+1)}, {v(t+1)}')
        a(f'v_cvt_pk_bf16_f32 {v(t)}, {v(A+2*d)}, {v(A+2*d+1)}')
        a(f'v_lshlrev_b32 {v(A+2*d)}, 16, {v(t)}')
        a(f'v_and_b32 {v(A+2*d+1)}, 0xffff0000, {v(t)}')
        a(f'v_lshlrev_b32 {v(t)}, 16, {v(X+d)}')
        a(f'v_and_b32 {v(t+1)}, 0xffff0000, {v(X+d)}')
        a(f'v_add_f32 {v(A+2*d)}, {v(A+2*d)}, {v(t)}')
        a(f'v_add_f32 {v(A+2*d+1)}, {v(A+2*d+1)}, {v(t+1)}')
        a(f'v_cvt_pk_bf16_f32 {v(O+d)}, {v(A+2*d)}, {v(A+2*d+1)}')

def emit_fin(a, s_type, s_a, s_b, t_tail, done, s_otgt, s_four, s_g2):
    a(f"""
    s_load_dwordx2 s[8:9], s[0:1], {KA_X}
    s_load_dwordx2 s[12:13], s[0:1], {KA_OUT}
    v_mbcnt_lo_u32_b32 v1, -1, 0
    v_mbcnt_hi_u32_b32 v1, -1, v1
    s_mov_b32 s10, {4*MB}
    s_mov_b32 s11, {SRD3}
    s_mov_b32 s14, {4*MB}
    s_mov_b32 s15, {SRD3}
    s_mov_b32 s89, 0xbfb8aa3b
    v_lshlrev_b32 v3, 4, v1
    v_and_b32 v4, 15, v1
    v_lshrrev_b32 v5, 4, v1
    v_lshlrev_b32 v4, 11, v4
    v_lshl_add_u32 v4, v5, 4, v4
    v_and_b32 v5, 1, v5
    v_cmp_eq_u32 s[76:77], 1, v5
    v_and_b32 v6, 3, v1
    v_lshlrev_b32 v6, 7, v6
    s_mov_b32 s80, {s(s_a)}
    s_lshl_b32 s81, {s(s_b)}, 2
    s_and_b32 s82, s3, 3
    s_add_u32 s81, s81, s82
    s_lshr_b32 s82, s3, 2               ; rb & 1
    s_mov_b32 s84, {TIMEOUT}
    s_mov_b32 s85, {CS_TAB}
    s_waitcnt lgkmcnt(0)
    s_cmp_eq_u32 {s(s_type)}, {t_tail}
    s_cbranch_scc1 fin_tail
    """)
    a.label('fin_job')
    a(f"""
    s_lshl_b32 s72, s80, 1
    s_add_u32 s72, s72, s82             ; rb
    s_lshl_b32 s74, s72, 15
    s_lshl_b32 s73, s81, 11
    s_add_u32 s73, s73, s74             ; F offset
    s_lshl_b32 s75, s81, 7
    s_add_u32 s74, s74, s75
    s_add_u32 s78, s73, {WS_GG}
    s_add_u32 s79, s73, {WS_SP}
    s_lshr_b32 s83, s80, 3
    s_lshl_b32 s83, s83, 6
    s_add_u32 s83, s83, {CD_TAB}
    s_add_u32 s87, s80, 2
    """)
    for b in range(2):
        a(f'buffer_load_dwordx4 {v(88+4*b,4)}, v4, s[8:11], s74 offen offset:{64*b}')
    a('s_cmp_lg_u32 s3, 0')
    a('s_cbranch_scc1 fin_ws_ok')
    a.label('fin_wd')
    a(f"""
    buffer_load_dwordx2 v[8:9], off, s[4:7], s83 sc1
    s_waitcnt vmcnt(0)
    v_readfirstlane_b32 s86, v8
    v_readfirstlane_b32 s88, v9
    s_cmp_ge_u32 s88, {s(s_otgt)}
    s_cselect_b32 s86, s86, 0
    s_cmp_ge_u32 s86, 16
    s_cbranch_scc1 fin_wd2
    s_sleep 64
    s_sub_u32 s84, s84, 1
    s_cbranch_scc0 fin_wd
    s_mov_b32 s84, 0
    """)
    a.label('fin_wd2')
    a(f's_cmp_lg_u32 {s(s_otgt)}, 0')
    a('s_cbranch_scc1 fin_ws_ok')
    a.label('fin_ws')
    a(f"""
    buffer_load_dword v7, v6, s[4:7], s85 offen sc1
    s_waitcnt vmcnt(0)
    v_cmp_gt_u32 vcc, s87, v7
    s_cbranch_vccz fin_ws_ok
    s_sleep {a.fin_sleep}
    s_sub_u32 s86, s87, 2
    v_cmp_gt_i32 vcc, s86, v7
    s_cbranch_vccz fin_ws_f
    s_sleep 64
    s_sub_u32 s86, s87, 6
    v_cmp_gt_i32 vcc, s86, v7
    s_cbranch_vccz fin_ws_f
    s_sleep 127
    s_sleep 127
    """)
    a.label('fin_ws_f')
    a(f"""
    s_sub_u32 s84, s84, 1
    s_cbranch_scc0 fin_ws
    s_mov_b32 s84, 0
    """)
    a.label('fin_ws_ok')
    a.fin_claim()
    a('s_barrier')
    for k in range(4):
        if k == 2:
            a(f's_cmp_lg_u32 {s(s_g2)}, 0')
            a('s_cbranch_scc1 fin_g2')
        for b in range(2):
            a(f'buffer_load_dwordx4 {v(136+8*k+4*b,4)}, v3, s[4:7], s78 offen offset:{1024*b} sc1')
        a(f's_add_u32 s78, s78, {4*MB}')
    a('s_branch fin_g4')
    a.label('fin_g2')
    for i in range(16): a(f'v_mov_b32 {v(152+i)}, 0')
    a.label('fin_g4')
    for g in range(8):
        if g in (2, 4):
            a(f's_cmp_ge_u32 {s(s_four)}, {2 if g == 2 else 1}')
            a(f's_cbranch_scc1 fin_{g}p')
        for b in range(2):
            a(f'buffer_load_dwordx4 {v(16+(b*8+g)*4,4)}, v3, s[4:7], s79 offen offset:{1024*b} sc1')
        a(f's_add_u32 s79, s79, {4*MB}')
    a('s_waitcnt vmcnt(16)')
    a('s_branch fin_8p')
    a.label('fin_2p')
    for b in range(2):
        for i in range(24): a(f'v_mov_b32 {v(16+(b*8+2)*4+i)}, 0')
    a('s_waitcnt vmcnt(4)')
    a('s_branch fin_8p')
    a.label('fin_4p')
    for b in range(2):
        for i in range(16): a(f'v_mov_b32 {v(16+(b*8+4)*4+i)}, 0')
    a('s_waitcnt vmcnt(8)')
    a.label('fin_8p')
    for b in range(2): silu8(a, [136 + 8 * k + 4 * b for k in range(4)], 4, 120)
    a('s_waitcnt vmcnt(0)')
    def combine(b):
        A = 96
        for d in range(4):
            r = 16 + b * 32 + d
            a(f'v_lshlrev_b32 {v(A+2*d)}, 16, {v(r)}')
            a(f'v_and_b32 {v(A+2*d+1)}, 0xffff0000, {v(r)}')
        for g in range(1, 8):
            for d in range(4):
                r = 16 + (b * 8 + g) * 4 + d
                a(f'v_lshlrev_b32 {v(120+2*d)}, 16, {v(r)}')
                a(f'v_and_b32 {v(121+2*d)}, 0xffff0000, {v(r)}')
            for e in range(8):
                a(f'v_add_f32 {v(A+e)}, {v(A+e)}, {v(120+e)}')
        X = 88 + 4 * b
        a(f'v_cndmask_b32 v108, {v(X)}, {v(X+2)}, s[76:77]')
        a(f'v_cndmask_b32 v109, {v(X+1)}, {v(X+3)}, s[76:77]')
        a(f'v_cndmask_b32 v110, {v(X+2)}, {v(X)}, s[76:77]')
        a(f'v_cndmask_b32 v111, {v(X+3)}, {v(X+1)}, s[76:77]')
        finish(a, A, 136 + 4 * b, 108, 112, 4, 104)
        O = 128 + 4 * b
        a(f'v_cndmask_b32 {v(O)}, v112, v114, s[76:77]')
        a(f'v_cndmask_b32 {v(O+1)}, v113, v115, s[76:77]')
        a(f'v_cndmask_b32 {v(O+2)}, v114, v112, s[76:77]')
        a(f'v_cndmask_b32 {v(O+3)}, v115, v113, s[76:77]')
        a(f'buffer_store_dwordx4 {v(O,4)}, v4, s[12:15], s74 offen offset:{64*b}{a.osc}')
    for b in range(2): combine(b)
    if a.wprof:
        import k_gemm5
        a('s_waitcnt vmcnt(0)')
        k_gemm5.prof_stamp(a, 1)
    a(f's_branch {done}')
    a.label('fin_tail')
    a(f"""
    s_mov_b32 s81, {s(s_b)}
    s_lshl_b32 s81, s81, 2
    s_and_b32 s82, s3, 3
    s_add_u32 s81, s81, s82             ; blk 0..63
    s_lshr_b32 s82, s81, 5
    s_and_b32 s81, s81, 31              ; cb
    s_lshl_b32 s72, s80, 1
    s_add_u32 s72, s72, s82             ; rb
    s_lshl_b32 s74, s72, 15
    s_lshl_b32 s73, s81, 10
    s_add_u32 s73, s73, s74
    s_lshl_b32 s75, s81, 6
    s_add_u32 s74, s74, s75
    s_add_u32 s78, s73, {WS_GG}
    s_add_u32 s79, s73, {WS_SP}
    s_mov_b32 s83, {CD_TAB + 7 * 64}
    s_mov_b32 s84, {TIMEOUT}
    s_min_u32 s87, s80, 62
    v_and_b32 v8, 7, v1
    v_lshlrev_b32 v8, 22, v8
    s_cmp_lg_u32 s3, 0
    s_cbranch_scc1 ft_ok
    """)
    a.label('ft_wd')
    a(f"""
    buffer_load_dword v7, off, s[4:7], s83 sc1
    s_waitcnt vmcnt(0)
    v_readfirstlane_b32 s86, v7
    s_cmp_ge_u32 s86, 16
    s_cbranch_scc1 ft_wdok
    s_sleep 32
    s_sub_u32 s84, s84, 1
    s_cbranch_scc0 ft_wd
    s_mov_b32 s84, 0
    """)
    a.label('ft_wdok')
    a.label('ft_ok')
    a(f"""
    s_barrier
    s_cmp_ge_u32 s3, 4
    s_cbranch_scc1 {done}
    buffer_load_dwordx4 v[88:91], v4, s[8:11], s74 offen
    """)
    for k in range(4):
        a(f'buffer_load_dwordx4 {v(136+8*k,4)}, v3, s[4:7], s78 offen sc1')
        a(f's_add_u32 s78, s78, {4*MB}')
    if a.ctch: vcode_touch(a, 'ft_l0', 10, 72, 3, 9, 10)
    a('s_waitcnt vmcnt(0)')
    silu8(a, [136 + 8 * k for k in range(4)], 4, 120)
    a.label('ft_ws')
    a(f"""
    buffer_load_dword v7, v6, s[4:7], s85 offen sc1
    s_waitcnt vmcnt(0)
    v_cmp_gt_u32 vcc, s87, v7
    s_cbranch_vccz ft_p
    s_sleep {a.fin_sleep}
    v_cmp_gt_u32 vcc, 59, v7
    s_cbranch_vccz ft_wsf
    s_sleep 64
    v_cmp_gt_u32 vcc, 56, v7
    s_cbranch_vccz ft_wsf
    s_sleep 127
    s_sleep 127
    """)
    a.label('ft_wsf')
    a(f"""
    s_sub_u32 s84, s84, 1
    s_cbranch_scc0 ft_ws
    s_mov_b32 s84, 0
    """)
    a.label('ft_p')
    if a.ftd:
        a(f's_sleep {a.ftd}')
        a('s_branch ft_l0')
    a(f"""
    buffer_load_dword v7, v8, s[4:7], s79 offen offset:1008 sc1
    s_waitcnt vmcnt(0)
    v_cmp_eq_u32 vcc, -1, v7
    s_cbranch_vccz ft_l0
    s_sleep {a.ft_sleep}
    s_sub_u32 s84, s84, 1
    s_cbranch_scc0 ft_p
    s_mov_b32 s84, 0
    """)
    a.label('ft_l0')
    a.fin_claim()
    a.label('ft_l')
    a('s_mov_b32 s86, s79')
    for g in range(8):
        a(f'buffer_load_dwordx4 {v(16+g*4,4)}, v3, s[4:7], s86 offen sc1')
        if g < 7: a(f's_add_u32 s86, s86, {4*MB}')
    a('s_waitcnt vmcnt(0)')
    a('v_max3_u32 v7, v16, v20, v24')
    a('v_max3_u32 v7, v7, v28, v32')
    a('v_max3_u32 v7, v7, v36, v40')
    a('v_max_u32 v7, v7, v44')
    a(f"""
    v_cmp_eq_u32 vcc, -1, v7
    s_cbranch_vccz ft_go
    s_sleep {a.ft_sleep if a.ftd else 0}
    s_sub_u32 s84, s84, 1
    s_cbranch_scc0 ft_l
    """)
    a.label('ft_go')
    combine(0)
    if a.wprof:
        import k_gemm5
        a('s_waitcnt vmcnt(0)')
        k_gemm5.prof_stamp(a, 1)
    a(f's_branch {done}')
```

```python
from asmlib import *
from layout4 import *
import k_fin5 as F

SRD_WS = 4
SRD_T = 8
S_W = 3
S_X, S_I, S_G, S_H, S_S = 12, 13, 14, 15, 16
S_T0, S_T1, S_T2, S_T3, S_T4 = 17, 18, 19, 20, 21
S_TO = 22
S_MLD, S_MST, S_MRS, S_QST, S_QRS, S_PLD, S_OK, S_SP, S_TCH, S_RDG, S_RDY, S_C, S_CQG = range(23, 36)
S_MO, S_MSO, S_QO, S_PO, S_X1, S_KG, S_KL = range(36, 43)
S_QLD, S_QLD2, S_PSTC, S_PRS, S_PRG, S_CS, S_CST, S_DW, S_DU, S_U2, S_QT = range(23, 34)
S_M0 = 44
S_ID = 52
S_J = 53
S_SP0 = 54
S_KMX = 55
S_RTG = 58
S_OF, S_OB = 59, 60
S_XB, S_XBX, S_SCO, S_XG = 101, 68, 69, 43
LDS_SCP = 36864
S_MEX = 56
S_PROF = 70
LDS_RED1 = 0
LDS_FLG = 15872
LDS_PUB = 15968
LDS_RED2 = 16384
LDS_SEG = 32768
LDS_BULK = 65536
PSLOT = 18
CHAIN_LDS = 163840
CQ_TAB = WS_CNT + 512
TIMEOUT = 1 << 17

def red_gq(vs, vt, op):
    return [f'v_mov_b32 {v(vt)}, {v(vs)}', 's_nop 1', f'v_permlane16_swap_b32 {v(vt)}, {v(vs)}', f'{op} {v(vs)}, {v(vs)}, {v(vt)}',
            f'v_mov_b32 {v(vt)}, {v(vs)}', 's_nop 1', f'v_permlane32_swap_b32 {v(vt)}, {v(vs)}', f'{op} {v(vs)}, {v(vs)}, {v(vt)}']

def chk(regs, vt, target):
    r = list(regs); o = []
    if len(r) == 1:
        return [f'v_cmp_eq_u32 vcc, -1, {v(r[0])}', f's_cbranch_vccnz {target}']
    if len(r) == 2:
        o.append(f'v_max_u32 {v(vt)}, {v(r[0])}, {v(r[1])}'); r = []
    else:
        o.append(f'v_max3_u32 {v(vt)}, {v(r[0])}, {v(r[1])}, {v(r[2])}'); r = r[3:]
    while len(r) >= 2:
        o.append(f'v_max3_u32 {v(vt)}, {v(vt)}, {v(r[0])}, {v(r[1])}'); r = r[2:]
    if r: o.append(f'v_max_u32 {v(vt)}, {v(vt)}, {v(r[0])}')
    o.append(f'v_cmp_eq_u32 vcc, -1, {v(vt)}')
    o.append(f's_cbranch_vccnz {target}')
    return o

def retry_block(a, label, again, giveup):
    a.label(label)
    a('s_waitcnt vmcnt(0)')
    if a.rsleep: a(f's_sleep {a.rsleep}')
    a(f's_sub_u32 {s(S_TO)}, {s(S_TO)}, 1')
    a(f's_cbranch_scc0 {again}')
    a(f's_mov_b32 {s(S_TO)}, 0')
    a(f's_branch {giveup}')

def spin_block(a, label, loads, regs, vt, ok, giveup):
    a.label(label)
    a(f's_sub_u32 {s(S_TO)}, {s(S_TO)}, 1')
    a(f's_cbranch_scc1 {label}_g')
    for x in loads: a(x)
    a(f's_waitcnt vmcnt({len(loads)-1})')
    for x in chk(regs, vt, label): a(x)
    a(f's_branch {ok}')
    a.label(label + '_g')
    a(f's_mov_b32 {s(S_TO)}, 0')
    a('s_waitcnt vmcnt(0)')
    a(f's_branch {giveup}')

class Prof:
    def __init__(self, on): self.on = on; self.n = 0; self.names = []
    def stamp(self, a, name, lvl=0):
        if self.on and (lvl == 0 or lvl == a.fine or (lvl < 0 and -lvl != a.fine)):
            a(f's_memtime {s(S_PROF + 2*self.n, 2)}'); self.n += 1; self.names.append(name)
    def flush(self, a, vtmp, tag):
        if not self.on: return
        a(f's_memrealtime {s(S_PROF + 2*self.n, 2)}'); self.n += 1; self.names.append('rt')
        a(f's_sub_u32 {s(S_PROF + 2*self.n)}, s100, {s(S_TO)}'); self.n += 1; self.names.append('retries')
        a(f's_mov_b32 s100, {s(S_TO)}')
        assert self.n <= 15
        a('s_waitcnt lgkmcnt(0)')
        a(f's_lshl_b32 {s(S_T0)}, {s(S_ID)}, 3')
        a(f's_add_u32 {s(S_T0)}, {s(S_T0)}, {s(S_W)}')
        a(f's_lshl_b32 {s(S_T0)}, {s(S_T0)}, 6')
        a(f's_add_u32 {s(S_T0)}, {s(S_T0)}, {s(S_S)}')
        a(f's_lshl_b32 {s(S_T0)}, {s(S_T0)}, 6')
        a(f's_add_u32 {s(S_T0)}, {s(S_T0)}, {WS_YP}')
        for i in range(self.n):
            a(f'v_writelane_b32 {v(vtmp)}, {s(S_PROF+2*i)}, {i}')
        a(f's_mov_b64 exec, {(1<<self.n)-1}')
        a(f'v_mbcnt_lo_u32_b32 {v(vtmp+1)}, -1, 0')
        a(f'v_lshlrev_b32 {v(vtmp+1)}, 2, {v(vtmp+1)}')
        a(f'buffer_store_dword {v(vtmp)}, {v(vtmp+1)}, {s(SRD_WS,4)}, {s(S_T0)} offen')
        a('s_mov_b64 exec, -1')
        a.raw(f'; PROF {tag} ' + ' '.join(self.names))
        self.n = 0; self.names = []

def merge_fill(seq, fill, every=2, start=1):
    out = []; fi = 0
    for k, x in enumerate(seq):
        out.append(x)
        if k >= start and (k - start) % every == 0 and fi < len(fill):
            out.append(fill[fi]); fi += 1
    out += fill[fi:]
    return out

def flag_wait(a, tag, vaddr, off, vt, st, sl=1, one=False):
    a.label(tag)
    if one:
        a(f'ds_read_b32 {v(vt)}, {v(vaddr)} offset:{off}')
        a('s_waitcnt lgkmcnt(0)')
    else:
        a(f'ds_read_b128 {v(vt,4)}, {v(vaddr)} offset:{off}')
        a('s_waitcnt lgkmcnt(0)')
        a(f'v_min3_i32 {v(vt)}, {v(vt)}, {v(vt+1)}, {v(vt+2)}')
        a(f'v_min_i32 {v(vt)}, {v(vt)}, {v(vt+3)}')
        a('s_nop 0')
    a(f'v_readfirstlane_b32 {s(st)}, {v(vt)}')
    a(f's_cmp_ge_i32 {s(st)}, {s(S_S)}')
    a(f's_cbranch_scc1 {tag}ok')
    a(f's_sleep {sl}')
    a(f's_branch {tag}')
    a.label(tag + 'ok')

def ring(a, d, add, sh, base):
    if add: a(f's_add_u32 {s(d)}, {s(S_S)}, {add}')
    a(f's_and_b32 {s(d)}, {s(d if add else S_S)}, 3')
    a(f's_lshl_b32 {s(d)}, {s(d)}, {sh}')
    a(f's_add_u32 {s(d)}, {s(d)}, {s(base)}')

def sel_init(a, sel, vl, t1, t2):
    a(f'v_and_b32 {v(t1)}, 15, {v(vl)}')
    a(f'v_and_b32 {v(t2)}, 1, {v(t1)}')
    a(f'v_lshlrev_b32 {v(t2)}, 4, {v(t2)}')
    a(f'v_lshlrev_b32 {v(t2)}, {v(t2)}, 0x3f80' if False else f'v_mov_b32 {v(sel)}, 0x3f80')
    a(f'v_lshlrev_b32 {v(t2)}, {v(t2)}, {v(sel)}')
    a(f'v_lshrrev_b32 {v(t1)}, 1, {v(t1)}')
    for d in range(4):
        a(f'v_cmp_eq_u32 vcc, {d}, {v(t1)}')
        a('s_nop 1')
        a(f'v_cndmask_b32 {v(sel+d)}, 0, {v(t2)}, vcc')

PV_L16, PV_QST, PV_R1W, PV_R1R, PV_MST, PV_SGR, PV_SPS, PV_IDX = 1, 2, 3, 4, 5, 6, 7, 8
PV_PFA, PV_PFD, PV_FLGR = 0, 9, 58
PV_T, PV_NEG, PV_SEL = 9, 10, 12
PV_M, PV_ACC, PV_W = 16, 32, 64
PV_FV, PV_RDY, PV_R1W1, PV_R1W2, PV_FLGW = 59, 60, 61, 62, 63
def pw(b, t): return PV_W + (b * 6 + t) * 8

def mem0_issue(a):
    a(f'''
    s_load_dwordx2 {s(SRD_T,2)}, s[0:1], {KA_MEM0}
    s_mov_b32 {s(SRD_T+2)}, 16384
    v_bfe_u32 v57, v20, 2, 2
    v_and_b32 v58, 1, v20
    v_lshl_add_u32 v57, v57, 1, v58           ; token
    v_lshlrev_b32 v57, 11, v57
    v_lshrrev_b32 v58, 4, v20
    v_lshl_add_u32 v57, v58, 5, v57           ; + 32 g
    v_bfe_u32 v58, v20, 1, 1                  ; p
    v_lshl_add_u32 v57, v58, 4, v57
    v_lshl_add_u32 v59, v58, 3, v57
    v_xor_b32 v60, 8, v59
    s_lshl_b32 {s(S_T3)}, {s(S_W)}, 9
    s_waitcnt lgkmcnt(0)
    ''')
    for b in range(4):
        a(f'buffer_load_dwordx2 {v(32+4*b,2)}, v59, {s(SRD_T,4)}, {s(S_T3)} offen offset:{128*b}')
        a(f'buffer_load_dwordx2 {v(34+4*b,2)}, v60, {s(SRD_T,4)}, {s(S_T3)} offen offset:{128*b}')

def p_prologue(a):
    a(f'''
    v_and_b32 v20, 63, v0
    v_lshlrev_b32 {v(PV_L16)}, 4, v20
    v_mov_b32 {v(PV_NEG)}, -1
    v_mov_b32 {v(PV_NEG+1)}, -1
    v_lshrrev_b32 v21, 2, v20
    v_and_b32 v22, 3, v20
    v_lshlrev_b32 v21, 13, v21
    v_lshl_add_u32 v21, v22, 4, v21
    s_lshl_b32 {s(S_T0)}, {s(S_W)}, 21
    s_lshl_b32 {s(S_T1)}, {s(S_ID)}, 6
    s_add_u32 {s(S_T0)}, {s(S_T0)}, {s(S_T1)}
    s_lshl_b32 {s(S_T2)}, {s(S_W)}, 15
    s_mov_b32 {s(SRD_T+2)}, {8*MB}
    s_mov_b32 {s(SRD_T+3)}, {SRD3}
    v_lshrrev_b32 v24, 5, v20                 ; gB>>1
    v_bfe_u32 v25, v20, 3, 1                  ; r>>1
    v_lshl_add_u32 v24, v24, 1, v25           ; 2(gB>>1) + (r>>1)
    v_bfe_u32 v26, v20, 4, 1                  ; gB&1
    v_xor_b32 v26, v26, v25
    v_lshl_add_u32 v24, v24, 1, v26
    v_bfe_u32 v25, v20, 2, 1                  ; r&1
    v_lshl_add_u32 v24, v24, 2, v25           ; row
    v_lshlrev_b32 v24, 6, v24
    v_lshl_add_u32 v24, v22, 3, v24           ; + cc*8
    v_add_u32 v24, {s(S_T2)}, v24
    ''')
    if a.fl:
        a(f'''
        v_lshrrev_b32 v21, 3, v20
        v_and_b32 v23, 7, v20
        v_lshlrev_b32 v21, 14, v21
        v_lshl_add_u32 v21, v23, 4, v21
        s_and_b32 {s(S_T1)}, {s(S_I)}, 1
        s_mul_i32 {s(S_T1)}, {s(S_T1)}, {8192 - 64}
        s_add_u32 {s(S_T0)}, {s(S_T0)}, {s(S_T1)}
        ''')
    def src(p):
        a(f's_load_dwordx2 {s(SRD_T,2)}, s[0:1], {KA_WQ + 8*p}')
        a(f's_add_u32 {s(S_T3)}, {s(S_T0)}, s72')
        a('s_waitcnt lgkmcnt(0)')
    a(f's_and_b32 s70, {s(S_I)}, {1 if a.stag else 0}')
    a('s_lshl_b32 s72, s70, 20')
    a('s_lshl_b32 s73, s70, 21')
    a('s_lshl_b32 s70, s70, 13')
    a(f's_sub_u32 s71, {s(S_T2)}, s70')
    a(f's_add_u32 s70, {s(S_T2)}, s70')
    def issue(p, half):
        src(p)
        for n in range(16):
            if a.rot and p == 0 and n == a.rotn:
                a('s_barrier')
                a.rot_check(131072 + 64, 27)
            a(f's_add_u32 m0, {"s70" if n < 8 else "s71"}, {half*16384 + n*1024}')
            a('s_nop 0')
            a(f'buffer_load_dwordx4 v21, {s(SRD_T,4)}, {s(S_T3)} offen{a.wnt[p]} lds')
            a(f's_add_u32 {s(S_T3)}, {s(S_T3)}, {16*8192}')
            if n == 7: a(f's_sub_u32 {s(S_T3)}, {s(S_T3)}, s73')
    def fetch(p, half):
        for b in range(4):
            for T in range(2):
                for t4 in range(4):
                    a(f'ds_read_b64_tr_b16 {v(pw(b, 2*p+T)+2*t4, 2)}, v24 offset:{half*16384 + b*4096 + (32*(t4>>1) + 2*(t4&1))*64 + T*32}')
            a('s_waitcnt lgkmcnt(0)')
    issue(0, 0); issue(1, 1)
    src(2)
    land = [pw(n // 4, 4) + 4 * (n & 3) for n in range(16)]
    for n in range(16):
        a(f'buffer_load_dwordx4 {v(land[n],4)}, v21, {s(SRD_T,4)}, {s(S_T3)} offen{a.wnt[2]}')
        a(f's_add_u32 {s(S_T3)}, {s(S_T3)}, {16*8192}')
        if n == 7: a(f's_sub_u32 {s(S_T3)}, {s(S_T3)}, s73')
    mem0_issue(a)
    a('s_barrier')
    a(f'v_add_u32 v56, s70, {v(PV_L16)}')
    a(f'v_add_u32 v26, s71, {v(PV_L16)}')
    a('s_waitcnt vmcnt(40)'); fetch(0, 0)
    a('s_waitcnt vmcnt(24)'); fetch(1, 1)
    a('s_waitcnt vmcnt(8)')
    for n in range(16):
        a(f'ds_write_b128 {"v56" if n < 8 else "v26"}, {v(land[n],4)} offset:{n*1024}')
    a('s_waitcnt lgkmcnt(0)')
    fetch(2, 0)
    a(f'''
    v_mov_b32 v21, 0x44444444
    v_mov_b32 v22, 0xeeeeeeee
    v_and_b32 v23, 2, v20
    v_cmp_eq_u32 vcc, 0, v23
    s_nop 1
    v_cndmask_b32 {v(PV_IDX)}, v22, v21, vcc
    ''')
    a(f'''
    v_bfe_u32 v21, v20, 2, 3                  ; t
    v_lshrrev_b32 v22, 5, v20                 ; isk
    v_mul_u32_u24 v23, 160, v21
    v_mul_u32_u24 v24, 1280, v22
    v_add_u32 v23, v23, v24
    v_and_b32 v24, 3, v20
    v_lshl_add_u32 v27, v24, 4, v23
    v_lshrrev_b32 v23, 1, v21
    v_and_b32 v21, 1, v21
    v_lshl_add_u32 v21, v23, 2, v21           ; row0
    v_xor_b32 v22, 1, v22
    v_lshl_add_u32 v21, v22, 1, v21           ; row
    v_bfe_u32 v22, v20, 1, 1                  ; gq&1
    v_lshl_add_u32 v21, v22, 4, v21
    v_xor_b32 v22, v20, v22
    v_and_b32 v22, 1, v22                     ; hs
    v_lshlrev_b32 v21, 4, v21
    v_lshl_add_u32 v25, v22, 3, v21
    v_lshrrev_b32 v21, 3, v20                 ; t
    v_mul_u32_u24 v23, 160, v21
    v_and_b32 v24, 7, v20
    v_lshl_add_u32 v28, v24, 4, v23
    v_lshrrev_b32 v23, 1, v21
    v_and_b32 v21, 1, v21
    v_lshl_add_u32 v21, v23, 2, v21
    v_and_b32 v22, 1, v20                     ; p
    v_lshl_add_u32 v21, v22, 1, v21
    v_bfe_u32 v22, v20, 2, 1                  ; gq>>1
    v_lshl_add_u32 v21, v22, 4, v21
    v_bfe_u32 v22, v20, 1, 1                  ; gq&1
    v_lshlrev_b32 v21, 4, v21
    v_lshl_add_u32 v26, v22, 3, v21
    s_lshl_b32 {s(S_T0)}, {s(S_J)}, 10
    s_lshl_b32 {s(S_T1)}, {s(S_W)}, 9
    s_add_u32 {s(S_T0)}, {s(S_T0)}, {s(S_T1)}
    s_lshl_b32 {s(S_T1)}, {s(S_W)}, 6
    s_lshl_b32 {s(S_T2)}, {s(S_J)}, 9
    s_add_u32 {s(S_T2)}, {s(S_T2)}, 4096
    s_cmp_ge_u32 {s(S_W)}, 2
    s_cselect_b32 {s(S_T0)}, {s(S_T2)}, {s(S_T0)}
    s_cselect_b32 {s(S_T1)}, 2560, {s(S_T1)}
    s_cselect_b64 vcc, -1, 0
    v_cndmask_b32 v22, v25, v26, vcc
    v_cndmask_b32 v23, v27, v28, vcc
    v_add_u32 {v(PV_QST)}, {s(S_T0)}, v22
    v_add_u32 {v(PV_R1R)}, {s(S_T1)}, v23
    v_lshrrev_b32 v21, 4, v20                 ; g
    v_and_b32 v22, 15, v20                    ; n
    v_mul_u32_u24 v23, 320, v21
    v_lshl_add_u32 v23, v22, 2, v23
    s_mul_i32 {s(S_T0)}, {s(S_W)}, 3840
    v_add_u32 {v(PV_R1W)}, {s(S_T0)}, v23
    v_add_u32 {v(PV_R1W1)}, 1280, {v(PV_R1W)}
    v_bfe_u32 v24, v20, 3, 1
    v_bfe_u32 v25, v20, 2, 1
    v_xor_b32 v25, v25, v24                   ; hs
    v_bfe_u32 v26, v20, 1, 1                  ; p
    v_lshl_add_u32 v25, v26, 1, v25
    v_lshl_add_u32 v25, v24, 2, v25
    v_and_b32 v26, 1, v20
    v_lshl_add_u32 v25, v25, 1, v26           ; pos(n)
    v_sub_u32 v25, v25, v22
    v_lshl_add_u32 v25, v25, 2, {v(PV_R1W)}
    v_add_u32 {v(PV_R1W2)}, 2560, v25
    v_lshlrev_b32 v23, 4, v22
    v_lshl_add_u32 {v(PV_SGR)}, v21, 12, v23
    s_lshl_b32 {s(S_T0)}, {s(S_W)}, 10
    s_add_u32 {s(S_T0)}, {s(S_T0)}, {LDS_SEG}
    v_add_u32 {v(PV_SGR)}, {s(S_T0)}, {v(PV_SGR)}
    v_lshrrev_b32 v24, 1, v21
    v_lshl_add_u32 v23, v24, 15, v23
    v_and_b32 v24, 1, v21
    v_lshl_add_u32 {v(PV_SPS)}, v24, 8, v23
    v_mov_b32 {v(PV_FLGR)}, {LDS_FLG}
    v_bfe_u32 v23, v20, 1, 2                  ; t>>1
    v_lshlrev_b32 v23, 6, v23
    v_and_b32 v25, 1, v20
    v_lshl_add_u32 v23, v25, 4, v23
    v_bfe_u32 v24, v20, 3, 1
    v_lshl_add_u32 {v(PV_MST)}, v24, 5, v23
    v_and_b32 v23, 7, v20
    v_lshlrev_b32 v23, 7, v23
    v_bfe_u32 v24, v20, 3, 1
    v_lshl_add_u32 v23, v24, 17, v23
    v_lshrrev_b32 v24, 4, v20
    v_add_u32 v24, 1, v24
    v_cmp_le_u32 vcc, 3, v24
    s_nop 1
    v_cndmask_b32 v24, v24, 0, vcc
    v_lshl_add_u32 v23, v24, 24, v23
    s_lshl_b32 {s(S_T0)}, {s(S_G)}, 14
    s_lshl_b32 {s(S_T1)}, {s(S_C)}, 10
    s_add_u32 {s(S_T0)}, {s(S_T0)}, {s(S_T1)}
    s_add_u32 {s(S_T0)}, {s(S_T0)}, {WS_QS}
    v_add_u32 {v(PV_PFA)}, {s(S_T0)}, v23
    s_lshl_b32 {s(S_T0)}, {s(S_W)}, 2
    s_add_u32 {s(S_T0)}, {s(S_T0)}, {LDS_FLG}
    v_mov_b32 {v(PV_FLGW)}, {s(S_T0)}
    ''')
    sel_init(a, PV_SEL, 20, 21, 22)
    a('s_waitcnt vmcnt(0)')
    for i in range(16): a(f'v_mov_b32 {v(PV_M+i)}, {v(32+i)}')

def gate_addr(a, d, add, tg):
    a(f's_add_u32 {s(S_T4)}, {s(S_S)}, {add}')
    a(f's_min_u32 {s(S_T4)}, {s(S_T4)}, 63')
    if a.wt:
        a(f's_and_b32 {s(d)}, {s(S_T4)}, 0xfc')
        a(f's_cmp_eq_u32 {s(d)}, 8')
        a(f's_cselect_b32 {s(S_T4)}, 4, {s(S_T4)}')
    a(f's_cmp_ge_u32 {s(S_T4)}, {a.s0}')
    a(f's_cselect_b32 {s(tg)}, 12, 8')
    if a.scb < 64:
        a(f's_cmp_ge_u32 {s(S_T4)}, {a.scb}')
        a(f's_cselect_b32 {s(tg)}, 0, {s(tg)}')
    a(f's_and_b32 {s(d)}, {s(S_T4)}, 4')
    a(f's_lshr_b32 {s(S_T4)}, {s(S_T4)}, 3')
    a(f's_lshl_b32 {s(S_T4)}, {s(S_T4)}, 8')
    a(f's_add_u32 {s(d)}, {s(d)}, {s(S_T4)}')
    a(f's_add_u32 {s(d)}, {s(d)}, {s(S_CQG)}')

def p_gate(a, k):
    l = a.uid('gate')
    a(f's_bitcmp1_b32 {s(S_OK)}, {k}')
    a(f's_cbranch_scc1 {l}_ok')
    gate_addr(a, S_RDG, 1 + k, S_T2)
    a.label(l)
    a(f'buffer_load_dword {v(PV_T)}, off, {s(SRD_WS,4)}, {s(S_RDG)} sc1')
    a('s_waitcnt vmcnt(0)')
    a(f'v_readfirstlane_b32 {s(S_T4)}, {v(PV_T)}')
    a(f's_cmp_ge_u32 {s(S_T4)}, {s(S_T2)}')
    a(f's_cbranch_scc1 {l}_set')
    a('s_sleep 8')
    a(f's_sub_u32 {s(S_TO)}, {s(S_TO)}, 1')
    a(f's_cbranch_scc0 {l}')
    a(f's_mov_b32 {s(S_TO)}, 0')
    a.label(l + '_set')
    a(f's_bitset1_b32 {s(S_OK)}, {k}')
    a.label(l + '_ok')

def dma_list(a, m, vl16, st, S_KG=S_KG, S_KL=S_KL, hd=0):
    base = (WS_KS, WS_VS, WS_QS)[m] + 4096 * hd
    o = []
    for kt in range(2):
        for u in range(4):
            pre = f's_add_u32 m0, {s(S_KL)}, {8192*m + 4096*kt + 24576*hd}\ns_add_u32 {s(st)}, {s(S_KG)}, {base + 131072*kt}\n' if u == 0 else ''
            o.append(pre + f'buffer_load_dwordx4 {v(vl16)}, {s(SRD_WS,4)}, {s(st)} offen offset:{1024*u} sc1{a.bnt} lds')
    return o

def reg_list(a, m, reg, st):
    base = (WS_KS, WS_VS, WS_QS)[m]
    o = []
    for kt in range(2):
        for u in range(4):
            pre = f's_add_u32 {s(st+kt)}, {s(S_KG)}, {base + 131072*kt}\n' if u == 0 else ''
            o.append(pre + f'buffer_load_dwordx4 {v(reg+(kt*4+u)*4,4)}, {v(AV_L16)}, {s(SRD_WS,4)}, {s(st+kt)} offen offset:{1024*u} sc1{a.bnt}')
    return o

def p_segreduce(a, part=3):
    if part & 1: p_segcalc(a)
    if part & 2: p_segstore(a)

def p_segcalc(a):
    S1 = 48
    for ul in range(2):
        for rt in range(2):
            a(f'ds_read_b128 {v(PV_M+4*(2*ul+rt),4)}, {v(PV_SGR)} offset:{512*ul+256*rt}')
    a(f'v_xor_b32 {v(PV_SGR)}, 0x4000, {v(PV_SGR)}')
    for ul in range(2):
        D = 40 + 4 * ul
        a(f's_waitcnt lgkmcnt({2-2*ul})')
        a(f'v_mfma_f32_16x16x32_bf16 {v(D,4)}, {v(PV_SEL,4)}, {v(PV_M+8*ul,4)}, 0')
        a(f'v_mfma_f32_16x16x32_bf16 {v(D,4)}, {v(S1,4)}, {v(PV_M+8*ul+4,4)}, {v(D,4)}')
    a('s_nop 7')
    a('v_cvt_pk_bf16_f32 v40, v40, v41')
    a('v_cvt_pk_bf16_f32 v41, v42, v43')
    a('v_cvt_pk_bf16_f32 v42, v44, v45')
    a('v_cvt_pk_bf16_f32 v43, v46, v47')
    a('s_nop 1')
    a('v_permlane16_swap_b32 v40, v42')
    a('v_permlane16_swap_b32 v41, v43')
    a('s_nop 1')
    a('v_min_u32 v40, -2, v40')

def p_segstore(a):
    a(f'buffer_store_dwordx4 v[40:43], {v(PV_SPS)}, {s(SRD_WS,4)}, {s(S_SP)} offen sc1{a.spnt}')
    a(f's_add_u32 {s(S_SP)}, {s(S_SP)}, 65536')

def p_loop(a, loc, prof, done):
    LH = a.uid('ploopH')
    for i in range(24): a(f'v_mov_b32 {v(PV_ACC+i)}, 0')
    a(f'v_mov_b32 {v(PV_FV)}, 0')
    a('s_nop 1')
    if a.s1:
        LL = a.uid('ploopL')
        a(f's_branch {LL}_nc')
        LM = a.uid('ploopM') if a.s2 > a.s1 else None
        p_body(a, loc, Prof(prof), done, LL, True, LM or LH, True)
        if LM: p_body(a, loc, Prof(prof), done, LM, True, LH, False, True)
    else: a(f's_branch {LH}_nc')
    p_body(a, loc, Prof(prof), done, LH, False, None, not a.s1)

def p_body(a, loc, pf, done, L, light, nxt, entry, med=False):
    lim = a.s2 if med else a.s1
    Lrm = L + '_rm'; Lrp = L + '_rp'
    mld = [f'buffer_load_dwordx4 {v(PV_M+4*j,4)}, {v(PV_L16)}, {s(SRD_WS,4)}, {s(S_MLD)} offen offset:{1024*j} sc1' for j in range(4)]
    mreg = lambda b: [PV_M + 4 * b]
    def mm(check):
        if check:
            a('s_waitcnt vmcnt(3)')
            for x in chk(mreg(0), PV_T, f'{Lrm}_0'): a(x)
            a.label(f'{Lrm}_0ok')
            pf.stamp(a, 'b0ok')
        for b in range(4):
            ms = [f'v_smfmac_f32_16x16x64_bf16 {v(PV_ACC+4*t,4)}, {v(PV_M+4*b,4)}, {v(pw(b,t),8)}, {v(PV_IDX)}' for t in range(4 if a.qkf else 6)]
            if check and b < 3:
                c = chk(mreg(b + 1), PV_T, f'{Lrm}_{b+1}')
                ms = ms[:a.mck] + [f's_waitcnt vmcnt({2-b})'] + c[:-1] + ms[a.mck:] + c[-1:]
            if b == 3:
                ms = ms[:1] + [f'ds_write_b32 {v(PV_FLGW)}, {v(PV_FV)} offset:32'] + ms[1:]
            for x in ms: a(x)
            if check and b < 3: a.label(f'{Lrm}_{b+1}ok')
    if a.al: a.raw(f'.p2align {a.al}')
    for i in range(a.alo): a('s_nop 0')
    a.label(L)
    pf.stamp(a, 'top')
    for i in range(24): a(f'v_mov_b32 {v(PV_ACC+i)}, 0')
    if light and a.jit: p_gate(a, 0)
    if a.md: a(f's_sleep {a.md}')
    for x in mld: a(x)
    mm(True)
    if entry:
        a(f's_branch {L}_mmd')
        a.label(L + '_nc')
        if pf.on:
            a(f's_memtime {s(S_PROF, 2)}'); a(f's_memtime {s(S_PROF+2, 2)}')
        mm(False)
        a.label(L + '_mmd')
    pf.stamp(a, 'mmdone')
    def wr(t):
        A = PV_ACC + 4 * t
        a(f'v_add_f32 {v(A)}, {v(A)}, {v(A+2)}'); a(f'v_add_f32 {v(A+1)}, {v(A+1)}, {v(A+3)}')
        a(f'ds_write2_b32 {v((PV_R1W, PV_R1W1, PV_R1W2)[t>>1])}, {v(A)}, {v(A+1)} offset0:{16*(t&1)} offset1:{16*(t&1)+40}')
    R = 32
    def add4(d, x):
        for e in range(4): a(f'v_add_f32 {v(d+e)}, {v(d+e)}, {v(x+e)}')
    def reduce(fill=()):
        for h in range(4):
            a(f'ds_read_b128 {v(R+4*h,4)}, {v(PV_R1R)} offset:{LDS_RED1+3840*h}')
        for x in fill: a(x)
        a('s_waitcnt lgkmcnt(2)')
        add4(R, R + 4)
        a('s_waitcnt lgkmcnt(0)')
        add4(R + 8, R + 12)
        add4(R, R + 8)
        a(f'v_cvt_pk_bf16_f32 v56, {v(R)}, {v(R+1)}')
        a(f'v_cvt_pk_bf16_f32 v57, {v(R+2)}, {v(R+3)}')
        a('v_min_u32 v56, -2, v56')
        a(f'buffer_store_dwordx2 v[56:57], {v(PV_QST)}, {s(SRD_WS,4)}, {s(S_QST)} offen{loc}')
    def qreset():
        ring(a, S_QRS, 2, 18, S_QO)
        a(f'buffer_store_dwordx2 {v(PV_NEG,2)}, {v(PV_QST)}, {s(SRD_WS,4)}, {s(S_QRS)} offen{loc}')
    if a.qkf:
        vm = [f'v_smfmac_f32_16x16x64_bf16 {v(PV_ACC+4*t,4)}, {v(PV_M+4*b,4)}, {v(pw(b,t),8)}, {v(PV_IDX)}' for b in range(4) for t in (4, 5)]
        a(f's_cmp_ge_u32 {s(S_W)}, 2')
        for x in vm[:2]: a(x)
        a('s_nop 1')
        for t in range(4): wr(t)
        for x in vm[2:4]: a(x)
        a('s_waitcnt lgkmcnt(0)')
        pf.stamp(a, 'b1rdy', -2)
        a('s_barrier')
        pf.stamp(a, 'b1')
        a(f's_cbranch_scc1 {L}_sk0')
        reduce(vm[4:])
        a(f's_branch {L}_sk0b')
        a.label(L + '_sk0')
        for x in vm[4:]: a(x)
        a('s_nop 6')
        a.label(L + '_sk0b')
        a(f's_cmp_lg_u32 {s(S_W)}, 2')
        wr(4); wr(5)
        a('s_waitcnt lgkmcnt(0)')
        a('s_barrier')
        a(f's_cbranch_scc1 {L}_sk2')
        reduce()
        a.label(L + '_sk2')
        a(f's_cmp_eq_u32 {s(S_W)}, 3')
        a(f's_cbranch_scc1 {L}_sk1')
        qreset()
    else:
        a(f's_cmp_eq_u32 {s(S_W)}, 3')
        a('s_nop 1')
        for t in range(6): wr(t)
        a('s_waitcnt lgkmcnt(0)')
        pf.stamp(a, 'b1rdy', -2)
        a('s_barrier')
        pf.stamp(a, 'b1')
        a(f's_cbranch_scc1 {L}_sk1')
        reduce()
        qreset()
    a.label(L + '_sk1')
    pf.stamp(a, 'qpub', -2)
    a('s_setprio 0')
    sc = light and a.scb < 64 and not med
    NU = 2 * (64 - a.scb)
    def sc_cond(lo, lab):
        a(f's_sub_u32 {s(S_T0)}, {s(S_S)}, {lo}')
        a(f's_cmp_ge_u32 {s(S_T0)}, {NU}')
        a(f's_cbranch_scc1 {lab}')
    if sc:
        assert a.sc0 + NU + 1 < a.s1 and a.sc0 + NU + 2 < 63 and a.sc0 + 4 < a.scb
        sc_cond(a.sc0 + 1, L + '_nsc')
        a(f's_setprio {a.scp}')
        a(f'v_add_u32 {v(PV_T)}, {s(S_XB)}, {v(PV_L16)}')
        if not a.xpos: a(f's_xor_b32 {s(S_XB)}, {s(S_XB)}, {s(S_XBX)}')
        rd = lambda k: f'ds_read_b128 {v(PV_M+4*(k&3),4)}, {v(PV_T)} offset:{1024*k}'
        for k in range(4): a(rd(k))
        for k in range(8):
            a(f's_waitcnt lgkmcnt({min(3, 7-k) if k < 4 or True else 0})' if k == 0 else f's_waitcnt lgkmcnt({min(2, 7-k)})')
            for t in range(6):
                d = v(PV_ACC + 4 * t, 4)
                a(f'v_mfma_f32_16x16x32_bf16 {d}, {v(PV_M+4*(k&3),4)}, {v(pw(k>>1,t)+4*(k&1),4)}, {"0" if k == 0 else d}')
                if t == 2 and 1 <= k and k + 3 < 8: a(rd(k + 3))
        a(f"""
        v_lshrrev_b32 {v(PV_M)}, 8, {v(PV_L16)}
        v_mul_u32_u24 {v(PV_M)}, 576, {v(PV_M)}
        v_bfe_u32 {v(PV_M+1)}, {v(PV_L16)}, 4, 4
        v_lshl_add_u32 {v(PV_M)}, {v(PV_M+1)}, 2, {v(PV_M)}
        s_mul_i32 {s(S_T0)}, {s(S_W)}, 6912
        s_add_u32 {s(S_T0)}, {s(S_T0)}, {LDS_SCP}
        v_add_u32 {v(PV_M)}, {s(S_T0)}, {v(PV_M)}
        v_add_u32 {v(PV_M+1)}, 2304, {v(PV_M)}
        v_add_u32 {v(PV_M+2)}, 4608, {v(PV_M)}
        """)
        for t in range(6):
            for i in (0, 2):
                a(f'ds_write2_b32 {v(PV_M+(t>>1))}, {v(PV_ACC+4*t+i)}, {v(PV_ACC+4*t+i+1)} offset0:{36*i+16*(t&1)} offset1:{36*i+36+16*(t&1)}')
        a('s_waitcnt lgkmcnt(0)')
        a('s_setprio 0')
        a.label(L + '_nsc')
    ring(a, S_MRS, 3, a.msh, S_MSO)
    mex = f's_mov_b64 exec, {s(S_MEX,2)}'
    for d in range(4): a(f'v_mov_b32 {v(44+d)}, -1')
    a(mex)
    a(f'buffer_store_dwordx4 v[44:47], {v(PV_MST)}, {s(SRD_WS,4)}, {s(S_MRS)} offen{loc}')
    a('s_mov_b64 exec, -1')
    if not light or med:
        for d in range(4): a(f'v_mov_b32_dpp {v(48+d)}, {v(PV_SEL+d)} row_ror:8 row_mask:0xf bank_mask:0xf')
    ring(a, S_PLD, 0, PSLOT, S_PO)
    ring(a, S_MST, 1, a.msh, S_MSO)
    ring(a, S_MLD, 1, a.msh, S_MO)
    ring(a, S_QST, 1, 18, S_QO)
    def seg(part):
        if 's' in a.abl: return
        Lh = a.uid('pnoseg')
        a(f's_cmp_eq_u32 {s(S_SP)}, {s(S_SP0)}')
        a(f's_cbranch_scc1 {Lh}')
        p_segreduce(a, part)
        a.label(Lh)
    def oflush(part):
        l = a.uid('ofl')
        a(f's_cmp_eq_u32 {s(S_OF)}, 0')
        a(f's_cbranch_scc1 {l}')
        if part == 1:
            a(f's_lshl_b32 {s(S_T0)}, {s(S_W)}, 10')
            a(f'v_add_u32 v39, {s(S_T0)}, {v(PV_L16)}')
            a(f'ds_read_b128 v[40:43], v39 offset:{LDS_SEG}')
        else:
            a(f's_lshl_b32 {s(S_T0)}, {s(S_S)}, 18')
            a(f's_add_u32 {s(S_T0)}, {s(S_T0)}, {s(S_OB)}')
            if 'o' not in a.abl: a(f'buffer_store_dwordx4 v[40:43], {v(PV_L16)}, {s(SRD_WS,4)}, {s(S_T0)} offen sc1')
            a(f's_mov_b32 {s(S_OF)}, 0')
        a.label(l)
    unit = a.s0 < a.s1
    if unit: oflush(1)
    if med: seg(1)
    elif light:
        a(f"""
        s_cmp_ge_u32 {s(S_S)}, {a.s0}
        s_cbranch_scc1 {L}_nx
        v_mov_b32 v40, {v(PV_QST)}
        v_mov_b32 v42, v56
        v_mov_b32 v43, v57
        s_cmp_lg_u32 {s(S_W)}, 2
        s_cbranch_scc1 {L}_nx
        v_and_b32 v40, 0x60, {v(PV_L16)}
        v_lshlrev_b32 v40, 2, v40
        v_lshrrev_b32 v41, 3, {v(PV_L16)}
        v_and_b32 v41, 0x70, v41
        v_or_b32 v40, v40, v41
        v_bfe_u32 v41, {v(PV_L16)}, 4, 1
        v_lshl_or_b32 v40, v41, 3, v40
        s_lshl_b32 {s(S_T0)}, {s(S_J)}, 9
        s_add_u32 {s(S_T0)}, {s(S_T0)}, 4096
        v_add_u32 v40, {s(S_T0)}, v40
        s_mov_b32 vcc_lo, 0x55555555
        s_mov_b32 vcc_hi, 0x55555555
        v_cndmask_b32_dpp v42, v57, v56, vcc quad_perm:[1,0,3,2] row_mask:0xf bank_mask:0xf
        s_not_b64 vcc, vcc
        v_cndmask_b32_dpp v43, v56, v57, vcc quad_perm:[1,0,3,2] row_mask:0xf bank_mask:0xf
        """)
        a.label(L + '_nx')
    else:
        a(f's_cmp_eq_u32 {s(S_S)}, {a.last}')
        a(f's_cbranch_scc1 {L}_tail')
        seg(1)
    if not (light and a.jit): p_gate(a, 1 if light else 0)
    a(f'v_readfirstlane_b32 {s(S_T4)}, {v(PV_RDY)}')
    a(f's_lshr_b32 {s(S_OK)}, {s(S_OK)}, 1')
    a(f's_cmp_ge_u32 {s(S_T4)}, {s(S_RTG)}')
    a(f's_cselect_b32 {s(S_T4)}, 2, 0')
    a(f's_or_b32 {s(S_OK)}, {s(S_OK)}, {s(S_T4)}')
    a(f's_cmp_eq_u32 {s(S_W)}, 3')
    a(f's_cselect_b32 {s(S_T3)}, {s(S_T4)}, 0')
    gate_addr(a, S_RDY, 4, S_RTG)
    dl = []
    for m, ch in (((1, 'v'),) if a.hk and not light else ((0, 'k'), (1, 'v'))[:1 if light else 2]):
        if ch not in a.abl and not (light and a.lr & 2): dl += dma_list(a, m, PV_L16, S_T0)
    nd1 = a.ndl if light else a.nd1
    a(f's_setprio {a.fprio}')
    flag_wait(a, L + '_fs', PV_FLGR, 0, 32, S_T1, sl=a.fsl)
    pf.stamp(a, 'flag')
    a(f's_setprio {a.dprio}')
    for x in dl[:nd1]: a(x)
    def xdma(lo, hi, tag):
        if lo == hi: return
        sc_cond(a.sc0, L + tag)
        for k in range(lo, hi):
            if k == lo or k == 4:
                a(f's_add_u32 m0, {s(S_XB)}, {4096*(k>>2)}')
                a(f's_add_u32 {s(S_T0)}, {s(S_XG)}, {4096*(k>>2)}')
            a(f'buffer_load_dwordx4 {v(PV_L16)}, {s(SRD_WS,4)}, {s(S_T0)} offen offset:{1024*(k&3)} sc1 lds')
        if hi == 8: a(f's_add_u32 {s(S_XG)}, {s(S_XG)}, 32768')
        a.label(L + tag)
    if sc and a.xpos: xdma(0, a.nx1, '_x1')
    if light and a.ofd:
        if sc:
            a(f's_sub_u32 {s(S_T0)}, {s(S_S)}, {a.sc0}')
            a(f's_cmp_le_u32 {s(S_T0)}, {NU}')
            a(f's_cbranch_scc1 {L}_nofd')
        a(f's_sleep {a.ofd}')
        a.label(L + '_nofd')
    if 't' not in a.abl:
        a(f's_cmp_eq_u32 {s(S_T3)}, 0')
        a(f's_cbranch_scc1 {L}_nt')
        if light:
            a(f's_cmp_ge_u32 {s(S_S)}, {max(a.s0 - 3, 0)}')
            a('s_cselect_b32 exec_hi, 0xffff, 0')
        else: a('s_mov_b32 exec_hi, 0xffff')
        a(f'buffer_load_dword {v(PV_RDY)}, {v(PV_PFA)}, {s(SRD_WS,4)}, {s(S_TCH)} offen sc1')
        a('s_mov_b32 exec_hi, -1')
        if a.ctch:
            for n, (st, lab, nl) in enumerate(((a.s1 - 2, nxt, 18), (a.s1 - 2, 'ct_aH', 30)) if light else ((a.last - 2, 'ct_tail', 2), (a.last - 2, L + '_tail', 4))):
                a(f's_cmp_lg_u32 {s(S_S)}, {st}')
                a(f's_cbranch_scc1 {L}_nt')
                vcode_touch(a, lab, nl, 62, PV_L16, 38, PV_RDY)
        a.label(L + '_nt')
    if sc:
        a(f's_cmp_lg_u32 {s(S_W)}, 2')
        a(f's_cbranch_scc1 {L}_nxt')
        sc_cond(a.sc0 - 2, L + '_nxt')
        a(f's_lshl_b32 {s(S_T0)}, {s(S_T0)}, 15')
        a(f's_lshl_b32 {s(S_T1)}, {s(S_I)}, 10')
        a(f's_add_u32 {s(S_T0)}, {s(S_T0)}, {s(S_T1)}')
        a(f's_add_u32 {s(S_T0)}, {s(S_T0)}, {WS_XN2 + a.scb * 65536}')
        a(f'v_lshlrev_b32 v39, 3, {v(PV_L16)}')
        a('s_mov_b64 exec, 0xff')
        a(f'buffer_load_dword {v(PV_RDY)}, v39, {s(SRD_WS,4)}, {s(S_T0)} offen sc1')
        a('s_mov_b64 exec, -1')
        a.label(L + '_nxt')
    if unit: oflush(2)
    if med: seg(2)
    elif light:
        if unit:
            a(f's_lshr_b32 {s(S_T0)}, {s(S_C)}, 3')
            a(f's_xor_b32 {s(S_T0)}, {s(S_T0)}, {s(S_S)}')
            a(f's_andn2_b32 {s(S_OF)}, 1, {s(S_T0)}')
            a(f's_cmp_ge_u32 {s(S_S)}, {a.s0}')
            a(f's_cselect_b32 {s(S_OF)}, {s(S_OF)}, 0')
            a(f's_cbranch_scc1 {L}_nx2')
        a(f's_cmp_eq_u32 {s(S_W)}, 3')
        a(f's_cbranch_scc1 {L}_nx2')
        if 'x' not in a.abl: a(f'buffer_store_dwordx2 v[42:43], v40, {s(SRD_WS,4)}, {s(S_KMX)} offen sc1')
        a.label(L + '_nx2')
        a(f's_add_u32 {s(S_KMX)}, {s(S_KMX)}, 262144')
    else: seg(2)
    if a.pgp:
        a(f's_or_b32 {s(S_T0)}, {s(S_I)}, {s(S_W)}')
        a(f's_cmp_lg_u32 {s(S_T0)}, 0')
        a(f's_cbranch_scc1 {L}_npg')
        a(f's_sub_u32 {s(S_T4)}, {s(S_S)}, 1')
        a(f's_cbranch_scc1 {L}_npg')
        a(f's_sub_u32 {s(S_T0)}, {s(S_T4)}, 1')
        a(f's_and_b32 {s(S_T0)}, {s(S_T0)}, 3')
        a(f's_cmp_ge_u32 {s(S_S)}, 58')
        a(f's_cselect_b32 {s(S_T0)}, 0, {s(S_T0)}')
        a(f's_cmp_lg_u32 {s(S_T0)}, 0')
        a(f's_cbranch_scc1 {L}_npg')
        a(f's_lshl_b32 {s(S_T0)}, {s(S_X)}, 7')
        a(f's_add_u32 {s(S_T0)}, {s(S_T0)}, {F.CS_TAB}')
        a(f'v_mov_b32 {v(PV_T)}, {s(S_T4)}')
        a('s_mov_b64 exec, 1')
        a(f'buffer_store_dword {v(PV_T)}, off, {s(SRD_WS,4)}, {s(S_T0)} sc1')
        a('s_mov_b64 exec, -1')
        a.label(L + '_npg')
    if a.rdp: a(f'buffer_load_dword {v(PV_RDY)}, off, {s(SRD_WS,4)}, {s(S_RDY)} sc1')
    pf.stamp(a, 'b2rdy')
    a('s_barrier')
    pf.stamp(a, 'b2')
    if a.dtim:
        a(f's_or_b32 {s(S_T0)}, {s(S_ID)}, {s(S_W)}')
        a(f's_and_b32 {s(S_T1)}, {s(S_S)}, 7')
        a(f's_or_b32 {s(S_T0)}, {s(S_T0)}, {s(S_T1)}')
        a(f's_cmp_lg_u32 {s(S_T0)}, 0')
        a(f's_cbranch_scc1 {L}_ndt')
        a('s_memrealtime s[96:97]')
        a(f's_lshr_b32 {s(S_T0)}, {s(S_S)}, 1')
        a('s_waitcnt lgkmcnt(0)')
        a(f'v_mov_b32 {v(PV_T)}, s96')
        a('s_mov_b64 exec, 1')
        a(f'buffer_store_dword {v(PV_T)}, off, {s(F.SRD_DBG,4)}, {s(S_T0)} offset:24')
        a('s_mov_b64 exec, -1')
        a.label(L + '_ndt')
    if not a.rdp: a(f'buffer_load_dword {v(PV_RDY)}, off, {s(SRD_WS,4)}, {s(S_RDY)} sc1')
    if sc:
        a(f's_cmp_eq_u32 {s(S_W)}, 3')
        a(f's_cbranch_scc1 {L}_nsr')
        sc_cond(a.sc0 + 1, L + '_nsr')
        a(f"""
        v_bfe_u32 v56, {v(PV_L16)}, 4, 4
        v_mul_u32_u24 v56, 144, v56
        v_lshrrev_b32 v57, 8, {v(PV_L16)}
        v_lshl_add_u32 v56, v57, 5, v56
        v_and_b32 v57, 1, v57
        s_mul_i32 {s(S_T0)}, {s(S_W)}, 2304
        s_add_u32 {s(S_T0)}, {s(S_T0)}, {LDS_SCP}
        v_add_u32 v56, {s(S_T0)}, v56
        v_sub_u32 {v(PV_T)}, 1, v57
        v_lshl_add_u32 {v(PV_T)}, {v(PV_T)}, 4, v56
        v_lshl_add_u32 v56, v57, 4, v56
        """)
        for h in range(4):
            a(f'ds_read_b128 {v(16+8*h,4)}, v56 offset:{6912*h}')
            a(f'ds_read_b128 {v(20+8*h,4)}, {v(PV_T)} offset:{6912*h}')
        a('s_waitcnt lgkmcnt(4)')
        for e in range(8): a(f'v_add_f32 {v(16+e)}, {v(16+e)}, {v(24+e)}')
        a('s_waitcnt lgkmcnt(0)')
        for e in range(8): a(f'v_add_f32 {v(32+e)}, {v(32+e)}, {v(40+e)}')
        for e in range(8): a(f'v_add_f32 {v(16+e)}, {v(16+e)}, {v(32+e)}')
        for d in range(4): a(f'v_cvt_pk_bf16_f32 {v(44+d)}, {v(16+2*d)}, {v(17+2*d)}')
        a(f'buffer_store_dwordx4 v[44:47], {v(PV_L16)}, {s(SRD_WS,4)}, {s(S_SCO)} offen{loc}')
        a(f's_add_u32 {s(S_SCO)}, {s(S_SCO)}, 131072')
        a(f's_branch {L}_nsr2')
        a.label(L + '_nsr')
        a(f's_sleep {a.scd}')
        a.label(L + '_nsr2')
        if a.xpos: xdma(a.nx1, 8, '_x2')
        a(f's_sleep {max(a.cdl - a.scd - a.scx, 0)}')
    if dl[nd1:]:
        if a.d2: a(f's_sleep {a.d2}')
        for x in dl[nd1:]: a(x)
    a(f's_add_u32 {s(S_S)}, {s(S_S)}, 1')
    a(f'v_mov_b32 {v(PV_FV)}, {s(S_S)}')
    a(f's_add_u32 {s(S_KG)}, {s(S_KG)}, 262144')
    a(f's_add_u32 {s(S_TCH)}, {s(S_TCH)}, 262144')
    if not light or med: a(f's_mov_b32 {s(S_SP0)}, 0')
    a('s_setprio 3')
    cd = 0 if sc else a.cdl if light else a.cdh if a.hk else a.cd
    if cd: a(f's_sleep {cd}')
    pf.stamp(a, 'poll')
    a.label(L + '_pagain')
    for i in range(2): a(f'buffer_load_dwordx4 {v(PV_M+4*i,4)}, {v(PV_L16)}, {s(SRD_WS,4)}, {s(S_PLD)} offen offset:{1024*i} sc1')
    D = 32
    a('s_waitcnt vmcnt(1)')
    a(f'v_mfma_f32_16x16x32_bf16 {v(D,4)}, {v(PV_SEL,4)}, {v(PV_M,4)}, 0')
    a('s_waitcnt vmcnt(0)')
    pf.stamp(a, 'p1')
    a(f'v_mfma_f32_16x16x32_bf16 {v(D,4)}, {v(PV_SEL,4)}, {v(PV_M+4,4)}, {v(D,4)}')
    for x in chk([PV_M, PV_M + 4], PV_T, Lrp): a(x)
    a.label(L + '_pgo')
    if light: a(f's_cmp_lt_u32 {s(S_S)}, {lim}')
    a(f's_nop {3 if light else 4}')
    a(f'v_cvt_pk_bf16_f32 v52, {v(D)}, {v(D+1)}')
    a(f'v_cvt_pk_bf16_f32 v53, {v(D+2)}, {v(D+3)}')
    a('s_nop 0')
    a('v_permlane16_swap_b32 v52, v54')
    a('v_permlane16_swap_b32 v53, v55')
    a(mex)
    a('v_min_u32 v52, -2, v52')
    a(f'buffer_store_dwordx4 v[52:55], {v(PV_MST)}, {s(SRD_WS,4)}, {s(S_MST)} offen{loc}')
    a('s_mov_b64 exec, -1')
    a(f'ds_write_b32 {v(PV_FLGW)}, {v(PV_FV)} offset:16')
    pf.stamp(a, 'mpub')
    if pf.on:
        a(f's_sub_u32 {s(S_S)}, {s(S_S)}, 1')
        pf.flush(a, 56, 'P')
        a(f's_add_u32 {s(S_S)}, {s(S_S)}, 1')
        if light: a(f's_cmp_lt_u32 {s(S_S)}, {lim}')
    if light:
        a(f's_cbranch_scc1 {L}')
        a(f's_branch {nxt}')
    else: a(f's_branch {L}')
    for b in range(4):
        spin_block(a, f'{Lrm}_{b}', mld[b:], mreg(b), PV_T, f'{Lrm}_{b}ok', f'{Lrm}_{b}ok')
    a.label(Lrp)
    if a.rsleep: a(f's_sleep {a.rsleep}')
    a(f's_sub_u32 {s(S_TO)}, {s(S_TO)}, 1')
    a(f's_cbranch_scc0 {L}_pagain')
    a(f's_mov_b32 {s(S_TO)}, 0')
    a(f's_branch {L}_pgo')
    if not light:
        a.label(L + '_tail')
        p_segreduce(a)
        a('s_barrier')
        p_segreduce(a)
        a(f's_branch {done}')

AV_L16, AV_PST, AV_MX, AV_T = 0, 1, 2, 3
AV_ONE = 4
AV_HALF = 8
AV_IDX = 166
AV_FLGR = 167
AV_VMW, AV_TRV, AV_TRM = 180, 181, 182
S_QM = 56
S_PXO, S_SLOW = 58, 59
AV_S = 12
AV_O = 24
AV_VWM = 40
AV_Y, AV_X = 48, 64
AV_VWS = 80
AV_KS, AV_TB = 96, 128
AV_NEG, AV_R2W, AV_R2R, AV_SGW, AV_LB, AV_FLGW, AV_FV = 176, 160, 161, 162, 163, 164, 165
AV_PK = 168
AV_SEL = 184
AV_FT = 188
AV_WO = 192
def wo(u, ct): return AV_WO + (ct * 4 + u) * 4
def xk(u): return AV_Y + 4 * u

def tr_addr(a, vd, vl, rowbytes, T, hh, t1, t2):
    sh = rowbytes.bit_length() - 1
    a(f'''
    v_lshrrev_b32 {v(t1)}, 4, {v(vl)}
    v_and_b32 {v(t2)}, 1, {v(t1)}
    v_xor_b32 {v(t2)}, {hh}, {v(t2)}
    v_lshlrev_b32 {v(t2)}, 2, {v(t2)}
    v_lshl_add_u32 {v(t2)}, {v(t1)}, 3, {v(t2)}
    v_bfe_u32 {v(t1)}, {v(vl)}, 2, 2
    v_add_u32 {v(t2)}, {v(t2)}, {v(t1)}
    v_lshlrev_b32 {v(t2)}, {sh}, {v(t2)}
    v_and_b32 {v(t1)}, 3, {v(vl)}
    v_lshl_add_u32 {v(t2)}, {v(t1)}, 4, {v(t2)}
    v_and_b32 {v(t1)}, 1, {v(t1)}
    v_xor_b32 {v(t1)}, {T}, {v(t1)}
    v_lshl_add_u32 {v(vd)}, {v(t1)}, 3, {v(t2)}
    ''')

def vw_list(AV_TB):
    m = []
    for u in range(4):
        for kt in range(2):
            for ct in range(4):
                d = AV_Y + (kt * 4 + ct) * 4
                m.append(f'v_mfma_f32_16x16x32_bf16 {v(d,4)}, {v(AV_TB+(kt*4+u)*4,4)}, {v(wo(u,ct),4)}, {"0" if u==0 else v(d,4)}')
    return m
def vw_pack():
    o = []
    for ct in range(4):
        for kt in range(2):
            d = AV_Y + (kt * 4 + ct) * 4
            o.append(f'v_cvt_pk_bf16_f32 {v(AV_VWS+4*ct+2*kt)}, {v(d)}, {v(d+1)}')
            o.append(f'v_cvt_pk_bf16_f32 {v(AV_VWS+4*ct+2*kt+1)}, {v(d+2)}, {v(d+3)}')
    return o

def a_prologue(a):
    a(f'''
    v_and_b32 v20, 63, v0
    v_lshlrev_b32 {v(AV_L16)}, 4, v20
    s_lshl_b32 {s(S_T0)}, {s(S_H)}, 18
    s_lshl_b32 {s(S_T1)}, {s(S_C)}, 7
    s_add_u32 {s(S_T0)}, {s(S_T0)}, {s(S_T1)}
    s_lshl_b32 {s(S_T2)}, {s(S_T4)}, 13
    s_add_u32 {s(S_T2)}, {s(S_T2)}, 131072
    s_load_dwordx2 {s(SRD_T,2)}, s[0:1], {KA_WO}
    s_mov_b32 {s(SRD_T+2)}, {8*MB}
    s_mov_b32 {s(SRD_T+3)}, {SRD3}
    v_lshrrev_b32 v21, 3, v20
    v_and_b32 v22, 7, v20
    v_lshlrev_b32 v21, 11, v21
    v_lshl_add_u32 v21, v22, 4, v21
    ''')
    for T in range(2):
        for hh in range(2):
            tr_addr(a, 24 + T * 2 + hh, 20, 128, T, hh, 28, 29)
            a(f'v_add_u32 {v(24+T*2+hh)}, {s(S_T2)}, {v(24+T*2+hh)}')
    a('s_waitcnt lgkmcnt(0)')
    for n in range(8):
        a(f's_add_u32 m0, {s(S_T2)}, {n*1024}')
        a('s_nop 0')
        a(f'buffer_load_dwordx4 v21, {s(SRD_T,4)}, {s(S_T0)} offen{a.wnt[3]} lds')
        a(f's_add_u32 {s(S_T0)}, {s(S_T0)}, {8*2048}')
    for n in range(8):
        a(f'buffer_load_dwordx4 {v(AV_KS+4*n,4)}, v21, {s(SRD_T,4)}, {s(S_T0)} offen{a.wnt[3]}')
        a(f's_add_u32 {s(S_T0)}, {s(S_T0)}, {8*2048}')

def a_prologue2(a):
    a(f's_lshl_b32 {s(S_T2)}, {s(S_T4)}, 13')
    a(f's_add_u32 {s(S_T2)}, {s(S_T2)}, 131072')
    a(f'v_add_u32 v30, {s(S_T2)}, {v(AV_L16)}')
    for half in range(2):
        a(f's_waitcnt vmcnt({8 - 8*half})')
        if half:
            for n in range(8): a(f'ds_write_b128 v30, {v(AV_KS+4*n,4)} offset:{n*1024}')
            a('s_waitcnt lgkmcnt(0)')
        for uu in range(2):
            for p in range(2):
                for T in range(2):
                    for hh in range(2):
                        a(f'ds_read_b64_tr_b16 {v(wo(2*half+uu, 2*p+T)+2*hh,2)}, {v(24+T*2+hh)} offset:{uu*4096+p*64}')
            a('s_waitcnt lgkmcnt(0)')
    a(f'''
    v_lshrrev_b32 v21, 4, v20
    v_and_b32 v22, 2, v20
    v_cmp_eq_u32 {s(S_QM,2)}, 2, v22
    v_and_b32 v23, 15, v20
    v_lshlrev_b32 v21, 2, v21
    v_mov_b32 v8, 0x44444444
    v_mov_b32 v9, 0xeeeeeeee
    v_cndmask_b32 {v(AV_IDX)}, v8, v9, {s(S_QM,2)}
    v_mov_b32 v8, 0x3f803f80
    v_mov_b32 v9, 0
    v_mov_b32 v10, 0
    v_mov_b32 v11, 0
    v_mov_b32 v4, 0x3f803f80
    v_mov_b32 v5, 0x3f803f80
    v_mov_b32 v6, 0x3f803f80
    v_mov_b32 v7, 0x3f803f80
    s_mov_b32 {s(S_CST)}, 0x3e0293ee
    s_lshl_b32 {s(S_PRG)}, {s(S_I)}, 2
    s_add_u32 {s(S_PRG)}, {s(S_PRG)}, {s(S_T4)}
    s_lshl_b32 {s(S_CS)}, {s(S_X)}, 7
    s_add_u32 {s(S_CS)}, {s(S_CS)}, {F.CS_TAB}
    v_add_u32 {v(AV_LB)}, {s(S_KL)}, {v(AV_L16)}
    s_lshl_b32 {s(S_T0)}, {s(S_T4)}, 2
    s_add_u32 {s(S_T0)}, {s(S_T0)}, {LDS_FLG}
    v_mov_b32 {v(AV_FLGW)}, {s(S_T0)}
    v_mov_b32 {v(AV_FLGR)}, {LDS_FLG}
    ''')
    sel_init(a, AV_SEL, 20, 24, 25)
    a(f'''
    v_lshrrev_b32 v24, 4, v20                 ; g
    v_bfe_u32 v25, v20, 2, 2
    v_and_b32 v26, 1, v20
    v_lshl_add_u32 v26, v25, 1, v26           ; t
    v_lshlrev_b32 v26, 4, v26
    v_lshl_add_u32 v26, v24, 8, v26
    v_bfe_u32 v27, v20, 1, 1
    v_lshl_add_u32 v26, v27, 2, v26
    s_add_u32 {s(S_T0)}, {s(S_KL)}, 20480
    v_add_u32 {v(AV_VMW)}, {s(S_T0)}, v26
    v_and_b32 v26, 3, v20                     ; cc
    v_lshl_add_u32 v27, v24, 2, v25
    v_lshl_add_u32 v27, v26, 4, v27
    v_lshlrev_b32 v27, 4, v27
    v_add_u32 {v(AV_TRV)}, {s(S_KL)}, v27
    v_and_b32 v25, 1, v25
    v_lshl_add_u32 v25, v24, 1, v25
    v_lshl_add_u32 v25, v26, 3, v25
    v_lshlrev_b32 v25, 4, v25
    v_add_u32 {v(AV_TRM)}, {s(S_T0)}, v25
    s_bfe_u32 {s(S_T0)}, {s(S_C)}, 0x20001
    s_lshr_b32 {s(S_DW)}, {s(S_C)}, 3
    s_cmp_eq_u32 {s(S_T0)}, {s(S_T4)}
    s_cselect_b32 {s(S_DW)}, {2 if 'u' in a.abl else s(S_DW)}, 2
    s_and_b32 {s(S_QT)}, {s(S_C)}, 1
    s_lshl_b32 {s(S_QT)}, {s(S_QT)}, 17
    s_mov_b32 {s(S_U2)}, 0
    ''')
    for i in range(4):
        a(f'v_add_u32 v24, {i}, v21')
        a(f'v_cmp_gt_u32 {s(S_M0+2*i,2)}, v24, v23')

def a_static(a):
    a(f"""
    v_and_b32 v20, 63, v0
    v_lshrrev_b32 v21, 4, v20                 ; g
    v_bfe_u32 v22, v20, 1, 1
    v_xor_b32 v22, 1, v22                     ; p = !(n&2)
    v_lshl_add_u32 v23, v22, 2, v21           ; uu
    v_bfe_u32 v22, v20, 2, 2
    v_and_b32 v24, 1, v20
    v_lshl_add_u32 v22, v22, 1, v24           ; t
    v_lshl_add_u32 v23, v23, 3, v22
    v_and_b32 v22, 7, v20
    v_lshlrev_b32 v23, 4, v23
    s_lshl_b32 {s(S_T0)}, {s(S_T4)}, 10
    s_add_u32 {s(S_T0)}, {s(S_T0)}, {LDS_RED2}
    v_add_u32 {v(AV_R2W)}, {s(S_T0)}, v23
    v_and_b32 v24, 15, v20
    v_lshlrev_b32 v24, 4, v24                 ; n*16
    v_lshl_add_u32 v23, v21, 10, v24
    s_lshl_b32 {s(S_T0)}, {s(S_T4)}, 8
    s_add_u32 {s(S_T0)}, {s(S_T0)}, {LDS_RED2}
    v_add_u32 {v(AV_R2R)}, {s(S_T0)}, v23
    v_lshl_add_u32 v23, v21, 9, v24
    s_lshl_b32 {s(S_T0)}, {s(S_T4)}, 12
    s_add_u32 {s(S_T0)}, {s(S_T0)}, {LDS_SEG}
    v_add_u32 {v(AV_SGW)}, {s(S_T0)}, v23
    v_bfe_u32 v23, v20, 3, 1
    v_lshlrev_b32 v23, 10, v23
    v_lshl_add_u32 v23, v22, 4, v23
    v_lshlrev_b32 {v(AV_PST)}, 4, v20
    s_lshl_b32 {s(S_PO)}, {s(S_C)}, 14
    s_lshl_b32 {s(S_T0)}, {s(S_T4)}, 11
    s_add_u32 {s(S_PO)}, {s(S_PO)}, {s(S_T0)}
    s_lshl_b32 {s(S_T0)}, {s(S_G)}, 8
    s_add_u32 {s(S_PO)}, {s(S_PO)}, {s(S_T0)}
    s_add_u32 {s(S_PO)}, {s(S_PO)}, {WS_PART}
    """)
    for i in range(4): a(f'v_mov_b32 {v(AV_NEG+i)}, -1')

def exp_seq(r):
    seq = []
    n = len(r)
    seq.append(f'v_max3_f32 {v(AV_MX)}, {v(r[0])}, {v(r[1])}, {v(r[2])}')
    seq.append(f'v_max3_f32 {v(AV_T)}, {v(r[3])}, {v(r[4])}, {v(r[5])}')
    rr = r[6:]; k = 0
    while len(rr) >= 2:
        d = (AV_MX, AV_T)[k & 1]; k += 1
        seq.append(f'v_max3_f32 {v(d)}, {v(d)}, {v(rr[0])}, {v(rr[1])}'); rr = rr[2:]
    seq.append(f'v_max_f32 {v(AV_MX)}, {v(AV_MX)}, {v(AV_T)}')
    seq += red_gq(AV_MX, AV_T, 'v_max_f32')
    seq.append(f'v_mul_f32 {v(AV_MX)}, {s(S_CST)}, {v(AV_MX)}')
    fm = [f'v_fma_f32 {v(x)}, {v(x)}, {s(S_CST)}, -{v(AV_MX)}' for x in r]
    ex = [f'v_exp_f32 {v(x)}, {v(x)}' for x in r]
    seq += fm[:2]
    for i in range(n):
        if i + 2 < n: seq.append(fm[i + 2])
        seq.append(ex[i])
    return seq

def packP(S, t1zero=False):
    T0, T1, TM = S, S + 4, S + 8
    o = [f'v_cvt_pk_bf16_f32 {v(T0)}, {v(T0)}, {v(T0+1)}', f'v_cvt_pk_bf16_f32 {v(T0+1)}, {v(T0+2)}, {v(T0+3)}']
    if t1zero: o += [f'v_mov_b32 {v(T0+2)}, 0', f'v_mov_b32 {v(T0+3)}, 0']
    else: o += [f'v_cvt_pk_bf16_f32 {v(T0+2)}, {v(T1)}, {v(T1+1)}', f'v_cvt_pk_bf16_f32 {v(T0+3)}, {v(T1+2)}, {v(T1+3)}']
    o += [f'v_cvt_pk_bf16_f32 {v(TM)}, {v(TM)}, {v(TM+1)}', f'v_mov_b32 {v(TM+2)}, 0',
          f'v_mov_b32 {v(TM+1)}, {v(TM)}', f'v_mov_b32 {v(TM+3)}, 0']
    return o

def pv_seq(S, qt, rc):
    SM = S + 4
    o = [f'v_mfma_f32_16x16x32_bf16 {v(SM,4)}, {v(AV_ONE,4)}, {v(S,4)}, 0',
         f'v_mfma_f32_16x16x32_bf16 {v(SM,4)}, {v(AV_HALF,4)}, {v(S+8,4)}, {v(SM,4)}']
    for ct in range(4):
        o.append(f'v_mfma_f32_16x16x32_bf16 {v(AV_O+4*ct,4)}, {v(AV_VWS+4*ct,4)}, {v(S,4)}, 0')
        o.append(f'v_mfma_f32_16x16x32_bf16 {v(AV_O+4*ct,4)}, {v(AV_VWM+2*ct,4)}, {v(S+8,4)}, {v(AV_O+4*ct,4)}')
    o.append(f'v_rcp_f32 {v(rc)}, {v(SM)}')
    o.append('s_nop 0')
    P = AV_PK
    for ct in range(4):
        for i in range(4): o.append(f'v_mul_f32 {v(AV_O+4*ct+i)}, {v(AV_O+4*ct+i)}, {v(rc)}')
        o.append(f'v_cvt_pk_bf16_f32 {v(P+2*ct)}, {v(AV_O+4*ct)}, {v(AV_O+4*ct+1)}')
        o.append(f'v_cvt_pk_bf16_f32 {v(P+2*ct+1)}, {v(AV_O+4*ct+2)}, {v(AV_O+4*ct+3)}')
    for p in range(2): o.append(f'ds_write_b128 {v(AV_SGW)}, {v(P+4*p,4)} offset:{2048*p+256*qt}')
    return o

def a_loop(a, prof, done):
    LH = a.uid('aloopH')
    if a.s1 and a.swp:
        assert a.s1 % 2 == 0 and a.lr == 3 and a.vpos and not a.kpos
        L0, L1 = a.uid('aloopL'), a.uid('aloopM')
        a_body(a, Prof(prof), done, L0, True, None, L1)
        a_body(a, Prof(prof), done, L1, True, LH, L0, 1)
    elif a.s2 > a.s1:
        LM = a.uid('aloopM')
        a_body(a, Prof(prof), done, a.uid('aloopL'), True, LM, direct=True)
        a_body(a, Prof(prof), done, LM, True, LH, med=True)
    elif a.s1: a_body(a, Prof(prof), done, a.uid('aloopL'), True, LH)
    a.label('ct_aH')
    a_body(a, Prof(prof), done, LH, False, None)

def a_body(a, pf, done, L, light, nxt, other=None, ph=0, med=False, direct=False):
    lim = a.s2 if med else a.s1
    Lr = L + '_rq'
    AV_KS, AV_TB = (128, 96) if ph else (96, 128)
    swp = other is not None
    SA = AV_S; SB = AV_X + 4
    if a.al: a.raw(f'.p2align {a.al}')
    for i in range(a.aloa): a('s_nop 0')
    a.label(L)
    pf.stamp(a, 'top')
    ring(a, S_QLD, 0, 18, S_QO)
    a(f's_add_u32 {s(S_QLD2)}, {s(S_QLD)}, 4096')
    ring(a, S_PSTC, 0, PSLOT, S_PO)
    ring(a, S_PRS, 2, PSLOT, S_PO)
    a(f'v_mov_b32 {v(AV_FV)}, {s(S_S)}')
    vw = vw_list(AV_TB)
    kr = [f'ds_read_b128 {v(AV_KS+4*i,4)}, {v(AV_LB)} offset:{1024*i}' for i in range(8)]
    vr = [f'ds_read_b128 {v(AV_TB+4*(kt*4+u),4)}, {v(AV_LB)} offset:{8192+1024*(kt*4+u)}' for u in range(4) for kt in range(2)]
    late = a.qkf == 2
    va = (lambda ct: (AV_X + 8, AV_X + 12, AV_PK, AV_PK + 4)[ct]) if late else (lambda ct: AV_O + 4 * ct)
    zo = [f'v_mov_b32 {v(va(i>>2)+(i&3))}, 0' for i in range(16)]
    unit = light and (a.s0 < a.s1 or med)
    def part2(tag, AV_TB=AV_TB):
        a(f's_cmp_eq_u32 {s(S_U2)}, 0')
        a(f's_cbranch_scc1 {L}_{tag}')
        a(f's_mov_b32 {s(S_U2)}, 0')
        for p in range(4):
            for Tt in range(2):
                t = 2 * p + Tt
                for kt in range(2):
                    a(f'ds_read_b64_tr_b16 {v(AV_TB+4*t+2*kt,2)}, {v(AV_TRV)} offset:{4096*kt + 1024*p + 8*Tt}')
                a(f'ds_read_b64_tr_b16 {v(AV_X+2*t,2)}, {v(AV_TRM)} offset:{512*p + 8*Tt}')
        a(f'v_mov_b32 {v(AV_FT)}, 0xff61b1e6')
        a(f's_cmp_eq_u32 {s(S_QT)}, 0')
        for i in range(4):
            a(f's_cselect_b64 vcc, {s(S_M0+2*i,2)}, 0')
            a(f'v_cndmask_b32 {v(SA+i)}, {v(SA+i)}, {v(AV_FT)}, vcc')
            a(f's_cselect_b64 vcc, -1, {s(S_M0+2*i,2)}')
            a(f'v_cndmask_b32 {v(SA+4+i)}, {v(SA+4+i)}, {v(AV_FT)}, vcc')
        for x in exp_seq(list(range(SA, SA + 10))): a(x)
        pk = packP(SA); pk[6] = f'v_mov_b32 {v(SA+9)}, 0'
        for x in pk: a(x)
        a('s_waitcnt lgkmcnt(0)')
        a('s_nop 0')
        SM = SA + 4
        a(f'v_mfma_f32_16x16x32_bf16 {v(SM,4)}, {v(AV_ONE,4)}, {v(SA,4)}, 0')
        a(f'v_mfma_f32_16x16x32_bf16 {v(SM,4)}, {v(AV_ONE,4)}, {v(SA+8,4)}, {v(SM,4)}')
        oa = lambda t: (AV_O if t < 4 else AV_Y - 16) + 4 * t
        for t in range(8):
            a(f'v_mfma_f32_16x16x32_bf16 {v(oa(t),4)}, {v(AV_TB+4*t,4)}, {v(SA,4)}, 0')
            a(f'v_mfma_f32_16x16x32_bf16 {v(oa(t),4)}, {v(AV_X+2*t,4)}, {v(SA+8,4)}, {v(oa(t),4)}')
        a(f'v_rcp_f32 {v(AV_T)}, {v(SM)}')
        a('s_nop 0')
        for p in range(4):
            o = oa(2 * p)
            for i in range(8): a(f'v_mul_f32 {v(o+i)}, {v(o+i)}, {v(AV_T)}')
            for d in range(4): a(f'v_cvt_pk_bf16_f32 {v(o+d)}, {v(o+2*d)}, {v(o+2*d+1)}')
            a(f'ds_write_b128 {v(AV_L16)}, {v(o,4)} offset:{LDS_SEG + 1024*p}')
        a.label(f'{L}_{tag}')
    if light and a.vpos: a(f's_waitcnt vmcnt({0 if swp else 8 - a.ksp})')
    if unit:
        assert a.lr == 3
        a(f's_and_b32 {s(S_DU)}, {s(S_S)}, 1')
        a(f's_cmp_lt_u32 {s(S_S)}, {a.s0}')
        a(f's_cselect_b32 {s(S_DU)}, 3, {s(S_DU)}')
        if not med:
            a(f's_cmp_lg_u32 {s(S_DU)}, {s(S_DW)}')
            a(f's_cbranch_scc1 {L}_nd0')
            for i in range(8): a(f'ds_write_b128 {v(AV_LB)}, {v(AV_TB+4*i,4)} offset:{1024*i}')
            a.label(L + '_nd0')
    if med:
        assert a.p2e and a.qpos == 1 and a.hk and not late
        for x in vw[:a.vwm]: a(x)
        pf.stamp(a, 'kv', -3)
    if med: pass
    elif light:
        if not a.lr & 1:
            for x in vr: a(x)
            for u in range(4): vw[8*u] = f's_waitcnt lgkmcnt({6 - 2*u})\n' + vw[8*u]
        for x in vw: a(x)
        if unit or late:
            a('s_nop 2')
            for x in vw_pack(): a(x)
            if unit and not a.p2e: part2('p2a')
            for x in zo: a(x)
        else:
            for x in zo: a(x)
            for x in vw_pack(): a(x)
        if not a.lr & 2:
            flag_wait(a, L + '_wkv', AV_FLGW, 16, AV_FT, S_T2, sl=a.kvsl, one=True)
            for x in kr: a(x)
        pf.stamp(a, 'kv', -3)
    else:
        flag_wait(a, L + '_wkv', AV_FLGW, 16, AV_FT, S_T2, sl=a.kvsl, one=True)
        pf.stamp(a, 'kv', -3)
        for x in vr + ([] if a.hk else kr): a(x)
        for u in range(4): vw[8*u] = f's_waitcnt lgkmcnt({(6 if a.hk else 14) - 2*u})\n' + vw[8*u]
        for x in vw[:a.vwp]: a(x)
    vp = light and a.vpos
    a('s_setprio 2')
    if not vp or swp: flag_wait(a, L + '_wm', AV_FLGW, 32, AV_FT, S_T2, sl=a.kvsl, one=True)
    if light and a.scb < 64 and not a.xpos:
        a(f's_sub_u32 {s(S_T0)}, {s(S_S)}, {a.sc0}')
        a(f's_cmp_ge_u32 {s(S_T0)}, {2 * (64 - a.scb)}')
        a(f's_cbranch_scc1 {L}_nxd')
        if vp and not swp: flag_wait(a, L + '_wm2', AV_FLGW, 32, AV_FT, S_T2, sl=a.kvsl, one=True)
        for hf in range(2):
            a(f's_add_u32 m0, {s(S_XB)}, {4096*hf}')
            a(f's_add_u32 {s(S_T0)}, {s(S_XG)}, {4096*hf}')
            for u in range(4): a(f'buffer_load_dwordx4 {v(AV_L16)}, {s(SRD_WS,4)}, {s(S_T0)} offen offset:{1024*u} sc1 lds')
        a(f's_xor_b32 {s(S_XB)}, {s(S_XB)}, {s(S_XBX)}')
        a(f's_add_u32 {s(S_XG)}, {s(S_XG)}, 32768')
        a.label(L + '_nxd')
    pf.stamp(a, 'fm', -3)
    def qdma(adj):
        a(f's_cmp_lg_u32 {s(S_DU)}, {s(S_DW)}')
        a(f's_cbranch_scc1 {L}_nd1')
        a(f's_add_u32 m0, {s(S_KL)}, 16384')
        a(f's_add_u32 {s(S_T0)}, {s(S_KG)}, {s(S_QT)}')
        a(f's_add_u32 {s(S_T0)}, {s(S_T0)}, {WS_QS - adj}')
        if 'Q' not in a.abl:
            for u in range(4): a(f'buffer_load_dwordx4 {v(AV_L16)}, {s(SRD_WS,4)}, {s(S_T0)} offen offset:{1024*u} sc1 lds')
        a.label(L + '_nd1')
    if unit and not a.qpos: qdma(0)
    if light: a(f's_add_u32 {s(S_KG)}, {s(S_KG)}, 262144')
    if swp:
        for x in reg_list(a, 0, AV_TB, S_T0): a(x)
    if ('v' if light else 'q') not in a.abl and not vp:
        for x in (reg_list(a, 1, AV_TB, S_T0) if light and a.lr & 1 else dma_list(a, 1 if light else 2, AV_L16, S_T0)): a(x)
    if not light: a(f's_add_u32 {s(S_KG)}, {s(S_KG)}, 262144')
    if light: a('s_waitcnt lgkmcnt(0)')
    pf.stamp(a, 'b1rdy', -3)
    a('s_barrier')
    pf.stamp(a, 'b1')
    qr = [f'ds_read_b128 {v(AV_TB+4*i,4)}, {v(AV_LB)} offset:{16384+1024*i}' for i in range(8)]
    if unit and a.qpos == 1: qdma(262144)
    if not light or med:
        for x in vw[a.vwm if med else a.vwp:]: a(x)
        a('s_nop 2')
        for x in vw_pack(): a(x)
        for x in zo: a(x)
    if a.qkf: a('s_barrier')
    qd = a.qdm if med else a.qdl if light else a.qd
    if qd: a(f's_sleep {qd}')
    a('s_waitcnt lgkmcnt(0)')
    pf.stamp(a, 'poll')
    qm = [f'buffer_load_dwordx4 {v(AV_Y+4*u,4)}, {v(AV_L16)}, {s(SRD_WS,4)}, {s(S_QLD)} offen offset:{1024*u} sc1' for u in range(4)]
    qm += [f'buffer_load_dwordx4 {v(AV_X+4*u2,4)}, {v(AV_L16)}, {s(SRD_WS,4)}, {s(S_QLD2)} offen offset:{1024*u2} sc1' for u2 in range(2)]
    qreg = [[AV_Y + 4 * u + i for i in (0, 2)] for u in range(4)]
    vreg = [AV_X + i for i in range(0, 8, 2)]
    for x in qm[:4]: a(x)
    if not late:
        if a.vdel: a(f's_sleep {a.vdel}' if a.vdel > 0 else f's_nop {-a.vdel}')
        for x in qm[4:]: a(x)
    def crit_s(check, first=False):
        for u in range(4):
            if check: a(f's_waitcnt vmcnt({3-u if first and late and u <= a.vu else 5-u})')
            if first and u == 0: pf.stamp(a, 'z0')
            z = v(AV_Y + 4 * u, 4)
            for kt in range(2):
                d = SA + 4 * kt
                a(f'v_mfma_f32_16x16x32_bf16 {v(d,4)}, {v(AV_KS+(kt*4+u)*4,4)}, {z}, {"0" if u==0 else v(d,4)}')
            if check:
                c = chk(qreg[u], AV_T, f'{Lr}_{u}')
                for x in c[:-1]: a(x)
            a(f'v_mfma_f32_16x16x32_bf16 {v(SA+8,4)}, {z}, {z}, {"0" if u==0 else v(SA+8,4)}')
            if check: a(c[-1])
            if first and late and u == a.vu:
                for x in qm[4:]: a(x)
    crit_s(True, True)
    a.label(L + '_sdone')
    pf.stamp(a, 'sdone')
    if light: a('s_nop 1')
    else:
        a(f's_cmp_eq_u32 {s(S_S)}, {a.last}')
        a(f's_cbranch_scc1 {L}_lsk')
    vwm = [f'v_smfmac_f32_16x16x64_bf16 {v(va(ct),4)}, {v(AV_X+4*c2,4)}, {v(wo(2*c2,ct),8)}, {v(AV_IDX)}' for c2 in range(2) for ct in (0, 2, 1, 3)]
    vc = chk(vreg, AV_FT, f'{Lr}_v')
    M, T = v(AV_MX), v(AV_T)
    a(f"""
    ds_write_b32 {v(AV_FLGW)}, {v(AV_FV)}
    s_nop 0
    v_max3_f32 {M}, {v(SA)}, {v(SA+1)}, {v(SA+2)}
    v_max3_f32 {T}, {v(SA+3)}, {v(SA+4)}, {v(SA+5)}
    v_max3_f32 {M}, {M}, {v(SA+6)}, {v(SA+7)}
    v_max3_f32 {T}, {T}, {v(SA+8)}, {v(SA+9)}
    v_max_f32 {M}, {M}, {T}
    v_mov_b32 {T}, {M}
    s_nop 1
    v_permlane16_swap_b32 {T}, {M}
    v_max_f32 {M}, {M}, {T}
    v_mov_b32 {T}, {M}
    {'s_nop 1' if late else 's_waitcnt vmcnt(0)'}
    {'' if late else vc[0]}
    v_permlane32_swap_b32 {T}, {M}
    v_max_f32 {M}, {M}, {T}
    {'' if late else vc[1]}
    v_mul_f32 {M}, {s(S_CST)}, {M}
    {'' if late else vc[2]}
    """)
    r = list(range(SA, SA + 10))
    fm = [f'v_fma_f32 {v(x)}, {v(x)}, {s(S_CST)}, -{M}' for x in r]
    ex = [f'v_exp_f32 {v(x)}, {v(x)}' for x in r]
    a(fm[0]); a(fm[1])
    if late:
        for i in range(a.vi):
            a(fm[i + 2]); a(ex[i])
        a('s_waitcnt vmcnt(0)')
        for x in vc[:3]: a(x)
    a(vc[3])
    a.label(L + '_vok')
    pf.stamp(a, 'max', 3)
    vwc = []
    for ct in range(4):
        d = va(ct)
        vwc += [f'v_cvt_pk_bf16_f32 {v(AV_VWM+2*ct)}, {v(d)}, {v(d+1)}', f'v_cvt_pk_bf16_f32 {v(AV_VWM+2*ct+1)}, {v(d+2)}, {v(d+3)}']
    SM = SA + 4
    def mid2(kin, st):
        vw_ = list(vwm)
        for i in range(a.vi, 10):
            a(vw_.pop(0))
            if i + 2 < 10: a(fm[i + 2])
            a(ex[i])
            if kin: a(kin.pop(0))
        pk = packP(SA)
        for n, x in enumerate(pk[:6]):
            a(x)
            if n & 1 and vw_: a(vw_.pop(0))
        assert not vw_
        a(f'v_mfma_f32_16x16x32_bf16 {v(SM,4)}, {v(AV_ONE,4)}, {v(SA,4)}, 0')
        for x in pk[6:]: a(x)
        for n, ct in enumerate((0, 2, 1, 3)):
            a(f'v_mfma_f32_16x16x32_bf16 {v(AV_O+4*ct,4)}, {v(AV_VWS+4*ct,4)}, {v(SA,4)}, 0')
            if n == 1: a(f'v_mfma_f32_16x16x32_bf16 {v(SM,4)}, {v(AV_HALF,4)}, {v(SA+8,4)}, {v(SM,4)}')
            if kin: a(kin.pop(0))
        for ct in (0, 2, 1, 3): a(vwc[2*ct]); a(vwc[2*ct+1])
        assert not kin
    def mid(kin, st):
        if late: return mid2(kin, st)
        a(vwm[0])
        for i in range(10):
            if i + 2 < 10: a(fm[i + 2])
            a(ex[i])
            if i + 1 < 8: a(vwm[i + 1])
            if kin and (a.kpos + a.vpos == 1 or i & 1): a(kin.pop(0))
        if st: pf.stamp(a, 'exp', 3)
        pk = packP(SA)
        for x in pk[:4]: a(x)
        mA = f'v_mfma_f32_16x16x32_bf16 {v(SM,4)}, {v(AV_ONE,4)}, {v(SA,4)}, 0'
        mB = f'v_mfma_f32_16x16x32_bf16 {v(SM,4)}, {v(AV_HALF,4)}, {v(SA+8,4)}, {v(SM,4)}'
        for x in pk[4:6]: a(x)
        a(mA)
        for x in pk[6:]: a(x)
        for n, ct in enumerate((0, 2, 1, 3)):
            a(vwc[2*ct]); a(vwc[2*ct+1])
            if n == 0: a(mB)
            a(f'v_mfma_f32_16x16x32_bf16 {v(AV_O+4*ct,4)}, {v(AV_VWS+4*ct,4)}, {v(SA,4)}, 0')
            if kin: a(kin.pop(0))
        assert not kin
    kp = light and a.lr & 2 and a.kpos and 'k' not in a.abl
    assert not (kp and vp)
    ks = a.ksp if vp and not swp else 0
    if (kp or swp or ks) and unit:
        a(f's_cmp_eq_u32 {s(S_DU)}, {s(S_DW)}')
        a(f's_cbranch_scc1 {L}_midD')
    mid(reg_list(a, 0, AV_KS, S_T0) if kp else reg_list(a, 1, AV_KS if swp else AV_TB, S_T0) + reg_list(a, 0, AV_KS, S_T2)[:ks] if vp else [], True)
    a.label(L + '_midE')
    if unit and a.qpos == 2: qdma(262144)
    a(f's_mov_b64 vcc, {s(S_QM,2)}')
    a(f'v_rcp_f32 {T}, {v(SM)}')
    for ct in (0, 2, 1, 3):
        a(f'v_mfma_f32_16x16x32_bf16 {v(AV_O+4*ct,4)}, {v(AV_VWM+2*ct,4)}, {v(SA+8,4)}, {v(AV_O+4*ct,4)}')
    pf.stamp(a, 'pv', 3)
    qp = 'quad_perm:[2,3,2,3] row_mask:0xf bank_mask:0xf'
    a(f'v_mov_b32_dpp {T}, {T} {qp}')
    a('s_nop 4')
    for h in range(2):
        for i in range(4*h, 4*h+4): a(f'v_cndmask_b32_dpp {v(AV_O+i)}, {v(AV_O+8+i)}, {v(AV_O+i)}, vcc {qp}')
    for i in range(8): a(f'v_mul_f32 {v(AV_O+i)}, {v(AV_O+i)}, {T}')
    for d in range(4): a(f'v_cvt_pk_bf16_f32 {v(AV_PK+d)}, {v(AV_O+2*d)}, {v(AV_O+2*d+1)}')
    a(f'ds_write_b128 {v(AV_R2W)}, {v(AV_PK,4)}')
    a('s_waitcnt lgkmcnt(0)')
    pf.stamp(a, 'b2rdy')
    a('s_barrier')
    pf.stamp(a, 'b2')
    a(f'ds_read_b128 {v(AV_PK+4,4)}, {v(AV_R2R)}')
    a('s_waitcnt lgkmcnt(0)')
    a(f'v_mfma_f32_16x16x32_bf16 {v(AV_O,4)}, {v(AV_SEL,4)}, {v(AV_PK+4,4)}, 0')
    a('s_nop 7')
    a(f'v_cvt_pk_bf16_f32 {v(AV_PK)}, {v(AV_O)}, {v(AV_O+1)}')
    a(f'v_cvt_pk_bf16_f32 {v(AV_PK+1)}, {v(AV_O+2)}, {v(AV_O+3)}')
    a('s_nop 0')
    a(f'v_permlane16_swap_b32 {v(AV_PK)}, {v(AV_PK+2)}')
    a(f'v_permlane16_swap_b32 {v(AV_PK+1)}, {v(AV_PK+3)}')
    a('s_mov_b64 exec, 0xffff')
    a(f'v_min_u32 {v(AV_PK)}, -2, {v(AV_PK)}')
    a(f'buffer_store_dwordx4 {v(AV_PK,4)}, {v(AV_PST)}, {s(SRD_WS,4)}, {s(S_PSTC)} offen sc1')
    a('s_setprio 0')
    pf.stamp(a, 'ppub')
    a(f'buffer_store_dwordx4 {v(AV_NEG,4)}, {v(AV_PST)}, {s(SRD_WS,4)}, {s(S_PRS)} offen sc1')
    a('s_mov_b64 exec, -1')
    l = a.uid('pg')
    if a.pgp: a(f's_branch {l}')
    a(f's_cmp_lg_u32 {s(S_PRG)}, 0')
    a(f's_cbranch_scc1 {l}')
    a(f's_sub_u32 {s(S_T4)}, {s(S_S)}, 1')
    a(f's_cbranch_scc1 {l}')
    a(f's_sub_u32 {s(S_T0)}, {s(S_T4)}, 1')
    a(f's_and_b32 {s(S_T0)}, {s(S_T0)}, 3')
    a(f's_cmp_ge_u32 {s(S_S)}, 58')
    a(f's_cselect_b32 {s(S_T0)}, 0, {s(S_T0)}')
    a(f's_cmp_lg_u32 {s(S_T0)}, 0')
    a(f's_cbranch_scc1 {l}')
    a(f'v_mov_b32 {v(AV_T)}, {s(S_T4)}')
    a('s_mov_b64 exec, 1')
    a(f'buffer_store_dword {v(AV_T)}, off, {s(SRD_WS,4)}, {s(S_CS)} sc1')
    a('s_mov_b64 exec, -1')
    a.label(l)
    if unit:
        a(f's_cmp_lg_u32 {s(S_DU)}, {s(S_DW)}')
        a(f's_cbranch_scc1 {L}_nd2')
        if a.qpos == 2: a('s_waitcnt vmcnt(2)')
        if med and a.dpr: a(f's_setprio {a.dpr}')
        for u in range(4): a(f'ds_read_b128 {v(AV_O+4*u,4)}, {v(AV_LB)} offset:{16384+1024*u}')
        if not med:
            for c2 in range(2):
                for i in range(4): a(f'ds_write_b32 {v(AV_VMW)}, {v(AV_X+4*c2+i)} offset:{1024*c2 + 128*(i>>1) + 8*(i&1)}')
            a(f's_mov_b32 {s(S_U2)}, 1')
        for u in range(4):
            a(f's_waitcnt lgkmcnt({(0 if med else 8)+3-u})')
            q = v(AV_O + 4 * u, 4)
            for kt in range(2): a(f'v_mfma_f32_16x16x32_bf16 {v(SA+4*kt,4)}, {v(AV_KS+(kt*4+u)*4,4)}, {q}, {"0" if u==0 else v(SA+4*kt,4)}')
            a(f'v_mfma_f32_16x16x32_bf16 {v(SA+8,4)}, {v(xk(u),4)}, {q}, {"0" if u==0 else v(SA+8,4)}')
        a('s_waitcnt lgkmcnt(0)')
        a('s_nop 3')
        if med:
            if not a.dkl:
                for x in reg_list(a, 0, AV_KS, S_T2): a(x)
            else: a('s_nop 3')
            a(f'v_mov_b32 {v(AV_FT)}, 0xff61b1e6')
            a(f's_cmp_eq_u32 {s(S_QT)}, 0')
            for i in range(4):
                a(f's_cselect_b64 vcc, {s(S_M0+2*i,2)}, 0')
                a(f'v_cndmask_b32 {v(SA+i)}, {v(SA+i)}, {v(AV_FT)}, vcc')
                a(f's_cselect_b64 vcc, -1, {s(S_M0+2*i,2)}')
                a(f'v_cndmask_b32 {v(SA+4+i)}, {v(SA+4+i)}, {v(AV_FT)}, vcc')
            for x in exp_seq(list(range(SA, SA + 10))): a(x)
            a('s_nop 0')
            a(f'v_add_f32 {M}, {v(SA)}, {v(SA+1)}')
            a(f'v_add_f32 {T}, {v(SA+2)}, {v(SA+3)}')
            for i in range(4, 10, 2):
                a(f'v_add_f32 {M}, {M}, {v(SA+i)}'); a(f'v_add_f32 {T}, {T}, {v(SA+i+1)}')
            a(f'v_add_f32 {M}, {M}, {T}')
            for x in red_gq(AV_MX, AV_T, 'v_add_f32'): a(x)
            a(f'v_rcp_f32 {M}, {M}')
            ring(a, S_T0, 0, 17, S_PXO)
            ring(a, S_T1, 2, 17, S_PXO)
            a(f's_lshr_b32 {s(S_T4)}, {s(S_QT)}, 6')
            a(f's_add_u32 {s(S_T0)}, {s(S_T0)}, {s(S_T4)}')
            a(f's_add_u32 {s(S_T1)}, {s(S_T1)}, {s(S_T4)}')
            for i in range(10): a(f'v_mul_f32 {v(SA+i)}, {v(SA+i)}, {M}')
            for d in range(5): a(f'v_cvt_pk_bf16_f32 {v(AV_PK+d)}, {v(SA+2*d)}, {v(SA+2*d+1)}')
            a(f'v_min_u32 {v(AV_PK)}, -2, {v(AV_PK)}')
            a(f'v_min_u32 {v(AV_PK+4)}, -2, {v(AV_PK+4)}')
            a(f'v_lshrrev_b32 {T}, 1, {v(AV_L16)}')
            a(f'v_mov_b32 {v(AV_PK+5)}, {v(AV_PK+4)}')
            def pst(sc):
                a(f'buffer_store_dwordx4 {v(AV_PK,4)}, {v(AV_L16)}, {s(SRD_WS,4)}, {s(S_T0)} offen{sc}')
                a(f'buffer_store_dwordx2 {v(AV_PK+4,2)}, {T}, {s(SRD_WS,4)}, {s(S_T0)} offen offset:1024{sc}')
                a(f'buffer_store_dwordx4 {v(AV_NEG,4)}, {v(AV_L16)}, {s(SRD_WS,4)}, {s(S_T1)} offen{sc}')
                a(f'buffer_store_dwordx2 {v(AV_NEG,2)}, {T}, {s(SRD_WS,4)}, {s(S_T1)} offen offset:1024{sc}')
                if a.dkl:
                    for x in reg_list(a, 0, AV_KS, S_T2): a(x)
            a('s_setprio 0')
            a(f's_cmp_lg_u32 {s(S_SLOW)}, 0')
            a(f's_cbranch_scc1 {L}_ps1')
            pst('')
            a(f's_branch {L}_pl')
            a.label(L + '_ps1')
            pst(' sc1')
            a(f's_branch {L}_pl')
        elif a.p2e:
            assert not (a.kpos or swp or ks)
            a('s_nop 3')
            if 'P' not in a.abl: part2('p2e', AV_KS)
            a('s_nop 3')
        if a.kpos or swp:
            for x in reg_list(a, 1 if swp else 0, AV_KS, S_T0): a(x)
        if ks:
            for x in reg_list(a, 0, AV_KS, S_T2)[:ks]: a(x)
        a.label(L + '_nd2')
    if light:
        if a.lr & 2 and 'k' not in a.abl and not a.kpos and not swp:
            if a.kdl: a(f's_sleep {a.kdl}')
            assert ks in (0, 4)
            for x in reg_list(a, 0, AV_KS, S_T2)[ks:]: a(x)
        if med:
            a(f's_sleep {a.pdl}')
            a.label(L + '_pl')
            ring(a, S_T0, 0, 17, S_PXO)
            a(f'v_lshrrev_b32 {T}, 1, {v(AV_L16)}')
            for i in (6, 7, 14, 15): a(f'v_mov_b32 {v(AV_Y+i)}, 0')
            a.label(L + '_pl2')
            for qt in range(2):
                a(f'buffer_load_dwordx4 {v(AV_Y+8*qt,4)}, {v(AV_L16)}, {s(SRD_WS,4)}, {s(S_T0)} offen offset:{2048*qt} sc1')
                a(f'buffer_load_dwordx2 {v(AV_Y+8*qt+4,2)}, {T}, {s(SRD_WS,4)}, {s(S_T0)} offen offset:{2048*qt+1024} sc1')
            a('s_waitcnt vmcnt(0)')
            for x in chk([AV_Y, AV_Y + 4, AV_Y + 8, AV_Y + 12], AV_MX, L + '_pr'): a(x)
            a.label(L + '_pok')
            for qt in range(2):
                acc = AV_X if qt else AV_O
                for ct in range(4):
                    a(f'v_mfma_f32_16x16x32_bf16 {v(acc+4*ct,4)}, {v(AV_VWS+4*ct,4)}, {v(AV_Y+8*qt,4)}, 0')
                    a(f'v_mfma_f32_16x16x32_bf16 {v(acc+4*ct,4)}, {v(AV_VWM+2*ct,4)}, {v(AV_Y+8*qt+4,4)}, {v(acc+4*ct,4)}')
            for qt in range(2):
                acc = AV_X if qt else AV_O
                if qt: a('s_nop 1')
                for d in range(8): a(f'v_cvt_pk_bf16_f32 {v(acc+d)}, {v(acc+2*d)}, {v(acc+2*d+1)}')
                for p in range(2): a(f'ds_write_b128 {v(AV_SGW)}, {v(acc+4*p,4)} offset:{2048*p+256*qt}')
            a(f'v_xor_b32 {v(AV_SGW)}, 0x4000, {v(AV_SGW)}')
            a('s_waitcnt lgkmcnt(0)')
        pf.stamp(a, 'bg')
        pf.flush(a, AV_MX, 'A')
        a(f's_add_u32 {s(S_S)}, {s(S_S)}, 1')
        if swp and not ph: a(f's_branch {other}')
        if swp: AV_KS, AV_TB = AV_TB, AV_KS
        a(f's_cmp_lt_u32 {s(S_S)}, {lim}')
        a(f's_cbranch_scc1 {other or L}')
        if direct: a(f's_branch {nxt}')
        a('s_waitcnt vmcnt(0)')
        for i in range(8):
            if a.lr & 1: a(f'ds_write_b128 {v(AV_LB)}, {v(AV_TB+4*i,4)} offset:{8192+1024*i}')
        if unit and not a.p2e:
            a('s_waitcnt lgkmcnt(0)')
            part2('p2b', AV_TB)
        for i in range(8):
            if a.lr & 2 and not a.hk: a(f'ds_write_b128 {v(AV_LB)}, {v(AV_KS+4*i,4)} offset:{1024*i}')
        a('s_waitcnt lgkmcnt(0)')
        a(f's_branch {nxt or L}')
        if swp: AV_KS, AV_TB = AV_TB, AV_KS
    else:
        a.label(L + '_lskb')
        a(f'v_mov_b32 {v(AV_X)}, 0xff61b1e6')
        def s_mf(qt, S):
            m = []
            for u in range(4):
                q = v(AV_TB + (qt * 4 + u) * 4, 4)
                for kt in range(qt + 1):
                    d = S + 4 * kt
                    m.append(f'v_mfma_f32_16x16x32_bf16 {v(d,4)}, {v(AV_KS+(kt*4+u)*4,4)}, {q}, {"0" if u==0 else v(d,4)}')
                m.append(f'v_mfma_f32_16x16x32_bf16 {v(S+8,4)}, {v(xk(u),4)}, {q}, {"0" if u==0 else v(S+8,4)}')
            return m
        bg = qr + ['s_waitcnt lgkmcnt(4)'] + s_mf(0, SA) + ['s_waitcnt lgkmcnt(0)'] + s_mf(1, SB)
        seq = [f'v_cndmask_b32 {v(SA+i)}, {v(SA+i)}, {v(AV_X)}, {s(S_M0+2*i,2)}' for i in range(4)]
        seq += exp_seq([SA + i for i in range(4)] + [SA + 8, SA + 9]) + packP(SA, True)
        if a.hk: seq = merge_fill(seq, reg_list(a, 0, AV_KS, S_T0), every=a.hk, start=3)
        bg += seq + ['s_nop 1']
        pv0 = pv_seq(SA, 0, AV_X + 2)
        seq = [f'v_cndmask_b32 {v(SB+4+i)}, {v(SB+4+i)}, {v(AV_X)}, {s(S_M0+2*i,2)}' for i in range(4)]
        seq += exp_seq(list(range(SB, SB + 10))) + packP(SB)
        seq = merge_fill(seq, pv0[:10], every=2, start=0)
        bg += seq + pv0[10:] + pv_seq(SB, 1, AV_T)
        if 'b' in a.abl: bg = []
        for x in bg: a(x)
        a(f'v_xor_b32 {v(AV_SGW)}, 0x4000, {v(AV_SGW)}')
        pf.stamp(a, 'bg')
        pf.flush(a, AV_MX, 'A')
        a(f's_add_u32 {s(S_S)}, {s(S_S)}, 1')
        a(f's_cmp_le_u32 {s(S_S)}, {a.last}')
        a(f's_cbranch_scc1 {L}')
        a('s_waitcnt lgkmcnt(0)')
        a('s_barrier')
        a('s_waitcnt vmcnt(0)')
        a(f's_branch {done}')
    if (kp or swp or ks) and unit:
        a.label(L + '_midD')
        mid(reg_list(a, 1, AV_TB, S_T0) if ks else [], False)
        a(f's_branch {L}_midE')
    for i in range(4):
        spin_block(a, f'{Lr}_{i}', qm[i:], qreg[i], AV_T, L + '_again', L + '_nochk')
    a.label(L + '_again')
    crit_s(True)
    a(f's_branch {L}_sdone')
    def vretry(lab, ok):
        a.label(lab)
        a(f's_sub_u32 {s(S_TO)}, {s(S_TO)}, 1')
        a(f's_cbranch_scc1 {lab}g')
        for x in qm[4:]: a(x)
        a('s_waitcnt vmcnt(0)')
        for x in chk(vreg, AV_FT, lab): a(x)
        a(f's_branch {ok}')
        a.label(lab + 'g')
        a(f's_mov_b32 {s(S_TO)}, 0')
        a(f's_branch {ok}')
    vretry(f'{Lr}_v', L + '_vok')
    a.label(L + '_nochk')
    crit_s(False)
    a('s_nop 1')
    a(f's_branch {L}_sdone')
    if med:
        a.label(L + '_pr')
        a(f's_sleep {a.prs}')
        a(f's_sub_u32 {s(S_TO)}, {s(S_TO)}, 1')
        a(f's_cbranch_scc0 {L}_pl2')
        a(f's_mov_b32 {s(S_TO)}, 0')
        a(f's_branch {L}_pok')
    if light: return
    vretry(f'{Lr}_v2', L + '_lsk3')
    a.label('ct_tail')
    a.label(f'{L}_lsk')
    a(f's_cmp_lg_u32 {s(S_PRG)}, 0')
    a(f's_cbranch_scc1 {L}_lsk2')
    a(f'v_mov_b32 {v(AV_T)}, {a.last - 1}')
    a('s_mov_b64 exec, 1')
    a(f'buffer_store_dword {v(AV_T)}, off, {s(SRD_WS,4)}, {s(S_CS)} sc1')
    a('s_mov_b64 exec, -1')
    a.label(f'{L}_lsk2')
    a('s_waitcnt vmcnt(0)')
    for x in chk(vreg, AV_FT, f'{Lr}_v2'): a(x)
    a.label(f'{L}_lsk3')
    for x in vwm: a(x)
    a('s_nop 7')
    a('s_nop 1')
    for x in vwc: a(x)
    a('s_waitcnt lgkmcnt(0)')
    a(f's_branch {L}_lskb')

def emit_chain(a, done, prof=False):
    if prof: a('s_memrealtime s[94:95]')
    a(f"""
    s_lshl_b32 {s(S_ID)}, {s(S_X)}, 5
    s_add_u32 {s(S_ID)}, {s(S_ID)}, {s(S_I)}
    s_lshr_b32 {s(S_H)}, {s(S_ID)}, 2
    s_lshr_b32 {s(S_G)}, {s(S_ID)}, 4
    s_and_b32 {s(S_C)}, {s(S_I)}, 15
    s_and_b32 {s(S_J)}, {s(S_I)}, 3
    s_mov_b32 {s(S_S)}, 0
    s_mov_b32 {s(S_TO)}, {TIMEOUT}
    s_mov_b32 s100, {TIMEOUT}
    s_getreg_b32 {s(S_X1)}, hwreg(HW_REG_XCC_ID)
    s_and_b32 {s(S_X1)}, {s(S_X1)}, 15
    s_mul_i32 {s(S_T2)}, {s(S_X1)}, {s(S_X1)}
    s_lshl_b32 {s(S_T2)}, {s(S_T2)}, 18
    s_lshl_b32 {s(S_X1)}, {s(S_X1)}, 8
    s_add_u32 {s(S_X1)}, {s(S_X1)}, {s(S_T2)}
    s_add_u32 {s(S_X1)}, {s(S_X1)}, 1
    s_lshl_b32 {s(S_CQG)}, {s(S_G)}, 4
    s_add_u32 {s(S_CQG)}, {s(S_CQG)}, {CQ_TAB}
    s_and_b32 {s(S_T4)}, {s(S_W)}, 3
    s_mul_i32 {s(S_KL)}, {s(S_T4)}, 24576
    s_add_u32 {s(S_KL)}, {s(S_KL)}, {LDS_BULK}
    s_lshl_b32 {s(S_KG)}, {s(S_G)}, 2
    s_add_u32 {s(S_KG)}, {s(S_KG)}, {s(S_T4)}
    s_lshl_b32 {s(S_KG)}, {s(S_KG)}, 12
    s_add_u32 {s(S_XB)}, {s(S_KL)}, 8192
    s_bfe_u32 {s(S_T0)}, {s(S_C)}, 0x20001
    s_cmp_eq_u32 {s(S_T0)}, {s(S_T4)}
    s_cselect_b32 {s(S_XBX)}, 20480, {s(S_KL)}
    s_xor_b32 {s(S_XBX)}, {s(S_XBX)}, {s(S_XB)}
    s_lshl_b32 {s(S_XG)}, {s(S_T4)}, 13
    s_add_u32 {s(S_XG)}, {s(S_XG)}, {WS_XN2 + a.scb * 65536}
    s_lshl_b32 {s(S_SCO)}, {s(S_T4)}, 24
    s_lshl_b32 {s(S_T0)}, {s(S_ID)}, 10
    s_add_u32 {s(S_SCO)}, {s(S_SCO)}, {s(S_T0)}
    s_add_u32 {s(S_SCO)}, {s(S_SCO)}, {WS_QS + a.scb * 262144}
    s_cmp_ge_u32 {s(S_W)}, 4
    s_cbranch_scc1 ch_a_pro
    s_add_u32 {s(S_KG)}, {s(S_KG)}, 262144
    s_lshl_b32 {s(S_QO)}, {s(S_H)}, 13
    s_add_u32 {s(S_QO)}, {s(S_QO)}, {WS_QKV}
    s_lshl_b32 {s(S_T0)}, {s(S_I)}, 1
    s_and_b32 {s(S_T1)}, {s(S_W)}, 1
    s_add_u32 {s(S_T0)}, {s(S_T0)}, {s(S_T1)}
    s_lshl_b32 {s(S_T0)}, {s(S_T0)}, 1       ; first u
    s_cmp_lt_u32 {s(S_W)}, 2
    s_cselect_b32 {s(S_MEX)}, 0xffff, 0
    s_mov_b32 {s(S_MEX+1)}, 0
    s_lshr_b32 {s(S_T1)}, {s(S_T0)}, 1
    s_and_b32 {s(S_T2)}, {s(S_T0)}, 1
    s_lshl_b32 {s(S_T3)}, {s(S_X)}, 14
    s_add_u32 {s(S_T3)}, {s(S_T3)}, {WS_MEM}
    s_lshl_b32 {s(S_MO)}, {s(S_W)}, 12
    s_add_u32 {s(S_MO)}, {s(S_MO)}, {s(S_T3)}
    s_lshl_b32 {s(S_MSO)}, {s(S_T1)}, 8
    s_add_u32 {s(S_MSO)}, {s(S_MSO)}, {s(S_T3)}
    s_lshl_b32 {s(S_T3)}, {s(S_T2)}, 5
    s_add_u32 {s(S_MSO)}, {s(S_MSO)}, {s(S_T3)}
    s_lshr_b32 {s(S_PO)}, {s(S_T0)}, 3
    s_lshl_b32 {s(S_PO)}, {s(S_PO)}, 14
    s_and_b32 {s(S_T3)}, {s(S_T0)}, 7
    s_lshl_b32 {s(S_T3)}, {s(S_T3)}, 10
    s_add_u32 {s(S_PO)}, {s(S_PO)}, {s(S_T3)}
    s_add_u32 {s(S_PO)}, {s(S_PO)}, {WS_PART}
    s_lshl_b32 {s(S_SP)}, {s(S_G)}, 22
    s_lshl_b32 {s(S_T3)}, {s(S_C)}, 11
    s_add_u32 {s(S_SP)}, {s(S_SP)}, {s(S_T3)}
    s_lshl_b32 {s(S_T3)}, {s(S_W)}, 9
    s_add_u32 {s(S_SP)}, {s(S_SP)}, {s(S_T3)}
    s_add_u32 {s(S_SP)}, {s(S_SP)}, {WS_SP + a.s1 * 65536}
    s_lshl_b32 {s(S_KMX)}, {s(S_H)}, 13
    s_add_u32 {s(S_KMX)}, {s(S_KMX)}, {WS_KM}
    s_mov_b32 {s(S_QST)}, {s(S_QO)}
    s_mov_b32 {s(S_SP0)}, {s(S_SP)}
    s_mov_b32 {s(S_OK)}, 2
    s_mov_b32 {s(S_RTG)}, 0
    s_mov_b32 {s(S_OF)}, 0
    s_bfe_u32 {s(S_T0)}, {s(S_C)}, 0x20001
    s_lshl_b32 {s(S_OB)}, {s(S_G)}, 2
    s_add_u32 {s(S_OB)}, {s(S_OB)}, {s(S_T0)}
    s_lshl_b32 {s(S_OB)}, {s(S_OB)}, 2
    s_add_u32 {s(S_OB)}, {s(S_OB)}, {s(S_W)}
    s_lshl_b32 {s(S_OB)}, {s(S_OB)}, 10
    s_and_b32 {s(S_T0)}, {s(S_C)}, 1
    s_lshl_b32 {s(S_T0)}, {s(S_T0)}, 17
    s_add_u32 {s(S_OB)}, {s(S_OB)}, {s(S_T0)}
    s_add_u32 {s(S_OB)}, {s(S_OB)}, {WS_OO - 262144}
    s_mov_b32 {s(S_TCH)}, {3 * 262144}
    """)
    p_prologue(a)
    for i in range(4): a(f'v_mov_b32 {v(52+i)}, -1')
    for sg in range(64 - NTAIL, 64):
        a(f's_add_u32 {s(S_T0)}, {s(S_SP)}, {(sg - a.s1)*65536}')
        a(f'buffer_store_dwordx4 v[52:55], {v(PV_SPS)}, {s(SRD_WS,4)}, {s(S_T0)} offen sc1')
    if prof: a('s_memrealtime s[96:97]')
    a(f's_lshl_b32 {s(S_X1)}, {s(S_X1)}, 5')
    a('s_barrier')
    a(f'ds_write_b32 {v(PV_FLGW)}, {v(PV_NEG)}')
    a(f'ds_write_b32 {v(PV_FLGW)}, {v(PV_NEG)} offset:16')
    a(f'ds_write_b32 {v(PV_FLGW)}, {v(PV_NEG)} offset:32')
    a(f'ds_write_b32 {v(PV_FLGW)}, {v(PV_NEG)} offset:48')
    a(f'v_mov_b32 {v(PV_RDY)}, 12')
    a(f"""
    v_mov_b32 v56, {LDS_PUB}
    s_waitcnt lgkmcnt(0)
    s_barrier
    ds_read_b64 v[32:33], v56
    s_waitcnt lgkmcnt(0)
    v_cmp_ne_u32 vcc, {s(S_X1)}, v32
    s_setprio 3
    v_readfirstlane_b32 {s(S_T0)}, v33
    s_add_u32 {s(S_PO)}, {s(S_PO)}, {s(S_T0)}
    s_cbranch_vccnz ch_p_slow
    """)
    if prof:
        a(f"""
        v_mov_b32 v33, {s(S_T0)}
        s_memrealtime s[98:99]
        s_waitcnt lgkmcnt(0)
        s_lshl_b32 {s(S_T0)}, {s(S_ID)}, 3
        s_add_u32 {s(S_T0)}, {s(S_T0)}, {s(S_W)}
        s_lshl_b32 {s(S_T0)}, {s(S_T0)}, 12
        s_add_u32 {s(S_T0)}, {s(S_T0)}, {WS_YP + 63*64}
        v_mov_b32 v56, s94
        v_mov_b32 v57, s96
        v_mov_b32 v32, s98
        s_mov_b64 exec, 1
        buffer_store_dwordx2 v[56:57], off, {s(SRD_WS,4)}, {s(S_T0)}
        buffer_store_dwordx2 v[32:33], off, {s(SRD_WS,4)}, {s(S_T0)} offset:8
        s_mov_b64 exec, -1
        s_nop 1
        """)
    if a.force_slow: a('s_branch ch_p_slow')
    p_loop(a, '', prof, done)
    a.label('ch_p_slow')
    p_loop(a, ' sc1', prof, done)
    a.label('ch_a_pro')
    a(f"""
    s_sub_u32 {s(S_T4)}, {s(S_W)}, 4
    s_lshl_b32 {s(S_H)}, {s(S_G)}, 2
    s_add_u32 {s(S_H)}, {s(S_H)}, {s(S_T4)}
    s_lshl_b32 {s(S_QO)}, {s(S_H)}, 13
    s_add_u32 {s(S_QO)}, {s(S_QO)}, {WS_QKV}
    """)
    if a.rot:
        a(f's_cmp_lg_u32 {s(S_W)}, 7')
        a('s_cbranch_scc1 ch_nrp')
        a.rot_poll(131072 + 64, 27, 28)
        a.label('ch_nrp')
        a('s_barrier')
        a.rot_check(131072 + 64, 27)
    if a.stouch:
        a(f"""
        s_min_u32 {s(S_T3)}, {s(S_T4)}, 2
        s_lshl_b32 {s(S_T1)}, {s(S_T3)}, 3
        s_add_u32 {s(S_T1)}, {s(S_T1)}, {KA_WQ}
        s_load_dwordx2 {s(SRD_T,2)}, s[0:1], {s(S_T1)}
        s_mov_b32 {s(SRD_T+2)}, {8*MB}
        s_mov_b32 {s(SRD_T+3)}, {SRD3}
        v_and_b32 v20, 63, v0
        v_lshlrev_b32 v21, 13, v20
        s_lshl_b32 {s(S_T0)}, {s(S_C)}, 19
        s_lshl_b32 {s(S_T1)}, {s(S_G)}, 10
        s_add_u32 {s(S_T0)}, {s(S_T0)}, {s(S_T1)}
        s_waitcnt lgkmcnt(0)
        buffer_load_dword v26, v21, {s(SRD_T,4)}, {s(S_T0)} offen offset:384
        """)
    a_static(a)
    a(f"""
    v_lshlrev_b32 v24, 4, v0
    s_lshl_b32 {s(S_T0)}, {s(S_ID)}, 13
    s_add_u32 {s(S_T2)}, {s(S_T0)}, {WS_PART - 4096}
    s_add_u32 {s(S_T0)}, {s(S_T0)}, {WS_QKV - 4096}
    s_lshl_b32 {s(S_T1)}, {s(S_ID)}, 12
    s_add_u32 {s(S_T1)}, {s(S_T1)}, {WS_MEM - 4096}
    buffer_store_dwordx4 {v(AV_NEG,4)}, v24, {s(SRD_WS,4)}, {s(S_T2)} offen sc1
    s_add_u32 {s(S_T2)}, {s(S_T2)}, 4096
    buffer_store_dwordx4 {v(AV_NEG,4)}, v24, {s(SRD_WS,4)}, {s(S_T2)} offen sc1
    buffer_store_dwordx4 {v(AV_NEG,4)}, v24, {s(SRD_WS,4)}, {s(S_T0)} offen sc1
    s_add_u32 {s(S_T0)}, {s(S_T0)}, 4096
    buffer_store_dwordx4 {v(AV_NEG,4)}, v24, {s(SRD_WS,4)}, {s(S_T0)} offen sc1
    buffer_store_dwordx4 {v(AV_NEG,4)}, v24, {s(SRD_WS,4)}, {s(S_T1)} offen sc1
    s_add_u32 {s(S_T1)}, {s(S_T1)}, {WS_PX - WS_MEM}
    buffer_store_dwordx4 {v(AV_NEG,4)}, v24, {s(SRD_WS,4)}, {s(S_T1)} offen sc1
    """)
    a(f"""
    s_and_b32 {s(S_T0)}, {s(S_I)}, 7
    s_sub_u32 {s(S_T1)}, {s(S_T4)}, 1
    s_cmp_lt_u32 {s(S_T1)}, 2
    s_cselect_b32 s54, {s(S_T0)}, 1
    s_lshr_b32 {s(S_T2)}, {s(S_ID)}, 3
    s_lshl_b32 {s(S_T2)}, {s(S_T2)}, 8
    s_lshl_b32 {s(S_T1)}, {s(S_T1)}, 7
    s_add_u32 {s(S_T2)}, {s(S_T2)}, {s(S_T1)}
    s_add_u32 s55, {s(S_T2)}, {WS_PART + MB}
    s_cmp_lg_u32 s54, 0
    s_cbranch_scc1 ch_nv0
    v_lshlrev_b32 v24, 13, v20
    s_mov_b64 exec, 0xffff
    buffer_store_dword {v(AV_NEG)}, v24, {s(SRD_WS,4)}, s55 offen sc1
    s_mov_b64 exec, -1
    """)
    a.label('ch_nv0')
    a(f"""
    v_mov_b32 v2, {s(S_X1)}
    s_lshl_b32 {s(S_T0)}, {s(S_X)}, 2
    s_add_u32 {s(S_T0)}, {s(S_T0)}, {F.DBG_XCC}
    s_waitcnt vmcnt(0)
    s_barrier
    s_cmp_lg_u32 {s(S_W)}, 4
    s_cbranch_scc1 ch_nox
    s_mov_b64 exec, 1
    buffer_atomic_add v2, off, {s(F.SRD_DBG,4)}, {s(S_T0)} sc1
    s_mov_b64 exec, -1
    """)
    a.label('ch_nox')
    a_prologue(a)
    a('s_cmp_lg_u32 s54, 0')
    a('s_cbranch_scc1 ch_nv1')
    a('s_mov_b32 s58, -1')
    a('s_mov_b32 s59, -1')
    for k in range(8):
        for ph in range(2):
            a('s_memtime s[60:61]')
            a(f's_add_u32 s56, s55, {k*16384 + ph*8192}')
            a('s_waitcnt lgkmcnt(0)')
            a('s_load_dword s57, s[4:5], s56 glc')
            a('s_waitcnt lgkmcnt(0)')
            a('s_memtime s[62:63]')
            a('s_waitcnt lgkmcnt(0)')
            a('s_sub_u32 s57, s62, s60')
            a(f's_min_u32 s{58+ph}, s{58+ph}, s57')
    a(f"""
    s_sub_i32 s57, s58, s59
    s_min_i32 s57, s57, {a.vote}
    s_max_i32 s57, s57, {-a.vote}
    s_add_u32 s57, s57, {a.vote + (1 << 24)}
    s_getreg_b32 s56, hwreg(HW_REG_XCC_ID)
    s_and_b32 s56, s56, 0
    v_mov_b32 v2, s57
    s_mov_b64 exec, 1
    buffer_atomic_add v2, off, {s(F.SRD_DBG,4)}, s56 offset:{F.DBG_VOTE} sc1
    s_mov_b64 exec, -1
    """)
    a('s_waitcnt vmcnt(0)')
    a.label('ch_nv1')
    a_prologue2(a)
    a(f"""
    s_cmp_lg_u32 {s(S_W)}, 4
    s_cbranch_scc1 ch_xcc_skip
    v_lshrrev_b32 v56, 2, {v(AV_L16)}
    v_add_u32 v56, {F.DBG_XCC}, v56
    v_writelane_b32 v56, 0, 10
    v_mov_b32 v59, 63
    v_mov_b32 v60, 32
    v_writelane_b32 v59, 0, 8
    v_writelane_b32 v60, 0, 8
    v_writelane_b32 v59, 0, 9
    v_writelane_b32 v60, 0, 9
    v_writelane_b32 v59, -1, 10
    s_movk_i32 {s(S_T0)}, 128
    v_writelane_b32 v60, {s(S_T0)}, 10
    s_mov_b64 exec, 0x70f
    """)
    a.label('ch_xcc')
    a(f"""
    buffer_load_dword v57, v56, {s(F.SRD_DBG,4)}, 0 offen sc1
    s_waitcnt vmcnt(0)
    v_and_b32 v62, v59, v57
    v_cmp_ne_u32 vcc, v62, v60
    v_readlane_b32 {s(S_T1)}, v57, 8
    v_readlane_b32 {s(S_T2)}, v57, 9
    s_add_u32 {s(S_T0)}, {s(S_T1)}, {s(S_T2)}
    s_lshr_b32 {s(S_T0)}, {s(S_T0)}, 24
    s_cmp_lg_u32 {s(S_T0)}, 32
    s_cbranch_scc1 ch_xcc_w
    s_cbranch_vccz ch_xcc_ok
    """)
    a.label('ch_xcc_w')
    a(f"""
    s_sleep 16
    s_sub_u32 {s(S_TO)}, {s(S_TO)}, 1
    s_cbranch_scc0 ch_xcc
    s_mov_b32 {s(S_TO)}, 0
    """)
    a.label('ch_xcc_ok')
    a(f"""
    s_getreg_b32 {s(S_T0)}, hwreg(HW_REG_XCC_ID)
    s_bitcmp1_b32 {s(S_T0)}, 2
    s_cselect_b32 {s(S_T1)}, {s(S_T1)}, {s(S_T1)}
    v_readlane_b32 {s(S_T0)}, v57, {s(S_X)}
    s_mov_b64 exec, -1
    s_lshr_b32 {s(S_T2)}, {s(S_T1)}, 24
    s_mul_i32 {s(S_T2)}, {s(S_T2)}, {a.vote}
    s_and_b32 {s(S_T1)}, {s(S_T1)}, 0xffffff
    s_cmp_gt_u32 {s(S_T1)}, {s(S_T2)}
    s_cselect_b32 {s(S_T1)}, {0 if a.pgf else 0x2000}, {0x2000 if a.pgf else 0}
    v_mov_b32 v58, {LDS_PUB}
    v_mov_b32 v60, {s(S_T0)}
    v_mov_b32 v61, {s(S_T1)}
    s_barrier
    ds_write_b64 v58, v[60:61]
    s_waitcnt lgkmcnt(0)
    s_branch ch_xcc_b3
    """)
    a.label('ch_xcc_skip')
    a('s_barrier')
    a.label('ch_xcc_b3')
    a(f"""
    s_barrier
    v_mov_b32 v58, {LDS_PUB}
    ds_read_b64 v[60:61], v58
    v_and_b32 v23, 7, v20
    v_lshlrev_b32 v23, 7, v23
    v_bfe_u32 v24, v20, 3, 1
    v_lshl_add_u32 v23, v24, 17, v23
    v_lshrrev_b32 v24, 4, v20
    v_lshl_add_u32 v23, v24, 24, v23
    s_lshl_b32 {s(S_T2)}, {s(S_G)}, 14
    s_lshl_b32 {s(S_T1)}, {s(S_C)}, 10
    s_add_u32 {s(S_T2)}, {s(S_T2)}, {s(S_T1)}
    s_and_b32 {s(S_T1)}, {s(S_T4)}, 1
    s_lshl_b32 {s(S_T1)}, {s(S_T1)}, 18
    s_add_u32 {s(S_T2)}, {s(S_T2)}, {s(S_T1)}
    s_add_u32 {s(S_T2)}, {s(S_T2)}, {WS_QS + 262144}
    s_waitcnt lgkmcnt(0)
    v_readfirstlane_b32 {s(S_T0)}, v61
    v_readfirstlane_b32 {s(S_T1)}, v60
    s_add_u32 {s(S_PO)}, {s(S_PO)}, {s(S_T0)}
    s_lshl_b32 {s(S_X1)}, {s(S_X1)}, 5
    s_cmp_lg_u32 {s(S_T1)}, {s(S_X1)}
    s_cselect_b32 {s(S_SLOW)}, 1, {1 if a.force_slow else 0}
    s_lshl_b32 {s(S_PXO)}, {s(S_H)}, 12
    s_add_u32 {s(S_PXO)}, {s(S_PXO)}, {WS_PX}
    """)
    a.label('ch_g0')
    a(f"""
    buffer_load_dword v57, off, {s(SRD_WS,4)}, {s(S_CQG)} sc1
    s_waitcnt vmcnt(0)
    v_readfirstlane_b32 {s(S_T0)}, v57
    s_cmp_ge_u32 {s(S_T0)}, {8 if a.s0 else 12}
    s_cbranch_scc1 ch_g0b
    s_sleep {a.g0sl}
    s_sub_u32 {s(S_TO)}, {s(S_TO)}, 1
    s_cbranch_scc0 ch_g0
    s_mov_b32 {s(S_TO)}, 0
    """)
    a.label('ch_g0b')
    for m in (1, 0):
        for x in (reg_list(a, m, AV_TB if m else AV_KS, S_QLD) if a.s1 and a.lr & (1 if m else 2) else dma_list(a, m, AV_L16, S_T1)): a(x)
    a('s_mov_b32 exec_hi, 0xffff')
    a(f'buffer_load_dword {v(AV_PK+7)}, v23, {s(SRD_WS,4)}, {s(S_T2)} offen sc1')
    a('s_mov_b32 exec_hi, -1')
    a(f'v_mov_b32 {v(AV_FV)}, 0')
    a('s_waitcnt vmcnt(1)')
    a(f'ds_write_b32 {v(AV_FLGW)}, {v(AV_FV)} offset:16')
    a_loop(a, prof, done)
```

```python
from asmlib import *
from layout4 import *
from k_prep import red_gq, rnd_bf16

SRD_WS = 4
SRD_DBG = 64
CS_TAB = WS_CNT + 8192
CD_TAB = WS_CNT + 2560
DBG_INIT = 0
DBG_INIT2 = 64
DBG_XCC = 128
DBG_INITA = 192
DBG_VOTE = 160
DBG_ROT = 224
S_EARLY = 70
TIMEOUT = 1 << 16

def emit_ln_init(a, swk, touch):
    if a.ln8:
        assert not a.cln and a.scb == 64
        a(f'''
        s_cmp_lt_u32 {s(swk)}, 64
        s_cbranch_scc1 ln8_short
        s_sub_u32 s17, {s(swk)}, 64
        s_lshl_b32 s17, s17, 1
        s_lshr_b32 s18, s3, 2
        s_add_u32 s17, s17, s18
        s_and_b32 s19, s3, 3
        ''')
    else:
        a(f's_mov_b32 s17, {s(swk)}')
        a('s_mov_b32 s19, s3')
        a('s_mov_b32 s18, 0')
    a(f'''
    {'' if a.ln8 else 's_cmp_ge_u32 s3, 4'}
    {'' if a.ln8 else 's_cbranch_scc1 ln_touch'}
    {f's_cmp_lt_u32 {s(swk)}, 32' if a.cln else ''}
    {'s_cbranch_scc1 ln_short' if a.cln else ''}
    s_load_dwordx2 s[8:9], s[0:1], {KA_X}
    v_and_b32 v1, 63, v0
    s_mov_b32 s10, {4*MB}
    s_mov_b32 s11, {SRD3}
    v_and_b32 v3, 15, v1
    v_lshrrev_b32 v4, 4, v1
    v_lshlrev_b32 v5, 11, v3
    v_lshl_add_u32 v5, v4, 4, v5
    s_lshl_b32 s12, s17, 15
    s_lshl_b32 s13, s19, 9
    s_add_u32 s12, s12, s13
    s_waitcnt lgkmcnt(0)
    ''')
    NB = 8; ND = NB * 4; NF = ND * 2
    P = 16; F = 48; T = 112; C = 176
    for j in range(NB):
        a(f'buffer_load_dwordx4 {v(P+4*j,4)}, v5, s[8:11], s12 offen offset:{64*j}{a.xnt}')
    if a.cln: a('s_barrier')
    if a.ln8:
        a('s_cmp_lg_u32 s3, 7')
        a('s_cbranch_scc1 ln8_nrp')
        a.rot_poll(2048, 12, 13)
        a.label('ln8_nrp')
    a(f'''
    v_mov_b32 v14, 0
    s_lshl_b32 s13, {s(swk)}, 7
    s_add_u32 s13, s13, {WS_CNT}
    v_lshlrev_b32 v13, 2, v0
    v_lshlrev_b32 v6, 4, v3
    s_lshl_b32 s14, s18, 10
    v_add_u32 v6, s14, v6
    s_lshl_b32 s14, s19, 2
    v_add_u32 v7, s14, v6
    v_lshlrev_b32 v8, 4, v1
    s_lshl_b32 s15, s17, 15
    s_lshl_b32 s16, s19, 13
    s_add_u32 s15, s15, s16
    s_add_u32 s15, s15, {WS_XN}
    s_add_u32 s16, s15, 4096
    v_and_b32 v9, 1, v4
    v_cmp_eq_u32 s[20:21], 1, v9
    s_waitcnt vmcnt(0)
    ''')
    for d in range(ND):
        a(f'v_lshlrev_b32 {v(F+2*d)}, 16, {v(P+d)}')
        a(f'v_and_b32 {v(F+2*d+1)}, 0xffff0000, {v(P+d)}')
    def tree(n):
        while n > 1:
            n //= 2
            for i in range(n): a(f'v_add_f32 {v(T+i)}, {v(T+i)}, {v(T+n+i)}')
    for i in range(ND): a(f'v_add_f32 {v(T+i)}, {v(F+i)}, {v(F+ND+i)}')
    tree(ND); red_gq(a, T, T+1)
    a(f'''
    ds_write_b32 v7, {v(T)}
    s_waitcnt lgkmcnt(0)
    s_barrier
    ds_read_b128 {v(T,4)}, v6
    s_waitcnt lgkmcnt(0)
    ''')
    tree(4)
    a(f'v_mul_f32 v10, 0x3a800000, {v(T)}')
    for i in range(NF): a(f'v_sub_f32 {v(C+i)}, {v(F+i)}, v10')
    for i in range(ND):
        a(f'v_mul_f32 {v(T+i)}, {v(C+i)}, {v(C+i)}')
        a(f'v_fmac_f32 {v(T+i)}, {v(C+ND+i)}, {v(C+ND+i)}')
    tree(ND); red_gq(a, T, T+1)
    a(f'''
    ds_write_b32 v7, {v(T)} offset:512
    s_waitcnt lgkmcnt(0)
    s_barrier
    ds_read_b128 {v(T,4)}, v6 offset:512
    ''')
    a.rot_check(2048, 12)
    a(f'''
    s_waitcnt lgkmcnt(0)
    v_cmp_gt_u32 vcc, 32, v0
    s_and_saveexec_b64 s[22:23], vcc
    s_cbranch_execz ln_nz
    buffer_store_dword v14, v13, s[4:7], s13 offen sc1
    ''')
    a.label('ln_nz')
    a('s_mov_b64 exec, -1')
    tree(4)
    a(f'v_mul_f32 v11, 0x3a800000, {v(T)}')
    rnd_bf16(a, 10, 10); rnd_bf16(a, 11, 11)
    a('v_add_f32 v11, 0x3727c5ac, v11')
    rnd_bf16(a, 11, 11)
    a('v_sqrt_f32 v11, v11'); a('s_nop 0')
    rnd_bf16(a, 11, 11)
    a('v_rcp_f32 v11, v11'); a('s_nop 0')
    for j in range(NB):
        for d in range(4*j, 4*j+4):
            a(f'v_sub_f32 {v(F+2*d)}, {v(F+2*d)}, v10')
            a(f'v_sub_f32 {v(F+2*d+1)}, {v(F+2*d+1)}, v10')
            a(f'v_cvt_pk_bf16_f32 {v(P+d)}, {v(F+2*d)}, {v(F+2*d+1)}')
            a(f'v_lshlrev_b32 {v(F+2*d)}, 16, {v(P+d)}')
            a(f'v_and_b32 {v(F+2*d+1)}, 0xffff0000, {v(P+d)}')
            a(f'v_mul_f32 {v(F+2*d)}, {v(F+2*d)}, v11')
            a(f'v_mul_f32 {v(F+2*d+1)}, {v(F+2*d+1)}, v11')
            a(f'v_cvt_pk_bf16_f32 {v(P+d)}, {v(F+2*d)}, {v(F+2*d+1)}')
        b = P + 4 * j; o = T + 4 * j
        a(f'v_cndmask_b32 {v(o)}, {v(b)}, {v(b+2)}, s[20:21]')
        a(f'v_cndmask_b32 {v(o+1)}, {v(b+1)}, {v(b+3)}, s[20:21]')
        a(f'v_cndmask_b32 {v(o+2)}, {v(b+2)}, {v(b)}, s[20:21]')
        a(f'v_cndmask_b32 {v(o+3)}, {v(b+3)}, {v(b+1)}, s[20:21]')
        a(f'buffer_store_dwordx4 {v(o,4)}, v8, s[4:7], s{15 + j//4} offen offset:{1024*(j&3)} sc1')
    if a.scb < 64:
        a(f's_cmp_lt_u32 {s(swk)}, {2 * a.scb}')
        a('s_cbranch_scc1 ln_n2')
        a(f's_add_u32 s15, s15, {WS_XN2}')
        a(f's_add_u32 s16, s16, {WS_XN2}')
        for j in range(NB):
            o = T + 4 * j; t = C + 4 * j
            for d, x in enumerate((0, 2, 1, 3)): a(f'v_mov_b32 {v(t+d)}, {v(o+x)}')
            a('s_nop 1')
            a(f'v_permlane16_swap_b32 {v(t)}, {v(t+1)}')
            a(f'v_permlane16_swap_b32 {v(t+2)}, {v(t+3)}')
            a('s_nop 0')
            a(f'buffer_store_dwordx4 {v(t,4)}, v8, s[4:7], s{15 + j//4} offen offset:{1024*(j&3)} sc1')
        a.label('ln_n2')
    a(f'''
    s_waitcnt vmcnt(0)
    s_barrier
    s_cmp_lg_u32 s3, 0
    s_cbranch_scc1 ln_sig
    v_mov_b32 v2, 1
    s_mov_b64 exec, 1
    s_cmp_ge_u32 {s(swk)}, {0 if a.cln else 68 if a.ln8 else 8}
    s_cbranch_scc1 ln_sb
    buffer_atomic_add v2, off, {s(SRD_DBG,4)}, 0 offset:{DBG_INITA} sc1
    ''')
    a.label('ln_sb')
    a(f'''
    buffer_atomic_add v2, off, {s(SRD_DBG,4)}, 0 offset:{DBG_INIT} sc1
    s_mov_b64 exec, -1
    s_branch ln_sig
    ''')
    if a.ln8:
        a.label('ln8_short')
        a('s_cmp_lt_u32 s3, 4')
        a('s_cbranch_scc1 ln8_s1')
        touch()
        a('s_cmp_lg_u32 s3, 7')
        a('s_cbranch_scc1 ln8_s1')
        a.rot_poll(2048, 12, 13)
        a.label('ln8_s1')
        a('s_barrier')
        a.rot_check(2048, 12)
        a(f'''
        s_cmp_lg_u32 s3, 0
        s_cbranch_scc1 ln_sig
        v_mov_b32 v14, 0
        v_mov_b32 v2, 1
        s_lshl_b32 s13, {s(swk)}, 7
        s_add_u32 s13, s13, {WS_CNT}
        v_lshlrev_b32 v13, 2, v0
        s_mov_b32 exec_hi, 0
        buffer_store_dword v14, v13, s[4:7], s13 offen sc1
        s_waitcnt vmcnt(0)
        s_mov_b64 exec, 1
        buffer_atomic_add v2, off, {s(SRD_DBG,4)}, 0 offset:{DBG_INIT} sc1
        s_mov_b64 exec, -1
        ''')
        a.label('ln_sig')
        return
    a.label('ln_touch')
    if a.cln:
        a(f's_lshl_b32 s16, {s(swk)}, 2')
        a('s_add_u32 s16, s16, s3')
        a('s_sub_u32 s16, s16, 4')
        ln2 = emit_row_ln(a, 16, 8, 17, 18)
        a('''
        v_mov_b32 v64, 2048
        v_mov_b32 v65, 0
        ds_write_b32 v64, v65
        s_waitcnt lgkmcnt(0)
        s_barrier
        s_waitcnt vmcnt(0)
        ''')
        ln2()
        a(f'''
        v_mov_b32 v65, 1
        s_waitcnt vmcnt(0)
        s_mov_b64 exec, 1
        ds_add_rtn_u32 v66, v64, v65
        s_waitcnt lgkmcnt(0)
        v_readfirstlane_b32 s17, v66
        s_cmp_lg_u32 s17, 3
        s_cbranch_scc1 ln_r2
        buffer_atomic_add v65, off, {s(SRD_DBG,4)}, 0 offset:{DBG_INITA} sc1
        ''')
        a.label('ln_r2')
        a('s_mov_b64 exec, -1')
    touch()
    if a.cln:
        a(f's_cmp_lt_u32 {s(swk)}, 32')
        a('s_cbranch_scc1 ln_sig')
    a('s_cmp_lg_u32 s3, 7')
    a('s_cbranch_scc1 ln_nrp')
    a.rot_poll(2048, 12, 13)
    a.label('ln_nrp')
    a('s_barrier')
    if a.bt1: a.late_touch()
    a('s_barrier')
    a.rot_check(2048, 12)
    a('s_barrier')
    if a.cln:
        a('s_branch ln_sig')
        a.label('ln_short')
        a(f'''
        s_barrier
        s_cmp_lg_u32 s3, 0
        s_cbranch_scc1 ln_sig
        v_mov_b32 v14, 0
        v_mov_b32 v2, 1
        s_lshl_b32 s13, {s(swk)}, 7
        s_add_u32 s13, s13, {WS_CNT}
        v_lshlrev_b32 v13, 2, v0
        s_mov_b32 exec_hi, 0
        buffer_store_dword v14, v13, s[4:7], s13 offen sc1
        s_waitcnt vmcnt(0)
        s_mov_b64 exec, 1
        buffer_atomic_add v2, off, {s(SRD_DBG,4)}, 0 offset:{DBG_INIT} sc1
        s_mov_b64 exec, -1
        ''')
    a.label('ln_sig')

def emit_row_ln(a, s_row, srd, t0, t1):
    P, Fl, T = 24, 32, 48
    a(f"""
    s_load_dwordx2 {s(srd,2)}, s[0:1], {KA_X}
    s_mov_b32 {s(srd+2)}, {4*MB}
    s_mov_b32 {s(srd+3)}, {SRD3}
    v_and_b32 v20, 63, v0
    v_lshlrev_b32 v21, 4, v20
    s_lshl_b32 {s(t0)}, {s(s_row)}, 11
    s_waitcnt lgkmcnt(0)
    buffer_load_dwordx4 {v(P,4)}, v21, {s(srd,4)}, {s(t0)} offen
    buffer_load_dwordx4 {v(P+4,4)}, v21, {s(srd,4)}, {s(t0)} offen offset:1024
    """)
    return lambda: _row_ln2(a, s_row, t0, t1, P, Fl, T)

def _row_ln2(a, s_row, t0, t1, P, Fl, T):
    a(f"""
    v_lshrrev_b32 v22, 2, v20
    v_lshlrev_b32 v22, 10, v22
    v_and_b32 v23, 3, v20
    v_lshl_add_u32 v22, v23, 8, v22
    v_and_b32 v23, 1, v20
    v_cmp_eq_u32 vcc, 1, v23
    s_lshr_b32 {s(t0)}, {s(s_row)}, 4
    s_lshl_b32 {s(t0)}, {s(t0)}, 15
    s_and_b32 {s(t1)}, {s(s_row)}, 15
    s_lshl_b32 {s(t1)}, {s(t1)}, 4
    s_add_u32 {s(t0)}, {s(t0)}, {s(t1)}
    s_add_u32 {s(t1)}, {s(t0)}, 16384
    """)
    for d in range(8):
        a(f'v_lshlrev_b32 {v(Fl+2*d)}, 16, {v(P+d)}')
        a(f'v_and_b32 {v(Fl+2*d+1)}, 0xffff0000, {v(P+d)}')
    def wave_sum():
        n = 8
        while n > 1:
            n //= 2
            for i in range(n): a(f'v_add_f32 {v(T+i)}, {v(T+i)}, {v(T+n+i)}')
        for r in (1, 2, 4, 8):
            a('s_nop 1')
            a(f'v_add_f32_dpp {v(T)}, {v(T)}, {v(T)} row_ror:{r} row_mask:0xf bank_mask:0xf')
        red_gq(a, T, T + 1)
    for i in range(8): a(f'v_add_f32 {v(T+i)}, {v(Fl+i)}, {v(Fl+8+i)}')
    wave_sum()
    a(f'v_mul_f32 v21, 0x3a800000, {v(T)}')
    for i in range(8):
        a(f'v_sub_f32 {v(T+8)}, {v(Fl+i)}, v21')
        a(f'v_sub_f32 {v(T+9)}, {v(Fl+8+i)}, v21')
        a(f'v_mul_f32 {v(T+i)}, {v(T+8)}, {v(T+8)}')
        a(f'v_fmac_f32 {v(T+i)}, {v(T+9)}, {v(T+9)}')
    wave_sum()
    a(f'v_mul_f32 v23, 0x3a800000, {v(T)}')
    rnd_bf16(a, 21, 21); rnd_bf16(a, 23, 23)
    a('v_add_f32 v23, 0x3727c5ac, v23')
    rnd_bf16(a, 23, 23)
    a('v_sqrt_f32 v23, v23'); a('s_nop 0')
    rnd_bf16(a, 23, 23)
    a('v_rcp_f32 v23, v23'); a('s_nop 0')
    for d in range(8):
        a(f'v_sub_f32 {v(Fl+2*d)}, {v(Fl+2*d)}, v21')
        a(f'v_sub_f32 {v(Fl+2*d+1)}, {v(Fl+2*d+1)}, v21')
        a(f'v_cvt_pk_bf16_f32 {v(P+d)}, {v(Fl+2*d)}, {v(Fl+2*d+1)}')
        a(f'v_lshlrev_b32 {v(Fl+2*d)}, 16, {v(P+d)}')
        a(f'v_and_b32 {v(Fl+2*d+1)}, 0xffff0000, {v(P+d)}')
        a(f'v_mul_f32 {v(Fl+2*d)}, {v(Fl+2*d)}, v23')
        a(f'v_mul_f32 {v(Fl+2*d+1)}, {v(Fl+2*d+1)}, v23')
        a(f'v_cvt_pk_bf16_f32 {v(P+d)}, {v(Fl+2*d)}, {v(Fl+2*d+1)}')
    for j in range(2):
        b = P + 4 * j; o = T + 4 * j
        a(f'v_cndmask_b32 {v(o)}, {v(b)}, {v(b+2)}, vcc')
        a(f'v_cndmask_b32 {v(o+1)}, {v(b+1)}, {v(b+3)}, vcc')
        a(f'v_cndmask_b32 {v(o+2)}, {v(b+2)}, {v(b)}, vcc')
        a(f'v_cndmask_b32 {v(o+3)}, {v(b+3)}, {v(b+1)}, vcc')
        a(f'buffer_store_dwordx4 {v(o,4)}, v22, s[4:7], {s((t0, t1)[j])} offen sc1')

def emit_ln_wait(a, s_type, s_aoff, t_fh, x=''):
    if a.cln:
        a(f's_cmp_lt_u32 {s(s_aoff)}, {WS_XN + MB}')
        a(f's_cselect_b32 {s(S_EARLY)}, 1, 0')
    else:
        a(f's_cmp_eq_u32 {s(s_type)}, {t_fh}')
        a(f's_cselect_b32 {s(S_EARLY)}, {1 if a.early else 0}, 0')
        a(f's_cmp_eq_u32 {s(s_aoff)}, {WS_XN}')
        a(f's_cselect_b32 {s(S_EARLY)}, {s(S_EARLY)}, 0')
    a('s_cmp_lg_u32 s3, 0')
    a(f's_cbranch_scc1 lnw{x}_ok')
    a(f's_cmp_eq_u32 {s(S_EARLY)}, 0')
    a(f's_cbranch_scc1 lnw{x}_full')
    emit_wait_init(a, f'lnwa{x}', 20, 68, 69, DBG_INITA, 128 if a.cln else 4 if a.ln8 else 8)
    a(f's_branch lnw{x}_ok')
    a.label(f'lnw{x}_full')
    emit_wait_init(a, f'lnw{x}', 20, 68, 69)
    a('s_barrier')

def emit_drain_hook(a):
    a(f's_cmp_eq_u32 {s(S_EARLY)}, 0')
    a('s_cbranch_scc1 drw_ok')
    a(f's_mov_b32 {s(S_EARLY)}, 0')
    a('s_cmp_lg_u32 s3, 0')
    a('s_cbranch_scc1 drw_ok')
    a('v_readfirstlane_b32 s68, v22')
    a('s_cmp_ge_u32 s68, 128')
    a('s_cbranch_scc1 drw_ok')
    emit_wait_init(a, 'drw', 20, 68, 69)

def emit_wait_init(a, tag, vt, st, sto, off=DBG_INIT, tgt=128):
    a(f's_mov_b32 {s(sto)}, {TIMEOUT}')
    a.label(tag)
    a(f'''
    buffer_load_dword {v(vt)}, off, {s(SRD_DBG,4)}, 0 offset:{off} sc1
    s_waitcnt vmcnt(0)
    v_readfirstlane_b32 {s(st)}, {v(vt)}
    s_cmp_ge_u32 {s(st)}, {tgt}
    s_cbranch_scc1 {tag}_ok
    s_sleep 8
    s_sub_u32 {s(sto)}, {s(sto)}, 1
    s_cbranch_scc0 {tag}
    ''')
    a.label(tag + '_ok')


def silu8(a, gs, n, T):
    g0, g1 = gs[0], gs[1]
    for d in range(n):
        a(f'v_lshlrev_b32 {v(T+2*d)}, 16, {v(g0+d)}')
        a(f'v_and_b32 {v(T+2*d+1)}, 0xffff0000, {v(g0+d)}')
        for g in gs[1:]:
            a(f'v_lshlrev_b32 {v(g0+d)}, 16, {v(g+d)}')
            a(f'v_and_b32 {v(g+d)}, 0xffff0000, {v(g+d)}')
            a(f'v_add_f32 {v(T+2*d)}, {v(T+2*d)}, {v(g0+d)}')
            a(f'v_add_f32 {v(T+2*d+1)}, {v(T+2*d+1)}, {v(g+d)}')
        a(f'v_cvt_pk_bf16_f32 {v(g0+d)}, {v(T+2*d)}, {v(T+2*d+1)}')
        a(f'v_lshlrev_b32 {v(T+2*d)}, 16, {v(g0+d)}')
        a(f'v_and_b32 {v(T+2*d+1)}, 0xffff0000, {v(g0+d)}')
        a(f'v_mul_f32 {v(g0+d)}, s89, {v(T+2*d)}')
        a(f'v_mul_f32 {v(g1+d)}, s89, {v(T+2*d+1)}')
    for d in range(n):
        a(f'v_exp_f32 {v(g0+d)}, {v(g0+d)}')
        a(f'v_exp_f32 {v(g1+d)}, {v(g1+d)}')
    a('s_nop 0')
    for d in range(n):
        a(f'v_add_f32 {v(g0+d)}, 1.0, {v(g0+d)}')
        a(f'v_add_f32 {v(g1+d)}, 1.0, {v(g1+d)}')
    for d in range(n):
        a(f'v_rcp_f32 {v(g0+d)}, {v(g0+d)}')
        a(f'v_rcp_f32 {v(g1+d)}, {v(g1+d)}')
    a('s_nop 0')
    for d in range(n):
        a(f'v_mul_f32 {v(T+2*d)}, {v(T+2*d)}, {v(g0+d)}')
        a(f'v_mul_f32 {v(T+2*d+1)}, {v(T+2*d+1)}, {v(g1+d)}')
        a(f'v_cvt_pk_bf16_f32 {v(g0+d)}, {v(T+2*d)}, {v(T+2*d+1)}')

def finish(a, A, G, X, O, n, t):
    for d in range(n):
        a(f'v_cvt_pk_bf16_f32 {v(t)}, {v(A+2*d)}, {v(A+2*d+1)}')
        a(f'v_lshlrev_b32 {v(A+2*d)}, 16, {v(t)}')
        a(f'v_and_b32 {v(A+2*d+1)}, 0xffff0000, {v(t)}')
        a(f'v_lshlrev_b32 {v(t)}, 16, {v(G+d)}')
        a(f'v_and_b32 {v(t+1)}, 0xffff0000, {v(G+d)}')
        a(f'v_mul_f32 {v(A+2*d)}, {v(A+2*d)}, {v(t)}')
        a(f'v_mul_f32 {v(A+2*d+1)}, {v(A+2*d+1)}, {v(t+1)}')
        a(f'v_cvt_pk_bf16_f32 {v(t)}, {v(A+2*d)}, {v(A+2*d+1)}')
        a(f'v_lshlrev_b32 {v(A+2*d)}, 16, {v(t)}')
        a(f'v_and_b32 {v(A+2*d+1)}, 0xffff0000, {v(t)}')
        a(f'v_lshlrev_b32 {v(t)}, 16, {v(X+d)}')
        a(f'v_and_b32 {v(t+1)}, 0xffff0000, {v(X+d)}')
        a(f'v_add_f32 {v(A+2*d)}, {v(A+2*d)}, {v(t)}')
        a(f'v_add_f32 {v(A+2*d+1)}, {v(A+2*d+1)}, {v(t+1)}')
        a(f'v_cvt_pk_bf16_f32 {v(O+d)}, {v(A+2*d)}, {v(A+2*d+1)}')

def emit_fin(a, s_type, s_a, s_b, t_tail, done, s_otgt, s_four, s_g2, s_rep):
    a(f"""
    s_load_dwordx2 s[8:9], s[0:1], {KA_X}
    s_load_dwordx2 s[12:13], s[0:1], {KA_OUT}
    v_mbcnt_lo_u32_b32 v1, -1, 0
    v_mbcnt_hi_u32_b32 v1, -1, v1
    s_mov_b32 s10, {4*MB}
    s_mov_b32 s11, {SRD3}
    s_mov_b32 s14, {4*MB}
    s_mov_b32 s15, {SRD3}
    s_mov_b32 s89, 0xbfb8aa3b
    v_lshlrev_b32 v3, 4, v1
    v_and_b32 v4, 15, v1
    v_lshrrev_b32 v5, 4, v1
    v_lshlrev_b32 v4, 11, v4
    v_lshl_add_u32 v4, v5, 4, v4
    v_and_b32 v5, 1, v5
    v_cmp_eq_u32 s[76:77], 1, v5
    v_and_b32 v6, 3, v1
    v_lshlrev_b32 v6, 7, v6
    s_mov_b32 s80, {s(s_a)}
    s_lshl_b32 s81, {s(s_b)}, 2
    s_and_b32 s82, s3, 3
    s_add_u32 s81, s81, s82
    s_lshr_b32 s82, s3, 2               ; rb & 1
    s_mov_b32 s84, {TIMEOUT}
    s_mov_b32 s85, {CS_TAB}
    s_waitcnt lgkmcnt(0)
    s_cmp_eq_u32 {s(s_type)}, {t_tail}
    s_cbranch_scc1 fin_tail
    """)
    a.label('fin_job')
    a(f"""
    s_lshl_b32 s72, s80, 1
    s_add_u32 s72, s72, s82             ; rb
    s_lshl_b32 s74, s72, 15
    s_lshl_b32 s73, s81, 11
    s_add_u32 s73, s73, s74             ; F offset
    s_lshl_b32 s75, s81, 7
    s_add_u32 s74, s74, s75
    s_add_u32 s78, s73, {WS_GG}
    s_add_u32 s79, s73, {WS_SP}
    s_lshr_b32 s83, s80, 3
    s_lshl_b32 s83, s83, 6
    s_add_u32 s83, s83, {CD_TAB}
    s_add_u32 s87, s80, 2
    """)
    for b in range(2):
        a(f'buffer_load_dwordx4 {v(88+4*b,4)}, v4, s[8:11], s74 offen offset:{64*b}')
    a(f's_cmp_lg_u32 s80, {s(s_a)}')
    a('s_cbranch_scc1 fin_again')
    a('s_cmp_lg_u32 s3, 0')
    a('s_cbranch_scc1 fin_ws_ok')
    a.label('fin_wd')
    a(f"""
    buffer_load_dwordx2 v[8:9], off, s[4:7], s83 sc1
    s_waitcnt vmcnt(0)
    v_readfirstlane_b32 s86, v8
    v_readfirstlane_b32 s88, v9
    s_cmp_ge_u32 s88, {s(s_otgt)}
    s_cselect_b32 s86, s86, 0
    s_cmp_ge_u32 s86, 16
    s_cbranch_scc1 fin_wd2
    s_sleep 64
    s_sub_u32 s84, s84, 1
    s_cbranch_scc0 fin_wd
    s_mov_b32 s84, 0
    """)
    a.label('fin_wd2')
    a(f's_cmp_lg_u32 {s(s_otgt)}, 0')
    a('s_cbranch_scc1 fin_ws_ok')
    a.label('fin_ws')
    a(f"""
    buffer_load_dword v7, v6, s[4:7], s85 offen sc1
    s_waitcnt vmcnt(0)
    v_cmp_gt_u32 vcc, s87, v7
    s_cbranch_vccz fin_ws_ok
    s_sleep {a.fin_sleep}
    s_sub_u32 s86, s87, 2
    v_cmp_gt_i32 vcc, s86, v7
    s_cbranch_vccz fin_ws_f
    s_sleep 64
    s_sub_u32 s86, s87, 6
    v_cmp_gt_i32 vcc, s86, v7
    s_cbranch_vccz fin_ws_f
    s_sleep 127
    s_sleep 127
    """)
    a.label('fin_ws_f')
    a(f"""
    s_sub_u32 s84, s84, 1
    s_cbranch_scc0 fin_ws
    s_mov_b32 s84, 0
    """)
    a.label('fin_ws_ok')
    a.fin_claim()
    a('s_barrier')
    a.label('fin_again')
    for k in range(4):
        if k == 2:
            a(f's_cmp_lg_u32 {s(s_g2)}, 0')
            a('s_cbranch_scc1 fin_g2')
        for b in range(2):
            a(f'buffer_load_dwordx4 {v(136+8*k+4*b,4)}, v3, s[4:7], s78 offen offset:{1024*b} sc1')
        a(f's_add_u32 s78, s78, {4*MB}')
    a('s_branch fin_g4')
    a.label('fin_g2')
    for i in range(16): a(f'v_mov_b32 {v(152+i)}, 0')
    a.label('fin_g4')
    for g in range(8):
        if g in (2, 4):
            a(f's_cmp_ge_u32 {s(s_four)}, {2 if g == 2 else 1}')
            a(f's_cbranch_scc1 fin_{g}p')
        for b in range(2):
            a(f'buffer_load_dwordx4 {v(16+(b*8+g)*4,4)}, v3, s[4:7], s79 offen offset:{1024*b} sc1')
        a(f's_add_u32 s79, s79, {4*MB}')
    a('s_waitcnt vmcnt(16)')
    a('s_branch fin_8p')
    a.label('fin_2p')
    for b in range(2):
        for i in range(24): a(f'v_mov_b32 {v(16+(b*8+2)*4+i)}, 0')
    a('s_waitcnt vmcnt(4)')
    a('s_branch fin_8p')
    a.label('fin_4p')
    for b in range(2):
        for i in range(16): a(f'v_mov_b32 {v(16+(b*8+4)*4+i)}, 0')
    a('s_waitcnt vmcnt(8)')
    a.label('fin_8p')
    for b in range(2): silu8(a, [136 + 8 * k + 4 * b for k in range(4)], 4, 120)
    a('s_waitcnt vmcnt(0)')
    def combine(b):
        A = 96
        for d in range(4):
            r = 16 + b * 32 + d
            a(f'v_lshlrev_b32 {v(A+2*d)}, 16, {v(r)}')
            a(f'v_and_b32 {v(A+2*d+1)}, 0xffff0000, {v(r)}')
        for g in range(1, 8):
            for d in range(4):
                r = 16 + (b * 8 + g) * 4 + d
                a(f'v_lshlrev_b32 {v(120+2*d)}, 16, {v(r)}')
                a(f'v_and_b32 {v(121+2*d)}, 0xffff0000, {v(r)}')
            for e in range(8):
                a(f'v_add_f32 {v(A+e)}, {v(A+e)}, {v(120+e)}')
        X = 88 + 4 * b
        a(f'v_cndmask_b32 v108, {v(X)}, {v(X+2)}, s[76:77]')
        a(f'v_cndmask_b32 v109, {v(X+1)}, {v(X+3)}, s[76:77]')
        a(f'v_cndmask_b32 v110, {v(X+2)}, {v(X)}, s[76:77]')
        a(f'v_cndmask_b32 v111, {v(X+3)}, {v(X+1)}, s[76:77]')
        finish(a, A, 136 + 4 * b, 108, 112, 4, 104)
        O = 128 + 4 * b
        a(f'v_cndmask_b32 {v(O)}, v112, v114, s[76:77]')
        a(f'v_cndmask_b32 {v(O+1)}, v113, v115, s[76:77]')
        a(f'v_cndmask_b32 {v(O+2)}, v114, v112, s[76:77]')
        a(f'v_cndmask_b32 {v(O+3)}, v115, v113, s[76:77]')
        a(f'buffer_store_dwordx4 {v(O,4)}, v4, s[12:15], s74 offen offset:{64*b}{a.osc}')
    for b in range(2): combine(b)
    a('s_add_u32 s80, s80, 1')
    a(f's_cmp_le_u32 s80, {s(s_rep)}')
    a('s_cbranch_scc1 fin_job')
    if a.wprof:
        import k_gemm5
        a('s_waitcnt vmcnt(0)')
        k_gemm5.prof_stamp(a, 1)
    a(f's_branch {done}')
    a.label('fin_tail')
    a(f"""
    s_mov_b32 s81, {s(s_b)}
    s_lshl_b32 s81, s81, 2
    s_and_b32 s82, s3, 3
    s_add_u32 s81, s81, s82             ; blk 0..63
    s_lshr_b32 s82, s81, 5
    s_and_b32 s81, s81, 31              ; cb
    s_lshl_b32 s72, s80, 1
    s_add_u32 s72, s72, s82             ; rb
    s_lshl_b32 s74, s72, 15
    s_lshl_b32 s73, s81, 10
    s_add_u32 s73, s73, s74
    s_lshl_b32 s75, s81, 6
    s_add_u32 s74, s74, s75
    s_add_u32 s78, s73, {WS_GG}
    s_add_u32 s79, s73, {WS_SP}
    s_mov_b32 s83, {CD_TAB + 7 * 64}
    s_mov_b32 s84, {TIMEOUT}
    s_min_u32 s87, s80, 62
    v_and_b32 v8, 7, v1
    v_lshlrev_b32 v8, 22, v8
    s_cmp_lg_u32 s3, 0
    s_cbranch_scc1 ft_ok
    """)
    a.label('ft_wd')
    a(f"""
    buffer_load_dword v7, off, s[4:7], s83 sc1
    s_waitcnt vmcnt(0)
    v_readfirstlane_b32 s86, v7
    s_cmp_ge_u32 s86, 16
    s_cbranch_scc1 ft_wdok
    s_sleep 32
    s_sub_u32 s84, s84, 1
    s_cbranch_scc0 ft_wd
    s_mov_b32 s84, 0
    """)
    a.label('ft_wdok')
    a.label('ft_ok')
    a(f"""
    s_barrier
    s_cmp_ge_u32 s3, 4
    s_cbranch_scc1 {done}
    buffer_load_dwordx4 v[88:91], v4, s[8:11], s74 offen
    """)
    for k in range(4):
        a(f'buffer_load_dwordx4 {v(136+8*k,4)}, v3, s[4:7], s78 offen sc1')
        a(f's_add_u32 s78, s78, {4*MB}')
    if a.ctch: vcode_touch(a, 'ft_l0', 10, 72, 3, 9, 10)
    a('s_waitcnt vmcnt(0)')
    silu8(a, [136 + 8 * k for k in range(4)], 4, 120)
    a.label('ft_ws')
    a(f"""
    buffer_load_dword v7, v6, s[4:7], s85 offen sc1
    s_waitcnt vmcnt(0)
    v_cmp_gt_u32 vcc, s87, v7
    s_cbranch_vccz ft_p
    s_sleep {a.fin_sleep}
    v_cmp_gt_u32 vcc, 59, v7
    s_cbranch_vccz ft_wsf
    s_sleep 64
    v_cmp_gt_u32 vcc, 56, v7
    s_cbranch_vccz ft_wsf
    s_sleep 127
    s_sleep 127
    """)
    a.label('ft_wsf')
    a(f"""
    s_sub_u32 s84, s84, 1
    s_cbranch_scc0 ft_ws
    s_mov_b32 s84, 0
    """)
    a.label('ft_p')
    if a.ftd:
        a(f's_sleep {a.ftd}')
        a('s_branch ft_l0')
    a(f"""
    buffer_load_dword v7, v8, s[4:7], s79 offen offset:1008 sc1
    s_waitcnt vmcnt(0)
    v_cmp_eq_u32 vcc, -1, v7
    s_cbranch_vccz ft_l0
    s_sleep {a.ft_sleep}
    s_sub_u32 s84, s84, 1
    s_cbranch_scc0 ft_p
    s_mov_b32 s84, 0
    """)
    a.label('ft_l0')
    a.fin_claim()
    a.label('ft_l')
    a('s_mov_b32 s86, s79')
    for g in range(8):
        a(f'buffer_load_dwordx4 {v(16+g*4,4)}, v3, s[4:7], s86 offen sc1')
        if g < 7: a(f's_add_u32 s86, s86, {4*MB}')
    a('s_waitcnt vmcnt(0)')
    a('v_max3_u32 v7, v16, v20, v24')
    a('v_max3_u32 v7, v7, v28, v32')
    a('v_max3_u32 v7, v7, v36, v40')
    a('v_max_u32 v7, v7, v44')
    a(f"""
    v_cmp_eq_u32 vcc, -1, v7
    s_cbranch_vccz ft_go
    s_sleep {a.ft_sleep if a.ftd else 0}
    s_sub_u32 s84, s84, 1
    s_cbranch_scc0 ft_l
    """)
    a.label('ft_go')
    combine(0)
    if a.wprof:
        import k_gemm5
        a('s_waitcnt vmcnt(0)')
        k_gemm5.prof_stamp(a, 1)
    a(f's_branch {done}')
```

```python
from asmlib import *
from layout4 import *

S_W = 3
SRD_WS = 4
SRD_B0 = 8
SRD_B1 = 12
S_A0, S_A1, S_B0, S_B1, S_BSTEP = 16, 17, 18, 19, 20
S_MA, S_MB = 21, 22
S_LEFT = 23
S_TAB = 24
S_WM, S_WN = 26, 27
S_PEND = 28
S_T0, S_T1, S_T2, S_T3 = 29, 30, 31, 56
S_ND = 32
S_CT, S_COUT, S_CSTR, S_CSIG = 48, 49, 50, 51
S_RDY = 52
S_K0, S_K1 = 54, 55
S_PF = 58
D_TYPE, D_KB0, D_KB1, D_LDB, D_B0, D_B1, D_BSZ, D_A, D_ASTR, D_NB, D_OUT, D_OSTR, D_WAIT, D_WTGT, D_SIG, D_X = range(16)
T_END, T_F, T_GLU, T_SILU, T_FH, T_ATT, T_FIN, T_FINT = 0, 1, 2, 3, 4, 5, 6, 7
T_FW = 3
S_ASTEP = 62
S_QH, S_JI = 71, 59
V_NX = 26
LDS_NX = 131072 + 64
V_L16, V_OFFB, V_SWZ, V_GQ, V_AA, V_AAH = 1, 2, 3, 4, 5, 6
V_AW = 8
V_POLL, V_ZERO, V_ONE, V_L16B, V_FLAG = 16, 17, 18, 19, 7
V_TMP = 20
SETS = [(32, 64), (80, 112)]
ACC = 128
LDS_FLAG = 131072
GEMM_LDS = 131072 + 256

NTA = ''
NTB = ''
ENT = ''
def acc(i, t):
    return ACC + (i * 4 + t) * 4

def emit_worker_init(a):
    a(f'''
    v_and_b32 v20, 63, v0
    v_lshlrev_b32 {v(V_L16)}, 4, v20
    v_add_u32 {v(V_L16B)}, 0x1000, {v(V_L16)}
    v_lshrrev_b32 {v(V_GQ)}, 4, v20
    v_mov_b32 {v(V_ZERO)}, 0
    v_mov_b32 {v(V_ONE)}, 1
    s_lshr_b32 {s(S_WM)}, {s(S_W)}, 2
    s_and_b32 {s(S_WN)}, {s(S_W)}, 3
    s_lshl_b32 {s(S_MA)}, {s(S_W)}, 11
    s_lshl_b32 {s(S_MB)}, {s(S_W)}, 10
    s_add_u32 {s(S_MB)}, {s(S_MB)}, 16384
    s_mov_b32 {s(SRD_B0+3)}, {SRD3}
    s_mov_b32 {s(SRD_B1+3)}, {SRD3}
    s_mov_b32 {s(S_PEND)}, 0
    ''')
    a(f'''
    v_and_b32 v21, 15, v20
    v_lshlrev_b32 v22, 2, {v(V_GQ)}
    v_xor_b32 v21, v21, v22
    s_lshr_b32 {s(S_T1)}, {s(S_W)}, 1
    s_and_b32 {s(S_T1)}, {s(S_T1)}, 1
    v_xor_b32 v21, {s(S_T1)}, v21
    v_lshlrev_b32 {v(V_SWZ)}, 4, v21
    ''')
    a(f'''
    s_lshl_b32 {s(S_T1)}, {s(S_WM)}, 13
    v_add_u32 {v(V_AA)}, {s(S_T1)}, {v(V_L16)}
    v_add_u32 {v(V_AAH)}, 0x10000, {v(V_AA)}
    ''')
    a(f'''
    v_bfe_u32 v21, v20, 2, 2          ; r
    v_and_b32 v22, 3, v20             ; c
    v_and_b32 v23, 1, {v(V_GQ)}       ; gq&1
    v_xor_b32 v24, {s(S_WN)}, v21     ; p^r
    v_xor_b32 v25, v22, v23           ; c^(gq&1)
    v_lshl_add_u32 v24, v24, 2, v25   ; unit
    v_lshlrev_b32 v24, 4, v24         ; unit*16
    v_lshl_add_u32 v25, {v(V_GQ)}, 3, v21   ; 8gq + r
    v_lshl_add_u32 v24, v25, 8, v24
    v_and_b32 v22, 1, v22             ; c&1
    ''')
    for T in range(2):
        for hh in range(2):
            d = V_AW + T * 2 + hh
            a(f'v_xor_b32 v25, {hh}, v23')
            a(f'v_lshl_add_u32 {v(d)}, v25, 10, v24')
            a(f'v_xor_b32 v25, {T}, v22')
            a(f'v_lshl_add_u32 {v(d)}, v25, 3, {v(d)}')
            a(f'v_add_u32 {v(d+4)}, 0x10000, {v(d)}')
    a(f'''
    s_lshl_b32 {s(S_T1)}, {s(S_W)}, 2
    s_add_u32 {s(S_T1)}, {s(S_T1)}, {LDS_FLAG}
    v_mov_b32 {v(V_FLAG)}, {s(S_T1)}
    ''')

def dma_group(slot):
    base = slot * 32768
    items = []
    items.append([f's_add_u32 m0, {s(S_MA)}, {base}', 's_nop 0',
                  f'buffer_load_dwordx4 {v(V_L16)}, {s(SRD_WS,4)}, {s(S_A0)} offen sc1{NTA} lds',
                  f's_add_u32 {s(S_A0)}, {s(S_A0)}, {s(S_ASTEP)}'])
    items.append([f's_add_u32 m0, {s(S_MA)}, {base+1024}', 's_nop 0',
                  f'buffer_load_dwordx4 {v(V_L16)}, {s(SRD_WS,4)}, {s(S_A1)} offen sc1{NTA} lds',
                  f's_add_u32 {s(S_A1)}, {s(S_A1)}, {s(S_ASTEP)}'])
    items.append([f's_add_u32 m0, {s(S_MB)}, {base}', 's_nop 0',
                  f'buffer_load_dwordx4 {v(V_OFFB)}, {s(SRD_B0,4)}, {s(S_B0)} offen{NTB} lds',
                  f's_add_u32 {s(S_B0)}, {s(S_B0)}, {s(S_BSTEP)}'])
    items.append([f's_add_u32 m0, {s(S_MB)}, {base+8192}', 's_nop 0',
                  f'buffer_load_dwordx4 {v(V_OFFB)}, {s(SRD_B1,4)}, {s(S_B1)} offen{NTB} lds',
                  f's_add_u32 {s(S_B1)}, {s(S_B1)}, {s(S_BSTEP)}'])
    return items

def frag_reads(slot, fset):
    av, wv = SETS[fset]
    hi = slot >> 1
    base = (slot & 1) * 32768
    items = []
    for hf in range(2):
        for T in range(2):
            t = hf * 2 + T
            for hh in range(2):
                ad = V_AW + hi * 4 + T * 2 + hh
                items.append([f'ds_read_b64_tr_b16 {v(wv+4*t+2*hh,2)}, {v(ad)} offset:{base+16384+hf*8192}'])
    for i in range(8):
        items.append([f'ds_read_b128 {v(av+4*i,4)}, {v(V_AAH if hi else V_AA)} offset:{base+i*1024}'])
    return items

def iteration(a, q, vm, zero_c=False, extra_after_barrier=None, poll=False, mt=8, full_reads=False):
    cur = q & 1
    av, wv = SETS[cur]
    a(f's_waitcnt vmcnt({vm})')
    a('s_barrier')
    if extra_after_barrier:
        extra_after_barrier()
    mf = []
    if mt in (8, 'W'):
        for i in range(8):
            for t in range(4 if mt == 8 else 2):
                c = '0' if zero_c else v(acc(i, t), 4)
                mf.append(f'v_mfma_f32_16x16x32_bf16 {v(acc(i,t),4)}, {v(wv+4*t,4)}, {v(av+4*i,4)}, {c}')
    else:
        for kc in range(2):
            for i in range(4):
                for T in range(2):
                    c = '0' if (zero_c and kc == 0) else v(acc(i, T), 4)
                    mf.append(f'v_mfma_f32_16x16x32_bf16 {v(acc(i,T),4)}, {v(wv+4*(2*kc+T),4)}, {v(av+4*(2*i+kc),4)}, {c}')
    reads = frag_reads((q + 1) & 3, cur ^ 1)
    dmas = dma_group(q)
    if mt == 'W':
        reads = reads[:4] + reads[8:]; dmas = dmas[:3]
    if poll:
        l = a.uid('np')
        if a.poll1:
            a(f's_lshl_b32 s57, {s(S_W)}, 8')
            a(f's_or_b32 s57, s57, {s(S_LEFT)}')
            a('s_cmp_lg_u32 s57, 2')
            a(f's_cbranch_scc1 {l}')
        a(f'buffer_load_dword {v(V_POLL)}, {v(V_ZERO)}, {s(SRD_WS,4)}, {s(S_ND+D_WAIT)} offen sc1')
        a.label(l)
    seq = []
    ri = 0; di = 0
    if mt != 8:
        for d in dmas[:4]: seq.extend(d)
        di = 4
    gdp, gde, grs, gr0 = (getattr(a, n, d) for n, d in (('gdp', 17), ('gde', 3), ('grs', 1), ('gr0', 0)))
    for k, m in enumerate(mf):
        seq.append(m)
        if mt != 8:
            if ri < len(reads): seq.extend(reads[ri]); ri += 1
            continue
        if k >= gdp and (k - gdp) % gde == 0 and di < len(dmas):
            seq.extend(dmas[di]); di += 1
        elif k >= gr0 and ri < len(reads) and (grs == 1 or (k - gr0) % 3 != 2):
            seq.extend(reads[ri]); ri += 1
    assert ri == len(reads)
    while di < len(dmas):
        seq.extend(dmas[di]); di += 1
    for ln in seq:
        a(ln)
    a('s_waitcnt lgkmcnt(0)')

def emit_loader_setup(a):
    a(f'''
    s_load_dwordx2 {s(SRD_B0,2)}, s[0:1], {s(S_ND+D_KB0)}
    s_load_dwordx2 {s(SRD_B1,2)}, s[0:1], {s(S_ND+D_KB1)}
    s_mov_b32 {s(SRD_B0+2)}, {s(S_ND+D_BSZ)}
    s_mov_b32 {s(SRD_B1+2)}, {s(S_ND+D_BSZ)}
    s_cmp_eq_u32 {s(S_ND+D_TYPE)}, {T_FH}
    s_cselect_b32 {s(S_T2)}, 0, 1
    s_lshl_b32 {s(S_T1)}, {s(S_W)}, {s(S_T2)}
    s_mul_i32 {s(S_T1)}, {s(S_T1)}, {s(S_ND+D_ASTR)}
    s_add_u32 {s(S_A0)}, {s(S_ND+D_A)}, {s(S_T1)}
    s_cmp_eq_u32 {s(S_ND+D_TYPE)}, {T_FH}
    s_cselect_b32 {s(S_T1)}, 1024, {s(S_ND+D_ASTR)}
    s_cselect_b32 {s(S_T2)}, 6, 5
    s_lshl_b32 {s(S_ASTEP)}, 32, {s(S_T2)}
    s_add_u32 {s(S_A1)}, {s(S_A0)}, {s(S_T1)}
    s_lshl_b32 {s(S_T1)}, {s(S_W)}, 2
    s_mul_i32 {s(S_T1)}, {s(S_T1)}, {s(S_ND+D_LDB)}
    s_add_u32 {s(S_B0)}, {s(S_ND+D_B0)}, {s(S_T1)}
    s_add_u32 {s(S_B1)}, {s(S_ND+D_B1)}, {s(S_T1)}
    s_lshl_b32 {s(S_BSTEP)}, {s(S_ND+D_LDB)}, {s(S_T2)}
    v_mul_u32_u24 {v(V_OFFB)}, {s(S_ND+D_LDB)}, {v(V_GQ)}
    v_add_u32 {v(V_OFFB)}, {v(V_OFFB)}, {v(V_SWZ)}
    s_waitcnt lgkmcnt(0)
    ''')

def prof_stamp(a, mark=0):
    if not getattr(a, 'wprof', False): return
    a(f'''
    s_memrealtime s[60:61]
    s_memtime s[92:93]
    s_waitcnt lgkmcnt(0)
    s_andn2_b32 s60, s60, 1
    s_or_b32 s60, s60, {mark}
    v_mov_b32 v21, s60
    v_mov_b32 v23, s92
    v_mov_b32 v27, {s(S_JI)}
    s_add_u32 s92, {s(S_PF)}, {MB}
    s_add_u32 s93, {s(S_PF)}, {2*MB}
    s_mov_b64 exec, 1
    buffer_store_dword v21, off, {s(SRD_WS,4)}, {s(S_PF)}
    buffer_store_dword v23, off, {s(SRD_WS,4)}, s92
    buffer_store_dword v27, off, {s(SRD_WS,4)}, s93
    s_mov_b64 exec, -1
    s_add_u32 {s(S_PF)}, {s(S_PF)}, 4
    ''')

def emit_adopt(a, with_load=True):
    prof_stamp(a)
    a(f'''
    s_mov_b32 {s(S_CT)}, {s(S_ND+D_TYPE)}
    s_cmp_eq_u32 {s(S_ND+D_TYPE)}, {T_FH}
    s_cselect_b32 {s(S_T1)}, 2, 3
    s_lshl_b32 {s(S_T1)}, {s(S_WM)}, {s(S_T1)}
    s_mul_i32 {s(S_T1)}, {s(S_T1)}, {s(S_ND+D_OSTR)}
    s_add_u32 {s(S_COUT)}, {s(S_ND+D_OUT)}, {s(S_T1)}
    s_mov_b32 {s(S_CSTR)}, {s(S_ND+D_OSTR)}
    s_mov_b32 {s(S_CSIG)}, {s(S_ND+D_SIG)}
    s_mov_b32 {s(S_LEFT)}, {s(S_ND+D_NB)}
    s_mov_b32 s53, {s(S_ND+D_NB)}
    ''')

def claim(a, vr):
    l = a.uid('clm')
    a(f'''
    s_cmp_lg_u32 {s(S_W)}, 0
    s_cbranch_scc1 {l}
    v_mov_b32 {v(vr)}, 1
    s_mov_b64 exec, 1
    buffer_atomic_add {v(vr)}, off, s[64:67], {s(S_QH)} sc0 sc1
    s_mov_b64 exec, -1
    ''')
    a.label(l)

def publish(a, vr):
    l = a.uid('pub')
    a(f'''
    s_cmp_lg_u32 {s(S_W)}, 0
    s_cbranch_scc1 {l}
    v_mov_b32 v20, {LDS_NX}
    s_mov_b64 exec, 1
    ds_write_b32 v20, {v(vr)}
    s_mov_b64 exec, -1
    s_waitcnt lgkmcnt(0)
    ''')
    a.label(l)

def fetch(a, nj):
    a(f'''
    v_mov_b32 v20, {LDS_NX}
    ds_read_b32 v20, v20
    s_waitcnt lgkmcnt(0)
    v_readfirstlane_b32 {s(S_JI)}, v20
    s_add_u32 {s(S_JI)}, {s(S_JI)}, 32
    s_min_u32 {s(S_JI)}, {s(S_JI)}, {nj - 1}
    s_lshl_b32 s57, {s(S_JI)}, 6
    s_load_dwordx16 {s(S_ND,16)}, {s(S_TAB,2)}, s57
    ''')

def emit_signal(a, sreg):
    l = a.uid('sig')
    a(f'''
    s_cmp_eq_u32 {s(sreg)}, 0
    s_cbranch_scc1 {l}
    s_cmp_lg_u32 {s(S_W)}, 0
    s_cbranch_scc1 {l}
    s_and_b32 s57, {s(sreg)}, 3
    v_mov_b32 v24, s57
    s_bfe_u32 s57, {s(sreg)}, 0x20002
    v_mov_b32 v25, s57
    s_andn2_b32 {s(sreg)}, {s(sreg)}, 15
    s_mov_b64 exec, 1
    buffer_atomic_add_x2 v[24:25], {v(V_ZERO)}, {s(SRD_WS,4)}, {s(sreg)} offen sc1
    s_mov_b64 exec, -1
    ''')
    a.label(l)
    a(f's_mov_b32 {s(sreg)}, 0')

def fused_first(a, glu):
    av, wv = SETS[0]
    a('s_waitcnt vmcnt(8)')
    a('s_barrier')
    for d in dma_group(0):
        for ln in d: a(ln)
    reads = [r[0] for r in frag_reads(1, 1)]
    if glu: a('s_mov_b32 s55, 0xbfb8aa3b')
    n = 0
    for i in range(8):
        if glu:
            tq, w = 28, 20; g = acc(i, 0); u = acc(i, 2)
            for d in range(4): a(f'v_cvt_pk_bf16_f32 {v(tq+d)}, {v(g+2*d)}, {v(g+2*d+1)}')
            for d in range(4):
                a(f'v_lshlrev_b32 {v(w+2*d)}, 16, {v(tq+d)}')
                a(f'v_and_b32 {v(w+2*d+1)}, 0xffff0000, {v(tq+d)}')
            for e in range(8): a(f'v_mul_f32 {v(w+e)}, s55, {v(w+e)}')
            for e in range(8): a(f'v_exp_f32 {v(w+e)}, {v(w+e)}')
            for e in range(8): a(f'v_add_f32 {v(w+e)}, 1.0, {v(w+e)}')
            for e in range(8): a(f'v_rcp_f32 {v(w+e)}, {v(w+e)}')
            for e in range(8): a(f'v_mul_f32 {v(w+e)}, {v(w+e)}, {v(u+e)}')
            for d in range(4): a(f'v_cvt_pk_bf16_f32 {v(tq+d)}, {v(w+2*d)}, {v(w+2*d+1)}')
            a(f'buffer_store_dwordx4 {v(tq,4)}, {v(V_L16)}, {s(SRD_WS,4)}, s54 offen sc1{ENT}')
        else:
            for hf in range(2):
                tq = 20 + 4 * (n % 3); n += 1
                src = acc(i, 2 * hf)
                for d in range(4): a(f'v_cvt_pk_bf16_f32 {v(tq+d)}, {v(src+2*d)}, {v(src+2*d+1)}')
                a(f'buffer_store_dwordx4 {v(tq,4)}, {v(V_L16B if hf else V_L16)}, {s(SRD_WS,4)}, s54 offen sc1{ENT}')
        a('s_add_u32 s54, s54, s56')
        for t in range(4):
            a(f'v_mfma_f32_16x16x32_bf16 {v(acc(i,t),4)}, {v(wv+4*t,4)}, {v(av+4*i,4)}, 0')
            if t & 1: a(reads.pop(0))
    a('s_waitcnt lgkmcnt(0)')

def first_body(a, nst, mt=8, sq=3):
    for q in range(4):
        if q == 1 and mt == 8: a.label(f'w_first{nst}_q1')
        vm = min(8 + nst, 63) if q < sq else (4 * q if q == sq and q < 2 else 8)
        iteration(a, q, vm, zero_c=(q == 0), mt=mt,
                  extra_after_barrier=(lambda: emit_signal(a, S_PEND)) if q == sq else None)

EPI_TMP = 80

def epi_F(a, silu=False, mt=8):
    a(f's_lshl_b32 {s(S_T1)}, {s(S_WN)}, 10')
    a(f's_add_u32 {s(S_T1)}, {s(S_T1)}, {s(S_COUT)}')
    if silu:
        a(f's_mov_b32 {s(S_K0)}, 0xbfb8aa3b')
    a('s_nop 7')
    n = 0
    for i in range(8 if mt == 'W' else mt):
        for hf in range(2 if mt == 8 else 1):
            tq = EPI_TMP + 4 * (n % 4); n += 1
            src = acc(i, 2 * hf)
            if silu:
                w = EPI_TMP + 16 + 8 * (n % 2)
                for d in range(4):
                    a(f'v_cvt_pk_bf16_f32 {v(tq+d)}, {v(src+2*d)}, {v(src+2*d+1)}')
                for d in range(4):
                    a(f'v_lshlrev_b32 {v(src+2*d)}, 16, {v(tq+d)}')
                    a(f'v_and_b32 {v(src+2*d+1)}, 0xffff0000, {v(tq+d)}')
                for e in range(8):
                    a(f'v_mul_f32 {v(w+e)}, {s(S_K0)}, {v(src+e)}')
                for e in range(8):
                    a(f'v_exp_f32 {v(w+e)}, {v(w+e)}')
                for e in range(8):
                    a(f'v_add_f32 {v(w+e)}, 1.0, {v(w+e)}')
                for e in range(8):
                    a(f'v_rcp_f32 {v(w+e)}, {v(w+e)}')
                for e in range(8):
                    a(f'v_mul_f32 {v(src+e)}, {v(src+e)}, {v(w+e)}')
            for d in range(4):
                a(f'v_cvt_pk_bf16_f32 {v(tq+d)}, {v(src+2*d)}, {v(src+2*d+1)}')
            a(f'buffer_store_dwordx4 {v(tq,4)}, {v(V_L16B if hf else V_L16)}, {s(SRD_WS,4)}, {s(S_T1)} offen sc1{ENT}')
        if i < 7:
            a(f's_add_u32 {s(S_T1)}, {s(S_T1)}, {s(S_CSTR)}')
    return 16 if mt == 8 else 4

def epi_GLU(a):
    a(f's_lshl_b32 {s(S_T1)}, {s(S_WN)}, 10')
    a(f's_add_u32 {s(S_T1)}, {s(S_T1)}, {s(S_COUT)}')
    a(f's_mov_b32 {s(S_K0)}, 0xbfb8aa3b')
    a('s_nop 7')
    for i in range(8):
        tq = EPI_TMP + 4 * (i % 4)
        w = EPI_TMP + 16 + 8 * (i % 2)
        g = acc(i, 0); u = acc(i, 2)
        for d in range(4):
            a(f'v_cvt_pk_bf16_f32 {v(tq+d)}, {v(g+2*d)}, {v(g+2*d+1)}')
        for d in range(4):
            a(f'v_lshlrev_b32 {v(w+2*d)}, 16, {v(tq+d)}')
            a(f'v_and_b32 {v(w+2*d+1)}, 0xffff0000, {v(tq+d)}')
        for e in range(8):
            a(f'v_mul_f32 {v(w+e)}, {s(S_K0)}, {v(w+e)}')
        for e in range(8):
            a(f'v_exp_f32 {v(w+e)}, {v(w+e)}')
        for e in range(8):
            a(f'v_add_f32 {v(w+e)}, 1.0, {v(w+e)}')
        for e in range(8):
            a(f'v_rcp_f32 {v(w+e)}, {v(w+e)}')
        for e in range(8):
            a(f'v_mul_f32 {v(w+e)}, {v(w+e)}, {v(u+e)}')
        for d in range(4):
            a(f'v_cvt_pk_bf16_f32 {v(tq+d)}, {v(w+2*d)}, {v(w+2*d+1)}')
        a(f'buffer_store_dwordx4 {v(tq,4)}, {v(V_L16)}, {s(SRD_WS,4)}, {s(S_T1)} offen sc1{ENT}')
        if i < 7:
            a(f's_add_u32 {s(S_T1)}, {s(S_T1)}, {s(S_CSTR)}')
    return 8

def emit_worker(a, table_label, jobs_per_worker, done_label):
    emit_worker_init(a)
    if getattr(a, 'gprio', 0):
        a(f's_cmp_ge_u32 {s(S_W)}, 4')
        a(f's_cbranch_scc{0 if a.gprio == 1 else 1} w_np')
        a('s_setprio 1')
        a.label('w_np')
    if getattr(a, 'wprof', False):
        a(f's_lshl_b32 {s(S_PF)}, {s(S_T0)}, 3')
        a(f's_add_u32 {s(S_PF)}, {s(S_PF)}, {s(S_W)}')
        a(f's_lshl_b32 {s(S_PF)}, {s(S_PF)}, 7')
        a(f's_add_u32 {s(S_PF)}, {s(S_PF)}, {WS_YP + 8*MB}')
        prof_stamp(a)
    a(f'''
    s_getpc_b64 {s(S_TAB,2)}
    s_add_u32 {s(S_TAB)}, {s(S_TAB)}, {table_label}@rel32@lo+4
    s_addc_u32 {s(S_TAB+1)}, {s(S_TAB+1)}, {table_label}@rel32@hi+12
    s_and_b32 {s(S_T2)}, {s(S_T0)}, 3
    s_mul_i32 {s(S_T1)}, {s(S_T2)}, {jobs_per_worker*64}
    s_add_u32 {s(S_TAB)}, {s(S_TAB)}, {s(S_T1)}
    s_addc_u32 {s(S_TAB+1)}, {s(S_TAB+1)}, 0
    s_lshl_b32 {s(S_QH)}, {s(S_T2)}, 2
    s_add_u32 {s(S_QH)}, {s(S_QH)}, 64
    s_lshr_b32 {s(S_JI)}, {s(S_T0)}, 2
    s_lshl_b32 {s(S_T1)}, {s(S_JI)}, 6
    s_load_dwordx16 {s(S_ND,16)}, {s(S_TAB,2)}, {s(S_T1)}
    s_waitcnt lgkmcnt(0)
    ''')
    bpre = getattr(a, 'bpre', 0)
    if bpre:
        a(f's_sub_u32 s57, {s(S_ND+D_TYPE)}, {T_FW}')
        a('s_cmp_ge_u32 s57, 2')
        a('s_cbranch_scc1 w_nopre')
        emit_loader_setup(a)
        for q in range(bpre):
            for it in dma_group(q)[2:]:
                for ln in it: a(ln)
        a.pre_cold('p')
        for q in range(4):
            for it in (dma_group(q)[:2] if q < bpre else dma_group(q)):
                for ln in it: a(ln)
        a('s_branch w_adopt')
        a.label('w_nopre')
    if getattr(a, 'pre_cold', None): a.pre_cold()
    a.label('w_cold')
    a(f'''
    s_cmp_eq_u32 {s(S_ND+D_TYPE)}, {T_END}
    s_cbranch_scc1 {done_label}
    s_cmp_ge_u32 {s(S_ND+D_TYPE)}, {T_FIN}
    s_cbranch_scc1 w_fin
    ''')
    a(f's_cmp_lg_u32 {s(S_W)}, 0')
    a('s_cbranch_scc1 w_depok')
    if getattr(a, 'nodep', 0):
        a(f's_cmp_eq_u32 {s(S_ND+D_WTGT)}, 0')
        a('s_cbranch_scc1 w_depok')
    a(f's_mov_b32 {s(S_T2)}, 0x40000')
    a.label('w_waitdep')
    a(f'''
    buffer_load_dword {v(V_POLL)}, {v(V_ZERO)}, {s(SRD_WS,4)}, {s(S_ND+D_WAIT)} offen sc1
    s_waitcnt vmcnt(0)
    v_readfirstlane_b32 {s(S_T1)}, {v(V_POLL)}
    s_cmp_ge_u32 {s(S_T1)}, {s(S_ND+D_WTGT)}
    s_cbranch_scc1 w_depok
    s_sleep 16
    s_sub_u32 {s(S_T2)}, {s(S_T2)}, 1
    s_cbranch_scc0 w_waitdep
    ''')
    a.label('w_depok')
    if getattr(a, 'dbgt', False):
        a('s_mov_b32 s96, s94')
        a('s_memrealtime s[94:95]')
    a(f's_cmp_eq_u32 {s(S_ND+D_TYPE)}, {T_ATT}')
    a('s_cbranch_scc1 w_att')
    emit_loader_setup(a)
    a('s_barrier')
    for q in range(4):
        for it in dma_group(q):
            for ln in it:
                a(ln)
    a.label('w_adopt')
    emit_adopt(a)
    a('s_waitcnt vmcnt(0)')
    a('s_barrier')
    for it in frag_reads(0, 0):
        for ln in it:
            a(ln)
    a('s_waitcnt lgkmcnt(0)')
    a(f's_cmp_eq_u32 {s(S_CT)}, {T_FH}')
    a('s_cbranch_scc1 w_firstH')
    if a.wt:
        a(f's_cmp_eq_u32 {s(S_CT)}, {T_FW}')
        a('s_cbranch_scc1 w_firstW')
    a('s_branch w_first16')
    for nst in (4, 8, 16):
        a.label(f'w_first{nst}')
        first_body(a, nst, sq=getattr(a, 'fsq', 3))
        if nst != 16:
            a('s_branch w_loop_chk')
    def loop(sfx, mt):
        a.label('w_loop_chk' + sfx)
        a(f's_sub_u32 {s(S_LEFT)}, {s(S_LEFT)}, 1')
        a.label('w_loop' + sfx)
        a(f's_cmp_gt_u32 {s(S_LEFT)}, 3')
        a(f's_cbranch_scc1 w_body{sfx}')
        a(f's_cmp_lg_u32 {s(S_LEFT)}, 3')
        a(f's_cbranch_scc1 w_l2{sfx}')
        claim(a, V_NX)
        if sfx == 'H' and getattr(a, 'hh', 0):
            a(f's_cmp_lg_u32 {s(S_W)}, 0')
            a('s_cselect_b32 s70, 0, s70')
            a('s_cmp_eq_u32 s70, 0')
            a(f's_cbranch_scc1 w_body{sfx}')
            a('buffer_load_dword v22, off, s[64:67], 0 sc1')
        a(f's_branch w_body{sfx}')
        a.label('w_l2' + sfx)
        a(f's_cmp_lg_u32 {s(S_LEFT)}, 2')
        a(f's_cbranch_scc1 w_l1{sfx}')
        publish(a, V_NX)
        a(f's_branch w_body{sfx}')
        a.label('w_l1' + sfx)
        if mt == 'W':
            a(f's_branch w_body{sfx}')
        a('s_waitcnt vmcnt(8)')
        hh = sfx == 'H' and getattr(a, 'hh', 0)
        if hh:
            a('v_readfirstlane_b32 s68, v22')
            a('s_cmp_ge_u32 s68, 128')
            a('s_cselect_b32 s70, 0, s70')
        a(f'''
        {'buffer_load_dword v22, off, s[64:67], 0 sc1' if sfx == 'H' and not hh else ''}
        v_readfirstlane_b32 {s(S_T1)}, {v(V_POLL)}
        s_cmp_ge_u32 {s(S_T1)}, {s(S_ND+D_WTGT)}
        s_cselect_b32 {s(S_T1)}, 0, 1
        s_cmp_lg_u32 {s(S_W)}, {0 if a.poll1 else s(S_W)}
        s_cselect_b32 {s(S_T1)}, 0, {s(S_T1)}
        s_or_b32 {s(S_T1)}, {s(S_T1)}, s70
        s_cmp_eq_u32 {s(S_ND+D_TYPE)}, {T_END if hh else T_FH}
        s_cselect_b32 {s(S_T1)}, 1, {s(S_T1)}
        s_sub_u32 s57, {s(S_ND+D_TYPE)}, 1
        s_cmp_ge_u32 s57, 4
        s_cselect_b32 {s(S_T1)}, 1, {s(S_T1)}
        v_mov_b32 v20, {s(S_T1)}
        ds_write_b32 {v(V_FLAG)}, v20
        s_cbranch_scc1 w_body{sfx}
        ''')
        emit_loader_setup(a)
        a.label('w_body' + sfx)
        for q in range(4):
            def hook():
                a(f's_cmp_lg_u32 {s(S_LEFT)}, 2')
                a(f's_cbranch_scc1 w_nf{sfx}')
                fetch(a, jobs_per_worker)
                a.label('w_nf' + sfx)
            iteration(a, q, 6 if mt == 'W' else 8, poll=(q == 1 and mt != 'W'), mt=mt, full_reads=(q == 3), extra_after_barrier=hook if q == 0 else None)
        a(f'''
        s_sub_u32 {s(S_LEFT)}, {s(S_LEFT)}, 1
        s_cmp_lg_u32 {s(S_LEFT)}, 0
        s_cbranch_scc1 w_loop{sfx}
        ''')
    loop('', 8)
    a(f'''
    v_mov_b32 v20, {LDS_FLAG}
    ds_read_b128 v[24:27], v20
    ds_read_b128 v[28:31], v20 offset:16
    ''')
    if getattr(a, 'fuse', 0):
        a(f'''
        s_lshl_b32 s54, {s(S_WN)}, 10
        s_add_u32 s54, s54, {s(S_COUT)}
        s_mov_b32 s56, {s(S_CSTR)}
        s_mov_b32 s55, {s(S_CT)}
        s_waitcnt lgkmcnt(0)
        v_or3_b32 v21, v24, v25, v26
        v_or3_b32 v23, v28, v29, v30
        v_or3_b32 v21, v21, v27, v31
        v_or_b32 v21, v21, v23
        s_nop 0
        v_readfirstlane_b32 {s(S_T1)}, v21
        s_cmp_lg_u32 {s(S_T1)}, 0
        s_cbranch_scc1 w_nofuse
        s_mov_b32 {s(S_PEND)}, {s(S_CSIG)}
        ''')
        emit_adopt(a)
        a(f's_cmp_eq_u32 s55, {T_GLU}')
        a('s_cbranch_scc1 w_fuse_glu')
        fused_first(a, False)
        a('s_branch w_first16_q1')
        a.label('w_fuse_glu')
        fused_first(a, True)
        a('s_branch w_first8_q1')
        a.label('w_nofuse')
    a(f'''
    s_cmp_eq_u32 {s(S_CT)}, {T_GLU}
    s_cbranch_scc1 w_epi_glu
    ''')
    def tail(nst, h=False):
        a(f'''
        s_waitcnt lgkmcnt(0)
        v_or3_b32 v24, v24, v25, v26
        v_or3_b32 v28, v28, v29, v30
        v_or3_b32 v24, v24, v27, v31
        v_or_b32 v24, v24, v28
        s_mov_b32 {s(S_PEND)}, {s(S_CSIG)}
        v_readfirstlane_b32 {s(S_T1)}, v24
        s_cmp_lg_u32 {s(S_T1)}, 0
        s_cbranch_scc1 w_drain
        ''')
        emit_adopt(a)
        if h and getattr(a, 'hh', 0):
            a(f's_cmp_eq_u32 {s(S_CT)}, {T_FH}')
            a('s_cbranch_scc1 w_firstH4')
        a(f's_branch w_first{nst}')
    tail(epi_F(a))
    a.label('w_epi_glu')
    tail(epi_GLU(a))
    if getattr(a, 'hh', 0):
        a.label('w_firstH4')
        first_body(a, 4, mt=4, sq=a.hh)
        a('s_branch w_loop_chkH')
    a.label('w_firstH')
    for q in range(4):
        iteration(a, q, 8, zero_c=(q == 0), mt=4)
    loop('H', 4)
    a(f'''
    v_mov_b32 v20, {LDS_FLAG}
    ds_read_b128 v[24:27], v20
    ds_read_b128 v[28:31], v20 offset:16
    ''')
    tail(epi_F(a, mt=4), True)
    if a.wt:
        a.label('w_firstW')
        for q in range(4):
            iteration(a, q, 6, zero_c=(q == 0), mt='W')
        loop('W', 'W')
        epi_F(a, mt='W')
        a(f's_mov_b32 {s(S_PEND)}, {s(S_CSIG)}')
    a.label('w_drain')
    a('s_waitcnt vmcnt(0)')
    a('s_barrier')
    if getattr(a, 'drain_hook', None): a.drain_hook()
    emit_signal(a, S_PEND)
    prof_stamp(a, 1)
    a('s_cmp_ge_u32 s53, 4')
    a('s_cbranch_scc1 w_cold')
    claim(a, V_NX)
    a('s_waitcnt vmcnt(0)')
    publish(a, V_NX)
    a('s_barrier')
    fetch(a, jobs_per_worker)
    a('s_waitcnt lgkmcnt(0)')
    a('s_barrier')
    a('s_branch w_cold')
    a.label('w_att')
    a(f's_cmp_lg_u32 {s(S_W)}, 0')
    a('s_cbranch_scc1 w_att_go')
    a(f's_mov_b32 {s(S_T2)}, 0x40000')
    a.label('w_att_w')
    a(f'''
    buffer_load_dwordx2 v[20:21], off, {s(SRD_WS,4)}, {s(S_ND+D_KB0)} sc1
    s_waitcnt vmcnt(0)
    v_add_u32 v20, v20, v21
    s_nop 0
    v_readfirstlane_b32 {s(S_T1)}, v20
    s_cmp_ge_u32 {s(S_T1)}, 8
    s_cbranch_scc1 w_att_go
    s_sleep 16
    s_sub_u32 {s(S_T2)}, {s(S_T2)}, 1
    s_cbranch_scc0 w_att_w
    ''')
    a.label('w_att_go')
    claim(a, 250)
    a('s_barrier')
    prof_stamp(a)
    import k_att
    k_att.emit_att(a, S_ND + D_A, S_ND + D_B0, S_W)
    a(f'''
    s_mov_b32 {s(S_PEND)}, {s(S_ND+D_SIG)}
    s_waitcnt vmcnt(0)
    s_barrier
    ''')
    emit_signal(a, S_PEND)
    prof_stamp(a, 1)
    publish(a, 250)
    a('s_barrier')
    fetch(a, jobs_per_worker)
    a('s_waitcnt lgkmcnt(0)')
    a('s_branch w_cold')
    a.label('w_fin')
    a.fin_claim = lambda: claim(a, 250)
    prof_stamp(a)
    a.fin_hook(S_ND + D_TYPE, S_ND + D_A, S_ND + D_B0, T_FINT, 'w_fin_done', S_ND + D_B1, S_ND + D_LDB, S_ND + D_KB0, S_ND + D_KB1)
    a.label('w_fin_done')
    publish(a, 250)
    a('s_barrier')
    fetch(a, jobs_per_worker)
    a(f'''
    s_waitcnt lgkmcnt(0)
    s_barrier
    s_sub_u32 s57, {s(S_ND+D_TYPE)}, 1
    s_cmp_ge_u32 s57, 5
    s_cbranch_scc1 w_cold
    ''')
    emit_worker_init(a)
    a('s_branch w_cold')

def job(type, kb0, kb1, ldb, b0, b1, bsz, aoff, astr, nb, out, ostr, wait=0, wtgt=0, sig=0):
    return [type, kb0, kb1, ldb, b0, b1, bsz, aoff, astr, nb, out, ostr, wait, wtgt, sig, 0]

def job_qkv(mat, mb, nt, sig=0):
    ka = [KA_WQ, KA_WK, KA_WV][mat]; o = [WS_QS, WS_KS, WS_VS][mat]
    return job(T_F, ka, ka, 8192, nt * 512, nt * 512 + 256, 8 * MB, WS_XN + mb * 16 * 32 * 1024, 32 * 1024, 8,
               o + (mb * 16 * 128 + nt * 8) * 1024, 128 * 1024, sig=sig)

def job_qkv_half(mat, hb, nt, sig=0):
    ka = [KA_WQ, KA_WK, KA_WV][mat]; o = [WS_QS, WS_KS, WS_VS][mat]
    return job(T_FH, ka, ka, 8192, nt * 256, nt * 256 + 32 * 8192, 8 * MB, WS_XN + hb * 8 * 32 * 1024, 32 * 1024, 4,
               o + (hb * 8 * 128 + nt * 4) * 1024, 128 * 1024, sig=sig)

def job_qkv_w(mat, hb, nt, sig=0):
    ka = [KA_WQ, KA_WK, KA_WV][mat]; o = [WS_QS, WS_KS, WS_VS][mat]
    return job(T_FW, ka, ka, 8192, nt * 256, nt * 256, 8 * MB, WS_XN + hb * 8 * 32 * 1024, 32 * 1024, 8,
               o + (hb * 8 * 128 + nt * 4) * 1024, 128 * 1024, sig=sig)

def job_glu(mb, ft, sig=0):
    return job(T_GLU, KA_WG, KA_WU, 7168, ft * 256, ft * 256, 7 * MB, WS_XN + mb * 16 * 32 * 1024, 32 * 1024, 8,
               WS_HH + (mb * 16 * 112 + ft * 4) * 1024, 112 * 1024, sig=sig)

def job_down_h(mb, nt, kh, wait=0, wtgt=0, sig=0, m=1):
    return job(T_F, KA_WD, KA_WD, 2048, nt * 512 + kh * m * 896 * 2048, nt * 512 + 256 + kh * m * 896 * 2048, 7 * MB,
               WS_HH + (mb * 16 * 112 + kh * m * 28) * 1024, 112 * 1024, 7 * m,
               WS_GG + kh * 4 * MB + (mb * 16 * 32 + nt * 8) * 1024, 32 * 1024, wait=wait, wtgt=wtgt, sig=sig)

def job_att(hb, hg, wait, wtgt, sig, wq):
    return job(T_ATT, wq, 0, 0, 4 * hg, 0, 0, 4 * hb, 0, 0, 0, 0, wait=wait, wtgt=wtgt, sig=sig)

def job_wo(mb, nt, kq, wait=0, wtgt=0, sig=0, m=1):
    return job(T_F, KA_WO, KA_WO, 2048, nt * 512 + kq * m * 1024 * 2048, nt * 512 + 256 + kq * m * 1024 * 2048, 8 * MB,
               WS_OO + (mb * 16 * 128 + kq * m * 32) * 1024, 128 * 1024, 8 * m,
               WS_SP + kq * 4 * MB + (mb * 16 * 32 + nt * 8) * 1024, 32 * 1024, wait=wait, wtgt=wtgt, sig=sig)

def job_wo_half(hb, nt, kp, kl, wait, wtgt, sig):
    return job(T_FH, KA_WO, KA_WO, 2048, nt * 256 + kp * kl * 2048, nt * 256 + (kp * kl + 32) * 2048, 8 * MB,
               WS_OO + (hb * 8 * 128 + kp * kl // 32) * 1024, 128 * 1024, kl // 256,
               WS_SP + kp * 4 * MB + (hb * 8 * 32 + nt * 4) * 1024, 32 * 1024, wait=wait, wtgt=wtgt, sig=sig)

def job_fin(seg, quarter, tail=False, otgt=0, four=0, wide=False, g2=0, n=1):
    return job(T_FINT + 1 if wide else T_FINT if tail else T_FIN, g2, seg + n - 1, four, quarter, otgt, 0, seg, 0, 0, 0, 0)

END_JOB = [0] * 16

def emit_table(a, label, lists, per):
    a.raw('.p2align 6')
    a.label(label)
    for l in lists:
        assert len(l) < per
        l = l + [END_JOB] * (per - len(l))
        for j in l:
            a.raw('    .long ' + ', '.join(str(x) for x in j))

def emit_touch_first(a, table_label, jobs_per_worker, swk):
    l = a.uid('tch')
    a(f'''
    s_getpc_b64 {s(S_TAB,2)}
    s_add_u32 {s(S_TAB)}, {s(S_TAB)}, {table_label}@rel32@lo+4
    s_addc_u32 {s(S_TAB+1)}, {s(S_TAB+1)}, {table_label}@rel32@hi+12
    s_mul_i32 {s(S_T1)}, {s(swk)}, {jobs_per_worker*64}
    s_add_u32 {s(S_TAB)}, {s(S_TAB)}, {s(S_T1)}
    s_addc_u32 {s(S_TAB+1)}, {s(S_TAB+1)}, 0
    s_load_dwordx16 {s(S_ND,16)}, {s(S_TAB,2)}, 0
    s_mov_b32 {s(SRD_B0+3)}, {SRD3}
    s_waitcnt lgkmcnt(0)
    s_cmp_eq_u32 {s(S_ND+D_TYPE)}, {T_END}
    s_cbranch_scc1 {l}
    s_load_dwordx2 {s(SRD_B0,2)}, s[0:1], {s(S_ND+D_KB0)}
    s_mov_b32 {s(SRD_B0+2)}, {s(S_ND+D_BSZ)}
    v_bfe_u32 v20, v0, 2, 6
    v_mul_u32_u24 v20, {s(S_ND+D_LDB)}, v20
    v_and_b32 v21, 3, v0
    v_lshl_add_u32 v20, v21, 6, v20
    s_lshl_b32 {s(S_T1)}, {s(S_ND+D_LDB)}, 6
    s_mov_b32 {s(S_T2)}, {s(S_ND+D_B0)}
    s_waitcnt lgkmcnt(0)
    ''')
    for j in range(16):
        a(f'buffer_load_dword v22, v20, {s(SRD_B0,4)}, {s(S_T2)} offen')
        a(f's_add_u32 {s(S_T2)}, {s(S_T2)}, {s(S_T1)}')
    a.label(l)

def emit_tlb_touch(a, table_label, jobs_per_worker, swk):
    l = a.uid('tlb')
    a(f'''
    s_getpc_b64 {s(S_TAB,2)}
    s_add_u32 {s(S_TAB)}, {s(S_TAB)}, {table_label}@rel32@lo+4
    s_addc_u32 {s(S_TAB+1)}, {s(S_TAB+1)}, {table_label}@rel32@hi+12
    s_and_b32 {s(S_T1)}, {s(swk)}, 3
    s_mul_i32 {s(S_T1)}, {s(S_T1)}, {jobs_per_worker}
    s_lshr_b32 {s(S_T2)}, {s(swk)}, 2
    s_add_u32 {s(S_T1)}, {s(S_T1)}, {s(S_T2)}
    s_lshl_b32 {s(S_T1)}, {s(S_T1)}, 6
    s_add_u32 {s(S_TAB)}, {s(S_TAB)}, {s(S_T1)}
    s_addc_u32 {s(S_TAB+1)}, {s(S_TAB+1)}, 0
    s_load_dwordx16 {s(S_ND,16)}, {s(S_TAB,2)}, 0
    s_mov_b32 {s(SRD_B0+3)}, {SRD3}
    v_and_b32 v20, 63, v0
    s_waitcnt lgkmcnt(0)
    s_load_dwordx2 {s(SRD_B0,2)}, s[0:1], {s(S_ND+D_KB0)}
    s_mov_b32 {s(SRD_B0+2)}, {s(S_ND+D_BSZ)}
    s_lshl_b32 {s(S_T1)}, {s(S_ND+D_LDB)}, 4
    v_mul_lo_u32 v21, {s(S_T1)}, v20
    v_and_b32 v22, 15, v20
    v_mul_lo_u32 v22, {s(S_ND+D_OSTR)}, v22
    s_waitcnt lgkmcnt(0)
    s_cmp_eq_u32 s3, 4
    s_cbranch_scc0 {l}_1
    buffer_load_dword v23, v21, {s(SRD_B0,4)}, {s(S_ND+D_B0)} offen
    s_branch {l}
    ''')
    a.label(l + '_1')
    a(f'''
    s_cmp_eq_u32 s3, 5
    s_cbranch_scc0 {l}
    buffer_load_dword v23, v22, {s(SRD_WS,4)}, {s(S_ND+D_OUT)} offen
    buffer_load_dword v23, off, {s(SRD_WS,4)}, {s(S_ND+D_SIG)}
    ''')
    a.label(l)
    if getattr(a, 'ctouch', 0) >= 2:
        a('s_cmp_eq_u32 s3, 6')
        a(f's_cbranch_scc0 {l}_7')
        code_touch(a, 'ln_sig', 18, 68, 70)
        code_touch(a, 'w_firstH', 30, 68, 70)
        a.label(l + '_7')
        a('s_cmp_eq_u32 s3, 7')
        a(f's_cbranch_scc0 {l}_8')
        code_touch(a, 'w_first16', 60, 68, 70)
        a.label(l + '_8')
        a('s_waitcnt lgkmcnt(0)')


def emit_late_touch(a, r0, r1):
    a(f'''
    v_bfe_u32 v20, v0, 1, 7
    v_mul_u32_u24 v20, {s(S_ND+D_LDB)}, v20
    v_and_b32 v21, 1, v0
    v_lshl_add_u32 v20, v21, 7, v20
    s_mul_i32 {s(S_T2)}, {s(S_ND+D_LDB)}, {r0}
    s_add_u32 {s(S_T2)}, {s(S_T2)}, {s(S_ND+D_B0)}
    s_lshl_b32 {s(S_T1)}, {s(S_ND+D_LDB)}, 7
    ''')
    for r in range(r0, r1, 128):
        a(f'buffer_load_dword v255, v20, {s(SRD_B0,4)}, {s(S_T2)} offen')
        a(f's_add_u32 {s(S_T2)}, {s(S_T2)}, {s(S_T1)}')
```

```python
MB = 1 << 20
NAME = 'recurrent_scan__memory_aug_recurrent_mem_tr__glu_gated_glu__prompt'
KA_X, KA_MEM0, KA_WQ, KA_WK, KA_WV, KA_WO, KA_SEG, KA_BX, KA_WG, KA_WU, KA_WD, KA_OUT, KA_DBG, KA_WS = [8 * i for i in range(14)]
WS_XN = 0
WS_QS = 4 * MB
WS_KS = 20 * MB
WS_VS = 36 * MB
WS_HH = 52 * MB
WS_GG = 112 * MB
WS_SP = 72 * MB
WS_HP = 96 * MB
WS_HPT = WS_HP + 8 * MB
WS_YP = 136 * MB
WS_PART = 200 * MB
WS_MEM = 204 * MB
WS_QKV = 205 * MB
WS_CNT = 208 * MB
WS_SIZE = 256 * MB
SRD3 = 0x00020000
import os
NTAIL = int(os.environ.get("NTAIL", "4"))
WS_OO = 168 * MB
WS_KM = 184 * MB
WS_XN2 = 128 * MB

WS_PX = 206 * MB
WSB = int(os.environ.get("WSB", "-1"))
if WSB >= 0:
    o = WSB * MB
    WS_XN = o; WS_QS = o + 4 * MB; WS_KS = o + 20 * MB; WS_VS = o + 36 * MB; WS_HH = o + 52 * MB; WS_GG = o + 68 * MB; WS_SP = o + 84 * MB
    WS_OO = o + 116 * MB; WS_KM = o + 132 * MB; WS_PART = o + 148 * MB; WS_MEM = o + 150 * MB; WS_QKV = o + 151 * MB; WS_CNT = o + 152 * MB
```

```python
import heapq, random, json, os, math
from layout4 import *
import k_gemm5 as G
import k_fin5 as F
CQ_TAB = WS_CNT + 512
CA_TAB = WS_CNT + 3072
CQ2_TAB = WS_CNT + 4096
NW = 32
DEF = dict(T0=21.0, P=2.5, PH=2.9, ts=9.7, dh0=10.0, dh=8.2, nhb=1, lw=0.5, dq=22.2, dg=23.3, cold=dict(g=5.0, d=5.0, o=1.0), dd=20.2, do=21.6, da=11.3, df=4.2, dfw=6.0, dw=12.5, dp=9.0, dp2=6.0, gap=0.8, margin=3.0, rm=1.0, tgt=172.0)

def make_jobs(nlb, p):
    T0, P = p['T0'], p['P']
    s1 = p.get('s1', 8 * nlb)
    ct = lambda st: T0 + min(st, s1) * P + max(0, st - s1) * p['PH']
    jobs = []
    def add(**k): k['id'] = len(jobs); k.setdefault('rel', 0); k.setdefault('dl', None); k.setdefault('deps', []); jobs.append(k); return k['id']
    dl = lambda seg: ct(seg - 2) - p['margin'] if seg else T0
    Q = {}; Gj = {}; A = {}; DO = {}; nb0 = p.get('nb0', nlb)
    for b in range(p.get('scb', 64) // 8):
        for mat in (1, 2, 0):
            lq = mat == 0 and b < nb0
            if b < p['nhb'] and not lq:
                for hb in (2 * b, 2 * b + 1):
                    if p.get('wt') and hb == 2: continue
                    kd = 'w' if p.get('wt') and hb == 1 else 'h'
                    for i in range(8): add(kind=kd, mb=hb, mat=mat, i=i, dur=p['dw'] if kd == 'w' else p['dh'], dl=dl(4 * hb))
            else:
                for i in range(4):
                    n = add(kind='q', mb=b, mat=mat, i=i, dur=p['dq'], dl=None if lq else dl(8 * b) + (p['margin'] if b == 1 else 0))
                    if lq: Q.setdefault((b, i // 2), []).append(n)
    for mb in range(8):
        for i in range(7): Gj.setdefault(mb, []).append(add(kind='g', mb=mb, i=i, m=2 if mb < p.get('nd2', 0) else 1, dur=p['dg']))
        m = 2 if mb < p.get('nd2', 0) else 1
        for i in range(4 // m): DO.setdefault(mb, []).append(add(kind='d', mb=mb, i=i, m=m, dur=p['dd'] * m - p.get('m2', 1.0) * (m - 1), deps=Gj[mb]))
    for b in range(nlb):
        m = 2 if b < p.get('no2', 0) else 1
        for hf in range(2 if b < nb0 else 0):
            for i in range(2): A.setdefault(b, []).append(add(kind='a', mb=b, i=i, hf=hf, m=m, dur=p['da'], rel=ct(8 * b + 4 * hf + 6.5) + p['rm'], deps=Q[(b, i)]))
        for i in range(4 // m): DO[b].append(add(kind='o', mb=b, i=i, m=m, dur=p['do'] * m - p.get('m2', 1.0) * (m - 1), deps=A.get(b, []), rel=0 if b < nb0 else ct(8 * b + 10.5) + p['rm']))
    PH = {}
    for hb in range(2 * nlb, s1 // 4):
        two = hb >= 14
        for i in range(16 if two else 8):
            PH.setdefault(hb >> 1, []).append(add(kind='p', mb=hb, i=i, two=two, dur=p['dp2'] if two else p['dp'], rel=ct(4 * hb + 6.5) + p['rm']))
    for seg in range(64 - NTAIL):
        rel = ct(seg + 3.5 + ((3 - seg) % 4 if seg < 55 else 0)) if seg >= s1 else 0
        b = seg >> 3
        n = p.get('fn', 1) if b < p.get('nf2', 0) else 1
        if seg % n: continue
        add(kind='f', mb=b, i=seg, n=n, dur=(p['df'] - 1.4 - (0.5 if b < p.get('no2', 0) else 0) - (0.5 if b < p.get('nd2', 0) else 0)) * n + 1.4, rel=rel, deps=DO[b] + (PH.get(b, []) if seg < s1 else []),
            otgt=0 if seg >= s1 else 16 if b < nlb else 4 * len(PH[b]), four=2 if b < p.get('no2', 0) else int(seg < min(s1, 56)), g2=int(b < p.get('nd2', 0)))
    for sg in range(NTAIL):
        for i in range(4): add(kind='t', mb=7, seg=64 - NTAIL + sg, i=i, dur=1.5, rel=ct(64 - NTAIL + sg + 1.4) + (0.3 if sg == NTAIL - 1 else 2.0), deps=DO[7])
    for j in jobs: j['pan'] = panels(j)
    return jobs, ct

def simulate(jobs, lists, p, sc=None, detail=False):
    n = len(jobs); end = [None] * n; start = [0] * n
    pos = [0] * NW
    durs, rs = sc if sc else ([j['dur'] for j in jobs], 1.0)
    T0 = p['T0']; gap = p['gap']; tgt = p['tgt']
    waiting = {}; heap = [(p['ts'], w, p['ts']) for w in range(NW)]; ndone = 0; pen = 0.0
    first = {}
    while heap:
        t, w, fr = heapq.heappop(heap); l = lists[w]
        if pos[w] >= len(l): continue
        i = l[pos[w]]; j = jobs[i]
        blk = None; rt = fr
        for d in j['deps']:
            e = end[d]
            if e is None: blk = d; break
            if e > rt: rt = e
        if blk is not None:
            waiting.setdefault(blk, []).append((w, fr)); continue
        rel = T0 + (j['rel'] - T0) * rs if j['rel'] else 0
        if rel > rt: rt = rel
        if rt > t + 1e-9:
            heapq.heappush(heap, (rt, w, fr)); continue
        k = j['kind']; dur = durs[i]
        if pos[w] == 0: dur += p['dh0'] - p['dh'] + (1.0 if k == 'q' else 0)
        if k in 'gdo':
            f = first.setdefault(k, rt)
            if rt < f + 12: dur += p['cold'][k]
        if not (rt == fr and k in 'qgdo' and pos[w] and jobs[l[pos[w] - 1]]['kind'] in 'qgdo'): rt += gap
        e = rt + dur
        x = e - max(tgt, rel + gap + dur)
        if x > 0: pen += x * x
        start[i] = rt; end[i] = e; pos[w] += 1; ndone += 1
        heapq.heappush(heap, (e, w, e))
        for w2, f2 in waiting.pop(i, ()): heapq.heappush(heap, (rt, w2, f2))
    if ndone < n: return None
    if detail: return start, end
    late = {}
    for j in jobs:
        if j['dl'] is not None:
            x = end[j['id']] - (T0 + (j['dl'] - T0) * rs)
            if x > late.get(j['dl'], 0): late[j['dl']] = x
    return max(end), sum(late.values()), pen, start

def scenarios(jobs, seed=5):
    r = random.Random(seed); out = [None]
    for g, rs in ((1.05, 0.99), (0.98, 1.04), (1.03, 1.01), (1.0, 1.0)):
        ks = {k: r.uniform(0.97, 1.05) for k in 'hqgdaoftpw'}
        out.append(([j['dur'] * g * ks[j['kind']] * r.uniform(0.95, 1.08) for j in jobs], rs))
    return out

def panels(j):
    k = j['kind']
    if k == 'q': return (('X', j['mb']), ('W', j['mat'], j['i']))
    if k == 'g': return (('X', j['mb']), ('G', j['i']))
    if k == 'd': return (('H', j['mb']), ('D', j['i']))
    if k == 'o': return (('O', j['mb']), ('Wo', j['i']))
    return ()

def unshared(jobs, start, win):
    by = {}
    for j in jobs:
        for pn in j['pan']: by.setdefault(pn, []).append(start[j['id']])
    n = 0
    for l in by.values():
        l.sort(); last = -1e9
        for t in l:
            if t - last > win: n += 1; last = t
    return n

def score(jobs, lists, p, scs):
    tot = 0.0
    for sc in scs:
        r = simulate(jobs, lists, p, sc)
        if r is None: return 1e9
        tot += r[0] + 3 * r[1] + 0.004 * r[2]
        if sc is None: tot += p['lw'] * len(scs) / 2 * unshared(jobs, r[3], 2.5)
    return tot / len(scs) * 2

def initial(jobs, nlb, p):
    lists = [[] for _ in range(NW)]
    h = {(j['mb'], j['mat'], j['i']): j['id'] for j in jobs if j['kind'] in 'hw'}
    pre = set()
    for k in range(NW):
        mat, i = 1 + ((k >> 3) & 1), k & 7
        if p.get('wt'): lists[k] = [h[(0, mat, i)], h[(3, mat, i)]] if k < 16 else [h[(1, mat, i)]]
        elif (2, 1, 0) in h: lists[k] = [h[(k >> 4, mat, i)], h[(2 + (k >> 4), mat, i)]]
        elif p.get('mix') and k < 24:
            lists[k] = [h[(0, 1, i)], h[(1, 1, i)]] if k < 8 else [h[(0, 2, i)]] if k < 16 else [h[(1, 2, i)]]
        elif p.get('mix'):
            lists[k] = [[j['id'] for j in jobs if j['kind'] == 'q' and j['mb'] == 1 and j['mat'] == 1 + ((k >> 2) & 1) and j['i'] == k & 3][0]]
            pre.add(lists[k][0])
        elif k < 16: lists[k] = [h[(0, mat, i)], h[(1, mat, i)]]
        else:
            mb, mt = ((1, 1 + ((k >> 2) & 1)) if k < 24 else ((k >> 2) & 1, 0)) if p.get('cln') else (1 + ((k >> 3) & 1), 1 + ((k >> 2) & 1))
            lists[k] = [[j['id'] for j in jobs if j['kind'] == 'q' and j['mb'] == mb and j['mat'] == mt and j['i'] == k & 3][0]]
            pre.add(lists[k][0])
    def key(j):
        k, b = j['kind'], j['mb']
        if k == 'q': return j['dl'] - 45 if j['dl'] is not None else 20 * b + 5
        return {'g': 30 + 12 * b, 'd': 120 + 5 * b, 'a': j['rel'] + 8, 'o': max(75 + 20 * b, j['rel'] + 5), 'p': j['rel'] + 2, 'f': max(170 + b, j['rel'], 185 if any(jobs[d]['kind'] == 'p' for d in j['deps']) else 0), 't': 300}[k]
    rest = sorted((j for j in jobs if j['kind'] not in 'htw' and j['id'] not in pre), key=key)
    load = [(0.0 if len(lists[w]) == 2 else 5.0, w) for w in range(NW)]
    for j in rest:
        t, w = heapq.heappop(load); lists[w].append(j['id']); heapq.heappush(load, (t + j['dur'], w))
    for n, j in enumerate(j for j in jobs if j['kind'] == 't'): lists[(n * 5) % NW].append(j['id'])
    return lists

def optimise(jobs, lists, p, iters, seed=1, t0=3.0):
    rnd = random.Random(seed); scs = scenarios(jobs); cur = score(jobs, lists, p, scs); best = (cur, [list(l) for l in lists])
    for it in range(iters):
        temp = t0 * (1 - it / iters) ** 2 + 0.01
        w1 = rnd.randrange(NW); w2 = rnd.randrange(NW)
        l1, l2 = lists[w1], lists[w2]
        n1 = len(l1) - (jobs[l1[-1]]['kind'] == 't'); n2 = len(l2) - (jobs[l2[-1]]['kind'] == 't')
        f1 = 2 if len(l1) > 1 and jobs[l1[1]]['kind'] == 'h' else 1; f2 = 2 if len(l2) > 1 and jobs[l2[1]]['kind'] == 'h' else 1
        if n1 <= f1: continue
        i1 = rnd.randrange(f1, n1); o1, o2 = list(l1), list(l2)
        m = rnd.random()
        if m < 0.4 and n2 > f2:
            i2 = min(max(f2, i1 + rnd.randint(-2, 2)), n2 - 1)
            if w1 == w2 and i1 == i2: continue
            l1[i1], l2[i2] = l2[i2], l1[i1]
        elif m < 0.8:
            j = l1.pop(i1)
            if w1 == w2: n2 -= 1
            l2.insert(min(max(f2, i1 + rnd.randint(-2, 2)), n2), j)
        else:
            if w1 == w2: continue
            i2 = min(max(f2, i1 + rnd.randint(-1, 1)), n2)
            l1[:], l2[:] = o1[:i1] + o2[i2:], o2[:i2] + o1[i1:]
        sc = score(jobs, lists, p, scs)
        if sc <= cur or rnd.random() < math.exp((cur - sc) / temp):
            cur = sc
            if sc < best[0]: best = (sc, [list(l) for l in lists])
        else:
            l1[:] = o1; l2[:] = o2
        if it % 20000 == 0: r = simulate(jobs, lists, p); print(it, round(cur, 2), r[:3], unshared(jobs, r[3], 2.5), flush=True)
    return best[1]

def report(jobs, lists, p, ct):
    st, en = simulate(jobs, lists, p, detail=True)
    print('fetches', unshared(jobs, st, 2.5), 'scen', [[round(x, 1) for x in simulate(jobs, lists, p, sc)[:2]] for sc in scenarios(jobs) + scenarios(jobs, 77)[1:]], 'chain end', ct(64))
    for k in 'hqgdaopft': print(k, [round(max(en[j['id']] for j in jobs if j['kind'] == k and j['mb'] == mb)) for mb in range(16) if any(j['kind'] == k and j['mb'] == mb for j in jobs)])
    for w in range(NW): print(w, ' '.join(f"{jobs[i]['kind']}{jobs[i]['mb']}@{st[i]:.0f}" for i in lists[w]))

def path(nlb, tag): return os.path.join(os.path.dirname(os.path.abspath(__file__)), f'plan_{nlb}{tag}.json')

def descriptor(j, x, nb0):
    o = []; m = j.get('m', 1)
    k, mb, i = j['kind'], j['mb'], j['i']
    q2 = lambda base: (base + 16 * (x >> 1), 4 if x & 1 else 1)
    if k == 'q':
        t = 4 * x + i
        o.append(G.job_qkv(j['mat'], mb, t, sig=((CQ2_TAB if j['mat'] == 0 and mb < nb0 else CQ_TAB) + mb * 256 + (t // 2) * 16) | 10))
    elif k == 'h':
        t = 8 * x + i
        o.append(G.job_qkv_half(j['mat'], mb, t, sig=(CQ_TAB + (mb >> 1) * 256 + (t // 4) * 16) | (4 if mb & 1 else 1)))
    elif k == 'w': t = 8 * x + i; o.append(G.job_qkv_w(j['mat'], 1, t, sig=(CQ_TAB + (t // 4) * 16) | 4))
    elif k == 'g': ad, inc = q2(WS_CNT + 64 * mb); o.append(G.job_glu(mb, 7 * x + i, sig=ad | (1 if m == 2 else inc)))
    elif k == 'd' and m == 2: o.append(G.job_down_h(mb, 2 * (x & 1) + i, x >> 1, wait=q2(WS_CNT + 64 * mb)[0], wtgt=14, sig=(F.CD_TAB + 64 * mb) | 2, m=2))
    elif k == 'd': ad, inc = q2(WS_CNT + 64 * mb); o.append(G.job_down_h(mb, i, x, wait=ad + 4 * (x & 1), wtgt=7, sig=(F.CD_TAB + 64 * mb) | 1))
    elif k == 'f': o.append(G.job_fin(i, x, otgt=j.get('otgt', 0), four=j.get('four', 0), g2=j.get('g2', 0), n=j.get('n', 1)))
    elif k == 'p': o.append(G.job_wo_half(mb, i & 7, 2 * x + (i >> 3) if j['two'] else x, 512 if j['two'] else 1024, wait=F.CS_TAB + 128 * x, wtgt=4 * mb + 5, sig=(F.CD_TAB + 64 * (mb >> 1)) | 4))
    elif k == 't': o.append(G.job_fin(j['seg'], 4 * x + i, True))
    elif k == 'a':
        ad, inc = q2(CA_TAB + 64 * mb); hg = 2 * x + i
        o.append(G.job_att(2 * mb + j['hf'], hg, wait=F.CS_TAB + 128 * x, wtgt=8 * mb + 4 * j['hf'] + 4, sig=ad | (1 if m == 2 else inc), wq=CQ2_TAB + mb * 256 + hg * 16))
    elif m == 2:
        w_, t_ = (F.CS_TAB + 128 * x, 8 * mb + 9) if mb >= nb0 else (q2(CA_TAB + 64 * mb)[0], 8)
        o.append(G.job_wo(mb, 2 * (x & 1) + i, x >> 1, wait=w_, wtgt=t_, sig=(F.CD_TAB + 64 * mb) | 8, m=2))
    elif mb >= nb0: o.append(G.job_wo(mb, i, x, wait=F.CS_TAB + 128 * x, wtgt=8 * mb + 9, sig=(F.CD_TAB + 64 * mb) | 4))
    else: ad, inc = q2(CA_TAB + 64 * mb); o.append(G.job_wo(mb, i, x, wait=ad + 4 * (x & 1), wtgt=4, sig=(F.CD_TAB + 64 * mb) | 4))
    return o[0]

def build(nlb=6, tag='', nb0=None):
    global PLAN
    d = json.load(open(path(nlb, tag))); p = d['p']; lists = d['lists']
    assert p.get('nb0', nlb) == nb0
    jobs, ct = make_jobs(nlb, p)
    assert sorted(i for l in lists for i in l) == list(range(len(jobs)))
    st, en = simulate(jobs, lists, p, detail=True)
    out = []; PLAN = []
    for wk in range(128):
        x = wk & 3; o = []
        PLAN.append([(jobs[i]['kind'], jobs[i]['mb'], round(st[i], 1)) for i in lists[wk >> 2]])
        for n in lists[wk >> 2]:
            o.append(descriptor(jobs[n], x, nb0))
        out.append(o)
    return out

if __name__ == '__main__':
    import sys
    nlb = int(sys.argv[1]); iters = int(sys.argv[2]); tag = sys.argv[3] if len(sys.argv) > 3 else ''
    p = dict(DEF); p.update(eval(sys.argv[4]) if len(sys.argv) > 4 else {})
    jobs, ct = make_jobs(nlb, p)
    lists = optimise(jobs, initial(jobs, nlb, p), p, iters, seed=p.get('seed', 1))
    report(jobs, lists, p, ct)
    json.dump(dict(p=p, lists=lists), open(path(nlb, tag), 'w'))
```

```python
import heapq, random, json, os, math
import sched6 as S
from sched6 import make_jobs, scenarios, unshared, DEF, NW
from layout4 import *

def simulate(jobs, order, p, sc=None, detail=False):
    n = len(jobs); end = [None] * n; start = [0] * n; who = [0] * n
    durs, rs = sc if sc else ([j['dur'] for j in jobs], 1.0)
    T0 = p['T0']; gap = p['gap']; tgt = p['tgt']
    head = NW; nxt = [None] * NW; free = [None] * NW; prevk = [''] * NW
    ev = [(p['ts'], 1, w, order[w]) for w in range(NW)]
    fr = [p['ts']] * NW; waiting = {}; first = {}; pen = 0.0; nd = 0
    while ev:
        t, kind, w, i = heapq.heappop(ev)
        if kind == 0:
            if head < n:
                heapq.heappush(ev, (fr[w], 1, w, order[head])); head += 1
            continue
        j = jobs[i]; blk = None; rt = fr[w]
        for d in j['deps']:
            e = end[d]
            if e is None: blk = d; break
            if e > rt: rt = e
        if blk is not None:
            waiting.setdefault(blk, []).append((w, i)); continue
        rel = T0 + (j['rel'] - T0) * rs if j['rel'] else 0
        if rel > rt: rt = rel
        if rt > t + 1e-9:
            heapq.heappush(ev, (rt, 1, w, i)); continue
        k = j['kind']; dur = durs[i]
        if not prevk[w]: dur += p['dh0'] - p['dh'] + (1.0 if k == 'q' else 0)
        if k in 'gdo':
            f = first.setdefault(k, rt)
            if rt < f + 12: dur += p['cold'][k]
        if not (rt == fr[w] and k in 'qgdo' and prevk[w] in 'qgdo' and prevk[w]): rt += gap
        e = rt + dur
        x = e - max(tgt, rel + gap + dur)
        if x > 0: pen += x * x
        start[i] = rt; end[i] = e; who[i] = w; fr[w] = e; prevk[w] = k; nd += 1
        lead = 0 if j.get('two') else dur * 0.375 if k == 'w' else dur * 0.75 if k in 'hp' else 8.2 if k in 'qgdo' else dur
        heapq.heappush(ev, (e - lead, 0, w, -1))
        for w2, i2 in waiting.pop(i, ()): heapq.heappush(ev, (max(rt, fr[w2]), 1, w2, i2))
    if nd < n: return None
    if detail: return start, end, who
    late = {}
    for j in jobs:
        if j['dl'] is not None:
            x = end[j['id']] - (T0 + (j['dl'] - T0) * rs)
            if x > late.get(j['dl'], 0): late[j['dl']] = x
    return max(end), sum(late.values()), pen, start

def valid(jobs, order):
    pos = {i: k for k, i in enumerate(order)}
    return all(pos[d] < pos[j['id']] for j in jobs for d in j['deps'])

def score(jobs, order, p, scs):
    tot = 0.0
    for sc in scs:
        r = simulate(jobs, order, p, sc)
        if r is None: return 1e9
        tot += r[0] + 3 * r[1] + p.get('pw', 0.004) * r[2]
        if sc is None: tot += p['lw'] * len(scs) / 2 * unshared(jobs, r[3], 2.5)
    return tot / len(scs) * 2

def optimise(jobs, order, p, iters, seed, t0=2.0):
    rnd = random.Random(seed); scs = scenarios(jobs); cur = score(jobs, order, p, scs); best = (cur, list(order)); n = len(order)
    nt = sum(j['kind'] == 't' for j in jobs)
    pos = {i: k for k, i in enumerate(order)}
    users = {}
    for j in jobs:
        for d in j['deps']: users.setdefault(d, []).append(j['id'])
    for it in range(iters):
        temp = t0 * (1 - it / iters) ** 2 + 0.01
        a = rnd.randrange(NW, n - nt); b = min(max(NW, a + rnd.choice((-1, 1)) * int(rnd.expovariate(1 / 14) + 1)), n - nt - 1)
        if a == b: continue
        old = list(order)
        if rnd.random() < 0.5: order[a], order[b] = order[b], order[a]
        else: order.insert(b, order.pop(a))
        if jobs[old[a]]['kind'] == jobs[old[b]]['kind'] == 'f' or not valid(jobs, order): order[:] = old; continue
        sc = score(jobs, order, p, scs)
        if sc <= cur or rnd.random() < math.exp((cur - sc) / temp):
            cur = sc
            if sc < best[0]: best = (sc, list(order))
        else: order[:] = old
        if it % 20000 == 0: r = simulate(jobs, order, p); print(it, round(cur, 2), r[:3], unshared(jobs, r[3], 2.5), flush=True)
    return best[1]

def path(nlb, tag): return os.path.join(os.path.dirname(os.path.abspath(__file__)), f'order_{nlb}{tag}.json')

def build(nlb=6, tag='', nb0=None, s1=None, scb=64, wt=0):
    global PLAN
    d = json.load(open(path(nlb, tag))); p = d['p']; order = d['order']
    assert p.get('nb0', nlb) == nb0 and p.get('s1', 8 * nlb) == s1 and p.get('scb', 64) == scb and p.get('wt', 0) == wt
    jobs, ct = make_jobs(nlb, p)
    assert sorted(order) == list(range(len(jobs))) and valid(jobs, order)
    st, en, who = simulate(jobs, order, p, detail=True)
    PLAN = [(jobs[i]['kind'], jobs[i]['mb'], round(st[i], 1)) for i in order]
    return [[S.descriptor(jobs[i], x, nb0) for i in order] for x in range(4)]

if __name__ == '__main__':
    import sys
    nlb = int(sys.argv[1]); iters = int(sys.argv[2]); tag = sys.argv[3]; src = sys.argv[4]
    d = json.load(open(S.path(nlb, src))); p = d['p']; p.update(eval(sys.argv[5]) if len(sys.argv) > 5 else {})
    jobs, ct = make_jobs(nlb, p)
    st, en = S.simulate(jobs, d['lists'], p, detail=True)
    first = [l[0] for l in d['lists']]
    rest = sorted((j['id'] for j in jobs if j['id'] not in first), key=lambda i: (jobs[i]['kind'] == 't', st[i] if jobs[i]['kind'] != 't' else jobs[i]['rel'], jobs[i]['pan']))
    order = optimise(jobs, first + rest, p, iters, p.get('seed', 1))
    st, en, who = simulate(jobs, order, p, detail=True)
    print('fetches', unshared(jobs, st, 2.5), 'scen', [[round(x, 1) for x in simulate(jobs, order, p, sc)[:2]] for sc in scenarios(jobs) + scenarios(jobs, 77)[1:]], 'chain end', ct(64))
    for k in 'hqgdaopft': print(k, [round(max(en[j['id']] for j in jobs if j['kind'] == k and j['mb'] == mb)) for mb in range(16) if any(j['kind'] == k and j['mb'] == mb for j in jobs)])
    print(' '.join(f"{jobs[i]['kind']}{jobs[i]['mb']}@{st[i]:.0f}" for i in order))
    json.dump(dict(p=p, order=order), open(path(nlb, tag), 'w'))
```
